```python
import torch

def _softmax(x, axis=-1):
    return torch.softmax(x, dim=axis)
def _gelu(x):
    return torch.nn.functional.gelu(x, approximate="tanh")
def _silu(x):
    return torch.nn.functional.silu(x)
def _sigmoid(x):
    return torch.sigmoid(x)
def _layernorm(x, axis=-1, eps=1e-5):
    m = x.mean(dim=axis, keepdim=True)
    v = x.var(dim=axis, keepdim=True, unbiased=False)
    return (x - m) / torch.sqrt(v + eps)
def _scatter_add(tgt, idx, src, axis=0):
    return tgt.clone().index_add_(axis, idx, src)
def _segment_sum(src, seg, n):
    out = torch.zeros((n,) + src.shape[1:], dtype=src.dtype)
    return out.index_add_(0, seg, src)
def _pad(x, pw):
    flat = tuple(v for pair in reversed(pw) for v in pair)
    return torch.nn.functional.pad(x, flat)

kernel_name = 'gated_mix__spectral_gfnet__linear_attn_block__prompt'

def setup_inputs():

    _w = (lambda a: (lambda t: t.to(torch.bfloat16) if t.is_floating_point() else t)(torch.as_tensor(a)))
    def _A_setup():
        B, S, D = 1, 2048, 640
        Df = D // 2 + 1
        return {
            "x": _w((lambda *s: torch.randn(*s, dtype=torch.bfloat16) * 0.05)(B, S, D)),
            "w_r": _w((lambda *s: torch.randn(*s, dtype=torch.bfloat16) * 1.6)(S, Df) * 0.02),
            "w_i": _w((lambda *s: torch.randn(*s, dtype=torch.bfloat16) * 1.6)(S, Df) * 0.02),
        }
    _A_in = _A_setup()

    def _B_setup():
        B, S, D = 1, 2048, 640
        return {
            "x": _w((lambda *s: torch.randn(*s, dtype=torch.bfloat16) * 0.05)(B, S, D)),
            "wqkv": _w((lambda *s: torch.randn(*s, dtype=torch.bfloat16) * 0.4)(D, 3 * D)),
            "wo": _w((lambda *s: torch.randn(*s, dtype=torch.bfloat16) * 0.05)(D, D)),
        }
    _B_in = _B_setup()

    return {
        "A_x": _A_in["x"],
        "A_w_r": _A_in["w_r"],
        "A_w_i": _A_in["w_i"],
        "B_x": _B_in["x"],
        "B_wqkv": _B_in["wqkv"],
        "B_wo": _B_in["wo"],
        "gate_w": _w((lambda *s: torch.randn(*s, dtype=torch.bfloat16) * 0.05)(640) * 16.0),
    }

def reference(A_x, A_w_r, A_w_i, B_x, B_wqkv, B_wo, gate_w):
    def _A_ref(x, w_r, w_i):
        B, S, D = x.shape
        X = (lambda x, axes=(-2,-1): torch.fft.rfft2(x.float(), dim=axes))(x, axes=(-2, -1))
        W = w_r + 1j * w_i
        X = X * W
        y = (lambda x, s, axes=(-2,-1): torch.fft.irfft2(x, s=s, dim=axes).to(torch.bfloat16))(X, (S, D), axes=(-2, -1))
        return y

    def _B_ref(x, wqkv, wo):
        B, S, D = x.shape
        H = 32; Dh = D // H
        qkv = (lambda x, *d: x.permute(*d))((x @ wqkv).reshape(B, S, 3, H, Dh), 2, 0, 3, 1, 4)
        q, k, v = qkv[0], qkv[1], qkv[2]
        phi = lambda t: torch.where(t > 0, t + 1, torch.exp(t)) + 1e-6
        pq, pk = phi(q), phi(k)
        kv = torch.einsum("bhsd,bhse->bhde", pk, v)
        z = torch.einsum("bhsd->bhd", pk)
        num = torch.einsum("bhqd,bhde->bhqe", pq, kv)
        den = torch.einsum("bhqd,bhd->bhq", pq, z)[..., None] + 1e-6
        o = num / den
        return (lambda x, *d: x.permute(*d))(o, 0, 2, 1, 3).reshape(B, S, D) @ wo

    x = A_x
    g = _sigmoid((x * gate_w).sum(-1, keepdims=True))
    a = _A_ref(x, A_w_r, A_w_i)
    b = _B_ref(x, B_wqkv, B_wo)
    return g * a + (1 - g) * b
```

```python
import re
REG=re.compile(r'(?<![\w.])([vas])(?:(\d+)|\[(\d+):(\d+)\])(?![\w])')
def regs(tok):
    out=set()
    for m in REG.finditer(tok):
        f=m.group(1)
        if m.group(2) is not None: out.add((f,int(m.group(2))))
        else:
            for i in range(int(m.group(3)),int(m.group(4))+1): out.add((f,i))
    if re.search(r'\bvcc\b',tok): out|={('s',106),('s',107)}
    if re.search(r'\bm0\b',tok): out.add(('s',124))
    if re.search(r'\bexec\b',tok): out|={('s',126),('s',127)}
    return out
TRANS=('v_exp_f32','v_log_f32','v_rcp_f32','v_rsq_f32','v_sqrt_f32','v_sin_f32','v_cos_f32')
class Ins:
    def __init__(s,text):
        s.text=text
        t=text.split(';')[0].strip()
        s.mn=t.split()[0]
        rest=t[len(s.mn):].strip()
        ops=[o.strip() for o in re.split(r',(?![^\[]*\])',rest)] if rest else []
        s.ops=ops
        mn=s.mn
        s.dst=set(); s.src=set(); s.srcC=set(); s.srcAB=set(); s.data=set()
        s.kind='other'
        allr=lambda L: set().union(*[regs(o) for o in L]) if L else set()
        if mn.startswith('v_mfma'):
            s.kind='mfma'; s.dst=regs(ops[0]); s.srcAB=regs(ops[1])|regs(ops[2]); s.srcC=regs(ops[3]); s.src=s.srcAB|s.srcC
            s.passes=4 if '16x16x32' in mn else 8
        elif mn.startswith('v_permlane'):
            s.kind='valu'; s.dst=allr(ops[:2]); s.src=allr(ops[:2])
        elif mn.startswith('v_'):
            s.kind='valu'; s.dst=regs(ops[0]); s.src=allr(ops[1:])
            if '_co_' in mn: s.dst|=regs(ops[1])
            if mn.startswith(('v_fmac','v_pk_fmac','v_writelane')): s.src|=s.dst
            if mn.startswith('v_cndmask') and len(ops)==3: s.src|=regs('vcc')
            if mn.startswith('v_cmpx'): s.dst|=regs('exec')
        elif mn.startswith(('buffer_load','global_load')):
            s.kind='vmem'
            if re.search(r'\blds\b',t) or 'load_lds' in mn: s.src=allr(ops)|regs('m0'); s.lds=True
            else: s.dst=regs(ops[0]); s.src=allr(ops[1:])
        elif mn.startswith(('buffer_store','buffer_atomic')):
            s.kind='vmem'; s.src=allr(ops); s.data=regs(ops[0])
        elif mn.startswith(('global_store','global_atomic')):
            s.kind='vmem'; s.src=allr(ops); s.data=regs(ops[1])
        elif mn.startswith('ds_'):
            s.kind='ds'
            if mn.startswith(('ds_read','ds_bpermute','ds_permute','ds_swizzle')) or '_rtn' in mn: s.dst=regs(ops[0]); s.src=allr(ops[1:])
            else: s.src=allr(ops)
        elif mn.startswith('s_'):
            s.kind='salu'
            if mn.startswith(('s_cmp','s_cbranch','s_branch','s_waitcnt','s_barrier','s_nop','s_endpgm','s_sleep','s_setprio','s_bitcmp')): s.src=allr(ops)
            else:
                s.dst=regs(ops[0]) if ops else set(); s.src=allr(ops[1:])
                if 'saveexec' in mn: s.dst|=regs('exec')
        s.wide = s.kind=='vmem' and bool(s.data) and (mn.endswith('x3') or mn.endswith('x4'))
        s.states = (int(ops[0],0)+1) if mn=='s_nop' else 1
def need(p,c):
    n=0
    pv={r for r in p.dst if r[0] in 'va'}; ps={r for r in p.dst if r[0]=='s'}
    if p.kind=='valu':
        if c.kind=='mfma' and (pv&c.src): n=max(n,2)
        if c.kind=='mfma' and (ps&regs('exec')): n=max(n,4)
        if c.kind=='vmem' and (ps&c.src): n=max(n,5)
        if c.kind=='valu' and (ps&c.src): n=max(n,4 if c.mn.startswith(('v_readlane','v_writelane')) else 2)
        if c.mn.startswith(('v_readfirstlane','v_readlane')) and (pv&c.src): n=max(n,1)
        if c.mn.startswith('v_permlane') and (pv&c.src): n=max(n,2)
        if c.kind=='valu' and 'dpp' in c.text and (pv&c.src): n=max(n,2)
        if p.mn.startswith(TRANS) and c.kind in('valu','mfma','vmem','ds') and not c.mn.startswith(TRANS) and (pv&c.src): n=max(n,1)
        if c.kind=='salu' and (ps&c.src): n=max(n,1)
    if p.kind=='mfma':
        big={4:8,8:12}[p.passes]
        if c.kind=='mfma':
            if p.dst&c.srcAB: n=max(n,big)
            if (p.dst&c.srcC) and p.dst!=c.srcC: n=max(n,{4:6,8:10}[p.passes])
            if (p.dst&c.dst) and not (p.dst&c.srcC): n=max(n,big)
        elif c.kind in('valu','vmem','ds'):
            if p.dst&(c.src|c.dst): n=max(n,big)
            if c.kind=='valu' and (p.srcC&c.dst): n=max(n,{4:3,8:7}[p.passes])
    if p.kind=='salu':
        if ('s',124) in ps and getattr(c,'lds',False): n=max(n,1)
    if p.wide and c.kind in('valu','mfma') and (p.data&c.dst): n=max(n,2)
    if p.wide and c.kind in('ds','vmem') and (p.data&c.dst): n=max(n,1)
    return n
class Asm:
    def __init__(s): s.L=[]
    def __call__(s,text):
        if isinstance(text,(list,tuple)):
            for x in text: s(x)
            return
        for t in text.split('\n'):
            t=t.strip()
            if t: s.L.append(t)
    def label(s,n): s.L.append(n+':')
    def finish(s):
        out=[]; hist=[]
        nn=0
        for t in s.L:
            if t.endswith(':') or t.startswith('.') or t.startswith(';'):
                out.append(t); continue
            c=Ins(t)
            dist=0; req=0
            for p in reversed(hist):
                r=need(p,c)-dist
                if r>req: req=r
                dist+=p.states
                if dist>=20: break
            while req>0:
                k=min(req,16); nop=Ins(f's_nop {k-1}'); out.append('    '+nop.text); hist.append(nop); req-=k; nn+=1
            out.append('    '+t); hist.append(c)
            hist=hist[-24:]
        s.nnops=nn
        return '\n'.join(out)+'\n'
```

```python
import numpy as np
S,D,H,Dh=2048,640,32,20
N1,N2=64,32
def bf16(x):
    x=np.asarray(x,dtype=np.float32)
    u=x.view(np.uint32).astype(np.uint64)
    u=(u+0x7fff+((u>>16)&1))&0xffff0000
    return u.astype(np.uint32).view(np.float32)
def ycol(c,im):
    return ((c&1)*10+(c>>1)//16)*32+im*16+((c>>1)%16)
def FD():
    d=np.arange(D)[:,None]
    F=np.zeros((D,D))
    for c in range(320):
        F[:,ycol(c,0)]=np.cos(2*np.pi*((c*d[:,0])%D)/D)
        F[:,ycol(c,1)]=-np.sin(2*np.pi*((c*d[:,0])%D)/D) if c>0 else np.cos(np.pi*d[:,0])
    return F
def D64():
    n1=np.arange(N1)
    M=np.zeros((N1,N1))
    M[0]=1; M[1]=np.cos(np.pi*n1)
    for t in range(1,32):
        M[2*t]=np.cos(2*np.pi*t*n1/N1); M[2*t+1]=np.sin(2*np.pi*t*n1/N1)
    return M
def kk(t):
    i=np.arange(32)
    if t>0: return t+64*i
    return np.where(i<16,64*i,32+64*(i-16))
def Tm(t):
    k=kk(t)[:,None]; n2=np.arange(32)[None,:]
    C=np.cos(2*np.pi*((k*n2)%S)/S); Sn=np.sin(2*np.pi*((k*n2)%S)/S)
    T=np.zeros((64,64))
    if t>0:
        T[:32,:32]=C; T[:32,32:]=-Sn; T[32:,:32]=Sn; T[32:,32:]=C
    else:
        T[:16,:32]=C[:16]; T[16:32,32:]=C[16:]; T[32:48,:32]=Sn[:16]; T[48:,32:]=Sn[16:]
        T[32,:32]=np.cos(np.pi*n2[0])
    return T
def fft_part(x,wr,wi,r=lambda a:a,inter=None):
    F=r(FD()); D1=r(D64())
    X1=r(x@F)
    X1=X1.reshape(N1,N2,D)
    Y=r(np.einsum('jn,nmc->jmc',D1,X1))
    W=wr+1j*wi
    R=np.zeros((64,32,D))
    cre=np.array([ycol(c,0) for c in range(320)]); cim=np.array([ycol(c,1) for c in range(320)])
    for t in range(32):
        T=r(Tm(t))
        UV=np.concatenate([Y[2*t],Y[2*t+1]],0)
        EF=T@UV
        E=EF[:32,cre]+1j*EF[:32,cim]; Fv=EF[32:,cre]+1j*EF[32:,cim]
        k=kk(t)
        Wp=W[k][:,:320]; Wm=W[(S-k)%S][:,:320]
        X3p=(E-1j*Fv)*Wp; X3m=(E+1j*Fv)*Wm
        P=X3p+X3m; Q=1j*(X3p-X3m)
        if t==0:
            P[0]=E[0]*W[0,:320]; Q[0]=Fv[0]*W[1024,:320]
        A0=W[k,0]+W[(S-k)%S,0]; B0=W[k,0]-W[(S-k)%S,0]; A3=W[k,320]+W[(S-k)%S,320]; B3=W[k,320]-W[(S-k)%S,320]
        Pr=E[:,0].real*A0.real+Fv[:,0].real*B0.imag; Qr=Fv[:,0].real*A0.real-E[:,0].real*B0.imag
        Pi=E[:,0].imag*A3.real+Fv[:,0].imag*B3.imag; Qi=Fv[:,0].imag*A3.real-E[:,0].imag*B3.imag
        if t==0:
            Pr[0]=E[0,0].real*W[0,0].real; Pi[0]=E[0,0].imag*W[0,320].real
            Qr[0]=Fv[0,0].real*W[1024,0].real; Qi[0]=Fv[0,0].imag*W[1024,320].real
        P[:,0]=0.5*(Pr+1j*Pi); Q[:,0]=0.5*(Qr+1j*Qi)
        PQ=np.zeros((64,D)); PQ[:32,cre]=P.real; PQ[:32,cim]=P.imag; PQ[32:,cre]=Q.real; PQ[32:,cim]=Q.imag
        out=r(T.T@r(PQ))
        R[2*t]=out[:32]; R[2*t+1]=out[32:]
    Tp=r(np.einsum('jmc,dc->jmd',R,F))
    a=np.einsum('jn,jmd->nmd',D1,Tp).reshape(S,D)*(2.0/(S*D))
    if inter is not None: inter.update(Y=Y,R=R)
    return a
if __name__=="__main__":
    rng=np.random.default_rng(0)
    x=bf16(rng.standard_normal((S,D))*0.05).astype(np.float64)
    wr=bf16(rng.standard_normal((S,321))*0.032).astype(np.float64); wi=bf16(rng.standard_normal((S,321))*0.032).astype(np.float64)
    ref=np.fft.irfft2(np.fft.rfft2(x)*(wr+1j*wi),s=(S,D))
    a=fft_part(x,wr,wi)
    print("exact err",np.abs(a-ref).max(),np.abs(ref).std())
    a=fft_part(x,wr,wi,lambda v:bf16(v).astype(np.float64))
    print("bf16 rel rms err",np.sqrt(((a-ref)**2).mean())/ref.std())
```

```python
import sys, os
from asm import Asm
import tables as TB

NAME='gated_mix__spectral_gfnet__linear_attn_block__prompt'
DEV = '--dev' in sys.argv
TS  = '--ts' in sys.argv
STOP = int(os.environ.get('STOP','99'))
ROT = int(os.environ.get('ROT','0'))
LDPOL = os.environ.get('LDPOL','')

WS_Y=0; WS_R=2621440; WS_O=2*2621440; WS_KVP=3*2621440; WS_G=WS_KVP+1048576
WS_FL=WS_G+8192
FL_Y=0
FL_KV=256
FL_R=768
FL_O=960
NFL=1216
WS_E=WS_FL+NFL*128
WS_TS=WS_E+128
WS_SZ=WS_TS+256*4*256
OOB=0x7ff00000
SLOT=36880; SEG0=16384; SEG1=16384+10240+16
L_GATE=4*SLOT
L_FLG=L_GATE+1280
LDS_SZ=L_FLG+64
L_WO=[0,51200]; L_PQ=[102400,113280]; PQS=136
L_XCH=[124160,124160+8704]; L_KVI=141568
L_RED=102400
L_TA=[0,10240]; L_TB=[20480,40960]; L_OUT=61440
sX,sSEG,sWS,sWR,sWI,sTAB,sWO,sOUT,sGATE=4,8,12,16,20,24,28,32,36
sW,sWr,sWc,sTyp,sRb,sGrp,sTag,sCnt=40,41,42,43,44,45,46,47
sAo,sBo,sBstep,sMA,sMB,sDl,sIs,sCs=48,49,50,51,52,53,54,55
sT,sCh,sN2,sCt,sAct,sTo=56,57,58,59,60,61
t0,t1,t2,t3,t4,t5=62,63,64,65,66,67
sK=68
sEx=88
sTS=90
def srd(n): return f's[{n}:{n+3}]'
def v(a,n=1): return f'v{a}' if n==1 else f'v[{a}:{a+n-1}]'
def a_(a,n=1): return f'a{a}' if n==1 else f'a[{a}:{a+n-1}]'
vL,vN,vG=1,2,3
A=Asm(); I=A
nts=[0]
def stamp(i):
    if TS:
        I(f's_memrealtime s[{sTS}:{sTS+1}]'); I('s_waitcnt lgkmcnt(0)'); I(f'v_writelane_b32 v0, s{sTS}, {i}')
def smul(d,x,c):
    I(f's_mul_i32 s{d}, s{x}, {c}')
def vconst(r,c): I(f'v_mov_b32 v{r}, {c}')
def div10(dst,src):
    I(f'v_mul_u32_u24 v{dst}, 0x199a, v{src}'); I(f'v_lshrrev_b32 v{dst}, 16, v{dst}')
uid=[0]
def poll(voffs,tmp):
    uid[0]+=1; L=f'Lpoll{uid[0]}'
    I(f's_mov_b32 s{sTo}, 0x40000')
    A.label(L)
    for i,vo in enumerate(voffs): I(f'buffer_load_dword v{tmp+i}, v{vo}, {srd(sWS)}, 0 offen sc1')
    I('s_waitcnt vmcnt(0)')
    I(f'v_cmp_ne_u32 vcc, s{sTag}, v{tmp}')
    for i in range(1,len(voffs)):
        I(f'v_cmp_ne_u32 s[{t4}:{t5}], s{sTag}, v{tmp+i}'); I(f's_or_b64 vcc, vcc, s[{t4}:{t5}]')
    I(f's_cbranch_vccz {L}d')
    I(f's_sub_u32 s{sTo}, s{sTo}, 1'); I(f's_cbranch_scc0 {L}')
    A.label(L+'d')
def ldspoll(vaddr,tmp,val):
    uid[0]+=1; L=f'Llp{uid[0]}'
    I(f's_mov_b32 s{sTo}, 0x400000')
    A.label(L)
    I(f'ds_read_b32 v{tmp}, v{vaddr}'); I('s_waitcnt lgkmcnt(0)')
    I(f'v_cmp_gt_u32 vcc, {val}, v{tmp}')
    I(f's_cbranch_vccz {L}d')
    I(f's_sub_u32 s{sTo}, s{sTo}, 1'); I(f's_cbranch_scc0 {L}')
    A.label(L+'d')
def setflag(voff,tmp):
    I(f'v_mov_b32 v{tmp}, s{sTag}')
    I('s_mov_b64 exec, 1')
    I(f'buffer_store_dword v{tmp}, v{voff}, {srd(sWS)}, 0 offen sc1')
    I('s_mov_b64 exec, -1')
MF='v_mfma_f32_16x16x32_bf16'

K=f'{NAME}_kernel'
I(f's_cmp_ge_u32 s2, 256'); I('s_cbranch_scc1 Lend')
if TS: I(f's_memrealtime s[{sTS+2}:{sTS+3}]')
I(f's_load_dwordx16 s[{sK}:{sK+15}], s[0:1], 0')
I(f's_load_dwordx4 s[{sK+16}:{sK+19}], s[0:1], 64')
I(f'v_lshrrev_b32 v4, 6, v0'); I(f'v_and_b32 v{vL}, 63, v0')
I(f'v_readfirstlane_b32 s{sW}, v4')
I(f'v_and_b32 v{vN}, 15, v{vL}'); I(f'v_lshrrev_b32 v{vG}, 4, v{vL}')
I(f's_lshr_b32 s{t0}, s2, 3'); I(f's_and_b32 s{t1}, s2, 7')
I(f's_lshr_b32 s{sRb}, s{t1}, 2'); I(f's_lshl_b32 s{sRb}, s{sRb}, 3'); I(f's_lshr_b32 s{t2}, s{t0}, 2'); I(f's_add_u32 s{sRb}, s{sRb}, s{t2}')
I(f's_bfe_u32 s{sTyp}, s{t0}, 0x10001')
I(f's_and_b32 s{sGrp}, s{t1}, 3'); I(f's_lshl_b32 s{sGrp}, s{sGrp}, 1'); I(f's_and_b32 s{t2}, s{t0}, 1'); I(f's_add_u32 s{sGrp}, s{sGrp}, s{t2}')
I(f's_lshl_b32 s{sN2}, s{t1}, 2'); I(f's_lshr_b32 s{t2}, s{t0}, 3'); I(f's_add_u32 s{sN2}, s{sN2}, s{t2}'); I(f's_and_b32 s{sCt}, s{t0}, 7')
I(f's_and_b32 s{sWr}, s{sW}, 1'); I(f's_lshr_b32 s{sWc}, s{sW}, 1')
if ROT:
    I(f's_lshr_b32 s{t2}, s{t0}, 2'); smul(t2,t2,5); I(f's_lshr_b32 s{t3}, s{t0}, 0'); I(f's_and_b32 s{t3}, s{t3}, 3'); smul(t3,t3,10)
    I(f's_add_u32 s{t2}, s{t2}, s{t3}'); I(f's_lshr_b32 s{t2}, s{t2}, 2')
    I(f's_cmp_ge_u32 s{t2}, 10'); I(f's_cselect_b32 s{t3}, 10, 0'); I(f's_sub_u32 s{sIs}, s{t2}, s{t3}')
else: I(f's_mov_b32 s{sIs}, 0')
I(f's_mov_b32 s{sCs}, s{sIs}')

ACC=16; GACC=96
FX=dict(A=100,B=116,G=136); FY=dict(A=140,B=156,G=176)
vAo=180; vBo=184; vRA=189; vRB=191; vRG=196
I(f's_and_b32 s{t2}, s{sGrp}, 3'); I(f's_lshl_b32 s{t2}, s{t2}, 4'); I(f's_cmp_eq_u32 s{sTyp}, 0'); I(f's_cselect_b32 s{t2}, s{t2}, 0')
I(f's_lshl_b32 s{t3}, s{sWr}, 5'); I(f's_add_u32 s{t2}, s{t2}, s{t3}')
I(f's_lshl_b32 s{t3}, s{sRb}, 1'); I(f's_add_u32 s{t3}, s{t3}, s{sWc}'); smul(t3,t3,1280)
I(f'v_lshrrev_b32 v4, 3, v{vL}'); I(f'v_add_u32 v4, s{t2}, v4'); I(f'v_and_b32 v5, 7, v{vL}')
I(f's_mov_b32 s{t4}, {32*1280}')
for i in range(4):
    I(f'v_add_u32 v6, {8*i}, v4'); I(f'v_and_b32 v6, 63, v6')
    I(f'v_add_u32 v7, {4*i}, v{vG}'); I(f'v_and_b32 v7, 7, v7'); I(f'v_xor_b32 v7, v7, v5')
    I(f'v_lshlrev_b32 v7, 4, v7'); I(f'v_mad_u32_u24 v6, v6, s{t4}, v7'); I(f'v_add_u32 v{vAo+i}, s{t3}, v6')
I(f's_andn2_b32 s{t0}, s{sTyp}, s{sWc}')
I(f's_sub_u32 s{t1}, 1, s{sTyp}'); I(f's_add_u32 s{t2}, s{sWc}, 1'); I(f's_mul_i32 s{t1}, s{t1}, s{t2}'); smul(t1,t1,1280)
smul(t2,sGrp,160); I(f's_add_u32 s{t1}, s{t1}, s{t2}')
smul(t2,sGrp,102400)
I(f's_cmp_eq_u32 s{t0}, 1')
I(f's_cselect_b32 s{t1}, s{t2}, s{t1}')
I(f's_mov_b32 s{t2}, 3840'); I(f's_cselect_b32 s{t2}, 160, s{t2}')
I(f's_mov_b32 s{sBstep}, {64*3840}'); I(f's_cselect_b32 s{sBstep}, 10240, s{sBstep}')
I(f's_cselect_b64 s[{t4}:{t5}], -1, 0')
smul(t3,sWr,320)
for i in range(5):
    I(f'v_add_u32 v4, {64*i}, v{vL}'); I(f'v_add_u32 v4, s{t3}, v4')
    div10(5,4)
    I(f'v_mul_u32_u24 v6, 10, v5'); I(f'v_sub_u32 v6, v4, v6')
    I(f'v_and_b32 v7, 0x23, v5'); I(f'v_bfe_u32 v8, v5, 2, 2'); I(f'v_lshl_or_b32 v7, v8, 3, v7')
    I(f'v_bfe_u32 v8, v5, 4, 1'); I(f'v_lshl_or_b32 v7, v8, 2, v7')
    I(f'v_cndmask_b32 v7, v7, v5, s[{t4}:{t5}]')
    I(f'v_lshlrev_b32 v6, 4, v6'); I(f'v_mad_u32_u24 v7, v7, s{t2}, v6'); I(f'v_add_u32 v{vBo+i}, s{t1}, v7')
I(f's_getpc_b64 s[{sTAB}:{sTAB+1}]')
A.label('Lpc')
I(f's_add_u32 s{sTAB}, s{sTAB}, tab_base@rel32@lo+4'); I(f's_addc_u32 s{sTAB+1}, s{sTAB+1}, tab_base@rel32@hi+12')
I(f's_mov_b32 s{sTAB+2}, {TB.TAB_SZ}'); I(f's_mov_b32 s{sTAB+3}, 0x20000')
I(f's_lshl_b32 s{sMA}, s{sW}, 12')
smul(sMB,sWc,10256); smul(t3,sWr,5120); I(f's_add_u32 s{sMB}, s{sMB}, s{t3}'); I(f's_add_u32 s{sMB}, s{sMB}, {SEG0}')
I(f's_lshl_b32 s{sAo}, s{sIs}, 7'); I(f's_mul_i32 s{sBo}, s{sIs}, s{sBstep}')
I('s_waitcnt lgkmcnt(0)')
def mksrd(d,p,n):
    I(f's_mov_b32 s{d}, s{p}'); I(f's_mov_b32 s{d+1}, s{p+1}'); I(f's_mov_b32 s{d+2}, {n}'); I(f's_mov_b32 s{d+3}, 0x20000')
mksrd(sX,sK+0,2621440)
I(f's_cmp_eq_u32 s{t0}, 1')
I(f's_cselect_b32 s{sSEG}, s{sTAB}, s{sK+8}'); I(f's_cselect_b32 s{sSEG+1}, s{sTAB+1}, s{sK+9}')
I(f's_mov_b32 s{sSEG+2}, 2457600'); I(f's_cselect_b32 s{sSEG+2}, {TB.TF_SZ}, s{sSEG+2}'); I(f's_mov_b32 s{sSEG+3}, 0x20000')
def dma_list(slotreg=None):
    L=[]
    for i in range(4): L.append([f's_add_u32 m0, s{sMA}, {1024*i}', f'buffer_load_dwordx4 v{vAo+i}, {srd(sX)}, s{sAo} offen {LDPOL} lds'])
    for i in range(5): L.append([f's_add_u32 m0, s{sMB}, {1024*i}', f'buffer_load_dwordx4 v{vBo+i}, {srd(sSEG)}, s{sBo} offen {LDPOL} lds'])
    return L
def dma_advance():
    return [f's_add_u32 s{sIs}, s{sIs}, 1', f's_cmp_eq_u32 s{sIs}, 10', f's_cselect_b32 s{sIs}, 0, s{sIs}',
            f's_lshl_b32 s{sAo}, s{sIs}, 7', f's_mul_i32 s{sBo}, s{sIs}, s{sBstep}']
mksrd(sGATE,sK+12,1280)
I(f'v_lshlrev_b32 v4, 4, v{vL}')
I(f's_cmp_lg_u32 s{sW}, 0'); I('s_cbranch_scc1 Lnogate')
I(f's_mov_b32 m0, {L_GATE}'); I(f'buffer_load_dwordx4 v4, {srd(sGATE)}, 0 offen lds')
I('s_mov_b64 exec, 0xffff')
I(f's_mov_b32 m0, {L_GATE}'); I(f'buffer_load_dwordx4 v4, {srd(sGATE)}, 0 offen offset:1024 lds')
I('s_mov_b64 exec, -1')
A.label('Lnogate')
for st in range(4):
    for x in dma_list():
        for y in x: I(y)
    for y in dma_advance(): I(y)
    d = SLOT if st<3 else -3*SLOT
    I(f's_add_u32 s{sMA}, s{sMA}, {d}'); I(f's_add_u32 s{sMB}, s{sMB}, {d}')
if TS: I(f'v_writelane_b32 v0, s{sTS+2}, 0')
stamp(1)
mksrd(sWS,sK+18,WS_SZ); mksrd(sWR,sK+2,1314816); mksrd(sWI,sK+4,1314816); mksrd(sWO,sK+10,819200); mksrd(sOUT,sK+14,2621440)
I(f's_add_u32 s{t0}, s{sK+18}, {WS_E}'); I(f's_addc_u32 s{t1}, s{sK+19}, 0')
I(f's_load_dword s{sTag}, s[{t0}:{t1}], 0')
for i in range(84): vconst(ACC+i,0)
vconst(5,0); I(f'v_lshlrev_b32 v4, 2, v{vN}'); I(f'ds_write_b32 v4, v5 offset:{L_FLG&0xffff}') if False else None
I(f'v_add_u32 v4, {L_FLG}, v4'); I(f'ds_write_b32 v4, v5')
I(f'v_lshrrev_b32 v4, 1, v{vN}'); I(f'v_xor_b32 v4, v4, v{vG}'); I(f'v_lshlrev_b32 v4, 4, v4')
I(f'v_lshl_add_u32 v4, v{vN}, 7, v4'); I(f's_lshl_b32 s{t0}, s{sWr}, 13'); I(f'v_add_u32 v{vRA}, s{t0}, v4'); I(f'v_xor_b32 v{vRA+1}, 64, v{vRA}')
I(f'v_lshrrev_b32 v4, 2, v{vL}'); I(f'v_mul_u32_u24 v4, 160, v4')
I(f'v_and_b32 v5, 3, v{vL}'); I(f'v_lshlrev_b32 v5, 3, v5')
I(f'v_add_u32 v4, v4, v5')
smul(t0,sWc,80); smul(t1,sWc,10256)
I(f's_cmp_eq_u32 s{sTyp}, 0')
I(f's_cselect_b32 s{t0}, s{t0}, s{t1}'); I(f's_add_u32 s{t0}, s{t0}, {SEG0}')
I(f's_cselect_b32 s{t1}, {SEG1-SEG0-80}, 0') if False else None
I(f's_cmp_eq_u32 s{sTyp}, 0'); I(f's_cselect_b32 s{t1}, {SEG1-SEG0-80}, 0')
I(f'v_add_u32 v4, s{t0}, v4')
I(f'v_mov_b32 v{vRB}, v4'); I(f'v_add_u32 v{vRB+1}, 32, v4')
I(f'v_mov_b32 v6, s{t1}'); I(f'v_cmp_lt_u32 vcc, 8, v5'); I(f'v_cndmask_b32 v6, 0, v6, vcc'); I(f'v_add3_u32 v{vRB+2}, v4, v6, 64')
I(f'v_add_u32 v4, s{t1}, v4'); I(f'v_add_u32 v{vRB+3}, 96, v4'); I(f'v_add_u32 v{vRB+4}, 0x80, v4')
I(f's_lshl_b32 s{t0}, s{sCs}, 7'); I(f's_add_u32 s{t0}, s{t0}, {L_GATE}'); I(f'v_lshlrev_b32 v4, 4, v{vG}'); I(f'v_add_u32 v{vRG}, s{t0}, v4')

I(f's_lshr_b32 s{t0}, s{sRb}, 1'); I(f's_lshl_b32 s{t0}, s{t0}, 3'); I(f's_add_u32 s{t0}, s{t0}, s{sGrp}')
I(f's_lshr_b32 s{t1}, s{t0}, 4'); I(f's_add_u32 s{t1}, s{t1}, 16')
I(f's_and_b32 s{t2}, s{t0}, 15'); I(f's_lshl_b32 s{t2}, s{t2}, 1'); I(f's_add_u32 s{t2}, s{t2}, s{sWr}')
I(f's_lshl_b32 s{t3}, s{sGrp}, 2'); I(f's_add_u32 s{t3}, s{t3}, s{sW}')
I(f's_cmp_eq_u32 s{sTyp}, 0'); I(f's_cselect_b32 s{sT}, s{t3}, s{t2}'); I(f's_cselect_b32 s{sCh}, s{sRb}, s{t1}')
I(f's_and_b32 s{sAct}, s{sRb}, 1'); I(f's_xor_b32 s{sAct}, s{sAct}, 1')
vKA=200
vE0=208
for i in range(5): vconst(vE0+i,OOB)
I(f's_cmp_eq_u32 s{sTyp}, 0'); I('s_cbranch_scc0 LsetFQ')
PAIRS=[(0,2),(0,3),(1,2),(1,3),(1,4),(2,2),(2,3),(2,4)]
I(f's_lshl_b32 s{t0}, s{sW}, 12'); I(f's_add_u32 s{t0}, s{t0}, {L_RED}')
for i,(a,b) in enumerate(PAIRS):
    I(f'v_add_u32 v4, {4*a}, v{vG}')
    I(f'v_cmp_lt_u32 vcc, 4, v4'); I(f'v_cndmask_b32 v5, 0, 1, vcc')
    I(f'v_mul_u32_u24 v6, 21, v4')
    I(f'v_add_u32 v7, {16*b-40}, v{vN}')
    I(f'v_cmp_lt_i32 vcc, 19, v7'); I(f'v_cndmask_b32 v8, 0, 1, vcc')
    I(f'v_mul_u32_u24 v9, 20, v8'); I(f'v_sub_u32 v9, v7, v9')
    I(f'v_cmp_eq_u32 s[{t4}:{t5}], v5, v8')
    if b==2:
        I(f'v_cmp_le_i32 vcc, 0, v7'); I(f's_and_b64 s[{t4}:{t5}], s[{t4}:{t5}], vcc')
        I(f'v_cmp_eq_u32 vcc, 0, v{vN}'); I(f'v_cndmask_b32 v9, v9, 20, vcc'); I(f's_or_b64 s[{t4}:{t5}], s[{t4}:{t5}], vcc')
    if a==2:
        I(f'v_cmp_gt_u32 vcc, 10, v4'); I(f's_and_b64 s[{t4}:{t5}], s[{t4}:{t5}], vcc')
    I(f'v_add_u32 v6, v6, v9'); I(f'v_add_u32 v7, 0xe0, v{vN}')
    I(f'v_cndmask_b32 v6, v7, v6, s[{t4}:{t5}]')
    I(f'v_lshlrev_b32 v6, 4, v6'); I(f'v_add_u32 v{vKA+i}, s{t0}, v6')
I(f's_lshl_b32 s{t0}, s{sWc}, 13'); I(f's_lshl_b32 s{t1}, s{sWr}, 11'); I(f's_add_u32 s{t0}, s{t0}, s{t1}')
I(f's_add_u32 s{t0}, s{t0}, {L_RED}'); I(f'v_lshlrev_b32 v4, 4, v{vL}'); I(f'v_add_u32 v{vE0}, s{t0}, v4')
I(f's_lshl_b32 s{t0}, s{sGrp}, 1'); I(f's_add_u32 s{t0}, s{t0}, s{sWc}'); I(f's_lshl_b32 s{t0}, s{t0}, 4'); I(f's_add_u32 s{t0}, s{t0}, s{sRb}')
I(f's_lshl_b32 s{t0}, s{t0}, 12'); I(f's_add_u32 s{t0}, s{t0}, s{t1}'); I(f's_add_u32 s{t0}, s{t0}, {WS_KVP}')
I(f'v_add_u32 v{vE0+1}, s{t0}, v4')
I(f's_cmp_eq_u32 s{sWr}, 0'); I(f's_cselect_b32 s{t1}, 64, 18'); I(f'v_cmp_gt_u32 vcc, s{t1}, v{vL}')
vconst(5,OOB); I(f'v_cndmask_b32 v{vE0+2}, v5, v{vE0+1}, vcc')
I(f's_lshl_b32 s{t0}, s{sRb}, 1'); I(f's_add_u32 s{t0}, s{t0}, s{sWr}'); I(f's_lshl_b32 s{t0}, s{t0}, 8'); I(f's_lshl_b32 s{t1}, s{sGrp}, 6'); I(f's_add_u32 s{t0}, s{t0}, s{t1}'); I(f's_add_u32 s{t0}, s{t0}, {WS_G}')
I(f's_lshr_b32 s{t1}, s{sGrp}, 2'); I(f's_or_b32 s{t1}, s{t1}, s{sWc}'); I(f's_cmp_eq_u32 s{t1}, 0'); I(f's_cselect_b32 s{t0}, s{t0}, {OOB}')
I(f'v_lshlrev_b32 v4, 4, v{vG}'); I(f'v_add_u32 v4, s{t0}, v4'); I(f'v_cmp_eq_u32 vcc, 0, v{vN}'); I(f'v_cndmask_b32 v{vE0+3}, v5, v4, vcc')
I(f's_lshl_b32 s{t0}, s{sGrp}, 2'); I(f's_add_u32 s{t0}, s{t0}, s{sW}'); I(f's_lshl_b32 s{t0}, s{t0}, 4'); I(f's_add_u32 s{t0}, s{t0}, s{sRb}')
I(f's_lshl_b32 s{t0}, s{t0}, 7'); I(f's_add_u32 s{t0}, s{t0}, {WS_FL+FL_KV*128}'); I(f'v_mov_b32 v{vE0+4}, s{t0}')
I('s_branch Lsetdone')
A.label('LsetFQ')
I(f's_cmp_eq_u32 s{sWc}, 0'); I('s_cbranch_scc0 Lsetdone')
I(f'v_lshlrev_b32 v4, 4, v{vL}')
for i in range(8):
    I(f's_mov_b32 s{t0}, {TB.D1_OFF+1024*i}'); I(f'buffer_load_dwordx4 {a_(224+4*i,4)}, v4, {srd(sTAB)}, s{t0} offen')
I(f's_lshl_b32 s{t0}, s{sRb}, 1'); I(f's_add_u32 s{t0}, s{t0}, s{sWr}'); smul(t0,t0,2560); smul(t1,sGrp,320); I(f's_add_u32 s{t0}, s{t0}, s{t1}')
I(f's_mov_b32 s{t1}, 163840'); I(f'v_lshlrev_b32 v4, 2, v{vN}'); I(f'v_mad_u32_u24 v4, v{vG}, s{t1}, v4'); I(f'v_add_u32 v{vE0}, s{t0}, v4')
I(f's_lshl_b32 s{t0}, s{sGrp}, 1'); I(f's_add_u32 s{t0}, s{t0}, s{sWr}'); I(f's_lshl_b32 s{t0}, s{t0}, 4'); I(f's_add_u32 s{t0}, s{t0}, s{sRb}')
I(f's_lshl_b32 s{t0}, s{t0}, 7'); I(f's_add_u32 s{t0}, s{t0}, {WS_FL+FL_Y*128}'); I(f'v_mov_b32 v{vE0+4}, s{t0}')
A.label('Lsetdone')

def reads(F,ks):
    L=[]
    for mt in range(4): L.append(f'ds_read_b128 {v(F["A"]+4*mt,4)}, v{vRA+ks} offset:{2048*mt}')
    for nt in range(5):
        for h in range(2): L.append(f'ds_read_b64_tr_b16 {v(F["B"]+4*nt+2*h,2)}, v{vRB+nt} offset:{(32*ks+16*h)*160}')
    L.append(f'ds_read_b128 {v(F["G"],4)}, v{vRG} offset:{64*ks}')
    return L
def mfmas(F):
    L=[]
    for nt in range(5):
        for mt in range(4):
            c=v(ACC+(mt*5+nt)*4,4); L.append(f'{MF} {c}, {v(F["A"]+4*mt,4)}, {v(F["B"]+4*nt,4)}, {c}')
    c=v(GACC,4); L.append(f'{MF} {c}, {v(F["A"],4)}, {v(F["G"],4)}, {c}')
    return L
def interleave(M,Fl,per):
    k=0
    for i,m in enumerate(M):
        I(m)
        for _ in range(per[i] if i<len(per) else 0):
            if k<len(Fl):
                for y in Fl[k]: I(y)
                k+=1
    while k<len(Fl):
        for y in Fl[k]: I(y)
        k+=1
def adv_reads():
    pre=[f's_add_u32 s{sCnt}, s{sCnt}, 1', f's_and_b32 s{t0}, s{sCnt}, 3', f's_mov_b32 s{sDl}, {SLOT}', f's_cselect_b32 s{sDl}, s{sDl}, {-3*SLOT}',
         f's_add_u32 s{sCs}, s{sCs}, 1', f's_cmp_eq_u32 s{sCs}, 10', f's_cselect_b32 s{sCs}, 0, s{sCs}', f's_movk_i32 s{t1}, 128', f's_cselect_b32 s{t1}, -1152, s{t1}']
    L=[[f'v_add_u32 v{r}, s{sDl}, v{r}'] for r in [vRA,vRB,vRB+1,vRB+2,vRB+3,vRB+4,vRA+1]]+[[f'v_add_u32 v{vRG}, s{t1}, v{vRG}']]
    return pre,L
I(f's_mov_b32 s{sCnt}, 4')
stamp(2)
I(f's_mov_b32 s{sCnt}, 0')
I('s_waitcnt vmcnt(27) lgkmcnt(0)'); I('s_barrier')
I(f's_add_u32 s{sTag}, s{sTag}, 0x9e3779b9')
stamp(3)
for r in reads(FX,0): I(r)
def body(dma):
    if TS:
        I(f's_add_u32 m0, s{sCnt}, 4'); stamp('m0')
    I('s_waitcnt lgkmcnt(0)')
    interleave(mfmas(FX),[[r] for r in reads(FY,1)],[1]*21)
    pre,adds=adv_reads()
    for y in pre: I(y)
    if dma: I('s_waitcnt vmcnt(18) lgkmcnt(0)')
    else:
        I(f's_cmp_eq_u32 s{sCnt}, 7'); I('s_cbranch_scc1 Lw18'); I(f's_cmp_eq_u32 s{sCnt}, 8'); I('s_cbranch_scc1 Lw9')
        I('s_waitcnt vmcnt(0)'); A.label('Lw9'); I('s_waitcnt vmcnt(9)'); A.label('Lw18'); I('s_waitcnt vmcnt(18) lgkmcnt(0)')
    I('s_barrier')
    Fl=adds+[[r] for r in reads(FX,0)]
    per=[4,4]+[2]*7+[1]*12
    if dma:
        Fl+=dma_list()+[dma_advance()+[f's_add_u32 s{sMA}, s{sMA}, s{sDl}', f's_add_u32 s{sMB}, s{sMB}, s{sDl}']]
    interleave(mfmas(FY),Fl,per)
A.label('Lmain'); body(True)
I(f's_cmp_lt_u32 s{sCnt}, 6'); I('s_cbranch_scc1 Lmain')
A.label('Ltail'); body(False)
I(f's_cmp_lt_u32 s{sCnt}, 10'); I('s_cbranch_scc1 Ltail')
I('s_waitcnt lgkmcnt(0)'); I('s_nop 7')
stamp(14)
def acc(mt,nt,r=0,n=1): return v(ACC+(mt*5+nt)*4+r,n)
sLog2e=sAo; sEps=sAo+1
I(f's_mov_b32 s{sAo}, 0x3fb8aa3b'); I(f's_mov_b32 s{sAo+1}, 0x358637bd')
def phi2(dst,src,tmp):
    I(f'v_pk_mul_f32 {v(tmp,2)}, {v(src,2)}, s[{sAo}:{sAo+1}] op_sel_hi:[1,0]')
    I(f'v_exp_f32 v{tmp}, v{tmp} clamp'); I(f'v_exp_f32 v{tmp+1}, v{tmp+1} clamp')
    I(f'v_max_f32 v{dst}, 0, v{src}'); I(f'v_max_f32 v{dst+1}, 0, v{src+1}')
    I(f'v_pk_add_f32 {v(tmp,2)}, {v(tmp,2)}, s[{sAo}:{sAo+1}] op_sel:[0,1]')
    I(f'v_pk_add_f32 {v(dst,2)}, {v(dst,2)}, {v(tmp,2)}')
I(f's_cmp_eq_u32 s{sTyp}, 0'); I('s_cbranch_scc0 LepiFQ')
PK=100; VV=124; DD=148
for nt in (2,3,4):
    for mt in range(4):
        for p in range(2):
            I(f'v_cvt_pk_bf16_f32 v{VV+(nt-2)*8+mt*2+p}, {acc(mt,nt,2*p)}, {acc(mt,nt,2*p+1)}')
I(f'v_cmp_gt_u32 vcc, 8, v{vN}'); vconst(4,0x3f803f80)
for i in range(8): I(f'v_cndmask_b32 v{VV+i}, v{VV+i}, v4, vcc')
for nt in range(3):
    for mt in range(4):
        for p in range(2):
            b=ACC+(mt*5+nt)*4+2*p
            phi2(b,b,4+2*p)
            I(f'v_cvt_pk_bf16_f32 v{PK+nt*8+mt*2+p}, v{b}, v{b+1}')
    for i,(a,b) in enumerate(PAIRS):
        if a==nt:
            I(f'{MF} {v(DD+4*i,4)}, {v(PK+a*8,4)}, {v(VV+(b-2)*8,4)}, 0')
    for i,(a,b) in enumerate(PAIRS):
        if a==nt:
            I(f'{MF} {v(DD+4*i,4)}, {v(PK+a*8+4,4)}, {v(VV+(b-2)*8+4,4)}, {v(DD+4*i,4)}')
for p in range(2): I(f'v_cvt_pk_bf16_f32 v{4+p}, v{GACC+2*p}, v{GACC+2*p+1}')
for p in range(2):
    I(f'v_lshlrev_b32 v{8+2*p}, 16, v{4+p}'); I(f'v_and_b32 v{9+2*p}, 0xffff0000, v{4+p}')
for r in range(4): I(f'v_mul_f32 v{8+r}, s{sLog2e}, v{8+r}')
for r in range(4): I(f'v_exp_f32 v{8+r}, -v{8+r}')
for r in range(4): I(f'v_add_f32 v{8+r}, 1.0, v{8+r}')
for r in range(4): I(f'v_rcp_f32 v{8+r}, v{8+r}')
for p in range(2): I(f'v_cvt_pk_bf16_f32 v{4+p}, v{8+2*p}, v{9+2*p}')
for p in range(2):
    I(f'v_lshlrev_b32 v{8+2*p}, 16, v{4+p}'); I(f'v_and_b32 v{9+2*p}, 0xffff0000, v{4+p}')
I(f'buffer_store_dwordx4 v[8:11], v{vE0+3}, {srd(sWS)}, 0 offen sc1')
for i in range(8): I(f'ds_write_b128 v{vKA+i}, {v(DD+4*i,4)}')
I('s_waitcnt lgkmcnt(0)'); I('s_barrier')
for i in range(2):
    I(f'ds_read_b128 {v(16+8*i,4)}, v{vE0} offset:{1024*i}');
    I(f'ds_read_b128 {v(20+8*i,4)}, v{vE0} offset:{1024*i+4096}')
for i in range(2):
    I(f's_waitcnt lgkmcnt({2-2*i})')
    for p in range(2): I(f'v_pk_add_f32 {v(16+8*i+2*p,2)}, {v(16+8*i+2*p,2)}, {v(20+8*i+2*p,2)}')
    I(f'buffer_store_dwordx4 {v(16+8*i,4)}, v{vE0+1+i}, {srd(sWS)}, 0 offen offset:{1024*i} sc1')
I(f'v_mov_b32 v15, v{vE0+4}')
I('s_branch Lp2a')
A.label('LepiFQ')
I(f's_cmp_eq_u32 s{sWc}, 0'); I('s_cbranch_scc0 LepiQ')
XB=100; YD=140
for nt in range(5):
    for mt in range(4):
        for p in range(2): I(f'v_cvt_pk_bf16_f32 v{XB+nt*8+mt*2+p}, {acc(mt,nt,2*p)}, {acc(mt,nt,2*p+1)}')
def ymf(nt):
    for kb in range(2):
        for jt in range(4):
            d=v(YD+(nt&1)*16+4*jt,4)
            I(f'{MF} {d}, {a_(224+(jt*2+kb)*4,4)}, {v(XB+nt*8+4*kb,4)}, {"0" if kb==0 else d}')
def yst(nt):
    for jt in range(4):
        for p in range(2):
            b=YD+(nt&1)*16+4*jt+2*p; o=172+jt*2+p
            I(f'v_cvt_pk_bf16_f32 v{o}, v{b}, v{b+1}')
            I(f's_mov_b32 s{t0}, {(8*jt+p)*81920}')
            I(f'buffer_store_dword v{o}, v{vE0}, {srd(sWS)}, s{t0} offen offset:{64*nt} sc1')
ymf(0)
for nt in range(5):
    if nt<4: ymf(nt+1)
    yst(nt)
I(f'v_mov_b32 v15, v{vE0+4}')
I(f's_cmp_eq_u32 s{sAct}, 0'); I('s_cbranch_scc0 Lp2a')
I('s_waitcnt vmcnt(0)'); setflag(15,4)
I('s_branch Lp3')
A.label('Lp2a')
stamp(15)
T1,T2,WP,W3,YF,EF,TM,PQ=16,48,80,112,144,160,192,224
vWp,vWm,vWm0,vT,vY,vF=4,5,6,7,8,9
I(f'v_lshlrev_b32 v{vT}, 4, v{vL}'); I(f's_lshl_b32 s{t0}, s{sT}, 13'); I(f'v_add_u32 v{vT}, s{t0}, v{vT}')
for tb,off in ((T1,TB.T1_OFF),(T2,TB.T2_OFF)):
    for i in range(8):
        if i%4==0: I(f's_mov_b32 s{t0}, {off+1024*i}')
        I(f'buffer_load_dwordx4 {v(tb+4*i,4)}, v{vT}, {srd(sTAB)}, s{t0} offen offset:{1024*(i%4)}')
for i in range(32): vconst(WP+i,0)
I(f's_mov_b32 s{t1}, {256*642}'); I(f's_lshl_b32 s{t0}, s{sCh}, 5')
I(f'v_lshlrev_b32 v10, 1, v{vN}'); I(f'v_add_u32 v10, s{t0}, v10')
I(f'v_mad_u32_u24 v{vWp}, v{vG}, s{t1}, v10')
I(f'v_sub_u32 v11, 3, v{vG}'); I(f'v_mad_u32_u24 v{vWm}, v11, s{t1}, v10')
I(f's_cmp_eq_u32 s{sT}, 0'); I(f's_cselect_b32 s{t0}, {1024*642}, 0'); I(f's_cselect_b32 s{t3}, 32, 1024'); I(f's_cselect_b64 s[{sMA+1}:{sMA+2}], -1, 0') if False else None
I(f'v_mov_b32 v11, s{t0}'); I(f'v_cmp_eq_u32 vcc, 0, v{vG}'); I(f'v_cndmask_b32 v11, 0, v11, vcc'); I(f'v_sub_u32 v11, {256*642}, v11'); I(f'v_add_u32 v{vWm0}, v{vWm}, v11')
I(f's_add_u32 s{t3}, s{t3}, s{sT}')
sB0,sB1=sBstep,sDl
smul(sB0,sT,642); smul(sB1,t3,642)
def wloads(base,vp,vm,vm0):
    for mh in range(2):
        sb=(sB0,sB1)[mh]
        for r in range(4):
            I(f's_add_u32 s{t0}, s{sb}, {64*r*642}'); I(f's_sub_u32 s{t1}, {(1280-64*r-(256 if mh*4+r==0 else 0))*642}, s{sb}')
            i=mh*4+r
            I(f'buffer_load_short_d16_hi v{base+i}, v{vp}, {srd(sWR)}, s{t0} offen')
            I(f'buffer_load_short_d16_hi v{base+8+i}, v{vp}, {srd(sWI)}, s{t0} offen')
            m=vm0 if i==0 else vm
            I(f'buffer_load_short_d16_hi v{base+16+i}, v{m}, {srd(sWR)}, s{t1} offen')
            I(f'buffer_load_short_d16_hi v{base+24+i}, v{m}, {srd(sWI)}, s{t1} offen')
wloads(WP,vWp,vWm,vWm0)
I('s_waitcnt vmcnt(48)'); setflag(15,12)
stamp(16)
I(f's_cmp_eq_u32 s{sCh}, 0'); I('s_cbranch_scc0 Lnosp1')
I('s_waitcnt vmcnt(20)')
for i in range(32): vconst(W3+i,0)
vconst(13,OOB); I(f'v_cmp_eq_u32 vcc, 0, v{vN}')
for d,s_ in ((10,vWp),(11,vWm),(12,vWm0)):
    I(f'v_add_u32 v{d}, 0x280, v{s_}'); I(f'v_cndmask_b32 v{d}, v13, v{d}, vcc')
wloads(W3,10,11,12)
A.label('Lnosp1')
smul(t0,sCh,32*0x334); I(f's_lshr_b32 s{t0}, s{t0}, 16'); smul(t1,sCh,32*0x334); I(f's_add_u32 s{t1}, s{t1}, {31*0x334}'); I(f's_lshr_b32 s{t1}, s{t1}, 16')
I(f'v_mov_b32 v10, s{t0}'); I(f'v_mov_b32 v11, s{t1}'); I(f'v_cmp_gt_u32 vcc, 32, v{vL}'); I(f'v_cndmask_b32 v10, v11, v10, vcc')
I(f'v_and_b32 v11, 31, v{vL}'); I(f'v_lshl_add_u32 v10, v10, 5, v11'); I(f'v_lshlrev_b32 v10, 7, v10'); I(f'v_add_u32 v{vF}, {WS_FL+FL_Y*128}, v10')
smul(t0,sT,81920); I(f's_lshl_b32 s{t1}, s{sCh}, 7'); I(f's_add_u32 s{t0}, s{t0}, s{t1}')
I(f'v_mul_u32_u24 v10, 10240, v{vG}'); I(f'v_lshl_add_u32 v10, v{vN}, 2, v10'); I(f'v_add_u32 v{vY}, s{t0}, v10')
vXW,vXR,vRS,vLF=10,11,12,13
I(f's_lshr_b32 s{t0}, s{sW}, 1'); smul(t0,t0,8704); I(f's_add_u32 s{t0}, s{t0}, {L_XCH[0]}')
I(f's_lshl_b32 s{t1}, s{sWr}, 5'); I(f's_add_u32 s{t1}, s{t1}, s{t0}')
I(f'v_mul_u32_u24 v{vXW}, 272, v{vN}'); I(f'v_lshl_add_u32 v{vXW}, v{vG}, 6, v{vXW}'); I(f'v_add_u32 v{vXW}, s{t1}, v{vXW}')
smul(t1,sWr,16*272); I(f's_add_u32 s{t1}, s{t1}, s{t0}')
I(f'v_mul_u32_u24 v{vXR}, 272, v{vG}'); I(f'v_lshl_add_u32 v{vXR}, v{vN}, 4, v{vXR}'); I(f'v_add_u32 v{vXR}, s{t1}, v{vXR}')
smul(t0,sWr,16*81920); I(f's_lshl_b32 s{t1}, s{sCh}, 12'); I(f's_add_u32 s{t0}, s{t0}, s{t1}')
I(f's_lshr_b32 s{t1}, s{sT}, 1'); I(f's_lshl_b32 s{t1}, s{t1}, 8'); I(f's_add_u32 s{t0}, s{t0}, s{t1}'); I(f's_add_u32 s{t0}, s{t0}, {WS_R}')
I(f's_mov_b32 s{t1}, 81920'); I(f'v_lshlrev_b32 v{vRS}, 4, v{vN}'); I(f'v_mad_u32_u24 v{vRS}, v{vG}, s{t1}, v{vRS}'); I(f'v_add_u32 v{vRS}, s{t0}, v{vRS}')
I(f's_lshl_b32 s{t0}, s{sWc}, 2'); I(f's_add_u32 s{t0}, s{t0}, {L_FLG}'); I(f'v_mov_b32 v{vLF}, s{t0}')
stamp(17)
poll([vF],14)
stamp(18)
for ks in range(2):
    for i in range(4):
        I(f's_mov_b32 s{t0}, {(16*ks+i)*2560}')
        for ri in range(2): I(f'buffer_load_dword v{YF+(ri*2+ks)*4+i}, v{vY}, {srd(sWS)}, s{t0} offen offset:{64*ri} sc1')
for ks in range(2):
    I(f's_waitcnt vmcnt({8-8*ks})')
    for mt in range(4):
        for ri in range(2):
            d=v(EF+(mt*2+ri)*4,4)
            I(f'{MF} {d}, {v(T1+(mt*2+ks)*4,4)}, {v(YF+(ri*2+ks)*4,4)}, {"0" if ks==0 else d}')
stamp(19)
def pk(op,d,*s,neg=None):
    t=f'v_pk_{op}_f32 {v(d,2)}, '+', '.join(v(x,2) for x in s)
    if neg: t+=f' neg_lo:{neg} neg_hi:{neg}'
    I(t)
Pre,Pim,Qre,Qim=PQ,PQ+8,PQ+16,PQ+24
def EFr(typ,mh,ri,p): return EF+((typ*2+mh)*2+ri)*4+2*p
for mh in range(2):
    for p in range(2):
        o=mh*4+2*p; Er,Ei,Fr,Fi=EFr(0,mh,0,p),EFr(0,mh,1,p),EFr(1,mh,0,p),EFr(1,mh,1,p)
        wpr,wpi,wmr,wmi=WP+o,WP+8+o,WP+16+o,WP+24+o
        T=TM+(p*16)
        pk('add',T,Er,Fi); pk('add',T+2,Ei,Fr,neg='[0,1]'); pk('add',T+4,Er,Fi,neg='[0,1]'); pk('add',T+6,Ei,Fr)
        pk('mul',T+8,T,wpr); pk('mul',T+10,T,wpi); pk('mul',T+12,T+4,wmr); pk('mul',T+14,T+4,wmi)
        pk('fma',T+8,T+2,wpi,T+8,neg='[1,0,0]'); pk('fma',T+10,T+2,wpr,T+10); pk('fma',T+12,T+6,wmi,T+12,neg='[1,0,0]'); pk('fma',T+14,T+6,wmr,T+14)
        pk('add',Pre+o,T+8,T+12); pk('add',Pim+o,T+10,T+14); pk('add',Qre+o,T+14,T+10,neg='[0,1]'); pk('add',Qim+o,T+8,T+12,neg='[0,1]')
I(f's_cmp_eq_u32 s{sT}, 0'); I('s_cbranch_scc0 Lnot0')
I('s_mov_b64 exec, 0xffff')
Er,Ei,Fr,Fi=EFr(0,0,0,0),EFr(0,0,1,0),EFr(1,0,0,0),EFr(1,0,1,0)
I(f'v_mul_f32 v{Pre}, v{Er}, v{WP}'); I(f'v_fma_f32 v{Pre}, -v{Ei}, v{WP+8}, v{Pre}')
I(f'v_mul_f32 v{Pim}, v{Er}, v{WP+8}'); I(f'v_fma_f32 v{Pim}, v{Ei}, v{WP}, v{Pim}')
I(f'v_mul_f32 v{Qre}, v{Fr}, v{WP+16}'); I(f'v_fma_f32 v{Qre}, -v{Fi}, v{WP+24}, v{Qre}')
I(f'v_mul_f32 v{Qim}, v{Fr}, v{WP+24}'); I(f'v_fma_f32 v{Qim}, v{Fi}, v{WP+16}, v{Qim}')
I('s_mov_b64 exec, -1')
A.label('Lnot0')
I(f's_cmp_eq_u32 s{sCh}, 0'); I('s_cbranch_scc0 Lnosp2')
I(f's_mov_b32 s{t0}, 0x10001'); I(f's_mov_b32 exec_lo, s{t0}'); I(f's_mov_b32 exec_hi, s{t0}')
for mh in range(2):
    for p in range(2):
        o=mh*4+2*p; Er,Ei,Fr,Fi=EFr(0,mh,0,p),EFr(0,mh,1,p),EFr(1,mh,0,p),EFr(1,mh,1,p)
        T=TM
        pk('add',T,WP+o,WP+16+o); pk('add',T+2,WP+8+o,WP+24+o,neg='[0,1]'); pk('add',T+4,W3+o,W3+16+o); pk('add',T+6,W3+8+o,W3+24+o,neg='[0,1]')
        for q in range(4): I(f'v_pk_mul_f32 {v(T+2*q,2)}, {v(T+2*q,2)}, 0.5')
        pk('mul',Pre+o,Er,T); pk('mul',Qre+o,Fr,T); pk('mul',Pim+o,Ei,T+4); pk('mul',Qim+o,Fi,T+4)
        pk('fma',Pre+o,Fr,T+2,Pre+o); pk('fma',Qre+o,Er,T+2,Qre+o,neg='[1,0,0]'); pk('fma',Pim+o,Fi,T+6,Pim+o); pk('fma',Qim+o,Ei,T+6,Qim+o,neg='[1,0,0]')
I(f's_cmp_eq_u32 s{sT}, 0'); I('s_cbranch_scc0 Lnocorner')
I('s_mov_b64 exec, 1')
Er,Ei,Fr,Fi=EFr(0,0,0,0),EFr(0,0,1,0),EFr(1,0,0,0),EFr(1,0,1,0)
for d,x,w in ((Pre,Er,WP),(Pim,Ei,W3),(Qre,Fr,WP+16),(Qim,Fi,W3+16)):
    I(f'v_mul_f32 v{d}, v{x}, v{w}'); I(f'v_mul_f32 v{d}, 0.5, v{d}')
A.label('Lnocorner')
I('s_mov_b64 exec, -1')
A.label('Lnosp2')
for ri in range(2):
    for mh in range(2):
        for q,src in enumerate(((Pre,Pim)[ri],(Qre,Qim)[ri])):
            for p in range(2): I(f'v_cvt_pk_bf16_f32 v{YF+(ri*2+mh)*4+2*q+p}, v{src+mh*4+2*p}, v{src+mh*4+2*p+1}')
for ks in range(2):
    for nt in range(4):
        for ri in range(2):
            d=v(EF+(nt*2+ri)*4,4)
            I(f'{MF} {d}, {v(YF+(ri*2+ks)*4,4)}, {v(T2+(nt*2+ks)*4,4)}, {"0" if ks==0 else d}')
for nt in range(4):
    for ri in range(2):
        for p in range(2): I(f'v_cvt_pk_bf16_f32 v{TM+nt*4+ri*2+p}, v{EF+(nt*2+ri)*4+2*p}, v{EF+(nt*2+ri)*4+2*p+1}')
    I(f'ds_write_b128 v{vXW}, {v(TM+nt*4,4)} offset:{(nt&1)*16*272+(nt>>1)*16}')
stamp(20)
vconst(14,1)
I('s_waitcnt lgkmcnt(0)')
I('s_mov_b64 exec, 1'); I(f'ds_add_u32 v{vLF}, v14'); I('s_mov_b64 exec, -1')
ldspoll(vLF,14,2)
for i in range(4): I(f'ds_read_b128 {v(TM+16+4*i,4)}, v{vXR} offset:{4*272*i}')
for i in range(4):
    I(f's_waitcnt lgkmcnt({3-i})'); I(f's_mov_b32 s{t0}, {4*81920*i}')
    I(f'buffer_store_dwordx4 {v(TM+16+4*i,4)}, v{vRS}, {srd(sWS)}, s{t0} offen sc1')
I(f's_lshl_b32 s{t0}, s{sCh}, 3'); I(f's_add_u32 s{t0}, s{t0}, s{sGrp}')
I(f's_lshl_b32 s{t1}, s{sCh}, 4'); I(f's_lshr_b32 s{t2}, s{sT}, 1'); I(f's_add_u32 s{t1}, s{t1}, s{t2}'); I(f's_sub_u32 s{t1}, s{t1}, 128')
I(f's_cmp_eq_u32 s{sTyp}, 0'); I(f's_cselect_b32 s{t0}, s{t0}, s{t1}'); I(f's_cselect_b32 s{sAct}, 3, 1')
I(f's_lshl_b32 s{t0}, s{t0}, 7'); I(f's_add_u32 s{t0}, s{t0}, {WS_FL+FL_R*128}'); I(f'v_mov_b32 v15, s{t0}')
I('s_branch Lp3')
A.label('LepiQ')
vPW,vPR,vKR,vOS,vO5,vKW,vKP=4,5,100,104,106,108,112
smul(t0,sWr,L_PQ[1]-L_PQ[0]); I(f's_add_u32 s{t0}, s{t0}, {L_PQ[0]}')
I(f'v_mul_u32_u24 v{vPW}, {PQS}, v{vN}'); I(f'v_lshl_add_u32 v{vPW}, v{vG}, 3, v{vPW}'); I(f'v_add_u32 v{vPW}, s{t0}, v{vPW}')
for nt in range(5):
    for mt in range(4):
        b=ACC+(mt*5+nt)*4
        phi2(b,b,8); phi2(b+2,b+2,10)
        I(f'v_cvt_pk_bf16_f32 v{b}, v{b}, v{b+1}'); I(f'v_cvt_pk_bf16_f32 v{b+1}, v{b+2}, v{b+3}')
        I(f'ds_write_b64 v{vPW}, {v(b,2)} offset:{16*nt*PQS+32*mt}')
I(f'v_bfe_u32 v8, v{vL}, 2, 2'); I(f'v_lshl_add_u32 v8, v{vG}, 3, v8'); I(f'v_and_b32 v9, 3, v{vL}'); I(f'v_lshlrev_b32 v9, 3, v9'); I(f'v_add_u32 v9, s{t0}, v9')
for hh in range(2):
    I(f'v_add_u32 v10, {4*hh}, v8'); I(f'v_min_u32 v10, 19, v10'); I(f'v_mul_u32_u24 v10, {PQS}, v10'); I(f'v_add_u32 v{vPR+hh}, v10, v9')
smul(t1,sWr,2752); I(f's_add_u32 s{t1}, s{t1}, {L_KVI}')
for i in range(4): vconst(8+i,0)
I(f'v_lshlrev_b32 v12, 4, v{vL}'); I(f'v_add_u32 v12, s{t1}, v12')
I(f'ds_write_b128 v12, v[8:11]'); I(f'ds_write_b128 v12, v[8:11] offset:1024')
I(f's_mov_b32 exec_hi, 0xfff'); I(f'ds_write_b128 v12, v[8:11] offset:2048'); I('s_mov_b64 exec, -1')
for i in range(4):
    I(f'v_add_u32 v8, {64*i}, v{vL}'); I(f'v_mul_u32_u24 v9, 0xc31, v8'); I(f'v_lshrrev_b32 v9, 16, v9')
    I(f'v_mul_u32_u24 v10, 21, v9'); I(f'v_sub_u32 v10, v8, v10')
    I(f'v_cmp_lt_u32 vcc, 4, v9'); I(f'v_cndmask_b32 v11, 0, 1, vcc')
    I(f'v_mad_u32_u24 v10, v11, 21, v10'); I(f'v_mul_u32_u24 v11, 5, v11'); I(f'v_sub_u32 v9, v9, v11')
    I(f'v_lshlrev_b32 v10, 6, v10'); I(f'v_lshl_add_u32 v10, v9, 3, v10'); I(f'v_add_u32 v10, s{t1}, v10')
    if i==3:
        vconst(11,L_FLG+32); I(f'v_cmp_gt_u32 vcc, 18, v{vL}'); I(f'v_cndmask_b32 v10, v11, v10, vcc')
    I(f'v_mov_b32 v{vKW+i}, v10')
I(f'v_lshlrev_b32 v8, 4, v{vG}'); I(f'v_add_u32 v8, {L_KVI}, v8')
I(f'v_lshl_add_u32 v{vKR}, v{vN}, 6, v8'); I(f'v_add_u32 v{vKR+1}, {21*64}, v{vKR}')
I(f'v_and_b32 v9, 3, v{vN}'); I(f'v_lshrrev_b32 v10, 2, v{vN}')
for hb in range(2):
    I(f'v_and_b32 v11, 1, v10'); I(f'v_lshl_add_u32 v11, v11, 1, v9'); I(f'v_add_u32 v11, {21*hb+16}, v11')
    I(f'v_lshrrev_b32 v12, 1, v10'); I(f'v_cmp_eq_u32 vcc, {hb}, v12'); I(f'v_cmp_gt_u32 s[{t4}:{t5}], 2, v9'); I(f's_and_b64 vcc, vcc, s[{t4}:{t5}]')
    I(f'v_cndmask_b32 v11, 42, v11, vcc'); I(f'v_cmp_eq_u32 vcc, {2+hb}, v9'); I(f'v_cndmask_b32 v11, v11, {21*hb+20}, vcc')
    I(f'v_lshl_add_u32 v{vKR+2+hb}, v11, 6, v8')
I(f's_lshl_b32 s{t1}, s{sRb}, 1'); I(f's_add_u32 s{t1}, s{t1}, s{sWr}'); smul(t2,t1,81920); I(f's_add_u32 s{t2}, s{t2}, {WS_O}')
smul(t3,sGrp,10)
for hp in range(2):
    I(f'v_add_u32 v8, {5*hp}, v{vG}'); I(f'v_add_u32 v8, s{t3}, v8')
    I(f'v_lshrrev_b32 v9, 2, v8'); I(f'v_and_b32 v8, 3, v8'); I(f'v_lshlrev_b32 v9, 12, v9'); I(f'v_lshl_add_u32 v9, v8, 8, v9')
    I(f'v_lshl_add_u32 v9, v{vN}, 4, v9'); I(f'v_add_u32 v{vOS+hp}, s{t2}, v9')
    I(f's_add_u32 s{t4}, s{t3}, {5*hp+4}'); I(f's_lshr_b32 s{t5}, s{t4}, 2'); I(f's_lshl_b32 s{t5}, s{t5}, 12'); I(f's_and_b32 s{t4}, s{t4}, 3'); I(f's_lshl_b32 s{t4}, s{t4}, 8')
    I(f's_add_u32 s{t4}, s{t4}, s{t5}'); I(f's_add_u32 s{t4}, s{t4}, s{t2}')
    I(f'v_lshlrev_b32 v9, 10, v{vG}'); I(f'v_lshl_add_u32 v9, v{vN}, 4, v9'); I(f'v_add_u32 v{vO5+hp}, s{t4}, v9')
I(f's_lshl_b32 s{t1}, s{t1}, 3'); I(f's_add_u32 s{t1}, s{t1}, s{sGrp}'); I(f's_lshl_b32 s{t1}, s{t1}, 7'); I(f's_add_u32 s{t1}, s{t1}, {WS_FL+FL_O*128}'); I(f'v_mov_b32 v15, s{t1}')
I(f's_lshl_b32 s{t1}, s{sGrp}, 1'); I(f's_add_u32 s{t1}, s{t1}, s{sWr}'); I(f's_lshl_b32 s{t1}, s{t1}, 16'); I(f's_add_u32 s{t1}, s{t1}, {WS_KVP}')
I(f'v_lshlrev_b32 v8, 4, v{vL}'); I(f'v_add_u32 v{vKP}, s{t1}, v8'); vconst(9,OOB); I(f'v_cmp_gt_u32 vcc, 18, v{vL}'); I(f'v_cndmask_b32 v{vKP+1}, v9, v{vKP}, vcc')
I(f's_lshl_b32 s{t1}, s{sGrp}, 6'); I(f's_lshl_b32 s{t2}, s{sWr}, 5'); I(f's_add_u32 s{t1}, s{t1}, s{t2}')
I(f'v_and_b32 v8, 31, v{vL}'); I(f'v_add_u32 v8, s{t1}, v8'); I(f'v_lshlrev_b32 v8, 7, v8'); I(f'v_add_u32 v8, {WS_FL+FL_KV*128}, v8')
I(f'v_mov_b32 v14, {L_FLG+4}')
stamp(17)
poll([8],9)
stamp(18)
PB=120
def pl(p):
    I(f's_mov_b32 s{t0}, {4096*p}')
    for i in range(4): I(f'buffer_load_dwordx4 {v(PB+(p%8)*16+4*i,4)}, v{vKP+(i==3)}, {srd(sWS)}, s{t0} offen offset:{1024*i} sc1')
for p in range(8): pl(p)
SM=16
for p in range(16):
    I(f's_waitcnt vmcnt({28 if p==0 else 4*min(6,15-p)})')
    for i in range(8):
        if p==0: continue
        src=PB+2*i if p==1 else SM+2*i
        I(f'v_pk_add_f32 {v(SM+2*i,2)}, {v(src,2)}, {v(PB+(p%8)*16+2*i,2)}')
    if p>=1 and p+7<16: pl(p+7)
for i in range(4):
    I(f'v_cvt_pk_bf16_f32 v{SM+4*i}, v{SM+4*i}, v{SM+4*i+1}'); I(f'v_cvt_pk_bf16_f32 v{SM+4*i+1}, v{SM+4*i+2}, v{SM+4*i+3}')
    I(f'ds_write_b64 v{vKW+i}, {v(SM+4*i,2)}')
stamp(19)
vconst(9,1)
I('s_waitcnt lgkmcnt(0)')
I('s_mov_b64 exec, 1'); I(f'ds_add_u32 v14, v9'); I('s_mov_b64 exec, -1')
ldspoll(14,9,2)
KF=32; QF=64; OD=96-16;
for hp in range(2):
    for j in range(4): I(f'ds_read_b128 {v(KF+(hp*4+j)*4,4)}, v{vKR+j} offset:{2752*hp}')
OD=120; O5=160
def oreads(u):
    rt,hp=u>>1,u&1
    for hb in range(2):
        for hh in range(2): I(f'ds_read_b64_tr_b16 {v(QF+(u&1)*8+hb*4+2*hh,2)}, v{vPR+hh} offset:{(2*hp+hb)*20*PQS+32*rt}')
def omf(u):
    hp=u&1; q=QF+(u&1)*8; d=OD+(u&1)*12
    I(f'{MF} {v(d+8,4)}, {v(KF+(hp*4+2)*4,4)}, {v(q,4)}, 0')
    I(f'{MF} {v(d,4)}, {v(KF+(hp*4+0)*4,4)}, {v(q,4)}, 0')
    I(f'{MF} {v(d+8,4)}, {v(KF+(hp*4+3)*4,4)}, {v(q+4,4)}, {v(d+8,4)}')
    I(f'{MF} {v(d+4,4)}, {v(KF+(hp*4+1)*4,4)}, {v(q+4,4)}, 0')
def ofin(u):
    rt,hp=u>>1,u&1; d=OD+(u&1)*12; o=148+(u&1)*4
    I(f'v_pk_add_f32 {v(d+10,2)}, {v(d+10,2)}, s[{sAo}:{sAo+1}] op_sel:[0,1]')
    I(f'v_rcp_f32 v{d+10}, v{d+10}'); I(f'v_rcp_f32 v{d+11}, v{d+11}')
    for p in range(2): I(f'v_pk_mul_f32 {v(d+2*p,2)}, {v(d+2*p,2)}, {v(d+10,2)} op_sel_hi:[1,0]')
    for p in range(2): I(f'v_pk_mul_f32 {v(d+4+2*p,2)}, {v(d+4+2*p,2)}, {v(d+10,2)} op_sel:[0,1]')
    I(f'v_cndmask_b32 v{d+10}, v{d+11}, v{d+10}, s[{sEx}:{sEx+1}]')
    I(f'v_pk_mul_f32 {v(d+8,2)}, {v(d+8,2)}, {v(d+10,2)} op_sel_hi:[1,0]')
    for p in range(4): I(f'v_cvt_pk_bf16_f32 v{o+p}, v{d+2*p}, v{d+2*p+1}')
    I(f'v_cvt_pk_bf16_f32 v{O5+hp*4+rt}, v{d+8}, v{d+9}')
    I(f'buffer_store_dwordx4 {v(o,4)}, v{vOS+hp}, {srd(sWS)}, 0 offen offset:{1024*rt} sc1')
I(f's_mov_b32 s{sEx}, -1'); I(f's_mov_b32 s{sEx+1}, 0')
oreads(0)
for u in range(8):
    I('s_waitcnt lgkmcnt(0)')
    omf(u)
    if u<7: oreads(u+1)
    if u>0: ofin(u-1)
ofin(7)
for hp in range(2):
    b=O5+hp*4
    I(f'v_permlane32_swap_b32 v{b}, v{b+2}'); I(f'v_permlane32_swap_b32 v{b+1}, v{b+3}')
    I(f'v_permlane16_swap_b32 v{b}, v{b+1}'); I(f'v_permlane16_swap_b32 v{b+2}, v{b+3}')
    I(f'buffer_store_dwordx4 {v(b,4)}, v{vO5+hp}, {srd(sWS)}, 0 offen sc1')
I(f's_mov_b32 s{sAct}, 0x100')
A.label('Lp3')
stamp(21)
vA,vGg,vD2,vFa=4,5,6,8
I(f's_cmp_eq_u32 s{sWc}, 0'); I('s_cbranch_scc0 Lp3b')
I(f'v_lshlrev_b32 v{vA}, 4, v{vL}')
smul(t0,sCt,102400); smul(t1,sWr,51200); I(f's_add_u32 s{t0}, s{t0}, s{t1}'); I(f's_add_u32 s{t0}, s{t0}, {TB.TG_OFF}')
for i in range(50):
    I(f'buffer_load_dwordx4 {a_(4*i,4)}, v{vA}, {srd(sTAB)}, s{t0} offen offset:{1024*(i%4)}')
    if i%4==3: I(f's_add_u32 s{t0}, s{t0}, 4096')
I(f'v_lshrrev_b32 v{vA}, 2, v{vN}'); I(f'v_lshlrev_b32 v{vA}, 8, v{vA}'); I(f'v_lshl_add_u32 v{vA}, v{vG}, 6, v{vA}'); I(f'v_and_b32 v7, 3, v{vN}'); I(f'v_lshl_add_u32 v{vA}, v7, 4, v{vA}')
I(f's_mov_b32 s{sBo}, {WS_R}')
smul(t0,sWr,80); I(f's_cmp_eq_u32 s{sWr}, 0'); I(f's_movk_i32 s{t1}, 191'); I(f's_cselect_b32 s{t1}, 79, s{t1}')
for i in range(2):
    I(f'v_add_u32 v7, {64*i}, v{vL}'); I(f'v_add_u32 v7, s{t0}, v7'); I(f'v_min_u32 v7, s{t1}, v7'); I(f'v_lshlrev_b32 v7, 7, v7'); I(f'v_add_u32 v{vFa+i}, {WS_FL+FL_R*128}, v7')
I('s_branch Lp3c')
A.label('Lp3b')
for i in range(5):
    I(f'v_add_u32 v7, {64*i}, v{vL}'); div10(10,7); I(f'v_mul_u32_u24 v11, 10, v10'); I(f'v_sub_u32 v11, v7, v11')
    I(f'v_mul_u32_u24 v10, 1280, v10'); I(f'v_lshl_add_u32 v{16+i}, v11, 4, v10')
smul(t0,sCt,160); smul(t1,sWr,320*1280); I(f's_add_u32 s{t0}, s{t0}, s{t1}'); smul(t2,sWr,51200)
I(f's_mov_b32 s{t3}, 10')
A.label('Lwo')
for i in range(5):
    I(f's_add_u32 m0, s{t2}, {1024*i}'); I(f'buffer_load_dwordx4 v{16+i}, {srd(sWO)}, s{t0} offen lds')
I(f's_add_u32 s{t0}, s{t0}, {32*1280}'); I(f's_add_u32 s{t2}, s{t2}, 5120'); I(f's_sub_u32 s{t3}, s{t3}, 1'); I(f's_cmp_lg_u32 s{t3}, 0'); I('s_cbranch_scc1 Lwo')
I(f'v_lshlrev_b32 v{vA}, 4, v{vL}')
I(f's_mov_b32 s{sBo}, {WS_O}')
I(f's_lshl_b32 s{t0}, s{sN2}, 3'); I(f's_lshl_b32 s{t1}, s{sWr}, 2'); I(f's_add_u32 s{t0}, s{t0}, s{t1}')
I(f'v_and_b32 v7, 3, v{vL}'); I(f'v_add_u32 v7, s{t0}, v7'); I(f'v_lshlrev_b32 v7, 7, v7'); I(f'v_add_u32 v{vFa}, {WS_FL+FL_O*128}, v7'); I(f'v_mov_b32 v{vFa+1}, v{vFa}')
smul(t2,sWr,51200)
I(f'v_bfe_u32 v10, v{vL}, 2, 2'); I(f'v_and_b32 v11, 3, v{vL}'); I(f'v_lshlrev_b32 v11, 3, v11'); I(f'v_add_u32 v11, s{t2}, v11')
for k5 in range(5):
    I(f'v_add_u32 v7, {4*k5}, v{vG}'); I(f'v_mul_u32_u24 v12, 52, v7'); I(f'v_lshrrev_b32 v12, 8, v12')
    I(f'v_mul_u32_u24 v12, 20, v12'); I(f'v_lshl_add_u32 v12, v7, 2, v12'); I(f'v_add_u32 v12, v12, v10')
    I(f'v_mul_u32_u24 v12, 160, v12'); I(f'v_add_u32 v{24+k5}, v12, v11')
A.label('Lp3c')
I(f'v_lshlrev_b32 v7, 4, v{vL}'); I(f's_lshl_b32 s{t0}, s{sW}, 11'); I(f's_add_u32 s{t0}, s{t0}, {TB.D2_OFF}')
VD2=240
for kb in range(2): I(f'buffer_load_dwordx4 {v(VD2+4*kb,4)}, v7, {srd(sTAB)}, s{t0} offen offset:{1024*kb}')
stamp(22)
I('s_waitcnt vmcnt(52)')
stamp(23)
I(f's_cmp_eq_u32 s{sAct}, 0'); I('s_cbranch_scc1 Lnopub')
I(f's_cmp_eq_u32 s{sAct}, 0x100'); I('s_cbranch_scc1 Lpub')
vconst(10,L_FLG+8); vconst(11,1)
I('s_mov_b64 exec, 1'); I('ds_add_rtn_u32 v11, v10, v11'); I('s_mov_b64 exec, -1'); I('s_waitcnt lgkmcnt(0)')
I(f'v_readfirstlane_b32 s{t0}, v11'); I(f's_cmp_eq_u32 s{t0}, s{sAct}'); I('s_cbranch_scc0 Lnopub')
A.label('Lpub'); setflag(15,10)
A.label('Lnopub')
smul(t0,sN2,81920); smul(t1,sWr,40960); I(f's_add_u32 s{t0}, s{t0}, s{t1}'); I(f's_add_u32 s{sBo}, s{sBo}, s{t0}')
I(f's_cmp_eq_u32 s{sWc}, 0'); I('s_cbranch_scc1 Lp3d')
I('s_waitcnt vmcnt(0)')
cnt=0
for ks in range(10):
    for nt in range(5):
        for h in range(2):
            I(f'ds_read_b64_tr_b16 {a_((ks*5+nt)*4+2*h,2)}, v{24+ks%5} offset:{25600*(ks//5)+3200*h+32*nt}')
    I('s_waitcnt lgkmcnt(5)')
A.label('Lp3d')
stamp(24)
poll([vFa,vFa+1],10)
stamp(25)
C3=16; AV=96
def afr(i): return v(AV+4*i,4) if i<26 else a_(200+4*(i-26),4)
for ks in range(10):
    for mt in range(4): I(f'buffer_load_dwordx4 {afr(ks*4+mt)}, v{vA}, {srd(sWS)}, s{sBo} offen offset:{1024*mt} sc1')
    I(f's_add_u32 s{sBo}, s{sBo}, 4096')
I(f's_lshl_b32 s{t0}, s{sN2}, 8'); I(f's_lshl_b32 s{t1}, s{sW}, 6'); I(f's_add_u32 s{t0}, s{t0}, s{t1}'); I(f's_add_u32 s{t0}, s{t0}, {WS_G}')
I(f'v_lshlrev_b32 v7, 2, v{vN}')
I(f's_cmp_eq_u32 s{sWc}, 0'); I('s_cbranch_scc0 Lp3mb')
for ks in range(10):
    I(f's_waitcnt vmcnt({36-4*ks})')
    for nt in range(5):
        for mt in range(4):
            c=v(C3+(mt*5+nt)*4,4); I(f'{MF} {c}, {afr(ks*4+mt)}, {a_((ks*5+nt)*4,4)}, {"0" if ks==0 else c}')
stamp(26)
smul(t2,sWr,10240); I(f'v_lshlrev_b32 v10, 4, v{vL}'); I(f'v_add_u32 v10, s{t2}, v10')
I('s_barrier')
for nt in range(5):
    for kb in range(2):
        o=AV+(nt*2+kb)*4
        for q in range(2):
            for p in range(2):
                b=C3+((2*kb+q)*5+nt)*4+2*p; I(f'v_cvt_pk_bf16_f32 v{o+2*q+p}, v{b}, v{b+1}')
        I(f'ds_write_b128 v10, {v(o,4)} offset:{L_TA[0]+(nt*2+kb)*1024}')
I('s_branch Lp3t')
A.label('Lp3mb')
I('s_waitcnt lgkmcnt(0)')
for ks in range(10):
    I(f's_waitcnt vmcnt({36-4*ks})')
    for nt in range(5):
        for mt in range(4):
            c=v(C3+(mt*5+nt)*4,4); I(f'{MF} {c}, {a_((ks*5+nt)*4,4)}, {afr(ks*4+mt)}, {"0" if ks==0 else c}')
stamp(26)
smul(t2,sWr,20480); I(f'v_lshlrev_b32 v10, 4, v{vL}'); I(f'v_add_u32 v10, s{t2}, v10')
I('s_barrier')
for i in range(20): I(f'ds_write_b128 v10, {v(C3+4*i,4)} offset:{L_TB[0]+1024*i}')
A.label('Lp3t')
I('s_waitcnt lgkmcnt(0)'); I('s_barrier')
stamp(27)
I(f'buffer_load_dword v{vGg}, v7, {srd(sWS)}, s{t0} offen sc1')
I(f'v_lshlrev_b32 v10, 4, v{vL}'); smul(t2,sW,5120); I(f'v_add_u32 v11, s{t2}, v10')
TAF=96; TBF=176; OA=16
rd=[]
for nt in range(5):
    for u in range(4): rd.append(f'ds_read_b128 {v(TAF+(nt*4+u)*4,4)}, v10 offset:{(u>>1)*10240+(nt*2+(u&1))*1024}')
for i in range(8): I(rd[i])
for nt in range(5):
    if nt<3:
        for i in range(4): I(rd[8+4*nt+i])
        I('s_waitcnt lgkmcnt(8)')
    else: I(f's_waitcnt lgkmcnt({4*(4-nt)})')
    for u in range(4):
        c=v(OA+4*nt,4); I(f'{MF} {c}, {v(TAF+(nt*4+u)*4,4)}, {v(VD2+4*(u&1),4)}, {"0" if u==0 else c}')
for nt in range(5):
    for bh in range(2): I(f'ds_read_b128 {v(TBF+(nt*2+bh)*4,4)}, v11 offset:{L_TB[0]+bh*20480+nt*1024}')
for i in range(3):
    I(f'v_add_u32 v12, {64*i}, v{vL}'); div10(13,12); I(f'v_mul_u32_u24 v14, 10, v13'); I(f'v_sub_u32 v14, v12, v14')
    I(f'v_mul_u32_u24 v13, 40960, v13'); I(f'v_lshl_add_u32 v{40+i}, v14, 4, v13')
vconst(12,OOB); I(f'v_cmp_gt_u32 vcc, 32, v{vL}'); I(f'v_cndmask_b32 v42, v12, v42, vcc')
smul(t0,sW,16*40960); smul(t1,sN2,1280); I(f's_add_u32 s{t0}, s{t0}, s{t1}'); smul(t1,sCt,160); I(f's_add_u32 s{t0}, s{t0}, s{t1}')
smul(t2,sW,2560); I(f's_add_u32 s{t2}, s{t2}, {L_OUT}')
I(f'v_mul_u32_u24 v12, 160, v{vN}'); I(f'v_lshl_add_u32 v12, v{vG}, 3, v12'); I(f'v_add_u32 v12, s{t2}, v12'); I(f'v_add_u32 v13, s{t2}, v10')
I('s_waitcnt vmcnt(0)')
import struct
scale=struct.unpack('<I',struct.pack('<f',2.0/(2048*640)))[0]
I(f'v_sub_f32 v9, 1.0, v{vGg}'); I(f'v_cvt_pk_bf16_f32 v9, v9, v9'); I(f'v_and_b32 v9, 0xffff0000, v9'); I(f'v_mul_f32 v8, 0x{scale:x}, v{vGg}')
for nt in range(5):
    I(f's_waitcnt lgkmcnt({8-2*nt})')
    b0=TBF+nt*8; c=OA+4*nt
    for p in range(2):
        I(f'v_pk_add_f32 {v(b0+2*p,2)}, {v(b0+2*p,2)}, {v(b0+4+2*p,2)}')
        I(f'v_pk_mul_f32 {v(c+2*p,2)}, {v(c+2*p,2)}, v[8:9] op_sel_hi:[1,0]')
        I(f'v_pk_fma_f32 {v(c+2*p,2)}, {v(b0+2*p,2)}, v[8:9], {v(c+2*p,2)} op_sel:[0,1,0]')
    I(f'v_cvt_pk_bf16_f32 v{c}, v{c}, v{c+1}'); I(f'v_cvt_pk_bf16_f32 v{c+1}, v{c+2}, v{c+3}')
for nt in range(5): I(f'ds_write_b64 v12, {v(OA+4*nt,2)} offset:{32*nt}')
I('s_waitcnt lgkmcnt(0)')
for i in range(3): I(f'ds_read_b128 {v(48+4*i,4)}, v13 offset:{1024*i}')
for i in range(3):
    I(f's_waitcnt lgkmcnt({2-i})'); I(f'buffer_store_dwordx4 {v(48+4*i,4)}, v{40+i}, {srd(sOUT)}, s{t0} offen')
I(f's_or_b32 s{t0}, s2, s{sW}'); I(f's_cmp_eq_u32 s{t0}, 0'); I('s_cbranch_scc0 Lnoe')
vconst(15,WS_E); setflag(15,14)
A.label('Lnoe')
if TS:
    stamp(28)
    I(f's_lshl_b32 s{t0}, s2, 2'); I(f's_add_u32 s{t0}, s{t0}, s{sW}'); I(f's_lshl_b32 s{t0}, s{t0}, 8'); I(f's_add_u32 s{t0}, s{t0}, {WS_TS}')
    I(f'v_lshlrev_b32 v4, 2, v{vL}')
    I(f'buffer_store_dword v0, v4, {srd(sWS)}, s{t0} offen')
A.label('Lend')
I('s_endpgm')
body_txt=A.finish()

hdr=open(os.path.join(os.path.dirname(os.path.abspath(__file__)),'..','cdna_kernels',NAME+'.s.ref')).read().split('; Override launch')[0]
out=hdr+f'; @launch grid=(256,1,1) block=(256,1,1) lds={LDS_SZ}\n'
out+=f'.amdgcn_target "amdgcn-amd-amdhsa--gfx950"\n.text\n.globl {K}\n.p2align 8\n.type {K},@function\n{K}:\n'
out+=body_txt
out+=f'''.section .rodata,"a"
.p2align 6
.amdhsa_kernel {K}
  .amdhsa_next_free_vgpr 512
  .amdhsa_next_free_sgpr 102
  .amdhsa_accum_offset 256
  .amdhsa_group_segment_fixed_size 0
  .amdhsa_kernarg_size 80
  .amdhsa_user_sgpr_count 2
  .amdhsa_user_sgpr_kernarg_segment_ptr 1
  .amdhsa_system_sgpr_workgroup_id_x 1
.end_amdhsa_kernel
'''
if DEV: out+='.p2align 8\n.type tab_base,@object\ntab_base:\n@@INCBIN@@\n'
else: out+=TB.emit()
o=[a for a in sys.argv[1:] if not a.startswith('--')]
open(o[0] if o else 'out.s','w').write(out)
print('instructions:',sum(1 for l in body_txt.split('\n') if l.startswith('    ')),'nops inserted:',A.nnops,file=sys.stderr)
```

```python
import sys, os
from asm import Asm
import tables as TB

NAME='gated_mix__spectral_gfnet__linear_attn_block__prompt'
DEV = '--dev' in sys.argv
TS  = '--ts' in sys.argv
STOP = int(os.environ.get('STOP','99'))
ROT = int(os.environ.get('ROT','0'))
LDPOL = os.environ.get('LDPOL','')

WS_Y=0; WS_R=2621440; WS_O=2*2621440; WS_KVP=3*2621440; WS_G=WS_KVP+1048576
WS_FL=WS_G+8192
FL_Y=0
FL_KV=256
FL_R=768
FL_O=960
NFL=1216
WS_E=WS_FL+NFL*128
WS_TS=WS_E+128
WS_SZ=WS_TS+256*4*256
OOB=0x7ff00000
SLOT=36880; SEG0=16384; SEG1=16384+10240+16
L_GATE=4*SLOT
L_FLG=L_GATE+1280
LDS_SZ=L_FLG+64
L_WO=[0,51200]; L_PQ=[102400,113280]; PQS=136
L_XCH=[124160,124160+8704]; L_KVI=141568
L_RED=102400
L_TA=[0,10240]; L_TB=[20480,40960]; L_OUT=61440
sX,sSEG,sWS,sWR,sWI,sTAB,sWO,sOUT,sGATE=4,8,12,16,20,24,28,32,36
sW,sWr,sWc,sTyp,sRb,sGrp,sTag,sCnt=40,41,42,43,44,45,46,47
sAo,sBo,sBstep,sMA,sMB,sDl,sIs,sCs=48,49,50,51,52,53,54,55
sT,sCh,sN2,sCt,sAct,sTo=56,57,58,59,60,61
t0,t1,t2,t3,t4,t5=62,63,64,65,66,67
sK=68
sEx=88
sTS=90
def srd(n): return f's[{n}:{n+3}]'
def v(a,n=1): return f'v{a}' if n==1 else f'v[{a}:{a+n-1}]'
def a_(a,n=1): return f'a{a}' if n==1 else f'a[{a}:{a+n-1}]'
vL,vN,vG=1,2,3
A=Asm(); I=A
nts=[0]
def stamp(i):
    if TS:
        I(f's_memrealtime s[{sTS}:{sTS+1}]'); I('s_waitcnt lgkmcnt(0)'); I(f'v_writelane_b32 v0, s{sTS}, {i}')
        if i in (3,14,25,26):
            I(f's_memtime s[{sTS}:{sTS+1}]'); I('s_waitcnt lgkmcnt(0)'); I(f'v_writelane_b32 v0, s{sTS}, {i+32}')
def smul(d,x,c):
    I(f's_mul_i32 s{d}, s{x}, {c}')
def vconst(r,c): I(f'v_mov_b32 v{r}, {c}')
def div10(dst,src):
    I(f'v_mul_u32_u24 v{dst}, 0x199a, v{src}'); I(f'v_lshrrev_b32 v{dst}, 16, v{dst}')
uid=[0]
def poll(voffs,tmp):
    uid[0]+=1; L=f'Lpoll{uid[0]}'
    I(f's_mov_b32 s{sTo}, 0x40000')
    A.label(L)
    for i,vo in enumerate(voffs): I(f'buffer_load_dword v{tmp+i}, v{vo}, {srd(sWS)}, 0 offen sc1')
    I('s_waitcnt vmcnt(0)')
    I(f'v_cmp_ne_u32 vcc, s{sTag}, v{tmp}')
    for i in range(1,len(voffs)):
        I(f'v_cmp_ne_u32 s[{t4}:{t5}], s{sTag}, v{tmp+i}'); I(f's_or_b64 vcc, vcc, s[{t4}:{t5}]')
    I(f's_cbranch_vccz {L}d')
    I(f's_sub_u32 s{sTo}, s{sTo}, 1'); I(f's_cbranch_scc0 {L}')
    A.label(L+'d')
def ldspoll(vaddr,tmp,val):
    uid[0]+=1; L=f'Llp{uid[0]}'
    I(f's_mov_b32 s{sTo}, 0x400000')
    A.label(L)
    I(f'ds_read_b32 v{tmp}, v{vaddr}'); I('s_waitcnt lgkmcnt(0)')
    I(f'v_cmp_gt_u32 vcc, {val}, v{tmp}')
    I(f's_cbranch_vccz {L}d')
    I(f's_sub_u32 s{sTo}, s{sTo}, 1'); I(f's_cbranch_scc0 {L}')
    A.label(L+'d')
def setflag(voff,tmp):
    I(f'v_mov_b32 v{tmp}, s{sTag}')
    I('s_mov_b64 exec, 1')
    I(f'buffer_store_dword v{tmp}, v{voff}, {srd(sWS)}, 0 offen sc1')
    I('s_mov_b64 exec, -1')
MF='v_mfma_f32_16x16x32_bf16'

K=f'{NAME}_kernel'
I(f's_cmp_ge_u32 s2, 256'); I('s_cbranch_scc1 Lend')
if TS: I(f's_memrealtime s[{sTS+2}:{sTS+3}]')
I(f's_load_dwordx16 s[{sK}:{sK+15}], s[0:1], 0')
I(f's_load_dwordx4 s[{sK+16}:{sK+19}], s[0:1], 64')
I(f'v_lshrrev_b32 v4, 6, v0'); I(f'v_and_b32 v{vL}, 63, v0')
I(f'v_readfirstlane_b32 s{sW}, v4')
I(f'v_and_b32 v{vN}, 15, v{vL}'); I(f'v_lshrrev_b32 v{vG}, 4, v{vL}')
I(f's_lshr_b32 s{t0}, s2, 3'); I(f's_and_b32 s{t1}, s2, 7')
I(f's_lshr_b32 s{sRb}, s{t1}, 2'); I(f's_lshl_b32 s{sRb}, s{sRb}, 3'); I(f's_lshr_b32 s{t2}, s{t0}, 2'); I(f's_add_u32 s{sRb}, s{sRb}, s{t2}')
I(f's_bfe_u32 s{sTyp}, s{t0}, 0x10001')
I(f's_and_b32 s{sGrp}, s{t1}, 3'); I(f's_lshl_b32 s{sGrp}, s{sGrp}, 1'); I(f's_and_b32 s{t2}, s{t0}, 1'); I(f's_add_u32 s{sGrp}, s{sGrp}, s{t2}')
I(f's_lshl_b32 s{sN2}, s{t1}, 2'); I(f's_lshr_b32 s{t2}, s{t0}, 3'); I(f's_add_u32 s{sN2}, s{sN2}, s{t2}'); I(f's_and_b32 s{sCt}, s{t0}, 7')
I(f's_and_b32 s{sWr}, s{sW}, 1'); I(f's_lshr_b32 s{sWc}, s{sW}, 1')
if ROT:
    I(f's_lshr_b32 s{t2}, s{t0}, 2'); smul(t2,t2,5); I(f's_lshr_b32 s{t3}, s{t0}, 0'); I(f's_and_b32 s{t3}, s{t3}, 3'); smul(t3,t3,10)
    I(f's_add_u32 s{t2}, s{t2}, s{t3}'); I(f's_lshr_b32 s{t2}, s{t2}, 2')
    I(f's_cmp_ge_u32 s{t2}, 10'); I(f's_cselect_b32 s{t3}, 10, 0'); I(f's_sub_u32 s{sIs}, s{t2}, s{t3}')
else: I(f's_mov_b32 s{sIs}, 0')
I(f's_mov_b32 s{sCs}, s{sIs}')

ACC=16; GACC=96
FX=dict(A=100,B=116,G=136); FY=dict(A=140,B=156,G=176)
vAo=180; vBo=184; vRA=189; vRB=191; vRG=196
I(f's_and_b32 s{t2}, s{sGrp}, 3'); I(f's_lshl_b32 s{t2}, s{t2}, 4'); I(f's_cmp_eq_u32 s{sTyp}, 0'); I(f's_cselect_b32 s{t2}, s{t2}, 0')
I(f's_lshl_b32 s{t3}, s{sWr}, 5'); I(f's_add_u32 s{t2}, s{t2}, s{t3}')
I(f's_lshl_b32 s{t3}, s{sRb}, 1'); I(f's_add_u32 s{t3}, s{t3}, s{sWc}'); smul(t3,t3,1280)
I(f'v_lshrrev_b32 v4, 3, v{vL}'); I(f'v_add_u32 v4, s{t2}, v4'); I(f'v_and_b32 v5, 7, v{vL}')
I(f's_mov_b32 s{t4}, {32*1280}')
for i in range(4):
    I(f'v_add_u32 v6, {8*i}, v4'); I(f'v_and_b32 v6, 63, v6')
    I(f'v_add_u32 v7, {4*i}, v{vG}'); I(f'v_and_b32 v7, 7, v7'); I(f'v_xor_b32 v7, v7, v5')
    I(f'v_lshlrev_b32 v7, 4, v7'); I(f'v_mad_u32_u24 v6, v6, s{t4}, v7'); I(f'v_add_u32 v{vAo+i}, s{t3}, v6')
I(f's_andn2_b32 s{t0}, s{sTyp}, s{sWc}')
I(f's_sub_u32 s{t1}, 1, s{sTyp}'); I(f's_add_u32 s{t2}, s{sWc}, 1'); I(f's_mul_i32 s{t1}, s{t1}, s{t2}'); smul(t1,t1,1280)
smul(t2,sGrp,160); I(f's_add_u32 s{t1}, s{t1}, s{t2}')
smul(t2,sGrp,102400)
I(f's_cmp_eq_u32 s{t0}, 1')
I(f's_cselect_b32 s{t1}, s{t2}, s{t1}')
I(f's_mov_b32 s{t2}, 3840'); I(f's_cselect_b32 s{t2}, 160, s{t2}')
I(f's_mov_b32 s{sBstep}, {64*3840}'); I(f's_cselect_b32 s{sBstep}, 10240, s{sBstep}')
I(f's_cselect_b64 s[{t4}:{t5}], -1, 0')
smul(t3,sWr,320)
for i in range(5):
    I(f'v_add_u32 v4, {64*i}, v{vL}'); I(f'v_add_u32 v4, s{t3}, v4')
    div10(5,4)
    I(f'v_mul_u32_u24 v6, 10, v5'); I(f'v_sub_u32 v6, v4, v6')
    I(f'v_and_b32 v7, 0x23, v5'); I(f'v_bfe_u32 v8, v5, 2, 2'); I(f'v_lshl_or_b32 v7, v8, 3, v7')
    I(f'v_bfe_u32 v8, v5, 4, 1'); I(f'v_lshl_or_b32 v7, v8, 2, v7')
    I(f'v_cndmask_b32 v7, v7, v5, s[{t4}:{t5}]')
    I(f'v_lshlrev_b32 v6, 4, v6'); I(f'v_mad_u32_u24 v7, v7, s{t2}, v6'); I(f'v_add_u32 v{vBo+i}, s{t1}, v7')
I(f's_getpc_b64 s[{sTAB}:{sTAB+1}]')
A.label('Lpc')
I(f's_add_u32 s{sTAB}, s{sTAB}, tab_base@rel32@lo+4'); I(f's_addc_u32 s{sTAB+1}, s{sTAB+1}, tab_base@rel32@hi+12')
I(f's_mov_b32 s{sTAB+2}, {TB.TAB_SZ}'); I(f's_mov_b32 s{sTAB+3}, 0x20000')
I(f's_lshl_b32 s{sMA}, s{sW}, 12')
smul(sMB,sWc,10256); smul(t3,sWr,5120); I(f's_add_u32 s{sMB}, s{sMB}, s{t3}'); I(f's_add_u32 s{sMB}, s{sMB}, {SEG0}')
I(f's_lshl_b32 s{sAo}, s{sIs}, 7'); I(f's_mul_i32 s{sBo}, s{sIs}, s{sBstep}')
I('s_waitcnt lgkmcnt(0)')
def mksrd(d,p,n):
    I(f's_mov_b32 s{d}, s{p}'); I(f's_mov_b32 s{d+1}, s{p+1}'); I(f's_mov_b32 s{d+2}, {n}'); I(f's_mov_b32 s{d+3}, 0x20000')
mksrd(sX,sK+0,2621440)
I(f's_cmp_eq_u32 s{t0}, 1')
I(f's_cselect_b32 s{sSEG}, s{sTAB}, s{sK+8}'); I(f's_cselect_b32 s{sSEG+1}, s{sTAB+1}, s{sK+9}')
I(f's_mov_b32 s{sSEG+2}, 2457600'); I(f's_cselect_b32 s{sSEG+2}, {TB.TF_SZ}, s{sSEG+2}'); I(f's_mov_b32 s{sSEG+3}, 0x20000')
def dma_list(slotreg=None):
    L=[]
    for i in range(4): L.append([f's_add_u32 m0, s{sMA}, {1024*i}', f'buffer_load_dwordx4 v{vAo+i}, {srd(sX)}, s{sAo} offen {LDPOL} lds'])
    for i in range(5): L.append([f's_add_u32 m0, s{sMB}, {1024*i}', f'buffer_load_dwordx4 v{vBo+i}, {srd(sSEG)}, s{sBo} offen {LDPOL} lds'])
    return L
def dma_advance():
    return [f's_add_u32 s{sIs}, s{sIs}, 1', f's_cmp_eq_u32 s{sIs}, 10', f's_cselect_b32 s{sIs}, 0, s{sIs}',
            f's_lshl_b32 s{sAo}, s{sIs}, 7', f's_mul_i32 s{sBo}, s{sIs}, s{sBstep}']
mksrd(sGATE,sK+12,1280)
I(f'v_lshlrev_b32 v4, 4, v{vL}')
I(f's_cmp_lg_u32 s{sW}, 0'); I('s_cbranch_scc1 Lnogate')
I(f's_mov_b32 m0, {L_GATE}'); I(f'buffer_load_dwordx4 v4, {srd(sGATE)}, 0 offen lds')
I('s_mov_b64 exec, 0xffff')
I(f's_mov_b32 m0, {L_GATE}'); I(f'buffer_load_dwordx4 v4, {srd(sGATE)}, 0 offen offset:1024 lds')
I('s_mov_b64 exec, -1')
A.label('Lnogate')
for st in range(4):
    for x in dma_list():
        for y in x: I(y)
    for y in dma_advance(): I(y)
    d = SLOT if st<3 else -3*SLOT
    I(f's_add_u32 s{sMA}, s{sMA}, {d}'); I(f's_add_u32 s{sMB}, s{sMB}, {d}')
if TS: I(f'v_writelane_b32 v0, s{sTS+2}, 0')
stamp(1)
mksrd(sWS,sK+18,WS_SZ); mksrd(sWR,sK+2,1314816); mksrd(sWI,sK+4,1314816); mksrd(sWO,sK+10,819200); mksrd(sOUT,sK+14,2621440)
I(f's_add_u32 s{t0}, s{sK+18}, {WS_E}'); I(f's_addc_u32 s{t1}, s{sK+19}, 0')
I(f's_load_dword s{sTag}, s[{t0}:{t1}], 0')
for i in range(84): vconst(ACC+i,0)
vconst(5,0); I(f'v_lshlrev_b32 v4, 2, v{vN}'); I(f'ds_write_b32 v4, v5 offset:{L_FLG&0xffff}') if False else None
I(f'v_add_u32 v4, {L_FLG}, v4'); I(f'ds_write_b32 v4, v5')
I(f'v_lshrrev_b32 v4, 1, v{vN}'); I(f'v_xor_b32 v4, v4, v{vG}'); I(f'v_lshlrev_b32 v4, 4, v4')
I(f'v_lshl_add_u32 v4, v{vN}, 7, v4'); I(f's_lshl_b32 s{t0}, s{sWr}, 13'); I(f'v_add_u32 v{vRA}, s{t0}, v4'); I(f'v_xor_b32 v{vRA+1}, 64, v{vRA}')
I(f'v_lshrrev_b32 v4, 2, v{vL}'); I(f'v_mul_u32_u24 v4, 160, v4')
I(f'v_and_b32 v5, 3, v{vL}'); I(f'v_lshlrev_b32 v5, 3, v5')
I(f'v_add_u32 v4, v4, v5')
smul(t0,sWc,80); smul(t1,sWc,10256)
I(f's_cmp_eq_u32 s{sTyp}, 0')
I(f's_cselect_b32 s{t0}, s{t0}, s{t1}'); I(f's_add_u32 s{t0}, s{t0}, {SEG0}')
I(f's_cselect_b32 s{t1}, {SEG1-SEG0-80}, 0') if False else None
I(f's_cmp_eq_u32 s{sTyp}, 0'); I(f's_cselect_b32 s{t1}, {SEG1-SEG0-80}, 0')
I(f'v_add_u32 v4, s{t0}, v4')
I(f'v_mov_b32 v{vRB}, v4'); I(f'v_add_u32 v{vRB+1}, 32, v4')
I(f'v_mov_b32 v6, s{t1}'); I(f'v_cmp_lt_u32 vcc, 8, v5'); I(f'v_cndmask_b32 v6, 0, v6, vcc'); I(f'v_add3_u32 v{vRB+2}, v4, v6, 64')
I(f'v_add_u32 v4, s{t1}, v4'); I(f'v_add_u32 v{vRB+3}, 96, v4'); I(f'v_add_u32 v{vRB+4}, 0x80, v4')
I(f's_lshl_b32 s{t0}, s{sCs}, 7'); I(f's_add_u32 s{t0}, s{t0}, {L_GATE}'); I(f'v_lshlrev_b32 v4, 4, v{vG}'); I(f'v_add_u32 v{vRG}, s{t0}, v4')

I(f's_lshr_b32 s{t0}, s{sRb}, 1'); I(f's_lshl_b32 s{t0}, s{t0}, 3'); I(f's_add_u32 s{t0}, s{t0}, s{sGrp}')
I(f's_lshr_b32 s{t1}, s{t0}, 4'); I(f's_add_u32 s{t1}, s{t1}, 16')
I(f's_and_b32 s{t2}, s{t0}, 15'); I(f's_lshl_b32 s{t2}, s{t2}, 1'); I(f's_add_u32 s{t2}, s{t2}, s{sWr}')
I(f's_lshl_b32 s{t3}, s{sGrp}, 2'); I(f's_add_u32 s{t3}, s{t3}, s{sW}')
I(f's_cmp_eq_u32 s{sTyp}, 0'); I(f's_cselect_b32 s{sT}, s{t3}, s{t2}'); I(f's_cselect_b32 s{sCh}, s{sRb}, s{t1}')
I(f's_and_b32 s{sAct}, s{sRb}, 1'); I(f's_xor_b32 s{sAct}, s{sAct}, 1')
vKA=200
vE0=208
for i in range(5): vconst(vE0+i,OOB)
I(f's_cmp_eq_u32 s{sTyp}, 0'); I('s_cbranch_scc0 LsetFQ')
PAIRS=[(0,2),(0,3),(1,2),(1,3),(1,4),(2,2),(2,3),(2,4)]
I(f's_lshl_b32 s{t0}, s{sW}, 12'); I(f's_add_u32 s{t0}, s{t0}, {L_RED}')
for i,(a,b) in enumerate(PAIRS):
    I(f'v_add_u32 v4, {4*a}, v{vG}')
    I(f'v_cmp_lt_u32 vcc, 4, v4'); I(f'v_cndmask_b32 v5, 0, 1, vcc')
    I(f'v_mul_u32_u24 v6, 21, v4')
    I(f'v_add_u32 v7, {16*b-40}, v{vN}')
    I(f'v_cmp_lt_i32 vcc, 19, v7'); I(f'v_cndmask_b32 v8, 0, 1, vcc')
    I(f'v_mul_u32_u24 v9, 20, v8'); I(f'v_sub_u32 v9, v7, v9')
    I(f'v_cmp_eq_u32 s[{t4}:{t5}], v5, v8')
    if b==2:
        I(f'v_cmp_le_i32 vcc, 0, v7'); I(f's_and_b64 s[{t4}:{t5}], s[{t4}:{t5}], vcc')
        I(f'v_cmp_eq_u32 vcc, 0, v{vN}'); I(f'v_cndmask_b32 v9, v9, 20, vcc'); I(f's_or_b64 s[{t4}:{t5}], s[{t4}:{t5}], vcc')
    if a==2:
        I(f'v_cmp_gt_u32 vcc, 10, v4'); I(f's_and_b64 s[{t4}:{t5}], s[{t4}:{t5}], vcc')
    I(f'v_add_u32 v6, v6, v9'); I(f'v_add_u32 v7, 0xe0, v{vN}')
    I(f'v_cndmask_b32 v6, v7, v6, s[{t4}:{t5}]')
    I(f'v_lshlrev_b32 v6, 4, v6'); I(f'v_add_u32 v{vKA+i}, s{t0}, v6')
I(f's_lshl_b32 s{t0}, s{sWc}, 13'); I(f's_lshl_b32 s{t1}, s{sWr}, 11'); I(f's_add_u32 s{t0}, s{t0}, s{t1}')
I(f's_add_u32 s{t0}, s{t0}, {L_RED}'); I(f'v_lshlrev_b32 v4, 4, v{vL}'); I(f'v_add_u32 v{vE0}, s{t0}, v4')
I(f's_lshl_b32 s{t0}, s{sGrp}, 1'); I(f's_add_u32 s{t0}, s{t0}, s{sWc}'); I(f's_lshl_b32 s{t0}, s{t0}, 4'); I(f's_add_u32 s{t0}, s{t0}, s{sRb}')
I(f's_lshl_b32 s{t0}, s{t0}, 12'); I(f's_add_u32 s{t0}, s{t0}, s{t1}'); I(f's_add_u32 s{t0}, s{t0}, {WS_KVP}')
I(f'v_add_u32 v{vE0+1}, s{t0}, v4')
I(f's_cmp_eq_u32 s{sWr}, 0'); I(f's_cselect_b32 s{t1}, 64, 18'); I(f'v_cmp_gt_u32 vcc, s{t1}, v{vL}')
vconst(5,OOB); I(f'v_cndmask_b32 v{vE0+2}, v5, v{vE0+1}, vcc')
I(f's_lshl_b32 s{t0}, s{sRb}, 1'); I(f's_add_u32 s{t0}, s{t0}, s{sWr}'); I(f's_lshl_b32 s{t0}, s{t0}, 8'); I(f's_lshl_b32 s{t1}, s{sGrp}, 6'); I(f's_add_u32 s{t0}, s{t0}, s{t1}'); I(f's_add_u32 s{t0}, s{t0}, {WS_G}')
I(f's_lshr_b32 s{t1}, s{sGrp}, 2'); I(f's_or_b32 s{t1}, s{t1}, s{sWc}'); I(f's_cmp_eq_u32 s{t1}, 0'); I(f's_cselect_b32 s{t0}, s{t0}, {OOB}')
I(f'v_lshlrev_b32 v4, 4, v{vG}'); I(f'v_add_u32 v4, s{t0}, v4'); I(f'v_cmp_eq_u32 vcc, 0, v{vN}'); I(f'v_cndmask_b32 v{vE0+3}, v5, v4, vcc')
I(f's_lshl_b32 s{t0}, s{sGrp}, 2'); I(f's_add_u32 s{t0}, s{t0}, s{sW}'); I(f's_lshl_b32 s{t0}, s{t0}, 4'); I(f's_add_u32 s{t0}, s{t0}, s{sRb}')
I(f's_lshl_b32 s{t0}, s{t0}, 7'); I(f's_add_u32 s{t0}, s{t0}, {WS_FL+FL_KV*128}'); I(f'v_mov_b32 v{vE0+4}, s{t0}')
I('s_branch Lsetdone')
A.label('LsetFQ')
I(f's_cmp_eq_u32 s{sWc}, 0'); I('s_cbranch_scc0 Lsetdone')
I(f'v_lshlrev_b32 v4, 4, v{vL}')
for i in range(8):
    I(f's_mov_b32 s{t0}, {TB.D1_OFF+1024*i}'); I(f'buffer_load_dwordx4 {a_(224+4*i,4)}, v4, {srd(sTAB)}, s{t0} offen')
I(f's_lshl_b32 s{t0}, s{sRb}, 1'); I(f's_add_u32 s{t0}, s{t0}, s{sWr}'); smul(t0,t0,2560); smul(t1,sGrp,320); I(f's_add_u32 s{t0}, s{t0}, s{t1}')
I(f's_mov_b32 s{t1}, 163840'); I(f'v_lshlrev_b32 v4, 2, v{vN}'); I(f'v_mad_u32_u24 v4, v{vG}, s{t1}, v4'); I(f'v_add_u32 v{vE0}, s{t0}, v4')
I(f's_lshl_b32 s{t0}, s{sGrp}, 1'); I(f's_add_u32 s{t0}, s{t0}, s{sWr}'); I(f's_lshl_b32 s{t0}, s{t0}, 4'); I(f's_add_u32 s{t0}, s{t0}, s{sRb}')
I(f's_lshl_b32 s{t0}, s{t0}, 7'); I(f's_add_u32 s{t0}, s{t0}, {WS_FL+FL_Y*128}'); I(f'v_mov_b32 v{vE0+4}, s{t0}')
A.label('Lsetdone')

def reads(F,ks):
    L=[]
    for mt in range(4): L.append(f'ds_read_b128 {v(F["A"]+4*mt,4)}, v{vRA+ks} offset:{2048*mt}')
    for nt in range(5):
        for h in range(2): L.append(f'ds_read_b64_tr_b16 {v(F["B"]+4*nt+2*h,2)}, v{vRB+nt} offset:{(32*ks+16*h)*160}')
    L.append(f'ds_read_b128 {v(F["G"],4)}, v{vRG} offset:{64*ks}')
    return L
def mfmas(F):
    L=[]
    for nt in range(5):
        for mt in range(4):
            c=v(ACC+(mt*5+nt)*4,4); L.append(f'{MF} {c}, {v(F["A"]+4*mt,4)}, {v(F["B"]+4*nt,4)}, {c}')
    c=v(GACC,4); L.append(f'{MF} {c}, {v(F["A"],4)}, {v(F["G"],4)}, {c}')
    return L
def interleave(M,Fl,per):
    k=0
    for i,m in enumerate(M):
        I(m)
        for _ in range(per[i] if i<len(per) else 0):
            if k<len(Fl):
                for y in Fl[k]: I(y)
                k+=1
    while k<len(Fl):
        for y in Fl[k]: I(y)
        k+=1
def adv_reads():
    pre=[f's_add_u32 s{sCnt}, s{sCnt}, 1', f's_and_b32 s{t0}, s{sCnt}, 3', f's_mov_b32 s{sDl}, {SLOT}', f's_cselect_b32 s{sDl}, s{sDl}, {-3*SLOT}',
         f's_add_u32 s{sCs}, s{sCs}, 1', f's_cmp_eq_u32 s{sCs}, 10', f's_cselect_b32 s{sCs}, 0, s{sCs}', f's_movk_i32 s{t1}, 128', f's_cselect_b32 s{t1}, -1152, s{t1}']
    L=[[f'v_add_u32 v{r}, s{sDl}, v{r}'] for r in [vRA,vRB,vRB+1,vRB+2,vRB+3,vRB+4,vRA+1]]+[[f'v_add_u32 v{vRG}, s{t1}, v{vRG}']]
    return pre,L
I(f's_mov_b32 s{sCnt}, 4')
stamp(2)
I(f's_mov_b32 s{sCnt}, 0')
I('s_waitcnt vmcnt(27) lgkmcnt(0)'); I('s_barrier')
I(f's_add_u32 s{sTag}, s{sTag}, 0x9e3779b9')
stamp(3)
for r in reads(FX,0): I(r)
def body(dma):
    if TS:
        I(f's_add_u32 m0, s{sCnt}, 4'); stamp('m0')
    I('s_waitcnt lgkmcnt(0)')
    interleave(mfmas(FX),[[r] for r in reads(FY,1)],[1]*21)
    pre,adds=adv_reads()
    for y in pre: I(y)
    if dma: I('s_waitcnt vmcnt(18) lgkmcnt(0)')
    else:
        I(f's_cmp_eq_u32 s{sCnt}, 7'); I('s_cbranch_scc1 Lw18'); I(f's_cmp_eq_u32 s{sCnt}, 8'); I('s_cbranch_scc1 Lw9')
        I('s_waitcnt vmcnt(0)'); A.label('Lw9'); I('s_waitcnt vmcnt(9)'); A.label('Lw18'); I('s_waitcnt vmcnt(18) lgkmcnt(0)')
    I('s_barrier')
    Fl=adds+[[r] for r in reads(FX,0)]
    per=[4,4]+[2]*7+[1]*12
    if dma:
        Fl+=dma_list()+[dma_advance()+[f's_add_u32 s{sMA}, s{sMA}, s{sDl}', f's_add_u32 s{sMB}, s{sMB}, s{sDl}']]
    interleave(mfmas(FY),Fl,per)
A.label('Lmain'); body(True)
I(f's_cmp_lt_u32 s{sCnt}, 6'); I('s_cbranch_scc1 Lmain')
A.label('Ltail'); body(False)
I(f's_cmp_lt_u32 s{sCnt}, 10'); I('s_cbranch_scc1 Ltail')
I('s_waitcnt lgkmcnt(0)'); I('s_nop 7')
stamp(14)
def acc(mt,nt,r=0,n=1): return v(ACC+(mt*5+nt)*4+r,n)
sLog2e=sAo; sEps=sAo+1
I(f's_mov_b32 s{sAo}, 0x3fb8aa3b'); I(f's_mov_b32 s{sAo+1}, 0x358637bd')
def phi2(dst,src,tmp):
    I(f'v_pk_mul_f32 {v(tmp,2)}, {v(src,2)}, s[{sAo}:{sAo+1}] op_sel_hi:[1,0]')
    I(f'v_exp_f32 v{tmp}, v{tmp} clamp'); I(f'v_exp_f32 v{tmp+1}, v{tmp+1} clamp')
    I(f'v_max_f32 v{dst}, 0, v{src}'); I(f'v_max_f32 v{dst+1}, 0, v{src+1}')
    I(f'v_pk_add_f32 {v(tmp,2)}, {v(tmp,2)}, s[{sAo}:{sAo+1}] op_sel:[0,1]')
    I(f'v_pk_add_f32 {v(dst,2)}, {v(dst,2)}, {v(tmp,2)}')
I(f's_cmp_eq_u32 s{sTyp}, 0'); I('s_cbranch_scc0 LepiFQ')
PK=100; VV=124; DD=148
for nt in (2,3,4):
    for mt in range(4):
        for p in range(2):
            I(f'v_cvt_pk_bf16_f32 v{VV+(nt-2)*8+mt*2+p}, {acc(mt,nt,2*p)}, {acc(mt,nt,2*p+1)}')
I(f'v_cmp_gt_u32 vcc, 8, v{vN}'); vconst(4,0x3f803f80)
for i in range(8): I(f'v_cndmask_b32 v{VV+i}, v{VV+i}, v4, vcc')
for nt in range(3):
    for mt in range(4):
        for p in range(2):
            b=ACC+(mt*5+nt)*4+2*p
            phi2(b,b,4+2*p)
            I(f'v_cvt_pk_bf16_f32 v{PK+nt*8+mt*2+p}, v{b}, v{b+1}')
    for i,(a,b) in enumerate(PAIRS):
        if a==nt:
            I(f'{MF} {v(DD+4*i,4)}, {v(PK+a*8,4)}, {v(VV+(b-2)*8,4)}, 0')
    for i,(a,b) in enumerate(PAIRS):
        if a==nt:
            I(f'{MF} {v(DD+4*i,4)}, {v(PK+a*8+4,4)}, {v(VV+(b-2)*8+4,4)}, {v(DD+4*i,4)}')
for p in range(2): I(f'v_cvt_pk_bf16_f32 v{4+p}, v{GACC+2*p}, v{GACC+2*p+1}')
for p in range(2):
    I(f'v_lshlrev_b32 v{8+2*p}, 16, v{4+p}'); I(f'v_and_b32 v{9+2*p}, 0xffff0000, v{4+p}')
for r in range(4): I(f'v_mul_f32 v{8+r}, s{sLog2e}, v{8+r}')
for r in range(4): I(f'v_exp_f32 v{8+r}, -v{8+r}')
for r in range(4): I(f'v_add_f32 v{8+r}, 1.0, v{8+r}')
for r in range(4): I(f'v_rcp_f32 v{8+r}, v{8+r}')
for p in range(2): I(f'v_cvt_pk_bf16_f32 v{4+p}, v{8+2*p}, v{9+2*p}')
for p in range(2):
    I(f'v_lshlrev_b32 v{8+2*p}, 16, v{4+p}'); I(f'v_and_b32 v{9+2*p}, 0xffff0000, v{4+p}')
I(f'buffer_store_dwordx4 v[8:11], v{vE0+3}, {srd(sWS)}, 0 offen sc1')
for i in range(8): I(f'ds_write_b128 v{vKA+i}, {v(DD+4*i,4)}')
I('s_waitcnt lgkmcnt(0)'); I('s_barrier')
for i in range(2):
    I(f'ds_read_b128 {v(16+8*i,4)}, v{vE0} offset:{1024*i}');
    I(f'ds_read_b128 {v(20+8*i,4)}, v{vE0} offset:{1024*i+4096}')
for i in range(2):
    I(f's_waitcnt lgkmcnt({2-2*i})')
    for p in range(2): I(f'v_pk_add_f32 {v(16+8*i+2*p,2)}, {v(16+8*i+2*p,2)}, {v(20+8*i+2*p,2)}')
    I(f'buffer_store_dwordx4 {v(16+8*i,4)}, v{vE0+1+i}, {srd(sWS)}, 0 offen offset:{1024*i} sc1')
I(f'v_mov_b32 v15, v{vE0+4}')
I('s_branch Lp2a')
A.label('LepiFQ')
I(f's_cmp_eq_u32 s{sWc}, 0'); I('s_cbranch_scc0 LepiQ')
XB=100; YD=140
for nt in range(5):
    for mt in range(4):
        for p in range(2): I(f'v_cvt_pk_bf16_f32 v{XB+nt*8+mt*2+p}, {acc(mt,nt,2*p)}, {acc(mt,nt,2*p+1)}')
def ymf(nt):
    for kb in range(2):
        for jt in range(4):
            d=v(YD+(nt&1)*16+4*jt,4)
            I(f'{MF} {d}, {a_(224+(jt*2+kb)*4,4)}, {v(XB+nt*8+4*kb,4)}, {"0" if kb==0 else d}')
def yst(nt):
    for jt in range(4):
        for p in range(2):
            b=YD+(nt&1)*16+4*jt+2*p; o=172+jt*2+p
            I(f'v_cvt_pk_bf16_f32 v{o}, v{b}, v{b+1}')
            I(f's_mov_b32 s{t0}, {(8*jt+p)*81920}')
            I(f'buffer_store_dword v{o}, v{vE0}, {srd(sWS)}, s{t0} offen offset:{64*nt} sc1')
ymf(0)
for nt in range(5):
    if nt<4: ymf(nt+1)
    yst(nt)
I(f'v_mov_b32 v15, v{vE0+4}')
I(f's_cmp_eq_u32 s{sAct}, 0'); I('s_cbranch_scc0 Lp2a')
I('s_waitcnt vmcnt(0)'); setflag(15,4)
I('s_branch Lp3')
A.label('Lp2a')
stamp(15)
T1,T2,WP,W3,YF,EF,TM,PQ=16,48,80,112,144,160,192,224
vWp,vWm,vWm0,vT,vY,vF=4,5,6,7,8,9
I(f'v_lshlrev_b32 v{vT}, 4, v{vL}'); I(f's_lshl_b32 s{t0}, s{sT}, 13'); I(f'v_add_u32 v{vT}, s{t0}, v{vT}')
for tb,off in ((T1,TB.T1_OFF),(T2,TB.T2_OFF)):
    for i in range(8):
        if i%4==0: I(f's_mov_b32 s{t0}, {off+1024*i}')
        I(f'buffer_load_dwordx4 {v(tb+4*i,4)}, v{vT}, {srd(sTAB)}, s{t0} offen offset:{1024*(i%4)}')
for i in range(32): vconst(WP+i,0)
I(f's_mov_b32 s{t1}, {256*642}'); I(f's_lshl_b32 s{t0}, s{sCh}, 5')
I(f'v_lshlrev_b32 v10, 1, v{vN}'); I(f'v_add_u32 v10, s{t0}, v10')
I(f'v_mad_u32_u24 v{vWp}, v{vG}, s{t1}, v10')
I(f'v_sub_u32 v11, 3, v{vG}'); I(f'v_mad_u32_u24 v{vWm}, v11, s{t1}, v10')
I(f's_cmp_eq_u32 s{sT}, 0'); I(f's_cselect_b32 s{t0}, {1024*642}, 0'); I(f's_cselect_b32 s{t3}, 32, 1024'); I(f's_cselect_b64 s[{sMA+1}:{sMA+2}], -1, 0') if False else None
I(f'v_mov_b32 v11, s{t0}'); I(f'v_cmp_eq_u32 vcc, 0, v{vG}'); I(f'v_cndmask_b32 v11, 0, v11, vcc'); I(f'v_sub_u32 v11, {256*642}, v11'); I(f'v_add_u32 v{vWm0}, v{vWm}, v11')
I(f's_add_u32 s{t3}, s{t3}, s{sT}')
sB0,sB1=sBstep,sDl
smul(sB0,sT,642); smul(sB1,t3,642)
def wloads(base,vp,vm,vm0):
    for mh in range(2):
        sb=(sB0,sB1)[mh]
        for r in range(4):
            I(f's_add_u32 s{t0}, s{sb}, {64*r*642}'); I(f's_sub_u32 s{t1}, {(1280-64*r-(256 if mh*4+r==0 else 0))*642}, s{sb}')
            i=mh*4+r
            I(f'buffer_load_short_d16_hi v{base+i}, v{vp}, {srd(sWR)}, s{t0} offen')
            I(f'buffer_load_short_d16_hi v{base+8+i}, v{vp}, {srd(sWI)}, s{t0} offen')
            m=vm0 if i==0 else vm
            I(f'buffer_load_short_d16_hi v{base+16+i}, v{m}, {srd(sWR)}, s{t1} offen')
            I(f'buffer_load_short_d16_hi v{base+24+i}, v{m}, {srd(sWI)}, s{t1} offen')
wloads(WP,vWp,vWm,vWm0)
I('s_waitcnt vmcnt(48)'); setflag(15,12)
stamp(16)
I(f's_cmp_eq_u32 s{sCh}, 0'); I('s_cbranch_scc0 Lnosp1')
I('s_waitcnt vmcnt(20)')
for i in range(32): vconst(W3+i,0)
vconst(13,OOB); I(f'v_cmp_eq_u32 vcc, 0, v{vN}')
for d,s_ in ((10,vWp),(11,vWm),(12,vWm0)):
    I(f'v_add_u32 v{d}, 0x280, v{s_}'); I(f'v_cndmask_b32 v{d}, v13, v{d}, vcc')
wloads(W3,10,11,12)
A.label('Lnosp1')
smul(t0,sCh,32*0x334); I(f's_lshr_b32 s{t0}, s{t0}, 16'); smul(t1,sCh,32*0x334); I(f's_add_u32 s{t1}, s{t1}, {31*0x334}'); I(f's_lshr_b32 s{t1}, s{t1}, 16')
I(f'v_mov_b32 v10, s{t0}'); I(f'v_mov_b32 v11, s{t1}'); I(f'v_cmp_gt_u32 vcc, 32, v{vL}'); I(f'v_cndmask_b32 v10, v11, v10, vcc')
I(f'v_and_b32 v11, 31, v{vL}'); I(f'v_lshl_add_u32 v10, v10, 5, v11'); I(f'v_lshlrev_b32 v10, 7, v10'); I(f'v_add_u32 v{vF}, {WS_FL+FL_Y*128}, v10')
smul(t0,sT,81920); I(f's_lshl_b32 s{t1}, s{sCh}, 7'); I(f's_add_u32 s{t0}, s{t0}, s{t1}')
I(f'v_mul_u32_u24 v10, 10240, v{vG}'); I(f'v_lshl_add_u32 v10, v{vN}, 2, v10'); I(f'v_add_u32 v{vY}, s{t0}, v10')
vXW,vXR,vRS,vLF=10,11,12,13
I(f's_lshr_b32 s{t0}, s{sW}, 1'); smul(t0,t0,8704); I(f's_add_u32 s{t0}, s{t0}, {L_XCH[0]}')
I(f's_lshl_b32 s{t1}, s{sWr}, 5'); I(f's_add_u32 s{t1}, s{t1}, s{t0}')
I(f'v_mul_u32_u24 v{vXW}, 272, v{vN}'); I(f'v_lshl_add_u32 v{vXW}, v{vG}, 6, v{vXW}'); I(f'v_add_u32 v{vXW}, s{t1}, v{vXW}')
smul(t1,sWr,16*272); I(f's_add_u32 s{t1}, s{t1}, s{t0}')
I(f'v_mul_u32_u24 v{vXR}, 272, v{vG}'); I(f'v_lshl_add_u32 v{vXR}, v{vN}, 4, v{vXR}'); I(f'v_add_u32 v{vXR}, s{t1}, v{vXR}')
smul(t0,sWr,16*81920); I(f's_lshl_b32 s{t1}, s{sCh}, 12'); I(f's_add_u32 s{t0}, s{t0}, s{t1}')
I(f's_lshr_b32 s{t1}, s{sT}, 1'); I(f's_lshl_b32 s{t1}, s{t1}, 8'); I(f's_add_u32 s{t0}, s{t0}, s{t1}'); I(f's_add_u32 s{t0}, s{t0}, {WS_R}')
I(f's_mov_b32 s{t1}, 81920'); I(f'v_lshlrev_b32 v{vRS}, 4, v{vN}'); I(f'v_mad_u32_u24 v{vRS}, v{vG}, s{t1}, v{vRS}'); I(f'v_add_u32 v{vRS}, s{t0}, v{vRS}')
I(f's_lshl_b32 s{t0}, s{sWc}, 2'); I(f's_add_u32 s{t0}, s{t0}, {L_FLG}'); I(f'v_mov_b32 v{vLF}, s{t0}')
stamp(17)
poll([vF],14)
stamp(18)
for ks in range(2):
    for i in range(4):
        I(f's_mov_b32 s{t0}, {(16*ks+i)*2560}')
        for ri in range(2): I(f'buffer_load_dword v{YF+(ri*2+ks)*4+i}, v{vY}, {srd(sWS)}, s{t0} offen offset:{64*ri} sc1')
for ks in range(2):
    I(f's_waitcnt vmcnt({8-8*ks})')
    for mt in range(4):
        for ri in range(2):
            d=v(EF+(mt*2+ri)*4,4)
            I(f'{MF} {d}, {v(T1+(mt*2+ks)*4,4)}, {v(YF+(ri*2+ks)*4,4)}, {"0" if ks==0 else d}')
stamp(19)
def pk(op,d,*s,neg=None):
    t=f'v_pk_{op}_f32 {v(d,2)}, '+', '.join(v(x,2) for x in s)
    if neg: t+=f' neg_lo:{neg} neg_hi:{neg}'
    I(t)
Pre,Pim,Qre,Qim=PQ,PQ+8,PQ+16,PQ+24
def EFr(typ,mh,ri,p): return EF+((typ*2+mh)*2+ri)*4+2*p
for mh in range(2):
    for p in range(2):
        o=mh*4+2*p; Er,Ei,Fr,Fi=EFr(0,mh,0,p),EFr(0,mh,1,p),EFr(1,mh,0,p),EFr(1,mh,1,p)
        wpr,wpi,wmr,wmi=WP+o,WP+8+o,WP+16+o,WP+24+o
        T=TM+(p*16)
        pk('add',T,Er,Fi); pk('add',T+2,Ei,Fr,neg='[0,1]'); pk('add',T+4,Er,Fi,neg='[0,1]'); pk('add',T+6,Ei,Fr)
        pk('mul',T+8,T,wpr); pk('mul',T+10,T,wpi); pk('mul',T+12,T+4,wmr); pk('mul',T+14,T+4,wmi)
        pk('fma',T+8,T+2,wpi,T+8,neg='[1,0,0]'); pk('fma',T+10,T+2,wpr,T+10); pk('fma',T+12,T+6,wmi,T+12,neg='[1,0,0]'); pk('fma',T+14,T+6,wmr,T+14)
        pk('add',Pre+o,T+8,T+12); pk('add',Pim+o,T+10,T+14); pk('add',Qre+o,T+14,T+10,neg='[0,1]'); pk('add',Qim+o,T+8,T+12,neg='[0,1]')
I(f's_cmp_eq_u32 s{sT}, 0'); I('s_cbranch_scc0 Lnot0')
I('s_mov_b64 exec, 0xffff')
Er,Ei,Fr,Fi=EFr(0,0,0,0),EFr(0,0,1,0),EFr(1,0,0,0),EFr(1,0,1,0)
I(f'v_mul_f32 v{Pre}, v{Er}, v{WP}'); I(f'v_fma_f32 v{Pre}, -v{Ei}, v{WP+8}, v{Pre}')
I(f'v_mul_f32 v{Pim}, v{Er}, v{WP+8}'); I(f'v_fma_f32 v{Pim}, v{Ei}, v{WP}, v{Pim}')
I(f'v_mul_f32 v{Qre}, v{Fr}, v{WP+16}'); I(f'v_fma_f32 v{Qre}, -v{Fi}, v{WP+24}, v{Qre}')
I(f'v_mul_f32 v{Qim}, v{Fr}, v{WP+24}'); I(f'v_fma_f32 v{Qim}, v{Fi}, v{WP+16}, v{Qim}')
I('s_mov_b64 exec, -1')
A.label('Lnot0')
I(f's_cmp_eq_u32 s{sCh}, 0'); I('s_cbranch_scc0 Lnosp2')
I(f's_mov_b32 s{t0}, 0x10001'); I(f's_mov_b32 exec_lo, s{t0}'); I(f's_mov_b32 exec_hi, s{t0}')
for mh in range(2):
    for p in range(2):
        o=mh*4+2*p; Er,Ei,Fr,Fi=EFr(0,mh,0,p),EFr(0,mh,1,p),EFr(1,mh,0,p),EFr(1,mh,1,p)
        T=TM
        pk('add',T,WP+o,WP+16+o); pk('add',T+2,WP+8+o,WP+24+o,neg='[0,1]'); pk('add',T+4,W3+o,W3+16+o); pk('add',T+6,W3+8+o,W3+24+o,neg='[0,1]')
        for q in range(4): I(f'v_pk_mul_f32 {v(T+2*q,2)}, {v(T+2*q,2)}, 0.5')
        pk('mul',Pre+o,Er,T); pk('mul',Qre+o,Fr,T); pk('mul',Pim+o,Ei,T+4); pk('mul',Qim+o,Fi,T+4)
        pk('fma',Pre+o,Fr,T+2,Pre+o); pk('fma',Qre+o,Er,T+2,Qre+o,neg='[1,0,0]'); pk('fma',Pim+o,Fi,T+6,Pim+o); pk('fma',Qim+o,Ei,T+6,Qim+o,neg='[1,0,0]')
I(f's_cmp_eq_u32 s{sT}, 0'); I('s_cbranch_scc0 Lnocorner')
I('s_mov_b64 exec, 1')
Er,Ei,Fr,Fi=EFr(0,0,0,0),EFr(0,0,1,0),EFr(1,0,0,0),EFr(1,0,1,0)
for d,x,w in ((Pre,Er,WP),(Pim,Ei,W3),(Qre,Fr,WP+16),(Qim,Fi,W3+16)):
    I(f'v_mul_f32 v{d}, v{x}, v{w}'); I(f'v_mul_f32 v{d}, 0.5, v{d}')
A.label('Lnocorner')
I('s_mov_b64 exec, -1')
A.label('Lnosp2')
for ri in range(2):
    for mh in range(2):
        for q,src in enumerate(((Pre,Pim)[ri],(Qre,Qim)[ri])):
            for p in range(2): I(f'v_cvt_pk_bf16_f32 v{YF+(ri*2+mh)*4+2*q+p}, v{src+mh*4+2*p}, v{src+mh*4+2*p+1}')
for ks in range(2):
    for nt in range(4):
        for ri in range(2):
            d=v(EF+(nt*2+ri)*4,4)
            I(f'{MF} {d}, {v(YF+(ri*2+ks)*4,4)}, {v(T2+(nt*2+ks)*4,4)}, {"0" if ks==0 else d}')
for nt in range(4):
    for ri in range(2):
        for p in range(2): I(f'v_cvt_pk_bf16_f32 v{TM+nt*4+ri*2+p}, v{EF+(nt*2+ri)*4+2*p}, v{EF+(nt*2+ri)*4+2*p+1}')
    I(f'ds_write_b128 v{vXW}, {v(TM+nt*4,4)} offset:{(nt&1)*16*272+(nt>>1)*16}')
stamp(20)
vconst(14,1)
I('s_waitcnt lgkmcnt(0)')
I('s_mov_b64 exec, 1'); I(f'ds_add_u32 v{vLF}, v14'); I('s_mov_b64 exec, -1')
ldspoll(vLF,14,2)
for i in range(4): I(f'ds_read_b128 {v(TM+16+4*i,4)}, v{vXR} offset:{4*272*i}')
for i in range(4):
    I(f's_waitcnt lgkmcnt({3-i})'); I(f's_mov_b32 s{t0}, {4*81920*i}')
    I(f'buffer_store_dwordx4 {v(TM+16+4*i,4)}, v{vRS}, {srd(sWS)}, s{t0} offen sc1')
I(f's_lshl_b32 s{t0}, s{sCh}, 3'); I(f's_add_u32 s{t0}, s{t0}, s{sGrp}')
I(f's_lshl_b32 s{t1}, s{sCh}, 4'); I(f's_lshr_b32 s{t2}, s{sT}, 1'); I(f's_add_u32 s{t1}, s{t1}, s{t2}'); I(f's_sub_u32 s{t1}, s{t1}, 128')
I(f's_cmp_eq_u32 s{sTyp}, 0'); I(f's_cselect_b32 s{t0}, s{t0}, s{t1}'); I(f's_cselect_b32 s{sAct}, 3, 1')
I(f's_lshl_b32 s{t0}, s{t0}, 7'); I(f's_add_u32 s{t0}, s{t0}, {WS_FL+FL_R*128}'); I(f'v_mov_b32 v15, s{t0}')
I('s_branch Lp3')
A.label('LepiQ')
vPW,vPR,vKR,vOS,vO5,vKW,vKP=4,5,100,104,106,108,112
smul(t0,sWr,L_PQ[1]-L_PQ[0]); I(f's_add_u32 s{t0}, s{t0}, {L_PQ[0]}')
I(f'v_mul_u32_u24 v{vPW}, {PQS}, v{vN}'); I(f'v_lshl_add_u32 v{vPW}, v{vG}, 3, v{vPW}'); I(f'v_add_u32 v{vPW}, s{t0}, v{vPW}')
for nt in range(5):
    for mt in range(4):
        b=ACC+(mt*5+nt)*4
        phi2(b,b,8); phi2(b+2,b+2,10)
        I(f'v_cvt_pk_bf16_f32 v{b}, v{b}, v{b+1}'); I(f'v_cvt_pk_bf16_f32 v{b+1}, v{b+2}, v{b+3}')
        I(f'ds_write_b64 v{vPW}, {v(b,2)} offset:{16*nt*PQS+32*mt}')
I(f'v_bfe_u32 v8, v{vL}, 2, 2'); I(f'v_lshl_add_u32 v8, v{vG}, 3, v8'); I(f'v_and_b32 v9, 3, v{vL}'); I(f'v_lshlrev_b32 v9, 3, v9'); I(f'v_add_u32 v9, s{t0}, v9')
for hh in range(2):
    I(f'v_add_u32 v10, {4*hh}, v8'); I(f'v_min_u32 v10, 19, v10'); I(f'v_mul_u32_u24 v10, {PQS}, v10'); I(f'v_add_u32 v{vPR+hh}, v10, v9')
smul(t1,sWr,2752); I(f's_add_u32 s{t1}, s{t1}, {L_KVI}')
for i in range(4): vconst(8+i,0)
I(f'v_lshlrev_b32 v12, 4, v{vL}'); I(f'v_add_u32 v12, s{t1}, v12')
I(f'ds_write_b128 v12, v[8:11]'); I(f'ds_write_b128 v12, v[8:11] offset:1024')
I(f's_mov_b32 exec_hi, 0xfff'); I(f'ds_write_b128 v12, v[8:11] offset:2048'); I('s_mov_b64 exec, -1')
for i in range(4):
    I(f'v_add_u32 v8, {64*i}, v{vL}'); I(f'v_mul_u32_u24 v9, 0xc31, v8'); I(f'v_lshrrev_b32 v9, 16, v9')
    I(f'v_mul_u32_u24 v10, 21, v9'); I(f'v_sub_u32 v10, v8, v10')
    I(f'v_cmp_lt_u32 vcc, 4, v9'); I(f'v_cndmask_b32 v11, 0, 1, vcc')
    I(f'v_mad_u32_u24 v10, v11, 21, v10'); I(f'v_mul_u32_u24 v11, 5, v11'); I(f'v_sub_u32 v9, v9, v11')
    I(f'v_lshlrev_b32 v10, 6, v10'); I(f'v_lshl_add_u32 v10, v9, 3, v10'); I(f'v_add_u32 v10, s{t1}, v10')
    if i==3:
        vconst(11,L_FLG+32); I(f'v_cmp_gt_u32 vcc, 18, v{vL}'); I(f'v_cndmask_b32 v10, v11, v10, vcc')
    I(f'v_mov_b32 v{vKW+i}, v10')
I(f'v_lshlrev_b32 v8, 4, v{vG}'); I(f'v_add_u32 v8, {L_KVI}, v8')
I(f'v_lshl_add_u32 v{vKR}, v{vN}, 6, v8'); I(f'v_add_u32 v{vKR+1}, {21*64}, v{vKR}')
I(f'v_and_b32 v9, 3, v{vN}'); I(f'v_lshrrev_b32 v10, 2, v{vN}')
for hb in range(2):
    I(f'v_and_b32 v11, 1, v10'); I(f'v_lshl_add_u32 v11, v11, 1, v9'); I(f'v_add_u32 v11, {21*hb+16}, v11')
    I(f'v_lshrrev_b32 v12, 1, v10'); I(f'v_cmp_eq_u32 vcc, {hb}, v12'); I(f'v_cmp_gt_u32 s[{t4}:{t5}], 2, v9'); I(f's_and_b64 vcc, vcc, s[{t4}:{t5}]')
    I(f'v_cndmask_b32 v11, 42, v11, vcc'); I(f'v_cmp_eq_u32 vcc, {2+hb}, v9'); I(f'v_cndmask_b32 v11, v11, {21*hb+20}, vcc')
    I(f'v_lshl_add_u32 v{vKR+2+hb}, v11, 6, v8')
I(f's_lshl_b32 s{t1}, s{sRb}, 1'); I(f's_add_u32 s{t1}, s{t1}, s{sWr}'); smul(t2,t1,81920); I(f's_add_u32 s{t2}, s{t2}, {WS_O}')
smul(t3,sGrp,10)
for hp in range(2):
    I(f'v_add_u32 v8, {5*hp}, v{vG}'); I(f'v_add_u32 v8, s{t3}, v8')
    I(f'v_lshrrev_b32 v9, 2, v8'); I(f'v_and_b32 v8, 3, v8'); I(f'v_lshlrev_b32 v9, 12, v9'); I(f'v_lshl_add_u32 v9, v8, 8, v9')
    I(f'v_lshl_add_u32 v9, v{vN}, 4, v9'); I(f'v_add_u32 v{vOS+hp}, s{t2}, v9')
    I(f's_add_u32 s{t4}, s{t3}, {5*hp+4}'); I(f's_lshr_b32 s{t5}, s{t4}, 2'); I(f's_lshl_b32 s{t5}, s{t5}, 12'); I(f's_and_b32 s{t4}, s{t4}, 3'); I(f's_lshl_b32 s{t4}, s{t4}, 8')
    I(f's_add_u32 s{t4}, s{t4}, s{t5}'); I(f's_add_u32 s{t4}, s{t4}, s{t2}')
    I(f'v_lshlrev_b32 v9, 10, v{vG}'); I(f'v_lshl_add_u32 v9, v{vN}, 4, v9'); I(f'v_add_u32 v{vO5+hp}, s{t4}, v9')
I(f's_lshl_b32 s{t1}, s{t1}, 3'); I(f's_add_u32 s{t1}, s{t1}, s{sGrp}'); I(f's_lshl_b32 s{t1}, s{t1}, 7'); I(f's_add_u32 s{t1}, s{t1}, {WS_FL+FL_O*128}'); I(f'v_mov_b32 v15, s{t1}')
I(f's_lshl_b32 s{t1}, s{sGrp}, 1'); I(f's_add_u32 s{t1}, s{t1}, s{sWr}'); I(f's_lshl_b32 s{t1}, s{t1}, 16'); I(f's_add_u32 s{t1}, s{t1}, {WS_KVP}')
I(f'v_lshlrev_b32 v8, 4, v{vL}'); I(f'v_add_u32 v{vKP}, s{t1}, v8'); vconst(9,OOB); I(f'v_cmp_gt_u32 vcc, 18, v{vL}'); I(f'v_cndmask_b32 v{vKP+1}, v9, v{vKP}, vcc')
I(f's_lshl_b32 s{t1}, s{sGrp}, 6'); I(f's_lshl_b32 s{t2}, s{sWr}, 5'); I(f's_add_u32 s{t1}, s{t1}, s{t2}')
I(f'v_and_b32 v8, 31, v{vL}'); I(f'v_add_u32 v8, s{t1}, v8'); I(f'v_lshlrev_b32 v8, 7, v8'); I(f'v_add_u32 v8, {WS_FL+FL_KV*128}, v8')
I(f'v_mov_b32 v14, {L_FLG+4}')
stamp(17)
poll([8],9)
stamp(18)
PB=120
def pl(p):
    I(f's_mov_b32 s{t0}, {4096*p}')
    for i in range(4): I(f'buffer_load_dwordx4 {v(PB+(p%8)*16+4*i,4)}, v{vKP+(i==3)}, {srd(sWS)}, s{t0} offen offset:{1024*i} sc1')
for p in range(8): pl(p)
SM=16
for p in range(16):
    I(f's_waitcnt vmcnt({28 if p==0 else 4*min(6,15-p)})')
    for i in range(8):
        if p==0: continue
        src=PB+2*i if p==1 else SM+2*i
        I(f'v_pk_add_f32 {v(SM+2*i,2)}, {v(src,2)}, {v(PB+(p%8)*16+2*i,2)}')
    if p>=1 and p+7<16: pl(p+7)
for i in range(4):
    I(f'v_cvt_pk_bf16_f32 v{SM+4*i}, v{SM+4*i}, v{SM+4*i+1}'); I(f'v_cvt_pk_bf16_f32 v{SM+4*i+1}, v{SM+4*i+2}, v{SM+4*i+3}')
    I(f'ds_write_b64 v{vKW+i}, {v(SM+4*i,2)}')
stamp(19)
vconst(9,1)
I('s_waitcnt lgkmcnt(0)')
I('s_mov_b64 exec, 1'); I(f'ds_add_u32 v14, v9'); I('s_mov_b64 exec, -1')
ldspoll(14,9,2)
KF=32; QF=64; OD=96-16;
for hp in range(2):
    for j in range(4): I(f'ds_read_b128 {v(KF+(hp*4+j)*4,4)}, v{vKR+j} offset:{2752*hp}')
OD=120; O5=160
def oreads(u):
    rt,hp=u>>1,u&1
    for hb in range(2):
        for hh in range(2): I(f'ds_read_b64_tr_b16 {v(QF+(u&1)*8+hb*4+2*hh,2)}, v{vPR+hh} offset:{(2*hp+hb)*20*PQS+32*rt}')
def omf(u):
    hp=u&1; q=QF+(u&1)*8; d=OD+(u&1)*12
    I(f'{MF} {v(d+8,4)}, {v(KF+(hp*4+2)*4,4)}, {v(q,4)}, 0')
    I(f'{MF} {v(d,4)}, {v(KF+(hp*4+0)*4,4)}, {v(q,4)}, 0')
    I(f'{MF} {v(d+8,4)}, {v(KF+(hp*4+3)*4,4)}, {v(q+4,4)}, {v(d+8,4)}')
    I(f'{MF} {v(d+4,4)}, {v(KF+(hp*4+1)*4,4)}, {v(q+4,4)}, 0')
def ofin(u):
    rt,hp=u>>1,u&1; d=OD+(u&1)*12; o=148+(u&1)*4
    I(f'v_pk_add_f32 {v(d+10,2)}, {v(d+10,2)}, s[{sAo}:{sAo+1}] op_sel:[0,1]')
    I(f'v_rcp_f32 v{d+10}, v{d+10}'); I(f'v_rcp_f32 v{d+11}, v{d+11}')
    for p in range(2): I(f'v_pk_mul_f32 {v(d+2*p,2)}, {v(d+2*p,2)}, {v(d+10,2)} op_sel_hi:[1,0]')
    for p in range(2): I(f'v_pk_mul_f32 {v(d+4+2*p,2)}, {v(d+4+2*p,2)}, {v(d+10,2)} op_sel:[0,1]')
    I(f'v_cndmask_b32 v{d+10}, v{d+11}, v{d+10}, s[{sEx}:{sEx+1}]')
    I(f'v_pk_mul_f32 {v(d+8,2)}, {v(d+8,2)}, {v(d+10,2)} op_sel_hi:[1,0]')
    for p in range(4): I(f'v_cvt_pk_bf16_f32 v{o+p}, v{d+2*p}, v{d+2*p+1}')
    I(f'v_cvt_pk_bf16_f32 v{O5+hp*4+rt}, v{d+8}, v{d+9}')
    I(f'buffer_store_dwordx4 {v(o,4)}, v{vOS+hp}, {srd(sWS)}, 0 offen offset:{1024*rt} sc1')
I(f's_mov_b32 s{sEx}, -1'); I(f's_mov_b32 s{sEx+1}, 0')
oreads(0)
for u in range(8):
    I('s_waitcnt lgkmcnt(0)')
    omf(u)
    if u<7: oreads(u+1)
    if u>0: ofin(u-1)
ofin(7)
for hp in range(2):
    b=O5+hp*4
    I(f'v_permlane32_swap_b32 v{b}, v{b+2}'); I(f'v_permlane32_swap_b32 v{b+1}, v{b+3}')
    I(f'v_permlane16_swap_b32 v{b}, v{b+1}'); I(f'v_permlane16_swap_b32 v{b+2}, v{b+3}')
    I(f'buffer_store_dwordx4 {v(b,4)}, v{vO5+hp}, {srd(sWS)}, 0 offen sc1')
I(f's_mov_b32 s{sAct}, 0x100')
A.label('Lp3')
stamp(21)
vA,vGg,vD2,vFa=4,5,6,8
I(f's_cmp_eq_u32 s{sWc}, 0'); I('s_cbranch_scc0 Lp3b')
I(f'v_lshlrev_b32 v{vA}, 4, v{vL}')
smul(t0,sCt,5120); smul(t1,sWr,409600); I(f's_add_u32 s{t0}, s{t0}, s{t1}'); I(f's_add_u32 s{t0}, s{t0}, {TB.TG_OFF}')
I(f'v_add_u32 v7, 0x1000, v{vA}')
for i in range(50):
    I(f'buffer_load_dwordx4 {a_(4*i,4)}, v{vA if i%5<4 else 7}, {srd(sTAB)}, s{t0} offen offset:{1024*((i%5)%4)}')
    if i%5==4: I(f's_add_u32 s{t0}, s{t0}, 40960')
I(f'v_lshrrev_b32 v{vA}, 2, v{vN}'); I(f'v_lshlrev_b32 v{vA}, 8, v{vA}'); I(f'v_lshl_add_u32 v{vA}, v{vG}, 6, v{vA}'); I(f'v_and_b32 v7, 3, v{vN}'); I(f'v_lshl_add_u32 v{vA}, v7, 4, v{vA}')
I(f's_mov_b32 s{sBo}, {WS_R}')
smul(t0,sWr,80); I(f's_cmp_eq_u32 s{sWr}, 0'); I(f's_movk_i32 s{t1}, 191'); I(f's_cselect_b32 s{t1}, 79, s{t1}')
for i in range(2):
    I(f'v_add_u32 v7, {64*i}, v{vL}'); I(f'v_add_u32 v7, s{t0}, v7'); I(f'v_min_u32 v7, s{t1}, v7'); I(f'v_lshlrev_b32 v7, 7, v7'); I(f'v_add_u32 v{vFa+i}, {WS_FL+FL_R*128}, v7')
I('s_branch Lp3c')
A.label('Lp3b')
for i in range(5):
    I(f'v_add_u32 v7, {64*i}, v{vL}'); div10(10,7); I(f'v_mul_u32_u24 v11, 10, v10'); I(f'v_sub_u32 v11, v7, v11')
    I(f'v_mul_u32_u24 v10, 1280, v10'); I(f'v_lshl_add_u32 v{16+i}, v11, 4, v10')
smul(t0,sCt,160); smul(t1,sWr,320*1280); I(f's_add_u32 s{t0}, s{t0}, s{t1}'); smul(t2,sWr,51200)
I(f's_mov_b32 s{t3}, 10')
A.label('Lwo')
for i in range(5):
    I(f's_add_u32 m0, s{t2}, {1024*i}'); I(f'buffer_load_dwordx4 v{16+i}, {srd(sWO)}, s{t0} offen lds')
I(f's_add_u32 s{t0}, s{t0}, {32*1280}'); I(f's_add_u32 s{t2}, s{t2}, 5120'); I(f's_sub_u32 s{t3}, s{t3}, 1'); I(f's_cmp_lg_u32 s{t3}, 0'); I('s_cbranch_scc1 Lwo')
I(f'v_lshlrev_b32 v{vA}, 4, v{vL}')
I(f's_mov_b32 s{sBo}, {WS_O}')
I(f's_lshl_b32 s{t0}, s{sN2}, 3'); I(f's_lshl_b32 s{t1}, s{sWr}, 2'); I(f's_add_u32 s{t0}, s{t0}, s{t1}')
I(f'v_and_b32 v7, 3, v{vL}'); I(f'v_add_u32 v7, s{t0}, v7'); I(f'v_lshlrev_b32 v7, 7, v7'); I(f'v_add_u32 v{vFa}, {WS_FL+FL_O*128}, v7'); I(f'v_mov_b32 v{vFa+1}, v{vFa}')
smul(t2,sWr,51200)
I(f'v_bfe_u32 v10, v{vL}, 2, 2'); I(f'v_and_b32 v11, 3, v{vL}'); I(f'v_lshlrev_b32 v11, 3, v11'); I(f'v_add_u32 v11, s{t2}, v11')
for k5 in range(5):
    I(f'v_add_u32 v7, {4*k5}, v{vG}'); I(f'v_mul_u32_u24 v12, 52, v7'); I(f'v_lshrrev_b32 v12, 8, v12')
    I(f'v_mul_u32_u24 v12, 20, v12'); I(f'v_lshl_add_u32 v12, v7, 2, v12'); I(f'v_add_u32 v12, v12, v10')
    I(f'v_mul_u32_u24 v12, 160, v12'); I(f'v_add_u32 v{24+k5}, v12, v11')
A.label('Lp3c')
I(f'v_lshlrev_b32 v7, 4, v{vL}'); I(f's_lshl_b32 s{t0}, s{sW}, 11'); I(f's_add_u32 s{t0}, s{t0}, {TB.D2_OFF}')
VD2=240
for kb in range(2): I(f'buffer_load_dwordx4 {v(VD2+4*kb,4)}, v7, {srd(sTAB)}, s{t0} offen offset:{1024*kb}')
stamp(22)
I('s_waitcnt vmcnt(52)')
stamp(23)
I(f's_cmp_eq_u32 s{sAct}, 0'); I('s_cbranch_scc1 Lnopub')
I(f's_cmp_eq_u32 s{sAct}, 0x100'); I('s_cbranch_scc1 Lpub')
vconst(10,L_FLG+8); vconst(11,1)
I('s_mov_b64 exec, 1'); I('ds_add_rtn_u32 v11, v10, v11'); I('s_mov_b64 exec, -1'); I('s_waitcnt lgkmcnt(0)')
I(f'v_readfirstlane_b32 s{t0}, v11'); I(f's_cmp_eq_u32 s{t0}, s{sAct}'); I('s_cbranch_scc0 Lnopub')
A.label('Lpub'); setflag(15,10)
A.label('Lnopub')
smul(t0,sN2,81920); smul(t1,sWr,40960); I(f's_add_u32 s{t0}, s{t0}, s{t1}'); I(f's_add_u32 s{sBo}, s{sBo}, s{t0}')
I(f's_cmp_eq_u32 s{sWc}, 0'); I('s_cbranch_scc1 Lp3d')
I('s_waitcnt vmcnt(0)')
cnt=0
for ks in range(10):
    for nt in range(5):
        for h in range(2):
            I(f'ds_read_b64_tr_b16 {a_((ks*5+nt)*4+2*h,2)}, v{24+ks%5} offset:{25600*(ks//5)+3200*h+32*nt}')
    I('s_waitcnt lgkmcnt(5)')
A.label('Lp3d')
stamp(24)
poll([vFa,vFa+1],10)
stamp(25)
C3=16; AV=96
def afr(i): return v(AV+4*i,4) if i<26 else a_(200+4*(i-26),4)
for ks in range(10):
    for mt in range(4): I(f'buffer_load_dwordx4 {afr(ks*4+mt)}, v{vA}, {srd(sWS)}, s{sBo} offen offset:{1024*mt} sc1')
    I(f's_add_u32 s{sBo}, s{sBo}, 4096')
I(f's_lshl_b32 s{t0}, s{sN2}, 8'); I(f's_lshl_b32 s{t1}, s{sW}, 6'); I(f's_add_u32 s{t0}, s{t0}, s{t1}'); I(f's_add_u32 s{t0}, s{t0}, {WS_G}')
I(f'v_lshlrev_b32 v7, 2, v{vN}')
I(f's_cmp_eq_u32 s{sWc}, 0'); I('s_cbranch_scc0 Lp3mb')
for ks in range(10):
    I(f's_waitcnt vmcnt({36-4*ks})')
    for nt in range(5):
        for mt in range(4):
            c=v(C3+(mt*5+nt)*4,4); I(f'{MF} {c}, {afr(ks*4+mt)}, {a_((ks*5+nt)*4,4)}, {"0" if ks==0 else c}')
stamp(26)
smul(t2,sWr,10240); I(f'v_lshlrev_b32 v10, 4, v{vL}'); I(f'v_add_u32 v10, s{t2}, v10')
I('s_barrier')
for nt in range(5):
    for kb in range(2):
        o=AV+(nt*2+kb)*4
        for q in range(2):
            for p in range(2):
                b=C3+((2*kb+q)*5+nt)*4+2*p; I(f'v_cvt_pk_bf16_f32 v{o+2*q+p}, v{b}, v{b+1}')
        I(f'ds_write_b128 v10, {v(o,4)} offset:{L_TA[0]+(nt*2+kb)*1024}')
I('s_branch Lp3t')
A.label('Lp3mb')
I('s_waitcnt lgkmcnt(0)')
for ks in range(10):
    I(f's_waitcnt vmcnt({36-4*ks})')
    for nt in range(5):
        for mt in range(4):
            c=v(C3+(mt*5+nt)*4,4); I(f'{MF} {c}, {a_((ks*5+nt)*4,4)}, {afr(ks*4+mt)}, {"0" if ks==0 else c}')
stamp(26)
smul(t2,sWr,20480); I(f'v_lshlrev_b32 v10, 4, v{vL}'); I(f'v_add_u32 v10, s{t2}, v10')
I('s_barrier')
for i in range(20): I(f'ds_write_b128 v10, {v(C3+4*i,4)} offset:{L_TB[0]+1024*i}')
A.label('Lp3t')
I('s_waitcnt lgkmcnt(0)'); I('s_barrier')
stamp(27)
I(f'buffer_load_dword v{vGg}, v7, {srd(sWS)}, s{t0} offen sc1')
I(f'v_lshlrev_b32 v10, 4, v{vL}'); smul(t2,sW,5120); I(f'v_add_u32 v11, s{t2}, v10')
TAF=96; TBF=176; OA=16
rd=[]
for nt in range(5):
    for u in range(4): rd.append(f'ds_read_b128 {v(TAF+(nt*4+u)*4,4)}, v10 offset:{(u>>1)*10240+(nt*2+(u&1))*1024}')
for i in range(8): I(rd[i])
for nt in range(5):
    if nt<3:
        for i in range(4): I(rd[8+4*nt+i])
        I('s_waitcnt lgkmcnt(8)')
    else: I(f's_waitcnt lgkmcnt({4*(4-nt)})')
    for u in range(4):
        c=v(OA+4*nt,4); I(f'{MF} {c}, {v(TAF+(nt*4+u)*4,4)}, {v(VD2+4*(u&1),4)}, {"0" if u==0 else c}')
for nt in range(5):
    for bh in range(2): I(f'ds_read_b128 {v(TBF+(nt*2+bh)*4,4)}, v11 offset:{L_TB[0]+bh*20480+nt*1024}')
for i in range(3):
    I(f'v_add_u32 v12, {64*i}, v{vL}'); div10(13,12); I(f'v_mul_u32_u24 v14, 10, v13'); I(f'v_sub_u32 v14, v12, v14')
    I(f'v_mul_u32_u24 v13, 40960, v13'); I(f'v_lshl_add_u32 v{40+i}, v14, 4, v13')
vconst(12,OOB); I(f'v_cmp_gt_u32 vcc, 32, v{vL}'); I(f'v_cndmask_b32 v42, v12, v42, vcc')
smul(t0,sW,16*40960); smul(t1,sN2,1280); I(f's_add_u32 s{t0}, s{t0}, s{t1}'); smul(t1,sCt,160); I(f's_add_u32 s{t0}, s{t0}, s{t1}')
smul(t2,sW,2560); I(f's_add_u32 s{t2}, s{t2}, {L_OUT}')
I(f'v_mul_u32_u24 v12, 160, v{vN}'); I(f'v_lshl_add_u32 v12, v{vG}, 3, v12'); I(f'v_add_u32 v12, s{t2}, v12'); I(f'v_add_u32 v13, s{t2}, v10')
I('s_waitcnt vmcnt(0)')
import struct
scale=struct.unpack('<I',struct.pack('<f',2.0/(2048*640)))[0]
I(f'v_sub_f32 v9, 1.0, v{vGg}'); I(f'v_cvt_pk_bf16_f32 v9, v9, v9'); I(f'v_and_b32 v9, 0xffff0000, v9'); I(f'v_mul_f32 v8, 0x{scale:x}, v{vGg}')
for nt in range(5):
    I(f's_waitcnt lgkmcnt({8-2*nt})')
    b0=TBF+nt*8; c=OA+4*nt
    for p in range(2):
        I(f'v_pk_add_f32 {v(b0+2*p,2)}, {v(b0+2*p,2)}, {v(b0+4+2*p,2)}')
        I(f'v_pk_mul_f32 {v(c+2*p,2)}, {v(c+2*p,2)}, v[8:9] op_sel_hi:[1,0]')
        I(f'v_pk_fma_f32 {v(c+2*p,2)}, {v(b0+2*p,2)}, v[8:9], {v(c+2*p,2)} op_sel:[0,1,0]')
    I(f'v_cvt_pk_bf16_f32 v{c}, v{c}, v{c+1}'); I(f'v_cvt_pk_bf16_f32 v{c+1}, v{c+2}, v{c+3}')
for nt in range(5): I(f'ds_write_b64 v12, {v(OA+4*nt,2)} offset:{32*nt}')
I('s_waitcnt lgkmcnt(0)')
for i in range(3): I(f'ds_read_b128 {v(48+4*i,4)}, v13 offset:{1024*i}')
for i in range(3):
    I(f's_waitcnt lgkmcnt({2-i})'); I(f'buffer_store_dwordx4 {v(48+4*i,4)}, v{40+i}, {srd(sOUT)}, s{t0} offen')
I(f's_or_b32 s{t0}, s2, s{sW}'); I(f's_cmp_eq_u32 s{t0}, 0'); I('s_cbranch_scc0 Lnoe')
vconst(15,WS_E); setflag(15,14)
A.label('Lnoe')
if TS:
    stamp(28)
    I(f's_lshl_b32 s{t0}, s2, 2'); I(f's_add_u32 s{t0}, s{t0}, s{sW}'); I(f's_lshl_b32 s{t0}, s{t0}, 8'); I(f's_add_u32 s{t0}, s{t0}, {WS_TS}')
    I(f'v_lshlrev_b32 v4, 2, v{vL}')
    I(f'buffer_store_dword v0, v4, {srd(sWS)}, s{t0} offen')
    if '--dbg' in sys.argv:
        wgsel=int(os.environ.get('DBGWG','0')); wsel=int(os.environ.get('DBGW','0'))
        I(f's_cmp_eq_u32 s2, {wgsel}'); I('s_cbranch_scc0 Lend'); I(f's_cmp_eq_u32 s{sW}, {wsel}'); I('s_cbranch_scc0 Lend')
        mksrd(sX,sK+16,256)
        I(f'v_readlane_b32 s{t0}, v0, 0'); I(f'v_readlane_b32 s{t1}, v0, 3'); I(f'v_readlane_b32 s{t2}, v0, 1'); I('s_nop 3')
        I(f'v_writelane_b32 v0, s{t1}, 13'); I(f'v_writelane_b32 v0, s{t2}, 17'); I(f'v_subrev_u32 v5, s{t0}, v0')
        I(f'v_subrev_u32 v4, 52, v4')
        I(f'buffer_store_dword v5, v4, {srd(sX)}, 0 offen')
A.label('Lend')
I('s_endpgm')
body_txt=A.finish()

hdr=open(os.path.join(os.path.dirname(os.path.abspath(__file__)),'..','cdna_kernels',NAME+'.s.ref')).read().split('; Override launch')[0]
out=hdr+f'; @launch grid=(256,1,1) block=(256,1,1) lds={LDS_SZ}\n'
out+=f'.amdgcn_target "amdgcn-amd-amdhsa--gfx950"\n.text\n.globl {K}\n.p2align 8\n.type {K},@function\n{K}:\n'
out+=body_txt
out+=f'''.section .rodata,"a"
.p2align 6
.amdhsa_kernel {K}
  .amdhsa_next_free_vgpr 512
  .amdhsa_next_free_sgpr 102
  .amdhsa_accum_offset 256
  .amdhsa_group_segment_fixed_size 0
  .amdhsa_kernarg_size 80
  .amdhsa_user_sgpr_count 2
  .amdhsa_user_sgpr_kernarg_segment_ptr 1
  .amdhsa_system_sgpr_workgroup_id_x 1
.end_amdhsa_kernel
'''
if DEV: out+='.p2align 8\n.type tab_base,@object\ntab_base:\n@@INCBIN@@\n'
else: out+=TB.emit()
o=[a for a in sys.argv[1:] if not a.startswith('--')]
open(o[0] if o else 'out.s','w').write(out)
print('instructions:',sum(1 for l in body_txt.split('\n') if l.startswith('    ')),'nops inserted:',A.nnops,file=sys.stderr)
```

```python
import sys, os, struct
from asm import Asm
import tables as TB

NAME='gated_mix__spectral_gfnet__linear_attn_block__prompt'
DEV = '--dev' in sys.argv
TS  = '--ts' in sys.argv
E=lambda k,d: int(os.environ.get(k,str(d)))
ROT=E('ROT',0); LDPOL=os.environ.get('LDPOL',''); HS=os.environ.get('HS','sc1')
CPF=E('CPF',1)
WS_Y=0; WS_R=2621440; WS_O=2*2621440; WS_KVP=3*2621440; WS_G=WS_KVP+1048576
WS_FL=WS_G+8192
FL_Y=0; FL_KV=256; FL_R=768; FL_O=960; NFL=1216
WS_E=WS_FL+NFL*128; WS_TS=WS_E+128; WS_SZ=WS_TS+256*4*256
OOB=0x7ff00000
SLOT=36880; SEG0=16384; SEG1=16384+10240+16
L_FLG=4*SLOT; LDS_SZ=L_FLG+64
L_WO=[0,51200]; L_PQ=[102400,113280]; PQS=136
L_XCH=[124160,124160+8704]; L_KVI=141568; L_RED=102400
L_TA=[0,10240]; L_TB=[20480,40960]; L_OUT=61440
sX,sSEG,sWS,sWR,sWI,sTAB,sWO,sOUT,sGATE=4,8,12,16,20,24,28,32,36
sW,sWr,sWc,sTyp,sRb,sGrp,sTag,sCnt=40,41,42,43,44,45,46,47
sAo,sBo,sBstep,sMA,sMB,sDl,sIs,sDm=48,49,50,51,52,53,54,55
sT,sCh,sN2,sCt,sAct,sTo=56,57,58,59,60,61
t0,t1,t2,t3,t4,t5=62,63,64,65,66,67
sK=68; sEx=88; sTS=90; sB0,sB1,sGo,sA2=94,95,96,98
def srd(n): return f's[{n}:{n+3}]'
def v(a,n=1): return f'v{a}' if n==1 else f'v[{a}:{a+n-1}]'
def a_(a,n=1): return f'a{a}' if n==1 else f'a[{a}:{a+n-1}]'
vL,vN,vG=1,2,3
A=Asm(); out=[A]
class Buf(list):
    def __call__(s,t): s.append(t)
def I(t): out[-1](t)
def cap(f,*a):
    b=Buf(); out.append(b); f(*a); out.pop(); return list(b)
def emit(L):
    for x in L:
        if isinstance(x,(list,tuple)): emit(x)
        else: I(x)
def weave(P,F,start=0,end=None):
    end=len(P) if end is None else end
    n=end-start; k=0
    for i,p in enumerate(P):
        emit([p])
        if start<=i<end:
            tgt=((i-start+1)*len(F))//n
            while k<tgt: emit([F[k]]); k+=1
    while k<len(F): emit([F[k]]); k+=1
def lab(n): I(n+':')
def stamp(i):
    if TS:
        I(f's_memrealtime s[{sTS}:{sTS+1}]'); I('s_waitcnt lgkmcnt(0)'); I(f'v_writelane_b32 v0, s{sTS}, {i}')
        if i in (3,14,25,26):
            I(f's_memtime s[{sTS}:{sTS+1}]'); I('s_waitcnt lgkmcnt(0)'); I(f'v_writelane_b32 v0, s{sTS}, {i+32}')
def smul(d,x,c): I(f's_mul_i32 s{d}, s{x}, {c}')
def sadd(d,x,c): I(f's_add_u32 s{d}, s{x}, {c if isinstance(c,int) else "s%d"%c[0]}')
def sacc(d,x): I(f's_add_u32 s{d}, s{d}, s{x}')
def vconst(r,c): I(f'v_mov_b32 v{r}, {c}')
def div10(dst,src): I(f'v_mul_u32_u24 v{dst}, 0x199a, v{src}'); I(f'v_lshrrev_b32 v{dst}, 16, v{dst}')
uid=[0]
def poll(voffs,tmp):
    uid[0]+=1; L=f'Lpoll{uid[0]}'
    I(f's_mov_b32 s{sTo}, 0x40000'); lab(L)
    for i,vo in enumerate(voffs): I(f'buffer_load_dword v{tmp+i}, v{vo}, {srd(sWS)}, 0 offen sc1')
    I('s_waitcnt vmcnt(0)')
    I(f'v_cmp_ne_u32 vcc, s{sTag}, v{tmp}')
    for i in range(1,len(voffs)):
        I(f'v_cmp_ne_u32 s[{t4}:{t5}], s{sTag}, v{tmp+i}'); I(f's_or_b64 vcc, vcc, s[{t4}:{t5}]')
    I(f's_cbranch_vccz {L}d'); I(f's_sub_u32 s{sTo}, s{sTo}, 1'); I(f's_cbranch_scc0 {L}'); lab(L+'d')
def ldssync(vaddr,tmp):
    I(f'v_mov_b32 v{tmp}, 1'); I('s_waitcnt lgkmcnt(0)')
    I('s_mov_b64 exec, 1'); I(f'ds_add_u32 v{vaddr}, v{tmp}'); I('s_mov_b64 exec, -1')
    uid[0]+=1; L=f'Llp{uid[0]}'
    I(f's_mov_b32 s{sTo}, 0x400000'); lab(L)
    I(f'ds_read_b32 v{tmp}, v{vaddr}'); I('s_waitcnt lgkmcnt(0)')
    I(f'v_cmp_gt_u32 vcc, 2, v{tmp}')
    I(f's_cbranch_vccz {L}d'); I(f's_sub_u32 s{sTo}, s{sTo}, 1'); I(f's_cbranch_scc0 {L}'); lab(L+'d')
def setflag(voff,tmp):
    I(f'v_mov_b32 v{tmp}, s{sTag}'); I('s_mov_b64 exec, 1')
    I(f'buffer_store_dword v{tmp}, v{voff}, {srd(sWS)}, 0 offen sc1'); I('s_mov_b64 exec, -1')
def mksrd(d,p,n):
    I(f's_mov_b32 s{d}, s{p}'); I(f's_mov_b32 s{d+1}, s{p+1}'); I(f's_mov_b32 s{d+2}, {n}'); I(f's_mov_b32 s{d+3}, 0x20000')
MF='v_mfma_f32_16x16x32_bf16'
K=f'{NAME}_kernel'
ACC=16
FX=dict(A=100,B=116); FY=dict(A=140,B=156)
vAo=180; vBo=184; vRA=189; vRB=191
vKA=200; vE0=208; vWp,vWm,vWm0=214,215,216; WP=220
lab('Lstart')
I(f's_cmp_ge_u32 s2, 256'); I('s_cbranch_scc1 Lend')
if TS: I(f's_memrealtime s[{sTS+2}:{sTS+3}]')
I(f's_load_dwordx16 s[{sK}:{sK+15}], s[0:1], 0')
I(f's_load_dwordx4 s[{sK+16}:{sK+19}], s[0:1], 64')
I(f'v_lshrrev_b32 v4, 6, v0'); I(f'v_and_b32 v{vL}, 63, v0')
I(f'v_readfirstlane_b32 s{sW}, v4')
I(f's_getpc_b64 s[{sGATE}:{sGATE+1}]')
lab('Lpc')
I(f's_add_u32 s{sTAB}, s{sGATE}, tab_base@rel32@lo+4'); I(f's_addc_u32 s{sTAB+1}, s{sGATE+1}, tab_base@rel32@hi+12')
I(f's_mov_b32 s{sGATE+2}, Lend-Lpc'); I(f's_mov_b32 s{sGATE+3}, 0x20000')
I(f'v_lshlrev_b32 v9, 4, v{vL}')
I(f's_lshr_b32 s{t0}, s2, 3'); I(f's_and_b32 s{t1}, s2, 7')
if CPF:
    I(f's_lshl_b32 s{t2}, s{t0}, 10'); I(f's_cmp_eq_u32 s{sW}, 3'); I(f's_cbranch_scc0 Lnocpf')
    I(f'buffer_load_dwordx4 v[252:255], v9, {srd(sGATE)}, s{t2} offen'); lab('Lnocpf')
I(f'v_and_b32 v{vN}, 15, v{vL}'); I(f'v_lshrrev_b32 v{vG}, 4, v{vL}')
I(f's_lshr_b32 s{sRb}, s{t1}, 2'); I(f's_lshl_b32 s{sRb}, s{sRb}, 3'); I(f's_lshr_b32 s{t2}, s{t0}, 2'); sacc(sRb,t2)
I(f's_and_b32 s{sWr}, s{sW}, 1'); I(f's_lshr_b32 s{sWc}, s{sW}, 1')
I(f'v_and_b32 v5, 7, v{vL}'); I(f'v_xor_b32 v5, v5, v{vG}'); I(f'v_lshrrev_b32 v4, 3, v{vL}'); I(f'v_mul_u32_u24 v4, 40960, v4')
I(f'v_lshl_add_u32 v{vAo}, v5, 4, v4'); I(f'v_xor_b32 v{vAo+1}, 64, v{vAo}')
I(f's_lshl_b32 s{t3}, s{sRb}, 1'); sacc(t3,sWc); smul(t3,t3,1280); smul(t2,sWr,32*40960); I(f's_add_u32 s{sA2}, s{t3}, s{t2}')
I(f's_bfe_u32 s{sTyp}, s{t0}, 0x10001')
I(f's_and_b32 s{sGrp}, s{t1}, 3'); I(f's_lshl_b32 s{sGrp}, s{sGrp}, 1'); I(f's_and_b32 s{t2}, s{t0}, 1'); sacc(sGrp,t2)
I(f's_lshl_b32 s{sN2}, s{t1}, 2'); I(f's_lshr_b32 s{t2}, s{t0}, 3'); sacc(sN2,t2); I(f's_and_b32 s{sCt}, s{t0}, 7')
if ROT:
    I(f's_lshr_b32 s{t2}, s{t0}, 2'); smul(t2,t2,5); I(f's_and_b32 s{t3}, s{t0}, 3'); smul(t3,t3,10)
    sacc(t2,t3); I(f's_lshr_b32 s{t2}, s{t2}, 2')
    I(f's_cmp_ge_u32 s{t2}, 10'); I(f's_cselect_b32 s{t3}, 10, 0'); I(f's_sub_u32 s{sIs}, s{t2}, s{t3}')
else: I(f's_mov_b32 s{sIs}, 0')
I(f's_lshl_b32 s{sMA}, s{sW}, 12')
I(f's_lshl_b32 s{sAo}, s{sIs}, 7'); sacc(sAo,sA2)
I(f's_mov_b32 s{sTAB+2}, {TB.TAB_SZ}'); I(f's_mov_b32 s{sTAB+3}, 0x20000')
I(f's_andn2_b32 s{t0}, s{sTyp}, s{sWc}')
I(f's_sub_u32 s{t1}, 1, s{sTyp}'); sadd(t2,sWc,1); I(f's_mul_i32 s{t1}, s{t1}, s{t2}'); smul(t1,t1,1280)
smul(t2,sGrp,160); sacc(t1,t2); smul(t2,sWr,32*3840); sacc(t1,t2)
smul(t2,sGrp,102400); smul(t3,sWr,5120); sacc(t2,t3)
smul(sMB,sWc,10256); sacc(sMB,t3); sadd(sMB,sMB,SEG0)
I(f's_cmp_eq_u32 s{t0}, 1')
I(f's_cselect_b32 s{t1}, s{t2}, s{t1}')
I(f's_mov_b32 s{sBstep}, {64*3840}'); I(f's_cselect_b32 s{sBstep}, 10240, s{sBstep}')
I(f's_cselect_b64 s[{t4}:{t5}], -1, 0')
I(f's_mul_i32 s{sBo}, s{sIs}, s{sBstep}')
I(f's_mov_b32 s{t2}, 3840')
def dmaA(i): return [f's_add_u32 m0, s{sMA}, {1024*i}', f's_add_u32 s{t3}, s{sAo}, {i*8*40960}', f'buffer_load_dwordx4 v{vAo+(i&1)}, {srd(sX)}, s{t3} offen {LDPOL} lds']
def dmaB(i): return [f's_add_u32 m0, s{sMB}, {1024*i}', 's_nop 0', f'buffer_load_dwordx4 v{vBo+i}, {srd(sSEG)}, s{sBo} offen {LDPOL} lds']
def dma_adv(d):
    return [f's_add_u32 s{sIs}, s{sIs}, 1', f's_cmp_eq_u32 s{sIs}, 10', f's_cselect_b32 s{sIs}, 0, s{sIs}',
            f's_lshl_b32 s{sAo}, s{sIs}, 7', f's_add_u32 s{sAo}, s{sAo}, s{sA2}', f's_mul_i32 s{sBo}, s{sIs}, s{sBstep}',
            f's_add_u32 s{sMA}, s{sMA}, {d}', f's_add_u32 s{sMB}, s{sMB}, {d}']
def boff(i):
    I(f'v_add_u32 v4, {64*i}, v{vL}'); div10(5,4)
    I(f'v_lshlrev_b32 v4, 4, v4'); I(f'v_mul_u32_u24 v6, 160, v5'); I(f'v_sub_u32 v6, v4, v6')
    I(f'v_and_b32 v7, 3, v5'); I(f'v_bfe_u32 v8, v5, 2, 2'); I(f'v_lshl_or_b32 v7, v8, 3, v7')
    I(f'v_lshrrev_b32 v8, 4, v5'); I(f'v_lshl_or_b32 v7, v8, 2, v7')
    I(f'v_mad_u32_u24 v7, v7, s{t2}, v6'); I(f'v_cndmask_b32 v7, v7, v4, s[{t4}:{t5}]'); I(f'v_add_u32 v{vBo+i}, s{t1}, v7')
boff(0)
I('s_waitcnt lgkmcnt(0)')
mksrd(sX,sK+0,2621440)
I(f's_cmp_eq_u32 s{t0}, 1')
I(f's_cselect_b32 s{sSEG}, s{sTAB}, s{sK+8}'); I(f's_cselect_b32 s{sSEG+1}, s{sTAB+1}, s{sK+9}')
I(f's_mov_b32 s{sSEG+2}, 2457600'); I(f's_cselect_b32 s{sSEG+2}, {TB.TF_SZ}, s{sSEG+2}'); I(f's_mov_b32 s{sSEG+3}, 0x20000')
for i in range(4): emit(dmaA(i)); boff(i+1)
if TS: I(f'v_writelane_b32 v0, s{sTS+2}, 0')
def setup1():
    mksrd(sWS,sK+18,WS_SZ)
    I([f's_add_u32 s{t0}, s{sK+18}, {WS_E}', f's_addc_u32 s{t1}, s{sK+19}, 0', f's_load_dword s{sTag}, s[{t0}:{t1}], 0'])
    mksrd(sWR,sK+2,1314816); mksrd(sWI,sK+4,1314816); mksrd(sWO,sK+10,819200); mksrd(sOUT,sK+14,2621440); mksrd(sGATE,sK+12,1280)
    vconst(5,0); I(f'v_lshlrev_b32 v4, 2, v{vN}'); I(f'v_add_u32 v4, {L_FLG}, v4'); I(f'ds_write_b32 v4, v5')
    I(f'v_lshrrev_b32 v4, 1, v{vN}'); I(f'v_xor_b32 v4, v4, v{vG}'); I(f'v_lshlrev_b32 v4, 4, v4')
    I(f'v_lshl_add_u32 v4, v{vN}, 7, v4'); I(f's_lshl_b32 s{t0}, s{sWr}, 13'); I(f'v_add_u32 v{vRA}, s{t0}, v4'); I(f'v_xor_b32 v{vRA+1}, 64, v{vRA}')
    I(f'v_lshrrev_b32 v4, 2, v{vL}'); I(f'v_mul_u32_u24 v4, 160, v4'); I(f'v_and_b32 v5, 3, v{vL}'); I(f'v_lshlrev_b32 v5, 3, v5'); I(f'v_add_u32 v4, v4, v5')
    smul(t0,sWc,80); smul(t1,sWc,10256)
    I([f's_cmp_eq_u32 s{sTyp}, 0', f's_cselect_b32 s{t0}, s{t0}, s{t1}', f's_cselect_b32 s{t1}, {SEG1-SEG0-80}, 0']); sadd(t0,t0,SEG0)
    I(f'v_add_u32 v{vRB}, s{t0}, v4'); I(f'v_add_u32 v{vRB+1}, 32, v{vRB}')
    I(f'v_mov_b32 v6, s{t1}'); I(f'v_cmp_lt_u32 vcc, 8, v5'); I(f'v_cndmask_b32 v6, 0, v6, vcc'); I(f'v_add3_u32 v{vRB+2}, v{vRB}, v6, 64')
    I(f'v_add_u32 v4, s{t1}, v{vRB}'); I(f'v_add_u32 v{vRB+3}, 96, v4'); I(f'v_add_u32 v{vRB+4}, 0x80, v4')
    for i in range(80): vconst(ACC+i,0)
    I(f's_lshr_b32 s{t0}, s{sRb}, 1'); I(f's_lshl_b32 s{t0}, s{t0}, 3'); sacc(t0,sGrp)
    I(f's_lshr_b32 s{t1}, s{t0}, 4'); sadd(t1,t1,16)
    I(f's_and_b32 s{t2}, s{t0}, 15'); I(f's_lshl_b32 s{t2}, s{t2}, 1'); sacc(t2,sWr)
    I(f's_lshl_b32 s{t0}, s{sGrp}, 2'); sacc(t0,sW)
    I([f's_cmp_eq_u32 s{sTyp}, 0', f's_cselect_b32 s{sT}, s{t0}, s{t2}', f's_cselect_b32 s{sCh}, s{sRb}, s{t1}'])
    I(f's_or_b32 s{t0}, s{sRb}, s{sWc}'); I(f's_and_b32 s{t0}, s{t0}, s{sTyp}'); I(f's_xor_b32 s{sAct}, s{t0}, 1')
    for i in range(32): vconst(WP+i,0)
    I(f's_lshl_b32 s{t0}, s{sCh}, 5'); I([f's_cmp_eq_u32 s{sAct}, 1', f's_cselect_b32 s{t0}, s{t0}, {OOB}'])
    I(f's_mov_b32 s{t1}, {256*642}'); I(f'v_lshlrev_b32 v10, 1, v{vN}'); I(f'v_add_u32 v10, s{t0}, v10')
    I(f'v_mad_u32_u24 v{vWp}, v{vG}, s{t1}, v10'); I(f'v_sub_u32 v11, 3, v{vG}'); I(f'v_mad_u32_u24 v{vWm}, v11, s{t1}, v10')
    I(f's_movk_i32 s{t2}, 1024')
    I([f's_cmp_eq_u32 s{sT}, 0', f's_cselect_b32 s{t0}, {1024*642}, 0', f's_cselect_b32 s{t2}, 32, s{t2}'])
    I(f'v_mov_b32 v11, s{t0}'); I(f'v_cmp_eq_u32 vcc, 0, v{vG}'); I(f'v_cndmask_b32 v11, 0, v11, vcc'); I(f'v_sub_u32 v11, {256*642}, v11'); I(f'v_add_u32 v{vWm0}, v{vWm}, v11')
    sacc(t2,sT); smul(sB0,sT,642); smul(sB1,t2,642)
    I(f's_mov_b32 s{sB0+8}, s{t2}') if False else None
    for i in range(5): vconst(vE0+i,OOB)
    smul(t0,sCt,5120); smul(t1,sWr,409600); sacc(t0,t1); sadd(sGo,t0,TB.TG_OFF)
    I(f'v_lshlrev_b32 v218, 4, v{vL}'); I(f'v_add_u32 v219, 0x1000, v218')
S1=cap(setup1)
D=[dmaB(i) for i in range(5)]+[dma_adv(SLOT)]
for st in (1,2): D+=[dmaA(i) for i in range(4)]+[dmaB(i) for i in range(5)]+[dma_adv(SLOT)]
weave(D,S1)
stamp(1)
I(f's_cmp_eq_u32 s{sTyp}, 0'); I('s_cbranch_scc0 LsetFQ')
I(f's_mov_b32 s{t0}, {TB.KA_OFF}')
for i in range(2): I(f'buffer_load_dwordx4 {v(vKA+4*i,4)}, v218, {srd(sTAB)}, s{t0} offen offset:{1024*i}')
I(f's_lshl_b32 s{t0}, s{sWc}, 13'); I(f's_lshl_b32 s{t1}, s{sWr}, 11'); sacc(t0,t1); sadd(t0,t0,L_RED)
I(f'v_add_u32 v{vE0}, s{t0}, v218')
I(f's_lshl_b32 s{t0}, s{sGrp}, 1'); sacc(t0,sWc); I(f's_lshl_b32 s{t0}, s{t0}, 4'); sacc(t0,sRb)
I(f's_lshl_b32 s{t0}, s{t0}, 12'); sacc(t0,t1); sadd(t0,t0,WS_KVP)
I(f'v_add_u32 v{vE0+1}, s{t0}, v218')
I(f's_cmp_eq_u32 s{sWr}, 0'); I(f's_cselect_b32 s{t1}, 64, 18'); I(f'v_cmp_gt_u32 vcc, s{t1}, v{vL}')
I(f'v_cndmask_b32 v{vE0+2}, v{vE0+2}, v{vE0+1}, vcc')
I(f's_lshl_b32 s{t0}, s{sGrp}, 2'); sacc(t0,sW); I(f's_lshl_b32 s{t0}, s{t0}, 4'); sacc(t0,sRb)
I(f's_lshl_b32 s{t0}, s{t0}, 7'); sadd(t0,t0,WS_FL+FL_KV*128); I(f'v_mov_b32 v{vE0+4}, s{t0}')
I('s_branch Lsetdone')
lab('LsetFQ')
I(f's_cmp_eq_u32 s{sWc}, 0'); I('s_cbranch_scc0 Lsetdone')
for i in range(8):
    if i%4==0: I(f's_mov_b32 s{t0}, {TB.D1_OFF+1024*i}')
    I(f'buffer_load_dwordx4 {a_(224+4*i,4)}, v218, {srd(sTAB)}, s{t0} offen offset:{1024*(i%4)}')
I(f's_lshl_b32 s{t0}, s{sRb}, 1'); sacc(t0,sWr); smul(t0,t0,5120); smul(t1,sGrp,640); sacc(t0,t1)
I(f's_mov_b32 s{t1}, 163840'); I(f'v_lshlrev_b32 v4, 3, v{vN}'); I(f'v_mad_u32_u24 v4, v{vG}, s{t1}, v4'); I(f'v_add_u32 v{vE0}, s{t0}, v4')
I(f's_lshl_b32 s{t0}, s{sGrp}, 1'); sacc(t0,sWr); I(f's_lshl_b32 s{t0}, s{t0}, 4'); sacc(t0,sRb)
I(f's_lshl_b32 s{t0}, s{t0}, 7'); sadd(t0,t0,WS_FL+FL_Y*128); I(f'v_mov_b32 v{vE0+4}, s{t0}')
lab('Lsetdone')
def reads(F,ks):
    L=[]
    for mt in range(4): L.append(f'ds_read_b128 {v(F["A"]+4*mt,4)}, v{vRA+ks} offset:{2048*mt}')
    for nt in range(5):
        for h in range(2): L.append(f'ds_read_b64_tr_b16 {v(F["B"]+4*nt+2*h,2)}, v{vRB+nt} offset:{(32*ks+16*h)*160}')
    return L
def mfmas(F):
    L=[]
    for nt in range(5):
        for mt in range(4):
            c=v(ACC+(mt*5+nt)*4,4); L.append(f'{MF} {c}, {v(F["A"]+4*mt,4)}, {v(F["B"]+4*nt,4)}, {c}')
    return L
def block(M,R,X,pos):
    slots=[[] for _ in M]
    for g,x in R: slots[g].append(x)
    for g,x in zip(pos,X): slots[g].append(x)
    for m,s_ in zip(M,slots): I(m); emit(s_)
def adds(d): return [f'v_add_u32 v{r}, {d}, v{r}' for r in [vRA,vRB,vRB+1,vRB+2,vRB+3,vRB+4,vRA+1]]
I(f's_mov_b32 s{sCnt}, 0')
stamp(2)
I('s_waitcnt vmcnt(18) lgkmcnt(0)'); I('s_barrier')
I(f's_add_u32 s{sTag}, s{sTag}, 0x9e3779b9')
stamp(3)
emit(reads(FX,0))
def itertop(i=None):
    if TS:
        if i is None: I(f's_add_u32 m0, s{sCnt}, 4'); stamp('m0')
        else: stamp(4+i)
    I('s_waitcnt lgkmcnt(0)')
lab('Lmain')
itertop()
pre=[f's_add_u32 s{sCnt}, s{sCnt}, 1', f's_mov_b32 s{sDl}, {SLOT}', f's_mov_b32 s{sDm}, {SLOT}',
     f's_and_b32 s{t0}, s{sCnt}, 3', f's_cselect_b32 s{sDl}, s{sDl}, {-3*SLOT}', f's_cmp_eq_u32 s{t0}, 1', f's_cselect_b32 s{sDm}, {-3*SLOT}, s{sDm}']
block(mfmas(FX),list(enumerate(reads(FY,1))),[dmaA(i) for i in range(4)]+[pre],[1,6,11,16,18])
I('s_waitcnt vmcnt(13) lgkmcnt(0)'); I('s_barrier')
ad=adds(f's{sDl}')
R2=[(0,ad[0]),(0,ad[1]),(1,ad[2]),(1,ad[3]),(2,ad[4]),(2,ad[5]),(3,ad[6])]+[(i+2,r) for i,r in enumerate(reads(FX,0))]
block(mfmas(FY),R2,[dmaB(i) for i in range(5)]+[dma_adv(f's{sDm}')],[1,5,9,13,17,18])
I(f's_cmp_lt_u32 s{sCnt}, 7'); I('s_cbranch_scc1 Lmain')
def wload(base,vp,vm,vm0,i,which):
    mh,r=i>>2,i&3; sb=(sB0,sB1)[mh]
    if which==0:
        return [f's_add_u32 s{t0}, s{sb}, {64*r*642}', f'buffer_load_short_d16_hi v{base+i}, v{vp}, {srd(sWR)}, s{t0} offen', f'buffer_load_short_d16_hi v{base+8+i}, v{vp}, {srd(sWI)}, s{t0} offen']
    m=vm0 if i==0 else vm
    return [f's_sub_u32 s{t0}, {(1280-64*r-(256 if i==0 else 0))*642}, s{sb}', f'buffer_load_short_d16_hi v{base+16+i}, v{m}, {srd(sWR)}, s{t0} offen', f'buffer_load_short_d16_hi v{base+24+i}, v{m}, {srd(sWI)}, s{t0} offen']
WL=[wload(WP,vWp,vWm,vWm0,i,w) for i in range(8) for w in range(2)]
wl=0
for s_ in (7,8,9):
    itertop(s_)
    n1=3 if s_<9 else 2
    block(mfmas(FX),list(enumerate(reads(FY,1))),WL[wl:wl+n1],[3,9,15]); wl+=n1
    if s_==7: I(f's_waitcnt vmcnt({9+2*wl}) lgkmcnt(0)')
    elif s_==8: I(f's_waitcnt vmcnt({2*wl}) lgkmcnt(0)')
    else: I('s_waitcnt lgkmcnt(0)')
    I('s_barrier')
    if s_<9:
        ad=adds(SLOT if s_==8 else -3*SLOT)
        R2=[(0,ad[0]),(0,ad[1]),(1,ad[2]),(1,ad[3]),(2,ad[4]),(2,ad[5]),(3,ad[6])]+[(i+2,r) for i,r in enumerate(reads(FX,0))]
    else: R2=[]
    n2_=3 if s_<9 else 2
    block(mfmas(FY),R2,WL[wl:wl+n2_],[3,9,15]); wl+=n2_
assert wl==16
I(f's_mov_b32 s{sAo}, 0x3fb8aa3b'); I(f's_mov_b32 s{sAo+1}, 0x358637bd'); I('s_nop 5')
stamp(14)
def acc(mt,nt,r=0,n=1): return v(ACC+(mt*5+nt)*4+r,n)
def phi2(dst,src,tmp):
    I(f'v_pk_mul_f32 {v(tmp,2)}, {v(src,2)}, s[{sAo}:{sAo+1}] op_sel_hi:[1,0]')
    I(f'v_exp_f32 v{tmp}, v{tmp} clamp'); I(f'v_exp_f32 v{tmp+1}, v{tmp+1} clamp')
    I(f'v_max_f32 v{dst}, 0, v{src}'); I(f'v_max_f32 v{dst+1}, 0, v{src+1}')
    I(f'v_pk_add_f32 {v(tmp,2)}, {v(tmp,2)}, s[{sAo}:{sAo+1}] op_sel:[0,1]')
    I(f'v_pk_add_f32 {v(dst,2)}, {v(dst,2)}, {v(tmp,2)}')
def gload(ks):
    L=[f'buffer_load_dwordx4 {a_((ks*5+nt)*4,4)}, v{218 if nt<4 else 219}, {srd(sTAB)}, s{sGo} offen offset:{1024*(nt%4)}' for nt in range(5)]
    return L+[f's_add_u32 s{sGo}, s{sGo}, 40960']
def gload_if_a(ks):
    uid[0]+=1; L=f'Lg{uid[0]}'
    return [f's_cmp_eq_u32 s{sWc}, 0', f's_cbranch_scc0 {L}']+gload(ks)+[L+':']
I(f's_cmp_eq_u32 s{sTyp}, 0'); I('s_cbranch_scc0 LepiFQ')
PK=100; VV=124; DD=148; PAIRS=TB.PAIRS
NG1=7
def kvepi():
    for nt in (2,3,4):
        for mt in range(4):
            for p in range(2): I(f'v_cvt_pk_bf16_f32 v{VV+(nt-2)*8+mt*2+p}, {acc(mt,nt,2*p)}, {acc(mt,nt,2*p+1)}')
    I(f'v_cmp_gt_u32 vcc, 8, v{vN}'); vconst(4,0x3f803f80)
    I(f's_lshl_b32 s{t0}, s{sW}, 12'); sadd(t0,t0,L_RED)
    for i in range(8): I(f'v_cndmask_b32 v{VV+i}, v{VV+i}, v4, vcc')
    for i in range(8): I(f'v_add_u32 v{vKA+i}, s{t0}, v{vKA+i}')
    for nt in range(3):
        for mt in range(4):
            for p in range(2):
                b=ACC+(mt*5+nt)*4+2*p
                phi2(b,b,4+2*p); I(f'v_cvt_pk_bf16_f32 v{PK+nt*8+mt*2+p}, v{b}, v{b+1}')
        for kb in range(2):
            for i,(a,b) in enumerate(PAIRS):
                if a==nt: I(f'{MF} {v(DD+4*i,4)}, {v(PK+a*8+4*kb,4)}, {v(VV+(b-2)*8+4*kb,4)}, {"0" if kb==0 else v(DD+4*i,4)}')
        if nt>0:
            for i,(a,b) in enumerate(PAIRS):
                if a==nt-1: I(f'ds_write_b128 v{vKA+i}, {v(DD+4*i,4)}')
P=cap(kvepi)
weave(P,[gload_if_a(k) for k in range(NG1)],0,len(P)-40)
for i,(a,b) in enumerate(PAIRS):
    if a==2: I(f'ds_write_b128 v{vKA+i}, {v(DD+4*i,4)}')
I('s_waitcnt lgkmcnt(0)'); I('s_barrier')
for i in range(2):
    I(f'ds_read_b128 {v(16+8*i,4)}, v{vE0} offset:{1024*i}'); I(f'ds_read_b128 {v(20+8*i,4)}, v{vE0} offset:{1024*i+4096}')
for i in range(2):
    I(f's_waitcnt lgkmcnt({2-2*i})')
    for p in range(2): I(f'v_pk_add_f32 {v(16+8*i+2*p,2)}, {v(16+8*i+2*p,2)}, {v(20+8*i+2*p,2)}')
    I(f'buffer_store_dwordx4 {v(16+8*i,4)}, v{vE0+1+i}, {srd(sWS)}, 0 offen offset:{1024*i} sc1')
I('s_nop 1')
I('s_branch Lp2a')
lab('LepiFQ')
I(f's_cmp_eq_u32 s{sWc}, 0'); I('s_cbranch_scc0 LepiQ')
XB=100; YD=140
def xcv(nt):
    for mt in range(4):
        for p in range(2): I(f'v_cvt_pk_bf16_f32 v{XB+nt*8+mt*2+p}, {acc(mt,nt,2*p)}, {acc(mt,nt,2*p+1)}')
def ymf(nt):
    for kb in range(2):
        for jt in range(4):
            d=v(YD+(nt&1)*16+4*jt,4)
            I(f'{MF} {d}, {a_(224+(jt*2+kb)*4,4)}, {v(XB+nt*8+4*kb,4)}, {"0" if kb==0 else d}')
def yst(nt):
    for jt in range(4):
        b=YD+(nt&1)*16+4*jt; o=172+jt*2
        I([f'v_cvt_pk_bf16_f32 v{o}, v{b}, v{b+1}', f'v_cvt_pk_bf16_f32 v{o+1}, v{b+2}, v{b+3}',
           f'buffer_store_dwordx2 {v(o,2)}, v{vE0}, {srd(sWS)}, s{t0+jt} offen offset:{128*nt} sc1'])
for jt in range(4): I(f's_mov_b32 s{t0+jt}, {4*jt*163840}')
xcv(0)
weave(cap(ymf,0),cap(xcv,1))
for nt in range(5):
    F_=(cap(xcv,nt+2) if nt<3 else [])
    if nt<4: weave(cap(ymf,nt+1),F_+cap(yst,nt)) if False else None
    if nt<4:
        M=cap(ymf,nt+1); weave(M,[F_[i:i+2] for i in range(0,len(F_),2)],0,4) if F_ else emit(M)
    yst(nt)
for k in range(NG1-1): emit(gload(k))
I(f's_cmp_eq_u32 s{sAct}, 0'); I('s_cbranch_scc0 Lp2aF')
I(f's_waitcnt vmcnt({5*(NG1-1)})'); setflag(vE0+4,4)
for k in range(NG1-1,10): emit(gload(k))
I('s_branch Lp3')
T1,T2,W3,YF,EF,TM,PQ=16,48,112,144,160,80,184
vY,vF,vXW,vXR,vRS,vLF=8,9,10,11,12,13
def tgen():
    I(f'v_lshlrev_b32 v4, 6, v{vN}'); I(f'v_add_u32 v4, s{sT}, v4'); I(f'v_cvt_f32_u32 v4, v4'); I(f'v_mul_f32 v4, 0x3a000000, v4'); I(f'v_add_f32 v5, 0.5, v4')
    I(f'v_lshlrev_b32 v6, 2, v{vG}'); I(f'v_cvt_f32_u32 v6, v6')
    for ks in range(2):
        for j in range(4):
            if 16*ks+j: I(f'v_add_f32 v7, {float(16*ks+j) if 16*ks+j in (1,2,4) else hex(struct.unpack("<I",struct.pack("<f",float(16*ks+j)))[0])}, v6')
            n2r=7 if 16*ks+j else 6
            for mh in range(2):
                c,s_=TM+4*mh,TM+4*mh+1
                I(f'v_mul_f32 v{s_}, v{4+mh}, v{n2r}'); I(f'v_cos_f32 v{c}, v{s_}'); I(f'v_sin_f32 v{s_}, v{s_}')
            for mh in range(2):
                c,s_=TM+4*mh,TM+4*mh+1
                I(f'v_cvt_pk_bf16_f32 v{T1+(mh*2+ks)*4+j}, v{c}, -v{s_}'); I(f'v_cvt_pk_bf16_f32 v{T1+((2+mh)*2+ks)*4+j}, v{s_}, v{c}')
    I(f'v_lshlrev_b32 v4, 8, v{vG}'); I(f'v_add_u32 v4, s{sT}, v4'); I(f'v_cvt_f32_u32 v4, v4'); I(f'v_mul_f32 v4, 0x3a000000, v4')
    I(f'v_cvt_f32_u32 v6, v{vN}'); I(f'v_add_f32 v7, 0x41800000, v6')
    for ks in range(2):
        for e in range(4):
            cst=0.5*ks+e/32.0
            if cst: I(f'v_add_f32 v5, {hex(struct.unpack("<I",struct.pack("<f",cst))[0])}, v4')
            kr=5 if cst else 4
            for h in range(2):
                c,s_=TM+h*8+e,TM+h*8+4+e
                I(f'v_mul_f32 v{s_}, v{kr}, v{6+h}'); I(f'v_cos_f32 v{c}, v{s_}'); I(f'v_sin_f32 v{s_}, v{s_}')
        for h in range(2):
            c,s_=TM+h*8,TM+h*8+4; u0=T2+(h*2+ks)*4; u1=T2+((2+h)*2+ks)*4
            for p in range(2):
                I(f'v_cvt_pk_bf16_f32 v{u0+p}, v{c+2*p}, v{c+2*p+1}'); I(f'v_cvt_pk_bf16_f32 v{u0+2+p}, v{s_+2*p}, v{s_+2*p+1}')
                I(f'v_cvt_pk_bf16_f32 v{u1+p}, -v{s_+2*p}, -v{s_+2*p+1}'); I(f'v_mov_b32 v{u1+2+p}, v{u0+p}')
def p2addr():
    smul(t0,sCh,32*0x334); sadd(t1,t0,31*0x334); I(f's_lshr_b32 s{t0}, s{t0}, 16'); I(f's_lshr_b32 s{t1}, s{t1}, 16')
    I(f'v_mov_b32 v4, s{t0}'); I(f'v_mov_b32 v5, s{t1}'); I(f'v_cmp_gt_u32 vcc, 32, v{vL}'); I(f'v_cndmask_b32 v4, v5, v4, vcc')
    I(f'v_and_b32 v5, 31, v{vL}'); I(f'v_lshl_add_u32 v4, v4, 5, v5'); I(f'v_lshlrev_b32 v4, 7, v4'); I(f'v_add_u32 v{vF}, {WS_FL+FL_Y*128}, v4')
    I(f's_lshr_b32 s{t0}, s{sT}, 1'); smul(t0,t0,163840); I(f's_lshl_b32 s{t1}, s{sCh}, 8'); sacc(t0,t1); I(f's_lshl_b32 s{t1}, s{sWr}, 2'); sacc(t0,t1)
    I(f'v_mul_u32_u24 v4, 20480, v{vG}'); I(f'v_lshl_add_u32 v4, v{vN}, 3, v4'); I(f'v_add_u32 v{vY}, s{t0}, v4')
    smul(t0,sWc,8704); sadd(t0,t0,L_XCH[0])
    I(f's_lshl_b32 s{t1}, s{sWr}, 5'); sacc(t1,t0)
    I(f'v_mul_u32_u24 v{vXW}, 272, v{vN}'); I(f'v_lshl_add_u32 v{vXW}, v{vG}, 6, v{vXW}'); I(f'v_add_u32 v{vXW}, s{t1}, v{vXW}')
    smul(t1,sWr,16*272); sacc(t1,t0)
    I(f'v_mul_u32_u24 v{vXR}, 272, v{vG}'); I(f'v_lshl_add_u32 v{vXR}, v{vN}, 4, v{vXR}'); I(f'v_add_u32 v{vXR}, s{t1}, v{vXR}')
    smul(t0,sWr,16*81920); I(f's_lshl_b32 s{t1}, s{sCh}, 12'); sacc(t0,t1)
    I(f's_lshr_b32 s{t1}, s{sT}, 1'); I(f's_lshl_b32 s{t1}, s{t1}, 8'); sacc(t0,t1); sadd(t0,t0,WS_R)
    I(f's_mov_b32 s{t1}, 81920'); I(f'v_lshlrev_b32 v{vRS}, 4, v{vN}'); I(f'v_mad_u32_u24 v{vRS}, v{vG}, s{t1}, v{vRS}'); I(f'v_add_u32 v{vRS}, s{t0}, v{vRS}')
    I(f's_lshl_b32 s{t0}, s{sWc}, 2'); sadd(t0,t0,L_FLG); I(f'v_mov_b32 v{vLF}, s{t0}')
    I(f's_lshl_b32 s{t0}, s{sCh}, 3'); sacc(t0,sGrp)
    I(f's_lshl_b32 s{t1}, s{sCh}, 4'); I(f's_lshr_b32 s{t2}, s{sT}, 1'); sacc(t1,t2); I(f's_sub_u32 s{t1}, s{t1}, 128')
    I(f's_cmp_eq_u32 s{sTyp}, 0'); I(f's_cselect_b32 s{t0}, s{t0}, s{t1}'); I(f's_cselect_b32 s{sAct}, 3, 1')
    I(f's_lshl_b32 s{t0}, s{t0}, 7'); sadd(t0,t0,WS_FL+FL_R*128); I(f'v_mov_b32 v15, s{t0}')
lab('Lp2aF')
I(f's_waitcnt vmcnt({5*(NG1-1)})'); setflag(vE0+4,4); emit(gload(NG1-1))
stamp(16)
tgen()
I('s_branch Lp2b')
lab('Lp2a')
stamp(15)
tgen()
I('s_waitcnt vmcnt(0)'); setflag(vE0+4,4)
stamp(16)
lab('Lp2b')
for k in range(NG1,10): emit(gload_if_a(k))
p2addr()
I(f's_cmp_eq_u32 s{sT}, 0'); I('s_cbranch_scc0 Lnot0a')
for tb,off in ((T1,TB.T1_OFF),(T2,TB.T2_OFF)):
    for i in range(8):
        if i%4==0: I(f's_mov_b32 s{t0}, {off+1024*i}')
        I(f'buffer_load_dwordx4 {v(tb+4*i,4)}, v218, {srd(sTAB)}, s{t0} offen offset:{1024*(i%4)}')
lab('Lnot0a')
I(f's_cmp_eq_u32 s{sCh}, 0'); I('s_cbranch_scc0 Lnosp1')
I('s_waitcnt vmcnt(16)')
for i in range(32): vconst(W3+i,0)
vconst(7,OOB); I(f'v_cmp_eq_u32 vcc, 0, v{vN}')
for d,s_ in ((4,vWp),(5,vWm),(6,vWm0)):
    I(f'v_add_u32 v{d}, 0x280, v{s_}'); I(f'v_cndmask_b32 v{d}, v7, v{d}, vcc')
for i in range(8):
    for w in range(2): emit(wload(W3,4,5,6,i,w))
lab('Lnosp1')
stamp(17)
poll([vF],14)
stamp(18)
for ks in range(2):
    for i in range(4):
        I(f's_mov_b32 s{t0}, {(16*ks+i)*5120}')
        for ri in range(2): I(f'buffer_load_dword v{YF+(ri*2+ks)*4+i}, v{vY}, {srd(sWS)}, s{t0} offen offset:{128*ri} {HS}')
for ks in range(2):
    I(f's_waitcnt vmcnt({8-8*ks})')
    for mt in (0,2,1,3):
        for ri in range(2):
            d=v(EF+(mt*2+ri)*4,4)
            I(f'{MF} {d}, {v(T1+(mt*2+ks)*4,4)}, {v(YF+(ri*2+ks)*4,4)}, {"0" if ks==0 else d}')
stamp(19)
EF2=EF
def pk(op,d,*s,neg=None):
    t=f'v_pk_{op}_f32 {v(d,2)}, '+', '.join(v(x,2) for x in s)
    if neg: t+=f' neg_lo:{neg} neg_hi:{neg}'
    I(t)
PQ=16
Pre,Pim,Qre,Qim=PQ,PQ+8,PQ+16,PQ+24
def EFr(typ,mh,ri,p): return EF+((typ*2+mh)*2+ri)*4+2*p
for mh in range(2):
    for p in range(2):
        o=mh*4+2*p; Er,Ei,Fr,Fi=EFr(0,mh,0,p),EFr(0,mh,1,p),EFr(1,mh,0,p),EFr(1,mh,1,p)
        wpr,wpi,wmr,wmi=WP+o,WP+8+o,WP+16+o,WP+24+o
        T=TM+(p*16)
        pk('add',T,Er,Fi); pk('add',T+2,Ei,Fr,neg='[0,1]'); pk('add',T+4,Er,Fi,neg='[0,1]'); pk('add',T+6,Ei,Fr)
        pk('mul',T+8,T,wpr); pk('mul',T+10,T,wpi); pk('mul',T+12,T+4,wmr); pk('mul',T+14,T+4,wmi)
        pk('fma',T+8,T+2,wpi,T+8,neg='[1,0,0]'); pk('fma',T+10,T+2,wpr,T+10); pk('fma',T+12,T+6,wmi,T+12,neg='[1,0,0]'); pk('fma',T+14,T+6,wmr,T+14)
        pk('add',Pre+o,T+8,T+12); pk('add',Pim+o,T+10,T+14); pk('add',Qre+o,T+14,T+10,neg='[0,1]'); pk('add',Qim+o,T+8,T+12,neg='[0,1]')
I(f's_cmp_eq_u32 s{sT}, 0'); I('s_cbranch_scc0 Lnot0')
I('s_mov_b64 exec, 0xffff')
Er,Ei,Fr,Fi=EFr(0,0,0,0),EFr(0,0,1,0),EFr(1,0,0,0),EFr(1,0,1,0)
I(f'v_mul_f32 v{Pre}, v{Er}, v{WP}'); I(f'v_fma_f32 v{Pre}, -v{Ei}, v{WP+8}, v{Pre}')
I(f'v_mul_f32 v{Pim}, v{Er}, v{WP+8}'); I(f'v_fma_f32 v{Pim}, v{Ei}, v{WP}, v{Pim}')
I(f'v_mul_f32 v{Qre}, v{Fr}, v{WP+16}'); I(f'v_fma_f32 v{Qre}, -v{Fi}, v{WP+24}, v{Qre}')
I(f'v_mul_f32 v{Qim}, v{Fr}, v{WP+24}'); I(f'v_fma_f32 v{Qim}, v{Fi}, v{WP+16}, v{Qim}')
I('s_mov_b64 exec, -1')
lab('Lnot0')
I(f's_cmp_eq_u32 s{sCh}, 0'); I('s_cbranch_scc0 Lnosp2')
I(f's_mov_b32 exec_lo, 0x10001'); I(f's_mov_b32 exec_hi, 0x10001')
for mh in range(2):
    for p in range(2):
        o=mh*4+2*p; Er,Ei,Fr,Fi=EFr(0,mh,0,p),EFr(0,mh,1,p),EFr(1,mh,0,p),EFr(1,mh,1,p)
        T=TM
        pk('add',T,WP+o,WP+16+o); pk('add',T+2,WP+8+o,WP+24+o,neg='[0,1]'); pk('add',T+4,W3+o,W3+16+o); pk('add',T+6,W3+8+o,W3+24+o,neg='[0,1]')
        for q in range(4): I(f'v_pk_mul_f32 {v(T+2*q,2)}, {v(T+2*q,2)}, 0.5')
        pk('mul',Pre+o,Er,T); pk('mul',Qre+o,Fr,T); pk('mul',Pim+o,Ei,T+4); pk('mul',Qim+o,Fi,T+4)
        pk('fma',Pre+o,Fr,T+2,Pre+o); pk('fma',Qre+o,Er,T+2,Qre+o,neg='[1,0,0]'); pk('fma',Pim+o,Fi,T+6,Pim+o); pk('fma',Qim+o,Ei,T+6,Qim+o,neg='[1,0,0]')
I(f's_cmp_eq_u32 s{sT}, 0'); I('s_cbranch_scc0 Lnocorner')
I('s_mov_b64 exec, 1')
Er,Ei,Fr,Fi=EFr(0,0,0,0),EFr(0,0,1,0),EFr(1,0,0,0),EFr(1,0,1,0)
for d,x,w in ((Pre,Er,WP),(Pim,Ei,W3),(Qre,Fr,WP+16),(Qim,Fi,W3+16)):
    I(f'v_mul_f32 v{d}, v{x}, v{w}'); I(f'v_mul_f32 v{d}, 0.5, v{d}')
lab('Lnocorner')
I('s_mov_b64 exec, -1')
lab('Lnosp2')
for mh in range(2):
    for ri in range(2):
        for q,src in enumerate(((Pre,Pim)[ri],(Qre,Qim)[ri])):
            for p in range(2): I(f'v_cvt_pk_bf16_f32 v{YF+(ri*2+mh)*4+2*q+p}, v{src+mh*4+2*p}, v{src+mh*4+2*p+1}')
for ks in range(2):
    for nt in range(4):
        for ri in range(2):
            d=v(EF+(nt*2+ri)*4,4)
            I(f'{MF} {d}, {v(YF+(ri*2+ks)*4,4)}, {v(T2+(nt*2+ks)*4,4)}, {"0" if ks==0 else d}')
for nt in range(4):
    for ri in range(2):
        for p in range(2): I(f'v_cvt_pk_bf16_f32 v{TM+nt*4+ri*2+p}, v{EF+(nt*2+ri)*4+2*p}, v{EF+(nt*2+ri)*4+2*p+1}')
    I(f'ds_write_b128 v{vXW}, {v(TM+nt*4,4)} offset:{(nt&1)*16*272+(nt>>1)*16}')
stamp(20)
ldssync(vLF,14)
for i in range(4): I(f'ds_read_b128 {v(TM+16+4*i,4)}, v{vXR} offset:{4*272*i}')
for i in range(4):
    I(f's_mov_b32 s{t0}, {4*81920*i}'); I(f's_waitcnt lgkmcnt({3-i})')
    I(f'buffer_store_dwordx4 {v(TM+16+4*i,4)}, v{vRS}, {srd(sWS)}, s{t0} offen sc1')
vconst(10,L_FLG+8); vconst(11,1)
stamp(21)
I('s_waitcnt vmcnt(0)')
I('s_mov_b64 exec, 1'); I('ds_add_rtn_u32 v11, v10, v11'); I('s_mov_b64 exec, -1'); I('s_waitcnt lgkmcnt(0)')
I(f'v_readfirstlane_b32 s{t0}, v11'); I(f's_cmp_eq_u32 s{t0}, s{sAct}'); I('s_cbranch_scc0 Lnopub')
setflag(15,10)
lab('Lnopub')
stamp(22)
I(f's_cmp_eq_u32 s{sWc}, 0'); I('s_cbranch_scc1 Lp3')
I('s_mov_b32 s{0}, 0'.format(sAct))
I('s_branch Lwo0')
lab('LepiQ')
vPW,vPR,vKR,vOS,vO5,vKW,vKP=4,5,100,104,106,108,112
I(f's_lshl_b32 s{t1}, s{sRb}, 1'); sacc(t1,sWr); smul(t2,t1,1280); smul(t3,sGrp,8*40960); sacc(t2,t3)
I(f'v_and_b32 v8, 7, v{vL}'); I(f'v_lshlrev_b32 v8, 4, v8'); I(f'v_lshrrev_b32 v9, 3, v{vL}'); I(f'v_mul_u32_u24 v10, 40960, v9'); I(f'v_add_u32 v10, v10, v8')
GX=120; GW=160
for j in range(10):
    I(f'buffer_load_dwordx4 {v(GX+4*j,4)}, v10, {srd(sX)}, s{t2} offen offset:{128*j}')
    I(f'buffer_load_dwordx4 {v(GW+4*j,4)}, v8, {srd(sGATE)}, 0 offen offset:{128*j}')
I(f's_lshl_b32 s{t2}, s{t1}, 8'); I(f's_lshl_b32 s{t3}, s{sGrp}, 5'); sacc(t2,t3); sadd(t2,t2,WS_G)
I(f'v_lshlrev_b32 v9, 2, v9'); I(f'v_add_u32 v9, s{t2}, v9'); vconst(10,OOB); I(f'v_cmp_eq_u32 vcc, 0, v8'); I(f'v_cndmask_b32 v114, v10, v9, vcc')
smul(t0,sWr,L_PQ[1]-L_PQ[0]); sadd(t0,t0,L_PQ[0])
I(f'v_mul_u32_u24 v{vPW}, {PQS}, v{vN}'); I(f'v_lshl_add_u32 v{vPW}, v{vG}, 3, v{vPW}'); I(f'v_add_u32 v{vPW}, s{t0}, v{vPW}')
for nt in range(5):
    for mt in range(4):
        b=ACC+(mt*5+nt)*4
        phi2(b,b,8); phi2(b+2,b+2,10)
        I(f'v_cvt_pk_bf16_f32 v{b}, v{b}, v{b+1}'); I(f'v_cvt_pk_bf16_f32 v{b+1}, v{b+2}, v{b+3}')
        I(f'ds_write_b64 v{vPW}, {v(b,2)} offset:{16*nt*PQS+32*mt}')
I('s_waitcnt vmcnt(0)')
vconst(8,0); vconst(9,0)
for i in range(40): I(f'v_dot2_f32_bf16 v{8+(i&1)}, v{GX+i}, v{GW+i}, v{8+(i&1)}')
I('s_nop 2'); I('v_add_f32 v8, v8, v9')
for ctl in ('quad_perm:[1,0,3,2]','quad_perm:[2,3,0,1]','row_half_mirror'):
    I('s_nop 1'); I(f'v_add_f32_dpp v8, v8, v8 {ctl} row_mask:0xf bank_mask:0xf')
I('v_cvt_pk_bf16_f32 v8, v8, v8'); I('v_and_b32 v8, 0xffff0000, v8'); I(f'v_mul_f32 v8, s{sAo}, v8'); I('v_exp_f32 v8, -v8'); I('v_add_f32 v8, 1.0, v8'); I('v_rcp_f32 v8, v8')
I('v_cvt_pk_bf16_f32 v8, v8, v8'); I('v_and_b32 v8, 0xffff0000, v8')
I(f'buffer_store_dword v8, v114, {srd(sWS)}, 0 offen sc1')
I(f'v_bfe_u32 v8, v{vL}, 2, 2'); I(f'v_lshl_add_u32 v8, v{vG}, 3, v8'); I(f'v_and_b32 v9, 3, v{vL}'); I(f'v_lshlrev_b32 v9, 3, v9'); I(f'v_add_u32 v9, s{t0}, v9')
for hh in range(2):
    I(f'v_add_u32 v10, {4*hh}, v8'); I(f'v_min_u32 v10, 19, v10'); I(f'v_mul_u32_u24 v10, {PQS}, v10'); I(f'v_add_u32 v{vPR+hh}, v10, v9')
smul(t1,sWr,2752); sadd(t1,t1,L_KVI)
for i in range(4): vconst(8+i,0)
I(f'v_add_u32 v12, s{t1}, v218')
I(f'ds_write_b128 v12, v[8:11]'); I(f'ds_write_b128 v12, v[8:11] offset:1024')
I(f's_mov_b32 exec_hi, 0xfff'); I(f'ds_write_b128 v12, v[8:11] offset:2048'); I('s_mov_b64 exec, -1')
for i in range(4):
    I(f'v_add_u32 v8, {64*i}, v{vL}'); I(f'v_mul_u32_u24 v9, 0xc31, v8'); I(f'v_lshrrev_b32 v9, 16, v9')
    I(f'v_mul_u32_u24 v10, 21, v9'); I(f'v_sub_u32 v10, v8, v10')
    I(f'v_cmp_lt_u32 vcc, 4, v9'); I(f'v_cndmask_b32 v11, 0, 1, vcc')
    I(f'v_mad_u32_u24 v10, v11, 21, v10'); I(f'v_mul_u32_u24 v11, 5, v11'); I(f'v_sub_u32 v9, v9, v11')
    I(f'v_lshlrev_b32 v10, 6, v10'); I(f'v_lshl_add_u32 v10, v9, 3, v10'); I(f'v_add_u32 v{vKW+i}, s{t1}, v10')
vconst(11,L_FLG+32); I(f'v_cmp_gt_u32 vcc, 18, v{vL}'); I(f'v_cndmask_b32 v{vKW+3}, v11, v{vKW+3}, vcc')
I(f'v_lshlrev_b32 v8, 4, v{vG}'); I(f'v_add_u32 v8, {L_KVI}, v8')
I(f'v_lshl_add_u32 v{vKR}, v{vN}, 6, v8'); I(f'v_add_u32 v{vKR+1}, {21*64}, v{vKR}')
I(f'v_and_b32 v9, 3, v{vN}'); I(f'v_lshrrev_b32 v10, 2, v{vN}')
for hb in range(2):
    I(f'v_and_b32 v11, 1, v10'); I(f'v_lshl_add_u32 v11, v11, 1, v9'); I(f'v_add_u32 v11, {21*hb+16}, v11')
    I(f'v_lshrrev_b32 v12, 1, v10'); I(f'v_cmp_eq_u32 vcc, {hb}, v12'); I(f'v_cmp_gt_u32 s[{t4}:{t5}], 2, v9'); I(f's_and_b64 vcc, vcc, s[{t4}:{t5}]')
    I(f'v_cndmask_b32 v11, 42, v11, vcc'); I(f'v_cmp_eq_u32 vcc, {2+hb}, v9'); I(f'v_cndmask_b32 v11, v11, {21*hb+20}, vcc')
    I(f'v_lshl_add_u32 v{vKR+2+hb}, v11, 6, v8')
I(f's_lshl_b32 s{t1}, s{sRb}, 1'); sacc(t1,sWr); smul(t2,t1,81920); sadd(t2,t2,WS_O)
smul(t3,sGrp,10)
for hp in range(2):
    I(f'v_add_u32 v8, {5*hp}, v{vG}'); I(f'v_add_u32 v8, s{t3}, v8')
    I(f'v_lshrrev_b32 v9, 2, v8'); I(f'v_and_b32 v8, 3, v8'); I(f'v_lshlrev_b32 v9, 12, v9'); I(f'v_lshl_add_u32 v9, v8, 8, v9')
    I(f'v_lshl_add_u32 v9, v{vN}, 4, v9'); I(f'v_add_u32 v{vOS+hp}, s{t2}, v9')
    sadd(t4,t3,5*hp+4); I(f's_lshr_b32 s{t5}, s{t4}, 2'); I(f's_lshl_b32 s{t5}, s{t5}, 12'); I(f's_and_b32 s{t4}, s{t4}, 3'); I(f's_lshl_b32 s{t4}, s{t4}, 8')
    sacc(t4,t5); sacc(t4,t2)
    I(f'v_lshlrev_b32 v9, 10, v{vG}'); I(f'v_lshl_add_u32 v9, v{vN}, 4, v9'); I(f'v_add_u32 v{vO5+hp}, s{t4}, v9')
I(f's_lshl_b32 s{t1}, s{t1}, 3'); sacc(t1,sGrp); I(f's_lshl_b32 s{t1}, s{t1}, 7'); sadd(t1,t1,WS_FL+FL_O*128); I(f'v_mov_b32 v15, s{t1}')
I(f's_lshl_b32 s{t1}, s{sGrp}, 1'); sacc(t1,sWr); I(f's_lshl_b32 s{t1}, s{t1}, 16'); sadd(t1,t1,WS_KVP)
I(f'v_add_u32 v{vKP}, s{t1}, v218'); vconst(9,OOB); I(f'v_cmp_gt_u32 vcc, 18, v{vL}'); I(f'v_cndmask_b32 v{vKP+1}, v9, v{vKP}, vcc')
I(f's_lshl_b32 s{t1}, s{sGrp}, 6'); I(f's_lshl_b32 s{t2}, s{sWr}, 5'); sacc(t1,t2)
I(f'v_and_b32 v8, 31, v{vL}'); I(f'v_add_u32 v8, s{t1}, v8'); I(f'v_lshlrev_b32 v8, 7, v8'); I(f'v_add_u32 v13, {WS_FL+FL_KV*128}, v8')
I(f'v_mov_b32 v14, {L_FLG+4}')
I(f's_mov_b32 s{sAct}, 1')
lab('Lwo0')
for i in range(5):
    I(f'v_add_u32 v7, {64*i}, v{vL}'); div10(10,7); I(f'v_mul_u32_u24 v11, 10, v10'); I(f'v_sub_u32 v11, v7, v11')
    I(f'v_mul_u32_u24 v10, 1280, v10'); I(f'v_lshl_add_u32 v{16+i}, v11, 4, v10')
smul(t0,sCt,160); smul(t1,sWr,320*1280); sacc(t0,t1); smul(t2,sWr,51200)
I(f's_mov_b32 s{t3}, 10')
lab('Lwo')
for i in range(5):
    I(f's_add_u32 m0, s{t2}, {1024*i}'); I(f'buffer_load_dwordx4 v{16+i}, {srd(sWO)}, s{t0} offen lds')
sadd(t0,t0,32*1280); sadd(t2,t2,5120); I(f's_sub_u32 s{t3}, s{t3}, 1'); I(f's_cmp_lg_u32 s{t3}, 0'); I('s_cbranch_scc1 Lwo')
smul(t2,sWr,51200)
I(f'v_bfe_u32 v10, v{vL}, 2, 2'); I(f'v_and_b32 v11, 3, v{vL}'); I(f'v_lshlrev_b32 v11, 3, v11'); I(f'v_add_u32 v11, s{t2}, v11')
for k5 in range(5):
    I(f'v_add_u32 v7, {4*k5}, v{vG}'); I(f'v_mul_u32_u24 v12, 52, v7'); I(f'v_lshrrev_b32 v12, 8, v12')
    I(f'v_mul_u32_u24 v12, 20, v12'); I(f'v_lshl_add_u32 v12, v7, 2, v12'); I(f'v_add_u32 v12, v12, v10')
    I(f'v_mul_u32_u24 v12, 160, v12'); I(f'v_add_u32 v{24+k5}, v12, v11')
for ks in range(10):
    I(f's_waitcnt vmcnt({min(40,max(0,50-5*(ks+2)))})')
    for nt in range(5):
        for h in range(2): I(f'ds_read_b64_tr_b16 {a_((ks*5+nt)*4+2*h,2)}, v{24+ks%5} offset:{25600*(ks//5)+3200*h+32*nt}')
    I('s_waitcnt lgkmcnt(5)')
I(f's_cmp_eq_u32 s{sAct}, 0'); I('s_cbranch_scc1 Lp3')
stamp(17)
poll([13],9)
stamp(18)
PB=120
def pl(p):
    I(f's_mov_b32 s{t0}, {4096*p}')
    for i in range(4): I(f'buffer_load_dwordx4 {v(PB+(p%8)*16+4*i,4)}, v{vKP+(i==3)}, {srd(sWS)}, s{t0} offen offset:{1024*i} {HS}')
for p in range(8): pl(p)
SM=16
for p in range(16):
    I(f's_waitcnt vmcnt({28 if p==0 else 4*min(6,15-p)})')
    for i in range(8):
        if p==0: continue
        src=PB+2*i if p==1 else SM+2*i
        I(f'v_pk_add_f32 {v(SM+2*i,2)}, {v(src,2)}, {v(PB+(p%8)*16+2*i,2)}')
    if p>=1 and p+7<16: pl(p+7)
for i in range(4):
    I(f'v_cvt_pk_bf16_f32 v{SM+4*i}, v{SM+4*i}, v{SM+4*i+1}'); I(f'v_cvt_pk_bf16_f32 v{SM+4*i+1}, v{SM+4*i+2}, v{SM+4*i+3}')
    I(f'ds_write_b64 v{vKW+i}, {v(SM+4*i,2)}')
stamp(19)
ldssync(14,9)
KF=32; QF=64; OD=120; O5=160
for hp in range(2):
    for j in range(4): I(f'ds_read_b128 {v(KF+(hp*4+j)*4,4)}, v{vKR+j} offset:{2752*hp}')
def oreads(u):
    rt,hp=u>>1,u&1
    for hb in range(2):
        for hh in range(2): I(f'ds_read_b64_tr_b16 {v(QF+(u&1)*8+hb*4+2*hh,2)}, v{vPR+hh} offset:{(2*hp+hb)*20*PQS+32*rt}')
def omf(u):
    hp=u&1; q=QF+(u&1)*8; d=OD+(u&1)*12
    I(f'{MF} {v(d+8,4)}, {v(KF+(hp*4+2)*4,4)}, {v(q,4)}, 0')
    I(f'{MF} {v(d,4)}, {v(KF+(hp*4+0)*4,4)}, {v(q,4)}, 0')
    I(f'{MF} {v(d+8,4)}, {v(KF+(hp*4+3)*4,4)}, {v(q+4,4)}, {v(d+8,4)}')
    I(f'{MF} {v(d+4,4)}, {v(KF+(hp*4+1)*4,4)}, {v(q+4,4)}, 0')
def ofin(u):
    rt,hp=u>>1,u&1; d=OD+(u&1)*12; o=148+(u&1)*4
    I(f'v_pk_add_f32 {v(d+10,2)}, {v(d+10,2)}, s[{sAo}:{sAo+1}] op_sel:[0,1]')
    I(f'v_rcp_f32 v{d+10}, v{d+10}'); I(f'v_rcp_f32 v{d+11}, v{d+11}')
    for p in range(2): I(f'v_pk_mul_f32 {v(d+2*p,2)}, {v(d+2*p,2)}, {v(d+10,2)} op_sel_hi:[1,0]')
    for p in range(2): I(f'v_pk_mul_f32 {v(d+4+2*p,2)}, {v(d+4+2*p,2)}, {v(d+10,2)} op_sel:[0,1]')
    I(f'v_cndmask_b32 v{d+10}, v{d+11}, v{d+10}, s[{sEx}:{sEx+1}]')
    I(f'v_pk_mul_f32 {v(d+8,2)}, {v(d+8,2)}, {v(d+10,2)} op_sel_hi:[1,0]')
    for p in range(4): I(f'v_cvt_pk_bf16_f32 v{o+p}, v{d+2*p}, v{d+2*p+1}')
    I(f'v_cvt_pk_bf16_f32 v{O5+hp*4+rt}, v{d+8}, v{d+9}')
    I(f'buffer_store_dwordx4 {v(o,4)}, v{vOS+hp}, {srd(sWS)}, 0 offen offset:{1024*rt} sc1')
I(f's_mov_b32 s{sEx}, -1'); I(f's_mov_b32 s{sEx+1}, 0')
oreads(0)
for u in range(8):
    I('s_waitcnt lgkmcnt(0)')
    M=cap(omf,u);
    if u<7: M+=cap(oreads,u+1)
    if u>0: weave(M,cap(ofin,u-1),0,4)
    else: emit(M)
ofin(7)
for hp in range(2):
    b=O5+hp*4
    I(f'v_permlane32_swap_b32 v{b}, v{b+2}'); I(f'v_permlane32_swap_b32 v{b+1}, v{b+3}')
    I(f'v_permlane16_swap_b32 v{b}, v{b+1}'); I(f'v_permlane16_swap_b32 v{b+2}, v{b+3}')
    I(f'buffer_store_dwordx4 {v(b,4)}, v{vO5+hp}, {srd(sWS)}, 0 offen sc1')
stamp(21)
I('s_waitcnt vmcnt(0)'); setflag(15,10)
stamp(22)
lab('Lp3')
stamp(23)
vA,vGg,vFa=4,5,8
VD2=240
I(f's_lshl_b32 s{t0}, s{sW}, 11'); sadd(t0,t0,TB.D2_OFF); I(f'v_lshlrev_b32 v6, 4, v{vL}')
for kb in range(2): I(f'buffer_load_dwordx4 {v(VD2+4*kb,4)}, v6, {srd(sTAB)}, s{t0} offen offset:{1024*kb}')
I(f's_cmp_eq_u32 s{sWc}, 0'); I('s_cbranch_scc0 Lp3b')
I(f'v_lshrrev_b32 v{vA}, 2, v{vN}'); I(f'v_lshlrev_b32 v{vA}, 8, v{vA}'); I(f'v_lshl_add_u32 v{vA}, v{vG}, 6, v{vA}'); I(f'v_and_b32 v7, 3, v{vN}'); I(f'v_lshl_add_u32 v{vA}, v7, 4, v{vA}')
I(f's_mov_b32 s{sBo}, {WS_R}')
smul(t0,sWr,80); I(f's_movk_i32 s{t1}, 191'); I(f's_cmp_eq_u32 s{sWr}, 0'); I(f's_cselect_b32 s{t1}, 79, s{t1}')
for i in range(2):
    I(f'v_add_u32 v7, {64*i}, v{vL}'); I(f'v_add_u32 v7, s{t0}, v7'); I(f'v_min_u32 v7, s{t1}, v7'); I(f'v_lshlrev_b32 v7, 7, v7'); I(f'v_add_u32 v{vFa+i}, {WS_FL+FL_R*128}, v7')
I('s_branch Lp3c')
lab('Lp3b')
I(f'v_mov_b32 v{vA}, v6')
I(f's_mov_b32 s{sBo}, {WS_O}')
I(f's_lshl_b32 s{t0}, s{sN2}, 3'); I(f's_lshl_b32 s{t1}, s{sWr}, 2'); sacc(t0,t1)
I(f'v_and_b32 v7, 3, v{vL}'); I(f'v_add_u32 v7, s{t0}, v7'); I(f'v_lshlrev_b32 v7, 7, v7'); I(f'v_add_u32 v{vFa}, {WS_FL+FL_O*128}, v7'); I(f'v_mov_b32 v{vFa+1}, v{vFa}')
lab('Lp3c')
smul(t0,sN2,81920); smul(t1,sWr,40960); sacc(t0,t1); sacc(sBo,t0)
for i in range(3):
    I(f'v_add_u32 v12, {64*i}, v{vL}'); div10(13,12); I(f'v_mul_u32_u24 v14, 10, v13'); I(f'v_sub_u32 v14, v12, v14')
    I(f'v_mul_u32_u24 v13, 40960, v13'); I(f'v_lshl_add_u32 v{248+i}, v14, 4, v13')
vconst(12,OOB); I(f'v_cmp_gt_u32 vcc, 32, v{vL}'); I(f'v_cndmask_b32 v250, v12, v250, vcc')
smul(sB0,sW,16*40960); smul(t1,sN2,1280); sacc(sB0,t1); smul(t1,sCt,160); sacc(sB0,t1)
smul(t2,sW,2560); sadd(t2,t2,L_OUT)
I(f'v_mul_u32_u24 v12, 160, v{vN}'); I(f'v_lshl_add_u32 v12, v{vG}, 3, v12'); I(f'v_add_u32 v251, s{t2}, v12'); I(f'v_add_u32 v252, s{t2}, v6')
I(f's_lshl_b32 s{sB1}, s{sN2}, 8'); I(f's_lshl_b32 s{t1}, s{sW}, 6'); sacc(sB1,t1); sadd(sB1,sB1,WS_G)
I(f'v_lshlrev_b32 v7, 2, v{vN}')
smul(t2,sW,5120); I(f'v_add_u32 v253, s{t2}, v6')
smul(t2,sWr,10240); I(f's_lshl_b32 s{t2}, s{t2}, s{sWc}'); I(f'v_add_u32 v254, s{t2}, v6')
stamp(24)
poll([vFa,vFa+1],10)
stamp(25)
C3=16; AV=96
def afr(i): return v(AV+4*i,4) if i<26 else a_(200+4*(i-26),4)
for ks in range(10):
    for mt in range(4): I(f'buffer_load_dwordx4 {afr(ks*4+mt)}, v{vA}, {srd(sWS)}, s{sBo} offen offset:{1024*mt} {HS}')
    sadd(sBo,sBo,4096)
I(f's_cmp_eq_u32 s{sWc}, 0'); I('s_cbranch_scc0 Lp3mb')
for ks in range(10):
    I(f's_waitcnt vmcnt({36-4*ks})')
    for nt in range(5):
        for mt in range(4):
            c=v(C3+(mt*5+nt)*4,4); I(f'{MF} {c}, {afr(ks*4+mt)}, {a_((ks*5+nt)*4,4)}, {"0" if ks==0 else c}')
stamp(26)
I('s_barrier')
for nt in range(5):
    for kb in range(2):
        o=AV+(nt*2+kb)*4
        for q in range(2):
            for p in range(2):
                b=C3+((2*kb+q)*5+nt)*4+2*p; I(f'v_cvt_pk_bf16_f32 v{o+2*q+p}, v{b}, v{b+1}')
        I(f'ds_write_b128 v254, {v(o,4)} offset:{L_TA[0]+(nt*2+kb)*1024}')
I('s_branch Lp3t')
lab('Lp3mb')
I('s_waitcnt lgkmcnt(0)')
for ks in range(10):
    I(f's_waitcnt vmcnt({36-4*ks})')
    for nt in range(5):
        for mt in range(4):
            c=v(C3+(mt*5+nt)*4,4); I(f'{MF} {c}, {a_((ks*5+nt)*4,4)}, {afr(ks*4+mt)}, {"0" if ks==0 else c}')
stamp(26)
I('s_barrier')
for nt in range(5):
    for mt in range(4): I(f'ds_write_b128 v254, {v(C3+(mt*5+nt)*4,4)} offset:{L_TB[0]+1024*(mt*5+nt)}')
lab('Lp3t')
I(f'buffer_load_dword v{vGg}, v7, {srd(sWS)}, s{sB1} offen sc1')
I('s_waitcnt lgkmcnt(0)'); I('s_barrier')
stamp(27)
TAF=96; TBF=176; OA=16
rd=[]
for nt in range(5):
    for u in range(4): rd.append(f'ds_read_b128 {v(TAF+(nt*4+u)*4,4)}, v6 offset:{(u>>1)*10240+(nt*2+(u&1))*1024}')
rb_=[f'ds_read_b128 {v(TBF+(nt*2+bh)*4,4)}, v253 offset:{L_TB[0]+bh*20480+nt*1024}' for nt in range(5) for bh in range(2)]
emit(rd[:8])
for nt in range(5):
    if nt<3: emit(rd[8+4*nt:12+4*nt]); I('s_waitcnt lgkmcnt(8)')
    elif nt==3: emit(rb_[:4]); I('s_waitcnt lgkmcnt(8)')
    else: emit(rb_[4:]); I('s_waitcnt lgkmcnt(10)')
    for u in range(4):
        c=v(OA+4*nt,4); I(f'{MF} {c}, {v(TAF+(nt*4+u)*4,4)}, {v(VD2+4*(u&1),4)}, {"0" if u==0 else c}')
I('s_waitcnt vmcnt(0)')
scale=struct.unpack('<I',struct.pack('<f',2.0/(2048*640)))[0]
I(f'v_sub_f32 v9, 1.0, v{vGg}'); I(f'v_cvt_pk_bf16_f32 v9, v9, v9'); I(f'v_and_b32 v9, 0xffff0000, v9'); I(f'v_mul_f32 v8, 0x{scale:x}, v{vGg}')
for nt in range(5):
    I(f's_waitcnt lgkmcnt({8-nt})')
    b0=TBF+nt*8; c=OA+4*nt
    for p in range(2):
        I(f'v_pk_add_f32 {v(b0+2*p,2)}, {v(b0+2*p,2)}, {v(b0+4+2*p,2)}')
        I(f'v_pk_mul_f32 {v(c+2*p,2)}, {v(c+2*p,2)}, v[8:9] op_sel_hi:[1,0]')
        I(f'v_pk_fma_f32 {v(c+2*p,2)}, {v(b0+2*p,2)}, v[8:9], {v(c+2*p,2)} op_sel:[0,1,0]')
    I(f'v_cvt_pk_bf16_f32 v{c}, v{c}, v{c+1}'); I(f'v_cvt_pk_bf16_f32 v{c+1}, v{c+2}, v{c+3}')
    I(f'ds_write_b64 v251, {v(OA+4*nt,2)} offset:{32*nt}')
I('s_waitcnt lgkmcnt(0)')
for i in range(3): I(f'ds_read_b128 {v(48+4*i,4)}, v252 offset:{1024*i}')
for i in range(3):
    I(f's_waitcnt lgkmcnt({2-i})'); I(f'buffer_store_dwordx4 {v(48+4*i,4)}, v{248+i}, {srd(sOUT)}, s{sB0} offen')
I(f's_or_b32 s{t0}, s2, s{sW}'); I(f's_cmp_eq_u32 s{t0}, 0'); I('s_cbranch_scc0 Lnoe')
vconst(15,WS_E); setflag(15,14)
lab('Lnoe')
if TS:
    stamp(28)
    I(f's_lshl_b32 s{t0}, s2, 2'); sacc(t0,sW); I(f's_lshl_b32 s{t0}, s{t0}, 8'); sadd(t0,t0,WS_TS)
    I(f'v_lshlrev_b32 v4, 2, v{vL}')
    I(f'buffer_store_dword v0, v4, {srd(sWS)}, s{t0} offen')
lab('Lend')
I('s_endpgm')
body_txt=A.finish()
hdr=open(os.path.join(os.path.dirname(os.path.abspath(__file__)),'..','cdna_kernels',NAME+'.s.ref')).read().split('; Override launch')[0]
o_=hdr+f'; @launch grid=(256,1,1) block=(256,1,1) lds={LDS_SZ}\n'
o_+=f'.amdgcn_target "amdgcn-amd-amdhsa--gfx950"\n.text\n.globl {K}\n.p2align 8\n.type {K},@function\n{K}:\n'+body_txt
o_+=f'''.section .rodata,"a"
.p2align 6
.amdhsa_kernel {K}
  .amdhsa_next_free_vgpr 512
  .amdhsa_next_free_sgpr 102
  .amdhsa_accum_offset 256
  .amdhsa_group_segment_fixed_size 0
  .amdhsa_kernarg_size 80
  .amdhsa_user_sgpr_count 2
  .amdhsa_user_sgpr_kernarg_segment_ptr 1
  .amdhsa_system_sgpr_workgroup_id_x 1
.end_amdhsa_kernel
'''
if DEV: o_+='.p2align 8\n.type tab_base,@object\ntab_base:\n@@INCBIN@@\n'
else: o_+=TB.emit()
o=[a for a in sys.argv[1:] if not a.startswith('--')]
open(o[0] if o else 'out.s','w').write(o_)
print('instructions:',sum(1 for l in body_txt.split('\n') if l.startswith('    ')),'nops inserted:',A.nnops,file=sys.stderr)
```

```python
import sys, os, struct
from asm import Asm
import tables as TB

NAME='gated_mix__spectral_gfnet__linear_attn_block__prompt'
DEV = '--dev' in sys.argv
TS  = '--ts' in sys.argv
E=lambda k,d: int(os.environ.get(k,str(d)))
ROT=E('ROT',0); LDPOL=os.environ.get('LDPOL',''); HS=os.environ.get('HS','sc1')
CPF=E('CPF',1); HALF=E('HALF',1)
WS_Y=0; WS_R=2621440; WS_O=2*2621440; WS_KVA=3*2621440; WS_WOF=WS_KVA+65536; WS_G=WS_KVA+1048576
WS_FL=WS_G+8192
FL_Y=0; FL_KV=256; FL_R=768; FL_O=960; FL_E=1216; NFL=2240
WS_E=WS_FL+NFL*128; WS_TS=WS_E+128; WS_SZ=WS_TS+256*4*256
OOB=0x7ff00000
SLOT=36880; SEG0=16384; SEG1=16384+10240+16
L_FLG=4*SLOT; L_PP=L_FLG+64; LDS_SZ=L_PP+4096
L_WO=[0,51200]; L_PQ=[102400,113280]; PQS=136
L_XCH=[124160,124160+8704]; L_KVI=[0,5504]; L_RED=102400
L_TA=[0,12288]; L_TB=[24576,45056]; L_OUT=65536
sX,sSEG,sWS,sWR,sWI,sTAB,sWO,sOUT,sGATE=4,8,12,16,20,24,28,32,36
sW,sWr,sWc,sTyp,sRb,sGrp,sTag,sCnt=40,41,42,43,44,45,46,47
sAo,sBo,sBstep,sMA,sMB,sDl,sIs,sDm=48,49,50,51,52,53,54,55
sT,sCh,sN2,sCt,sAct,sTo=56,57,58,59,60,61
t0,t1,t2,t3,t4,t5=62,63,64,65,66,67
sK=68; sEx=88; sTS=90; sB0,sB1,sGo,sA2=94,95,96,98; sBS=84; sGb,sGe,sRot=99,100,101
R3=0
OUTPOL=os.environ.get('OUTPOL','')
ATP=os.environ.get('ATP','')
def srd(n): return f's[{n}:{n+3}]'
def v(a,n=1): return f'v{a}' if n==1 else f'v[{a}:{a+n-1}]'
def a_(a,n=1): return f'a{a}' if n==1 else f'a[{a}:{a+n-1}]'
vL,vN,vG=1,2,3
A=Asm(); out=[A]
class Buf(list):
    def __call__(s,t): s.append(t)
def I(t): out[-1](t)
def cap(f,*a):
    b=Buf(); out.append(b); f(*a); out.pop(); return list(b)
def emit(L):
    for x in L:
        if isinstance(x,(list,tuple)): emit(x)
        else: I(x)
def weave(P,F,start=0,end=None):
    end=len(P) if end is None else end
    n=end-start; k=0
    for i,p in enumerate(P):
        emit([p])
        if start<=i<end:
            tgt=((i-start+1)*len(F))//n
            while k<tgt: emit([F[k]]); k+=1
    while k<len(F): emit([F[k]]); k+=1
def lab(n): I(n+':')
def stamp(i):
    if TS:
        I(f's_memrealtime s[{sTS}:{sTS+1}]'); I('s_waitcnt lgkmcnt(0)'); I(f'v_writelane_b32 v0, s{sTS}, {i}')
        if i in (3,14,25,26):
            I(f's_memtime s[{sTS}:{sTS+1}]'); I('s_waitcnt lgkmcnt(0)'); I(f'v_writelane_b32 v0, s{sTS}, {i+32}')
def smul(d,x,c): I(f's_mul_i32 s{d}, s{x}, {c}')
def sadd(d,x,c): I(f's_add_u32 s{d}, s{x}, {c if isinstance(c,int) else "s%d"%c[0]}')
def sacc(d,x): I(f's_add_u32 s{d}, s{d}, s{x}')
def vconst(r,c): I(f'v_mov_b32 v{r}, {c}')
def div10(dst,src): I(f'v_mul_u32_u24 v{dst}, 0x199a, v{src}'); I(f'v_lshrrev_b32 v{dst}, 16, v{dst}')
uid=[0]
SLP=E('SLP',6)
def poll(voffs,tmp):
    I(f's_mov_b32 s{sTo}, 0x40000')
    for i,vo in enumerate(voffs): I(f'buffer_load_dword v{tmp+i}, v{vo}, {srd(sWS)}, 0 offen sc1')
    for i,vo in enumerate(voffs):
        uid[0]+=1; L=f'Lpoll{uid[0]}'
        I(f's_waitcnt vmcnt({len(voffs)-1-i})')
        lab(L)
        I(f'v_cmp_ne_u32 vcc, s{sTag}, v{tmp+i}')
        I(f's_cbranch_vccz {L}d')
        I('s_mov_b64 exec, vcc')
        if SLP: I(f's_sleep {SLP}')
        I(f'buffer_load_dword v{tmp+i}, v{vo}, {srd(sWS)}, 0 offen sc1')
        I(f's_sub_u32 s{sTo}, s{sTo}, 1')
        I('s_waitcnt vmcnt(0)')
        I(f's_cbranch_scc0 {L}'); lab(L+'d')
        I('s_mov_b64 exec, -1')
def ldssync(vaddr,tmp):
    I(f'v_mov_b32 v{tmp}, 1'); I('s_waitcnt lgkmcnt(0)')
    I('s_mov_b64 exec, 1'); I(f'ds_add_u32 v{vaddr}, v{tmp}'); I('s_mov_b64 exec, -1')
    uid[0]+=1; L=f'Llp{uid[0]}'
    I(f's_mov_b32 s{sTo}, 0x400000'); lab(L)
    I(f'ds_read_b32 v{tmp}, v{vaddr}'); I('s_waitcnt lgkmcnt(0)')
    I(f'v_cmp_gt_u32 vcc, 2, v{tmp}')
    I(f's_cbranch_vccz {L}d'); I(f's_sub_u32 s{sTo}, s{sTo}, 1'); I(f's_cbranch_scc0 {L}'); lab(L+'d')
def setflag(voff,tmp):
    I(f'v_mov_b32 v{tmp}, s{sTag}'); I('s_mov_b64 exec, 1')
    I(f'buffer_store_dword v{tmp}, v{voff}, {srd(sWS)}, 0 offen sc1'); I('s_mov_b64 exec, -1')
def mksrd(d,p,n):
    I(f's_mov_b32 s{d}, s{p}'); I(f's_mov_b32 s{d+1}, s{p+1}'); I(f's_mov_b32 s{d+2}, {n}'); I(f's_mov_b32 s{d+3}, 0x20000')
MF='v_mfma_f32_16x16x32_bf16'
K=f'{NAME}_kernel'
ACC=16
FX=dict(A=100,B=116); FY=dict(A=140,B=156)
vAo=180; vBo=184; vRA=189; vRB=191
vKA=200; vE0=208; vWp,vWm,vWm0=214,215,216; WP=220
lab('Lstart')
I(f's_cmp_ge_u32 s2, 256'); I('s_cbranch_scc1 Lend')
if TS: I(f's_memrealtime s[{sTS+2}:{sTS+3}]')
I(f's_load_dwordx16 s[{sK}:{sK+15}], s[0:1], 0')
I(f's_load_dwordx4 s[{sK+16}:{sK+19}], s[0:1], 64')
I(f'v_lshrrev_b32 v4, 6, v0'); I(f'v_and_b32 v{vL}, 63, v0')
I(f'v_readfirstlane_b32 s{sW}, v4')
I(f's_getpc_b64 s[{sGATE}:{sGATE+1}]')
lab('Lpc')
I(f's_add_u32 s{sTAB}, s{sGATE}, tab_base@rel32@lo+4'); I(f's_addc_u32 s{sTAB+1}, s{sGATE+1}, tab_base@rel32@hi+12')
I(f's_mov_b32 s{sGATE+2}, Lend-Lpc'); I(f's_mov_b32 s{sGATE+3}, 0x20000')
I(f'v_lshlrev_b32 v9, 4, v{vL}')
I(f's_lshr_b32 s{t0}, s2, 3'); I(f's_and_b32 s{t1}, s2, 7')
if CPF:
    I(f's_lshl_b32 s{t2}, s{t0}, 10'); I(f's_cmp_eq_u32 s{sW}, 3'); I(f's_cbranch_scc0 Lnocpf')
    I(f'buffer_load_dwordx4 v[176:179], v9, {srd(sGATE)}, s{t2} offen'); lab('Lnocpf')
I(f'v_and_b32 v{vN}, 15, v{vL}'); I(f'v_lshrrev_b32 v{vG}, 4, v{vL}')
I(f's_lshr_b32 s{sRb}, s{t1}, 2'); I(f's_lshl_b32 s{sRb}, s{sRb}, 3'); I(f's_lshr_b32 s{t2}, s{t0}, 2'); sacc(sRb,t2)
I(f's_and_b32 s{sWr}, s{sW}, 1'); I(f's_lshr_b32 s{sWc}, s{sW}, 1')
I(f'v_and_b32 v5, 7, v{vL}'); I(f'v_xor_b32 v5, v5, v{vG}'); I(f'v_lshrrev_b32 v4, 3, v{vL}'); I(f'v_mul_u32_u24 v4, 40960, v4')
I(f'v_lshl_add_u32 v{vAo}, v5, 4, v4'); I(f'v_xor_b32 v{vAo+1}, 64, v{vAo}')
I(f's_lshl_b32 s{t3}, s{sRb}, 1'); sacc(t3,sWc); smul(t3,t3,1280); smul(t2,sWr,32*40960); I(f's_add_u32 s{sA2}, s{t3}, s{t2}')
I(f's_bfe_u32 s{sTyp}, s{t0}, 0x10001')
I(f's_and_b32 s{sGrp}, s{t1}, 3'); I(f's_lshl_b32 s{sGrp}, s{sGrp}, 1'); I(f's_and_b32 s{t2}, s{t0}, 1'); sacc(sGrp,t2)
if E('P3MAP',1)==0:
    I(f's_lshl_b32 s{sN2}, s{t1}, 2'); I(f's_lshr_b32 s{t2}, s{t0}, 3'); sacc(sN2,t2); I(f's_and_b32 s{sCt}, s{t0}, 7')
else:
    I(f's_lshr_b32 s{sN2}, s{t1}, 1'); I(f's_lshl_b32 s{sN2}, s{sN2}, 3'); I(f's_lshr_b32 s{t2}, s{t0}, 2'); sacc(sN2,t2)
    I(f's_and_b32 s{sCt}, s{t1}, 1'); I(f's_lshl_b32 s{sCt}, s{sCt}, 2'); I(f's_and_b32 s{t2}, s{t0}, 3'); sacc(sCt,t2)
if ROT:
    I(f's_lshr_b32 s{t2}, s{t0}, 2'); smul(t2,t2,5); I(f's_and_b32 s{t3}, s{t0}, 3'); smul(t3,t3,10)
    sacc(t2,t3); I(f's_lshr_b32 s{t2}, s{t2}, 2')
    I(f's_cmp_ge_u32 s{t2}, 10'); I(f's_cselect_b32 s{t3}, 10, 0'); I(f's_sub_u32 s{sIs}, s{t2}, s{t3}')
else: I(f's_mov_b32 s{sIs}, 0')
I(f's_lshl_b32 s{sMA}, s{sW}, 12')
I(f's_lshl_b32 s{sAo}, s{sIs}, 7'); sacc(sAo,sA2)
I(f's_mov_b32 s{sTAB+2}, {TB.TAB_SZ}'); I(f's_mov_b32 s{sTAB+3}, 0x20000')
I(f's_andn2_b32 s{t0}, s{sTyp}, s{sWc}')
I(f's_sub_u32 s{t1}, 1, s{sTyp}'); sadd(t2,sWc,1); I(f's_mul_i32 s{t1}, s{t1}, s{t2}'); smul(t1,t1,1280)
smul(t2,sGrp,160); sacc(t1,t2); smul(t2,sWr,32*3840); sacc(t1,t2)
smul(t2,sGrp,102400); smul(t3,sWr,5120); sacc(t2,t3)
smul(sMB,sWc,10256); sacc(sMB,t3); sadd(sMB,sMB,SEG0)
I(f's_cmp_eq_u32 s{t0}, 1')
I(f's_cselect_b32 s{t1}, s{t2}, s{t1}')
I(f's_mov_b32 s{sBstep}, {64*3840}'); I(f's_cselect_b32 s{sBstep}, 10240, s{sBstep}')
I(f's_cselect_b64 s[{t4}:{t5}], -1, 0')
I(f's_mul_i32 s{sBo}, s{sIs}, s{sBstep}')
I(f's_mov_b32 s{t2}, 3840')
def dmaA(i): return [f's_add_u32 m0, s{sMA}, {1024*i}', f's_add_u32 s{t3}, s{sAo}, {i*8*40960}', f'buffer_load_dwordx4 v{vAo+(i&1)}, {srd(sX)}, s{t3} offen {LDPOL} lds']
def dmaB(i): return [f's_add_u32 m0, s{sMB}, {1024*i}', 's_nop 0', f'buffer_load_dwordx4 v{vBo+i}, {srd(sSEG)}, s{sBo} offen {LDPOL} lds']
def advA(d):
    return [f's_add_u32 s{sIs}, s{sIs}, 1', f's_cmp_eq_u32 s{sIs}, 10', f's_cselect_b32 s{sIs}, 0, s{sIs}',
            f's_lshl_b32 s{sAo}, s{sIs}, 7', f's_add_u32 s{sAo}, s{sAo}, s{sA2}', f's_add_u32 s{sMA}, s{sMA}, {d}']
def advB(d): return [f's_mul_i32 s{sBo}, s{sIs}, s{sBstep}', f's_add_u32 s{sMB}, s{sMB}, {d}']
def dma_adv(d):
    return [f's_add_u32 s{sIs}, s{sIs}, 1', f's_cmp_eq_u32 s{sIs}, 10', f's_cselect_b32 s{sIs}, 0, s{sIs}',
            f's_lshl_b32 s{sAo}, s{sIs}, 7', f's_add_u32 s{sAo}, s{sAo}, s{sA2}', f's_mul_i32 s{sBo}, s{sIs}, s{sBstep}',
            f's_add_u32 s{sMA}, s{sMA}, {d}', f's_add_u32 s{sMB}, s{sMB}, {d}']
def boff(i):
    I(f'v_add_u32 v4, {64*i}, v{vL}'); div10(5,4)
    I(f'v_lshlrev_b32 v4, 4, v4'); I(f'v_mul_u32_u24 v6, 160, v5'); I(f'v_sub_u32 v6, v4, v6')
    I(f'v_and_b32 v7, 3, v5'); I(f'v_bfe_u32 v8, v5, 2, 2'); I(f'v_lshl_or_b32 v7, v8, 3, v7')
    I(f'v_lshrrev_b32 v8, 4, v5'); I(f'v_lshl_or_b32 v7, v8, 2, v7')
    I(f'v_mad_u32_u24 v7, v7, s{t2}, v6'); I(f'v_cndmask_b32 v7, v7, v4, s[{t4}:{t5}]'); I(f'v_add_u32 v{vBo+i}, s{t1}, v7')
boff(0)
I('s_waitcnt lgkmcnt(0)')
mksrd(sX,sK+0,2621440)
I(f's_cmp_eq_u32 s{t0}, 1')
I(f's_cselect_b32 s{sSEG}, s{sTAB}, s{sK+8}'); I(f's_cselect_b32 s{sSEG+1}, s{sTAB+1}, s{sK+9}')
I(f's_mov_b32 s{sSEG+2}, 2457600'); I(f's_cselect_b32 s{sSEG+2}, {TB.TF_SZ}, s{sSEG+2}'); I(f's_mov_b32 s{sSEG+3}, 0x20000')
for i in range(4): emit(dmaA(i)); boff(i+1)
if TS: I(f'v_writelane_b32 v0, s{sTS+2}, 0')
def setup0():
    mksrd(sWS,sK+18,WS_SZ); mksrd(sWO,sK+10,819200)
    I(f's_lshl_b32 s{sDm}, s2, 2'); sacc(sDm,sW)
    smul(t0,sDm,0x667); I(f's_lshr_b32 s{t0}, s{t0}, 16')
    smul(t1,t0,40); I(f's_sub_u32 s{t1}, s{sDm}, s{t1}')
    smul(t2,t1,52); I(f's_lshr_b32 s{t2}, s{t2}, 8')
    smul(sGo,t2,5); I(f's_sub_u32 s{t1}, s{t1}, s{sGo}')
    smul(t2,t2,80)
    I(f's_lshl_b32 s{t0}, s{t0}, 2')
    I(f'v_bfe_u32 v4, v{vL}, 3, 2'); I(f'v_add_u32 v4, s{t0}, v4'); I(f'v_mul_u32_u24 v5, 0x3334, v4'); I(f'v_lshrrev_b32 v5, 16, v5')
    I(f'v_lshrrev_b32 v6, 5, v{vL}'); I(f'v_add_u32 v5, v5, v6')
    I(f'v_mul_u32_u24 v5, 20, v5'); I(f'v_lshl_add_u32 v5, v4, 2, v5'); I(f'v_bfe_u32 v4, v{vL}, 1, 2'); I(f'v_add_u32 v5, v5, v4')
    I(f's_lshr_b32 s{t0}, s{t1}, 1'); smul(t0,t0,640); I(f's_and_b32 s{sGo}, s{t1}, 1'); I(f's_lshl_b32 s{sGo}, s{sGo}, 5'); sacc(t0,sGo)
    I(f's_movk_i32 s{sGo}, 640')
    I([f's_cmp_eq_u32 s{t1}, 4', f's_cselect_b32 s{t0}, 64, s{t0}', f's_cselect_b32 s{t1}, s{sGo}, 16'])
    I(f'v_and_b32 v4, 1, v{vL}'); I(f'v_mul_u32_u24 v4, s{t1}, v4'); I(f's_movk_i32 s{t1}, 1280'); I(f'v_mad_u32_u24 v213, v5, s{t1}, v4')
    sacc(t0,t2)
    I([f's_cmp_lt_u32 s2, 200', f's_cselect_b32 s{sGo}, s{t0}, {OOB}'])
    I(f's_lshl_b32 s{t0}, s{sDm}, 6'); sadd(sDl,t0,WS_KVA)
    I(f'v_lshlrev_b32 v217, 2, v{vL}'); vconst(212,0)
def setup1():
    I([f's_add_u32 s{t0}, s{sK+18}, {WS_E}', f's_addc_u32 s{t1}, s{sK+19}, 0', f's_load_dword s{sTag}, s[{t0}:{t1}], 0'])
    mksrd(sWR,sK+2,1314816); mksrd(sWI,sK+4,1314816); mksrd(sOUT,sK+14,2621440); mksrd(sGATE,sK+12,1280)
    vconst(5,0); I(f'v_lshlrev_b32 v4, 2, v{vN}'); I(f'v_add_u32 v4, {L_FLG}, v4'); I(f'ds_write_b32 v4, v5')
    I(f'v_lshrrev_b32 v4, 1, v{vN}'); I(f'v_xor_b32 v4, v4, v{vG}'); I(f'v_lshlrev_b32 v4, 4, v4')
    I(f'v_lshl_add_u32 v4, v{vN}, 7, v4'); I(f's_lshl_b32 s{t0}, s{sWr}, 13'); I(f'v_add_u32 v{vRA}, s{t0}, v4'); I(f'v_xor_b32 v{vRA+1}, 64, v{vRA}')
    I(f'v_lshrrev_b32 v4, 2, v{vL}'); I(f'v_mul_u32_u24 v4, 160, v4'); I(f'v_and_b32 v5, 3, v{vL}'); I(f'v_lshlrev_b32 v5, 3, v5'); I(f'v_add_u32 v4, v4, v5')
    smul(t0,sWc,80); smul(t1,sWc,10256)
    I([f's_cmp_eq_u32 s{sTyp}, 0', f's_cselect_b32 s{t0}, s{t0}, s{t1}', f's_cselect_b32 s{t1}, {SEG1-SEG0-80}, 0']); sadd(t0,t0,SEG0)
    I(f'v_add_u32 v{vRB}, s{t0}, v4'); I(f'v_add_u32 v{vRB+1}, 32, v{vRB}')
    I(f'v_mov_b32 v6, s{t1}'); I(f'v_cmp_lt_u32 vcc, 8, v5'); I(f'v_cndmask_b32 v6, 0, v6, vcc'); I(f'v_add3_u32 v{vRB+2}, v{vRB}, v6, 64')
    I(f'v_add_u32 v4, s{t1}, v{vRB}'); I(f'v_add_u32 v{vRB+3}, 96, v4'); I(f'v_add_u32 v{vRB+4}, 0x80, v4')
    for i in range(80): vconst(ACC+i,0)
    I(f's_lshr_b32 s{t0}, s{sRb}, 1'); I(f's_lshl_b32 s{t0}, s{t0}, 3'); sacc(t0,sGrp)
    I(f's_lshr_b32 s{t1}, s{t0}, 4'); sadd(t1,t1,16)
    I(f's_and_b32 s{t2}, s{t0}, 15'); I(f's_lshl_b32 s{t2}, s{t2}, 1'); sacc(t2,sWr)
    I(f's_lshl_b32 s{t0}, s{sGrp}, 2'); sacc(t0,sW)
    I([f's_cmp_eq_u32 s{sTyp}, 0', f's_cselect_b32 s{sT}, s{t0}, s{t2}', f's_cselect_b32 s{sCh}, s{sRb}, s{t1}'])
    I(f's_or_b32 s{t0}, s{sRb}, s{sWc}'); I(f's_and_b32 s{t0}, s{t0}, s{sTyp}'); I(f's_xor_b32 s{sAct}, s{t0}, 1')
    for i in range(32): vconst(WP+i,0)
    I(f's_lshl_b32 s{t0}, s{sCh}, 6'); I([f's_cmp_ge_u32 s{sCh}, 10', f's_cselect_b32 s{t1}, 638, 0']); I(f's_sub_u32 s{t0}, s{t0}, s{t1}')
    I([f's_cmp_eq_u32 s{sAct}, 1', f's_cselect_b32 s{t0}, s{t0}, {OOB}'])
    I(f's_mov_b32 s{t1}, {256*642}'); I(f'v_lshlrev_b32 v10, 2, v{vN}'); I(f'v_add_u32 v10, s{t0}, v10')
    I(f'v_mad_u32_u24 v{vWp}, v{vG}, s{t1}, v10'); I(f'v_sub_u32 v11, 3, v{vG}'); I(f'v_mad_u32_u24 v{vWm}, v11, s{t1}, v10')
    I(f's_movk_i32 s{t2}, 1024')
    I([f's_cmp_eq_u32 s{sT}, 0', f's_cselect_b32 s{t0}, {1024*642}, 0', f's_cselect_b32 s{t2}, 32, s{t2}'])
    I(f'v_mov_b32 v11, s{t0}'); I(f'v_cmp_eq_u32 vcc, 0, v{vG}'); I(f'v_cndmask_b32 v11, 0, v11, vcc'); I(f'v_sub_u32 v11, {256*642}, v11'); I(f'v_add_u32 v{vWm0}, v{vWm}, v11')
    sacc(t2,sT); smul(sB0,sT,642); smul(sB1,t2,642)
    I(f'v_mul_u32_u24 v4, {64*642}, v{vN}'); I(f'v_mov_b32 v5, s{sB0}'); I(f'v_mov_b32 v6, s{sB1}')
    I(f'v_and_b32 v7, 16, v{vL}'); I(f'v_cmp_eq_u32 vcc, 0, v7'); I(f'v_cndmask_b32 v5, v6, v5, vcc'); I(f'v_add_u32 v4, v4, v5')
    I(f'v_sub_u32 v5, {2048*642}, v4'); vconst(6,1024*642); I(f'v_cmp_eq_u32 vcc, 0, v4'); I(f'v_cndmask_b32 v5, v5, v6, vcc')
    I(f'v_cmp_gt_u32 vcc, 32, v{vL}'); I(f'v_cndmask_b32 v4, v5, v4, vcc')
    I([f's_cmp_eq_u32 s{sCh}, 0', f's_cselect_b32 s{t0}, 0, {OOB}']); I(f'v_add_u32 v254, s{t0}, v4')
    for i in range(4): vconst(vE0+i,OOB)
    smul(t0,sCt,5120); smul(t1,sWr,409600); sacc(t0,t1); sadd(sGb,t0,WS_WOF); sadd(sGe,sGb,409600)
    if R3:
        I(f's_lshr_b32 s{t0}, s2, 3')
        if E('P3MAP',1)==0: I(f's_and_b32 s{t1}, s{t0}, 7'); smul(t1,t1,5); I(f's_lshr_b32 s{t0}, s{t0}, 3'); smul(t0,t0,10)
        else: I(f's_and_b32 s{t1}, s{t0}, 3'); smul(t1,t1,10); I(f's_lshr_b32 s{t0}, s{t0}, 2'); smul(t0,t0,5)
        sacc(t0,t1); I(f's_lshr_b32 s{t0}, s{t0}, 2')
        I([f's_cmp_ge_u32 s{t0}, 10', f's_cselect_b32 s{t1}, 10, 0']); I(f's_sub_u32 s{sRot}, s{t0}, s{t1}')
    else: I(f's_mov_b32 s{sRot}, 0')
    smul(t0,sRot,40960); I(f's_add_u32 s{sGo}, s{sGb}, s{t0}')
    I(f'v_lshlrev_b32 v4, 3, v{vL}'); I(f's_lshl_b32 s{t0}, s{sW}, 10'); sadd(t0,t0,L_PP); I(f'v_add_u32 v213, s{t0}, v4')
    I(f's_lshl_b32 s{t0}, s{sDm}, 10'); sadd(t0,t0,WS_WOF); I([f's_cmp_lt_u32 s2, 200', f's_cselect_b32 s{sB0+3}, s{t0}, {OOB}'])
    I(f's_lshl_b32 s{t0}, s{sDm}, 2'); sadd(t0,t0,WS_FL+FL_E*128); I(f'v_mov_b32 v217, s{t0}')
    I(f'v_min_u32 v4, 49, v{vL}'); I(f'v_mul_u32_u24 v5, 52, v4'); I(f'v_lshrrev_b32 v5, 8, v5'); I(f'v_mad_u32_u24 v4, v5, 35, v4')
    smul(t0,sWr,400); smul(t1,sCt,5); sacc(t0,t1); I(f'v_add_u32 v4, s{t0}, v4'); I(f'v_lshlrev_b32 v4, 2, v4'); I(f'v_add_u32 v196, {WS_FL+FL_E*128}, v4')
    I(f's_lshl_b32 s{t0}, s{sGrp}, 1'); sacc(t0,sWc); I(f's_lshl_b32 s{t0}, s{t0}, 8'); sadd(t0,t0,WS_FL+FL_E*128)
    I(f'v_lshlrev_b32 v4, 2, v{vL}'); I(f'v_add_u32 v197, s{t0}, v4')
    I(f'v_lshlrev_b32 v218, 4, v{vL}'); I(f'v_add_u32 v219, 0x1000, v218')
weave([dmaB(i) for i in range(5)]+[dma_adv(SLOT)],cap(setup0))
I(f's_lshl_b32 s{t0}, s{sW}, 10'); I(f's_add_u32 m0, s{t0}, {L_PP}'); I(f'buffer_load_dwordx4 v213, {srd(sWO)}, s{sGo} offen lds')
I('s_mov_b64 exec, 0xffff'); I(f'buffer_store_dword v212, v217, {srd(sWS)}, s{sDl} offen sc1'); I('s_mov_b64 exec, -1')
S1=cap(setup1)
D=[]
if HALF: D+=[dmaA(i) for i in range(4)]+[dmaB(i) for i in range(5)]+[dma_adv(SLOT)]+[dmaA(i) for i in range(4)]+[advA(SLOT)]
else:
    for st in (1,2): D+=[dmaA(i) for i in range(4)]+[dmaB(i) for i in range(5)]+[dma_adv(SLOT)]
weave(D,S1)
stamp(1)
I(f's_cmp_eq_u32 s{sTyp}, 0'); I('s_cbranch_scc0 LsetFQ')
I(f's_mov_b32 s{t0}, {TB.KA_OFF}')
for i in range(2): I(f'buffer_load_dwordx4 {v(vKA+4*i,4)}, v218, {srd(sTAB)}, s{t0} offen offset:{1024*i}')
I(f's_lshl_b32 s{t0}, s{sWc}, 13'); smul(t1,sWr,1792); sacc(t0,t1); sadd(t0,t0,L_RED)
I(f'v_lshlrev_b32 v4, 2, v{vL}'); I(f'v_add_u32 v{vE0}, s{t0}, v4')
I(f's_lshl_b32 s{t0}, s{sGrp}, 1'); sacc(t0,sWc); I(f's_lshl_b32 s{t0}, s{t0}, 12'); sacc(t0,t1); sadd(t0,t0,WS_KVA)
I(f'v_add_u32 v{vE0+1}, s{t0}, v4')
I(f's_cmp_eq_u32 s{sWr}, 0'); I(f's_cselect_b32 s{t1}, 64, 8'); I(f'v_cmp_gt_u32 vcc, s{t1}, v{vL}')
I(f'v_cndmask_b32 v{vE0+2}, v{vE0+2}, v{vE0+1}, vcc')
I(f's_lshl_b32 s{t0}, s{sGrp}, 2'); sacc(t0,sW); I(f's_lshl_b32 s{t0}, s{t0}, 4'); sacc(t0,sRb)
I(f's_lshl_b32 s{t0}, s{t0}, 7'); sadd(t0,t0,WS_FL+FL_KV*128); I(f'v_mov_b32 v{vE0+3}, s{t0}')
I('s_branch Lsetdone')
lab('LsetFQ')
I(f's_cmp_eq_u32 s{sWc}, 0'); I('s_cbranch_scc0 Lsetdone')
for i in range(8):
    if i%4==0: I(f's_mov_b32 s{t0}, {TB.D1_OFF+1024*i}')
    I(f'buffer_load_dwordx4 {a_(224+4*i,4)}, v218, {srd(sTAB)}, s{t0} offen offset:{1024*(i%4)}')
I(f's_lshl_b32 s{t0}, s{sRb}, 1'); sacc(t0,sWr); smul(t0,t0,5120); smul(t1,sGrp,640); sacc(t0,t1)
I(f's_mov_b32 s{t1}, 163840'); I(f'v_lshlrev_b32 v4, 3, v{vN}'); I(f'v_mad_u32_u24 v4, v{vG}, s{t1}, v4'); I(f'v_add_u32 v{vE0}, s{t0}, v4')
I(f's_lshl_b32 s{t0}, s{sGrp}, 1'); sacc(t0,sWr); I(f's_lshl_b32 s{t0}, s{t0}, 4'); sacc(t0,sRb)
I(f's_lshl_b32 s{t0}, s{t0}, 7'); sadd(t0,t0,WS_FL+FL_Y*128); I(f'v_mov_b32 v{vE0+3}, s{t0}')
lab('Lsetdone')
def reads(F,ks):
    L=[]
    for mt in range(4): L.append(f'ds_read_b128 {v(F["A"]+4*mt,4)}, v{vRA+ks} offset:{2048*mt}')
    for nt in range(5):
        for h in range(2): L.append(f'ds_read_b64_tr_b16 {v(F["B"]+4*nt+2*h,2)}, v{vRB+nt} offset:{(32*ks+16*h)*160}')
    return L
def mfmas(F):
    L=[]
    for nt in range(5):
        for mt in range(4):
            c=v(ACC+(mt*5+nt)*4,4); L.append(f'{MF} {c}, {v(F["A"]+4*mt,4)}, {v(F["B"]+4*nt,4)}, {c}')
    return L
def block(M,R,X,pos):
    slots=[[] for _ in M]
    for g,x in R: slots[g].append(x)
    for g,x in zip(pos,X): slots[g].append(x)
    for m,s_ in zip(M,slots): I(m); emit(s_)
def adds(d): return [f'v_add_u32 v{r}, {d}, v{r}' for r in [vRA,vRB,vRB+1,vRB+2,vRB+3,vRB+4,vRA+1]]
I(f's_mov_b32 s{sCnt}, 0')
I(f's_waitcnt vmcnt({13 if HALF else 18}) lgkmcnt(0)'); I('s_barrier')
I(f's_add_u32 s{sTag}, s{sTag}, 0x9e3779b9')
stamp(3)
I('ds_read_b64_tr_b16 v[4:5], v213'); I('ds_read_b64_tr_b16 v[6:7], v213 offset:512')
emit(reads(FX,0)[:12])
I(f'v_mov_b32 v212, s{sTag}')
I('s_waitcnt lgkmcnt(12)'); I(f'buffer_store_dwordx4 v[4:7], v218, {srd(sWS)}, s{sB0+3} offen sc1')
emit(reads(FX,0)[12:])
def itertop(i=None):
    if TS and i==7: stamp(11)
    I('s_waitcnt lgkmcnt(0)')
lab('Lmain')
itertop()
pre=[f's_add_u32 s{sCnt}, s{sCnt}, 1', f's_mov_b32 s{sDl}, {SLOT}', f's_mov_b32 s{sDm}, {SLOT}',
     f's_and_b32 s{t0}, s{sCnt}, 3', f's_cselect_b32 s{sDl}, s{sDl}, {-3*SLOT}', f's_cmp_eq_u32 s{t0}, 1', f's_cselect_b32 s{sDm}, {-3*SLOT}, s{sDm}']
eflag=[f's_cmp_eq_u32 s{sCnt}, {3 if HALF else 2}','s_cbranch_scc0 Lnoef','s_mov_b64 exec, 1',f'buffer_store_dword v212, v217, {srd(sWS)}, 0 offen sc1','s_mov_b64 exec, -1','Lnoef:']
ad=adds(f's{sDl}')
R2=[(0,ad[0]),(0,ad[1]),(1,ad[2]),(1,ad[3]),(2,ad[4]),(2,ad[5]),(3,ad[6])]+[(i+2,r) for i,r in enumerate(reads(FX,0))]
if HALF:
    preH=pre+[f's_mov_b32 s{t1}, {SLOT}', f's_cmp_eq_u32 s{t0}, 2', f's_cselect_b32 s{t1}, {-3*SLOT}, s{t1}']+advB(f's{t1}')
    block(mfmas(FX),list(enumerate(reads(FY,1))),[dmaB(i) for i in range(5)]+[preH],[1,5,9,13,17,18])
    I('s_waitcnt vmcnt(9) lgkmcnt(0)'); I('s_barrier')
    block(mfmas(FY),R2,[dmaA(i) for i in range(4)]+[advA(f's{sDm}'),eflag],[1,6,11,16,18,19])
else:
    block(mfmas(FX),list(enumerate(reads(FY,1))),[dmaA(i) for i in range(4)]+[pre],[1,6,11,16,18])
    I('s_waitcnt vmcnt(13) lgkmcnt(0)'); I('s_barrier')
    block(mfmas(FY),R2,[dmaB(i) for i in range(5)]+[dma_adv(f's{sDm}'),eflag],[1,5,9,13,17,18,19])
I(f's_cmp_lt_u32 s{sCnt}, 7'); I('s_cbranch_scc1 Lmain')
def wload(base,vp,vm,vm0,i,which):
    mh,r=i>>2,i&3; sb=(sB0,sB1)[mh]
    if which==0:
        return [f's_add_u32 s{t0}, s{sb}, {64*r*642}', f'buffer_load_short_d16_hi v{base+i}, v{vp}, {srd(sWR)}, s{t0} offen', f'buffer_load_short_d16_hi v{base+8+i}, v{vp}, {srd(sWI)}, s{t0} offen']
    m=vm0 if i==0 else vm
    return [f's_sub_u32 s{t0}, {(1280-64*r-(256 if i==0 else 0))*642}, s{sb}', f'buffer_load_short_d16_hi v{base+16+i}, v{m}, {srd(sWR)}, s{t0} offen', f'buffer_load_short_d16_hi v{base+24+i}, v{m}, {srd(sWI)}, s{t0} offen']
WL=[wload(WP,vWp,vWm,vWm0,i,w) for i in range(8) for w in range(2)]
wl=0; vm=0
FLG=['v_mov_b32 v252, 0','v_mov_b32 v253, 0',f'buffer_load_short_d16_hi v252, v254, {srd(sWR)}, 0 offen offset:640',f'buffer_load_short_d16_hi v253, v254, {srd(sWI)}, 0 offen offset:640',f'buffer_load_dword v198, v196, {srd(sWS)}, 0 offen sc1', f'buffer_load_dword v199, v197, {srd(sWS)}, 0 offen sc1']
plan={ (7,0):0 if HALF else 3,(7,1):3,(8,0):3 if not HALF else 4,(8,1):3 if not HALF else 4,(9,0):2 if not HALF else 3,(9,1):2}
def pos(n,a=2,b=17): return [a+(b-a)*i//max(n-1,1) for i in range(n)]
for s_ in (7,8,9):
    itertop(s_)
    X=WL[wl:wl+plan[(s_,0)]]; wl+=plan[(s_,0)]
    if s_==7: X=([dmaB(i) for i in range(5)] if HALF else [])+[FLG]+X
    block(mfmas(FX),list(enumerate(reads(FY,1))),X,pos(len(X)))
    if s_==7: I(f's_waitcnt vmcnt({13+2*wl}) lgkmcnt(0)')
    elif s_==8: I(f's_waitcnt vmcnt({2*wl}) lgkmcnt(0)')
    else: I('s_waitcnt lgkmcnt(0)')
    I('s_barrier')
    if s_<9:
        ad=adds(SLOT if s_==8 else -3*SLOT)
        R2=[(0,ad[0]),(0,ad[1]),(1,ad[2]),(1,ad[3]),(2,ad[4]),(2,ad[5]),(3,ad[6])]+[(i+2,r) for i,r in enumerate(reads(FX,0))]
    else: R2=[]
    X=WL[wl:wl+plan[(s_,1)]]; wl+=plan[(s_,1)]
    block(mfmas(FY),R2,X,pos(len(X),3,16))
assert wl==16
I(f's_mov_b32 s{sAo}, 0x3fb8aa3b'); I(f's_mov_b32 s{sAo+1}, 0x358637bd')
I(f'v_cmp_ne_u32 vcc, s{sTag}, v198'); I(f'v_cmp_ne_u32 s[{t4}:{t5}], s{sTag}, v199'); I(f's_or_b64 vcc, vcc, s[{t4}:{t5}]'); I('s_cbranch_vccz Leok')
poll([196,197],198)
lab('Leok')
I('s_nop 3')
stamp(14)
def acc(mt,nt,r=0,n=1): return v(ACC+(mt*5+nt)*4+r,n)
def phi2(dst,src,tmp):
    I(f'v_pk_mul_f32 {v(tmp,2)}, {v(src,2)}, s[{sAo}:{sAo+1}] op_sel_hi:[1,0]')
    I(f'v_exp_f32 v{tmp}, v{tmp} clamp'); I(f'v_exp_f32 v{tmp+1}, v{tmp+1} clamp')
    I(f'v_max_f32 v{dst}, s{sAo+1}, v{src}'); I(f'v_max_f32 v{dst+1}, s{sAo+1}, v{src+1}')
    I(f'v_pk_add_f32 {v(dst,2)}, {v(dst,2)}, {v(tmp,2)}')
def bl(i):
    ks,nt=divmod(i,5)
    L=[f'buffer_load_dwordx4 {a_(4*i,4)}, v{218 if nt<4 else 219}, {srd(sWS)}, s{sGo} offen offset:{1024*(nt%4)}']
    return L+([f's_add_u32 s{sGo}, s{sGo}, 40960', f's_cmp_eq_u32 s{sGo}, s{sGe}', f's_cselect_b32 s{sGo}, s{sGb}, s{sGo}'] if nt==4 else [])
def bls(a,b): return [bl(i) for i in range(a,b)]
def bls_if_b(a,b):
    if a>=b: return []
    uid[0]+=1; L=f'Lb{uid[0]}'
    return [f's_cmp_eq_u32 s{sWc}, 0', f's_cbranch_scc1 {L}']+bls(a,b)+[L+':']
I(f's_cmp_eq_u32 s{sTyp}, 0'); I('s_cbranch_scc0 LepiFQ')
PK=100; VV=124; DD=148; PAIRS=TB.PAIRS
NB0=E('NB0',14); NB1=E('NB1',14)
def kvepi():
    for nt in (2,3,4):
        for mt in range(4):
            for p in range(2): I(f'v_cvt_pk_bf16_f32 v{VV+(nt-2)*8+mt*2+p}, {acc(mt,nt,2*p)}, {acc(mt,nt,2*p+1)}')
    I(f'v_cmp_gt_u32 vcc, 8, v{vN}'); vconst(4,0x3f803f80)
    I(f's_lshl_b32 s{t0}, s{sW}, 12'); sadd(t0,t0,L_RED)
    for i in range(8): I(f'v_cndmask_b32 v{VV+i}, v{VV+i}, v4, vcc')
    for i in range(8): I(f'v_add_u32 v{vKA+i}, s{t0}, v{vKA+i}')
    for nt in range(3):
        for mt in range(4):
            for p in range(2):
                b=ACC+(mt*5+nt)*4+2*p
                phi2(b,b,4+2*p); I(f'v_cvt_pk_bf16_f32 v{PK+nt*8+mt*2+p}, v{b}, v{b+1}')
        for kb in range(2):
            for i,(a,b) in enumerate(PAIRS):
                if a==nt: I(f'{MF} {v(DD+4*i,4)}, {v(PK+a*8+4*kb,4)}, {v(VV+(b-2)*8+4*kb,4)}, {"0" if kb==0 else v(DD+4*i,4)}')
        if nt>0:
            for i,(a,b) in enumerate(PAIRS):
                if a==nt-1: I(f'ds_write_b128 v{vKA+i}, {v(DD+4*i,4)}')
P=cap(kvepi)
emit(P)
for i,(a,b) in enumerate(PAIRS):
    if a==2: I(f'ds_write_b128 v{vKA+i}, {v(DD+4*i,4)}')
I('s_waitcnt lgkmcnt(0)'); I('s_barrier')
for i in range(7): I(f'ds_read2st64_b32 {v(16+2*i,2)}, v{vE0} offset0:{i} offset1:{i+16}')
for i in range(7):
    I(f's_waitcnt lgkmcnt({6-i})'); I(f'v_add_f32 v{16+2*i}, v{16+2*i}, v{17+2*i}')
    I(f'buffer_atomic_add_f32 v{16+2*i}, v{vE0+1+(i==6)}, {srd(sWS)}, 0 offen offset:{256*i} {ATP}')
stamp(15)
I('s_branch Lp2a')
lab('LepiFQ')
I(f's_cmp_eq_u32 s{sWc}, 0'); I('s_cbranch_scc0 LepiQ')
XB=100; YD=140
def xcv(nt):
    for mt in range(4):
        for p in range(2): I(f'v_cvt_pk_bf16_f32 v{XB+nt*8+mt*2+p}, {acc(mt,nt,2*p)}, {acc(mt,nt,2*p+1)}')
def ymf(nt):
    for kb in range(2):
        for jt in range(4):
            d=v(YD+(nt&1)*16+4*jt,4)
            I(f'{MF} {d}, {a_(224+(jt*2+kb)*4,4)}, {v(XB+nt*8+4*kb,4)}, {"0" if kb==0 else d}')
def yst(nt):
    for jt in range(4):
        b=YD+(nt&1)*16+4*jt; o=172+jt*2
        I([f'v_cvt_pk_bf16_f32 v{o}, v{b}, v{b+1}', f'v_cvt_pk_bf16_f32 v{o+1}, v{b+2}, v{b+3}',
           f'buffer_store_dwordx2 {v(o,2)}, v{vE0}, {srd(sWS)}, s{t0+jt} offen offset:{128*nt} sc1'])
for jt in range(4): I(f's_mov_b32 s{t0+jt}, {4*jt*163840}')
xcv(0)
weave(cap(ymf,0),cap(xcv,1))
for nt in range(5):
    if nt<4:
        F_=(cap(xcv,nt+2) if nt<3 else [])
        Y_=cap(yst,nt)
        M=cap(ymf,nt+1)
        for i,m in enumerate(M):
            I(m)
            if i<4: emit(F_[2*i:2*i+2])
            else: emit(Y_[i-4])
    else: yst(nt)
stamp(15)
I('s_waitcnt vmcnt(0)'); setflag(vE0+3,4)
stamp(16)
I(f's_cmp_eq_u32 s{sAct}, 0'); I('s_cbranch_scc1 Lp3')
T1,T2,W3,YF,EF,TM,PQ=16,48,112,144,160,80,184
vY,vF,vXW,vXR,vRS,vLF=8,9,10,11,12,13
def tgen():
    I(f'v_lshlrev_b32 v4, 6, v{vN}'); I(f'v_add_u32 v4, s{sT}, v4'); I(f'v_cvt_f32_u32 v4, v4'); I(f'v_mul_f32 v4, 0x3a000000, v4'); I(f'v_add_f32 v5, 0.5, v4')
    I(f'v_lshlrev_b32 v6, 2, v{vG}'); I(f'v_cvt_f32_u32 v6, v6')
    for ks in range(2):
        for j in range(4):
            if 16*ks+j: I(f'v_add_f32 v7, {float(16*ks+j) if 16*ks+j in (1,2,4) else hex(struct.unpack("<I",struct.pack("<f",float(16*ks+j)))[0])}, v6')
            n2r=7 if 16*ks+j else 6
            for mh in range(2):
                c,s_=TM+4*mh,TM+4*mh+1
                I(f'v_mul_f32 v{s_}, v{4+mh}, v{n2r}'); I(f'v_cos_f32 v{c}, v{s_}'); I(f'v_sin_f32 v{s_}, v{s_}')
            for mh in range(2):
                c,s_=TM+4*mh,TM+4*mh+1
                I(f'v_cvt_pk_bf16_f32 v{T1+(mh*2+ks)*4+j}, v{c}, -v{s_}'); I(f'v_cvt_pk_bf16_f32 v{T1+((2+mh)*2+ks)*4+j}, v{s_}, v{c}')
    I(f'v_lshlrev_b32 v4, 8, v{vG}'); I(f'v_add_u32 v4, s{sT}, v4'); I(f'v_cvt_f32_u32 v4, v4'); I(f'v_mul_f32 v4, 0x3a000000, v4')
    I(f'v_cvt_f32_u32 v6, v{vN}'); I(f'v_add_f32 v7, 0x41800000, v6')
    for ks in range(2):
        for e in range(4):
            cst=0.5*ks+e/32.0
            if cst: I(f'v_add_f32 v5, {hex(struct.unpack("<I",struct.pack("<f",cst))[0])}, v4')
            kr=5 if cst else 4
            for h in range(2):
                c,s_=TM+h*8+e,TM+h*8+4+e
                I(f'v_mul_f32 v{s_}, v{kr}, v{6+h}'); I(f'v_cos_f32 v{c}, v{s_}'); I(f'v_sin_f32 v{s_}, v{s_}')
        for h in range(2):
            c,s_=TM+h*8,TM+h*8+4; u0=T2+(h*2+ks)*4; u1=T2+((2+h)*2+ks)*4
            for p in range(2):
                I(f'v_cvt_pk_bf16_f32 v{u0+p}, v{c+2*p}, v{c+2*p+1}'); I(f'v_cvt_pk_bf16_f32 v{u0+2+p}, v{s_+2*p}, v{s_+2*p+1}')
                I(f'v_cvt_pk_bf16_f32 v{u1+p}, -v{s_+2*p}, -v{s_+2*p+1}'); I(f'v_mov_b32 v{u1+2+p}, v{u0+p}')
def p2addr():
    smul(t0,sCh,32*0x334); sadd(t1,t0,31*0x334); I(f's_lshr_b32 s{t0}, s{t0}, 16'); I(f's_lshr_b32 s{t1}, s{t1}, 16')
    I(f'v_mov_b32 v4, s{t0}'); I(f'v_mov_b32 v5, s{t1}'); I(f'v_cmp_gt_u32 vcc, 32, v{vL}'); I(f'v_cndmask_b32 v4, v5, v4, vcc')
    I(f'v_and_b32 v5, 31, v{vL}'); I(f'v_lshl_add_u32 v4, v4, 5, v5'); I(f'v_lshlrev_b32 v4, 7, v4'); I(f'v_add_u32 v{vF}, {WS_FL+FL_Y*128}, v4')
    I(f's_lshr_b32 s{t0}, s{sT}, 1'); smul(t0,t0,163840); I(f's_lshl_b32 s{t1}, s{sCh}, 8'); sacc(t0,t1); I(f's_lshl_b32 s{t1}, s{sWr}, 2'); sacc(t0,t1)
    I(f'v_mul_u32_u24 v4, 20480, v{vG}'); I(f'v_lshl_add_u32 v4, v{vN}, 3, v4'); I(f'v_add_u32 v{vY}, s{t0}, v4')
    smul(t0,sWc,8704); sadd(t0,t0,L_XCH[0])
    I(f's_lshl_b32 s{t1}, s{sWr}, 5'); sacc(t1,t0)
    I(f'v_mul_u32_u24 v{vXW}, 272, v{vN}'); I(f'v_lshl_add_u32 v{vXW}, v{vG}, 6, v{vXW}'); I(f'v_add_u32 v{vXW}, s{t1}, v{vXW}')
    smul(t1,sWr,16*272); sacc(t1,t0)
    I(f'v_mul_u32_u24 v{vXR}, 272, v{vG}'); I(f'v_lshl_add_u32 v{vXR}, v{vN}, 4, v{vXR}'); I(f'v_add_u32 v{vXR}, s{t1}, v{vXR}')
    smul(t0,sWr,16*81920); I(f's_lshl_b32 s{t1}, s{sCh}, 12'); sacc(t0,t1)
    I(f's_lshr_b32 s{t1}, s{sT}, 1'); I(f's_lshl_b32 s{t1}, s{t1}, 8'); sacc(t0,t1); sadd(t0,t0,WS_R)
    I(f's_mov_b32 s{t1}, 81920'); I(f'v_lshlrev_b32 v{vRS}, 4, v{vN}'); I(f'v_mad_u32_u24 v{vRS}, v{vG}, s{t1}, v{vRS}'); I(f'v_add_u32 v{vRS}, s{t0}, v{vRS}')
    I(f's_lshl_b32 s{t0}, s{sWc}, 2'); sadd(t0,t0,L_FLG); I(f'v_mov_b32 v{vLF}, s{t0}')
    I(f's_lshl_b32 s{t0}, s{sCh}, 3'); sacc(t0,sGrp)
    I(f's_lshl_b32 s{t1}, s{sCh}, 4'); I(f's_lshr_b32 s{t2}, s{sT}, 1'); sacc(t1,t2); I(f's_sub_u32 s{t1}, s{t1}, 128')
    I([f's_cmp_eq_u32 s{sTyp}, 0', f's_cselect_b32 s{t0}, s{t0}, s{t1}', f's_cselect_b32 s{sAct}, 3, 1'])
    I(f's_lshl_b32 s{t0}, s{t0}, 7'); sadd(t0,t0,WS_FL+FL_R*128); I(f'v_mov_b32 v15, s{t0}')
TG=cap(tgen)
def t0loads():
    for tb,off in ((T1,TB.T1_OFF),(T2,TB.T2_OFF)):
        for i in range(8):
            if i%4==0: I(f's_mov_b32 s{t0}, {off+1024*i}')
            I(f'buffer_load_dwordx4 {v(tb+4*i,4)}, v218, {srd(sTAB)}, s{t0} offen offset:{1024*(i%4)}')
lab('Lp2a')
I(f's_cmp_eq_u32 s{sT}, 0'); I('s_cbranch_scc0 LtgK')
t0loads(); I('s_waitcnt vmcnt(16)'); I('s_branch Lpub1')
lab('LtgK')
emit(TG)
I('s_waitcnt vmcnt(0)')
lab('Lpub1')
I(f's_cmp_eq_u32 s{sTyp}, 0'); I('s_cbranch_scc0 Lp2b')
setflag(vE0+3,4)
stamp(16)
lab('Lp2b')
NB2=E('NB2',12)
emit(bls_if_b(0,NB2))
I(f's_cmp_eq_u32 s{sCh}, 0'); I('s_cbranch_scc0 Lnosp1')
I(f's_lshl_b32 s{t0}, s{sW}, 9'); sadd(t0,t0,L_PP)
I(f'v_lshlrev_b32 v4, 2, v{vL}'); I(f'v_add_u32 v4, s{t0}, v4'); I(f'v_lshlrev_b32 v5, 4, v{vG}'); I(f'v_add_u32 v5, s{t0}, v5')
I(f'ds_write_b32 v4, v252'); I(f'ds_write_b32 v4, v253 offset:256')
for arr,off in ((0,0),(8,256),(16,128),(24,384)):
    for mh in range(2): I(f'ds_read_b128 {v(W3+arr+4*mh,4)}, v5 offset:{off+64*mh}')
lab('Lnosp1')
p2addr()
I('s_waitcnt lgkmcnt(0)')
stamp(17)
poll([vF],14)
stamp(18)
for ks in range(2):
    for i in range(4):
        I(f's_mov_b32 s{t0}, {(16*ks+i)*5120}')
        for ri in range(2): I(f'buffer_load_dword v{YF+(ri*2+ks)*4+i}, v{vY}, {srd(sWS)}, s{t0} offen offset:{128*ri} {HS}')
for ks in range(2):
    I(f's_waitcnt vmcnt({8-8*ks})')
    for mt in (0,2,1,3):
        for ri in range(2):
            d=v(EF+(mt*2+ri)*4,4)
            I(f'{MF} {d}, {v(T1+(mt*2+ks)*4,4)}, {v(YF+(ri*2+ks)*4,4)}, {"0" if ks==0 else d}')
stamp(19)
EF2=EF
def pk(op,d,*s,neg=None):
    t=f'v_pk_{op}_f32 {v(d,2)}, '+', '.join(v(x,2) for x in s)
    if neg: t+=f' neg_lo:{neg} neg_hi:{neg}'
    I(t)
PQ=16
Pre,Pim,Qre,Qim=PQ,PQ+8,PQ+16,PQ+24
def EFr(typ,mh,ri,p): return EF+((typ*2+mh)*2+ri)*4+2*p
for mh in range(2):
    for p in range(2):
        o=mh*4+2*p; Er,Ei,Fr,Fi=EFr(0,mh,0,p),EFr(0,mh,1,p),EFr(1,mh,0,p),EFr(1,mh,1,p)
        wpr,wpi,wmr,wmi=WP+o,WP+8+o,WP+16+o,WP+24+o
        T=TM+(p*16)
        pk('add',T,Er,Fi); pk('add',T+2,Ei,Fr,neg='[0,1]'); pk('add',T+4,Er,Fi,neg='[0,1]'); pk('add',T+6,Ei,Fr)
        pk('mul',T+8,T,wpr); pk('mul',T+10,T,wpi); pk('mul',T+12,T+4,wmr); pk('mul',T+14,T+4,wmi)
        pk('fma',T+8,T+2,wpi,T+8,neg='[1,0,0]'); pk('fma',T+10,T+2,wpr,T+10); pk('fma',T+12,T+6,wmi,T+12,neg='[1,0,0]'); pk('fma',T+14,T+6,wmr,T+14)
        pk('add',Pre+o,T+8,T+12); pk('add',Pim+o,T+10,T+14); pk('add',Qre+o,T+14,T+10,neg='[0,1]'); pk('add',Qim+o,T+8,T+12,neg='[0,1]')
I(f's_cmp_eq_u32 s{sT}, 0'); I('s_cbranch_scc0 Lnot0')
I('s_mov_b64 exec, 0xffff')
Er,Ei,Fr,Fi=EFr(0,0,0,0),EFr(0,0,1,0),EFr(1,0,0,0),EFr(1,0,1,0)
I(f'v_mul_f32 v{Pre}, v{Er}, v{WP}'); I(f'v_fma_f32 v{Pre}, -v{Ei}, v{WP+8}, v{Pre}')
I(f'v_mul_f32 v{Pim}, v{Er}, v{WP+8}'); I(f'v_fma_f32 v{Pim}, v{Ei}, v{WP}, v{Pim}')
I(f'v_mul_f32 v{Qre}, v{Fr}, v{WP+16}'); I(f'v_fma_f32 v{Qre}, -v{Fi}, v{WP+24}, v{Qre}')
I(f'v_mul_f32 v{Qim}, v{Fr}, v{WP+24}'); I(f'v_fma_f32 v{Qim}, v{Fi}, v{WP+16}, v{Qim}')
I('s_mov_b64 exec, -1')
lab('Lnot0')
I(f's_cmp_eq_u32 s{sCh}, 0'); I('s_cbranch_scc0 Lnosp2')
I(f's_mov_b32 exec_lo, 0x10001'); I(f's_mov_b32 exec_hi, 0x10001')
for mh in range(2):
    for p in range(2):
        o=mh*4+2*p; Er,Ei,Fr,Fi=EFr(0,mh,0,p),EFr(0,mh,1,p),EFr(1,mh,0,p),EFr(1,mh,1,p)
        T=TM
        pk('add',T,WP+o,WP+16+o); pk('add',T+2,WP+8+o,WP+24+o,neg='[0,1]'); pk('add',T+4,W3+o,W3+16+o); pk('add',T+6,W3+8+o,W3+24+o,neg='[0,1]')
        for q in range(4): I(f'v_pk_mul_f32 {v(T+2*q,2)}, {v(T+2*q,2)}, 0.5')
        pk('mul',Pre+o,Er,T); pk('mul',Qre+o,Fr,T); pk('mul',Pim+o,Ei,T+4); pk('mul',Qim+o,Fi,T+4)
        pk('fma',Pre+o,Fr,T+2,Pre+o); pk('fma',Qre+o,Er,T+2,Qre+o,neg='[1,0,0]'); pk('fma',Pim+o,Fi,T+6,Pim+o); pk('fma',Qim+o,Ei,T+6,Qim+o,neg='[1,0,0]')
I(f's_cmp_eq_u32 s{sT}, 0'); I('s_cbranch_scc0 Lnocorner')
I('s_mov_b64 exec, 1')
Er,Ei,Fr,Fi=EFr(0,0,0,0),EFr(0,0,1,0),EFr(1,0,0,0),EFr(1,0,1,0)
for d,x,w in ((Pre,Er,WP),(Pim,Ei,W3),(Qre,Fr,WP+16),(Qim,Fi,W3+16)):
    I(f'v_mul_f32 v{d}, v{x}, v{w}'); I(f'v_mul_f32 v{d}, 0.5, v{d}')
lab('Lnocorner')
I('s_mov_b64 exec, -1')
lab('Lnosp2')
for mh in range(2):
    for ri in range(2):
        for q,src in enumerate(((Pre,Pim)[ri],(Qre,Qim)[ri])):
            for p in range(2): I(f'v_cvt_pk_bf16_f32 v{YF+(ri*2+mh)*4+2*q+p}, v{src+mh*4+2*p}, v{src+mh*4+2*p+1}')
for ks in range(2):
    for nt in range(4):
        for ri in range(2):
            d=v(EF+(nt*2+ri)*4,4)
            I(f'{MF} {d}, {v(YF+(ri*2+ks)*4,4)}, {v(T2+(nt*2+ks)*4,4)}, {"0" if ks==0 else d}')
for nt in range(4):
    for ri in range(2):
        for p in range(2): I(f'v_cvt_pk_bf16_f32 v{TM+nt*4+ri*2+p}, v{EF+(nt*2+ri)*4+2*p}, v{EF+(nt*2+ri)*4+2*p+1}')
    I(f'ds_write_b128 v{vXW}, {v(TM+nt*4,4)} offset:{(nt&1)*16*272+(nt>>1)*16}')
stamp(20)
ldssync(vLF,14)
for i in range(4): I(f'ds_read_b128 {v(TM+16+4*i,4)}, v{vXR} offset:{4*272*i}')
for i in range(4):
    I(f's_mov_b32 s{t0}, {4*81920*i}'); I(f's_waitcnt lgkmcnt({3-i})')
    I(f'buffer_store_dwordx4 {v(TM+16+4*i,4)}, v{vRS}, {srd(sWS)}, s{t0} offen sc1')
vconst(10,L_FLG+8); vconst(11,1)
stamp(21)
I('s_waitcnt vmcnt(0)')
I('s_mov_b64 exec, 1'); I('ds_add_rtn_u32 v11, v10, v11'); I('s_mov_b64 exec, -1'); I('s_waitcnt lgkmcnt(0)')
I(f'v_readfirstlane_b32 s{t0}, v11'); I(f's_cmp_eq_u32 s{t0}, s{sAct}'); I('s_cbranch_scc0 Lnopub')
setflag(15,12)
lab('Lnopub')
stamp(22)
I(f's_cmp_eq_u32 s{sWc}, 0'); I('s_cbranch_scc1 Lp3')
if E('WGW',1):
    I(f's_mov_b32 s{sTo}, 0x400000'); lab('Lwgw')
    I(f'ds_read_b32 v11, v10'); I('s_waitcnt lgkmcnt(0)'); I(f'v_cmp_gt_u32 vcc, 4, v11')
    I(f's_cbranch_vccz Lwgwd'); I(f's_sub_u32 s{sTo}, s{sTo}, 1'); I(f's_cbranch_scc0 Lwgw'); lab('Lwgwd')
emit(bls(NB2,50))
I('s_branch Lp3')
lab('LepiQ')
vPW,vPR,vKR,vOS,vO5,vKW,vKP=4,5,100,104,106,108,112
I(f's_lshl_b32 s{t1}, s{sRb}, 1'); sacc(t1,sWr); smul(t2,t1,1280); smul(t3,sGrp,8*40960); sacc(t2,t3)
I(f'v_and_b32 v8, 7, v{vL}'); I(f'v_lshlrev_b32 v8, 4, v8'); I(f'v_lshrrev_b32 v9, 3, v{vL}'); I(f'v_mul_u32_u24 v10, 40960, v9'); I(f'v_add_u32 v10, v10, v8')
GX=120; GW=160
for j in range(10):
    I(f'buffer_load_dwordx4 {v(GX+4*j,4)}, v10, {srd(sX)}, s{t2} offen offset:{128*j}')
    I(f'buffer_load_dwordx4 {v(GW+4*j,4)}, v8, {srd(sGATE)}, 0 offen offset:{128*j}')
I(f's_lshl_b32 s{t2}, s{t1}, 8'); I(f's_lshl_b32 s{t3}, s{sGrp}, 5'); sacc(t2,t3); sadd(t2,t2,WS_G)
I(f'v_lshlrev_b32 v9, 2, v9'); I(f'v_add_u32 v9, s{t2}, v9'); vconst(10,OOB); I(f'v_cmp_eq_u32 vcc, 0, v8'); I(f'v_cndmask_b32 v114, v10, v9, vcc')
smul(t0,sWr,L_PQ[1]-L_PQ[0]); sadd(t0,t0,L_PQ[0])
I(f'v_mul_u32_u24 v{vPW}, {PQS}, v{vN}'); I(f'v_lshl_add_u32 v{vPW}, v{vG}, 3, v{vPW}'); I(f'v_add_u32 v{vPW}, s{t0}, v{vPW}')
def qepi():
    for nt in range(5):
        for mt in range(4):
            b=ACC+(mt*5+nt)*4
            phi2(b,b,8); phi2(b+2,b+2,10)
            I(f'v_cvt_pk_bf16_f32 v{b}, v{b}, v{b+1}'); I(f'v_cvt_pk_bf16_f32 v{b+1}, v{b+2}, v{b+3}')
            I(f'ds_write_b64 v{vPW}, {v(b,2)} offset:{16*nt*PQS+32*mt}')
qepi()
I('s_waitcnt vmcnt(0)')
vconst(8,0); vconst(9,0)
for i in range(40): I(f'v_dot2_f32_bf16 v{8+(i&1)}, v{GX+i}, v{GW+i}, v{8+(i&1)}')
I('s_nop 2'); I('v_add_f32 v8, v8, v9')
for ctl in ('quad_perm:[1,0,3,2]','quad_perm:[2,3,0,1]','row_half_mirror'):
    I('s_nop 1'); I(f'v_add_f32_dpp v8, v8, v8 {ctl} row_mask:0xf bank_mask:0xf')
I('v_cvt_pk_bf16_f32 v8, v8, v8'); I('v_and_b32 v8, 0xffff0000, v8'); I(f'v_mul_f32 v8, s{sAo}, v8'); I('v_exp_f32 v8, -v8'); I('v_add_f32 v8, 1.0, v8'); I('v_rcp_f32 v8, v8')
I('v_cvt_pk_bf16_f32 v8, v8, v8'); I('v_and_b32 v8, 0xffff0000, v8')
I(f'buffer_store_dword v8, v114, {srd(sWS)}, 0 offen sc1')
I(f'v_bfe_u32 v8, v{vL}, 2, 2'); I(f'v_lshl_add_u32 v8, v{vG}, 3, v8'); I(f'v_and_b32 v9, 3, v{vL}'); I(f'v_lshlrev_b32 v9, 3, v9'); I(f'v_add_u32 v9, s{t0}, v9')
for hh in range(2):
    I(f'v_add_u32 v10, {4*hh}, v8'); I(f'v_min_u32 v10, 19, v10'); I(f'v_mul_u32_u24 v10, {PQS}, v10'); I(f'v_add_u32 v{vPR+hh}, v10, v9')
smul(t1,sWr,5504); sadd(t1,t1,132864)
for i in range(4): vconst(8+i,0)
I(f'v_add_u32 v12, s{t1}, v218')
for i in range(5): I(f'ds_write_b128 v12, v[8:11] offset:{1024*i}')
I(f's_mov_b64 exec, 0xffffff'); I(f'ds_write_b128 v12, v[8:11] offset:5120'); I('s_mov_b64 exec, -1')
for i in range(4):
    I(f'v_add_u32 v8, {64*i}, v{vL}'); I(f'v_mul_u32_u24 v9, 0xc31, v8'); I(f'v_lshrrev_b32 v9, 16, v9')
    I(f'v_mul_u32_u24 v10, 21, v9'); I(f'v_sub_u32 v10, v8, v10')
    I(f'v_cmp_lt_u32 vcc, 4, v9'); I(f'v_cndmask_b32 v11, 0, 1, vcc')
    I(f'v_mad_u32_u24 v10, v11, 21, v10'); I(f'v_mul_u32_u24 v11, 5, v11'); I(f'v_sub_u32 v9, v9, v11')
    I(f'v_lshlrev_b32 v10, 6, v10'); I(f'v_lshl_add_u32 v10, v9, 3, v10'); I(f'v_add_u32 v{vKW+i}, s{t1}, v10')
vconst(11,L_PP); I(f'v_cmp_gt_u32 vcc, 18, v{vL}'); I(f'v_cndmask_b32 v{vKW+3}, v11, v{vKW+3}, vcc')
I(f'v_lshlrev_b32 v8, 4, v{vG}'); I(f'v_add_u32 v8, s{t1}, v8')
I(f'v_lshl_add_u32 v{vKR}, v{vN}, 6, v8'); I(f'v_add_u32 v{vKR+1}, {21*64}, v{vKR}')
I(f'v_and_b32 v9, 3, v{vN}'); I(f'v_lshrrev_b32 v10, 2, v{vN}')
for hb in range(2):
    I(f'v_and_b32 v11, 1, v10'); I(f'v_lshl_add_u32 v11, v11, 1, v9'); I(f'v_add_u32 v11, {21*hb+16}, v11')
    I(f'v_lshrrev_b32 v12, 1, v10'); I(f'v_cmp_eq_u32 vcc, {hb}, v12'); I(f'v_cmp_gt_u32 s[{t4}:{t5}], 2, v9'); I(f's_and_b64 vcc, vcc, s[{t4}:{t5}]')
    I(f'v_cndmask_b32 v11, 42, v11, vcc'); I(f'v_cmp_eq_u32 vcc, {2+hb}, v9'); I(f'v_cndmask_b32 v11, v11, {21*hb+20}, vcc')
    I(f'v_lshl_add_u32 v{vKR+2+hb}, v11, 6, v8')
I(f's_lshl_b32 s{t1}, s{sRb}, 1'); sacc(t1,sWr); smul(t2,t1,81920); sadd(t2,t2,WS_O)
smul(t3,sGrp,10)
for hp in range(2):
    I(f'v_add_u32 v8, {5*hp}, v{vG}'); I(f'v_add_u32 v8, s{t3}, v8')
    I(f'v_lshrrev_b32 v9, 2, v8'); I(f'v_and_b32 v8, 3, v8'); I(f'v_lshlrev_b32 v9, 12, v9'); I(f'v_lshl_add_u32 v9, v8, 8, v9')
    I(f'v_lshl_add_u32 v9, v{vN}, 4, v9'); I(f'v_add_u32 v{vOS+hp}, s{t2}, v9')
    sadd(t4,t3,5*hp+4); I(f's_lshr_b32 s{t5}, s{t4}, 2'); I(f's_lshl_b32 s{t5}, s{t5}, 12'); I(f's_and_b32 s{t4}, s{t4}, 3'); I(f's_lshl_b32 s{t4}, s{t4}, 8')
    sacc(t4,t5); sacc(t4,t2)
    I(f'v_lshlrev_b32 v9, 10, v{vG}'); I(f'v_lshl_add_u32 v9, v{vN}, 4, v9'); I(f'v_add_u32 v{vO5+hp}, s{t4}, v9')
I(f's_lshl_b32 s{t1}, s{t1}, 3'); sacc(t1,sGrp); I(f's_lshl_b32 s{t1}, s{t1}, 7'); sadd(t1,t1,WS_FL+FL_O*128); I(f'v_mov_b32 v15, s{t1}')
I(f's_lshl_b32 s{t1}, s{sGrp}, 13'); sadd(t1,t1,WS_KVA)
I(f'v_add_u32 v{vKP}, s{t1}, v218'); vconst(9,OOB); I(f'v_cmp_gt_u32 vcc, 18, v{vL}'); I(f'v_cndmask_b32 v{vKP+1}, v9, v{vKP}, vcc')
I(f's_lshl_b32 s{t1}, s{sGrp}, 6')
I(f'v_add_u32 v8, s{t1}, v{vL}'); I(f'v_lshlrev_b32 v8, 7, v8'); I(f'v_add_u32 v13, {WS_FL+FL_KV*128}, v8')
KF=16; QF=120; OD=48; O5=184; PB=48
I('s_waitcnt lgkmcnt(0)')
for u in range(8):
    rt,hp=u>>1,u&1
    for hb in range(2):
        for hh in range(2): I(f'ds_read_b64_tr_b16 {v(QF+u*8+hb*4+2*hh,2)}, v{vPR+hh} offset:{(2*hp+hb)*20*PQS+32*rt}')
    if u%2==1: I('s_waitcnt lgkmcnt(4)')
I(f's_mov_b32 s{sEx}, -1'); I(f's_mov_b32 s{sEx+1}, 0'); I(f's_movk_i32 s{t0}, 0x1000')
NQ=E('NQ',40)
emit(bls(0,NQ))
stamp(17)
poll([13],9)
stamp(18)
for hp in range(2):
    for i in range(4): I(f'buffer_load_dwordx4 {v(PB+hp*16+4*i,4)}, v{vKP+(i==3)}, {srd(sWS)}, {"0" if hp==0 else "s%d"%t0} offen offset:{1024*i} sc1')
for hp in range(2):
    for i in range(4):
        b=PB+hp*16+4*i
        I(f's_waitcnt vmcnt({7-hp*4-i})')
        I(f'v_cvt_pk_bf16_f32 v{b}, v{b}, v{b+1}'); I(f'v_cvt_pk_bf16_f32 v{b+1}, v{b+2}, v{b+3}')
        I(f'ds_write_b64 v{vKW+i}, {v(b,2)} offset:{2752*hp}')
for hp in range(2):
    for j in (2,0,3,1): I(f'ds_read_b128 {v(KF+(hp*4+j)*4,4)}, v{vKR+j} offset:{2752*hp}')
stamp(19)
def omf(u):
    hp=u&1; q=QF+u*8; d=OD+(u%4)*12
    I(f'{MF} {v(d+8,4)}, {v(KF+(hp*4+2)*4,4)}, {v(q,4)}, 0')
    I(f'{MF} {v(d,4)}, {v(KF+(hp*4+0)*4,4)}, {v(q,4)}, 0')
    I(f'{MF} {v(d+8,4)}, {v(KF+(hp*4+3)*4,4)}, {v(q+4,4)}, {v(d+8,4)}')
    I(f'{MF} {v(d+4,4)}, {v(KF+(hp*4+1)*4,4)}, {v(q+4,4)}, 0')
def ofin(u):
    rt,hp=u>>1,u&1; d=OD+(u%4)*12; o=192+(u&1)*4
    I(f'v_pk_add_f32 {v(d+10,2)}, {v(d+10,2)}, s[{sAo}:{sAo+1}] op_sel:[0,1]')
    I(f'v_rcp_f32 v{d+10}, v{d+10}'); I(f'v_rcp_f32 v{d+11}, v{d+11}')
    I('s_nop 0')
    for p in range(2): I(f'v_pk_mul_f32 {v(d+2*p,2)}, {v(d+2*p,2)}, {v(d+10,2)} op_sel_hi:[1,0]')
    for p in range(2): I(f'v_pk_mul_f32 {v(d+4+2*p,2)}, {v(d+4+2*p,2)}, {v(d+10,2)} op_sel:[0,1]')
    I(f'v_cndmask_b32 v{d+10}, v{d+11}, v{d+10}, s[{sEx}:{sEx+1}]')
    for p in range(4): I(f'v_cvt_pk_bf16_f32 v{o+p}, v{d+2*p}, v{d+2*p+1}')
    I(f'buffer_store_dwordx4 {v(o,4)}, v{vOS+hp}, {srd(sWS)}, 0 offen offset:{1024*rt} sc1')
    I(f'v_pk_mul_f32 {v(d+8,2)}, {v(d+8,2)}, {v(d+10,2)} op_sel_hi:[1,0]')
    I(f'v_cvt_pk_bf16_f32 v{O5+hp*4+rt}, v{d+8}, v{d+9}')
I('s_waitcnt lgkmcnt(4)'); omf(0); I('s_waitcnt lgkmcnt(0)'); omf(1)
for u in range(8):
    if u+2<8: weave(cap(ofin,u),cap(omf,u+2))
    else: ofin(u)
for hp in range(2):
    b=O5+hp*4
    I(f'v_permlane32_swap_b32 v{b}, v{b+2}'); I(f'v_permlane32_swap_b32 v{b+1}, v{b+3}')
    I(f'v_permlane16_swap_b32 v{b}, v{b+1}'); I(f'v_permlane16_swap_b32 v{b+2}, v{b+3}')
    I(f'buffer_store_dwordx4 {v(b,4)}, v{vO5+hp}, {srd(sWS)}, 0 offen sc1')
stamp(21)
I('s_waitcnt vmcnt(0)'); setflag(15,10)
stamp(22)
emit(bls(NQ,50))
lab('Lp3')
vA,vGg,vFa=4,5,8
VD2=208
I(f'v_lshlrev_b32 v6, 4, v{vL}')
I(f's_cmp_eq_u32 s{sWc}, 0'); I('s_cbranch_scc0 Lp3b')
for i in range(8):
    if i%4==0: I(f's_mov_b32 s{t0}, {TB.D2_OFF+1024*i}')
    I(f'buffer_load_dwordx4 {v(VD2+4*i,4)}, v6, {srd(sTAB)}, s{t0} offen offset:{1024*(i%4)}')
I(f'v_lshrrev_b32 v{vA}, 2, v{vN}'); I(f'v_lshlrev_b32 v{vA}, 8, v{vA}'); I(f'v_lshl_add_u32 v{vA}, v{vG}, 6, v{vA}'); I(f'v_and_b32 v7, 3, v{vN}'); I(f'v_lshl_add_u32 v{vA}, v7, 4, v{vA}')
I(f's_mov_b32 s{sBo}, {WS_R}')
smul(t0,sWr,80); I(f's_movk_i32 s{t1}, 191'); I(f's_cmp_eq_u32 s{sWr}, 0'); I(f's_cselect_b32 s{t1}, 79, s{t1}')
for i in range(2):
    I(f'v_add_u32 v7, {64*i}, v{vL}'); I(f'v_add_u32 v7, s{t0}, v7'); I(f'v_min_u32 v7, s{t1}, v7'); I(f'v_lshlrev_b32 v7, 7, v7'); I(f'v_add_u32 v{vFa+i}, {WS_FL+FL_R*128}, v7')
def fhex(x): return hex(struct.unpack('<I',struct.pack('<f',x))[0])
GP,G1,G16,GT=16,26,36,48
I(f'v_lshlrev_b32 v11, 3, v{vG}'); I(f'v_add_u32 v11, s{sWr}, v11')
smul(t1,sCt,40)
for nt in range(3):
    if nt<2: I(f'v_add_u32 v13, {16*nt}, v{vN}')
    else: I(f'v_and_b32 v13, 7, v{vN}'); I(f'v_add_u32 v13, 32, v13')
    I(f'v_add_u32 v13, s{t1}, v13'); I(f'v_mul_u32_u24 v14, v13, v11'); I(f'v_cvt_f32_u32 v14, v14'); I(f'v_cvt_f32_u32 v13, v13')
    I(f'v_mul_f32 v{GT}, {fhex(1/640)}, v14'); I(f'v_cos_f32 v{GP+2*nt}, v{GT}'); I(f'v_sin_f32 v{GP+2*nt+1}, v{GT}')
    I(f'v_mul_f32 v{GT+1}, {fhex(1/320)}, v13'); I(f'v_cos_f32 v{G1+2*nt}, v{GT+1}'); I(f'v_sin_f32 v{G1+2*nt+1}, v{GT+1}')
    I(f'v_mul_f32 v{GT+2}, {fhex(1/20)}, v13'); I(f'v_cos_f32 v{G16+2*nt}, v{GT+2}'); I(f'v_sin_f32 v{G16+2*nt+1}, v{GT+2}')
I(f'v_and_b32 v13, 1, v{vN}'); I(f'v_lshlrev_b32 v13, 31, v13'); I(f'v_xor_b32 v13, 0xbf800000, v13')
I(f's_cmp_eq_u32 s{sWr}, 0'); I(f's_cselect_b32 s{sEx}, 0xffff, 0'); I(f's_mov_b32 s{sEx+1}, 0')
smul(t0,sWr,30720); I(f'v_add_u32 v14, s{t0}, v6'); I(f'v_mov_b32 v12, v14')
I(f's_mov_b32 s{t3}, 10')
def rot(d,p,r):
    I(f'v_pk_mul_f32 {v(d,2)}, {v(p,2)}, {v(r,2)} op_sel_hi:[1,0]')
    I(f'v_pk_fma_f32 {v(d,2)}, {v(p,2)}, {v(r,2)}, {v(d,2)} op_sel:[1,1,0] op_sel_hi:[0,1,1] neg_lo:[0,1,0]')
lab('Lgg')
for nt in range(3):
    T=GT+nt*12; P0=GP+2*nt
    rot(T,P0,G1+2*nt); rot(T+2,T,G1+2*nt); rot(T+4,T+2,G1+2*nt)
    I(f'v_cndmask_b32 v{T+6}, v{P0+1}, v13, s[{sEx}:{sEx+1}]')
    I(f'v_cvt_pk_bf16_f32 v{T+8}, v{P0}, v{T}'); I(f'v_cvt_pk_bf16_f32 v{T+9}, v{T+2}, v{T+4}')
    I(f'v_cvt_pk_bf16_f32 v{T+10}, -v{T+6}, -v{T+1}'); I(f'v_cvt_pk_bf16_f32 v{T+11}, -v{T+3}, -v{T+5}')
    I(f'ds_write_b128 v14, {v(T+8,4)} offset:{1024*nt}')
    I(f'v_pk_mul_f32 {v(T,2)}, {v(P0,2)}, {v(G16+2*nt,2)} op_sel_hi:[1,0]')
    I(f'v_pk_fma_f32 {v(P0,2)}, {v(P0,2)}, {v(G16+2*nt,2)}, {v(T,2)} op_sel:[1,1,0] op_sel_hi:[0,1,1] neg_lo:[0,1,0]')
I(f'v_add_u32 v14, 0xc00, v14'); I(f's_mov_b32 s{sEx}, 0')
I(f's_sub_u32 s{t3}, s{t3}, 1'); I(f's_cmp_lg_u32 s{t3}, 0'); I('s_cbranch_scc1 Lgg')
for i in range(30):
    I(f'ds_read_b128 {a_(4*i,4)}, v12 offset:{1024*i}')
    if i%10==9: I('s_waitcnt lgkmcnt(5)')
I('s_branch Lp3c')
lab('Lp3b')
I(f'v_mov_b32 v{vA}, v6')
I(f's_mov_b32 s{sBo}, {WS_O}')
I(f's_lshl_b32 s{t0}, s{sN2}, 3'); I(f's_lshl_b32 s{t1}, s{sWr}, 2'); sacc(t0,t1)
I(f'v_and_b32 v7, 3, v{vL}'); I(f'v_add_u32 v7, s{t0}, v7'); I(f'v_lshlrev_b32 v7, 7, v7'); I(f'v_add_u32 v{vFa}, {WS_FL+FL_O*128}, v7'); I(f'v_mov_b32 v{vFa+1}, v{vFa}')
lab('Lp3c')
smul(t0,sN2,81920); smul(t1,sWr,40960); sacc(t0,t1); I(f's_add_u32 s{sGb}, s{sBo}, s{t0}'); sadd(sGe,sGb,40960); I(f's_lshl_b32 s{t0}, s{sRot}, 12'); I(f's_add_u32 s{sBo}, s{sGb}, s{t0}')
vconst(15,560)
for i in range(3):
    I(f'v_add_u32 v12, {64*i}, v{vL}'); div10(13,12); I(f'v_mul_u32_u24 v14, 10, v13'); I(f'v_sub_u32 v14, v12, v14')
    I(f'v_mul_u32_u24 v13, 40960, v13'); I(f'v_lshl_add_u32 v13, v14, 4, v13'); I(f'v_cmp_lt_u32 vcc, 4, v14'); I(f'v_cndmask_b32 v14, 0, v15, vcc'); I(f'v_add_u32 v{248+i}, v13, v14')
vconst(12,OOB); I(f'v_cmp_gt_u32 vcc, 32, v{vL}'); I(f'v_cndmask_b32 v250, v12, v250, vcc')
smul(sB0,sW,16*40960); smul(t1,sN2,1280); sacc(sB0,t1); smul(t1,sCt,80); sacc(sB0,t1)
smul(t2,sW,2560); sadd(t2,t2,L_OUT)
I(f'v_mul_u32_u24 v12, 160, v{vN}'); I(f'v_lshl_add_u32 v12, v{vG}, 3, v12'); I(f'v_add_u32 v251, s{t2}, v12'); I(f'v_add_u32 v252, s{t2}, v6')
I(f'v_lshrrev_b32 v12, 5, v{vL}'); I(f'v_lshl_add_u32 v255, v12, 6, v251'); I(f'v_lshlrev_b32 v12, 31, v12'); I(f'v_or_b32 v246, 0x3f800000, v12')
I(f's_lshl_b32 s{sB1}, s{sN2}, 8'); I(f's_lshl_b32 s{t1}, s{sW}, 6'); sacc(sB1,t1); sadd(sB1,sB1,WS_G)
I(f'v_lshlrev_b32 v7, 2, v{vN}')
smul(t2,sW,5120); I(f'v_add_u32 v253, s{t2}, v6'); smul(t2,sW,3072); I(f'v_add_u32 v247, s{t2}, v6')
smul(t2,sWr,12288); smul(t3,sWr,20480); I(f's_cmp_eq_u32 s{sWc}, 0'); I(f's_cselect_b32 s{t2}, s{t2}, s{t3}'); I(f'v_add_u32 v254, s{t2}, v6')
I('s_waitcnt lgkmcnt(0)')
stamp(24)
poll([vFa,vFa+1],10)
stamp(25)
C3=16; AV=96
def afr(i): return v(AV+4*i,4) if i<26 else a_(200+4*(i-26),4)
PA=E('PA',3)
def aload(ks):
    return [[f'buffer_load_dwordx4 {afr(ks*4+mt)}, v{vA}, {srd(sWS)}, s{sBo} offen offset:{1024*mt} {HS}']+([f's_add_u32 s{sBo}, s{sBo}, 4096', f's_cmp_eq_u32 s{sBo}, s{sGe}', f's_cselect_b32 s{sBo}, s{sGb}, s{sBo}'] if mt==3 else []) for mt in range(4)]
for ks in range(PA): emit(aload(ks))
def p3main(swap):
    for ks in range(10):
        I(f's_waitcnt vmcnt({4*(min(10,ks+PA)-ks-1)})')
        M=[]
        NN=5 if swap else 3
        for nt in range(NN):
            for mt in range(4):
                c=v(C3+(mt*NN+nt)*4,4); x,y=afr(ks*4+mt),a_((ks*NN+nt)*4,4)
                if swap: x,y=y,x
                M.append(f'{MF} {c}, {x}, {y}, {"0" if ks==0 else c}')
        nxt=[]
        if ks==0 and PA<10:
            pass
        if ks+PA<10: nxt=aload(ks+PA)
        weave(M,nxt,0,len(M)-2)
I(f's_cmp_eq_u32 s{sWc}, 0'); I('s_cbranch_scc0 Lp3mb')
p3main(False)
stamp(26)
TF_=64; AO=96
for nt in range(3):
    for kb in range(2):
        o=TF_+(nt*2+kb)*4
        for q in range(2):
            for p in range(2):
                b=C3+((2*kb+q)*3+nt)*4+2*p; I(f'v_cvt_pk_bf16_f32 v{o+2*q+p}, v{b}, v{b+1}')
for nt in range(3):
    for kb in range(2):
        for w_ in range(4):
            c=v(AO+(w_*3+nt)*4,4); I(f'{MF} {c}, {v(TF_+(nt*2+kb)*4,4)}, {v(VD2+(w_*2+kb)*4,4)}, {"0" if kb==0 else c}')
I('s_barrier')
for nt in range(3):
    for w_ in range(4): I(f'ds_write_b128 v254, {v(AO+(w_*3+nt)*4,4)} offset:{L_TA[0]+(w_*3+nt)*1024}')
I('s_branch Lp3t')
lab('Lp3mb')
p3main(True)
stamp(26)
I('s_barrier')
for nt in range(5):
    for mt in range(4): I(f'ds_write_b128 v254, {v(C3+(mt*5+nt)*4,4)} offset:{L_TB[0]+1024*(mt*5+nt)}')
lab('Lp3t')
I(f'buffer_load_dword v{vGg}, v7, {srd(sWS)}, s{sB1} offen sc1')
I('s_waitcnt lgkmcnt(0)'); I('s_barrier')
stamp(27)
AE=96; TBF=128; OA=16
for t_ in range(3):
    for p_ in range(2): I(f'ds_read_b128 {v(AE+(t_*2+p_)*4,4)}, v247 offset:{p_*12288+t_*1024}')
rb_=[f'ds_read_b128 {v(TBF+(nt*2+bh)*4,4)}, v253 offset:{L_TB[0]+bh*20480+nt*1024}' for nt in range(5) for bh in range(2)]
emit(rb_[:8])
I('s_waitcnt vmcnt(0)')
scale=struct.unpack('<I',struct.pack('<f',2.0/(2048*640)))[0]
I(f'v_sub_f32 v9, 1.0, v{vGg}'); I(f'v_cvt_pk_bf16_f32 v9, v9, v9'); I(f'v_and_b32 v9, 0xffff0000, v9'); I(f'v_mul_f32 v8, 0x{scale:x}, v{vGg}')
I('s_waitcnt lgkmcnt(8)')
emit(rb_[8:])
for u in range(5):
    t_=(0,1,0,1,2)[u]; e_,o_2=AE+t_*8,AE+t_*8+4; c=OA+4*u
    for p in range(2):
        if u<4: I(f'v_pk_add_f32 {v(c+2*p,2)}, {v(e_+2*p,2)}, {v(o_2+2*p,2)}'+(' neg_lo:[0,1] neg_hi:[0,1]' if u>=2 else ''))
        else: I(f'v_pk_fma_f32 {v(c+2*p,2)}, {v(o_2+2*p,2)}, v[246:247], {v(e_+2*p,2)} op_sel_hi:[1,0,1]')
        I(f'v_pk_mul_f32 {v(c+2*p,2)}, {v(c+2*p,2)}, v[8:9] op_sel_hi:[1,0]')
for u in range(5):
    I(f's_waitcnt lgkmcnt({8-u})')
    b0=TBF+u*8; c=OA+4*u
    for p in range(2):
        I(f'v_pk_add_f32 {v(b0+2*p,2)}, {v(b0+2*p,2)}, {v(b0+4+2*p,2)}')
        I(f'v_pk_fma_f32 {v(c+2*p,2)}, {v(b0+2*p,2)}, v[8:9], {v(c+2*p,2)} op_sel:[0,1,0]')
    I(f'v_cvt_pk_bf16_f32 v{c}, v{c}, v{c+1}'); I(f'v_cvt_pk_bf16_f32 v{c+1}, v{c+2}, v{c+3}')
    I(f'ds_write_b64 v{251 if u<4 else 255}, {v(c,2)} offset:{(0,32,80,112,64)[u]}')
I('s_waitcnt lgkmcnt(0)')
for i in range(3): I(f'ds_read_b128 {v(48+4*i,4)}, v252 offset:{1024*i}')
for i in range(3):
    I(f's_waitcnt lgkmcnt({2-i})'); I(f'buffer_store_dwordx4 {v(48+4*i,4)}, v{248+i}, {srd(sOUT)}, s{sB0} offen {OUTPOL}')
I(f's_or_b32 s{t0}, s2, s{sW}'); I(f's_cmp_eq_u32 s{t0}, 0'); I('s_cbranch_scc0 Lnoe')
vconst(15,WS_E); setflag(15,14)
lab('Lnoe')
if TS:
    stamp(28)
    I(f's_lshl_b32 s{t0}, s2, 2'); sacc(t0,sW); I(f's_lshl_b32 s{t0}, s{t0}, 8'); sadd(t0,t0,WS_TS)
    I(f'v_lshlrev_b32 v4, 2, v{vL}')
    I(f'buffer_store_dword v0, v4, {srd(sWS)}, s{t0} offen')
lab('Lend')
I('s_endpgm')
body_txt=A.finish()
hdr=open(os.path.join(os.path.dirname(os.path.abspath(__file__)),'..','cdna_kernels',NAME+'.s.ref')).read().split('; Override launch')[0]
o_=hdr+f'; @launch grid=(256,1,1) block=(256,1,1) lds={LDS_SZ}\n'
o_+=f'.amdgcn_target "amdgcn-amd-amdhsa--gfx950"\n.text\n.globl {K}\n.p2align 8\n.type {K},@function\n{K}:\n'+body_txt
o_+=f'''.section .rodata,"a"
.p2align 6
.amdhsa_kernel {K}
  .amdhsa_next_free_vgpr 512
  .amdhsa_next_free_sgpr 102
  .amdhsa_accum_offset 256
  .amdhsa_group_segment_fixed_size 0
  .amdhsa_kernarg_size 80
  .amdhsa_user_sgpr_count 2
  .amdhsa_user_sgpr_kernarg_segment_ptr 1
  .amdhsa_system_sgpr_workgroup_id_x 1
.end_amdhsa_kernel
'''
if DEV: o_+='.p2align 8\n.type tab_base,@object\ntab_base:\n@@INCBIN@@\n'
else: o_+=TB.emit()
o=[a for a in sys.argv[1:] if not a.startswith('--')]
open(o[0] if o else 'out.s','w').write(o_)
print('instructions:',sum(1 for l in body_txt.split('\n') if l.startswith('    ')),'nops inserted:',A.nnops,file=sys.stderr)
```

```python
import sys, os, struct
from asm import Asm
import tables as TB

NAME='gated_mix__spectral_gfnet__linear_attn_block__prompt'
DEV = '--dev' in sys.argv
TS  = '--ts' in sys.argv
E=lambda k,d: int(os.environ.get(k,str(d)))
ROT=E('ROT',0); LDPOL=os.environ.get('LDPOL',''); HS=os.environ.get('HS','sc1')
CPF=E('CPF',1); HALF=E('HALF',1)
WS_Y=0; WS_R=2621440; WS_O=2*2621440; WS_KVA=3*2621440; WS_WOF=WS_KVA+65536; WS_G=WS_KVA+1048576
WS_FL=WS_G+8192
FL_Y=0; FL_KV=256; FL_R=768; FL_O=960; FL_E=1216; NFL=2240
WS_E=WS_FL+NFL*128; WS_TS=WS_E+128; WS_SZ=WS_TS+256*4*256
OOB=0x7ff00000
SLOT=36880; SEG0=16384; SEG1=16384+10240+16
L_FLG=4*SLOT; L_PP=L_FLG+64; LDS_SZ=L_PP+4096
L_WO=[0,51200]; L_PQ=[102400,113280]; PQS=136
L_XCH=[124160,124160+8704]; L_KVI=[0,5504]; L_RED=102400
L_TA=[0,12288]; L_TB=[24576,45056]; L_OUT=65536
sX,sSEG,sWS,sWR,sWI,sTAB,sWO,sOUT,sGATE=4,8,12,16,20,24,28,32,36
sW,sWr,sWc,sTyp,sRb,sGrp,sTag,sCnt=40,41,42,43,44,45,46,47
sAo,sBo,sBstep,sMA,sMB,sDl,sIs,sDm=48,49,50,51,52,53,54,55
sT,sCh,sN2,sCt,sAct,sTo=56,57,58,59,60,61
t0,t1,t2,t3,t4,t5=62,63,64,65,66,67
sK=68; sEx=88; sTS=90; sB0,sB1,sGo,sA2=94,95,96,98; sBS=84; sGb,sGe,sRot=99,100,101
R3=0
OUTPOL=os.environ.get('OUTPOL','')
ATP=os.environ.get('ATP','')
def srd(n): return f's[{n}:{n+3}]'
def v(a,n=1): return f'v{a}' if n==1 else f'v[{a}:{a+n-1}]'
def a_(a,n=1): return f'a{a}' if n==1 else f'a[{a}:{a+n-1}]'
vL,vN,vG=1,2,3
A=Asm(); out=[A]
class Buf(list):
    def __call__(s,t): s.append(t)
def I(t): out[-1](t)
def cap(f,*a):
    b=Buf(); out.append(b); f(*a); out.pop(); return list(b)
def emit(L):
    for x in L:
        if isinstance(x,(list,tuple)): emit(x)
        else: I(x)
def weave(P,F,start=0,end=None):
    end=len(P) if end is None else end
    n=end-start; k=0
    for i,p in enumerate(P):
        emit([p])
        if start<=i<end:
            tgt=((i-start+1)*len(F))//n
            while k<tgt: emit([F[k]]); k+=1
    while k<len(F): emit([F[k]]); k+=1
def lab(n): I(n+':')
def stamp(i):
    if E('PADT',0) and E('PADK',0)==i:
        I(f's_memrealtime s[{sTS+2}:{sTS+3}]'); I('s_waitcnt lgkmcnt(0)')
    if TS:
        I(f's_memrealtime s[{sTS}:{sTS+1}]'); I('s_waitcnt lgkmcnt(0)'); I(f'v_writelane_b32 v0, s{sTS}, {i}')
        if i in (3,14,25,26):
            I(f's_memtime s[{sTS}:{sTS+1}]'); I('s_waitcnt lgkmcnt(0)'); I(f'v_writelane_b32 v0, s{sTS}, {i+32}')
def smul(d,x,c): I(f's_mul_i32 s{d}, s{x}, {c}')
def sadd(d,x,c): I(f's_add_u32 s{d}, s{x}, {c if isinstance(c,int) else "s%d"%c[0]}')
def sacc(d,x): I(f's_add_u32 s{d}, s{d}, s{x}')
def vconst(r,c): I(f'v_mov_b32 v{r}, {c}')
def div10(dst,src): I(f'v_mul_u32_u24 v{dst}, 0x199a, v{src}'); I(f'v_lshrrev_b32 v{dst}, 16, v{dst}')
uid=[0]
SLP=E('SLP',6)
def poll(voffs,tmp):
    I(f's_mov_b32 s{sTo}, 0x40000')
    for i,vo in enumerate(voffs): I(f'buffer_load_dword v{tmp+i}, v{vo}, {srd(sWS)}, 0 offen sc1')
    for i,vo in enumerate(voffs):
        uid[0]+=1; L=f'Lpoll{uid[0]}'
        I(f's_waitcnt vmcnt({len(voffs)-1-i})')
        lab(L)
        I(f'v_cmp_ne_u32 vcc, s{sTag}, v{tmp+i}')
        I(f's_cbranch_vccz {L}d')
        I('s_mov_b64 exec, vcc')
        if SLP: I(f's_sleep {SLP}')
        I(f'buffer_load_dword v{tmp+i}, v{vo}, {srd(sWS)}, 0 offen sc1')
        I(f's_sub_u32 s{sTo}, s{sTo}, 1')
        I('s_waitcnt vmcnt(0)')
        I(f's_cbranch_scc0 {L}'); lab(L+'d')
        I('s_mov_b64 exec, -1')
def poll2(vo,tmp):
    uid[0]+=1; L=f'Lpoll{uid[0]}'
    I(f's_mov_b32 s{sTo}, 0x40000')
    I(f'buffer_load_dwordx2 {v(tmp,2)}, v{vo}, {srd(sWS)}, 0 offen sc1')
    I(f's_waitcnt vmcnt(0)')
    lab(L)
    I(f'v_cmp_ne_u32 vcc, s{sTag}, v{tmp}'); I(f'v_cmp_ne_u32 s[{t4}:{t5}], s{sTag}, v{tmp+1}'); I(f's_or_b64 vcc, vcc, s[{t4}:{t5}]')
    I(f's_cbranch_vccz {L}d')
    I('s_mov_b64 exec, vcc')
    if SLP: I(f's_sleep {SLP}')
    I(f'buffer_load_dwordx2 {v(tmp,2)}, v{vo}, {srd(sWS)}, 0 offen sc1')
    I(f's_sub_u32 s{sTo}, s{sTo}, 1')
    I('s_waitcnt vmcnt(0)')
    I(f's_cbranch_scc0 {L}'); lab(L+'d')
    I('s_mov_b64 exec, -1')
def ldssync(vaddr,tmp):
    I(f'v_mov_b32 v{tmp}, 1'); I('s_waitcnt lgkmcnt(0)')
    I('s_mov_b64 exec, 1'); I(f'ds_add_u32 v{vaddr}, v{tmp}'); I('s_mov_b64 exec, -1')
    uid[0]+=1; L=f'Llp{uid[0]}'
    I(f's_mov_b32 s{sTo}, 0x400000'); lab(L)
    I(f'ds_read_b32 v{tmp}, v{vaddr}'); I('s_waitcnt lgkmcnt(0)')
    I(f'v_cmp_gt_u32 vcc, 2, v{tmp}')
    I(f's_cbranch_vccz {L}d'); I(f's_sub_u32 s{sTo}, s{sTo}, 1'); I(f's_cbranch_scc0 {L}'); lab(L+'d')
def setflag(voff,tmp):
    I(f'v_mov_b32 v{tmp}, s{sTag}'); I('s_mov_b64 exec, 1')
    I(f'buffer_store_dword v{tmp}, v{voff}, {srd(sWS)}, 0 offen sc1'); I('s_mov_b64 exec, -1')
def mksrd(d,p,n):
    I(f's_mov_b32 s{d}, s{p}'); I(f's_mov_b32 s{d+1}, s{p+1}'); I(f's_mov_b32 s{d+2}, {n}'); I(f's_mov_b32 s{d+3}, 0x20000')
MF='v_mfma_f32_16x16x32_bf16'
K=f'{NAME}_kernel'
ACC=16
FX=dict(A=100,B=116); FY=dict(A=140,B=156)
vAo=180; vBo=184; vRA=189; vRB=191
vKA=200; vE0=208; vWp,vWm,vWm0=214,215,216; WP=220
lab('Lstart')
I(f's_cmp_ge_u32 s2, 256'); I('s_cbranch_scc1 Lend')
PADT=E('PADT',0)
if TS or PADT: I(f's_memrealtime s[{sTS+2}:{sTS+3}]')
I(f's_load_dwordx16 s[{sK}:{sK+15}], s[0:1], 0')
I(f's_load_dwordx4 s[{sK+16}:{sK+19}], s[0:1], 64')
I(f'v_lshrrev_b32 v4, 6, v0'); I(f'v_and_b32 v{vL}, 63, v0')
I(f'v_readfirstlane_b32 s{sW}, v4')
I(f's_getpc_b64 s[{sGATE}:{sGATE+1}]')
lab('Lpc')
I(f's_add_u32 s{sTAB}, s{sGATE}, tab_base@rel32@lo+4'); I(f's_addc_u32 s{sTAB+1}, s{sGATE+1}, tab_base@rel32@hi+12')
I(f's_mov_b32 s{sGATE+2}, Lend-Lpc'); I(f's_mov_b32 s{sGATE+3}, 0x20000')
I(f'v_lshlrev_b32 v9, 4, v{vL}')
I(f's_lshr_b32 s{t0}, s2, 3'); I(f's_and_b32 s{t1}, s2, 7')
if CPF:
    I(f's_lshl_b32 s{t2}, s{t0}, 10'); I(f's_cmp_eq_u32 s{sW}, 3'); I(f's_cbranch_scc0 Lnocpf')
    I(f'buffer_load_dwordx4 v[176:179], v9, {srd(sGATE)}, s{t2} offen'); lab('Lnocpf')
I(f'v_and_b32 v{vN}, 15, v{vL}'); I(f'v_lshrrev_b32 v{vG}, 4, v{vL}')
I(f's_lshr_b32 s{sRb}, s{t1}, 2'); I(f's_lshl_b32 s{sRb}, s{sRb}, 3'); I(f's_lshr_b32 s{t2}, s{t0}, 2'); sacc(sRb,t2)
I(f's_and_b32 s{sWr}, s{sW}, 1'); I(f's_lshr_b32 s{sWc}, s{sW}, 1')
I(f'v_and_b32 v5, 7, v{vL}'); I(f'v_xor_b32 v5, v5, v{vG}'); I(f'v_lshrrev_b32 v4, 3, v{vL}'); I(f'v_mul_u32_u24 v4, 40960, v4')
I(f'v_lshl_add_u32 v{vAo}, v5, 4, v4'); I(f'v_xor_b32 v{vAo+1}, 64, v{vAo}')
I(f's_lshl_b32 s{t3}, s{sRb}, 1'); sacc(t3,sWc); smul(t3,t3,1280); smul(t2,sWr,32*40960); I(f's_add_u32 s{sA2}, s{t3}, s{t2}')
I(f's_bfe_u32 s{sTyp}, s{t0}, 0x10001')
I(f's_and_b32 s{sGrp}, s{t1}, 3'); I(f's_lshl_b32 s{sGrp}, s{sGrp}, 1'); I(f's_and_b32 s{t2}, s{t0}, 1'); sacc(sGrp,t2)
if E('P3MAP',1)==0:
    I(f's_lshl_b32 s{sN2}, s{t1}, 2'); I(f's_lshr_b32 s{t2}, s{t0}, 3'); sacc(sN2,t2); I(f's_and_b32 s{sCt}, s{t0}, 7')
else:
    I(f's_lshr_b32 s{sN2}, s{t1}, 1'); I(f's_lshl_b32 s{sN2}, s{sN2}, 3'); I(f's_lshr_b32 s{t2}, s{t0}, 2'); sacc(sN2,t2)
    I(f's_and_b32 s{sCt}, s{t1}, 1'); I(f's_lshl_b32 s{sCt}, s{sCt}, 2'); I(f's_and_b32 s{t2}, s{t0}, 3'); sacc(sCt,t2)
if ROT:
    I(f's_lshr_b32 s{t2}, s{t0}, 2'); smul(t2,t2,5); I(f's_and_b32 s{t3}, s{t0}, 3'); smul(t3,t3,10)
    sacc(t2,t3); I(f's_lshr_b32 s{t2}, s{t2}, 2')
    I(f's_cmp_ge_u32 s{t2}, 10'); I(f's_cselect_b32 s{t3}, 10, 0'); I(f's_sub_u32 s{sIs}, s{t2}, s{t3}')
else: I(f's_mov_b32 s{sIs}, 0')
I(f's_lshl_b32 s{sMA}, s{sW}, 12')
I(f's_lshl_b32 s{sAo}, s{sIs}, 7'); sacc(sAo,sA2)
I(f's_mov_b32 s{sTAB+2}, {TB.TAB_SZ}'); I(f's_mov_b32 s{sTAB+3}, 0x20000')
I(f's_andn2_b32 s{t0}, s{sTyp}, s{sWc}')
I(f's_sub_u32 s{t1}, 1, s{sTyp}'); sadd(t2,sWc,1); I(f's_mul_i32 s{t1}, s{t1}, s{t2}'); smul(t1,t1,1280)
smul(t2,sGrp,160); sacc(t1,t2); smul(t2,sWr,32*3840); sacc(t1,t2)
smul(t2,sGrp,102400); smul(t3,sWr,5120); sacc(t2,t3)
smul(sMB,sWc,10256); sacc(sMB,t3); sadd(sMB,sMB,SEG0)
I(f's_cmp_eq_u32 s{t0}, 1')
I(f's_cselect_b32 s{t1}, s{t2}, s{t1}')
I(f's_mov_b32 s{sBstep}, {64*3840}'); I(f's_cselect_b32 s{sBstep}, 10240, s{sBstep}')
I(f's_cselect_b64 s[{t4}:{t5}], -1, 0')
I(f's_mul_i32 s{sBo}, s{sIs}, s{sBstep}')
I(f's_mov_b32 s{t2}, 3840')
def dmaA(i): return [f's_add_u32 m0, s{sMA}, {1024*i}', f's_add_u32 s{t3}, s{sAo}, {i*8*40960}', f'buffer_load_dwordx4 v{vAo+(i&1)}, {srd(sX)}, s{t3} offen {LDPOL} lds']
def dmaB(i): return [f's_add_u32 m0, s{sMB}, {1024*i}', 's_nop 0', f'buffer_load_dwordx4 v{vBo+i}, {srd(sSEG)}, s{sBo} offen {LDPOL} lds']
def advA(d):
    return [f's_add_u32 s{sIs}, s{sIs}, 1', f's_cmp_eq_u32 s{sIs}, 10', f's_cselect_b32 s{sIs}, 0, s{sIs}',
            f's_lshl_b32 s{sAo}, s{sIs}, 7', f's_add_u32 s{sAo}, s{sAo}, s{sA2}', f's_add_u32 s{sMA}, s{sMA}, {d}']
def advB(d): return [f's_mul_i32 s{sBo}, s{sIs}, s{sBstep}', f's_add_u32 s{sMB}, s{sMB}, {d}']
def dma_adv(d):
    return [f's_add_u32 s{sIs}, s{sIs}, 1', f's_cmp_eq_u32 s{sIs}, 10', f's_cselect_b32 s{sIs}, 0, s{sIs}',
            f's_lshl_b32 s{sAo}, s{sIs}, 7', f's_add_u32 s{sAo}, s{sAo}, s{sA2}', f's_mul_i32 s{sBo}, s{sIs}, s{sBstep}',
            f's_add_u32 s{sMA}, s{sMA}, {d}', f's_add_u32 s{sMB}, s{sMB}, {d}']
def boff(i):
    I(f'v_add_u32 v4, {64*i}, v{vL}'); div10(5,4)
    I(f'v_lshlrev_b32 v4, 4, v4'); I(f'v_mul_u32_u24 v6, 160, v5'); I(f'v_sub_u32 v6, v4, v6')
    I(f'v_and_b32 v7, 3, v5'); I(f'v_bfe_u32 v8, v5, 2, 2'); I(f'v_lshl_or_b32 v7, v8, 3, v7')
    I(f'v_lshrrev_b32 v8, 4, v5'); I(f'v_lshl_or_b32 v7, v8, 2, v7')
    I(f'v_mad_u32_u24 v7, v7, s{t2}, v6'); I(f'v_cndmask_b32 v7, v7, v4, s[{t4}:{t5}]'); I(f'v_add_u32 v{vBo+i}, s{t1}, v7')
boff(0)
if TS: I(f's_memrealtime s[{sTS}:{sTS+1}]')
I('s_waitcnt lgkmcnt(0)')
if TS:
    I(f'v_writelane_b32 v0, s{sTS}, 4'); stamp(2)
mksrd(sX,sK+0,2621440)
I(f's_cmp_eq_u32 s{t0}, 1')
I(f's_cselect_b32 s{sSEG}, s{sTAB}, s{sK+8}'); I(f's_cselect_b32 s{sSEG+1}, s{sTAB+1}, s{sK+9}')
I(f's_mov_b32 s{sSEG+2}, 2457600'); I(f's_cselect_b32 s{sSEG+2}, {TB.TF_SZ}, s{sSEG+2}'); I(f's_mov_b32 s{sSEG+3}, 0x20000')
for i in range(4): emit(dmaA(i)); boff(i+1)
if TS: I(f'v_writelane_b32 v0, s{sTS+2}, 0')
def setup0():
    mksrd(sWS,sK+18,WS_SZ); mksrd(sWO,sK+10,819200)
    I(f's_lshl_b32 s{sDm}, s2, 2'); sacc(sDm,sW)
    smul(t0,sDm,0x667); I(f's_lshr_b32 s{t0}, s{t0}, 16')
    smul(t1,t0,40); I(f's_sub_u32 s{t1}, s{sDm}, s{t1}')
    smul(t2,t1,52); I(f's_lshr_b32 s{t2}, s{t2}, 8')
    smul(sGo,t2,5); I(f's_sub_u32 s{t1}, s{t1}, s{sGo}')
    smul(t2,t2,80)
    I(f's_lshl_b32 s{t0}, s{t0}, 2')
    I(f'v_bfe_u32 v4, v{vL}, 3, 2'); I(f'v_add_u32 v4, s{t0}, v4'); I(f'v_mul_u32_u24 v5, 0x3334, v4'); I(f'v_lshrrev_b32 v5, 16, v5')
    I(f'v_lshrrev_b32 v6, 5, v{vL}'); I(f'v_add_u32 v5, v5, v6')
    I(f'v_mul_u32_u24 v5, 20, v5'); I(f'v_lshl_add_u32 v5, v4, 2, v5'); I(f'v_bfe_u32 v4, v{vL}, 1, 2'); I(f'v_add_u32 v5, v5, v4')
    I(f's_lshr_b32 s{t0}, s{t1}, 1'); smul(t0,t0,640); I(f's_and_b32 s{sGo}, s{t1}, 1'); I(f's_lshl_b32 s{sGo}, s{sGo}, 5'); sacc(t0,sGo)
    I(f's_movk_i32 s{sGo}, 640')
    I([f's_cmp_eq_u32 s{t1}, 4', f's_cselect_b32 s{t0}, 64, s{t0}', f's_cselect_b32 s{t1}, s{sGo}, 16'])
    I(f'v_and_b32 v4, 1, v{vL}'); I(f'v_mul_u32_u24 v4, s{t1}, v4'); I(f's_movk_i32 s{t1}, 1280'); I(f'v_mad_u32_u24 v213, v5, s{t1}, v4')
    sacc(t0,t2)
    I([f's_cmp_lt_u32 s2, 200', f's_cselect_b32 s{sGo}, s{t0}, {OOB}'])
    I(f's_lshl_b32 s{t0}, s{sDm}, 6'); sadd(sDl,t0,WS_KVA)
    I(f'v_lshlrev_b32 v217, 2, v{vL}'); vconst(212,0)
def setup1():
    I([f's_add_u32 s{t0}, s{sK+18}, {WS_E}', f's_addc_u32 s{t1}, s{sK+19}, 0', f's_load_dword s{sTag}, s[{t0}:{t1}], 0'])
    mksrd(sWR,sK+2,1314816); mksrd(sWI,sK+4,1314816); mksrd(sOUT,sK+14,2621440); mksrd(sGATE,sK+12,1280)
    vconst(5,0); I(f'v_lshlrev_b32 v4, 2, v{vN}'); I(f'v_add_u32 v4, {L_FLG}, v4'); I(f'ds_write_b32 v4, v5')
    I(f'v_lshrrev_b32 v4, 1, v{vN}'); I(f'v_xor_b32 v4, v4, v{vG}'); I(f'v_lshlrev_b32 v4, 4, v4')
    I(f'v_lshl_add_u32 v4, v{vN}, 7, v4'); I(f's_lshl_b32 s{t0}, s{sWr}, 13'); I(f'v_add_u32 v{vRA}, s{t0}, v4'); I(f'v_xor_b32 v{vRA+1}, 64, v{vRA}')
    I(f'v_lshrrev_b32 v4, 2, v{vL}'); I(f'v_mul_u32_u24 v4, 160, v4'); I(f'v_and_b32 v5, 3, v{vL}'); I(f'v_lshlrev_b32 v5, 3, v5'); I(f'v_add_u32 v4, v4, v5')
    smul(t0,sWc,80); smul(t1,sWc,10256)
    I([f's_cmp_eq_u32 s{sTyp}, 0', f's_cselect_b32 s{t0}, s{t0}, s{t1}', f's_cselect_b32 s{t1}, {SEG1-SEG0-80}, 0']); sadd(t0,t0,SEG0)
    I(f'v_add_u32 v{vRB}, s{t0}, v4'); I(f'v_add_u32 v{vRB+1}, 32, v{vRB}')
    I(f'v_mov_b32 v6, s{t1}'); I(f'v_cmp_lt_u32 vcc, 8, v5'); I(f'v_cndmask_b32 v6, 0, v6, vcc'); I(f'v_add3_u32 v{vRB+2}, v{vRB}, v6, 64')
    I(f'v_add_u32 v4, s{t1}, v{vRB}'); I(f'v_add_u32 v{vRB+3}, 96, v4'); I(f'v_add_u32 v{vRB+4}, 0x80, v4')
    for i in range(80): vconst(ACC+i,0)
    I(f's_lshr_b32 s{t0}, s{sRb}, 1'); I(f's_lshl_b32 s{t0}, s{t0}, 3'); sacc(t0,sGrp)
    I(f's_lshr_b32 s{t1}, s{t0}, 4'); sadd(t1,t1,16)
    I(f's_and_b32 s{t2}, s{t0}, 15'); I(f's_lshl_b32 s{t2}, s{t2}, 1'); sacc(t2,sWr)
    I(f's_lshl_b32 s{t0}, s{sGrp}, 2'); sacc(t0,sW)
    I([f's_cmp_eq_u32 s{sTyp}, 0', f's_cselect_b32 s{sT}, s{t0}, s{t2}', f's_cselect_b32 s{sCh}, s{sRb}, s{t1}'])
    I(f's_or_b32 s{t0}, s{sRb}, s{sWc}'); I(f's_and_b32 s{t0}, s{t0}, s{sTyp}'); I(f's_xor_b32 s{sAct}, s{t0}, 1')
    for i in range(32): vconst(WP+i,0)
    I(f's_lshl_b32 s{t0}, s{sCh}, 6'); I([f's_cmp_ge_u32 s{sCh}, 10', f's_cselect_b32 s{t1}, 638, 0']); I(f's_sub_u32 s{t0}, s{t0}, s{t1}')
    I([f's_cmp_eq_u32 s{sAct}, 1', f's_cselect_b32 s{t0}, s{t0}, {OOB}'])
    I(f's_mov_b32 s{t1}, {256*642}'); I(f'v_lshlrev_b32 v10, 2, v{vN}'); I(f'v_add_u32 v10, s{t0}, v10')
    I(f'v_mad_u32_u24 v{vWp}, v{vG}, s{t1}, v10'); I(f'v_sub_u32 v11, 3, v{vG}'); I(f'v_mad_u32_u24 v{vWm}, v11, s{t1}, v10')
    I(f's_movk_i32 s{t2}, 1024')
    I([f's_cmp_eq_u32 s{sT}, 0', f's_cselect_b32 s{t0}, {1024*642}, 0', f's_cselect_b32 s{t2}, 32, s{t2}'])
    I(f'v_mov_b32 v11, s{t0}'); I(f'v_cmp_eq_u32 vcc, 0, v{vG}'); I(f'v_cndmask_b32 v11, 0, v11, vcc'); I(f'v_sub_u32 v11, {256*642}, v11'); I(f'v_add_u32 v{vWm0}, v{vWm}, v11')
    sacc(t2,sT); smul(sB0,sT,642); smul(sB1,t2,642)
    I(f'v_mul_u32_u24 v4, {64*642}, v{vN}'); I(f'v_mov_b32 v5, s{sB0}'); I(f'v_mov_b32 v6, s{sB1}')
    I(f'v_and_b32 v7, 16, v{vL}'); I(f'v_cmp_eq_u32 vcc, 0, v7'); I(f'v_cndmask_b32 v5, v6, v5, vcc'); I(f'v_add_u32 v4, v4, v5')
    I(f'v_sub_u32 v5, {2048*642}, v4'); vconst(6,1024*642); I(f'v_cmp_eq_u32 vcc, 0, v4'); I(f'v_cndmask_b32 v5, v5, v6, vcc')
    I(f'v_cmp_gt_u32 vcc, 32, v{vL}'); I(f'v_cndmask_b32 v4, v5, v4, vcc')
    I([f's_cmp_eq_u32 s{sCh}, 0', f's_cselect_b32 s{t0}, 0, {OOB}']); I(f'v_add_u32 v254, s{t0}, v4')
    for i in range(4): vconst(vE0+i,OOB)
    smul(t0,sCt,5120); smul(t1,sWr,409600); sacc(t0,t1); sadd(sGb,t0,WS_WOF); sadd(sGe,sGb,409600)
    if R3:
        I(f's_lshr_b32 s{t0}, s2, 3')
        if E('P3MAP',1)==0: I(f's_and_b32 s{t1}, s{t0}, 7'); smul(t1,t1,5); I(f's_lshr_b32 s{t0}, s{t0}, 3'); smul(t0,t0,10)
        else: I(f's_and_b32 s{t1}, s{t0}, 3'); smul(t1,t1,10); I(f's_lshr_b32 s{t0}, s{t0}, 2'); smul(t0,t0,5)
        sacc(t0,t1); I(f's_lshr_b32 s{t0}, s{t0}, 2')
        I([f's_cmp_ge_u32 s{t0}, 10', f's_cselect_b32 s{t1}, 10, 0']); I(f's_sub_u32 s{sRot}, s{t0}, s{t1}')
    else: I(f's_mov_b32 s{sRot}, 0')
    smul(t0,sRot,40960); I(f's_add_u32 s{sGo}, s{sGb}, s{t0}')
    I(f'v_lshlrev_b32 v4, 3, v{vL}'); I(f's_lshl_b32 s{t0}, s{sW}, 10'); sadd(t0,t0,L_PP); I(f'v_add_u32 v213, s{t0}, v4')
    I(f's_lshl_b32 s{t0}, s{sDm}, 10'); sadd(t0,t0,WS_WOF); I([f's_cmp_lt_u32 s2, 200', f's_cselect_b32 s{sB0+3}, s{t0}, {OOB}'])
    I(f's_lshl_b32 s{t0}, s{sDm}, 2'); sadd(t0,t0,WS_FL+FL_E*128); I(f'v_mov_b32 v217, s{t0}')
    I(f'v_min_u32 v4, 49, v{vL}'); I(f'v_mul_u32_u24 v5, 52, v4'); I(f'v_lshrrev_b32 v5, 8, v5'); I(f'v_mad_u32_u24 v4, v5, 35, v4')
    smul(t0,sWr,400); smul(t1,sCt,5); sacc(t0,t1); I(f'v_add_u32 v4, s{t0}, v4'); I(f'v_lshlrev_b32 v4, 2, v4'); I(f'v_add_u32 v196, {WS_FL+FL_E*128}, v4')
    I(f's_lshl_b32 s{t0}, s{sGrp}, 1'); sacc(t0,sWc); I(f's_lshl_b32 s{t0}, s{t0}, 8'); sadd(t0,t0,WS_FL+FL_E*128)
    I(f'v_lshlrev_b32 v4, 2, v{vL}'); I(f'v_add_u32 v197, s{t0}, v4')
    I(f'v_lshlrev_b32 v218, 4, v{vL}'); I(f'v_add_u32 v219, 0x1000, v218')
weave([dmaB(i) for i in range(5)]+[dma_adv(SLOT)],cap(setup0))
I(f's_lshl_b32 s{t0}, s{sW}, 10'); I(f's_add_u32 m0, s{t0}, {L_PP}'); I(f'buffer_load_dwordx4 v213, {srd(sWO)}, s{sGo} offen lds')
I('s_mov_b64 exec, 0xffff'); I(f'buffer_store_dword v212, v217, {srd(sWS)}, s{sDl} offen sc1'); I('s_mov_b64 exec, -1')
S1=cap(setup1)
D=[]
if HALF: D+=[dmaA(i) for i in range(4)]+[dmaB(i) for i in range(5)]+[dma_adv(SLOT)]+[dmaA(i) for i in range(4)]+[advA(SLOT)]
else:
    for st in (1,2): D+=[dmaA(i) for i in range(4)]+[dmaB(i) for i in range(5)]+[dma_adv(SLOT)]
weave(D,S1)
stamp(1)
I(f's_cmp_eq_u32 s{sTyp}, 0'); I('s_cbranch_scc0 LsetFQ')
I(f's_mov_b32 s{t0}, {TB.KA_OFF}')
for i in range(2): I(f'buffer_load_dwordx4 {v(vKA+4*i,4)}, v218, {srd(sTAB)}, s{t0} offen offset:{1024*i}')
I(f's_lshl_b32 s{t0}, s{sWc}, 13'); smul(t1,sWr,1792); sacc(t0,t1); sadd(t0,t0,L_RED)
I(f'v_lshlrev_b32 v4, 2, v{vL}'); I(f'v_add_u32 v{vE0}, s{t0}, v4')
I(f's_lshl_b32 s{t0}, s{sGrp}, 1'); sacc(t0,sWc); I(f's_lshl_b32 s{t0}, s{t0}, 12'); sacc(t0,t1); sadd(t0,t0,WS_KVA)
I(f'v_add_u32 v{vE0+1}, s{t0}, v4')
I(f's_cmp_eq_u32 s{sWr}, 0'); I(f's_cselect_b32 s{t1}, 64, 8'); I(f'v_cmp_gt_u32 vcc, s{t1}, v{vL}')
I(f'v_cndmask_b32 v{vE0+2}, v{vE0+2}, v{vE0+1}, vcc')
I(f's_lshl_b32 s{t0}, s{sGrp}, 2'); sacc(t0,sW); I(f's_lshl_b32 s{t0}, s{t0}, 4'); sacc(t0,sRb)
I(f's_lshl_b32 s{t0}, s{t0}, 7'); sadd(t0,t0,WS_FL+FL_KV*128); I(f'v_mov_b32 v{vE0+3}, s{t0}')
I('s_branch Lsetdone')
lab('LsetFQ')
I(f's_cmp_eq_u32 s{sWc}, 0'); I('s_cbranch_scc0 Lsetdone')
for i in range(8):
    if i%4==0: I(f's_mov_b32 s{t0}, {TB.D1_OFF+1024*i}')
    I(f'buffer_load_dwordx4 {a_(224+4*i,4)}, v218, {srd(sTAB)}, s{t0} offen offset:{1024*(i%4)}')
I(f's_lshl_b32 s{t0}, s{sRb}, 1'); sacc(t0,sWr); smul(t0,t0,5120); smul(t1,sGrp,640); sacc(t0,t1)
I(f's_mov_b32 s{t1}, 163840'); I(f'v_lshlrev_b32 v4, 3, v{vN}'); I(f'v_mad_u32_u24 v4, v{vG}, s{t1}, v4'); I(f'v_add_u32 v{vE0}, s{t0}, v4')
I(f's_lshl_b32 s{t0}, s{sGrp}, 1'); sacc(t0,sWr); I(f's_lshl_b32 s{t0}, s{t0}, 4'); sacc(t0,sRb)
I(f's_lshl_b32 s{t0}, s{t0}, 7'); sadd(t0,t0,WS_FL+FL_Y*128); I(f'v_mov_b32 v{vE0+3}, s{t0}')
lab('Lsetdone')
def reads(F,ks):
    L=[]
    for mt in range(4): L.append(f'ds_read_b128 {v(F["A"]+4*mt,4)}, v{vRA+ks} offset:{2048*mt}')
    for nt in range(5):
        for h in range(2): L.append(f'ds_read_b64_tr_b16 {v(F["B"]+4*nt+2*h,2)}, v{vRB+nt} offset:{(32*ks+16*h)*160}')
    return L
def mfmas(F):
    L=[]
    for nt in range(5):
        for mt in range(4):
            c=v(ACC+(mt*5+nt)*4,4); L.append(f'{MF} {c}, {v(F["A"]+4*mt,4)}, {v(F["B"]+4*nt,4)}, {c}')
    return L
def block(M,R,X,pos):
    slots=[[] for _ in M]
    for g,x in R: slots[g].append(x)
    for g,x in zip(pos,X): slots[g].append(x)
    for m,s_ in zip(M,slots): I(m); emit(s_)
def adds(d): return [f'v_add_u32 v{r}, {d}, v{r}' for r in [vRA,vRB,vRB+1,vRB+2,vRB+3,vRB+4,vRA+1]]
I(f's_mov_b32 s{sCnt}, 0')
I(f's_waitcnt vmcnt({13 if HALF else 18}) lgkmcnt(0)'); I('s_barrier')
I(f's_add_u32 s{sTag}, s{sTag}, 0x9e3779b9')
stamp(3)
I('ds_read_b64_tr_b16 v[4:5], v213'); I('ds_read_b64_tr_b16 v[6:7], v213 offset:512')
emit(reads(FX,0)[:12])
I(f'v_mov_b32 v212, s{sTag}')
I('s_waitcnt lgkmcnt(12)'); I(f'buffer_store_dwordx4 v[4:7], v218, {srd(sWS)}, s{sB0+3} offen sc1')
emit(reads(FX,0)[12:])
def itertop(i=None):
    if TS and i==7: stamp(11)
    I('s_waitcnt lgkmcnt(0)')
lab('Lmain')
itertop()
pre=[f's_add_u32 s{sCnt}, s{sCnt}, 1', f's_mov_b32 s{sDl}, {SLOT}', f's_mov_b32 s{sDm}, {SLOT}',
     f's_and_b32 s{t0}, s{sCnt}, 3', f's_cselect_b32 s{sDl}, s{sDl}, {-3*SLOT}', f's_cmp_eq_u32 s{t0}, 1', f's_cselect_b32 s{sDm}, {-3*SLOT}, s{sDm}']
eflag=[f's_cmp_eq_u32 s{sCnt}, {3 if HALF else 2}','s_cbranch_scc0 Lnoef','s_mov_b64 exec, 1',f'buffer_store_dword v212, v217, {srd(sWS)}, 0 offen sc1','s_mov_b64 exec, -1','Lnoef:']
ad=adds(f's{sDl}')
R2=[(0,ad[0]),(0,ad[1]),(1,ad[2]),(1,ad[3]),(2,ad[4]),(2,ad[5]),(3,ad[6])]+[(i+2,r) for i,r in enumerate(reads(FX,0))]
if HALF:
    preH=pre+[f's_mov_b32 s{t1}, {SLOT}', f's_cmp_eq_u32 s{t0}, 2', f's_cselect_b32 s{t1}, {-3*SLOT}, s{t1}']+advB(f's{t1}')
    block(mfmas(FX),list(enumerate(reads(FY,1))),[dmaB(i) for i in range(5)]+[preH],[1,5,9,13,17,18])
    I('s_waitcnt vmcnt(9) lgkmcnt(0)'); I('s_barrier')
    block(mfmas(FY),R2,[dmaA(i) for i in range(4)]+[advA(f's{sDm}'),eflag],[1,6,11,16,18,19])
else:
    block(mfmas(FX),list(enumerate(reads(FY,1))),[dmaA(i) for i in range(4)]+[pre],[1,6,11,16,18])
    I('s_waitcnt vmcnt(13) lgkmcnt(0)'); I('s_barrier')
    block(mfmas(FY),R2,[dmaB(i) for i in range(5)]+[dma_adv(f's{sDm}'),eflag],[1,5,9,13,17,18,19])
I(f's_cmp_lt_u32 s{sCnt}, 7'); I('s_cbranch_scc1 Lmain')
def wload(base,vp,vm,vm0,i,which):
    mh,r=i>>2,i&3; sb=(sB0,sB1)[mh]
    if which==0:
        return [f's_add_u32 s{t0}, s{sb}, {64*r*642}', f'buffer_load_short_d16_hi v{base+i}, v{vp}, {srd(sWR)}, s{t0} offen', f'buffer_load_short_d16_hi v{base+8+i}, v{vp}, {srd(sWI)}, s{t0} offen']
    m=vm0 if i==0 else vm
    return [f's_sub_u32 s{t0}, {(1280-64*r-(256 if i==0 else 0))*642}, s{sb}', f'buffer_load_short_d16_hi v{base+16+i}, v{m}, {srd(sWR)}, s{t0} offen', f'buffer_load_short_d16_hi v{base+24+i}, v{m}, {srd(sWI)}, s{t0} offen']
WL=[wload(WP,vWp,vWm,vWm0,i,w) for i in range(8) for w in range(2)]
wl=0; vm=0
FLG=['v_mov_b32 v252, 0','v_mov_b32 v253, 0',f'buffer_load_short_d16_hi v252, v254, {srd(sWR)}, 0 offen offset:640',f'buffer_load_short_d16_hi v253, v254, {srd(sWI)}, 0 offen offset:640',f'buffer_load_dword v198, v196, {srd(sWS)}, 0 offen sc1', f'buffer_load_dword v199, v197, {srd(sWS)}, 0 offen sc1']
plan={ (7,0):0 if HALF else 3,(7,1):3,(8,0):3 if not HALF else 4,(8,1):3 if not HALF else 4,(9,0):2 if not HALF else 3,(9,1):2}
def pos(n,a=2,b=17): return [a+(b-a)*i//max(n-1,1) for i in range(n)]
for s_ in (7,8,9):
    itertop(s_)
    X=WL[wl:wl+plan[(s_,0)]]; wl+=plan[(s_,0)]
    if s_==7: X=([dmaB(i) for i in range(5)] if HALF else [])+[FLG]+X
    block(mfmas(FX),list(enumerate(reads(FY,1))),X,pos(len(X)))
    if s_==7: I(f's_waitcnt vmcnt({13+2*wl}) lgkmcnt(0)')
    elif s_==8: I(f's_waitcnt vmcnt({2*wl}) lgkmcnt(0)')
    else: I('s_waitcnt lgkmcnt(0)')
    I('s_barrier')
    if s_<9:
        ad=adds(SLOT if s_==8 else -3*SLOT)
        R2=[(0,ad[0]),(0,ad[1]),(1,ad[2]),(1,ad[3]),(2,ad[4]),(2,ad[5]),(3,ad[6])]+[(i+2,r) for i,r in enumerate(reads(FX,0))]
    else: R2=[]
    X=WL[wl:wl+plan[(s_,1)]]; wl+=plan[(s_,1)]
    block(mfmas(FY),R2,X,pos(len(X),3,16))
assert wl==16
I(f's_mov_b32 s{sAo}, 0x3fb8aa3b'); I(f's_mov_b32 s{sAo+1}, 0x358637bd')
I(f'v_cmp_ne_u32 vcc, s{sTag}, v198'); I(f'v_cmp_ne_u32 s[{t4}:{t5}], s{sTag}, v199'); I(f's_or_b64 vcc, vcc, s[{t4}:{t5}]'); I('s_cbranch_vccz Leok')
poll([196,197],198)
lab('Leok')
I('s_nop 3')
stamp(14)
def acc(mt,nt,r=0,n=1): return v(ACC+(mt*5+nt)*4+r,n)
def phi2(dst,src,tmp):
    I(f'v_pk_mul_f32 {v(tmp,2)}, {v(src,2)}, s[{sAo}:{sAo+1}] op_sel_hi:[1,0]')
    I(f'v_exp_f32 v{tmp}, v{tmp} clamp'); I(f'v_exp_f32 v{tmp+1}, v{tmp+1} clamp')
    I(f'v_max_f32 v{dst}, s{sAo+1}, v{src}'); I(f'v_max_f32 v{dst+1}, s{sAo+1}, v{src+1}')
    I(f'v_pk_add_f32 {v(dst,2)}, {v(dst,2)}, {v(tmp,2)}')
def bl(i):
    ks,nt=divmod(i,5)
    L=[f'buffer_load_dwordx4 {a_(4*i,4)}, v{218 if nt<4 else 219}, {srd(sWS)}, s{sGo} offen offset:{1024*(nt%4)}']
    return L+([f's_add_u32 s{sGo}, s{sGo}, 40960', f's_cmp_eq_u32 s{sGo}, s{sGe}', f's_cselect_b32 s{sGo}, s{sGb}, s{sGo}'] if nt==4 else [])
def bls(a,b): return [bl(i) for i in range(a,b)]
def bls_if_b(a,b):
    if a>=b: return []
    uid[0]+=1; L=f'Lb{uid[0]}'
    return [f's_cmp_eq_u32 s{sWc}, 0', f's_cbranch_scc1 {L}']+bls(a,b)+[L+':']
I(f's_cmp_eq_u32 s{sTyp}, 0'); I('s_cbranch_scc0 LepiFQ')
PK=100; VV=124; DD=148; PAIRS=TB.PAIRS
NB0=E('NB0',14); NB1=E('NB1',14)
def kvepi():
    for nt in (2,3,4):
        for mt in range(4):
            for p in range(2): I(f'v_cvt_pk_bf16_f32 v{VV+(nt-2)*8+mt*2+p}, {acc(mt,nt,2*p)}, {acc(mt,nt,2*p+1)}')
    I(f'v_cmp_gt_u32 vcc, 8, v{vN}'); vconst(4,0x3f803f80)
    I(f's_lshl_b32 s{t0}, s{sW}, 12'); sadd(t0,t0,L_RED)
    for i in range(8): I(f'v_cndmask_b32 v{VV+i}, v{VV+i}, v4, vcc')
    for i in range(8): I(f'v_add_u32 v{vKA+i}, s{t0}, v{vKA+i}')
    for nt in range(3):
        for mt in range(4):
            for p in range(2):
                b=ACC+(mt*5+nt)*4+2*p
                phi2(b,b,4+2*p); I(f'v_cvt_pk_bf16_f32 v{PK+nt*8+mt*2+p}, v{b}, v{b+1}')
        for kb in range(2):
            for i,(a,b) in enumerate(PAIRS):
                if a==nt: I(f'{MF} {v(DD+4*i,4)}, {v(PK+a*8+4*kb,4)}, {v(VV+(b-2)*8+4*kb,4)}, {"0" if kb==0 else v(DD+4*i,4)}')
        if nt>0:
            for i,(a,b) in enumerate(PAIRS):
                if a==nt-1: I(f'ds_write_b128 v{vKA+i}, {v(DD+4*i,4)}')
P=cap(kvepi)
emit(P)
for i,(a,b) in enumerate(PAIRS):
    if a==2: I(f'ds_write_b128 v{vKA+i}, {v(DD+4*i,4)}')
I('s_waitcnt lgkmcnt(0)'); I('s_barrier')
for i in range(7): I(f'ds_read2st64_b32 {v(16+2*i,2)}, v{vE0} offset0:{i} offset1:{i+16}')
for i in range(7):
    I(f's_waitcnt lgkmcnt({6-i})'); I(f'v_add_f32 v{16+2*i}, v{16+2*i}, v{17+2*i}')
    I(f'buffer_atomic_add_f32 v{16+2*i}, v{vE0+1+(i==6)}, {srd(sWS)}, 0 offen offset:{256*i} {ATP}')
stamp(15)
I('s_branch Lp2a')
lab('LepiFQ')
I(f's_cmp_eq_u32 s{sWc}, 0'); I('s_cbranch_scc0 LepiQ')
XB=100; YD=140
def xcv(nt):
    for mt in range(4):
        for p in range(2): I(f'v_cvt_pk_bf16_f32 v{XB+nt*8+mt*2+p}, {acc(mt,nt,2*p)}, {acc(mt,nt,2*p+1)}')
def ymf(nt):
    for kb in range(2):
        for jt in range(4):
            d=v(YD+(nt&1)*16+4*jt,4)
            I(f'{MF} {d}, {a_(224+(jt*2+kb)*4,4)}, {v(XB+nt*8+4*kb,4)}, {"0" if kb==0 else d}')
def yst(nt):
    for jt in range(4):
        b=YD+(nt&1)*16+4*jt; o=172+jt*2
        I([f'v_cvt_pk_bf16_f32 v{o}, v{b}, v{b+1}', f'v_cvt_pk_bf16_f32 v{o+1}, v{b+2}, v{b+3}',
           f'buffer_store_dwordx2 {v(o,2)}, v{vE0}, {srd(sWS)}, s{t0+jt} offen offset:{128*nt} sc1'])
for jt in range(4): I(f's_mov_b32 s{t0+jt}, {4*jt*163840}')
xcv(0)
weave(cap(ymf,0),cap(xcv,1))
for nt in range(5):
    if nt<4:
        F_=(cap(xcv,nt+2) if nt<3 else [])
        Y_=cap(yst,nt)
        M=cap(ymf,nt+1)
        for i,m in enumerate(M):
            I(m)
            if i<4: emit(F_[2*i:2*i+2])
            else: emit(Y_[i-4])
    else: yst(nt)
stamp(15)
I('s_waitcnt vmcnt(0)'); setflag(vE0+3,4)
stamp(16)
I(f's_cmp_eq_u32 s{sAct}, 0'); I('s_cbranch_scc1 Lp2b')
T1,T2,W3,YF,EF,TM,PQ=16,48,112,144,160,80,184
vY,vF,vXW,vXR,vRS,vLF=8,9,10,11,12,13
def tgen():
    I(f'v_lshlrev_b32 v4, 6, v{vN}'); I(f'v_add_u32 v4, s{sT}, v4'); I(f'v_cvt_f32_u32 v4, v4'); I(f'v_mul_f32 v4, 0x3a000000, v4'); I(f'v_add_f32 v5, 0.5, v4')
    I(f'v_lshlrev_b32 v6, 2, v{vG}'); I(f'v_cvt_f32_u32 v6, v6')
    for ks in range(2):
        for j in range(4):
            if 16*ks+j: I(f'v_add_f32 v7, {float(16*ks+j) if 16*ks+j in (1,2,4) else hex(struct.unpack("<I",struct.pack("<f",float(16*ks+j)))[0])}, v6')
            n2r=7 if 16*ks+j else 6
            for mh in range(2):
                c,s_=TM+4*mh,TM+4*mh+1
                I(f'v_mul_f32 v{s_}, v{4+mh}, v{n2r}'); I(f'v_cos_f32 v{c}, v{s_}'); I(f'v_sin_f32 v{s_}, v{s_}')
            for mh in range(2):
                c,s_=TM+4*mh,TM+4*mh+1
                I(f'v_cvt_pk_bf16_f32 v{T1+(mh*2+ks)*4+j}, v{c}, -v{s_}'); I(f'v_cvt_pk_bf16_f32 v{T1+((2+mh)*2+ks)*4+j}, v{s_}, v{c}')
    I(f'v_lshlrev_b32 v4, 8, v{vG}'); I(f'v_add_u32 v4, s{sT}, v4'); I(f'v_cvt_f32_u32 v4, v4'); I(f'v_mul_f32 v4, 0x3a000000, v4')
    I(f'v_cvt_f32_u32 v6, v{vN}'); I(f'v_add_f32 v7, 0x41800000, v6')
    for ks in range(2):
        for e in range(4):
            cst=0.5*ks+e/32.0
            if cst: I(f'v_add_f32 v5, {hex(struct.unpack("<I",struct.pack("<f",cst))[0])}, v4')
            kr=5 if cst else 4
            for h in range(2):
                c,s_=TM+h*8+e,TM+h*8+4+e
                I(f'v_mul_f32 v{s_}, v{kr}, v{6+h}'); I(f'v_cos_f32 v{c}, v{s_}'); I(f'v_sin_f32 v{s_}, v{s_}')
        for h in range(2):
            c,s_=TM+h*8,TM+h*8+4; u0=T2+(h*2+ks)*4; u1=T2+((2+h)*2+ks)*4
            for p in range(2):
                I(f'v_cvt_pk_bf16_f32 v{u0+p}, v{c+2*p}, v{c+2*p+1}'); I(f'v_cvt_pk_bf16_f32 v{u0+2+p}, v{s_+2*p}, v{s_+2*p+1}')
                I(f'v_cvt_pk_bf16_f32 v{u1+p}, -v{s_+2*p}, -v{s_+2*p+1}'); I(f'v_mov_b32 v{u1+2+p}, v{u0+p}')
def p2addr():
    smul(t0,sCh,32*0x334); sadd(t1,t0,31*0x334); I(f's_lshr_b32 s{t0}, s{t0}, 16'); I(f's_lshr_b32 s{t1}, s{t1}, 16')
    I(f'v_mov_b32 v4, s{t0}'); I(f'v_mov_b32 v5, s{t1}'); I(f'v_cmp_gt_u32 vcc, 32, v{vL}'); I(f'v_cndmask_b32 v4, v5, v4, vcc')
    I(f'v_and_b32 v5, 31, v{vL}'); I(f'v_lshl_add_u32 v4, v4, 5, v5'); I(f'v_lshlrev_b32 v4, 7, v4'); I(f'v_add_u32 v{vF}, {WS_FL+FL_Y*128}, v4')
    I(f's_lshr_b32 s{t0}, s{sT}, 1'); smul(t0,t0,163840); I(f's_lshl_b32 s{t1}, s{sCh}, 8'); sacc(t0,t1); I(f's_lshl_b32 s{t1}, s{sWr}, 2'); sacc(t0,t1)
    I(f'v_mul_u32_u24 v4, 20480, v{vG}'); I(f'v_lshl_add_u32 v4, v{vN}, 3, v4'); I(f'v_add_u32 v{vY}, s{t0}, v4')
    smul(t0,sWc,8704); sadd(t0,t0,L_XCH[0])
    I(f's_lshl_b32 s{t1}, s{sWr}, 5'); sacc(t1,t0)
    I(f'v_mul_u32_u24 v{vXW}, 272, v{vN}'); I(f'v_lshl_add_u32 v{vXW}, v{vG}, 6, v{vXW}'); I(f'v_add_u32 v{vXW}, s{t1}, v{vXW}')
    smul(t1,sWr,16*272); sacc(t1,t0)
    I(f'v_mul_u32_u24 v{vXR}, 272, v{vG}'); I(f'v_lshl_add_u32 v{vXR}, v{vN}, 4, v{vXR}'); I(f'v_add_u32 v{vXR}, s{t1}, v{vXR}')
    smul(t0,sWr,16*81920); I(f's_lshl_b32 s{t1}, s{sCh}, 12'); sacc(t0,t1)
    I(f's_lshr_b32 s{t1}, s{sT}, 1'); I(f's_lshl_b32 s{t1}, s{t1}, 8'); sacc(t0,t1); sadd(t0,t0,WS_R)
    I(f's_mov_b32 s{t1}, 81920'); I(f'v_lshlrev_b32 v{vRS}, 4, v{vN}'); I(f'v_mad_u32_u24 v{vRS}, v{vG}, s{t1}, v{vRS}'); I(f'v_add_u32 v{vRS}, s{t0}, v{vRS}')
    I(f's_lshl_b32 s{t0}, s{sWc}, 2'); sadd(t0,t0,L_FLG); I(f'v_mov_b32 v{vLF}, s{t0}')
    I(f's_lshl_b32 s{t0}, s{sCh}, 3'); sacc(t0,sGrp)
    I(f's_lshl_b32 s{t1}, s{sCh}, 4'); I(f's_lshr_b32 s{t2}, s{sT}, 1'); sacc(t1,t2); I(f's_sub_u32 s{t1}, s{t1}, 128')
    I([f's_cmp_eq_u32 s{sTyp}, 0', f's_cselect_b32 s{t0}, s{t0}, s{t1}', f's_cselect_b32 s{sAct}, 3, 1'])
    I(f's_and_b32 s{t1}, s{t0}, 1'); I(f's_lshl_b32 s{t1}, s{t1}, 2'); I(f's_lshr_b32 s{t0}, s{t0}, 1'); I(f's_lshl_b32 s{t0}, s{t0}, 7'); sacc(t0,t1); sadd(t0,t0,WS_FL+FL_R*128); I(f'v_mov_b32 v15, s{t0}')
TG=cap(tgen)
def t0loads():
    for tb,off in ((T1,TB.T1_OFF),(T2,TB.T2_OFF)):
        for i in range(8):
            if i%4==0: I(f's_mov_b32 s{t0}, {off+1024*i}')
            I(f'buffer_load_dwordx4 {v(tb+4*i,4)}, v218, {srd(sTAB)}, s{t0} offen offset:{1024*(i%4)}')
def fhex(x): return hex(struct.unpack('<I',struct.pack('<f',x))[0])
GP,G1,G16,GA,GS=192,198,204,210,211
NGA=E('NGA',4)
def gginit(GT):
    I(f'v_lshlrev_b32 v{GT+3}, 3, v{vG}'); I(f'v_add_u32 v{GT+3}, s{sWr}, v{GT+3}')
    smul(t1,sCt,40)
    for nt in range(3):
        d_,p_=GT+4,GT+5
        if nt<2: I(f'v_add_u32 v{d_}, {16*nt}, v{vN}')
        else: I(f'v_and_b32 v{d_}, 7, v{vN}'); I(f'v_add_u32 v{d_}, 32, v{d_}')
        I(f'v_add_u32 v{d_}, s{t1}, v{d_}'); I(f'v_mul_u32_u24 v{p_}, v{d_}, v{GT+3}'); I(f'v_cvt_f32_u32 v{p_}, v{p_}'); I(f'v_cvt_f32_u32 v{d_}, v{d_}')
        I(f'v_mul_f32 v{GT}, {fhex(1/640)}, v{p_}'); I(f'v_cos_f32 v{GP+2*nt}, v{GT}'); I(f'v_sin_f32 v{GP+2*nt+1}, v{GT}')
        I(f'v_mul_f32 v{GT+1}, {fhex(1/320)}, v{d_}'); I(f'v_cos_f32 v{G1+2*nt}, v{GT+1}'); I(f'v_sin_f32 v{G1+2*nt+1}, v{GT+1}')
        I(f'v_mul_f32 v{GT+2}, {fhex(1/20)}, v{d_}'); I(f'v_cos_f32 v{G16+2*nt}, v{GT+2}'); I(f'v_sin_f32 v{G16+2*nt+1}, v{GT+2}')
    I(f'v_and_b32 v{GS}, 1, v{vN}'); I(f'v_lshlrev_b32 v{GS}, 31, v{GS}'); I(f'v_xor_b32 v{GS}, 0xbf800000, v{GS}')
    I(f's_cmp_eq_u32 s{sWr}, 0'); I(f's_cselect_b32 s{sEx}, 0xffff, 0'); I(f's_mov_b32 s{sEx+1}, 0')
    smul(t0,sWr,30720); I(f'v_add_u32 v{GA}, s{t0}, v218')
def rot(d,p,r,dd=None):
    dd=d if dd is None else dd
    I(f'v_pk_mul_f32 {v(d,2)}, {v(p,2)}, {v(r,2)} op_sel_hi:[1,0]')
    I(f'v_pk_fma_f32 {v(dd,2)}, {v(p,2)}, {v(r,2)}, {v(d,2)} op_sel:[1,1,0] op_sel_hi:[0,1,1] neg_lo:[0,1,0]')
def ggloop(n,GT=144):
    if n==0: return
    uid[0]+=1; L=f'Lgg{uid[0]}'
    I(f's_mov_b32 s{t3}, {n}'); lab(L)
    for nt in range(3):
        T=GT+nt*12; P0=GP+2*nt
        rot(T,P0,G1+2*nt); rot(T+2,T,G1+2*nt); rot(T+4,T+2,G1+2*nt)
        I(f'v_cndmask_b32 v{T+6}, v{P0+1}, v{GS}, s[{sEx}:{sEx+1}]')
        I(f'v_cvt_pk_bf16_f32 v{T+8}, v{P0}, v{T}'); I(f'v_cvt_pk_bf16_f32 v{T+9}, v{T+2}, v{T+4}')
        I(f'v_cvt_pk_bf16_f32 v{T+10}, -v{T+6}, -v{T+1}'); I(f'v_cvt_pk_bf16_f32 v{T+11}, -v{T+3}, -v{T+5}')
        I(f'ds_write_b128 v{GA}, {v(T+8,4)} offset:{1024*nt}')
        rot(T,P0,G16+2*nt,P0)
    I(f'v_add_u32 v{GA}, 0xc00, v{GA}'); I(f's_mov_b32 s{sEx}, 0')
    I(f's_sub_u32 s{t3}, s{t3}, 1'); I(f's_cmp_lg_u32 s{t3}, 0'); I(f's_cbranch_scc1 {L}')
lab('Lp2a')
I(f's_cmp_eq_u32 s{sT}, 0'); I('s_cbranch_scc0 LtgK')
t0loads(); I('s_waitcnt vmcnt(16)'); I('s_branch Lpub1')
lab('LtgK')
emit(TG)
I('s_waitcnt vmcnt(0)')
lab('Lpub1')
I(f's_cmp_eq_u32 s{sTyp}, 0'); I('s_cbranch_scc0 Lp2b')
setflag(vE0+3,4)
stamp(16)
lab('Lp2b')
NB2=E('NB2',12)
I(f's_cmp_eq_u32 s{sWc}, 0'); I('s_cbranch_scc1 LwinA')
emit(bls(0,NB2)); I('s_branch LwinAd')
lab('LwinA')
gginit(144); ggloop(NGA)
I(f's_cmp_eq_u32 s{sAct}, 0'); I('s_cbranch_scc1 Lp3')
lab('LwinAd')
I(f's_cmp_eq_u32 s{sCh}, 0'); I('s_cbranch_scc0 Lnosp1')
I(f's_lshl_b32 s{t0}, s{sW}, 9'); sadd(t0,t0,L_PP)
I(f'v_lshlrev_b32 v4, 2, v{vL}'); I(f'v_add_u32 v4, s{t0}, v4'); I(f'v_lshlrev_b32 v5, 4, v{vG}'); I(f'v_add_u32 v5, s{t0}, v5')
I(f'ds_write_b32 v4, v252'); I(f'ds_write_b32 v4, v253 offset:256')
for arr,off in ((0,0),(8,256),(16,128),(24,384)):
    for mh in range(2): I(f'ds_read_b128 {v(W3+arr+4*mh,4)}, v5 offset:{off+64*mh}')
lab('Lnosp1')
p2addr()
I('s_waitcnt lgkmcnt(0)')
stamp(17)
poll([vF],14)
stamp(18)
for ks in range(2):
    for i in range(4):
        I(f's_mov_b32 s{t0}, {(16*ks+i)*5120}')
        for ri in range(2): I(f'buffer_load_dword v{YF+(ri*2+ks)*4+i}, v{vY}, {srd(sWS)}, s{t0} offen offset:{128*ri} {HS}')
for ks in range(2):
    I(f's_waitcnt vmcnt({8-8*ks})')
    for mt in (0,2,1,3):
        for ri in range(2):
            d=v(EF+(mt*2+ri)*4,4)
            I(f'{MF} {d}, {v(T1+(mt*2+ks)*4,4)}, {v(YF+(ri*2+ks)*4,4)}, {"0" if ks==0 else d}')
stamp(19)
EF2=EF
def pk(op,d,*s,neg=None):
    t=f'v_pk_{op}_f32 {v(d,2)}, '+', '.join(v(x,2) for x in s)
    if neg: t+=f' neg_lo:{neg} neg_hi:{neg}'
    I(t)
PQ=16
Pre,Pim,Qre,Qim=PQ,PQ+8,PQ+16,PQ+24
def EFr(typ,mh,ri,p): return EF+((typ*2+mh)*2+ri)*4+2*p
for mh in range(2):
    for p in range(2):
        o=mh*4+2*p; Er,Ei,Fr,Fi=EFr(0,mh,0,p),EFr(0,mh,1,p),EFr(1,mh,0,p),EFr(1,mh,1,p)
        wpr,wpi,wmr,wmi=WP+o,WP+8+o,WP+16+o,WP+24+o
        T=TM+(p*16)
        pk('add',T,Er,Fi); pk('add',T+2,Ei,Fr,neg='[0,1]'); pk('add',T+4,Er,Fi,neg='[0,1]'); pk('add',T+6,Ei,Fr)
        pk('mul',T+8,T,wpr); pk('mul',T+10,T,wpi); pk('mul',T+12,T+4,wmr); pk('mul',T+14,T+4,wmi)
        pk('fma',T+8,T+2,wpi,T+8,neg='[1,0,0]'); pk('fma',T+10,T+2,wpr,T+10); pk('fma',T+12,T+6,wmi,T+12,neg='[1,0,0]'); pk('fma',T+14,T+6,wmr,T+14)
        pk('add',Pre+o,T+8,T+12); pk('add',Pim+o,T+10,T+14); pk('add',Qre+o,T+14,T+10,neg='[0,1]'); pk('add',Qim+o,T+8,T+12,neg='[0,1]')
I(f's_cmp_eq_u32 s{sT}, 0'); I('s_cbranch_scc0 Lnot0')
I('s_mov_b64 exec, 0xffff')
Er,Ei,Fr,Fi=EFr(0,0,0,0),EFr(0,0,1,0),EFr(1,0,0,0),EFr(1,0,1,0)
I(f'v_mul_f32 v{Pre}, v{Er}, v{WP}'); I(f'v_fma_f32 v{Pre}, -v{Ei}, v{WP+8}, v{Pre}')
I(f'v_mul_f32 v{Pim}, v{Er}, v{WP+8}'); I(f'v_fma_f32 v{Pim}, v{Ei}, v{WP}, v{Pim}')
I(f'v_mul_f32 v{Qre}, v{Fr}, v{WP+16}'); I(f'v_fma_f32 v{Qre}, -v{Fi}, v{WP+24}, v{Qre}')
I(f'v_mul_f32 v{Qim}, v{Fr}, v{WP+24}'); I(f'v_fma_f32 v{Qim}, v{Fi}, v{WP+16}, v{Qim}')
I('s_mov_b64 exec, -1')
lab('Lnot0')
I(f's_cmp_eq_u32 s{sCh}, 0'); I('s_cbranch_scc0 Lnosp2')
I(f's_mov_b32 exec_lo, 0x10001'); I(f's_mov_b32 exec_hi, 0x10001')
for mh in range(2):
    for p in range(2):
        o=mh*4+2*p; Er,Ei,Fr,Fi=EFr(0,mh,0,p),EFr(0,mh,1,p),EFr(1,mh,0,p),EFr(1,mh,1,p)
        T=TM
        pk('add',T,WP+o,WP+16+o); pk('add',T+2,WP+8+o,WP+24+o,neg='[0,1]'); pk('add',T+4,W3+o,W3+16+o); pk('add',T+6,W3+8+o,W3+24+o,neg='[0,1]')
        for q in range(4): I(f'v_pk_mul_f32 {v(T+2*q,2)}, {v(T+2*q,2)}, 0.5')
        pk('mul',Pre+o,Er,T); pk('mul',Qre+o,Fr,T); pk('mul',Pim+o,Ei,T+4); pk('mul',Qim+o,Fi,T+4)
        pk('fma',Pre+o,Fr,T+2,Pre+o); pk('fma',Qre+o,Er,T+2,Qre+o,neg='[1,0,0]'); pk('fma',Pim+o,Fi,T+6,Pim+o); pk('fma',Qim+o,Ei,T+6,Qim+o,neg='[1,0,0]')
I(f's_cmp_eq_u32 s{sT}, 0'); I('s_cbranch_scc0 Lnocorner')
I('s_mov_b64 exec, 1')
Er,Ei,Fr,Fi=EFr(0,0,0,0),EFr(0,0,1,0),EFr(1,0,0,0),EFr(1,0,1,0)
for d,x,w in ((Pre,Er,WP),(Pim,Ei,W3),(Qre,Fr,WP+16),(Qim,Fi,W3+16)):
    I(f'v_mul_f32 v{d}, v{x}, v{w}'); I(f'v_mul_f32 v{d}, 0.5, v{d}')
lab('Lnocorner')
I('s_mov_b64 exec, -1')
lab('Lnosp2')
for mh in range(2):
    for ri in range(2):
        for q,src in enumerate(((Pre,Pim)[ri],(Qre,Qim)[ri])):
            for p in range(2): I(f'v_cvt_pk_bf16_f32 v{YF+(ri*2+mh)*4+2*q+p}, v{src+mh*4+2*p}, v{src+mh*4+2*p+1}')
for ks in range(2):
    for nt in range(4):
        for ri in range(2):
            d=v(EF+(nt*2+ri)*4,4)
            I(f'{MF} {d}, {v(YF+(ri*2+ks)*4,4)}, {v(T2+(nt*2+ks)*4,4)}, {"0" if ks==0 else d}')
for nt in range(4):
    for ri in range(2):
        for p in range(2): I(f'v_cvt_pk_bf16_f32 v{TM+nt*4+ri*2+p}, v{EF+(nt*2+ri)*4+2*p}, v{EF+(nt*2+ri)*4+2*p+1}')
    I(f'ds_write_b128 v{vXW}, {v(TM+nt*4,4)} offset:{(nt&1)*16*272+(nt>>1)*16}')
stamp(20)
ldssync(vLF,14)
for i in range(4): I(f'ds_read_b128 {v(TM+16+4*i,4)}, v{vXR} offset:{4*272*i}')
for i in range(4):
    I(f's_mov_b32 s{t0}, {4*81920*i}'); I(f's_waitcnt lgkmcnt({3-i})')
    I(f'buffer_store_dwordx4 {v(TM+16+4*i,4)}, v{vRS}, {srd(sWS)}, s{t0} offen sc1')
vconst(10,L_FLG+8); vconst(11,1)
stamp(21)
I('s_waitcnt vmcnt(0)')
I('s_mov_b64 exec, 1'); I('ds_add_rtn_u32 v11, v10, v11'); I('s_mov_b64 exec, -1'); I('s_waitcnt lgkmcnt(0)')
I(f'v_readfirstlane_b32 s{t0}, v11'); I(f's_cmp_eq_u32 s{t0}, s{sAct}'); I('s_cbranch_scc0 Lnopub')
setflag(15,12)
lab('Lnopub')
stamp(22)
I(f's_cmp_eq_u32 s{sWc}, 0'); I('s_cbranch_scc1 Lp3')
if E('WGW',1):
    I(f's_mov_b32 s{sTo}, 0x400000'); lab('Lwgw')
    I(f'ds_read_b32 v11, v10'); I('s_waitcnt lgkmcnt(0)'); I(f'v_cmp_gt_u32 vcc, 4, v11')
    I(f's_cbranch_vccz Lwgwd'); I(f's_sub_u32 s{sTo}, s{sTo}, 1'); I(f's_cbranch_scc0 Lwgw'); lab('Lwgwd')
emit(bls(NB2,50))
I('s_branch Lp3')
lab('LepiQ')
vPW,vPR,vKR,vOS,vO5,vKW,vKP=4,5,100,104,106,108,112
I(f's_lshl_b32 s{t1}, s{sRb}, 1'); sacc(t1,sWr); smul(t2,t1,1280); smul(t3,sGrp,8*40960); sacc(t2,t3)
I(f'v_and_b32 v8, 7, v{vL}'); I(f'v_lshlrev_b32 v8, 4, v8'); I(f'v_lshrrev_b32 v9, 3, v{vL}'); I(f'v_mul_u32_u24 v10, 40960, v9'); I(f'v_add_u32 v10, v10, v8')
GX=120; GW=160
for j in range(10):
    I(f'buffer_load_dwordx4 {v(GX+4*j,4)}, v10, {srd(sX)}, s{t2} offen offset:{128*j}')
    I(f'buffer_load_dwordx4 {v(GW+4*j,4)}, v8, {srd(sGATE)}, 0 offen offset:{128*j}')
I(f's_lshl_b32 s{t2}, s{t1}, 8'); I(f's_lshl_b32 s{t3}, s{sGrp}, 5'); sacc(t2,t3); sadd(t2,t2,WS_G)
I(f'v_lshlrev_b32 v9, 2, v9'); I(f'v_add_u32 v9, s{t2}, v9'); vconst(10,OOB); I(f'v_cmp_eq_u32 vcc, 0, v8'); I(f'v_cndmask_b32 v114, v10, v9, vcc')
smul(t0,sWr,L_PQ[1]-L_PQ[0]); sadd(t0,t0,L_PQ[0])
I(f'v_mul_u32_u24 v{vPW}, {PQS}, v{vN}'); I(f'v_lshl_add_u32 v{vPW}, v{vG}, 3, v{vPW}'); I(f'v_add_u32 v{vPW}, s{t0}, v{vPW}')
def qepi():
    for nt in range(5):
        for mt in range(4):
            b=ACC+(mt*5+nt)*4
            phi2(b,b,8); phi2(b+2,b+2,10)
            I(f'v_cvt_pk_bf16_f32 v{b}, v{b}, v{b+1}'); I(f'v_cvt_pk_bf16_f32 v{b+1}, v{b+2}, v{b+3}')
            I(f'ds_write_b64 v{vPW}, {v(b,2)} offset:{16*nt*PQS+32*mt}')
qepi()
I('s_waitcnt vmcnt(0)')
vconst(8,0); vconst(9,0)
for i in range(40): I(f'v_dot2_f32_bf16 v{8+(i&1)}, v{GX+i}, v{GW+i}, v{8+(i&1)}')
I('s_nop 2'); I('v_add_f32 v8, v8, v9')
for ctl in ('quad_perm:[1,0,3,2]','quad_perm:[2,3,0,1]','row_half_mirror'):
    I('s_nop 1'); I(f'v_add_f32_dpp v8, v8, v8 {ctl} row_mask:0xf bank_mask:0xf')
I('v_cvt_pk_bf16_f32 v8, v8, v8'); I('v_and_b32 v8, 0xffff0000, v8'); I(f'v_mul_f32 v8, s{sAo}, v8'); I('v_exp_f32 v8, -v8'); I('v_add_f32 v8, 1.0, v8'); I('v_rcp_f32 v8, v8')
I('v_cvt_pk_bf16_f32 v8, v8, v8'); I('v_and_b32 v8, 0xffff0000, v8')
I(f'buffer_store_dword v8, v114, {srd(sWS)}, 0 offen sc1')
I(f'v_bfe_u32 v8, v{vL}, 2, 2'); I(f'v_lshl_add_u32 v8, v{vG}, 3, v8'); I(f'v_and_b32 v9, 3, v{vL}'); I(f'v_lshlrev_b32 v9, 3, v9'); I(f'v_add_u32 v9, s{t0}, v9')
for hh in range(2):
    I(f'v_add_u32 v10, {4*hh}, v8'); I(f'v_min_u32 v10, 19, v10'); I(f'v_mul_u32_u24 v10, {PQS}, v10'); I(f'v_add_u32 v{vPR+hh}, v10, v9')
smul(t1,sWr,5504); sadd(t1,t1,132864)
for i in range(4): vconst(8+i,0)
I(f'v_add_u32 v12, s{t1}, v218')
for i in range(5): I(f'ds_write_b128 v12, v[8:11] offset:{1024*i}')
I(f's_mov_b64 exec, 0xffffff'); I(f'ds_write_b128 v12, v[8:11] offset:5120'); I('s_mov_b64 exec, -1')
for i in range(4):
    I(f'v_add_u32 v8, {64*i}, v{vL}'); I(f'v_mul_u32_u24 v9, 0xc31, v8'); I(f'v_lshrrev_b32 v9, 16, v9')
    I(f'v_mul_u32_u24 v10, 21, v9'); I(f'v_sub_u32 v10, v8, v10')
    I(f'v_cmp_lt_u32 vcc, 4, v9'); I(f'v_cndmask_b32 v11, 0, 1, vcc')
    I(f'v_mad_u32_u24 v10, v11, 21, v10'); I(f'v_mul_u32_u24 v11, 5, v11'); I(f'v_sub_u32 v9, v9, v11')
    I(f'v_lshlrev_b32 v10, 6, v10'); I(f'v_lshl_add_u32 v10, v9, 3, v10'); I(f'v_add_u32 v{vKW+i}, s{t1}, v10')
vconst(11,L_PP); I(f'v_cmp_gt_u32 vcc, 18, v{vL}'); I(f'v_cndmask_b32 v{vKW+3}, v11, v{vKW+3}, vcc')
I(f'v_lshlrev_b32 v8, 4, v{vG}'); I(f'v_add_u32 v8, s{t1}, v8')
I(f'v_lshl_add_u32 v{vKR}, v{vN}, 6, v8'); I(f'v_add_u32 v{vKR+1}, {21*64}, v{vKR}')
I(f'v_and_b32 v9, 3, v{vN}'); I(f'v_lshrrev_b32 v10, 2, v{vN}')
for hb in range(2):
    I(f'v_and_b32 v11, 1, v10'); I(f'v_lshl_add_u32 v11, v11, 1, v9'); I(f'v_add_u32 v11, {21*hb+16}, v11')
    I(f'v_lshrrev_b32 v12, 1, v10'); I(f'v_cmp_eq_u32 vcc, {hb}, v12'); I(f'v_cmp_gt_u32 s[{t4}:{t5}], 2, v9'); I(f's_and_b64 vcc, vcc, s[{t4}:{t5}]')
    I(f'v_cndmask_b32 v11, 42, v11, vcc'); I(f'v_cmp_eq_u32 vcc, {2+hb}, v9'); I(f'v_cndmask_b32 v11, v11, {21*hb+20}, vcc')
    I(f'v_lshl_add_u32 v{vKR+2+hb}, v11, 6, v8')
I(f's_lshl_b32 s{t1}, s{sRb}, 1'); sacc(t1,sWr); smul(t2,t1,81920); sadd(t2,t2,WS_O)
smul(t3,sGrp,10)
for hp in range(2):
    I(f'v_add_u32 v8, {5*hp}, v{vG}'); I(f'v_add_u32 v8, s{t3}, v8')
    I(f'v_lshrrev_b32 v9, 2, v8'); I(f'v_and_b32 v8, 3, v8'); I(f'v_lshlrev_b32 v9, 12, v9'); I(f'v_lshl_add_u32 v9, v8, 8, v9')
    I(f'v_lshl_add_u32 v9, v{vN}, 4, v9'); I(f'v_add_u32 v{vOS+hp}, s{t2}, v9')
    sadd(t4,t3,5*hp+4); I(f's_lshr_b32 s{t5}, s{t4}, 2'); I(f's_lshl_b32 s{t5}, s{t5}, 12'); I(f's_and_b32 s{t4}, s{t4}, 3'); I(f's_lshl_b32 s{t4}, s{t4}, 8')
    sacc(t4,t5); sacc(t4,t2)
    I(f'v_lshlrev_b32 v9, 10, v{vG}'); I(f'v_lshl_add_u32 v9, v{vN}, 4, v9'); I(f'v_add_u32 v{vO5+hp}, s{t4}, v9')
I(f's_lshl_b32 s{t1}, s{t1}, 3'); sacc(t1,sGrp); I(f's_lshl_b32 s{t1}, s{t1}, 7'); sadd(t1,t1,WS_FL+FL_O*128); I(f'v_mov_b32 v15, s{t1}')
I(f's_lshl_b32 s{t1}, s{sGrp}, 13'); sadd(t1,t1,WS_KVA)
I(f'v_add_u32 v{vKP}, s{t1}, v218'); vconst(9,OOB); I(f'v_cmp_gt_u32 vcc, 18, v{vL}'); I(f'v_cndmask_b32 v{vKP+1}, v9, v{vKP}, vcc')
I(f's_lshl_b32 s{t1}, s{sGrp}, 6')
I(f'v_add_u32 v8, s{t1}, v{vL}'); I(f'v_lshlrev_b32 v8, 7, v8'); I(f'v_add_u32 v13, {WS_FL+FL_KV*128}, v8')
KF=16; QF=120; OD=48; O5=184; PB=48
I('s_waitcnt lgkmcnt(0)')
for u in range(8):
    rt,hp=u>>1,u&1
    for hb in range(2):
        for hh in range(2): I(f'ds_read_b64_tr_b16 {v(QF+u*8+hb*4+2*hh,2)}, v{vPR+hh} offset:{(2*hp+hb)*20*PQS+32*rt}')
    if u%2==1: I('s_waitcnt lgkmcnt(4)')
I(f's_mov_b32 s{sEx}, -1'); I(f's_mov_b32 s{sEx+1}, 0'); I(f's_movk_i32 s{t0}, 0x1000')
NQ=E('NQ',40)
emit(bls(0,NQ))
stamp(17)
poll([13],9)
stamp(18)
for hp in range(2):
    for i in range(4): I(f'buffer_load_dwordx4 {v(PB+hp*16+4*i,4)}, v{vKP+(i==3)}, {srd(sWS)}, {"0" if hp==0 else "s%d"%t0} offen offset:{1024*i} sc1')
for hp in range(2):
    for i in range(4):
        b=PB+hp*16+4*i
        I(f's_waitcnt vmcnt({7-hp*4-i})')
        I(f'v_cvt_pk_bf16_f32 v{b}, v{b}, v{b+1}'); I(f'v_cvt_pk_bf16_f32 v{b+1}, v{b+2}, v{b+3}')
        I(f'ds_write_b64 v{vKW+i}, {v(b,2)} offset:{2752*hp}')
for hp in range(2):
    for j in (2,0,3,1): I(f'ds_read_b128 {v(KF+(hp*4+j)*4,4)}, v{vKR+j} offset:{2752*hp}')
stamp(19)
def omf(u):
    hp=u&1; q=QF+u*8; d=OD+(u%4)*12
    I(f'{MF} {v(d+8,4)}, {v(KF+(hp*4+2)*4,4)}, {v(q,4)}, 0')
    I(f'{MF} {v(d,4)}, {v(KF+(hp*4+0)*4,4)}, {v(q,4)}, 0')
    I(f'{MF} {v(d+8,4)}, {v(KF+(hp*4+3)*4,4)}, {v(q+4,4)}, {v(d+8,4)}')
    I(f'{MF} {v(d+4,4)}, {v(KF+(hp*4+1)*4,4)}, {v(q+4,4)}, 0')
def ofin(u):
    rt,hp=u>>1,u&1; d=OD+(u%4)*12; o=192+(u&1)*4
    I(f'v_pk_add_f32 {v(d+10,2)}, {v(d+10,2)}, s[{sAo}:{sAo+1}] op_sel:[0,1]')
    I(f'v_rcp_f32 v{d+10}, v{d+10}'); I(f'v_rcp_f32 v{d+11}, v{d+11}')
    I('s_nop 0')
    for p in range(2): I(f'v_pk_mul_f32 {v(d+2*p,2)}, {v(d+2*p,2)}, {v(d+10,2)} op_sel_hi:[1,0]')
    for p in range(2): I(f'v_pk_mul_f32 {v(d+4+2*p,2)}, {v(d+4+2*p,2)}, {v(d+10,2)} op_sel:[0,1]')
    I(f'v_cndmask_b32 v{d+10}, v{d+11}, v{d+10}, s[{sEx}:{sEx+1}]')
    for p in range(4): I(f'v_cvt_pk_bf16_f32 v{o+p}, v{d+2*p}, v{d+2*p+1}')
    I(f'buffer_store_dwordx4 {v(o,4)}, v{vOS+hp}, {srd(sWS)}, 0 offen offset:{1024*rt} sc1')
    I(f'v_pk_mul_f32 {v(d+8,2)}, {v(d+8,2)}, {v(d+10,2)} op_sel_hi:[1,0]')
    I(f'v_cvt_pk_bf16_f32 v{O5+hp*4+rt}, v{d+8}, v{d+9}')
I('s_waitcnt lgkmcnt(4)'); omf(0); I('s_waitcnt lgkmcnt(0)'); omf(1)
for u in range(8):
    if u+2<8: weave(cap(ofin,u),cap(omf,u+2))
    else: ofin(u)
for hp in range(2):
    b=O5+hp*4
    I(f'v_permlane32_swap_b32 v{b}, v{b+2}'); I(f'v_permlane32_swap_b32 v{b+1}, v{b+3}')
    I(f'v_permlane16_swap_b32 v{b}, v{b+1}'); I(f'v_permlane16_swap_b32 v{b+2}, v{b+3}')
    I(f'buffer_store_dwordx4 {v(b,4)}, v{vO5+hp}, {srd(sWS)}, 0 offen sc1')
stamp(21)
I(f'v_mov_b32 v10, s{sTag}'); I(f'v_mov_b32 v11, s{sTag}'); I('s_waitcnt vmcnt(0)'); I('s_mov_b64 exec, 1'); I(f'buffer_store_dwordx2 v[10:11], v15, {srd(sWS)}, 0 offen sc1'); I('s_mov_b64 exec, -1')
stamp(22)
emit(bls(NQ,50))
lab('Lp3')
vA,vGg,vFa=4,5,8
VD2=212
I(f'v_lshlrev_b32 v6, 4, v{vL}')
I(f's_cmp_eq_u32 s{sWc}, 0'); I('s_cbranch_scc0 Lp3b')
for i in range(8):
    if i%4==0: I(f's_mov_b32 s{t0}, {TB.D2_OFF+1024*i}')
    I(f'buffer_load_dwordx4 {v(VD2+4*i,4)}, v6, {srd(sTAB)}, s{t0} offen offset:{1024*(i%4)}')
I(f'v_lshrrev_b32 v{vA}, 2, v{vN}'); I(f'v_lshlrev_b32 v{vA}, 8, v{vA}'); I(f'v_lshl_add_u32 v{vA}, v{vG}, 6, v{vA}'); I(f'v_and_b32 v7, 3, v{vN}'); I(f'v_lshl_add_u32 v{vA}, v7, 4, v{vA}')
I(f's_mov_b32 s{sBo}, {WS_R}')
smul(t0,sWr,40); I(f's_movk_i32 s{t1}, 95'); I(f's_cmp_eq_u32 s{sWr}, 0'); I(f's_cselect_b32 s{t1}, 39, s{t1}')
I(f'v_add_u32 v7, s{t0}, v{vL}'); I(f'v_min_u32 v7, s{t1}, v7'); I(f'v_lshlrev_b32 v7, 7, v7'); I(f'v_add_u32 v{vFa}, {WS_FL+FL_R*128}, v7')
ggloop(10-NGA)
I(f'v_add_u32 v12, {-30720}, v{GA}')
for i in range(30):
    I(f'ds_read_b128 {a_(4*i,4)}, v12 offset:{1024*i}')
    if i%10==9: I('s_waitcnt lgkmcnt(5)')
I('s_branch Lp3c')
lab('Lp3b')
I(f'v_mov_b32 v{vA}, v6')
I(f's_mov_b32 s{sBo}, {WS_O}')
I(f's_lshl_b32 s{t0}, s{sN2}, 3'); I(f's_lshl_b32 s{t1}, s{sWr}, 2'); sacc(t0,t1)
I(f'v_and_b32 v7, 3, v{vL}'); I(f'v_add_u32 v7, s{t0}, v7'); I(f'v_lshlrev_b32 v7, 7, v7'); I(f'v_add_u32 v{vFa}, {WS_FL+FL_O*128}, v7')
lab('Lp3c')
smul(t0,sN2,81920); smul(t1,sWr,40960); sacc(t0,t1); I(f's_add_u32 s{sGb}, s{sBo}, s{t0}'); sadd(sGe,sGb,40960); I(f's_lshl_b32 s{t0}, s{sRot}, 12'); I(f's_add_u32 s{sBo}, s{sGb}, s{t0}')
vconst(15,560)
for i in range(3):
    I(f'v_add_u32 v12, {64*i}, v{vL}'); div10(13,12); I(f'v_mul_u32_u24 v14, 10, v13'); I(f'v_sub_u32 v14, v12, v14')
    I(f'v_mul_u32_u24 v13, 40960, v13'); I(f'v_lshl_add_u32 v13, v14, 4, v13'); I(f'v_cmp_lt_u32 vcc, 4, v14'); I(f'v_cndmask_b32 v14, 0, v15, vcc'); I(f'v_add_u32 v{248+i}, v13, v14')
vconst(12,OOB); I(f'v_cmp_gt_u32 vcc, 32, v{vL}'); I(f'v_cndmask_b32 v250, v12, v250, vcc')
smul(sB0,sW,16*40960); smul(t1,sN2,1280); sacc(sB0,t1); smul(t1,sCt,80); sacc(sB0,t1)
smul(t2,sW,2560); sadd(t2,t2,L_OUT)
I(f'v_mul_u32_u24 v12, 160, v{vN}'); I(f'v_lshl_add_u32 v12, v{vG}, 3, v12'); I(f'v_add_u32 v251, s{t2}, v12'); I(f'v_add_u32 v252, s{t2}, v6')
I(f'v_lshrrev_b32 v12, 5, v{vL}'); I(f'v_lshl_add_u32 v255, v12, 6, v251'); I(f'v_lshlrev_b32 v12, 31, v12'); I(f'v_or_b32 v246, 0x3f800000, v12')
I(f's_lshl_b32 s{sB1}, s{sN2}, 8'); I(f's_lshl_b32 s{t1}, s{sW}, 6'); sacc(sB1,t1); sadd(sB1,sB1,WS_G)
I(f'v_lshlrev_b32 v7, 2, v{vN}')
smul(t2,sW,5120); I(f'v_add_u32 v253, s{t2}, v6'); smul(t2,sW,3072); I(f'v_add_u32 v247, s{t2}, v6')
smul(t2,sWr,12288); smul(t3,sWr,20480); I(f's_cmp_eq_u32 s{sWc}, 0'); I(f's_cselect_b32 s{t2}, s{t2}, s{t3}'); I(f'v_add_u32 v254, s{t2}, v6')
I('s_waitcnt lgkmcnt(0)')
stamp(24)
poll2(vFa,10)
stamp(25)
C3=16; AV=96
def afr(i): return v(AV+4*i,4) if i<26 else a_(200+4*(i-26),4)
PA=E('PA',3)
def aload(ks):
    return [[f'buffer_load_dwordx4 {afr(ks*4+mt)}, v{vA}, {srd(sWS)}, s{sBo} offen offset:{1024*mt} {HS}']+([f's_add_u32 s{sBo}, s{sBo}, 4096', f's_cmp_eq_u32 s{sBo}, s{sGe}', f's_cselect_b32 s{sBo}, s{sGb}, s{sBo}'] if mt==3 else []) for mt in range(4)]
for ks in range(PA): emit(aload(ks))
def p3main(swap):
    for ks in range(10):
        I(f's_waitcnt vmcnt({4*(min(10,ks+PA)-ks-1)})')
        M=[]
        NN=5 if swap else 3
        for nt in range(NN):
            for mt in range(4):
                c=v(C3+(mt*NN+nt)*4,4); x,y=afr(ks*4+mt),a_((ks*NN+nt)*4,4)
                if swap: x,y=y,x
                M.append(f'{MF} {c}, {x}, {y}, {"0" if ks==0 else c}')
        nxt=[]
        if ks==0 and PA<10:
            pass
        if ks+PA<10: nxt=aload(ks+PA)
        weave(M,nxt,0,len(M)-2)
I(f's_cmp_eq_u32 s{sWc}, 0'); I('s_cbranch_scc0 Lp3mb')
p3main(False)
stamp(26)
TF_=64; AO=96
for nt in range(3):
    for kb in range(2):
        o=TF_+(nt*2+kb)*4
        for q in range(2):
            for p in range(2):
                b=C3+((2*kb+q)*3+nt)*4+2*p; I(f'v_cvt_pk_bf16_f32 v{o+2*q+p}, v{b}, v{b+1}')
for nt in range(3):
    for kb in range(2):
        for w_ in range(4):
            c=v(AO+(w_*3+nt)*4,4); I(f'{MF} {c}, {v(TF_+(nt*2+kb)*4,4)}, {v(VD2+(w_*2+kb)*4,4)}, {"0" if kb==0 else c}')
I('s_barrier')
for nt in range(3):
    for w_ in range(4): I(f'ds_write_b128 v254, {v(AO+(w_*3+nt)*4,4)} offset:{L_TA[0]+(w_*3+nt)*1024}')
I('s_branch Lp3t')
lab('Lp3mb')
p3main(True)
stamp(26)
I('s_barrier')
for nt in range(5):
    for mt in range(4): I(f'ds_write_b128 v254, {v(C3+(mt*5+nt)*4,4)} offset:{L_TB[0]+1024*(mt*5+nt)}')
lab('Lp3t')
I(f'buffer_load_dword v{vGg}, v7, {srd(sWS)}, s{sB1} offen sc1')
I('s_waitcnt lgkmcnt(0)'); I('s_barrier')
stamp(27)
AE=96; TBF=128; OA=16
for t_ in range(3):
    for p_ in range(2): I(f'ds_read_b128 {v(AE+(t_*2+p_)*4,4)}, v247 offset:{p_*12288+t_*1024}')
rb_=[f'ds_read_b128 {v(TBF+(nt*2+bh)*4,4)}, v253 offset:{L_TB[0]+bh*20480+nt*1024}' for nt in range(5) for bh in range(2)]
emit(rb_[:8])
I('s_waitcnt vmcnt(0)')
scale=struct.unpack('<I',struct.pack('<f',2.0/(2048*640)))[0]
I(f'v_sub_f32 v9, 1.0, v{vGg}'); I(f'v_cvt_pk_bf16_f32 v9, v9, v9'); I(f'v_and_b32 v9, 0xffff0000, v9'); I(f'v_mul_f32 v8, 0x{scale:x}, v{vGg}')
I('s_waitcnt lgkmcnt(8)')
emit(rb_[8:])
for u in range(5):
    t_=(0,1,0,1,2)[u]; e_,o_2=AE+t_*8,AE+t_*8+4; c=OA+4*u
    for p in range(2):
        if u<4: I(f'v_pk_add_f32 {v(c+2*p,2)}, {v(e_+2*p,2)}, {v(o_2+2*p,2)}'+(' neg_lo:[0,1] neg_hi:[0,1]' if u>=2 else ''))
        else: I(f'v_pk_fma_f32 {v(c+2*p,2)}, {v(o_2+2*p,2)}, v[246:247], {v(e_+2*p,2)} op_sel_hi:[1,0,1]')
        I(f'v_pk_mul_f32 {v(c+2*p,2)}, {v(c+2*p,2)}, v[8:9] op_sel_hi:[1,0]')
for u in range(5):
    I(f's_waitcnt lgkmcnt({8-u})')
    b0=TBF+u*8; c=OA+4*u
    for p in range(2):
        I(f'v_pk_add_f32 {v(b0+2*p,2)}, {v(b0+2*p,2)}, {v(b0+4+2*p,2)}')
        I(f'v_pk_fma_f32 {v(c+2*p,2)}, {v(b0+2*p,2)}, v[8:9], {v(c+2*p,2)} op_sel:[0,1,0]')
    I(f'v_cvt_pk_bf16_f32 v{c}, v{c}, v{c+1}'); I(f'v_cvt_pk_bf16_f32 v{c+1}, v{c+2}, v{c+3}')
    I(f'ds_write_b64 v{251 if u<4 else 255}, {v(c,2)} offset:{(0,32,80,112,64)[u]}')
I('s_waitcnt lgkmcnt(0)')
for i in range(3): I(f'ds_read_b128 {v(48+4*i,4)}, v252 offset:{1024*i}')
for i in range(3):
    I(f's_waitcnt lgkmcnt({2-i})'); I(f'buffer_store_dwordx4 {v(48+4*i,4)}, v{248+i}, {srd(sOUT)}, s{sB0} offen {OUTPOL}')
I(f's_or_b32 s{t0}, s2, s{sW}'); I(f's_cmp_eq_u32 s{t0}, 0'); I('s_cbranch_scc0 Lnoe')
vconst(15,WS_E); setflag(15,14)
lab('Lnoe')
if PADT:
    lab('Lpad'); I(f's_memrealtime s[{sTS}:{sTS+1}]'); I('s_waitcnt lgkmcnt(0)'); I(f's_sub_u32 s{t0}, s{sTS}, s{sTS+2}'); I(f's_cmp_lt_u32 s{t0}, {PADT}'); I('s_cbranch_scc1 Lpad')
if TS:
    stamp(28)
    I(f's_lshl_b32 s{t0}, s2, 2'); sacc(t0,sW); I(f's_lshl_b32 s{t0}, s{t0}, 8'); sadd(t0,t0,WS_TS)
    I(f'v_lshlrev_b32 v4, 2, v{vL}')
    I(f'buffer_store_dword v0, v4, {srd(sWS)}, s{t0} offen')
lab('Lend')
I('s_endpgm')
body_txt=A.finish()
hdr=open(os.path.join(os.path.dirname(os.path.abspath(__file__)),'..','cdna_kernels',NAME+'.s.ref')).read().split('; Override launch')[0]
o_=hdr+f'; @launch grid=(256,1,1) block=(256,1,1) lds={LDS_SZ}\n'
o_+=f'.amdgcn_target "amdgcn-amd-amdhsa--gfx950"\n.text\n.globl {K}\n.p2align 8\n.type {K},@function\n{K}:\n'+body_txt
o_+=f'''.section .rodata,"a"
.p2align 6
.amdhsa_kernel {K}
  .amdhsa_next_free_vgpr 512
  .amdhsa_next_free_sgpr 102
  .amdhsa_accum_offset 256
  .amdhsa_group_segment_fixed_size 0
  .amdhsa_kernarg_size 80
  .amdhsa_user_sgpr_count 2
  .amdhsa_user_sgpr_kernarg_segment_ptr 1
  .amdhsa_system_sgpr_workgroup_id_x 1
.end_amdhsa_kernel
'''
if DEV: o_+='.p2align 8\n.type tab_base,@object\ntab_base:\n@@INCBIN@@\n'
else: o_+=TB.emit()
o=[a for a in sys.argv[1:] if not a.startswith('--')]
open(o[0] if o else 'out.s','w').write(o_)
print('instructions:',sum(1 for l in body_txt.split('\n') if l.startswith('    ')),'nops inserted:',A.nnops,file=sys.stderr)
```

```python
import sys, os, struct
from asm import Asm
import tables as TB

NAME='gated_mix__spectral_gfnet__linear_attn_block__prompt'
DEV = '--dev' in sys.argv
TS  = '--ts' in sys.argv
E=lambda k,d: int(os.environ.get(k,str(d)))
ROT=E('ROT',8); POLA=os.environ.get('POLA',''); POLB=os.environ.get('POLB',''); LDPOL=os.environ.get('LDPOL',''); HS=os.environ.get('HS','sc1')
CPF=E('CPF',0); PF=E('PF',0); PFW=E('PFW',3); PFPOL=os.environ.get('PFPOL',''); PFE=E('PFE',0); HALF=1; PEEL=E('PEEL',1); WS1=E('WS1',16)
WS_Y=0; WS_R=2621440; WS_O=2*2621440; WS_KVA=3*2621440; WS_WOF=WS_KVA+65536; WS_G=WS_KVA+1048576
WS_FL=WS_G+8192
FL_Y=0; FL_KV=256; FL_R=768; FL_O=960; FL_E=1216; NFL=2240
WS_E=WS_FL+NFL*128; WS_TS=WS_E+128; WS_SZ=WS_TS+256*4*256
OOB=0x7ff00000
SLOT=36880; SEG0=16384; SEG1=16384+10240+16
L_FLG=4*SLOT; L_PP=L_FLG+64; LDS_SZ=L_PP+4096
L_WO=[0,51200]; L_PQ=[102400,113280]; PQS=136
L_XCH=[124160,124160+8704]; L_KVI=[0,5504]; L_RED=102400
L_TA=[0,12288]; L_TB=[24576,45056]; L_OUT=65536
sX,sSEG,sWS,sWR,sWI,sTAB,sWO,sOUT,sGATE=4,8,12,16,20,24,28,32,36
sW,sWr,sWc,sTyp,sRb,sGrp,sTag,sCnt=40,41,42,43,44,45,46,47
sAo,sBo,sBstep,sMA,sMB,sDl,sIs,sDm=48,49,50,51,52,53,54,55
sT,sCh,sN2,sCt,sAct,sTo=56,57,58,59,60,61
t0,t1,t2,t3,t4,t5=62,63,64,65,66,67
sK=68; sEx=88; sTS=90; sB0,sB1,sGo,sA2=94,95,96,98; sBS=84; sGb,sGe,sRot=99,100,101
R3=0
OUTPOL=os.environ.get('OUTPOL','')
ATP=os.environ.get('ATP','')
def srd(n): return f's[{n}:{n+3}]'
def v(a,n=1): return f'v{a}' if n==1 else f'v[{a}:{a+n-1}]'
def a_(a,n=1): return f'a{a}' if n==1 else f'a[{a}:{a+n-1}]'
vL,vN,vG=1,2,3
A=Asm(); out=[A]
class Buf(list):
    def __call__(s,t): s.append(t)
def I(t): out[-1](t)
def cap(f,*a):
    b=Buf(); out.append(b); f(*a); out.pop(); return list(b)
def emit(L):
    for x in L:
        if isinstance(x,(list,tuple)): emit(x)
        else: I(x)
def weave(P,F,start=0,end=None):
    end=len(P) if end is None else end
    n=end-start; k=0
    for i,p in enumerate(P):
        emit([p])
        if start<=i<end:
            tgt=((i-start+1)*len(F))//n
            while k<tgt: emit([F[k]]); k+=1
    while k<len(F): emit([F[k]]); k+=1
def lab(n): I(n+':')
def stamp(i):
    if E('PADT',0) and E('PADK',0)==i:
        I(f's_memrealtime s[{sTS+2}:{sTS+3}]'); I('s_waitcnt lgkmcnt(0)')
    if TS:
        I(f's_memrealtime s[{sTS}:{sTS+1}]'); I('s_waitcnt lgkmcnt(0)'); I(f'v_writelane_b32 v0, s{sTS}, {i}')
        if i in (3,14,25,26):
            I(f's_memtime s[{sTS}:{sTS+1}]'); I('s_waitcnt lgkmcnt(0)'); I(f'v_writelane_b32 v0, s{sTS}, {i+32}')
def smul(d,x,c): I(f's_mul_i32 s{d}, s{x}, {c}')
def sadd(d,x,c): I(f's_add_u32 s{d}, s{x}, {c if isinstance(c,int) else "s%d"%c[0]}')
def sacc(d,x): I(f's_add_u32 s{d}, s{d}, s{x}')
def vconst(r,c): I(f'v_mov_b32 v{r}, {c}')
def div10(dst,src): I(f'v_mul_u32_u24 v{dst}, 0x199a, v{src}'); I(f'v_lshrrev_b32 v{dst}, 16, v{dst}')
uid=[0]
SLP=E('SLP',6)
def poll(voffs,tmp):
    I(f's_mov_b32 s{sTo}, 0x40000')
    for i,vo in enumerate(voffs): I(f'buffer_load_dword v{tmp+i}, v{vo}, {srd(sWS)}, 0 offen sc1')
    for i,vo in enumerate(voffs):
        uid[0]+=1; L=f'Lpoll{uid[0]}'
        I(f's_waitcnt vmcnt({len(voffs)-1-i})')
        lab(L)
        I(f'v_cmp_ne_u32 vcc, s{sTag}, v{tmp+i}')
        I(f's_cbranch_vccz {L}d')
        I('s_mov_b64 exec, vcc')
        if E('SLP1',6): I(f's_sleep {E("SLP1",6)}')
        I(f'buffer_load_dword v{tmp+i}, v{vo}, {srd(sWS)}, 0 offen sc1')
        I(f's_sub_u32 s{sTo}, s{sTo}, 1')
        I('s_waitcnt vmcnt(0)')
        I(f's_cbranch_scc0 {L}'); lab(L+'d')
        I('s_mov_b64 exec, -1')
def poll2(vo,tmp):
    uid[0]+=1; L=f'Lpoll{uid[0]}'
    I(f's_mov_b32 s{sTo}, 0x40000')
    I(f'buffer_load_dwordx2 {v(tmp,2)}, v{vo}, {srd(sWS)}, 0 offen sc1')
    I(f's_waitcnt vmcnt(0)')
    lab(L)
    I(f'v_cmp_ne_u32 vcc, s{sTag}, v{tmp}'); I(f'v_cmp_ne_u32 s[{t4}:{t5}], s{sTag}, v{tmp+1}'); I(f's_or_b64 vcc, vcc, s[{t4}:{t5}]')
    I(f's_cbranch_vccz {L}d')
    I('s_mov_b64 exec, vcc')
    if SLP: I(f's_sleep {SLP}')
    I(f'buffer_load_dwordx2 {v(tmp,2)}, v{vo}, {srd(sWS)}, 0 offen sc1')
    I(f's_sub_u32 s{sTo}, s{sTo}, 1')
    I('s_waitcnt vmcnt(0)')
    I(f's_cbranch_scc0 {L}'); lab(L+'d')
    I('s_mov_b64 exec, -1')
def ldssync(vaddr,tmp):
    I(f'v_mov_b32 v{tmp}, 1'); I('s_waitcnt lgkmcnt(0)')
    I('s_mov_b64 exec, 1'); I(f'ds_add_u32 v{vaddr}, v{tmp}'); I('s_mov_b64 exec, -1')
    uid[0]+=1; L=f'Llp{uid[0]}'
    I(f's_mov_b32 s{sTo}, 0x400000'); lab(L)
    I(f'ds_read_b32 v{tmp}, v{vaddr}'); I('s_waitcnt lgkmcnt(0)')
    I(f'v_cmp_gt_u32 vcc, 2, v{tmp}')
    I(f's_cbranch_vccz {L}d'); I(f's_sub_u32 s{sTo}, s{sTo}, 1'); I(f's_cbranch_scc0 {L}'); lab(L+'d')
def setflag(voff,tmp):
    I(f'v_mov_b32 v{tmp}, s{sTag}'); I('s_mov_b64 exec, 1')
    I(f'buffer_store_dword v{tmp}, v{voff}, {srd(sWS)}, 0 offen sc1'); I('s_mov_b64 exec, -1')
def mksrd(d,p,n):
    I(f's_mov_b32 s{d}, s{p}'); I(f's_mov_b32 s{d+1}, s{p+1}'); I(f's_mov_b32 s{d+2}, {n}'); I(f's_mov_b32 s{d+3}, 0x20000')
MF='v_mfma_f32_16x16x32_bf16'
K=f'{NAME}_kernel'
ACC=16
FX=dict(A=100,B=116); FY=dict(A=140,B=156)
vAo=180; vBo=184; vRA=189; vRB=191
vKA=200; vE0=208; vWp,vWm,vWm0=214,215,216; WP=220
lab('Lstart')
I(f's_cmp_ge_u32 s2, 256'); I('s_cbranch_scc1 Lend')
PADT=E('PADT',0)
if TS or PADT: I(f's_memrealtime s[{sTS+2}:{sTS+3}]')
I(f's_load_dwordx16 s[{sK}:{sK+15}], s[0:1], 0')
I(f's_load_dwordx4 s[{sK+16}:{sK+19}], s[0:1], 64')
I(f'v_lshrrev_b32 v4, 6, v0'); I(f'v_and_b32 v{vL}, 63, v0')
I(f'v_readfirstlane_b32 s{sW}, v4')
I(f's_getpc_b64 s[{sGATE}:{sGATE+1}]')
lab('Lpc')
I(f's_add_u32 s{sTAB}, s{sGATE}, tab_base@rel32@lo+4'); I(f's_addc_u32 s{sTAB+1}, s{sGATE+1}, tab_base@rel32@hi+12')
I(f's_mov_b32 s{sGATE+2}, Lend-Lpc'); I(f's_mov_b32 s{sGATE+3}, 0x20000')
I(f'v_lshlrev_b32 v9, 4, v{vL}')
I(f's_lshr_b32 s{t0}, s2, 3'); I(f's_and_b32 s{t1}, s2, 7')
if CPF:
    I(f's_lshl_b32 s{t2}, s{t0}, 10'); I(f's_cmp_eq_u32 s{sW}, 3'); I(f's_cbranch_scc0 Lnocpf')
    I(f'buffer_load_dwordx4 v[176:179], v9, {srd(sGATE)}, s{t2} offen'); lab('Lnocpf')
I(f'v_and_b32 v{vN}, 15, v{vL}'); I(f'v_lshrrev_b32 v{vG}, 4, v{vL}')
I(f's_lshr_b32 s{sRb}, s{t1}, 2'); I(f's_lshl_b32 s{sRb}, s{sRb}, 3'); I(f's_lshr_b32 s{t2}, s{t0}, 2'); sacc(sRb,t2)
I(f's_and_b32 s{sWr}, s{sW}, 1'); I(f's_lshr_b32 s{sWc}, s{sW}, 1')
I(f'v_and_b32 v5, 7, v{vL}'); I(f'v_xor_b32 v5, v5, v{vG}'); I(f'v_lshrrev_b32 v4, 3, v{vL}'); I(f'v_mul_u32_u24 v4, 40960, v4')
I(f'v_lshl_add_u32 v{vAo}, v5, 4, v4'); I(f'v_xor_b32 v{vAo+1}, 64, v{vAo}')
I(f's_lshl_b32 s{t3}, s{sRb}, 1'); sacc(t3,sWc); smul(t3,t3,1280); smul(t2,sWr,32*40960); I(f's_add_u32 s{sA2}, s{t3}, s{t2}')
I(f's_bfe_u32 s{sTyp}, s{t0}, 0x10001')
I(f's_and_b32 s{sGrp}, s{t1}, 3'); I(f's_lshl_b32 s{sGrp}, s{sGrp}, 1'); I(f's_and_b32 s{t2}, s{t0}, 1'); sacc(sGrp,t2)
if E('P3MAP',1)==0:
    I(f's_lshl_b32 s{sN2}, s{t1}, 2'); I(f's_lshr_b32 s{t2}, s{t0}, 3'); sacc(sN2,t2); I(f's_and_b32 s{sCt}, s{t0}, 7')
else:
    I(f's_lshr_b32 s{sN2}, s{t1}, 1'); I(f's_lshl_b32 s{sN2}, s{sN2}, 3'); I(f's_lshr_b32 s{t2}, s{t0}, 2'); sacc(sN2,t2)
    I(f's_and_b32 s{sCt}, s{t1}, 1'); I(f's_lshl_b32 s{sCt}, s{sCt}, 2'); I(f's_and_b32 s{t2}, s{t0}, 3'); sacc(sCt,t2)
if ROT:
    a,ma,b,mb,c,d={1:(5,7,10,3,0,0),2:(0,0,0,0,10,20),3:(20,1,20,1,0,0),4:(10,3,10,3,0,0),5:(20,1,0,0,10,0),6:(0,0,20,1,10,20),7:(10,1,20,1,0,0),8:(5,7,10,3,10,20),9:(0,0,0,0,0,20),10:(0,0,0,0,20,20)}[ROT]
    I(f's_lshr_b32 s{t2}, s{t0}, 2'); I(f's_and_b32 s{t2}, s{t2}, {ma}'); smul(t2,t2,a); I(f's_and_b32 s{t3}, s{t0}, {mb}'); smul(t3,t3,b); sacc(t2,t3)
    I(f's_and_b32 s{t3}, s{t1}, 3'); smul(t3,t3,c); sacc(t2,t3); I(f's_lshr_b32 s{t3}, s{t1}, 2'); smul(t3,t3,d); sacc(t2,t3)
    I(f's_lshr_b32 s{t2}, s{t2}, 2'); smul(t3,t2,26); I(f's_lshr_b32 s{t3}, s{t3}, 8'); smul(t3,t3,10); I(f's_sub_u32 s{sIs}, s{t2}, s{t3}')
else: I(f's_mov_b32 s{sIs}, 0')
I(f's_lshl_b32 s{sMA}, s{sW}, 12')
I(f's_lshl_b32 s{sAo}, s{sIs}, 7'); sacc(sAo,sA2)
I(f's_mov_b32 s{sTAB+2}, {TB.TAB_SZ}'); I(f's_mov_b32 s{sTAB+3}, 0x20000')
I(f's_andn2_b32 s{t0}, s{sTyp}, s{sWc}')
I(f's_sub_u32 s{t1}, 1, s{sTyp}'); sadd(t2,sWc,1); I(f's_mul_i32 s{t1}, s{t1}, s{t2}'); smul(t1,t1,1280)
smul(t2,sGrp,160); sacc(t1,t2); smul(t2,sWr,32*3840); sacc(t1,t2)
smul(t2,sGrp,102400); smul(t3,sWr,5120); sacc(t2,t3)
smul(sMB,sWc,10256); sacc(sMB,t3); sadd(sMB,sMB,SEG0)
I(f's_cmp_eq_u32 s{t0}, 1')
I(f's_cselect_b32 s{t1}, s{t2}, s{t1}')
I(f's_mov_b32 s{sBstep}, {64*3840}'); I(f's_cselect_b32 s{sBstep}, 10240, s{sBstep}')
I(f's_cselect_b64 s[{t4}:{t5}], -1, 0')
I(f's_mul_i32 s{sBo}, s{sIs}, s{sBstep}')
I(f's_mov_b32 s{t2}, 3840')
def dmaA(i): return [f's_add_u32 m0, s{sMA}, {1024*i}', f's_add_u32 s{t3}, s{sAo}, {i*8*40960}', f'buffer_load_dwordx4 v{vAo+(i&1)}, {srd(sX)}, s{t3} offen {POLA} lds']
def dmaB(i): return [f's_add_u32 m0, s{sMB}, {1024*i}', 's_nop 0', f'buffer_load_dwordx4 v{vBo+i}, {srd(sSEG)}, s{sBo} offen {POLB} lds']
def advA(d):
    return [f's_add_u32 s{sIs}, s{sIs}, 1', f's_cmp_eq_u32 s{sIs}, 10', f's_cselect_b32 s{sIs}, 0, s{sIs}',
            f's_lshl_b32 s{sAo}, s{sIs}, 7', f's_add_u32 s{sAo}, s{sAo}, s{sA2}', f's_add_u32 s{sMA}, s{sMA}, {d}']
def advB(d): return [f's_mul_i32 s{sBo}, s{sIs}, s{sBstep}', f's_add_u32 s{sMB}, s{sMB}, {d}']
def dma_adv(d):
    return [f's_add_u32 s{sIs}, s{sIs}, 1', f's_cmp_eq_u32 s{sIs}, 10', f's_cselect_b32 s{sIs}, 0, s{sIs}',
            f's_lshl_b32 s{sAo}, s{sIs}, 7', f's_add_u32 s{sAo}, s{sAo}, s{sA2}', f's_mul_i32 s{sBo}, s{sIs}, s{sBstep}',
            f's_add_u32 s{sMA}, s{sMA}, {d}', f's_add_u32 s{sMB}, s{sMB}, {d}']
def boff(i):
    I(f'v_add_u32 v4, {64*i}, v{vL}'); div10(5,4)
    I(f'v_lshlrev_b32 v4, 4, v4'); I(f'v_mul_u32_u24 v6, 160, v5'); I(f'v_sub_u32 v6, v4, v6')
    I(f'v_and_b32 v7, 3, v5'); I(f'v_bfe_u32 v8, v5, 2, 2'); I(f'v_lshl_or_b32 v7, v8, 3, v7')
    I(f'v_lshrrev_b32 v8, 4, v5'); I(f'v_lshl_or_b32 v7, v8, 2, v7')
    I(f'v_mad_u32_u24 v7, v7, s{t2}, v6'); I(f'v_cndmask_b32 v7, v7, v4, s[{t4}:{t5}]'); I(f'v_add_u32 v{vBo+i}, s{t1}, v7')
boff(0)
if TS: I(f's_memrealtime s[{sTS}:{sTS+1}]')
I('s_waitcnt lgkmcnt(0)')
if TS:
    I(f'v_writelane_b32 v0, s{sTS}, 4'); stamp(2)
mksrd(sX,sK+0,2621440)
I(f's_cmp_eq_u32 s{t0}, 1')
I(f's_cselect_b32 s{sSEG}, s{sTAB}, s{sK+8}'); I(f's_cselect_b32 s{sSEG+1}, s{sTAB+1}, s{sK+9}')
I(f's_mov_b32 s{sSEG+2}, 2457600'); I(f's_cselect_b32 s{sSEG+2}, {TB.TF_SZ}, s{sSEG+2}'); I(f's_mov_b32 s{sSEG+3}, 0x20000')
for i in range(4): emit(dmaA(i)); boff(i+1)
if TS: I(f'v_writelane_b32 v0, s{sTS+2}, 0')
def setup0():
    mksrd(sWS,sK+18,WS_SZ); mksrd(sWO,sK+10,819200)
    I(f's_lshl_b32 s{sDm}, s2, 2'); sacc(sDm,sW)
    smul(t0,sDm,0x667); I(f's_lshr_b32 s{t0}, s{t0}, 16')
    smul(t1,t0,40); I(f's_sub_u32 s{t1}, s{sDm}, s{t1}')
    smul(t2,t1,52); I(f's_lshr_b32 s{t2}, s{t2}, 8')
    smul(sGo,t2,5); I(f's_sub_u32 s{t1}, s{t1}, s{sGo}')
    smul(t2,t2,80)
    I(f's_lshl_b32 s{t0}, s{t0}, 2')
    I(f'v_bfe_u32 v4, v{vL}, 3, 2'); I(f'v_add_u32 v4, s{t0}, v4'); I(f'v_mul_u32_u24 v5, 0x3334, v4'); I(f'v_lshrrev_b32 v5, 16, v5')
    I(f'v_lshrrev_b32 v6, 5, v{vL}'); I(f'v_add_u32 v5, v5, v6')
    I(f'v_mul_u32_u24 v5, 20, v5'); I(f'v_lshl_add_u32 v5, v4, 2, v5'); I(f'v_bfe_u32 v4, v{vL}, 1, 2'); I(f'v_add_u32 v5, v5, v4')
    I(f's_lshr_b32 s{t0}, s{t1}, 1'); smul(t0,t0,640); I(f's_and_b32 s{sGo}, s{t1}, 1'); I(f's_lshl_b32 s{sGo}, s{sGo}, 5'); sacc(t0,sGo)
    I(f's_movk_i32 s{sGo}, 640')
    I([f's_cmp_eq_u32 s{t1}, 4', f's_cselect_b32 s{t0}, 64, s{t0}', f's_cselect_b32 s{t1}, s{sGo}, 16'])
    I(f'v_and_b32 v4, 1, v{vL}'); I(f'v_mul_u32_u24 v4, s{t1}, v4'); I(f's_movk_i32 s{t1}, 1280'); I(f'v_mad_u32_u24 v213, v5, s{t1}, v4')
    sacc(t0,t2)
    I([f's_cmp_lt_u32 s2, 200', f's_cselect_b32 s{sGo}, s{t0}, {OOB}'])
    I(f's_lshl_b32 s{t0}, s{sDm}, 6'); sadd(sDl,t0,WS_KVA)
    I(f'v_lshlrev_b32 v217, 2, v{vL}'); vconst(212,0)
    if PF:
        mksrd(sBS,sK+8,2457600) if False else None
        vconst(7,OOB)
        I(f'v_lshrrev_b32 v4, 3, v{vL}'); I(f'v_mul_u32_u24 v4, 1280, v4'); I(f'v_and_b32 v5, 7, v{vL}'); I(f'v_lshl_add_u32 v4, v5, 7, v4')
        smul(t0,sDm,2560); sadd(t0,t0,256); I(f'v_add_u32 v4, s{t0}, v4'); I(f'v_cmp_gt_u32 vcc, 16, v{vL}'); I(f'v_cndmask_b32 v96, v7, v4, vcc')
        smul(t0,sDm,1920); sadd(t0,t0,128*3840); I(f'v_lshlrev_b32 v4, 7, v{vL}'); I(f'v_add_u32 v5, s{t0}, v4'); I(f'v_cmp_gt_u32 vcc, 15, v{vL}'); I(f'v_cndmask_b32 v97, v7, v5, vcc')
        I(f's_lshr_b32 s{t0}, s{sDm}, 7'); smul(t0,t0,20480); smul(t1,sDm,640); sacc(t0,t1); sadd(t0,t0,20480)
        I(f'v_add_u32 v5, s{t0}, v4'); I(f'v_cmp_gt_u32 vcc, 5, v{vL}'); I(f'v_cndmask_b32 v98, v7, v5, vcc')
        smul(t0,sDm,1408); I(f'v_add_u32 v5, s{t0}, v4'); I(f'v_cmp_gt_u32 vcc, 11, v{vL}'); I(f'v_cndmask_b32 v99, v7, v5, vcc')
        mksrd(sOUT,sK+8,2457600)
def setup1():
    I([f's_add_u32 s{t0}, s{sK+18}, {WS_E}', f's_addc_u32 s{t1}, s{sK+19}, 0', f's_load_dword s{sTag}, s[{t0}:{t1}], 0'])
    mksrd(sWR,sK+2,1314816); mksrd(sWI,sK+4,1314816); mksrd(sGATE,sK+12,1280)
    vconst(5,0); I(f'v_lshlrev_b32 v4, 2, v{vN}'); I(f'v_add_u32 v4, {L_FLG}, v4'); I(f'ds_write_b32 v4, v5')
    I(f'v_lshrrev_b32 v4, 1, v{vN}'); I(f'v_xor_b32 v4, v4, v{vG}'); I(f'v_lshlrev_b32 v4, 4, v4')
    I(f'v_lshl_add_u32 v4, v{vN}, 7, v4'); I(f's_lshl_b32 s{t0}, s{sWr}, 13'); I(f'v_add_u32 v{vRA}, s{t0}, v4'); I(f'v_xor_b32 v{vRA+1}, 64, v{vRA}')
    I(f'v_lshrrev_b32 v4, 2, v{vL}'); I(f'v_mul_u32_u24 v4, 160, v4'); I(f'v_and_b32 v5, 3, v{vL}'); I(f'v_lshlrev_b32 v5, 3, v5'); I(f'v_add_u32 v4, v4, v5')
    smul(t0,sWc,80); smul(t1,sWc,10256)
    I([f's_cmp_eq_u32 s{sTyp}, 0', f's_cselect_b32 s{t0}, s{t0}, s{t1}', f's_cselect_b32 s{t1}, {SEG1-SEG0-80}, 0']); sadd(t0,t0,SEG0)
    I(f'v_add_u32 v{vRB}, s{t0}, v4'); I(f'v_add_u32 v{vRB+1}, 32, v{vRB}')
    I(f'v_mov_b32 v6, s{t1}'); I(f'v_cmp_lt_u32 vcc, 8, v5'); I(f'v_cndmask_b32 v6, 0, v6, vcc'); I(f'v_add3_u32 v{vRB+2}, v{vRB}, v6, 64')
    I(f'v_add_u32 v4, s{t1}, v{vRB}'); I(f'v_add_u32 v{vRB+3}, 96, v4'); I(f'v_add_u32 v{vRB+4}, 0x80, v4')
    for i in range(80): vconst(ACC+i,0)
    I(f's_lshr_b32 s{t0}, s{sRb}, 1'); I(f's_lshl_b32 s{t0}, s{t0}, 3'); sacc(t0,sGrp)
    I(f's_lshr_b32 s{t1}, s{t0}, 4'); sadd(t1,t1,16)
    I(f's_and_b32 s{t2}, s{t0}, 15'); I(f's_lshl_b32 s{t2}, s{t2}, 1'); sacc(t2,sWr)
    I(f's_lshl_b32 s{t0}, s{sGrp}, 2'); sacc(t0,sW)
    I([f's_cmp_eq_u32 s{sTyp}, 0', f's_cselect_b32 s{sT}, s{t0}, s{t2}', f's_cselect_b32 s{sCh}, s{sRb}, s{t1}'])
    I(f's_or_b32 s{t0}, s{sRb}, s{sWc}'); I(f's_and_b32 s{t0}, s{t0}, s{sTyp}'); I(f's_xor_b32 s{sAct}, s{t0}, 1')
    for i in range(32): vconst(WP+i,0)
    I(f's_lshl_b32 s{t0}, s{sCh}, 6'); I([f's_cmp_ge_u32 s{sCh}, 10', f's_cselect_b32 s{t1}, 638, 0']); I(f's_sub_u32 s{t0}, s{t0}, s{t1}')
    I([f's_cmp_eq_u32 s{sAct}, 1', f's_cselect_b32 s{t0}, s{t0}, {OOB}'])
    I(f's_mov_b32 s{t1}, {256*642}'); I(f'v_lshlrev_b32 v10, 2, v{vN}'); I(f'v_add_u32 v10, s{t0}, v10')
    I(f'v_mad_u32_u24 v{vWp}, v{vG}, s{t1}, v10'); I(f'v_sub_u32 v11, 3, v{vG}'); I(f'v_mad_u32_u24 v{vWm}, v11, s{t1}, v10')
    I(f's_movk_i32 s{t2}, 1024')
    I([f's_cmp_eq_u32 s{sT}, 0', f's_cselect_b32 s{t0}, {1024*642}, 0', f's_cselect_b32 s{t2}, 32, s{t2}'])
    I(f'v_mov_b32 v11, s{t0}'); I(f'v_cmp_eq_u32 vcc, 0, v{vG}'); I(f'v_cndmask_b32 v11, 0, v11, vcc'); I(f'v_sub_u32 v11, {256*642}, v11'); I(f'v_add_u32 v{vWm0}, v{vWm}, v11')
    sacc(t2,sT); smul(sB0,sT,642); smul(sB1,t2,642)
    I(f'v_mul_u32_u24 v4, {64*642}, v{vN}'); I(f'v_mov_b32 v5, s{sB0}'); I(f'v_mov_b32 v6, s{sB1}')
    I(f'v_and_b32 v7, 16, v{vL}'); I(f'v_cmp_eq_u32 vcc, 0, v7'); I(f'v_cndmask_b32 v5, v6, v5, vcc'); I(f'v_add_u32 v4, v4, v5')
    I(f'v_sub_u32 v5, {2048*642}, v4'); vconst(6,1024*642); I(f'v_cmp_eq_u32 vcc, 0, v4'); I(f'v_cndmask_b32 v5, v5, v6, vcc')
    I(f'v_cmp_gt_u32 vcc, 32, v{vL}'); I(f'v_cndmask_b32 v4, v5, v4, vcc')
    I([f's_cmp_eq_u32 s{sCh}, 0', f's_cselect_b32 s{t0}, 0, {OOB}']); I(f'v_add_u32 v254, s{t0}, v4')
    for i in range(4): vconst(vE0+i,OOB)
    smul(t0,sCt,5120); smul(t1,sWr,409600); sacc(t0,t1); sadd(sGb,t0,WS_WOF); sadd(sGe,sGb,409600)
    if R3:
        I(f's_lshr_b32 s{t0}, s2, 3')
        if E('P3MAP',1)==0: I(f's_and_b32 s{t1}, s{t0}, 7'); smul(t1,t1,5); I(f's_lshr_b32 s{t0}, s{t0}, 3'); smul(t0,t0,10)
        else: I(f's_and_b32 s{t1}, s{t0}, 3'); smul(t1,t1,10); I(f's_lshr_b32 s{t0}, s{t0}, 2'); smul(t0,t0,5)
        sacc(t0,t1); I(f's_lshr_b32 s{t0}, s{t0}, 2')
        I([f's_cmp_ge_u32 s{t0}, 10', f's_cselect_b32 s{t1}, 10, 0']); I(f's_sub_u32 s{sRot}, s{t0}, s{t1}')
    else: I(f's_mov_b32 s{sRot}, 0')
    smul(t0,sRot,40960); I(f's_add_u32 s{sGo}, s{sGb}, s{t0}')
    I(f'v_lshlrev_b32 v4, 3, v{vL}'); I(f's_lshl_b32 s{t0}, s{sW}, 10'); sadd(t0,t0,L_PP); I(f'v_add_u32 v213, s{t0}, v4')
    I(f's_lshl_b32 s{t0}, s{sDm}, 10'); sadd(t0,t0,WS_WOF); I([f's_cmp_lt_u32 s2, 200', f's_cselect_b32 s{sB0+3}, s{t0}, {OOB}'])
    I(f's_lshl_b32 s{t0}, s{sDm}, 2'); sadd(t0,t0,WS_FL+FL_E*128); I(f'v_mov_b32 v217, s{t0}')
    I(f'v_min_u32 v4, 49, v{vL}'); I(f'v_mul_u32_u24 v5, 52, v4'); I(f'v_lshrrev_b32 v5, 8, v5'); I(f'v_mad_u32_u24 v4, v5, 35, v4')
    smul(t0,sWr,400); smul(t1,sCt,5); sacc(t0,t1); I(f'v_add_u32 v4, s{t0}, v4'); I(f'v_lshlrev_b32 v4, 2, v4'); I(f'v_add_u32 v196, {WS_FL+FL_E*128}, v4')
    I(f's_lshl_b32 s{t0}, s{sGrp}, 1'); sacc(t0,sWc); I(f's_lshl_b32 s{t0}, s{t0}, 8'); sadd(t0,t0,WS_FL+FL_E*128)
    I(f'v_lshlrev_b32 v4, 2, v{vL}'); I(f'v_add_u32 v197, s{t0}, v4')
    I(f'v_lshlrev_b32 v218, 4, v{vL}'); I(f'v_add_u32 v219, 0x1000, v218')
weave([dmaB(i) for i in range(5)]+[dma_adv(SLOT)],cap(setup0))
I(f's_lshl_b32 s{t0}, s{sW}, 10'); I(f's_add_u32 m0, s{t0}, {L_PP}'); I(f'buffer_load_dwordx4 v213, {srd(sWO)}, s{sGo} offen lds')
I('s_mov_b64 exec, 0xffff'); I(f'buffer_store_dword v212, v217, {srd(sWS)}, s{sDl} offen sc1'); I('s_mov_b64 exec, -1')
PFL=[f'buffer_load_dword v176, v96, {srd(sX)}, 0 offen {PFPOL}', f'buffer_load_dword v177, v97, {srd(sOUT)}, 0 offen {PFPOL}', f'buffer_load_dword v178, v98, {srd(sTAB)}, 0 offen {PFPOL}'] if PF else []
if PFE==1: emit(PFL)
S1=cap(setup1)
D=[]
if PEEL: D+=[dmaA(i) for i in range(4)]+[advA(SLOT)]
elif HALF: D+=[dmaA(i) for i in range(4)]+[dmaB(i) for i in range(5)]+[dma_adv(SLOT)]+[dmaA(i) for i in range(4)]+[advA(SLOT)]
else:
    for st in (1,2): D+=[dmaA(i) for i in range(4)]+[dmaB(i) for i in range(5)]+[dma_adv(SLOT)]
if PFE==2: D=D[:10]+[PFL]+D[10:]
weave(D,S1)
if PFE==0: emit(PFL)
mksrd(sOUT,sK+14,2621440)
stamp(1)
I(f's_cmp_eq_u32 s{sTyp}, 0'); I('s_cbranch_scc0 LsetFQ')
I(f's_lshl_b32 s{t0}, s{sWc}, 13'); smul(t1,sWr,1792); sacc(t0,t1); sadd(t0,t0,L_RED)
I(f'v_lshlrev_b32 v4, 2, v{vL}'); I(f'v_add_u32 v{vE0}, s{t0}, v4')
I(f's_lshl_b32 s{t0}, s{sGrp}, 1'); sacc(t0,sWc); I(f's_lshl_b32 s{t0}, s{t0}, 12'); sacc(t0,t1); sadd(t0,t0,WS_KVA)
I(f'v_add_u32 v{vE0+1}, s{t0}, v4')
I(f's_cmp_eq_u32 s{sWr}, 0'); I(f's_cselect_b32 s{t1}, 64, 8'); I(f'v_cmp_gt_u32 vcc, s{t1}, v{vL}')
I(f'v_cndmask_b32 v{vE0+2}, v{vE0+2}, v{vE0+1}, vcc')
I(f's_lshl_b32 s{t0}, s{sGrp}, 2'); sacc(t0,sW); I(f's_lshl_b32 s{t0}, s{t0}, 4'); sacc(t0,sRb)
I(f's_lshl_b32 s{t0}, s{t0}, 7'); sadd(t0,t0,WS_FL+FL_KV*128); I(f'v_mov_b32 v{vE0+3}, s{t0}')
I('s_branch Lsetdone')
lab('LsetFQ')
I(f's_cmp_eq_u32 s{sWc}, 0'); I('s_cbranch_scc0 Lsetdone')
I(f's_lshl_b32 s{t0}, s{sRb}, 1'); sacc(t0,sWr); smul(t0,t0,5120); smul(t1,sGrp,640); sacc(t0,t1)
I(f's_mov_b32 s{t1}, 163840'); I(f'v_lshlrev_b32 v4, 3, v{vN}'); I(f'v_mad_u32_u24 v4, v{vG}, s{t1}, v4'); I(f'v_add_u32 v{vE0}, s{t0}, v4')
I(f's_lshl_b32 s{t0}, s{sGrp}, 1'); sacc(t0,sWr); I(f's_lshl_b32 s{t0}, s{t0}, 4'); sacc(t0,sRb)
I(f's_lshl_b32 s{t0}, s{t0}, 7'); sadd(t0,t0,WS_FL+FL_Y*128); I(f'v_mov_b32 v{vE0+3}, s{t0}')
lab('Lsetdone')
def reads(F,ks):
    L=[]
    for mt in range(4): L.append(f'ds_read_b128 {v(F["A"]+4*mt,4)}, v{vRA+ks} offset:{2048*mt}')
    for nt in range(5):
        for h in range(2): L.append(f'ds_read_b64_tr_b16 {v(F["B"]+4*nt+2*h,2)}, v{vRB+nt} offset:{(32*ks+16*h)*160}')
    return L
def mfmas(F):
    L=[]
    for nt in range(5):
        for mt in range(4):
            c=v(ACC+(mt*5+nt)*4,4); L.append(f'{MF} {c}, {v(F["A"]+4*mt,4)}, {v(F["B"]+4*nt,4)}, {c}')
    return L
def block(M,R,X,pos):
    slots=[[] for _ in M]
    for g,x in R: slots[g].append(x)
    for g,x in zip(pos,X): slots[g].append(x)
    for m,s_ in zip(M,slots): I(m); emit(s_)
def adds(d): return [f'v_add_u32 v{r}, {d}, v{r}' for r in [vRA,vRB,vRB+1,vRB+2,vRB+3,vRB+4,vRA+1]]
I(f's_mov_b32 s{sCnt}, 0')
if PEEL:
    I(f's_waitcnt vmcnt(4) lgkmcnt(0)'); I('s_barrier')
else: I(f's_waitcnt vmcnt(13) lgkmcnt(0)'); I('s_barrier')
I(f's_add_u32 s{sTag}, s{sTag}, 0x9e3779b9')
stamp(3)
I('ds_read_b64_tr_b16 v[4:5], v213'); I('ds_read_b64_tr_b16 v[6:7], v213 offset:512')
emit(reads(FX,0)[:12])
I(f'v_mov_b32 v212, s{sTag}')
I('s_waitcnt lgkmcnt(12)'); I(f'buffer_store_dwordx4 v[4:7], v218, {srd(sWS)}, s{sB0+3} offen sc1')
emit(reads(FX,0)[12:])
def itertop(i=None):
    if i==7: stamp(11)
    I('s_waitcnt lgkmcnt(0)')
if PEEL:
    I('s_waitcnt lgkmcnt(0)')
    X=[dmaB(i) for i in range(5)]+[advB(SLOT)]+[dmaA(i) for i in range(4)]+[advA(SLOT)]
    block(mfmas(FX),list(enumerate(reads(FY,1))),X,[0,2,4,6,8,8,10,12,14,16,17])
    I('s_waitcnt vmcnt(4) lgkmcnt(0)'); I('s_barrier')
    ad=adds(SLOT)
    R2=[(0,ad[0]),(0,ad[1]),(1,ad[2]),(1,ad[3]),(2,ad[4]),(2,ad[5]),(3,ad[6])]+[(i+2,r) for i,r in enumerate(reads(FX,0))]
    X=[dmaB(i) for i in range(5)]+[advB(SLOT)]+[dmaA(i) for i in range(4)]+[advA(-3*SLOT)]
    block(mfmas(FY),R2,X,[0,2,4,6,8,8,10,12,14,16,17])
    I(f's_mov_b32 s{sCnt}, 1')
lab('Lmain')
itertop()
pre=[f's_add_u32 s{sCnt}, s{sCnt}, 1', f's_mov_b32 s{sDl}, {SLOT}', f's_mov_b32 s{sDm}, {SLOT}',
     f's_and_b32 s{t0}, s{sCnt}, 3', f's_cselect_b32 s{sDl}, s{sDl}, {-3*SLOT}', f's_cmp_eq_u32 s{t0}, 1', f's_cselect_b32 s{sDm}, {-3*SLOT}, s{sDm}']
eflag=[f's_cmp_eq_u32 s{sCnt}, {3 if HALF else 2}','s_cbranch_scc0 Lnoef','s_mov_b64 exec, 1',f'buffer_store_dword v212, v217, {srd(sWS)}, 0 offen sc1','s_mov_b64 exec, -1',
   f's_cmp_eq_u32 s{sTyp}, 0','s_cbranch_scc0 LefF',f's_mov_b32 s{t0}, {TB.KA_OFF}']+[f'buffer_load_dwordx4 {v(vKA+4*i,4)}, v218, {srd(sTAB)}, s{t0} offen offset:{1024*i}' for i in range(2)]+['s_branch Lnoef','LefF:',
   f's_cmp_eq_u32 s{sWc}, 0','s_cbranch_scc0 Lnoef',f's_mov_b32 s{t0}, {TB.D1_OFF}',f's_mov_b32 s{t1}, {TB.D1_OFF+4096}']+[f'buffer_load_dwordx4 {a_(224+4*i,4)}, v218, {srd(sTAB)}, s{t0+i//4} offen offset:{1024*(i%4)}' for i in range(8)]+['Lnoef:']
if PF and PFW: eflag+=[f's_cmp_eq_u32 s{sCnt}, {PFW}','s_cbranch_scc0 Lnopfw',f'buffer_load_dword v176, v99, {srd(sWR)}, 0 offen {PFPOL}',f'buffer_load_dword v177, v99, {srd(sWI)}, 0 offen {PFPOL}','Lnopfw:']
ad=adds(f's{sDl}')
R2=[(0,ad[0]),(0,ad[1]),(1,ad[2]),(1,ad[3]),(2,ad[4]),(2,ad[5]),(3,ad[6])]+[(i+2,r) for i,r in enumerate(reads(FX,0))]
if HALF:
    preH=pre+[f's_mov_b32 s{t1}, {SLOT}', f's_cmp_eq_u32 s{t0}, 2', f's_cselect_b32 s{t1}, {-3*SLOT}, s{t1}']+advB(f's{t1}')
    block(mfmas(FX),list(enumerate(reads(FY,1))),[dmaB(i) for i in range(5)]+[preH],[1,5,9,13,17,18])
    I('s_waitcnt vmcnt(9) lgkmcnt(0)'); I('s_barrier')
    block(mfmas(FY),R2,[dmaA(i) for i in range(4)]+[advA(f's{sDm}'),eflag],[1,6,11,16,18,19])
else:
    block(mfmas(FX),list(enumerate(reads(FY,1))),[dmaA(i) for i in range(4)]+[pre],[1,6,11,16,18])
    I('s_waitcnt vmcnt(13) lgkmcnt(0)'); I('s_barrier')
    block(mfmas(FY),R2,[dmaB(i) for i in range(5)]+[dma_adv(f's{sDm}'),eflag],[1,5,9,13,17,18,19])
I(f's_cmp_lt_u32 s{sCnt}, 7'); I('s_cbranch_scc1 Lmain')
def wload(base,vp,vm,vm0,i,which):
    mh,r=i>>2,i&3; sb=(sB0,sB1)[mh]
    if which==0:
        return [f's_add_u32 s{t2}, s{sb}, {64*r*642}', f'buffer_load_short_d16_hi v{base+i}, v{vp}, {srd(sWR)}, s{t2} offen', f'buffer_load_short_d16_hi v{base+8+i}, v{vp}, {srd(sWI)}, s{t2} offen']
    m=vm0 if i==0 else vm
    return [f's_sub_u32 s{t2}, {(1280-64*r-(256 if i==0 else 0))*642}, s{sb}', f'buffer_load_short_d16_hi v{base+16+i}, v{m}, {srd(sWR)}, s{t2} offen', f'buffer_load_short_d16_hi v{base+24+i}, v{m}, {srd(sWI)}, s{t2} offen']
WL=[wload(WP,vWp,vWm,vWm0,i,w) for i in range(8) for w in range(2)]
wl=0; vm=0
W3L=['v_mov_b32 v252, 0','v_mov_b32 v253, 0',f'buffer_load_short_d16_hi v252, v254, {srd(sWR)}, 0 offen offset:640',f'buffer_load_short_d16_hi v253, v254, {srd(sWI)}, 0 offen offset:640']
FLG=[f'buffer_load_dword v198, v196, {srd(sWS)}, 0 offen sc1', f'buffer_load_dword v199, v197, {srd(sWS)}, 0 offen sc1']
plan={16:{(7,0):0,(7,1):3,(8,0):4,(8,1):4,(9,0):3,(9,1):2},8:{(7,0):0,(7,1):1,(8,0):2,(8,1):2,(9,0):2,(9,1):1},10:{(7,0):0,(7,1):2,(8,0):2,(8,1):2,(9,0):2,(9,1):2}}[WS1]
def pos(n,a=2,b=17): return [a+(b-a)*i//max(n-1,1) for i in range(n)]
for s_ in (7,8,9):
    itertop(s_)
    X=WL[wl:wl+plan[(s_,0)]]; wl+=plan[(s_,0)]
    if s_==7: X=([dmaB(i) for i in range(5)] if HALF else [])+[FLG]+X
    block(mfmas(FX),list(enumerate(reads(FY,1))),X,pos(len(X)))
    if s_==7: I(f's_waitcnt vmcnt({11+2*wl}) lgkmcnt(0)')
    elif s_==8: I(f's_waitcnt vmcnt({2*wl}) lgkmcnt(0)')
    else: I('s_waitcnt lgkmcnt(0)')
    I('s_barrier')
    if s_<9:
        ad=adds(SLOT if s_==8 else -3*SLOT)
        R2=[(0,ad[0]),(0,ad[1]),(1,ad[2]),(1,ad[3]),(2,ad[4]),(2,ad[5]),(3,ad[6])]+[(i+2,r) for i,r in enumerate(reads(FX,0))]
    else: R2=[]
    X=WL[wl:wl+plan[(s_,1)]]; wl+=plan[(s_,1)]
    if s_==9: X=X+[W3L]
    block(mfmas(FY),R2,X,pos(len(X),3,18 if s_==9 else 16))
assert wl==WS1
I(f's_mov_b32 s{sAo}, 0x3fb8aa3b'); I(f's_mov_b32 s{sAo+1}, 0x358637bd')
I(f'v_cmp_ne_u32 vcc, s{sTag}, v198'); I(f'v_cmp_ne_u32 s[{t4}:{t5}], s{sTag}, v199'); I(f's_or_b64 vcc, vcc, s[{t4}:{t5}]'); I('s_cbranch_vccz Leok')
poll([196,197],198)
lab('Leok')
I('s_nop 3')
stamp(14)
def acc(mt,nt,r=0,n=1): return v(ACC+(mt*5+nt)*4+r,n)
def phi2(dst,src,tmp):
    I(f'v_pk_mul_f32 {v(tmp,2)}, {v(src,2)}, s[{sAo}:{sAo+1}] op_sel_hi:[1,0]')
    I(f'v_exp_f32 v{tmp}, v{tmp} clamp'); I(f'v_exp_f32 v{tmp+1}, v{tmp+1} clamp')
    I(f'v_max_f32 v{dst}, s{sAo+1}, v{src}'); I(f'v_max_f32 v{dst+1}, s{sAo+1}, v{src+1}')
    I(f'v_pk_add_f32 {v(dst,2)}, {v(dst,2)}, {v(tmp,2)}')
def bl(i):
    ks,nt=divmod(i,5)
    L=[f'buffer_load_dwordx4 {a_(4*i,4)}, v{218 if nt<4 else 219}, {srd(sWS)}, s{sGo} offen offset:{1024*(nt%4)}']
    return L+([f's_add_u32 s{sGo}, s{sGo}, 40960', f's_cmp_eq_u32 s{sGo}, s{sGe}', f's_cselect_b32 s{sGo}, s{sGb}, s{sGo}'] if nt==4 else [])
def bls(a,b): return [bl(i) for i in range(a,b)]
def bls_if_b(a,b):
    if a>=b: return []
    uid[0]+=1; L=f'Lb{uid[0]}'
    return [f's_cmp_eq_u32 s{sWc}, 0', f's_cbranch_scc1 {L}']+bls(a,b)+[L+':']
I(f's_cmp_eq_u32 s{sTyp}, 0'); I('s_cbranch_scc0 LepiFQ')
PK=100; VV=124; DD=148; PAIRS=TB.PAIRS
NB0=E('NB0',14); NB1=E('NB1',14)
def kvepi():
    for nt in (2,3,4):
        for mt in range(4):
            for p in range(2): I(f'v_cvt_pk_bf16_f32 v{VV+(nt-2)*8+mt*2+p}, {acc(mt,nt,2*p)}, {acc(mt,nt,2*p+1)}')
    I(f'v_cmp_gt_u32 vcc, 8, v{vN}'); vconst(4,0x3f803f80)
    I(f's_lshl_b32 s{t0}, s{sW}, 12'); sadd(t0,t0,L_RED)
    for i in range(8): I(f'v_cndmask_b32 v{VV+i}, v{VV+i}, v4, vcc')
    for i in range(8): I(f'v_add_u32 v{vKA+i}, s{t0}, v{vKA+i}')
    for nt in range(3):
        for mt in range(4):
            for p in range(2):
                b=ACC+(mt*5+nt)*4+2*p
                phi2(b,b,4+2*p); I(f'v_cvt_pk_bf16_f32 v{PK+nt*8+mt*2+p}, v{b}, v{b+1}')
        for kb in range(2):
            for i,(a,b) in enumerate(PAIRS):
                if a==nt: I(f'{MF} {v(DD+4*i,4)}, {v(PK+a*8+4*kb,4)}, {v(VV+(b-2)*8+4*kb,4)}, {"0" if kb==0 else v(DD+4*i,4)}')
        if nt>0:
            for i,(a,b) in enumerate(PAIRS):
                if a==nt-1: I(f'ds_write_b128 v{vKA+i}, {v(DD+4*i,4)}')
P=cap(kvepi)
weave(P,WL[WS1:],0,len(P)//2)
for i,(a,b) in enumerate(PAIRS):
    if a==2: I(f'ds_write_b128 v{vKA+i}, {v(DD+4*i,4)}')
I('s_waitcnt lgkmcnt(0)'); I('s_barrier')
for i in range(7): I(f'ds_read2st64_b32 {v(16+2*i,2)}, v{vE0} offset0:{i} offset1:{i+16}')
for i in range(7):
    I(f's_waitcnt lgkmcnt({6-i})'); I(f'v_add_f32 v{16+2*i}, v{16+2*i}, v{17+2*i}')
    I(f'buffer_atomic_add_f32 v{16+2*i}, v{vE0+1+(i==6)}, {srd(sWS)}, 0 offen offset:{256*i} {ATP}')
stamp(15)
I('s_branch Lp2a')
lab('LepiFQ')
I(f's_cmp_eq_u32 s{sWc}, 0'); I('s_cbranch_scc0 LepiQ')
XB=100; YD=140
def xcv(nt):
    for mt in range(4):
        for p in range(2): I(f'v_cvt_pk_bf16_f32 v{XB+nt*8+mt*2+p}, {acc(mt,nt,2*p)}, {acc(mt,nt,2*p+1)}')
def ymf(nt):
    for kb in range(2):
        for jt in range(4):
            d=v(YD+(nt&1)*16+4*jt,4)
            I(f'{MF} {d}, {a_(224+(jt*2+kb)*4,4)}, {v(XB+nt*8+4*kb,4)}, {"0" if kb==0 else d}')
def yst(nt):
    for jt in range(4):
        b=YD+(nt&1)*16+4*jt; o=172+jt*2
        I([f'v_cvt_pk_bf16_f32 v{o}, v{b}, v{b+1}', f'v_cvt_pk_bf16_f32 v{o+1}, v{b+2}, v{b+3}',
           f'buffer_store_dwordx2 {v(o,2)}, v{vE0}, {srd(sWS)}, s{t0+jt} offen offset:{128*nt} sc1'])
for jt in range(4): I(f's_mov_b32 s{t0+jt}, {4*jt*163840}')
xcv(0)
weave(cap(ymf,0),cap(xcv,1))
for nt in range(5):
    if nt<4:
        F_=(cap(xcv,nt+2) if nt<3 else [])
        Y_=cap(yst,nt)
        M=cap(ymf,nt+1)
        for i,m in enumerate(M):
            I(m)
            if i<4: emit(F_[2*i:2*i+2])
            else: emit(Y_[i-4])
    else: yst(nt)
stamp(15)
I('s_waitcnt vmcnt(0)'); setflag(vE0+3,4)
stamp(16)
I(f's_cmp_eq_u32 s{sAct}, 0'); I('s_cbranch_scc1 Lp2b')
emit(WL[WS1:])
T1,T2,W3,YF,EF,TM,PQ=16,48,112,144,160,80,184
vY,vF,vXW,vXR,vRS,vLF=8,9,10,11,12,13
def tgen():
    I(f'v_lshlrev_b32 v4, 6, v{vN}'); I(f'v_add_u32 v4, s{sT}, v4'); I(f'v_cvt_f32_u32 v4, v4'); I(f'v_mul_f32 v4, 0x3a000000, v4'); I(f'v_add_f32 v5, 0.5, v4')
    I(f'v_lshlrev_b32 v6, 2, v{vG}'); I(f'v_cvt_f32_u32 v6, v6')
    for ks in range(2):
        for j in range(4):
            if 16*ks+j: I(f'v_add_f32 v7, {float(16*ks+j) if 16*ks+j in (1,2,4) else hex(struct.unpack("<I",struct.pack("<f",float(16*ks+j)))[0])}, v6')
            n2r=7 if 16*ks+j else 6
            for mh in range(2):
                c,s_=TM+4*mh,TM+4*mh+1
                I(f'v_mul_f32 v{s_}, v{4+mh}, v{n2r}'); I(f'v_cos_f32 v{c}, v{s_}'); I(f'v_sin_f32 v{s_}, v{s_}')
            for mh in range(2):
                c,s_=TM+4*mh,TM+4*mh+1
                I(f'v_cvt_pk_bf16_f32 v{T1+(mh*2+ks)*4+j}, v{c}, -v{s_}'); I(f'v_cvt_pk_bf16_f32 v{T1+((2+mh)*2+ks)*4+j}, v{s_}, v{c}')
    I(f'v_lshlrev_b32 v4, 8, v{vG}'); I(f'v_add_u32 v4, s{sT}, v4'); I(f'v_cvt_f32_u32 v4, v4'); I(f'v_mul_f32 v4, 0x3a000000, v4')
    I(f'v_cvt_f32_u32 v6, v{vN}'); I(f'v_add_f32 v7, 0x41800000, v6')
    for ks in range(2):
        for e in range(4):
            cst=0.5*ks+e/32.0
            if cst: I(f'v_add_f32 v5, {hex(struct.unpack("<I",struct.pack("<f",cst))[0])}, v4')
            kr=5 if cst else 4
            for h in range(2):
                c,s_=TM+h*8+e,TM+h*8+4+e
                I(f'v_mul_f32 v{s_}, v{kr}, v{6+h}'); I(f'v_cos_f32 v{c}, v{s_}'); I(f'v_sin_f32 v{s_}, v{s_}')
        for h in range(2):
            c,s_=TM+h*8,TM+h*8+4; u0=T2+(h*2+ks)*4; u1=T2+((2+h)*2+ks)*4
            for p in range(2):
                I(f'v_cvt_pk_bf16_f32 v{u0+p}, v{c+2*p}, v{c+2*p+1}'); I(f'v_cvt_pk_bf16_f32 v{u0+2+p}, v{s_+2*p}, v{s_+2*p+1}')
                I(f'v_cvt_pk_bf16_f32 v{u1+p}, -v{s_+2*p}, -v{s_+2*p+1}'); I(f'v_mov_b32 v{u1+2+p}, v{u0+p}')
def p2addr():
    smul(t0,sCh,32*0x334); sadd(t1,t0,31*0x334); I(f's_lshr_b32 s{t0}, s{t0}, 16'); I(f's_lshr_b32 s{t1}, s{t1}, 16')
    I(f'v_mov_b32 v4, s{t0}'); I(f'v_mov_b32 v5, s{t1}'); I(f'v_cmp_gt_u32 vcc, 32, v{vL}'); I(f'v_cndmask_b32 v4, v5, v4, vcc')
    I(f'v_and_b32 v5, 31, v{vL}'); I(f'v_lshl_add_u32 v4, v4, 5, v5'); I(f'v_lshlrev_b32 v4, 7, v4'); I(f'v_add_u32 v{vF}, {WS_FL+FL_Y*128}, v4')
    I(f's_lshr_b32 s{t0}, s{sT}, 1'); smul(t0,t0,163840); I(f's_lshl_b32 s{t1}, s{sCh}, 8'); sacc(t0,t1); I(f's_lshl_b32 s{t1}, s{sWr}, 2'); sacc(t0,t1)
    I(f'v_mul_u32_u24 v4, 20480, v{vG}'); I(f'v_lshl_add_u32 v4, v{vN}, 3, v4'); I(f'v_add_u32 v{vY}, s{t0}, v4')
    smul(t0,sWc,8704); sadd(t0,t0,L_XCH[0])
    I(f's_lshl_b32 s{t1}, s{sWr}, 5'); sacc(t1,t0)
    I(f'v_mul_u32_u24 v{vXW}, 272, v{vN}'); I(f'v_lshl_add_u32 v{vXW}, v{vG}, 6, v{vXW}'); I(f'v_add_u32 v{vXW}, s{t1}, v{vXW}')
    smul(t1,sWr,16*272); sacc(t1,t0)
    I(f'v_mul_u32_u24 v{vXR}, 272, v{vG}'); I(f'v_lshl_add_u32 v{vXR}, v{vN}, 4, v{vXR}'); I(f'v_add_u32 v{vXR}, s{t1}, v{vXR}')
    smul(t0,sWr,16*81920); I(f's_lshl_b32 s{t1}, s{sCh}, 12'); sacc(t0,t1)
    I(f's_lshr_b32 s{t1}, s{sT}, 1'); I(f's_lshl_b32 s{t1}, s{t1}, 8'); sacc(t0,t1); sadd(t0,t0,WS_R)
    I(f's_mov_b32 s{t1}, 81920'); I(f'v_lshlrev_b32 v{vRS}, 4, v{vN}'); I(f'v_mad_u32_u24 v{vRS}, v{vG}, s{t1}, v{vRS}'); I(f'v_add_u32 v{vRS}, s{t0}, v{vRS}')
    I(f's_lshl_b32 s{t0}, s{sWc}, 2'); sadd(t0,t0,L_FLG); I(f'v_mov_b32 v{vLF}, s{t0}')
    I(f's_lshl_b32 s{t0}, s{sCh}, 3'); sacc(t0,sGrp)
    I(f's_lshl_b32 s{t1}, s{sCh}, 4'); I(f's_lshr_b32 s{t2}, s{sT}, 1'); sacc(t1,t2); I(f's_sub_u32 s{t1}, s{t1}, 128')
    I([f's_cmp_eq_u32 s{sTyp}, 0', f's_cselect_b32 s{t0}, s{t0}, s{t1}', f's_cselect_b32 s{sAct}, 3, 1'])
    I(f's_and_b32 s{t1}, s{t0}, 1'); I(f's_lshl_b32 s{t1}, s{t1}, 2'); I(f's_lshr_b32 s{t0}, s{t0}, 1'); I(f's_lshl_b32 s{t0}, s{t0}, 7'); sacc(t0,t1); sadd(t0,t0,WS_FL+FL_R*128); I(f'v_mov_b32 v15, s{t0}')
TG=cap(tgen)
def t0loads():
    for tb,off in ((T1,TB.T1_OFF),(T2,TB.T2_OFF)):
        for i in range(8):
            if i%4==0: I(f's_mov_b32 s{t0}, {off+1024*i}')
            I(f'buffer_load_dwordx4 {v(tb+4*i,4)}, v218, {srd(sTAB)}, s{t0} offen offset:{1024*(i%4)}')
def fhex(x): return hex(struct.unpack('<I',struct.pack('<f',x))[0])
GP,G1,G16,GA,GS=192,198,204,210,211
NGA=E('NGA',3)
def gginit(GT):
    I(f'v_lshlrev_b32 v{GT+3}, 3, v{vG}'); I(f'v_add_u32 v{GT+3}, s{sWr}, v{GT+3}')
    smul(t1,sCt,40)
    for nt in range(3):
        d_,p_=GT+4,GT+5
        if nt<2: I(f'v_add_u32 v{d_}, {16*nt}, v{vN}')
        else: I(f'v_and_b32 v{d_}, 7, v{vN}'); I(f'v_add_u32 v{d_}, 32, v{d_}')
        I(f'v_add_u32 v{d_}, s{t1}, v{d_}'); I(f'v_mul_u32_u24 v{p_}, v{d_}, v{GT+3}'); I(f'v_cvt_f32_u32 v{p_}, v{p_}'); I(f'v_cvt_f32_u32 v{d_}, v{d_}')
        I(f'v_mul_f32 v{GT}, {fhex(1/640)}, v{p_}'); I(f'v_cos_f32 v{GP+2*nt}, v{GT}'); I(f'v_sin_f32 v{GP+2*nt+1}, v{GT}')
        I(f'v_mul_f32 v{GT+1}, {fhex(1/320)}, v{d_}'); I(f'v_cos_f32 v{G1+2*nt}, v{GT+1}'); I(f'v_sin_f32 v{G1+2*nt+1}, v{GT+1}')
        I(f'v_mul_f32 v{GT+2}, {fhex(1/20)}, v{d_}'); I(f'v_cos_f32 v{G16+2*nt}, v{GT+2}'); I(f'v_sin_f32 v{G16+2*nt+1}, v{GT+2}')
    I(f'v_and_b32 v{GS}, 1, v{vN}'); I(f'v_lshlrev_b32 v{GS}, 31, v{GS}'); I(f'v_xor_b32 v{GS}, 0xbf800000, v{GS}')
    I(f's_cmp_eq_u32 s{sWr}, 0'); I(f's_cselect_b32 s{sEx}, 0xffff, 0'); I(f's_mov_b32 s{sEx+1}, 0')
    smul(t0,sWr,30720); I(f'v_add_u32 v{GA}, s{t0}, v218')
def rot(d,p,r,dd=None):
    dd=d if dd is None else dd
    I(f'v_pk_mul_f32 {v(d,2)}, {v(p,2)}, {v(r,2)} op_sel_hi:[1,0]')
    I(f'v_pk_fma_f32 {v(dd,2)}, {v(p,2)}, {v(r,2)}, {v(d,2)} op_sel:[1,1,0] op_sel_hi:[0,1,1] neg_lo:[0,1,0]')
def ggloop(n,GT=144):
    uid[0]+=1; L=f'Lgg{uid[0]}'
    I(f's_cmp_eq_u32 s{t3}, 0'); I(f's_cbranch_scc1 {L}d'); lab(L)
    for nt in range(3):
        T=GT+nt*12; P0=GP+2*nt
        rot(T,P0,G1+2*nt); rot(T+2,T,G1+2*nt); rot(T+4,T+2,G1+2*nt)
        I(f'v_cndmask_b32 v{T+6}, v{P0+1}, v{GS}, s[{sEx}:{sEx+1}]')
        I(f'v_cvt_pk_bf16_f32 v{T+8}, v{P0}, v{T}'); I(f'v_cvt_pk_bf16_f32 v{T+9}, v{T+2}, v{T+4}')
        I(f'v_cvt_pk_bf16_f32 v{T+10}, -v{T+6}, -v{T+1}'); I(f'v_cvt_pk_bf16_f32 v{T+11}, -v{T+3}, -v{T+5}')
        I(f'ds_write_b128 v{GA}, {v(T+8,4)} offset:{1024*nt}')
        rot(T,P0,G16+2*nt,P0)
    I(f'v_add_u32 v{GA}, 0xc00, v{GA}'); I(f's_mov_b32 s{sEx}, 0')
    I(f's_sub_u32 s{t3}, s{t3}, 1'); I(f's_cmp_lg_u32 s{t3}, 0'); I(f's_cbranch_scc1 {L}'); lab(L+'d')
lab('Lp2a')
I(f's_cmp_eq_u32 s{sT}, 0'); I('s_cbranch_scc0 LtgK')
t0loads(); I('s_waitcnt vmcnt(16)'); I('s_branch Lpub1')
lab('LtgK')
emit(TG)
I(f's_cmp_eq_u32 s{sTyp}, 0'); I('s_cbranch_scc0 Lp2b')
I('s_waitcnt vmcnt(0)')
lab('Lpub1')
I(f's_cmp_eq_u32 s{sTyp}, 0'); I('s_cbranch_scc0 Lp2b')
setflag(vE0+3,4)
stamp(16)
lab('Lp2b')
NB2=E('NB2',0)
I(f's_cmp_eq_u32 s{sWc}, 0'); I('s_cbranch_scc1 LwinA')
emit(bls(0,NB2)); I('s_branch LwinAd')
lab('LwinA')
NGK=E('NGK',0)
gginit(144); I(f's_cmp_eq_u32 s{sTyp}, 0'); I(f's_cselect_b32 s{t3}, {NGK}, {NGA}'); I(f's_sub_u32 s{sBS}, 10, s{t3}'); ggloop(0)
I(f's_cmp_eq_u32 s{sAct}, 0'); I('s_cbranch_scc1 Lp3')
lab('LwinAd')
I(f's_cmp_eq_u32 s{sCh}, 0'); I('s_cbranch_scc0 Lnosp1')
I(f's_lshl_b32 s{t0}, s{sW}, 9'); sadd(t0,t0,L_PP)
I(f'v_lshlrev_b32 v4, 2, v{vL}'); I(f'v_add_u32 v4, s{t0}, v4'); I(f'v_lshlrev_b32 v5, 4, v{vG}'); I(f'v_add_u32 v5, s{t0}, v5')
I(f'ds_write_b32 v4, v252'); I(f'ds_write_b32 v4, v253 offset:256')
for arr,off in ((0,0),(8,256),(16,128),(24,384)):
    for mh in range(2): I(f'ds_read_b128 {v(W3+arr+4*mh,4)}, v5 offset:{off+64*mh}')
lab('Lnosp1')
p2addr()
I('s_waitcnt lgkmcnt(0)')
stamp(17)
poll([vF],14)
stamp(18)
for ks in range(2):
    for i in range(4):
        I(f's_mov_b32 s{t0}, {(16*ks+i)*5120}')
        for ri in range(2): I(f'buffer_load_dword v{YF+(ri*2+ks)*4+i}, v{vY}, {srd(sWS)}, s{t0} offen offset:{128*ri} {HS}')
for ks in range(2):
    I(f's_waitcnt vmcnt({8-8*ks})')
    for mt in (0,2,1,3):
        for ri in range(2):
            d=v(EF+(mt*2+ri)*4,4)
            I(f'{MF} {d}, {v(T1+(mt*2+ks)*4,4)}, {v(YF+(ri*2+ks)*4,4)}, {"0" if ks==0 else d}')
stamp(19)
EF2=EF
def pk(op,d,*s,neg=None):
    t=f'v_pk_{op}_f32 {v(d,2)}, '+', '.join(v(x,2) for x in s)
    if neg: t+=f' neg_lo:{neg} neg_hi:{neg}'
    I(t)
PQ=16
Pre,Pim,Qre,Qim=PQ,PQ+8,PQ+16,PQ+24
def EFr(typ,mh,ri,p): return EF+((typ*2+mh)*2+ri)*4+2*p
for mh in range(2):
    for p in range(2):
        o=mh*4+2*p; Er,Ei,Fr,Fi=EFr(0,mh,0,p),EFr(0,mh,1,p),EFr(1,mh,0,p),EFr(1,mh,1,p)
        wpr,wpi,wmr,wmi=WP+o,WP+8+o,WP+16+o,WP+24+o
        T=TM+(p*16)
        pk('add',T,Er,Fi); pk('add',T+2,Ei,Fr,neg='[0,1]'); pk('add',T+4,Er,Fi,neg='[0,1]'); pk('add',T+6,Ei,Fr)
        pk('mul',T+8,T,wpr); pk('mul',T+10,T,wpi); pk('mul',T+12,T+4,wmr); pk('mul',T+14,T+4,wmi)
        pk('fma',T+8,T+2,wpi,T+8,neg='[1,0,0]'); pk('fma',T+10,T+2,wpr,T+10); pk('fma',T+12,T+6,wmi,T+12,neg='[1,0,0]'); pk('fma',T+14,T+6,wmr,T+14)
        pk('add',Pre+o,T+8,T+12); pk('add',Pim+o,T+10,T+14); pk('add',Qre+o,T+14,T+10,neg='[0,1]'); pk('add',Qim+o,T+8,T+12,neg='[0,1]')
I(f's_cmp_eq_u32 s{sT}, 0'); I('s_cbranch_scc0 Lnot0')
I('s_mov_b64 exec, 0xffff')
Er,Ei,Fr,Fi=EFr(0,0,0,0),EFr(0,0,1,0),EFr(1,0,0,0),EFr(1,0,1,0)
I(f'v_mul_f32 v{Pre}, v{Er}, v{WP}'); I(f'v_fma_f32 v{Pre}, -v{Ei}, v{WP+8}, v{Pre}')
I(f'v_mul_f32 v{Pim}, v{Er}, v{WP+8}'); I(f'v_fma_f32 v{Pim}, v{Ei}, v{WP}, v{Pim}')
I(f'v_mul_f32 v{Qre}, v{Fr}, v{WP+16}'); I(f'v_fma_f32 v{Qre}, -v{Fi}, v{WP+24}, v{Qre}')
I(f'v_mul_f32 v{Qim}, v{Fr}, v{WP+24}'); I(f'v_fma_f32 v{Qim}, v{Fi}, v{WP+16}, v{Qim}')
I('s_mov_b64 exec, -1')
lab('Lnot0')
I(f's_cmp_eq_u32 s{sCh}, 0'); I('s_cbranch_scc0 Lnosp2')
I(f's_mov_b32 exec_lo, 0x10001'); I(f's_mov_b32 exec_hi, 0x10001')
for mh in range(2):
    for p in range(2):
        o=mh*4+2*p; Er,Ei,Fr,Fi=EFr(0,mh,0,p),EFr(0,mh,1,p),EFr(1,mh,0,p),EFr(1,mh,1,p)
        T=TM
        pk('add',T,WP+o,WP+16+o); pk('add',T+2,WP+8+o,WP+24+o,neg='[0,1]'); pk('add',T+4,W3+o,W3+16+o); pk('add',T+6,W3+8+o,W3+24+o,neg='[0,1]')
        for q in range(4): I(f'v_pk_mul_f32 {v(T+2*q,2)}, {v(T+2*q,2)}, 0.5')
        pk('mul',Pre+o,Er,T); pk('mul',Qre+o,Fr,T); pk('mul',Pim+o,Ei,T+4); pk('mul',Qim+o,Fi,T+4)
        pk('fma',Pre+o,Fr,T+2,Pre+o); pk('fma',Qre+o,Er,T+2,Qre+o,neg='[1,0,0]'); pk('fma',Pim+o,Fi,T+6,Pim+o); pk('fma',Qim+o,Ei,T+6,Qim+o,neg='[1,0,0]')
I(f's_cmp_eq_u32 s{sT}, 0'); I('s_cbranch_scc0 Lnocorner')
I('s_mov_b64 exec, 1')
Er,Ei,Fr,Fi=EFr(0,0,0,0),EFr(0,0,1,0),EFr(1,0,0,0),EFr(1,0,1,0)
for d,x,w in ((Pre,Er,WP),(Pim,Ei,W3),(Qre,Fr,WP+16),(Qim,Fi,W3+16)):
    I(f'v_mul_f32 v{d}, v{x}, v{w}'); I(f'v_mul_f32 v{d}, 0.5, v{d}')
lab('Lnocorner')
I('s_mov_b64 exec, -1')
lab('Lnosp2')
for mh in range(2):
    for ri in range(2):
        for q,src in enumerate(((Pre,Pim)[ri],(Qre,Qim)[ri])):
            for p in range(2): I(f'v_cvt_pk_bf16_f32 v{YF+(ri*2+mh)*4+2*q+p}, v{src+mh*4+2*p}, v{src+mh*4+2*p+1}')
for ks in range(2):
    for nt in range(4):
        for ri in range(2):
            d=v(EF+(nt*2+ri)*4,4)
            I(f'{MF} {d}, {v(YF+(ri*2+ks)*4,4)}, {v(T2+(nt*2+ks)*4,4)}, {"0" if ks==0 else d}')
for nt in range(4):
    for ri in range(2):
        for p in range(2): I(f'v_cvt_pk_bf16_f32 v{TM+nt*4+ri*2+p}, v{EF+(nt*2+ri)*4+2*p}, v{EF+(nt*2+ri)*4+2*p+1}')
    I(f'ds_write_b128 v{vXW}, {v(TM+nt*4,4)} offset:{(nt&1)*16*272+(nt>>1)*16}')
stamp(20)
ldssync(vLF,14)
for i in range(4): I(f'ds_read_b128 {v(TM+16+4*i,4)}, v{vXR} offset:{4*272*i}')
for i in range(4):
    I(f's_mov_b32 s{t0}, {4*81920*i}'); I(f's_waitcnt lgkmcnt({3-i})')
    I(f'buffer_store_dwordx4 {v(TM+16+4*i,4)}, v{vRS}, {srd(sWS)}, s{t0} offen sc1')
vconst(10,L_FLG+8); vconst(11,1)
stamp(21)
I('s_waitcnt vmcnt(0)')
I('s_mov_b64 exec, 1'); I('ds_add_rtn_u32 v11, v10, v11'); I('s_mov_b64 exec, -1'); I('s_waitcnt lgkmcnt(0)')
I(f'v_readfirstlane_b32 s{t0}, v11'); I(f's_cmp_eq_u32 s{t0}, s{sAct}'); I('s_cbranch_scc0 Lnopub')
setflag(15,12)
lab('Lnopub')
stamp(22)
I(f's_cmp_eq_u32 s{sWc}, 0'); I('s_cbranch_scc1 Lp3')
if E('WGW',1):
    I(f's_mov_b32 s{sTo}, 0x400000'); lab('Lwgw')
    I(f'ds_read_b32 v11, v10'); I('s_waitcnt lgkmcnt(0)'); I(f'v_cmp_gt_u32 vcc, 4, v11')
    I(f's_cbranch_vccz Lwgwd'); I(f's_sub_u32 s{sTo}, s{sTo}, 1'); I(f's_cbranch_scc0 Lwgw'); lab('Lwgwd')
emit(bls(NB2,50))
I('s_branch Lp3')
lab('LepiQ')
vPW,vPR,vKR,vOS,vO5,vKW,vKP=4,5,100,104,106,108,112
I(f's_lshl_b32 s{t1}, s{sRb}, 1'); sacc(t1,sWr); smul(t2,t1,1280); smul(t3,sGrp,8*40960); sacc(t2,t3)
I(f'v_and_b32 v8, 7, v{vL}'); I(f'v_lshlrev_b32 v8, 4, v8'); I(f'v_lshrrev_b32 v9, 3, v{vL}'); I(f'v_mul_u32_u24 v10, 40960, v9'); I(f'v_add_u32 v10, v10, v8')
GX=120; GW=160
I(f'v_mov_b32 v115, v10'); I(f'v_mov_b32 v116, v8'); I(f's_mov_b32 s{sCnt}, s{t2}')
GLD=[[f'buffer_load_dwordx4 {v(GX+4*j,4)}, v115, {srd(sX)}, s{sCnt} offen offset:{128*j}', f'buffer_load_dwordx4 {v(GW+4*j,4)}, v116, {srd(sGATE)}, 0 offen offset:{128*j}'] for j in range(10)]
I(f's_lshl_b32 s{t2}, s{t1}, 8'); I(f's_lshl_b32 s{t3}, s{sGrp}, 5'); sacc(t2,t3); sadd(t2,t2,WS_G)
I(f'v_lshlrev_b32 v9, 2, v9'); I(f'v_add_u32 v9, s{t2}, v9'); vconst(10,OOB); I(f'v_cmp_eq_u32 vcc, 0, v8'); I(f'v_cndmask_b32 v114, v10, v9, vcc')
smul(t0,sWr,L_PQ[1]-L_PQ[0]); sadd(t0,t0,L_PQ[0])
I(f'v_mul_u32_u24 v{vPW}, {PQS}, v{vN}'); I(f'v_lshl_add_u32 v{vPW}, v{vG}, 3, v{vPW}'); I(f'v_add_u32 v{vPW}, s{t0}, v{vPW}')
def qepi():
    for nt in range(5):
        for mt in range(4):
            b=ACC+(mt*5+nt)*4
            phi2(b,b,8); phi2(b+2,b+2,10)
            I(f'v_cvt_pk_bf16_f32 v{b}, v{b}, v{b+1}'); I(f'v_cvt_pk_bf16_f32 v{b+1}, v{b+2}, v{b+3}')
            I(f'ds_write_b64 v{vPW}, {v(b,2)} offset:{16*nt*PQS+32*mt}')
QW=E('QW',12)
P_=cap(qepi)
weave(P_,GLD+bls(0,QW),len(P_)*E('QS',40)//100,len(P_))
stamp(15)
I(f's_waitcnt vmcnt({QW})')
stamp(16)
vconst(8,0); vconst(9,0)
for i in range(40): I(f'v_dot2_f32_bf16 v{8+(i&1)}, v{GX+i}, v{GW+i}, v{8+(i&1)}')
I('s_nop 2'); I('v_add_f32 v8, v8, v9')
for ctl in ('quad_perm:[1,0,3,2]','quad_perm:[2,3,0,1]','row_half_mirror'):
    I('s_nop 1'); I(f'v_add_f32_dpp v8, v8, v8 {ctl} row_mask:0xf bank_mask:0xf')
I('v_cvt_pk_bf16_f32 v8, v8, v8'); I('v_and_b32 v8, 0xffff0000, v8'); I(f'v_mul_f32 v8, s{sAo}, v8'); I('v_exp_f32 v8, -v8'); I('v_add_f32 v8, 1.0, v8'); I('v_rcp_f32 v8, v8')
I('v_cvt_pk_bf16_f32 v8, v8, v8'); I('v_and_b32 v8, 0xffff0000, v8')
I(f'buffer_store_dword v8, v114, {srd(sWS)}, 0 offen sc1')
I(f'v_bfe_u32 v8, v{vL}, 2, 2'); I(f'v_lshl_add_u32 v8, v{vG}, 3, v8'); I(f'v_and_b32 v9, 3, v{vL}'); I(f'v_lshlrev_b32 v9, 3, v9'); I(f'v_add_u32 v9, s{t0}, v9')
for hh in range(2):
    I(f'v_add_u32 v10, {4*hh}, v8'); I(f'v_min_u32 v10, 19, v10'); I(f'v_mul_u32_u24 v10, {PQS}, v10'); I(f'v_add_u32 v{vPR+hh}, v10, v9')
smul(t1,sWr,5504); sadd(t1,t1,132864)
for i in range(4): vconst(8+i,0)
I(f'v_add_u32 v12, s{t1}, v218')
for i in range(5): I(f'ds_write_b128 v12, v[8:11] offset:{1024*i}')
I(f's_mov_b64 exec, 0xffffff'); I(f'ds_write_b128 v12, v[8:11] offset:5120'); I('s_mov_b64 exec, -1')
for i in range(4):
    I(f'v_add_u32 v8, {64*i}, v{vL}'); I(f'v_mul_u32_u24 v9, 0xc31, v8'); I(f'v_lshrrev_b32 v9, 16, v9')
    I(f'v_mul_u32_u24 v10, 21, v9'); I(f'v_sub_u32 v10, v8, v10')
    I(f'v_cmp_lt_u32 vcc, 4, v9'); I(f'v_cndmask_b32 v11, 0, 1, vcc')
    I(f'v_mad_u32_u24 v10, v11, 21, v10'); I(f'v_mul_u32_u24 v11, 5, v11'); I(f'v_sub_u32 v9, v9, v11')
    I(f'v_lshlrev_b32 v10, 6, v10'); I(f'v_lshl_add_u32 v10, v9, 3, v10'); I(f'v_add_u32 v{vKW+i}, s{t1}, v10')
vconst(11,L_PP); I(f'v_cmp_gt_u32 vcc, 18, v{vL}'); I(f'v_cndmask_b32 v{vKW+3}, v11, v{vKW+3}, vcc')
I(f'v_lshlrev_b32 v8, 4, v{vG}'); I(f'v_add_u32 v8, s{t1}, v8')
I(f'v_lshl_add_u32 v{vKR}, v{vN}, 6, v8'); I(f'v_add_u32 v{vKR+1}, {21*64}, v{vKR}')
I(f'v_and_b32 v9, 3, v{vN}'); I(f'v_lshrrev_b32 v10, 2, v{vN}')
for hb in range(2):
    I(f'v_and_b32 v11, 1, v10'); I(f'v_lshl_add_u32 v11, v11, 1, v9'); I(f'v_add_u32 v11, {21*hb+16}, v11')
    I(f'v_lshrrev_b32 v12, 1, v10'); I(f'v_cmp_eq_u32 vcc, {hb}, v12'); I(f'v_cmp_gt_u32 s[{t4}:{t5}], 2, v9'); I(f's_and_b64 vcc, vcc, s[{t4}:{t5}]')
    I(f'v_cndmask_b32 v11, 42, v11, vcc'); I(f'v_cmp_eq_u32 vcc, {2+hb}, v9'); I(f'v_cndmask_b32 v11, v11, {21*hb+20}, vcc')
    I(f'v_lshl_add_u32 v{vKR+2+hb}, v11, 6, v8')
I(f's_lshl_b32 s{t1}, s{sRb}, 1'); sacc(t1,sWr); smul(t2,t1,81920); sadd(t2,t2,WS_O)
smul(t3,sGrp,10)
for hp in range(2):
    I(f'v_add_u32 v8, {5*hp}, v{vG}'); I(f'v_add_u32 v8, s{t3}, v8')
    I(f'v_lshrrev_b32 v9, 2, v8'); I(f'v_and_b32 v8, 3, v8'); I(f'v_lshlrev_b32 v9, 12, v9'); I(f'v_lshl_add_u32 v9, v8, 8, v9')
    I(f'v_lshl_add_u32 v9, v{vN}, 4, v9'); I(f'v_add_u32 v{vOS+hp}, s{t2}, v9')
    sadd(t4,t3,5*hp+4); I(f's_lshr_b32 s{t5}, s{t4}, 2'); I(f's_lshl_b32 s{t5}, s{t5}, 12'); I(f's_and_b32 s{t4}, s{t4}, 3'); I(f's_lshl_b32 s{t4}, s{t4}, 8')
    sacc(t4,t5); sacc(t4,t2)
    I(f'v_lshlrev_b32 v9, 10, v{vG}'); I(f'v_lshl_add_u32 v9, v{vN}, 4, v9'); I(f'v_add_u32 v{vO5+hp}, s{t4}, v9')
I(f's_lshl_b32 s{t1}, s{t1}, 3'); sacc(t1,sGrp); I(f's_lshl_b32 s{t1}, s{t1}, 7'); sadd(t1,t1,WS_FL+FL_O*128); I(f'v_mov_b32 v15, s{t1}')
I(f's_lshl_b32 s{t1}, s{sGrp}, 13'); sadd(t1,t1,WS_KVA)
I(f'v_add_u32 v{vKP}, s{t1}, v218'); vconst(9,OOB); I(f'v_cmp_gt_u32 vcc, 18, v{vL}'); I(f'v_cndmask_b32 v{vKP+1}, v9, v{vKP}, vcc')
I(f's_lshl_b32 s{t1}, s{sGrp}, 6')
I(f'v_add_u32 v8, s{t1}, v{vL}'); I(f'v_lshlrev_b32 v8, 7, v8'); I(f'v_add_u32 v13, {WS_FL+FL_KV*128}, v8')
KF=16; QF=120; OD=48; O5=184; PB=48
I('s_waitcnt lgkmcnt(0)')
for u in range(8):
    rt,hp=u>>1,u&1
    for hb in range(2):
        for hh in range(2): I(f'ds_read_b64_tr_b16 {v(QF+u*8+hb*4+2*hh,2)}, v{vPR+hh} offset:{(2*hp+hb)*20*PQS+32*rt}')
    if u%2==1: I('s_waitcnt lgkmcnt(4)')
I(f's_mov_b32 s{sEx}, -1'); I(f's_mov_b32 s{sEx+1}, 0'); I(f's_movk_i32 s{t0}, 0x1000')
stamp(20)
NQ=E('NQ',36)
emit(bls(QW,NQ))
stamp(17)
poll([13],9)
stamp(18)
for hp in range(2):
    for i in range(4): I(f'buffer_load_dwordx4 {v(PB+hp*16+4*i,4)}, v{vKP+(i==3)}, {srd(sWS)}, {"0" if hp==0 else "s%d"%t0} offen offset:{1024*i} sc1')
for hp in range(2):
    for i in range(4):
        b=PB+hp*16+4*i
        I(f's_waitcnt vmcnt({7-hp*4-i})')
        I(f'v_cvt_pk_bf16_f32 v{b}, v{b}, v{b+1}'); I(f'v_cvt_pk_bf16_f32 v{b+1}, v{b+2}, v{b+3}')
        I(f'ds_write_b64 v{vKW+i}, {v(b,2)} offset:{2752*hp}')
for hp in range(2):
    for j in (2,0,3,1): I(f'ds_read_b128 {v(KF+(hp*4+j)*4,4)}, v{vKR+j} offset:{2752*hp}')
stamp(19)
def omf(u):
    hp=u&1; q=QF+u*8; d=OD+(u%4)*12
    I(f'{MF} {v(d+8,4)}, {v(KF+(hp*4+2)*4,4)}, {v(q,4)}, 0')
    I(f'{MF} {v(d,4)}, {v(KF+(hp*4+0)*4,4)}, {v(q,4)}, 0')
    I(f'{MF} {v(d+8,4)}, {v(KF+(hp*4+3)*4,4)}, {v(q+4,4)}, {v(d+8,4)}')
    I(f'{MF} {v(d+4,4)}, {v(KF+(hp*4+1)*4,4)}, {v(q+4,4)}, 0')
def ofin(u):
    rt,hp=u>>1,u&1; d=OD+(u%4)*12; o=192+(u&1)*4
    I(f'v_pk_add_f32 {v(d+10,2)}, {v(d+10,2)}, s[{sAo}:{sAo+1}] op_sel:[0,1]')
    I(f'v_rcp_f32 v{d+10}, v{d+10}'); I(f'v_rcp_f32 v{d+11}, v{d+11}')
    I('s_nop 0')
    for p in range(2): I(f'v_pk_mul_f32 {v(d+2*p,2)}, {v(d+2*p,2)}, {v(d+10,2)} op_sel_hi:[1,0]')
    for p in range(2): I(f'v_pk_mul_f32 {v(d+4+2*p,2)}, {v(d+4+2*p,2)}, {v(d+10,2)} op_sel:[0,1]')
    I(f'v_cndmask_b32 v{d+10}, v{d+11}, v{d+10}, s[{sEx}:{sEx+1}]')
    for p in range(4): I(f'v_cvt_pk_bf16_f32 v{o+p}, v{d+2*p}, v{d+2*p+1}')
    I(f'buffer_store_dwordx4 {v(o,4)}, v{vOS+hp}, {srd(sWS)}, 0 offen offset:{1024*rt} sc1')
    I(f'v_pk_mul_f32 {v(d+8,2)}, {v(d+8,2)}, {v(d+10,2)} op_sel_hi:[1,0]')
    I(f'v_cvt_pk_bf16_f32 v{O5+hp*4+rt}, v{d+8}, v{d+9}')
I('s_waitcnt lgkmcnt(4)'); omf(0); I('s_waitcnt lgkmcnt(0)'); omf(1)
for u in range(8):
    if u+2<8: weave(cap(ofin,u),cap(omf,u+2))
    else: ofin(u)
for hp in range(2):
    b=O5+hp*4
    I(f'v_permlane32_swap_b32 v{b}, v{b+2}'); I(f'v_permlane32_swap_b32 v{b+1}, v{b+3}')
    I(f'v_permlane16_swap_b32 v{b}, v{b+1}'); I(f'v_permlane16_swap_b32 v{b+2}, v{b+3}')
    I(f'buffer_store_dwordx4 {v(b,4)}, v{vO5+hp}, {srd(sWS)}, 0 offen sc1')
stamp(21)
I(f'v_mov_b32 v10, s{sTag}'); I(f'v_mov_b32 v11, s{sTag}'); I('s_waitcnt vmcnt(0)'); I('s_mov_b64 exec, 1'); I(f'buffer_store_dwordx2 v[10:11], v15, {srd(sWS)}, 0 offen sc1'); I('s_mov_b64 exec, -1')
stamp(22)
emit(bls(NQ,50))
lab('Lp3')
vA,vGg,vFa=4,5,8
VD2=212
I(f'v_lshlrev_b32 v6, 4, v{vL}')
I(f's_cmp_eq_u32 s{sWc}, 0'); I('s_cbranch_scc0 Lp3b')
for i in range(8):
    if i%4==0: I(f's_mov_b32 s{t0}, {TB.D2_OFF+1024*i}')
    I(f'buffer_load_dwordx4 {v(VD2+4*i,4)}, v6, {srd(sTAB)}, s{t0} offen offset:{1024*(i%4)}')
I(f'v_lshrrev_b32 v{vA}, 2, v{vN}'); I(f'v_lshlrev_b32 v{vA}, 8, v{vA}'); I(f'v_lshl_add_u32 v{vA}, v{vG}, 6, v{vA}'); I(f'v_and_b32 v7, 3, v{vN}'); I(f'v_lshl_add_u32 v{vA}, v7, 4, v{vA}')
I(f's_mov_b32 s{sBo}, {WS_R}')
smul(t0,sWr,40); I(f's_movk_i32 s{t1}, 95'); I(f's_cmp_eq_u32 s{sWr}, 0'); I(f's_cselect_b32 s{t1}, 39, s{t1}')
I(f'v_add_u32 v7, s{t0}, v{vL}'); I(f'v_min_u32 v7, s{t1}, v7'); I(f'v_lshlrev_b32 v7, 7, v7'); I(f'v_add_u32 v{vFa}, {WS_FL+FL_R*128}, v7')
I(f's_mov_b32 s{t3}, s{sBS}'); ggloop(0)
I(f'v_add_u32 v12, {-30720}, v{GA}')
for i in range(30):
    I(f'ds_read_b128 {a_(4*i,4)}, v12 offset:{1024*i}')
    if i%10==9: I('s_waitcnt lgkmcnt(5)')
I('s_branch Lp3c')
lab('Lp3b')
I(f'v_mov_b32 v{vA}, v6')
I(f's_mov_b32 s{sBo}, {WS_O}')
I(f's_lshl_b32 s{t0}, s{sN2}, 3'); I(f's_lshl_b32 s{t1}, s{sWr}, 2'); sacc(t0,t1)
I(f'v_and_b32 v7, 3, v{vL}'); I(f'v_add_u32 v7, s{t0}, v7'); I(f'v_lshlrev_b32 v7, 7, v7'); I(f'v_add_u32 v{vFa}, {WS_FL+FL_O*128}, v7')
lab('Lp3c')
smul(t0,sN2,81920); smul(t1,sWr,40960); sacc(t0,t1); I(f's_add_u32 s{sGb}, s{sBo}, s{t0}'); sadd(sGe,sGb,40960); I(f's_lshl_b32 s{t0}, s{sRot}, 12'); I(f's_add_u32 s{sBo}, s{sGb}, s{t0}')
vconst(15,560)
for i in range(3):
    I(f'v_add_u32 v12, {64*i}, v{vL}'); div10(13,12); I(f'v_mul_u32_u24 v14, 10, v13'); I(f'v_sub_u32 v14, v12, v14')
    I(f'v_mul_u32_u24 v13, 40960, v13'); I(f'v_lshl_add_u32 v13, v14, 4, v13'); I(f'v_cmp_lt_u32 vcc, 4, v14'); I(f'v_cndmask_b32 v14, 0, v15, vcc'); I(f'v_add_u32 v{248+i}, v13, v14')
vconst(12,OOB); I(f'v_cmp_gt_u32 vcc, 32, v{vL}'); I(f'v_cndmask_b32 v250, v12, v250, vcc')
smul(sB0,sW,16*40960); smul(t1,sN2,1280); sacc(sB0,t1); smul(t1,sCt,80); sacc(sB0,t1)
smul(t2,sW,2560); sadd(t2,t2,L_OUT)
I(f'v_mul_u32_u24 v12, 160, v{vN}'); I(f'v_lshl_add_u32 v12, v{vG}, 3, v12'); I(f'v_add_u32 v251, s{t2}, v12'); I(f'v_add_u32 v252, s{t2}, v6')
I(f'v_lshrrev_b32 v12, 5, v{vL}'); I(f'v_lshl_add_u32 v255, v12, 6, v251'); I(f'v_lshlrev_b32 v12, 31, v12'); I(f'v_or_b32 v246, 0x3f800000, v12')
I(f's_lshl_b32 s{sB1}, s{sN2}, 8'); I(f's_lshl_b32 s{t1}, s{sW}, 6'); sacc(sB1,t1); sadd(sB1,sB1,WS_G)
I(f'v_lshlrev_b32 v7, 2, v{vN}')
smul(t2,sW,5120); I(f'v_add_u32 v253, s{t2}, v6'); smul(t2,sW,3072); I(f'v_add_u32 v247, s{t2}, v6')
smul(t2,sWr,12288); smul(t3,sWr,20480); I(f's_cmp_eq_u32 s{sWc}, 0'); I(f's_cselect_b32 s{t2}, s{t2}, s{t3}'); I(f'v_add_u32 v254, s{t2}, v6')
I('s_waitcnt lgkmcnt(0)')
stamp(24)
poll2(vFa,10)
stamp(25)
C3=16; AV=96
def afr(i): return v(AV+4*i,4) if i<26 else a_(200+4*(i-26),4)
PA=E('PA',3)
def aload(ks):
    return [[f'buffer_load_dwordx4 {afr(ks*4+mt)}, v{vA}, {srd(sWS)}, s{sBo} offen offset:{1024*mt} {HS}']+([f's_add_u32 s{sBo}, s{sBo}, 4096', f's_cmp_eq_u32 s{sBo}, s{sGe}', f's_cselect_b32 s{sBo}, s{sGb}, s{sBo}'] if mt==3 else []) for mt in range(4)]
for ks in range(PA): emit(aload(ks))
def p3main(swap):
    for ks in range(10):
        I(f's_waitcnt vmcnt({4*(min(10,ks+PA)-ks-1)})')
        M=[]
        NN=5 if swap else 3
        for nt in range(NN):
            for mt in range(4):
                c=v(C3+(mt*NN+nt)*4,4); x,y=afr(ks*4+mt),a_((ks*NN+nt)*4,4)
                if swap: x,y=y,x
                M.append(f'{MF} {c}, {x}, {y}, {"0" if ks==0 else c}')
        nxt=[]
        if ks==0 and PA<10:
            pass
        if ks+PA<10: nxt=aload(ks+PA)
        weave(M,nxt,0,len(M)-2)
I(f's_cmp_eq_u32 s{sWc}, 0'); I('s_cbranch_scc0 Lp3mb')
p3main(False)
stamp(26)
TF_=64; AO=96
for nt in range(3):
    for kb in range(2):
        o=TF_+(nt*2+kb)*4
        for q in range(2):
            for p in range(2):
                b=C3+((2*kb+q)*3+nt)*4+2*p; I(f'v_cvt_pk_bf16_f32 v{o+2*q+p}, v{b}, v{b+1}')
for nt in range(3):
    for kb in range(2):
        for w_ in range(4):
            c=v(AO+(w_*3+nt)*4,4); I(f'{MF} {c}, {v(TF_+(nt*2+kb)*4,4)}, {v(VD2+(w_*2+kb)*4,4)}, {"0" if kb==0 else c}')
I('s_barrier')
for nt in range(3):
    for w_ in range(4): I(f'ds_write_b128 v254, {v(AO+(w_*3+nt)*4,4)} offset:{L_TA[0]+(w_*3+nt)*1024}')
I('s_branch Lp3t')
lab('Lp3mb')
p3main(True)
stamp(26)
I('s_barrier')
for nt in range(5):
    for mt in range(4): I(f'ds_write_b128 v254, {v(C3+(mt*5+nt)*4,4)} offset:{L_TB[0]+1024*(mt*5+nt)}')
lab('Lp3t')
I(f'buffer_load_dword v{vGg}, v7, {srd(sWS)}, s{sB1} offen sc1')
I('s_waitcnt lgkmcnt(0)'); I('s_barrier')
stamp(27)
AE=96; TBF=128; OA=16
for t_ in range(3):
    for p_ in range(2): I(f'ds_read_b128 {v(AE+(t_*2+p_)*4,4)}, v247 offset:{p_*12288+t_*1024}')
rb_=[f'ds_read_b128 {v(TBF+(nt*2+bh)*4,4)}, v253 offset:{L_TB[0]+bh*20480+nt*1024}' for nt in range(5) for bh in range(2)]
emit(rb_[:8])
I('s_waitcnt vmcnt(0)')
scale=struct.unpack('<I',struct.pack('<f',2.0/(2048*640)))[0]
I(f'v_sub_f32 v9, 1.0, v{vGg}'); I(f'v_cvt_pk_bf16_f32 v9, v9, v9'); I(f'v_and_b32 v9, 0xffff0000, v9'); I(f'v_mul_f32 v8, 0x{scale:x}, v{vGg}')
I('s_waitcnt lgkmcnt(8)')
emit(rb_[8:])
for u in range(5):
    t_=(0,1,0,1,2)[u]; e_,o_2=AE+t_*8,AE+t_*8+4; c=OA+4*u
    for p in range(2):
        if u<4: I(f'v_pk_add_f32 {v(c+2*p,2)}, {v(e_+2*p,2)}, {v(o_2+2*p,2)}'+(' neg_lo:[0,1] neg_hi:[0,1]' if u>=2 else ''))
        else: I(f'v_pk_fma_f32 {v(c+2*p,2)}, {v(o_2+2*p,2)}, v[246:247], {v(e_+2*p,2)} op_sel_hi:[1,0,1]')
        I(f'v_pk_mul_f32 {v(c+2*p,2)}, {v(c+2*p,2)}, v[8:9] op_sel_hi:[1,0]')
for u in range(5):
    I(f's_waitcnt lgkmcnt({8-u})')
    b0=TBF+u*8; c=OA+4*u
    for p in range(2):
        I(f'v_pk_add_f32 {v(b0+2*p,2)}, {v(b0+2*p,2)}, {v(b0+4+2*p,2)}')
        I(f'v_pk_fma_f32 {v(c+2*p,2)}, {v(b0+2*p,2)}, v[8:9], {v(c+2*p,2)} op_sel:[0,1,0]')
    I(f'v_cvt_pk_bf16_f32 v{c}, v{c}, v{c+1}'); I(f'v_cvt_pk_bf16_f32 v{c+1}, v{c+2}, v{c+3}')
    I(f'ds_write_b64 v{251 if u<4 else 255}, {v(c,2)} offset:{(0,32,80,112,64)[u]}')
I('s_waitcnt lgkmcnt(0)')
for i in range(3): I(f'ds_read_b128 {v(48+4*i,4)}, v252 offset:{1024*i}')
for i in range(3):
    I(f's_waitcnt lgkmcnt({2-i})'); I(f'buffer_store_dwordx4 {v(48+4*i,4)}, v{248+i}, {srd(sOUT)}, s{sB0} offen {OUTPOL}')
I(f's_or_b32 s{t0}, s2, s{sW}'); I(f's_cmp_eq_u32 s{t0}, 0'); I('s_cbranch_scc0 Lnoe')
vconst(15,WS_E); setflag(15,14)
lab('Lnoe')
if PADT:
    lab('Lpad'); I(f's_memrealtime s[{sTS}:{sTS+1}]'); I('s_waitcnt lgkmcnt(0)'); I(f's_sub_u32 s{t0}, s{sTS}, s{sTS+2}'); I(f's_cmp_lt_u32 s{t0}, {PADT}'); I('s_cbranch_scc1 Lpad')
if TS:
    stamp(28)
    I(f's_lshl_b32 s{t0}, s2, 2'); sacc(t0,sW); I(f's_lshl_b32 s{t0}, s{t0}, 8'); sadd(t0,t0,WS_TS)
    I(f'v_lshlrev_b32 v4, 2, v{vL}')
    I(f'buffer_store_dword v0, v4, {srd(sWS)}, s{t0} offen')
lab('Lend')
I('s_endpgm')
body_txt=A.finish()
hdr=open(os.path.join(os.path.dirname(os.path.abspath(__file__)),'..','cdna_kernels',NAME+'.s.ref')).read().split('; Override launch')[0]
o_=hdr+f'; @launch grid=(256,1,1) block=(256,1,1) lds={LDS_SZ}\n'
o_+=f'.amdgcn_target "amdgcn-amd-amdhsa--gfx950"\n.text\n.globl {K}\n.p2align 8\n.type {K},@function\n{K}:\n'+body_txt
o_+=f'''.section .rodata,"a"
.p2align 6
.amdhsa_kernel {K}
  .amdhsa_next_free_vgpr 512
  .amdhsa_next_free_sgpr 102
  .amdhsa_accum_offset 256
  .amdhsa_group_segment_fixed_size 0
  .amdhsa_kernarg_size 80
  .amdhsa_user_sgpr_count 2
  .amdhsa_user_sgpr_kernarg_segment_ptr 1
  .amdhsa_system_sgpr_workgroup_id_x 1
.end_amdhsa_kernel
'''
if DEV: o_+='.p2align 8\n.type tab_base,@object\ntab_base:\n@@INCBIN@@\n'
else: o_+=TB.emit()
o=[a for a in sys.argv[1:] if not a.startswith('--')]
open(o[0] if o else 'out.s','w').write(o_)
print('instructions:',sum(1 for l in body_txt.split('\n') if l.startswith('    ')),'nops inserted:',A.nnops,file=sys.stderr)
```

```python
import sys, os, struct
from asm import Asm
import tables as TB

NAME='gated_mix__spectral_gfnet__linear_attn_block__prompt'
DEV = '--dev' in sys.argv
TS  = '--ts' in sys.argv
E=lambda k,d: int(os.environ.get(k,str(d)))
ROT=E('ROT',8); POLA=os.environ.get('POLA',''); POLB=os.environ.get('POLB',''); LDPOL=os.environ.get('LDPOL',''); HS=os.environ.get('HS','sc1')
CPF=E('CPF',1); KA=E('KA',2); KB=10-KA; R3=E('R3',0); PF=E('PF',0); PFW=E('PFW',3); PFPOL=os.environ.get('PFPOL',''); PFE=E('PFE',0); HALF=1; PEEL=E('PEEL',1); WS1=E('WS1',16)
WS_Y=0; WS_R=2621440; WS_O=2*2621440; WS_KVA=3*2621440; WS_WOF=WS_KVA+65536; WS_G=WS_KVA+1048576
WS_FL=WS_G+8192
FL_Y=0; FL_KV=256; FL_R=768; FL_O=960; FL_E=1216; NFL=2240
WS_E=WS_FL+NFL*128; WS_TS=WS_E+128; WS_SZ=WS_TS+256*4*256
OOB=0x7ff00000
SLOT=36880; SEG0=16384; SEG1=16384+10240+16
L_G=2*SLOT+16384; L_FLG=155648; L_PP=L_FLG+64; LDS_SZ=L_PP+4096
L_PQ=[0,10880]; PQS=136; L_RED=0; L_XCH=[24576,24576+8704]; L_KVI=43008
L_TA=57344; L_TB=81920; L_OUT=143360
sX,sSEG,sWS,sWR,sWI,sTAB,sWO,sOUT,sGATE=4,8,12,16,20,24,28,32,36
sW,sWr,sWc,sTyp,sRb,sGrp,sTag,sCnt=40,41,42,43,44,45,46,47
sAo,sBo,sBstep,sMA,sMB,sDl,sIs,sDm=48,49,50,51,52,53,54,55
sT,sCh,sN2,sCt,sAct,sTo=56,57,58,59,60,61
t0,t1,t2,t3,t4,t5=62,63,64,65,66,67
sK=68; sEx=88; sTS=90; sB0,sB1,sGo,sA2=94,95,96,98; sBS=84; sGb,sGe,sRot=99,100,101
OUTPOL=os.environ.get('OUTPOL','')
ATP=os.environ.get('ATP','')
def srd(n): return f's[{n}:{n+3}]'
def v(a,n=1): return f'v{a}' if n==1 else f'v[{a}:{a+n-1}]'
def a_(a,n=1): return f'a{a}' if n==1 else f'a[{a}:{a+n-1}]'
vL,vN,vG=1,2,3
A=Asm(); out=[A]
class Buf(list):
    def __call__(s,t): s.append(t)
def I(t): out[-1](t)
def cap(f,*a):
    b=Buf(); out.append(b); f(*a); out.pop(); return list(b)
def emit(L):
    for x in L:
        if isinstance(x,(list,tuple)): emit(x)
        else: I(x)
def weave(P,F,start=0,end=None):
    end=len(P) if end is None else end
    n=end-start; k=0
    for i,p in enumerate(P):
        emit([p])
        if start<=i<end:
            tgt=((i-start+1)*len(F))//n
            while k<tgt: emit([F[k]]); k+=1
    while k<len(F): emit([F[k]]); k+=1
def lab(n): I(n+':')
def stamp(i):
    if E('PADT',0) and E('PADK',0)==i:
        I(f's_memrealtime s[{sTS+2}:{sTS+3}]'); I('s_waitcnt lgkmcnt(0)')
    if TS:
        I(f's_memrealtime s[{sTS}:{sTS+1}]'); I('s_waitcnt lgkmcnt(0)'); I(f'v_writelane_b32 v0, s{sTS}, {i}')
        if i in (3,14,12,26):
            I(f's_memtime s[{sTS}:{sTS+1}]'); I('s_waitcnt lgkmcnt(0)'); I(f'v_writelane_b32 v0, s{sTS}, {i+32}')
def smul(d,x,c): I(f's_mul_i32 s{d}, s{x}, {c}')
def sadd(d,x,c): I(f's_add_u32 s{d}, s{x}, {c if isinstance(c,int) else "s%d"%c[0]}')
def sacc(d,x): I(f's_add_u32 s{d}, s{d}, s{x}')
def vconst(r,c): I(f'v_mov_b32 v{r}, {c}')
def div10(dst,src): I(f'v_mul_u32_u24 v{dst}, 0x199a, v{src}'); I(f'v_lshrrev_b32 v{dst}, 16, v{dst}')
uid=[0]
SLP=E('SLP',6)
def poll(voffs,tmp):
    I(f's_mov_b32 s{sTo}, 0x40000')
    for i,vo in enumerate(voffs): I(f'buffer_load_dword v{tmp+i}, v{vo}, {srd(sWS)}, 0 offen sc1')
    for i,vo in enumerate(voffs):
        uid[0]+=1; L=f'Lpoll{uid[0]}'
        I(f's_waitcnt vmcnt({len(voffs)-1-i})')
        lab(L)
        I(f'v_cmp_ne_u32 vcc, s{sTag}, v{tmp+i}')
        I(f's_cbranch_vccz {L}d')
        I('s_mov_b64 exec, vcc')
        if E('SLP1',6): I(f's_sleep {E("SLP1",6)}')
        I(f'buffer_load_dword v{tmp+i}, v{vo}, {srd(sWS)}, 0 offen sc1')
        I(f's_sub_u32 s{sTo}, s{sTo}, 1')
        I('s_waitcnt vmcnt(0)')
        I(f's_cbranch_scc0 {L}'); lab(L+'d')
        I('s_mov_b64 exec, -1')
def poll2(vo,tmp):
    uid[0]+=1; L=f'Lpoll{uid[0]}'
    I(f's_mov_b32 s{sTo}, 0x40000')
    I(f'buffer_load_dwordx2 {v(tmp,2)}, v{vo}, {srd(sWS)}, 0 offen sc1')
    I(f's_waitcnt vmcnt(0)')
    lab(L)
    I(f'v_cmp_ne_u32 vcc, s{sTag}, v{tmp}'); I(f'v_cmp_ne_u32 s[{t4}:{t5}], s{sTag}, v{tmp+1}'); I(f's_or_b64 vcc, vcc, s[{t4}:{t5}]')
    I(f's_cbranch_vccz {L}d')
    I('s_mov_b64 exec, vcc')
    if SLP: I(f's_sleep {SLP}')
    I(f'buffer_load_dwordx2 {v(tmp,2)}, v{vo}, {srd(sWS)}, 0 offen sc1')
    I(f's_sub_u32 s{sTo}, s{sTo}, 1')
    I('s_waitcnt vmcnt(0)')
    I(f's_cbranch_scc0 {L}'); lab(L+'d')
    I('s_mov_b64 exec, -1')
def ldssync(vaddr,tmp):
    I(f'v_mov_b32 v{tmp}, 1'); I('s_waitcnt lgkmcnt(0)')
    I('s_mov_b64 exec, 1'); I(f'ds_add_u32 v{vaddr}, v{tmp}'); I('s_mov_b64 exec, -1')
    uid[0]+=1; L=f'Llp{uid[0]}'
    I(f's_mov_b32 s{sTo}, 0x400000'); lab(L)
    I(f'ds_read_b32 v{tmp}, v{vaddr}'); I('s_waitcnt lgkmcnt(0)')
    I(f'v_cmp_gt_u32 vcc, 2, v{tmp}')
    I(f's_cbranch_vccz {L}d'); I(f's_sub_u32 s{sTo}, s{sTo}, 1'); I(f's_cbranch_scc0 {L}'); lab(L+'d')
def setflag(voff,tmp):
    I(f'v_mov_b32 v{tmp}, s{sTag}'); I('s_mov_b64 exec, 1')
    I(f'buffer_store_dword v{tmp}, v{voff}, {srd(sWS)}, 0 offen sc1'); I('s_mov_b64 exec, -1')
def mksrd(d,p,n):
    I(f's_mov_b32 s{d}, s{p}'); I(f's_mov_b32 s{d+1}, s{p+1}'); I(f's_mov_b32 s{d+2}, {n}'); I(f's_mov_b32 s{d+3}, 0x20000')
MF='v_mfma_f32_16x16x32_bf16'
K=f'{NAME}_kernel'
ACC=16
FX=dict(A=100,B=116); FY=dict(A=140,B=156)
vAo=180; vBo=184; vRA=189; vRB=191
vKA=200; vE0=208; vWp,vWm,vWm0=214,215,216; WP=220
lab('Lstart')
I(f's_cmp_ge_u32 s2, 256'); I('s_cbranch_scc1 Lend')
PADT=E('PADT',0)
if TS or PADT: I(f's_memrealtime s[{sTS+2}:{sTS+3}]')
I(f's_load_dwordx16 s[{sK}:{sK+15}], s[0:1], 0')
I(f's_load_dwordx4 s[{sK+16}:{sK+19}], s[0:1], 64')
I(f'v_lshrrev_b32 v4, 6, v0'); I(f'v_and_b32 v{vL}, 63, v0')
I(f'v_readfirstlane_b32 s{sW}, v4')
I(f's_getpc_b64 s[{sGATE}:{sGATE+1}]')
lab('Lpc')
I(f's_add_u32 s{sTAB}, s{sGATE}, tab_base@rel32@lo+4'); I(f's_addc_u32 s{sTAB+1}, s{sGATE+1}, tab_base@rel32@hi+12')
I(f's_mov_b32 s{sGATE+2}, Lend-Lpc'); I(f's_mov_b32 s{sGATE+3}, 0x20000')
I(f'v_lshlrev_b32 v9, 4, v{vL}')
I(f's_lshr_b32 s{t0}, s2, 3'); I(f's_and_b32 s{t1}, s2, 7')
if CPF:
    I(f's_lshl_b32 s{t2}, s{t0}, 10'); I(f's_cmp_eq_u32 s{sW}, 3'); I(f's_cbranch_scc0 Lnocpf')
    I(f'buffer_load_dwordx4 v[176:179], v9, {srd(sGATE)}, s{t2} offen'); lab('Lnocpf')
I(f'v_and_b32 v{vN}, 15, v{vL}'); I(f'v_lshrrev_b32 v{vG}, 4, v{vL}')
I(f's_lshr_b32 s{sRb}, s{t1}, 2'); I(f's_lshl_b32 s{sRb}, s{sRb}, 3'); I(f's_lshr_b32 s{t2}, s{t0}, 2'); sacc(sRb,t2)
I(f's_and_b32 s{sWr}, s{sW}, 1'); I(f's_lshr_b32 s{sWc}, s{sW}, 1')
I(f'v_and_b32 v5, 7, v{vL}'); I(f'v_xor_b32 v5, v5, v{vG}'); I(f'v_lshrrev_b32 v4, 3, v{vL}'); I(f'v_mul_u32_u24 v4, 40960, v4')
I(f'v_lshl_add_u32 v{vAo}, v5, 4, v4'); I(f'v_xor_b32 v{vAo+1}, 64, v{vAo}')
I(f's_lshl_b32 s{t3}, s{sRb}, 1'); sacc(t3,sWc); smul(t3,t3,1280); smul(t2,sWr,32*40960); I(f's_add_u32 s{sA2}, s{t3}, s{t2}')
I(f's_bfe_u32 s{sTyp}, s{t0}, 0x10001')
I(f's_and_b32 s{sGrp}, s{t1}, 3'); I(f's_lshl_b32 s{sGrp}, s{sGrp}, 1'); I(f's_and_b32 s{t2}, s{t0}, 1'); sacc(sGrp,t2)
if E('P3MAP',1)==0:
    I(f's_lshl_b32 s{sN2}, s{t1}, 2'); I(f's_lshr_b32 s{t2}, s{t0}, 3'); sacc(sN2,t2); I(f's_and_b32 s{sCt}, s{t0}, 7')
else:
    I(f's_lshr_b32 s{sN2}, s{t1}, 1'); I(f's_lshl_b32 s{sN2}, s{sN2}, 3'); I(f's_lshr_b32 s{t2}, s{t0}, 2'); sacc(sN2,t2)
    I(f's_and_b32 s{sCt}, s{t1}, 1'); I(f's_lshl_b32 s{sCt}, s{sCt}, 2'); I(f's_and_b32 s{t2}, s{t0}, 3'); sacc(sCt,t2)
if ROT:
    a,ma,b,mb,c,d={1:(5,7,10,3,0,0),2:(0,0,0,0,10,20),3:(20,1,20,1,0,0),4:(10,3,10,3,0,0),5:(20,1,0,0,10,0),6:(0,0,20,1,10,20),7:(10,1,20,1,0,0),8:(5,7,10,3,10,20),9:(0,0,0,0,0,20),10:(0,0,0,0,20,20)}[ROT]
    I(f's_lshr_b32 s{t2}, s{t0}, 2'); I(f's_and_b32 s{t2}, s{t2}, {ma}'); smul(t2,t2,a); I(f's_and_b32 s{t3}, s{t0}, {mb}'); smul(t3,t3,b); sacc(t2,t3)
    I(f's_and_b32 s{t3}, s{t1}, 3'); smul(t3,t3,c); sacc(t2,t3); I(f's_lshr_b32 s{t3}, s{t1}, 2'); smul(t3,t3,d); sacc(t2,t3)
    I(f's_lshr_b32 s{t2}, s{t2}, 2'); smul(t3,t2,26); I(f's_lshr_b32 s{t3}, s{t3}, 8'); smul(t3,t3,10); I(f's_sub_u32 s{sIs}, s{t2}, s{t3}')
else: I(f's_mov_b32 s{sIs}, 0')
I(f's_lshl_b32 s{sMA}, s{sW}, 12')
I(f's_lshl_b32 s{sAo}, s{sIs}, 7'); sacc(sAo,sA2)
I(f's_mov_b32 s{sTAB+2}, {TB.TAB_SZ}'); I(f's_mov_b32 s{sTAB+3}, 0x20000')
I(f's_andn2_b32 s{t0}, s{sTyp}, s{sWc}')
I(f's_sub_u32 s{t1}, 1, s{sTyp}'); sadd(t2,sWc,1); I(f's_mul_i32 s{t1}, s{t1}, s{t2}'); smul(t1,t1,1280)
smul(t2,sGrp,160); sacc(t1,t2); smul(t2,sWr,32*3840); sacc(t1,t2)
smul(t2,sGrp,102400); smul(t3,sWr,5120); sacc(t2,t3)
smul(sMB,sWc,10256); sacc(sMB,t3); sadd(sMB,sMB,SEG0)
I(f's_cmp_eq_u32 s{t0}, 1')
I(f's_cselect_b32 s{t1}, s{t2}, s{t1}')
I(f's_mov_b32 s{sBstep}, {64*3840}'); I(f's_cselect_b32 s{sBstep}, 10240, s{sBstep}')
I(f's_cselect_b64 s[{t4}:{t5}], -1, 0')
I(f's_mul_i32 s{sBo}, s{sIs}, s{sBstep}')
I(f's_mov_b32 s{t2}, 3840')
def dmaA(i): return [f's_add_u32 m0, s{sMA}, {1024*i}', f's_add_u32 s{t3}, s{sAo}, {i*8*40960}', f'buffer_load_dwordx4 v{vAo+(i&1)}, {srd(sX)}, s{t3} offen {POLA} lds']
def dmaB(i): return [f's_add_u32 m0, s{sMB}, {1024*i}', 's_nop 0', f'buffer_load_dwordx4 v{vBo+i}, {srd(sSEG)}, s{sBo} offen {POLB} lds']
def advA(d):
    return [f's_add_u32 s{sIs}, s{sIs}, 1', f's_cmp_eq_u32 s{sIs}, 10', f's_cselect_b32 s{sIs}, 0, s{sIs}',
            f's_lshl_b32 s{sAo}, s{sIs}, 7', f's_add_u32 s{sAo}, s{sAo}, s{sA2}', f's_add_u32 s{sMA}, s{sMA}, {d}']
def advB(d): return [f's_mul_i32 s{sBo}, s{sIs}, s{sBstep}', f's_add_u32 s{sMB}, s{sMB}, {d}']
def dma_adv(d):
    return [f's_add_u32 s{sIs}, s{sIs}, 1', f's_cmp_eq_u32 s{sIs}, 10', f's_cselect_b32 s{sIs}, 0, s{sIs}',
            f's_lshl_b32 s{sAo}, s{sIs}, 7', f's_add_u32 s{sAo}, s{sAo}, s{sA2}', f's_mul_i32 s{sBo}, s{sIs}, s{sBstep}',
            f's_add_u32 s{sMA}, s{sMA}, {d}', f's_add_u32 s{sMB}, s{sMB}, {d}']
def boff(i):
    I(f'v_add_u32 v4, {64*i}, v{vL}'); div10(5,4)
    I(f'v_lshlrev_b32 v4, 4, v4'); I(f'v_mul_u32_u24 v6, 160, v5'); I(f'v_sub_u32 v6, v4, v6')
    I(f'v_and_b32 v7, 3, v5'); I(f'v_bfe_u32 v8, v5, 2, 2'); I(f'v_lshl_or_b32 v7, v8, 3, v7')
    I(f'v_lshrrev_b32 v8, 4, v5'); I(f'v_lshl_or_b32 v7, v8, 2, v7')
    I(f'v_mad_u32_u24 v7, v7, s{t2}, v6'); I(f'v_cndmask_b32 v7, v7, v4, s[{t4}:{t5}]'); I(f'v_add_u32 v{vBo+i}, s{t1}, v7')
boff(0)
if TS: I(f's_memrealtime s[{sTS}:{sTS+1}]')
I('s_waitcnt lgkmcnt(0)')
if TS:
    I(f'v_writelane_b32 v0, s{sTS}, 4'); stamp(2)
mksrd(sX,sK+0,2621440)
WSB=E('WSB',0)*1048576
if WSB: I(f's_add_u32 s{sK+18}, s{sK+18}, {WSB}'); I(f's_addc_u32 s{sK+19}, s{sK+19}, 0')
I(f's_cmp_eq_u32 s{t0}, 1')
I(f's_cselect_b32 s{sSEG}, s{sTAB}, s{sK+8}'); I(f's_cselect_b32 s{sSEG+1}, s{sTAB+1}, s{sK+9}')
I(f's_mov_b32 s{sSEG+2}, 2457600'); I(f's_cselect_b32 s{sSEG+2}, {TB.TF_SZ}, s{sSEG+2}'); I(f's_mov_b32 s{sSEG+3}, 0x20000')
for i in range(4): emit(dmaA(i)); boff(i+1)
if TS: I(f'v_writelane_b32 v0, s{sTS+2}, 0')
def setup0():
    mksrd(sWS,sK+18,WS_SZ); mksrd(sWO,sK+10,819200)
    I(f's_lshl_b32 s{sDm}, s2, 2'); sacc(sDm,sW)
    smul(t0,sDm,0x667); I(f's_lshr_b32 s{t0}, s{t0}, 16')
    smul(t1,t0,40); I(f's_sub_u32 s{t1}, s{sDm}, s{t1}')
    smul(t2,t1,52); I(f's_lshr_b32 s{t2}, s{t2}, 8')
    smul(sGo,t2,5); I(f's_sub_u32 s{t1}, s{t1}, s{sGo}')
    smul(t2,t2,80)
    I(f's_lshl_b32 s{t0}, s{t0}, 2')
    I(f'v_bfe_u32 v4, v{vL}, 3, 2'); I(f'v_add_u32 v4, s{t0}, v4'); I(f'v_mul_u32_u24 v5, 0x3334, v4'); I(f'v_lshrrev_b32 v5, 16, v5')
    I(f'v_lshrrev_b32 v6, 5, v{vL}'); I(f'v_add_u32 v5, v5, v6')
    I(f'v_mul_u32_u24 v5, 20, v5'); I(f'v_lshl_add_u32 v5, v4, 2, v5'); I(f'v_bfe_u32 v4, v{vL}, 1, 2'); I(f'v_add_u32 v5, v5, v4')
    I(f's_lshr_b32 s{t0}, s{t1}, 1'); smul(t0,t0,640); I(f's_and_b32 s{sGo}, s{t1}, 1'); I(f's_lshl_b32 s{sGo}, s{sGo}, 5'); sacc(t0,sGo)
    I(f's_movk_i32 s{sGo}, 640')
    I([f's_cmp_eq_u32 s{t1}, 4', f's_cselect_b32 s{t0}, 64, s{t0}', f's_cselect_b32 s{t1}, s{sGo}, 16'])
    I(f'v_and_b32 v4, 1, v{vL}'); I(f'v_mul_u32_u24 v4, s{t1}, v4'); I(f's_movk_i32 s{t1}, 1280'); I(f'v_mad_u32_u24 v213, v5, s{t1}, v4')
    sacc(t0,t2)
    I([f's_cmp_lt_u32 s2, 200', f's_cselect_b32 s{sGo}, s{t0}, {OOB}'])
    I(f's_lshl_b32 s{t0}, s{sDm}, 6'); sadd(sDl,t0,WS_KVA)
    I(f'v_lshlrev_b32 v217, 2, v{vL}'); vconst(212,0)
def setup1():
    I([f's_add_u32 s{t0}, s{sK+18}, {WS_E}', f's_addc_u32 s{t1}, s{sK+19}, 0', f's_load_dword s{sTag}, s[{t0}:{t1}], 0'])
    mksrd(sWR,sK+2,1314816); mksrd(sWI,sK+4,1314816); mksrd(sGATE,sK+12,1280); mksrd(sOUT,sK+14,2621440)
    vconst(5,0); I(f'v_lshlrev_b32 v4, 2, v{vN}'); I(f'v_add_u32 v4, {L_FLG}, v4'); I(f'ds_write_b32 v4, v5')
    I(f'v_lshrrev_b32 v4, 1, v{vN}'); I(f'v_xor_b32 v4, v4, v{vG}'); I(f'v_lshlrev_b32 v4, 4, v4')
    I(f'v_lshl_add_u32 v4, v{vN}, 7, v4'); I(f's_lshl_b32 s{t0}, s{sWr}, 13'); I(f'v_add_u32 v{vRA}, s{t0}, v4'); I(f'v_xor_b32 v{vRA+1}, 64, v{vRA}')
    I(f'v_lshrrev_b32 v4, 2, v{vL}'); I(f'v_mul_u32_u24 v4, 160, v4'); I(f'v_and_b32 v5, 3, v{vL}'); I(f'v_lshlrev_b32 v5, 3, v5'); I(f'v_add_u32 v4, v4, v5')
    smul(t0,sWc,80); smul(t1,sWc,10256)
    I([f's_cmp_eq_u32 s{sTyp}, 0', f's_cselect_b32 s{t0}, s{t0}, s{t1}', f's_cselect_b32 s{t1}, {SEG1-SEG0-80}, 0']); sadd(t0,t0,SEG0)
    I(f'v_add_u32 v{vRB}, s{t0}, v4'); I(f'v_add_u32 v{vRB+1}, 32, v{vRB}')
    I(f'v_mov_b32 v6, s{t1}'); I(f'v_cmp_lt_u32 vcc, 8, v5'); I(f'v_cndmask_b32 v6, 0, v6, vcc'); I(f'v_add3_u32 v{vRB+2}, v{vRB}, v6, 64')
    I(f'v_add_u32 v4, s{t1}, v{vRB}'); I(f'v_add_u32 v{vRB+3}, 96, v4'); I(f'v_add_u32 v{vRB+4}, 0x80, v4')
    for i in range(80): vconst(ACC+i,0)
    I(f's_lshr_b32 s{t0}, s{sRb}, 1'); I(f's_lshl_b32 s{t0}, s{t0}, 3'); sacc(t0,sGrp)
    I(f's_lshr_b32 s{t1}, s{t0}, 4'); sadd(t1,t1,16)
    I(f's_and_b32 s{t2}, s{t0}, 15'); I(f's_lshl_b32 s{t2}, s{t2}, 1'); sacc(t2,sWr)
    I(f's_lshl_b32 s{t0}, s{sGrp}, 2'); sacc(t0,sW)
    I([f's_cmp_eq_u32 s{sTyp}, 0', f's_cselect_b32 s{sT}, s{t0}, s{t2}', f's_cselect_b32 s{sCh}, s{sRb}, s{t1}'])
    I(f's_or_b32 s{t0}, s{sRb}, s{sWc}'); I(f's_and_b32 s{t0}, s{t0}, s{sTyp}'); I(f's_xor_b32 s{sAct}, s{t0}, 1')
    for i in range(32): vconst(WP+i,0)
    I(f's_lshl_b32 s{t0}, s{sCh}, 6'); I([f's_cmp_ge_u32 s{sCh}, 10', f's_cselect_b32 s{t1}, 638, 0']); I(f's_sub_u32 s{t0}, s{t0}, s{t1}')
    I([f's_cmp_eq_u32 s{sAct}, 1', f's_cselect_b32 s{t0}, s{t0}, {OOB}'])
    I(f's_mov_b32 s{t1}, {256*642}'); I(f'v_lshlrev_b32 v10, 2, v{vN}'); I(f'v_add_u32 v10, s{t0}, v10')
    I(f'v_mad_u32_u24 v{vWp}, v{vG}, s{t1}, v10'); I(f'v_sub_u32 v11, 3, v{vG}'); I(f'v_mad_u32_u24 v{vWm}, v11, s{t1}, v10')
    I(f's_movk_i32 s{t2}, 1024')
    I([f's_cmp_eq_u32 s{sT}, 0', f's_cselect_b32 s{t0}, {1024*642}, 0', f's_cselect_b32 s{t2}, 32, s{t2}'])
    I(f'v_mov_b32 v11, s{t0}'); I(f'v_cmp_eq_u32 vcc, 0, v{vG}'); I(f'v_cndmask_b32 v11, 0, v11, vcc'); I(f'v_sub_u32 v11, {256*642}, v11'); I(f'v_add_u32 v{vWm0}, v{vWm}, v11')
    sacc(t2,sT); smul(sB0,sT,642); smul(sB1,t2,642)
    I(f'v_mul_u32_u24 v4, {64*642}, v{vN}'); I(f'v_mov_b32 v5, s{sB0}'); I(f'v_mov_b32 v6, s{sB1}')
    I(f'v_and_b32 v7, 16, v{vL}'); I(f'v_cmp_eq_u32 vcc, 0, v7'); I(f'v_cndmask_b32 v5, v6, v5, vcc'); I(f'v_add_u32 v4, v4, v5')
    I(f'v_sub_u32 v5, {2048*642}, v4'); vconst(6,1024*642); I(f'v_cmp_eq_u32 vcc, 0, v4'); I(f'v_cndmask_b32 v5, v5, v6, vcc')
    I(f'v_cmp_gt_u32 vcc, 32, v{vL}'); I(f'v_cndmask_b32 v4, v5, v4, vcc')
    I([f's_cmp_eq_u32 s{sCh}, 0', f's_cselect_b32 s{t0}, 0, {OOB}']); I(f'v_add_u32 v254, s{t0}, v4')
    for i in range(4): vconst(vE0+i,OOB)
    smul(t0,sWr,KA); smul(t1,sWr,KB); sadd(t1,t1,2*KA); I([f's_cmp_eq_u32 s{sWc}, 0', f's_cselect_b32 s{sRot}, s{t0}, s{t1}', f's_cselect_b32 s{t2}, {5*KA-1}, {5*KB-1}'])
    smul(t0,sCt,5120); smul(t1,sRot,40960); sacc(t0,t1); sadd(sGo,t0,WS_WOF)
    I(f'v_min_u32 v9, s{t2}, v{vL}')
    I(f'v_lshlrev_b32 v4, 3, v{vL}'); I(f's_lshl_b32 s{t0}, s{sW}, 10'); sadd(t0,t0,L_PP); I(f'v_add_u32 v213, s{t0}, v4')
    I(f's_lshl_b32 s{t0}, s{sDm}, 10'); sadd(t0,t0,WS_WOF); I([f's_cmp_lt_u32 s2, 200', f's_cselect_b32 s{sB0+3}, s{t0}, {OOB}'])
    I(f's_lshl_b32 s{t0}, s{sDm}, 2'); sadd(t0,t0,WS_FL+FL_E*128); I(f'v_mov_b32 v217, s{t0}')
    I(f'v_mov_b32 v4, v9'); I(f'v_mul_u32_u24 v5, 52, v4'); I(f'v_lshrrev_b32 v5, 8, v5'); I(f'v_mad_u32_u24 v4, v5, 35, v4')
    smul(t0,sRot,40); smul(t1,sCt,5); sacc(t0,t1); I(f'v_add_u32 v4, s{t0}, v4'); I(f'v_lshlrev_b32 v4, 2, v4'); I(f'v_add_u32 v196, {WS_FL+FL_E*128}, v4')
    I(f's_lshl_b32 s{t0}, s{sGrp}, 1'); sacc(t0,sWc); I(f's_lshl_b32 s{t0}, s{t0}, 8'); sadd(t0,t0,WS_FL+FL_E*128)
    I(f'v_lshlrev_b32 v4, 2, v{vL}'); I(f'v_add_u32 v197, s{t0}, v4')
    I(f'v_lshlrev_b32 v218, 4, v{vL}'); I(f'v_add_u32 v219, 0x1000, v218')
weave([dmaB(i) for i in range(5)]+[dma_adv(SLOT)],cap(setup0))
I(f's_lshl_b32 s{t0}, s{sW}, 10'); I(f's_add_u32 m0, s{t0}, {L_PP}'); I(f'buffer_load_dwordx4 v213, {srd(sWO)}, s{sGo} offen lds')
I('s_mov_b64 exec, 0xffff'); I(f'buffer_store_dword v212, v217, {srd(sWS)}, s{sDl} offen sc1'); I('s_mov_b64 exec, -1')
stamp(5)
setup1()
I(f's_cmp_eq_u32 s{sTyp}, 0'); I('s_cbranch_scc0 LsetFQ')
I(f's_lshl_b32 s{t0}, s{sWc}, 13'); smul(t1,sWr,1792); sacc(t0,t1); sadd(t0,t0,L_RED)
I(f'v_lshlrev_b32 v4, 2, v{vL}'); I(f'v_add_u32 v{vE0}, s{t0}, v4')
I(f's_lshl_b32 s{t0}, s{sGrp}, 1'); sacc(t0,sWc); I(f's_lshl_b32 s{t0}, s{t0}, 12'); sacc(t0,t1); sadd(t0,t0,WS_KVA)
I(f'v_add_u32 v{vE0+1}, s{t0}, v4')
I(f's_cmp_eq_u32 s{sWr}, 0'); I(f's_cselect_b32 s{t1}, 64, 8'); I(f'v_cmp_gt_u32 vcc, s{t1}, v{vL}')
I(f'v_cndmask_b32 v{vE0+2}, v{vE0+2}, v{vE0+1}, vcc')
I(f's_lshl_b32 s{t0}, s{sGrp}, 2'); sacc(t0,sW); I(f's_lshl_b32 s{t0}, s{t0}, 4'); sacc(t0,sRb)
I(f's_lshl_b32 s{t0}, s{t0}, 7'); sadd(t0,t0,WS_FL+FL_KV*128); I(f'v_mov_b32 v{vE0+3}, s{t0}')
I('s_branch Lsetdone')
lab('LsetFQ')
I(f's_cmp_eq_u32 s{sWc}, 0'); I('s_cbranch_scc0 Lsetdone')
I(f's_lshl_b32 s{t0}, s{sRb}, 1'); sacc(t0,sWr); smul(t0,t0,5120); smul(t1,sGrp,640); sacc(t0,t1)
I(f's_mov_b32 s{t1}, 163840'); I(f'v_lshlrev_b32 v4, 3, v{vN}'); I(f'v_mad_u32_u24 v4, v{vG}, s{t1}, v4'); I(f'v_add_u32 v{vE0}, s{t0}, v4')
I(f's_lshl_b32 s{t0}, s{sGrp}, 1'); sacc(t0,sWr); I(f's_lshl_b32 s{t0}, s{t0}, 4'); sacc(t0,sRb)
I(f's_lshl_b32 s{t0}, s{t0}, 7'); sadd(t0,t0,WS_FL+FL_Y*128); I(f'v_mov_b32 v{vE0+3}, s{t0}')
lab('Lsetdone')
def fhex(x): return hex(struct.unpack('<I',struct.pack('<f',x))[0])
GP,G1,G16,GA,GS,GT=100,106,112,118,119,120
smul(t0,sWc,160); sacc(t0,sWr); I(f'v_lshlrev_b32 v{GT+3}, 3, v{vG}'); I(f'v_add_u32 v{GT+3}, s{t0}, v{GT+3}')
smul(t1,sCt,40)
for nt in range(3):
    d_,p_=GT+4,GT+5
    if nt<2: I(f'v_add_u32 v{d_}, {16*nt}, v{vN}')
    else: I(f'v_and_b32 v{d_}, 7, v{vN}'); I(f'v_add_u32 v{d_}, 32, v{d_}')
    I(f'v_add_u32 v{d_}, s{t1}, v{d_}'); I(f'v_mul_u32_u24 v{p_}, v{d_}, v{GT+3}'); I(f'v_cvt_f32_u32 v{p_}, v{p_}'); I(f'v_cvt_f32_u32 v{d_}, v{d_}')
    I(f'v_mul_f32 v{GT}, {fhex(1/640)}, v{p_}'); I(f'v_cos_f32 v{GP+2*nt}, v{GT}'); I(f'v_sin_f32 v{GP+2*nt+1}, v{GT}')
    I(f'v_mul_f32 v{GT+1}, {fhex(1/320)}, v{d_}'); I(f'v_cos_f32 v{G1+2*nt}, v{GT+1}'); I(f'v_sin_f32 v{G1+2*nt+1}, v{GT+1}')
    I(f'v_mul_f32 v{GT+2}, {fhex(1/20)}, v{d_}'); I(f'v_cos_f32 v{G16+2*nt}, v{GT+2}'); I(f'v_sin_f32 v{G16+2*nt+1}, v{GT+2}')
I(f'v_and_b32 v{GS}, 1, v{vN}'); I(f'v_lshlrev_b32 v{GS}, 31, v{GS}'); I(f'v_xor_b32 v{GS}, 0xbf800000, v{GS}')
I(f's_cmp_eq_u32 s{sW}, 0'); I(f's_cselect_b32 s{sEx}, 0xffff, 0'); I(f's_mov_b32 s{sEx+1}, 0')
smul(t0,sW,15360); sadd(t0,t0,L_G); I(f'v_add_u32 v{GA}, s{t0}, v218')
def rot(d,p,r,dd=None):
    dd=d if dd is None else dd
    I(f'v_pk_mul_f32 {v(d,2)}, {v(p,2)}, {v(r,2)} op_sel_hi:[1,0]')
    I(f'v_pk_fma_f32 {v(dd,2)}, {v(p,2)}, {v(r,2)}, {v(d,2)} op_sel:[1,1,0] op_sel_hi:[0,1,1] neg_lo:[0,1,0]')
stamp(6)
I(f's_mov_b32 s{sCnt}, 5'); lab('Lgg')
for nt in range(3):
    T=GT+nt*12; P0=GP+2*nt
    rot(T,P0,G1+2*nt); rot(T+2,T,G1+2*nt); rot(T+4,T+2,G1+2*nt)
    I(f'v_cndmask_b32 v{T+6}, v{P0+1}, v{GS}, s[{sEx}:{sEx+1}]')
    I(f'v_cvt_pk_bf16_f32 v{T+8}, v{P0}, v{T}'); I(f'v_cvt_pk_bf16_f32 v{T+9}, v{T+2}, v{T+4}')
    I(f'v_cvt_pk_bf16_f32 v{T+10}, -v{T+6}, -v{T+1}'); I(f'v_cvt_pk_bf16_f32 v{T+11}, -v{T+3}, -v{T+5}')
    I(f'ds_write_b128 v{GA}, {v(T+8,4)} offset:{1024*nt}')
    rot(T,P0,G16+2*nt,P0)
I(f'v_add_u32 v{GA}, 0xc00, v{GA}'); I(f's_mov_b32 s{sEx}, 0')
I(f's_cmp_eq_u32 s{sCnt}, {E("A1AT",1)}'); I('s_cbranch_scc0 Lgga')
emit([dmaA(i) for i in range(4)]+[advA(SLOT)])
lab('Lgga')
I(f's_sub_u32 s{sCnt}, s{sCnt}, 1'); I(f's_cmp_lg_u32 s{sCnt}, 0'); I(f's_cbranch_scc1 Lgg')
AT1,AT2=192,224
stamp(7)
def tgen():
    TM=120; k=[0]
    def put(a,x,y):
        t=156+(k[0]&3); k[0]+=1
        I(f'v_cvt_pk_bf16_f32 v{t}, {x}, {y}'); I(f'v_accvgpr_write_b32 a{a}, v{t}'); return t
    I(f'v_lshlrev_b32 v4, 6, v{vN}'); I(f'v_add_u32 v4, s{sT}, v4'); I(f'v_cvt_f32_u32 v4, v4'); I(f'v_mul_f32 v4, 0x3a000000, v4'); I(f'v_add_f32 v5, 0.5, v4')
    I(f'v_lshlrev_b32 v6, 2, v{vG}'); I(f'v_cvt_f32_u32 v6, v6')
    for ks in range(2):
        for j in range(4):
            if 16*ks+j: I(f'v_add_f32 v7, {fhex(float(16*ks+j))}, v6')
            n2r=7 if 16*ks+j else 6
            for mh in range(2):
                c,s_=TM+4*mh,TM+4*mh+1
                I(f'v_mul_f32 v{s_}, v{4+mh}, v{n2r}'); I(f'v_cos_f32 v{c}, v{s_}'); I(f'v_sin_f32 v{s_}, v{s_}')
            for mh in range(2):
                c,s_=TM+4*mh,TM+4*mh+1
                put(AT1+(mh*2+ks)*4+j,f'v{c}',f'-v{s_}'); put(AT1+((2+mh)*2+ks)*4+j,f'v{s_}',f'v{c}')
    I(f'v_lshlrev_b32 v4, 8, v{vG}'); I(f'v_add_u32 v4, s{sT}, v4'); I(f'v_cvt_f32_u32 v4, v4'); I(f'v_mul_f32 v4, 0x3a000000, v4')
    I(f'v_cvt_f32_u32 v6, v{vN}'); I(f'v_add_f32 v7, 0x41800000, v6')
    for ks in range(2):
        for e in range(4):
            cst=0.5*ks+e/32.0
            if cst: I(f'v_add_f32 v5, {fhex(cst)}, v4')
            kr=5 if cst else 4
            for h in range(2):
                c,s_=TM+h*8+e,TM+h*8+4+e
                I(f'v_mul_f32 v{s_}, v{kr}, v{6+h}'); I(f'v_cos_f32 v{c}, v{s_}'); I(f'v_sin_f32 v{s_}, v{s_}')
        for h in range(2):
            c,s_=TM+h*8,TM+h*8+4; u0=AT2+(h*2+ks)*4; u1=AT2+((2+h)*2+ks)*4
            for p in range(2):
                t=put(u0+p,f'v{c+2*p}',f'v{c+2*p+1}'); I(f'v_accvgpr_write_b32 a{u1+2+p}, v{t}')
                put(u0+2+p,f'v{s_+2*p}',f'v{s_+2*p+1}'); put(u1+p,f'-v{s_+2*p}',f'-v{s_+2*p+1}')
I(f's_cmp_eq_u32 s{sAct}, 0'); I('s_cbranch_scc1 Lnotg')
TGL=cap(tgen); BAT=E('BAT',100)
if BAT<100:
    weave(TGL,[dmaB(i) for i in range(5)],len(TGL)*BAT//100,len(TGL)); I('s_branch Ltgd')
else: emit(TGL)
lab('Lnotg')
stamp(8)
emit([dmaB(i) for i in range(5)])
lab('Ltgd')
emit(advB(SLOT))
stamp(1)
def reads(F,ks):
    L=[]
    for mt in range(4): L.append(f'ds_read_b128 {v(F["A"]+4*mt,4)}, v{vRA+ks} offset:{2048*mt}')
    for nt in range(5):
        for h in range(2): L.append(f'ds_read_b64_tr_b16 {v(F["B"]+4*nt+2*h,2)}, v{vRB+nt} offset:{(32*ks+16*h)*160}')
    return L
def mfmas(F):
    L=[]
    for nt in range(5):
        for mt in range(4):
            c=v(ACC+(mt*5+nt)*4,4); L.append(f'{MF} {c}, {v(F["A"]+4*mt,4)}, {v(F["B"]+4*nt,4)}, {c}')
    return L
def block(M,R,X,pos):
    slots=[[] for _ in M]
    for g,x in R: slots[g].append(x)
    for g,x in zip(pos,X): slots[g].append(x)
    for m,s_ in zip(M,slots): I(m); emit(s_)
def adds(d): return [f'v_add_u32 v{r}, {d}, v{r}' for r in [vRA,vRB,vRB+1,vRB+2,vRB+3,vRB+4,vRA+1]]
I(f's_mov_b32 s{sCnt}, 0')
I(f's_waitcnt vmcnt(9) lgkmcnt(0)'); I('s_barrier')
I(f's_add_u32 s{sTag}, s{sTag}, 0x9e3779b9')
stamp(3)
I('ds_read_b64_tr_b16 v[4:5], v213'); I('ds_read_b64_tr_b16 v[6:7], v213 offset:512')
emit(reads(FX,0)[:12])
I(f'v_mov_b32 v212, s{sTag}')
I('s_waitcnt lgkmcnt(12)'); I(f'buffer_store_dwordx4 v[4:7], v218, {srd(sWS)}, s{sB0+3} offen sc1')
emit(reads(FX,0)[12:])
I(f's_cmp_eq_u32 s{sWc}, 0'); I('s_cbranch_scc0 Lnogr')
smul(t0,sWr,15360); sadd(t0,t0,L_G); I(f'v_add_u32 v8, s{t0}, v218')
for i in range(30):
    if i%8==0: I('s_waitcnt lgkmcnt(7)')
    ks,nt=divmod(i,3); I(f'ds_read_b128 {a_(4*i,4)}, v8 offset:{(ks//5)*30720+(ks%5)*3072+nt*1024}')
lab('Lnogr')
def itertop(i=None):
    if TS and i==7: stamp(11)
    I('s_waitcnt lgkmcnt(0)')
I('s_waitcnt lgkmcnt(0)')
block(mfmas(FX),list(enumerate(reads(FY,1))),[dmaA(i) for i in range(4)]+[advA(SLOT)],[1,6,11,16,17])
I('s_waitcnt vmcnt(5) lgkmcnt(0)'); I('s_barrier')
ad=adds(SLOT)
R2=[(0,ad[0]),(0,ad[1]),(1,ad[2]),(1,ad[3]),(2,ad[4]),(2,ad[5]),(3,ad[6])]+[(i+2,r) for i,r in enumerate(reads(FX,0))]
block(mfmas(FY),R2,[dmaB(i) for i in range(5)]+[advB(SLOT)]+[dmaA(i) for i in range(4)]+[advA(-3*SLOT)],[0,2,4,6,8,8,10,12,14,16,17])
I(f's_mov_b32 s{sCnt}, 1')
lab('Lmain')
itertop()
pre=[f's_add_u32 s{sCnt}, s{sCnt}, 1', f's_mov_b32 s{sDl}, {SLOT}', f's_mov_b32 s{sDm}, {SLOT}',
     f's_and_b32 s{t0}, s{sCnt}, 3', f's_cselect_b32 s{sDl}, s{sDl}, {-3*SLOT}', f's_cmp_eq_u32 s{t0}, 1', f's_cselect_b32 s{sDm}, {-3*SLOT}, s{sDm}']
eflag=[f's_cmp_eq_u32 s{sCnt}, {3 if HALF else 2}','s_cbranch_scc0 Lnoef','s_mov_b64 exec, 1',f'buffer_store_dword v212, v217, {srd(sWS)}, 0 offen sc1','s_mov_b64 exec, -1',
   f's_cmp_eq_u32 s{sTyp}, 0','s_cbranch_scc0 LefF',f's_mov_b32 s{t0}, {TB.KA_OFF}']+[f'buffer_load_dwordx4 {v(vKA+4*i,4)}, v218, {srd(sTAB)}, s{t0} offen offset:{1024*i}' for i in range(2)]+['s_branch LefT','LefF:',
   f's_cmp_eq_u32 s{sWc}, 0','s_cbranch_scc0 Lnoef',f's_mov_b32 s{t0}, {TB.D1_OFF}',f's_mov_b32 s{t1}, {TB.D1_OFF+4096}']+[f'buffer_load_dwordx4 {a_(120+4*i,4)}, v218, {srd(sTAB)}, s{t0+i//4} offen offset:{1024*(i%4)}' for i in range(8)]+['LefT:',
   f's_cmp_eq_u32 s{sT}, 0','s_cbranch_scc0 Lnoef']+sum([([f's_mov_b32 s{t0}, {TB.T1_OFF+1024*i}'] if i%4==0 else [])+[f'buffer_load_dwordx4 {a_(AT1+4*i,4)}, v218, {srd(sTAB)}, s{t0} offen offset:{1024*(i%4)}'] for i in range(16)],[])+['Lnoef:']
ad=adds(f's{sDl}')
R2=[(0,ad[0]),(0,ad[1]),(1,ad[2]),(1,ad[3]),(2,ad[4]),(2,ad[5]),(3,ad[6])]+[(i+2,r) for i,r in enumerate(reads(FX,0))]
if HALF:
    preH=pre+[f's_mov_b32 s{t1}, {SLOT}', f's_cmp_eq_u32 s{t0}, 2', f's_cselect_b32 s{t1}, {-3*SLOT}, s{t1}']+advB(f's{t1}')
    block(mfmas(FX),list(enumerate(reads(FY,1))),[dmaB(i) for i in range(5)]+[preH],[1,5,9,13,17,18])
    I('s_waitcnt vmcnt(9) lgkmcnt(0)'); I('s_barrier')
    block(mfmas(FY),R2,[dmaA(i) for i in range(4)]+[advA(f's{sDm}'),eflag],[1,6,11,16,18,19])
else:
    block(mfmas(FX),list(enumerate(reads(FY,1))),[dmaA(i) for i in range(4)]+[pre],[1,6,11,16,18])
    I('s_waitcnt vmcnt(13) lgkmcnt(0)'); I('s_barrier')
    block(mfmas(FY),R2,[dmaB(i) for i in range(5)]+[dma_adv(f's{sDm}'),eflag],[1,5,9,13,17,18,19])
I(f's_cmp_lt_u32 s{sCnt}, 7'); I('s_cbranch_scc1 Lmain')
def wload(base,vp,vm,vm0,i,which):
    mh,r=i>>2,i&3; sb=(sB0,sB1)[mh]
    if which==0:
        return [f's_add_u32 s{t2}, s{sb}, {64*r*642}', f'buffer_load_short_d16_hi v{base+i}, v{vp}, {srd(sWR)}, s{t2} offen', f'buffer_load_short_d16_hi v{base+8+i}, v{vp}, {srd(sWI)}, s{t2} offen']
    m=vm0 if i==0 else vm
    return [f's_sub_u32 s{t2}, {(1280-64*r-(256 if i==0 else 0))*642}, s{sb}', f'buffer_load_short_d16_hi v{base+16+i}, v{m}, {srd(sWR)}, s{t2} offen', f'buffer_load_short_d16_hi v{base+24+i}, v{m}, {srd(sWI)}, s{t2} offen']
WL=[wload(WP,vWp,vWm,vWm0,i,w) for i in range(8) for w in range(2)]
wl=0; vm=0
W3L=['v_mov_b32 v252, 0','v_mov_b32 v253, 0',f'buffer_load_short_d16_hi v252, v254, {srd(sWR)}, 0 offen offset:640',f'buffer_load_short_d16_hi v253, v254, {srd(sWI)}, 0 offen offset:640']
FLG=[f'buffer_load_dword v198, v196, {srd(sWS)}, 0 offen sc1', f'buffer_load_dword v199, v197, {srd(sWS)}, 0 offen sc1']
plan={16:{(7,0):0,(7,1):3,(8,0):4,(8,1):4,(9,0):3,(9,1):2},8:{(7,0):0,(7,1):1,(8,0):2,(8,1):2,(9,0):2,(9,1):1},10:{(7,0):0,(7,1):2,(8,0):2,(8,1):2,(9,0):2,(9,1):2}}[WS1]
def pos(n,a=2,b=17): return [a+(b-a)*i//max(n-1,1) for i in range(n)]
for s_ in (7,8,9):
    itertop(s_)
    X=WL[wl:wl+plan[(s_,0)]]; wl+=plan[(s_,0)]
    if s_==7: X=([dmaB(i) for i in range(5)] if HALF else [])+[FLG]+X
    block(mfmas(FX),list(enumerate(reads(FY,1))),X,pos(len(X)))
    if s_==7: I(f's_waitcnt vmcnt({11+2*wl}) lgkmcnt(0)')
    elif s_==8: I(f's_waitcnt vmcnt({2*wl}) lgkmcnt(0)')
    else: I('s_waitcnt lgkmcnt(0)')
    I('s_barrier')
    if s_<9:
        ad=adds(SLOT if s_==8 else -3*SLOT)
        R2=[(0,ad[0]),(0,ad[1]),(1,ad[2]),(1,ad[3]),(2,ad[4]),(2,ad[5]),(3,ad[6])]+[(i+2,r) for i,r in enumerate(reads(FX,0))]
    else: R2=[]
    X=WL[wl:wl+plan[(s_,1)]]; wl+=plan[(s_,1)]
    if s_==9: X=X+[W3L]
    block(mfmas(FY),R2,X,pos(len(X),3,18 if s_==9 else 16))
assert wl==WS1
I(f's_mov_b32 s{sAo}, 0x3fb8aa3b'); I(f's_mov_b32 s{sAo+1}, 0x358637bd')
I(f'v_cmp_ne_u32 vcc, s{sTag}, v198'); I(f'v_cmp_ne_u32 s[{t4}:{t5}], s{sTag}, v199'); I(f's_or_b64 vcc, vcc, s[{t4}:{t5}]'); I('s_cbranch_vccz Leok')
poll([196,197],198)
lab('Leok')
I('s_nop 3')
stamp(14)
def acc(mt,nt,r=0,n=1): return v(ACC+(mt*5+nt)*4+r,n)
def phi2(dst,src,tmp):
    I(f'v_pk_mul_f32 {v(tmp,2)}, {v(src,2)}, s[{sAo}:{sAo+1}] op_sel_hi:[1,0]')
    I(f'v_exp_f32 v{tmp}, v{tmp} clamp'); I(f'v_exp_f32 v{tmp+1}, v{tmp+1} clamp')
    I(f'v_max_f32 v{dst}, s{sAo+1}, v{src}'); I(f'v_max_f32 v{dst+1}, s{sAo+1}, v{src+1}')
    I(f'v_pk_add_f32 {v(dst,2)}, {v(dst,2)}, {v(tmp,2)}')
def bl(i,AB):
    ks,nt=divmod(i,5)
    L=[f'buffer_load_dwordx4 {a_(AB+4*i,4)}, v{218 if nt<4 else 219}, {srd(sWS)}, s{sGo} offen offset:{1024*(nt%4)}']
    return L+([f's_add_u32 s{sGo}, s{sGo}, 40960'] if nt==4 else [])
def bls(a,b,AB=0): return [bl(i,AB) for i in range(a,b)]
I(f's_cmp_eq_u32 s{sTyp}, 0'); I('s_cbranch_scc0 LepiFQ')
PK=100; VV=124; DD=148; PAIRS=TB.PAIRS
NB0=E('NB0',14); NB1=E('NB1',14)
def kvepi():
    for nt in (2,3,4):
        for mt in range(4):
            for p in range(2): I(f'v_cvt_pk_bf16_f32 v{VV+(nt-2)*8+mt*2+p}, {acc(mt,nt,2*p)}, {acc(mt,nt,2*p+1)}')
    I(f'v_cmp_gt_u32 vcc, 8, v{vN}'); vconst(4,0x3f803f80)
    I(f's_lshl_b32 s{t0}, s{sW}, 12'); sadd(t0,t0,L_RED)
    for i in range(8): I(f'v_cndmask_b32 v{VV+i}, v{VV+i}, v4, vcc')
    for i in range(8): I(f'v_add_u32 v{vKA+i}, s{t0}, v{vKA+i}')
    for nt in range(3):
        for mt in range(4):
            for p in range(2):
                b=ACC+(mt*5+nt)*4+2*p
                phi2(b,b,4+2*p); I(f'v_cvt_pk_bf16_f32 v{PK+nt*8+mt*2+p}, v{b}, v{b+1}')
        for kb in range(2):
            for i,(a,b) in enumerate(PAIRS):
                if a==nt: I(f'{MF} {v(DD+4*i,4)}, {v(PK+a*8+4*kb,4)}, {v(VV+(b-2)*8+4*kb,4)}, {"0" if kb==0 else v(DD+4*i,4)}')
        if nt>0:
            for i,(a,b) in enumerate(PAIRS):
                if a==nt-1: I(f'ds_write_b128 v{vKA+i}, {v(DD+4*i,4)}')
P=cap(kvepi)
def grp_if_b(L):
    uid[0]+=1; n=f'Lb{uid[0]}'
    return [f's_cmp_eq_u32 s{sWc}, 0', f's_cbranch_scc1 {n}']+L+[n+':']
NBE=E('NBE',0)
weave(P,[grp_if_b(bls(i,i+2)) for i in range(0,NBE,2)],0,len(P)*E('EPIF',70)//100)
for i,(a,b) in enumerate(PAIRS):
    if a==2: I(f'ds_write_b128 v{vKA+i}, {v(DD+4*i,4)}')
I('s_waitcnt lgkmcnt(0)'); I('s_barrier')
for i in range(7): I(f'ds_read2st64_b32 {v(16+2*i,2)}, v{vE0} offset0:{i} offset1:{i+16}')
for i in range(7):
    I(f's_waitcnt lgkmcnt({6-i})'); I(f'v_add_f32 v{16+2*i}, v{16+2*i}, v{17+2*i}')
    I(f'buffer_atomic_add_f32 v{16+2*i}, v{vE0+1+(i==6)}, {srd(sWS)}, 0 offen offset:{256*i} {ATP}')
stamp(15)
I('s_branch Lp2a')
lab('LepiFQ')
I(f's_cmp_eq_u32 s{sWc}, 0'); I('s_cbranch_scc0 LepiQ')
XB=100; YD=140
def xcv(nt):
    for mt in range(4):
        for p in range(2): I(f'v_cvt_pk_bf16_f32 v{XB+nt*8+mt*2+p}, {acc(mt,nt,2*p)}, {acc(mt,nt,2*p+1)}')
def ymf(nt):
    for kb in range(2):
        for jt in range(4):
            d=v(YD+(nt&1)*16+4*jt,4)
            I(f'{MF} {d}, {a_(120+(jt*2+kb)*4,4)}, {v(XB+nt*8+4*kb,4)}, {"0" if kb==0 else d}')
def yst(nt):
    for jt in range(4):
        b=YD+(nt&1)*16+4*jt; o=172+jt*2
        I([f'v_cvt_pk_bf16_f32 v{o}, v{b}, v{b+1}', f'v_cvt_pk_bf16_f32 v{o+1}, v{b+2}, v{b+3}',
           f'buffer_store_dwordx2 {v(o,2)}, v{vE0}, {srd(sWS)}, s{t0+jt} offen offset:{128*nt} sc1'])
for jt in range(4): I(f's_mov_b32 s{t0+jt}, {4*jt*163840}')
xcv(0)
weave(cap(ymf,0),cap(xcv,1))
for nt in range(5):
    if nt<4:
        F_=(cap(xcv,nt+2) if nt<3 else [])
        Y_=cap(yst,nt)
        M=cap(ymf,nt+1)
        for i,m in enumerate(M):
            I(m)
            if i<4: emit(F_[2*i:2*i+2])
            else: emit(Y_[i-4])
    else: yst(nt)
stamp(15)
I('s_waitcnt vmcnt(0)'); setflag(vE0+3,4)
stamp(16)
I(f's_cmp_eq_u32 s{sAct}, 0'); I('s_cbranch_scc1 Lp3')
emit(WL[WS1:])
T1,T2,W3,YF,EF,TM,PQ=16,48,112,144,160,80,184
vY,vF,vXW,vXR,vRS,vLF=8,9,10,11,12,13
def p2addr():
    smul(t0,sCh,32*0x334); sadd(t1,t0,31*0x334); I(f's_lshr_b32 s{t0}, s{t0}, 16'); I(f's_lshr_b32 s{t1}, s{t1}, 16')
    I(f'v_mov_b32 v4, s{t0}'); I(f'v_mov_b32 v5, s{t1}'); I(f'v_cmp_gt_u32 vcc, 32, v{vL}'); I(f'v_cndmask_b32 v4, v5, v4, vcc')
    I(f'v_and_b32 v5, 31, v{vL}'); I(f'v_lshl_add_u32 v4, v4, 5, v5'); I(f'v_lshlrev_b32 v4, 7, v4'); I(f'v_add_u32 v{vF}, {WS_FL+FL_Y*128}, v4')
    I(f's_lshr_b32 s{t0}, s{sT}, 1'); smul(t0,t0,163840); I(f's_lshl_b32 s{t1}, s{sCh}, 8'); sacc(t0,t1); I(f's_lshl_b32 s{t1}, s{sWr}, 2'); sacc(t0,t1)
    I(f'v_mul_u32_u24 v4, 20480, v{vG}'); I(f'v_lshl_add_u32 v4, v{vN}, 3, v4'); I(f'v_add_u32 v{vY}, s{t0}, v4')
    smul(t0,sWc,8704); sadd(t0,t0,L_XCH[0])
    I(f's_lshl_b32 s{t1}, s{sWr}, 5'); sacc(t1,t0)
    I(f'v_mul_u32_u24 v{vXW}, 272, v{vN}'); I(f'v_lshl_add_u32 v{vXW}, v{vG}, 6, v{vXW}'); I(f'v_add_u32 v{vXW}, s{t1}, v{vXW}')
    smul(t1,sWr,16*272); sacc(t1,t0)
    I(f'v_mul_u32_u24 v{vXR}, 272, v{vG}'); I(f'v_lshl_add_u32 v{vXR}, v{vN}, 4, v{vXR}'); I(f'v_add_u32 v{vXR}, s{t1}, v{vXR}')
    smul(t0,sWr,16*81920); I(f's_lshl_b32 s{t1}, s{sCh}, 12'); sacc(t0,t1)
    I(f's_lshr_b32 s{t1}, s{sT}, 1'); I(f's_lshl_b32 s{t1}, s{t1}, 8'); sacc(t0,t1); sadd(t0,t0,WS_R)
    I(f's_mov_b32 s{t1}, 81920'); I(f'v_lshlrev_b32 v{vRS}, 4, v{vN}'); I(f'v_mad_u32_u24 v{vRS}, v{vG}, s{t1}, v{vRS}'); I(f'v_add_u32 v{vRS}, s{t0}, v{vRS}')
    I(f's_lshl_b32 s{t0}, s{sWc}, 2'); sadd(t0,t0,L_FLG); I(f'v_mov_b32 v{vLF}, s{t0}')
    I(f's_lshl_b32 s{t0}, s{sCh}, 3'); sacc(t0,sGrp)
    I(f's_lshl_b32 s{t1}, s{sCh}, 4'); I(f's_lshr_b32 s{t2}, s{sT}, 1'); sacc(t1,t2); I(f's_sub_u32 s{t1}, s{t1}, 128')
    I([f's_cmp_eq_u32 s{sTyp}, 0', f's_cselect_b32 s{t0}, s{t0}, s{t1}', f's_cselect_b32 s{sAct}, 3, 1'])
    I(f's_and_b32 s{t1}, s{t0}, 1'); I(f's_lshl_b32 s{t1}, s{t1}, 2'); I(f's_lshr_b32 s{t0}, s{t0}, 1'); I(f's_lshl_b32 s{t0}, s{t0}, 7'); sacc(t0,t1); sadd(t0,t0,WS_FL+FL_R*128); I(f'v_mov_b32 v15, s{t0}')
lab('Lp2a')
p2addr()
I(f's_cmp_eq_u32 s{sTyp}, 0'); I('s_cbranch_scc0 Lp2b')
I('s_waitcnt vmcnt(0)')
setflag(vE0+3,4)
stamp(16)
lab('Lp2b')
I(f's_cmp_eq_u32 s{sCh}, 0'); I('s_cbranch_scc0 Lnosp1')
I(f's_lshl_b32 s{t0}, s{sW}, 9'); sadd(t0,t0,L_PP)
I(f'v_lshlrev_b32 v4, 2, v{vL}'); I(f'v_add_u32 v4, s{t0}, v4'); I(f'v_lshlrev_b32 v5, 4, v{vG}'); I(f'v_add_u32 v5, s{t0}, v5')
I(f'ds_write_b32 v4, v252'); I(f'ds_write_b32 v4, v253 offset:256')
for arr,off in ((0,0),(8,256),(16,128),(24,384)):
    for mh in range(2): I(f'ds_read_b128 {v(W3+arr+4*mh,4)}, v5 offset:{off+64*mh}')
lab('Lnosp1')
I('s_waitcnt lgkmcnt(0)')
stamp(17)
poll([vF],14)
stamp(18)
for ks in range(2):
    for i in range(4):
        I(f's_mov_b32 s{t0}, {(16*ks+i)*5120}')
        for ri in range(2): I(f'buffer_load_dword v{YF+(ri*2+ks)*4+i}, v{vY}, {srd(sWS)}, s{t0} offen offset:{128*ri} {HS}')
for ks in range(2):
    I(f's_waitcnt vmcnt({8-8*ks})')
    for mt in (0,2,1,3):
        for ri in range(2):
            d=v(EF+(mt*2+ri)*4,4)
            I(f'{MF} {d}, {a_(AT1+(mt*2+ks)*4,4)}, {v(YF+(ri*2+ks)*4,4)}, {"0" if ks==0 else d}')
stamp(19)
EF2=EF
def pk(op,d,*s,neg=None):
    t=f'v_pk_{op}_f32 {v(d,2)}, '+', '.join(v(x,2) for x in s)
    if neg: t+=f' neg_lo:{neg} neg_hi:{neg}'
    I(t)
PQ=16
Pre,Pim,Qre,Qim=PQ,PQ+8,PQ+16,PQ+24
def EFr(typ,mh,ri,p): return EF+((typ*2+mh)*2+ri)*4+2*p
for mh in range(2):
    for p in range(2):
        o=mh*4+2*p; Er,Ei,Fr,Fi=EFr(0,mh,0,p),EFr(0,mh,1,p),EFr(1,mh,0,p),EFr(1,mh,1,p)
        wpr,wpi,wmr,wmi=WP+o,WP+8+o,WP+16+o,WP+24+o
        T=TM+(p*16)
        pk('add',T,Er,Fi); pk('add',T+2,Ei,Fr,neg='[0,1]'); pk('add',T+4,Er,Fi,neg='[0,1]'); pk('add',T+6,Ei,Fr)
        pk('mul',T+8,T,wpr); pk('mul',T+10,T,wpi); pk('mul',T+12,T+4,wmr); pk('mul',T+14,T+4,wmi)
        pk('fma',T+8,T+2,wpi,T+8,neg='[1,0,0]'); pk('fma',T+10,T+2,wpr,T+10); pk('fma',T+12,T+6,wmi,T+12,neg='[1,0,0]'); pk('fma',T+14,T+6,wmr,T+14)
        pk('add',Pre+o,T+8,T+12); pk('add',Pim+o,T+10,T+14); pk('add',Qre+o,T+14,T+10,neg='[0,1]'); pk('add',Qim+o,T+8,T+12,neg='[0,1]')
I(f's_cmp_eq_u32 s{sT}, 0'); I('s_cbranch_scc0 Lnot0')
I('s_mov_b64 exec, 0xffff')
Er,Ei,Fr,Fi=EFr(0,0,0,0),EFr(0,0,1,0),EFr(1,0,0,0),EFr(1,0,1,0)
I(f'v_mul_f32 v{Pre}, v{Er}, v{WP}'); I(f'v_fma_f32 v{Pre}, -v{Ei}, v{WP+8}, v{Pre}')
I(f'v_mul_f32 v{Pim}, v{Er}, v{WP+8}'); I(f'v_fma_f32 v{Pim}, v{Ei}, v{WP}, v{Pim}')
I(f'v_mul_f32 v{Qre}, v{Fr}, v{WP+16}'); I(f'v_fma_f32 v{Qre}, -v{Fi}, v{WP+24}, v{Qre}')
I(f'v_mul_f32 v{Qim}, v{Fr}, v{WP+24}'); I(f'v_fma_f32 v{Qim}, v{Fi}, v{WP+16}, v{Qim}')
I('s_mov_b64 exec, -1')
lab('Lnot0')
I(f's_cmp_eq_u32 s{sCh}, 0'); I('s_cbranch_scc0 Lnosp2')
I(f's_mov_b32 exec_lo, 0x10001'); I(f's_mov_b32 exec_hi, 0x10001')
for mh in range(2):
    for p in range(2):
        o=mh*4+2*p; Er,Ei,Fr,Fi=EFr(0,mh,0,p),EFr(0,mh,1,p),EFr(1,mh,0,p),EFr(1,mh,1,p)
        T=TM
        pk('add',T,WP+o,WP+16+o); pk('add',T+2,WP+8+o,WP+24+o,neg='[0,1]'); pk('add',T+4,W3+o,W3+16+o); pk('add',T+6,W3+8+o,W3+24+o,neg='[0,1]')
        for q in range(4): I(f'v_pk_mul_f32 {v(T+2*q,2)}, {v(T+2*q,2)}, 0.5')
        pk('mul',Pre+o,Er,T); pk('mul',Qre+o,Fr,T); pk('mul',Pim+o,Ei,T+4); pk('mul',Qim+o,Fi,T+4)
        pk('fma',Pre+o,Fr,T+2,Pre+o); pk('fma',Qre+o,Er,T+2,Qre+o,neg='[1,0,0]'); pk('fma',Pim+o,Fi,T+6,Pim+o); pk('fma',Qim+o,Ei,T+6,Qim+o,neg='[1,0,0]')
I(f's_cmp_eq_u32 s{sT}, 0'); I('s_cbranch_scc0 Lnocorner')
I('s_mov_b64 exec, 1')
Er,Ei,Fr,Fi=EFr(0,0,0,0),EFr(0,0,1,0),EFr(1,0,0,0),EFr(1,0,1,0)
for d,x,w in ((Pre,Er,WP),(Pim,Ei,W3),(Qre,Fr,WP+16),(Qim,Fi,W3+16)):
    I(f'v_mul_f32 v{d}, v{x}, v{w}'); I(f'v_mul_f32 v{d}, 0.5, v{d}')
lab('Lnocorner')
I('s_mov_b64 exec, -1')
lab('Lnosp2')
for mh in range(2):
    for ri in range(2):
        for q,src in enumerate(((Pre,Pim)[ri],(Qre,Qim)[ri])):
            for p in range(2): I(f'v_cvt_pk_bf16_f32 v{YF+(ri*2+mh)*4+2*q+p}, v{src+mh*4+2*p}, v{src+mh*4+2*p+1}')
for ks in range(2):
    for nt in range(4):
        for ri in range(2):
            d=v(EF+(nt*2+ri)*4,4)
            I(f'{MF} {d}, {v(YF+(ri*2+ks)*4,4)}, {a_(AT2+(nt*2+ks)*4,4)}, {"0" if ks==0 else d}')
for nt in range(4):
    for ri in range(2):
        for p in range(2): I(f'v_cvt_pk_bf16_f32 v{TM+nt*4+ri*2+p}, v{EF+(nt*2+ri)*4+2*p}, v{EF+(nt*2+ri)*4+2*p+1}')
    I(f'ds_write_b128 v{vXW}, {v(TM+nt*4,4)} offset:{(nt&1)*16*272+(nt>>1)*16}')
stamp(20)
ldssync(vLF,14)
for i in range(4): I(f'ds_read_b128 {v(TM+16+4*i,4)}, v{vXR} offset:{4*272*i}')
for i in range(4):
    I(f's_mov_b32 s{t0}, {4*81920*i}'); I(f's_waitcnt lgkmcnt({3-i})')
    I(f'buffer_store_dwordx4 {v(TM+16+4*i,4)}, v{vRS}, {srd(sWS)}, s{t0} offen sc1')
vconst(10,L_FLG+8); vconst(11,1)
stamp(21)
I('s_waitcnt vmcnt(0)')
I('s_mov_b64 exec, 1'); I('ds_add_rtn_u32 v11, v10, v11'); I('s_mov_b64 exec, -1'); I('s_waitcnt lgkmcnt(0)')
I(f'v_readfirstlane_b32 s{t0}, v11'); I(f's_cmp_eq_u32 s{t0}, s{sAct}'); I('s_cbranch_scc0 Lnopub')
setflag(15,12)
lab('Lnopub')
stamp(22)
I(f's_cmp_eq_u32 s{sWc}, 0'); I('s_cbranch_scc1 Lp3')
if E('WGW',1):
    I(f's_mov_b32 s{sTo}, 0x400000'); lab('Lwgw')
    I(f'ds_read_b32 v11, v10'); I('s_waitcnt lgkmcnt(0)'); I(f'v_cmp_ge_u32 vcc, s{sAct}, v11')
    I(f's_cbranch_vccz Lwb'); I(f's_sub_u32 s{sTo}, s{sTo}, 1'); I(f's_cbranch_scc0 Lwgw')
lab('Lwb')
NBE=E('NBE',0)
if not E('NOWB',0): emit(bls(NBE,5*KB))
I('s_branch Lp3')
lab('LepiQ')
vPW,vPR,vKR,vOS,vO5,vKW,vKP=4,5,100,104,106,108,112
I(f's_lshl_b32 s{t1}, s{sRb}, 1'); sacc(t1,sWr); smul(t2,t1,1280); smul(t3,sGrp,8*40960); sacc(t2,t3)
I(f'v_and_b32 v8, 7, v{vL}'); I(f'v_lshlrev_b32 v8, 4, v8'); I(f'v_lshrrev_b32 v9, 3, v{vL}'); I(f'v_mul_u32_u24 v10, 40960, v9'); I(f'v_add_u32 v10, v10, v8')
GX=120; GW=160
I(f'v_mov_b32 v115, v10'); I(f'v_mov_b32 v116, v8'); I(f's_mov_b32 s{sCnt}, s{t2}')
GLD=[[f'buffer_load_dwordx4 {v(GX+4*j,4)}, v115, {srd(sX)}, s{sCnt} offen offset:{128*j}', f'buffer_load_dwordx4 {v(GW+4*j,4)}, v116, {srd(sGATE)}, 0 offen offset:{128*j}'] for j in range(10)]
I(f's_lshl_b32 s{t2}, s{t1}, 8'); I(f's_lshl_b32 s{t3}, s{sGrp}, 5'); sacc(t2,t3); sadd(t2,t2,WS_G)
I(f'v_lshlrev_b32 v9, 2, v9'); I(f'v_add_u32 v9, s{t2}, v9'); vconst(10,OOB); I(f'v_cmp_eq_u32 vcc, 0, v8'); I(f'v_cndmask_b32 v114, v10, v9, vcc')
smul(t0,sWr,L_PQ[1]-L_PQ[0]); sadd(t0,t0,L_PQ[0])
I(f'v_mul_u32_u24 v{vPW}, {PQS}, v{vN}'); I(f'v_lshl_add_u32 v{vPW}, v{vG}, 3, v{vPW}'); I(f'v_add_u32 v{vPW}, s{t0}, v{vPW}')
def qepi():
    for nt in range(5):
        for mt in range(4):
            b=ACC+(mt*5+nt)*4
            phi2(b,b,8); phi2(b+2,b+2,10)
            I(f'v_cvt_pk_bf16_f32 v{b}, v{b}, v{b+1}'); I(f'v_cvt_pk_bf16_f32 v{b+1}, v{b+2}, v{b+3}')
            I(f'ds_write_b64 v{vPW}, {v(b,2)} offset:{16*nt*PQS+32*mt}')
QW=E('QW',0)
P_=cap(qepi)
weave(P_,GLD+bls(0,QW),len(P_)*E('QS',0)//100,len(P_))
stamp(15)
I(f's_waitcnt vmcnt({QW})')
stamp(16)
vconst(8,0); vconst(9,0)
for i in range(40): I(f'v_dot2_f32_bf16 v{8+(i&1)}, v{GX+i}, v{GW+i}, v{8+(i&1)}')
I('s_nop 2'); I('v_add_f32 v8, v8, v9')
for ctl in ('quad_perm:[1,0,3,2]','quad_perm:[2,3,0,1]','row_half_mirror'):
    I('s_nop 1'); I(f'v_add_f32_dpp v8, v8, v8 {ctl} row_mask:0xf bank_mask:0xf')
I('v_cvt_pk_bf16_f32 v8, v8, v8'); I('v_and_b32 v8, 0xffff0000, v8'); I(f'v_mul_f32 v8, s{sAo}, v8'); I('v_exp_f32 v8, -v8'); I('v_add_f32 v8, 1.0, v8'); I('v_rcp_f32 v8, v8')
I('v_cvt_pk_bf16_f32 v8, v8, v8'); I('v_and_b32 v8, 0xffff0000, v8')
I(f'buffer_store_dword v8, v114, {srd(sWS)}, 0 offen sc1')
I(f'v_bfe_u32 v8, v{vL}, 2, 2'); I(f'v_lshl_add_u32 v8, v{vG}, 3, v8'); I(f'v_and_b32 v9, 3, v{vL}'); I(f'v_lshlrev_b32 v9, 3, v9'); I(f'v_add_u32 v9, s{t0}, v9')
for hh in range(2):
    I(f'v_add_u32 v10, {4*hh}, v8'); I(f'v_min_u32 v10, 19, v10'); I(f'v_mul_u32_u24 v10, {PQS}, v10'); I(f'v_add_u32 v{vPR+hh}, v10, v9')
smul(t1,sWr,5504); sadd(t1,t1,L_KVI)
for i in range(4): vconst(8+i,0)
I(f'v_add_u32 v12, s{t1}, v218')
for i in range(5): I(f'ds_write_b128 v12, v[8:11] offset:{1024*i}')
I(f's_mov_b64 exec, 0xffffff'); I(f'ds_write_b128 v12, v[8:11] offset:5120'); I('s_mov_b64 exec, -1')
for i in range(4):
    I(f'v_add_u32 v8, {64*i}, v{vL}'); I(f'v_mul_u32_u24 v9, 0xc31, v8'); I(f'v_lshrrev_b32 v9, 16, v9')
    I(f'v_mul_u32_u24 v10, 21, v9'); I(f'v_sub_u32 v10, v8, v10')
    I(f'v_cmp_lt_u32 vcc, 4, v9'); I(f'v_cndmask_b32 v11, 0, 1, vcc')
    I(f'v_mad_u32_u24 v10, v11, 21, v10'); I(f'v_mul_u32_u24 v11, 5, v11'); I(f'v_sub_u32 v9, v9, v11')
    I(f'v_lshlrev_b32 v10, 6, v10'); I(f'v_lshl_add_u32 v10, v9, 3, v10'); I(f'v_add_u32 v{vKW+i}, s{t1}, v10')
vconst(11,L_PP); I(f'v_cmp_gt_u32 vcc, 18, v{vL}'); I(f'v_cndmask_b32 v{vKW+3}, v11, v{vKW+3}, vcc')
I(f'v_lshlrev_b32 v8, 4, v{vG}'); I(f'v_add_u32 v8, s{t1}, v8')
I(f'v_lshl_add_u32 v{vKR}, v{vN}, 6, v8'); I(f'v_add_u32 v{vKR+1}, {21*64}, v{vKR}')
I(f'v_and_b32 v9, 3, v{vN}'); I(f'v_lshrrev_b32 v10, 2, v{vN}')
for hb in range(2):
    I(f'v_and_b32 v11, 1, v10'); I(f'v_lshl_add_u32 v11, v11, 1, v9'); I(f'v_add_u32 v11, {21*hb+16}, v11')
    I(f'v_lshrrev_b32 v12, 1, v10'); I(f'v_cmp_eq_u32 vcc, {hb}, v12'); I(f'v_cmp_gt_u32 s[{t4}:{t5}], 2, v9'); I(f's_and_b64 vcc, vcc, s[{t4}:{t5}]')
    I(f'v_cndmask_b32 v11, 42, v11, vcc'); I(f'v_cmp_eq_u32 vcc, {2+hb}, v9'); I(f'v_cndmask_b32 v11, v11, {21*hb+20}, vcc')
    I(f'v_lshl_add_u32 v{vKR+2+hb}, v11, 6, v8')
I(f's_lshl_b32 s{t1}, s{sRb}, 1'); sacc(t1,sWr); smul(t2,t1,81920); sadd(t2,t2,WS_O)
smul(t3,sGrp,10)
for hp in range(2):
    I(f'v_add_u32 v8, {5*hp}, v{vG}'); I(f'v_add_u32 v8, s{t3}, v8')
    I(f'v_lshrrev_b32 v9, 2, v8'); I(f'v_and_b32 v8, 3, v8'); I(f'v_lshlrev_b32 v9, 12, v9'); I(f'v_lshl_add_u32 v9, v8, 8, v9')
    I(f'v_lshl_add_u32 v9, v{vN}, 4, v9'); I(f'v_add_u32 v{vOS+hp}, s{t2}, v9')
    sadd(t4,t3,5*hp+4); I(f's_lshr_b32 s{t5}, s{t4}, 2'); I(f's_lshl_b32 s{t5}, s{t5}, 12'); I(f's_and_b32 s{t4}, s{t4}, 3'); I(f's_lshl_b32 s{t4}, s{t4}, 8')
    sacc(t4,t5); sacc(t4,t2)
    I(f'v_lshlrev_b32 v9, 10, v{vG}'); I(f'v_lshl_add_u32 v9, v{vN}, 4, v9'); I(f'v_add_u32 v{vO5+hp}, s{t4}, v9')
I(f's_lshl_b32 s{t1}, s{t1}, 3'); sacc(t1,sGrp); I(f's_lshl_b32 s{t1}, s{t1}, 7'); sadd(t1,t1,WS_FL+FL_O*128); I(f'v_mov_b32 v15, s{t1}')
I(f's_lshl_b32 s{t1}, s{sGrp}, 13'); sadd(t1,t1,WS_KVA)
I(f'v_add_u32 v{vKP}, s{t1}, v218'); vconst(9,OOB); I(f'v_cmp_gt_u32 vcc, 18, v{vL}'); I(f'v_cndmask_b32 v{vKP+1}, v9, v{vKP}, vcc')
I(f's_lshl_b32 s{t1}, s{sGrp}, 6')
I(f'v_add_u32 v8, s{t1}, v{vL}'); I(f'v_lshlrev_b32 v8, 7, v8'); I(f'v_add_u32 v13, {WS_FL+FL_KV*128}, v8')
KF=16; QF=120; OD=48; O5=184; PB=48
I('s_waitcnt lgkmcnt(0)')
for u in range(8):
    rt,hp=u>>1,u&1
    for hb in range(2):
        for hh in range(2): I(f'ds_read_b64_tr_b16 {v(QF+u*8+hb*4+2*hh,2)}, v{vPR+hh} offset:{(2*hp+hb)*20*PQS+32*rt}')
    if u%2==1: I('s_waitcnt lgkmcnt(4)')
I(f's_mov_b32 s{sEx}, -1'); I(f's_mov_b32 s{sEx+1}, 0'); I(f's_movk_i32 s{t0}, 0x1000')
stamp(20)
NQ=E('NQ',5*KB)
emit(bls(QW,NQ))
stamp(17)
poll([13],9)
stamp(18)
for hp in range(2):
    for i in range(4): I(f'buffer_load_dwordx4 {v(PB+hp*16+4*i,4)}, v{vKP+(i==3)}, {srd(sWS)}, {"0" if hp==0 else "s%d"%t0} offen offset:{1024*i} sc1')
for hp in range(2):
    for i in range(4):
        b=PB+hp*16+4*i
        I(f's_waitcnt vmcnt({7-hp*4-i})')
        I(f'v_cvt_pk_bf16_f32 v{b}, v{b}, v{b+1}'); I(f'v_cvt_pk_bf16_f32 v{b+1}, v{b+2}, v{b+3}')
        I(f'ds_write_b64 v{vKW+i}, {v(b,2)} offset:{2752*hp}')
for hp in range(2):
    for j in (2,0,3,1): I(f'ds_read_b128 {v(KF+(hp*4+j)*4,4)}, v{vKR+j} offset:{2752*hp}')
stamp(19)
def omf(u):
    hp=u&1; q=QF+u*8; d=OD+(u%4)*12
    I(f'{MF} {v(d+8,4)}, {v(KF+(hp*4+2)*4,4)}, {v(q,4)}, 0')
    I(f'{MF} {v(d,4)}, {v(KF+(hp*4+0)*4,4)}, {v(q,4)}, 0')
    I(f'{MF} {v(d+8,4)}, {v(KF+(hp*4+3)*4,4)}, {v(q+4,4)}, {v(d+8,4)}')
    I(f'{MF} {v(d+4,4)}, {v(KF+(hp*4+1)*4,4)}, {v(q+4,4)}, 0')
def ofin(u):
    rt,hp=u>>1,u&1; d=OD+(u%4)*12; o=192+(u&1)*4
    I(f'v_pk_add_f32 {v(d+10,2)}, {v(d+10,2)}, s[{sAo}:{sAo+1}] op_sel:[0,1]')
    I(f'v_rcp_f32 v{d+10}, v{d+10}'); I(f'v_rcp_f32 v{d+11}, v{d+11}')
    I('s_nop 0')
    for p in range(2): I(f'v_pk_mul_f32 {v(d+2*p,2)}, {v(d+2*p,2)}, {v(d+10,2)} op_sel_hi:[1,0]')
    for p in range(2): I(f'v_pk_mul_f32 {v(d+4+2*p,2)}, {v(d+4+2*p,2)}, {v(d+10,2)} op_sel:[0,1]')
    I(f'v_cndmask_b32 v{d+10}, v{d+11}, v{d+10}, s[{sEx}:{sEx+1}]')
    for p in range(4): I(f'v_cvt_pk_bf16_f32 v{o+p}, v{d+2*p}, v{d+2*p+1}')
    I(f'buffer_store_dwordx4 {v(o,4)}, v{vOS+hp}, {srd(sWS)}, 0 offen offset:{1024*rt} sc1')
    I(f'v_pk_mul_f32 {v(d+8,2)}, {v(d+8,2)}, {v(d+10,2)} op_sel_hi:[1,0]')
    I(f'v_cvt_pk_bf16_f32 v{O5+hp*4+rt}, v{d+8}, v{d+9}')
I('s_waitcnt lgkmcnt(4)'); omf(0); I('s_waitcnt lgkmcnt(0)'); omf(1)
for u in range(8):
    if u+2<8: weave(cap(ofin,u),cap(omf,u+2))
    else: ofin(u)
for hp in range(2):
    b=O5+hp*4
    I(f'v_permlane32_swap_b32 v{b}, v{b+2}'); I(f'v_permlane32_swap_b32 v{b+1}, v{b+3}')
    I(f'v_permlane16_swap_b32 v{b}, v{b+1}'); I(f'v_permlane16_swap_b32 v{b+2}, v{b+3}')
    I(f'buffer_store_dwordx4 {v(b,4)}, v{vO5+hp}, {srd(sWS)}, 0 offen sc1')
stamp(21)
I(f'v_mov_b32 v10, s{sTag}'); I(f'v_mov_b32 v11, s{sTag}'); I('s_waitcnt vmcnt(0)'); I('s_mov_b64 exec, 1'); I(f'buffer_store_dwordx2 v[10:11], v15, {srd(sWS)}, 0 offen sc1'); I('s_mov_b64 exec, -1')
stamp(22)
emit(bls(NQ,5*KB))
lab('Lp3')
vA,vGg,vFa,vFo,vL16=4,5,8,9,6
vOA,vTW,vTR,vAR,vAW,vOW,vOW4,vOR,vOut,vSg=240,244,247,248,249,250,251,252,253,14
AD2=224
I(f'v_lshlrev_b32 v{vL16}, 4, v{vL}')
for r in range(4):
    sadd(t0,sW,r); I(f's_and_b32 s{t0}, s{t0}, 3'); I(f's_lshl_b32 s{t1}, s{t0}, 10'); I(f'v_add_u32 v{vOA+r}, s{t1}, v{vL16}')
    if r: smul(t0,t0,15360); sadd(t0,t0,L_TB+(r-1)*5120); I(f'v_add_u32 v{vTW+r-1}, s{t0}, v{vL16}')
smul(t0,sW,15360); sadd(t0,t0,L_TB); I(f'v_add_u32 v{vTR}, s{t0}, v{vL16}')
smul(t0,sW,3072); sadd(t0,t0,L_TA); I(f'v_add_u32 v{vAR}, s{t0}, v{vL16}')
smul(t0,sWr,12288); sadd(t0,t0,L_TA); I(f'v_add_u32 v{vAW}, s{t0}, v{vL16}')
I(f's_lshl_b32 s{t0}, s{sN2}, 3')
I(f'v_and_b32 v7, 7, v{vL}'); I(f'v_add_u32 v7, s{t0}, v7'); I(f'v_lshlrev_b32 v7, 7, v7'); I(f'v_add_u32 v{vFo}, {WS_FL+FL_O*128}, v7')
vconst(15,560)
for i in range(3):
    I(f'v_add_u32 v12, {64*i}, v{vL}'); div10(13,12); I(f'v_mul_u32_u24 v14, 10, v13'); I(f'v_sub_u32 v14, v12, v14')
    I(f'v_mul_u32_u24 v13, 40960, v13'); I(f'v_lshl_add_u32 v13, v14, 4, v13'); I(f'v_cmp_lt_u32 vcc, 4, v14'); I(f'v_cndmask_b32 v14, 0, v15, vcc'); I(f'v_add_u32 v{vOut+i}, v13, v14')
vconst(12,OOB); I(f'v_cmp_gt_u32 vcc, 32, v{vL}'); I(f'v_cndmask_b32 v{vOut+2}, v12, v{vOut+2}, vcc')
smul(sB0,sW,16*40960); smul(t1,sN2,1280); sacc(sB0,t1); smul(t1,sCt,80); sacc(sB0,t1)
smul(t2,sW,2560); sadd(t2,t2,L_OUT)
I(f'v_mul_u32_u24 v12, 160, v{vN}'); I(f'v_lshl_add_u32 v12, v{vG}, 3, v12'); I(f'v_add_u32 v{vOW}, s{t2}, v12'); I(f'v_add_u32 v{vOR}, s{t2}, v{vL16}')
I(f'v_lshrrev_b32 v12, 5, v{vL}'); I(f'v_lshl_add_u32 v{vOW4}, v12, 6, v{vOW}'); I(f'v_lshlrev_b32 v12, 31, v12'); I(f'v_or_b32 v{vSg}, 0x3f800000, v12')
I(f's_lshl_b32 s{sB1}, s{sN2}, 8'); I(f's_lshl_b32 s{t1}, s{sW}, 6'); sacc(sB1,t1); sadd(sB1,sB1,WS_G)
I(f'v_lshlrev_b32 v7, 2, v{vN}')
smul(sGb,sN2,81920); I(f's_lshl_b32 s{t1}, s{sRot}, 12'); I(f's_add_u32 s{sGe}, s{sGb}, s{t1}'); sadd(sGe,sGe,WS_O)
C3=16; PA=E('PA',3)
I(f's_cmp_eq_u32 s{sWc}, 0'); I('s_cbranch_scc0 Lp3b')
D2L=[([f's_mov_b32 s{t0}, {TB.D2_OFF+1024*i}'] if i%4==0 else [])+[f'buffer_load_dwordx4 {a_(AD2+4*i,4)}, v{vL16}, {srd(sTAB)}, s{t0} offen offset:{1024*(i%4)}'] for i in range(8)]
I(f'v_mov_b32 v238, v218'); I(f'v_mov_b32 v239, v219')
I(f'v_lshrrev_b32 v{vA}, 2, v{vN}'); I(f'v_lshlrev_b32 v{vA}, 8, v{vA}'); I(f'v_lshl_add_u32 v{vA}, v{vG}, 6, v{vA}'); I(f'v_and_b32 v12, 3, v{vN}'); I(f'v_lshl_add_u32 v{vA}, v12, 4, v{vA}')
smul(t1,sWr,40960); I(f's_add_u32 s{sBo}, s{sGb}, s{t1}'); sadd(sBo,sBo,WS_R)
smul(t0,sWr,40); I(f's_movk_i32 s{t1}, 95'); I(f's_cmp_eq_u32 s{sWr}, 0'); I(f's_cselect_b32 s{t1}, 39, s{t1}')
I(f'v_add_u32 v12, s{t0}, v{vL}'); I(f'v_min_u32 v12, s{t1}, v12'); I(f'v_lshlrev_b32 v12, 7, v12'); I(f'v_add_u32 v{vFa}, {WS_FL+FL_R*128}, v12')
stamp(24)
if E('PDELAY',0): I(f's_sleep {E("PDELAY",0)}')
poll2(vFa,10)
stamp(25)
RING=9; PAA=E('PAA',5)
def arf(i): return v(64+4*(i%(4*RING)),4)
def aload(ks): return [[f'buffer_load_dwordx4 {arf(ks*4+mt)}, v{vA}, {srd(sWS)}, s{sBo} offen offset:{1024*mt} {HS}']+([f's_add_u32 s{sBo}, s{sBo}, 4096'] if mt==3 else []) for mt in range(4)]
for ks in range(PAA): emit(aload(ks))
XT=D2L+[[y.replace('v218','v238').replace('v219','v239') for y in g_] for g_ in bls(0,5*KA,120)]
nx=10-PAA if False else PAA
chunks=[XT[len(XT)*i//PAA:len(XT)*(i+1)//PAA] for i in range(PAA)]
ext=0
for ks in range(10):
    I(f's_waitcnt vmcnt({4*(min(10,ks+PAA)-ks-1)+ext})')
    M=[f'{MF} {v(C3+(mt*3+nt)*4,4)}, {arf(ks*4+mt)}, {a_((ks*3+nt)*4,4)}, {"0" if ks==0 else v(C3+(mt*3+nt)*4,4)}' for nt in range(3) for mt in range(4)]
    if ks+PAA<10: X=aload(ks+PAA)
    else: X=chunks[ks+PAA-10]; ext+=len(X)
    weave(M,X,0,len(M)-2)
I(f's_waitcnt vmcnt({5*KA})')
TF_=208; AO=96
for nt in range(3):
    for kb in range(2):
        o=TF_+(nt*2+kb)*4
        for q in range(2):
            for p in range(2):
                b=C3+((2*kb+q)*3+nt)*4+2*p; I(f'v_cvt_pk_bf16_f32 v{o+2*q+p}, v{b}, v{b+1}')
for nt in range(3):
    for kb in range(2):
        for w_ in range(4):
            c=v(AO+(w_*3+nt)*4,4); I(f'{MF} {c}, {v(TF_+(nt*2+kb)*4,4)}, {a_(AD2+(w_*2+kb)*4,4)}, {"0" if kb==0 else c}')
for nt in range(3):
    for w_ in range(4): I(f'ds_write_b128 v{vAW}, {v(AO+(w_*3+nt)*4,4)} offset:{(w_*3+nt)*1024}')
OF=144
def oload(ks): return [[f'buffer_load_dwordx4 {v(OF+((ks%5)*4+r)*4,4)}, v{vOA+r}, {srd(sWS)}, s{sGe} offen {HS}']+([f's_add_u32 s{sGe}, s{sGe}, 4096'] if r==3 else []) for r in range(4)]
def bmain(NK,AB):
    stamp(23)
    poll([vFo],10)
    stamp(12)
    pa=min(PA,NK)
    for ks in range(pa): emit(oload(ks))
    gl=[f'buffer_load_dword v{vGg}, v7, {srd(sWS)}, s{sB1} offen sc1']
    g=0
    if pa==NK: emit(gl); g=1
    for ks in range(NK):
        I(f's_waitcnt vmcnt({4*(min(NK,ks+pa)-ks-1)+g})')
        last=ks==NK-1
        order=[(nt,r) for nt in range(5) for r in range(4)] if not last else [(nt,r) for r in (1,2,3,0) for nt in range(5)]
        M=[f'{MF} {v(C3+(r*5+nt)*4,4)}, {a_(AB+(ks*5+nt)*4,4)}, {v(OF+((ks%5)*4+r)*4,4)}, {"0" if ks==0 else v(C3+(r*5+nt)*4,4)}' for nt,r in order]
        X=[]
        if ks+pa<NK: X=oload(ks+pa)
        elif not g: X=[gl]; g=1
        if not last: weave(M,X,0,len(M)-2)
        else:
            emit(X)
            for i,m in enumerate(M):
                I(m)
                if i>=8: r,nt=divmod(i-8,5); I(f'ds_write_b128 v{vTW+r}, {v(C3+((r+1)*5+nt)*4,4)} offset:{1024*nt}')
bmain(KA,120)
I('s_branch Lp3t')
lab('Lp3b')
bmain(KB,0)
lab('Lp3t')
I('s_nop 7')
stamp(26)
for i in range(12,15):
    r,nt=divmod(i,5); I(f'ds_write_b128 v{vTW+r}, {v(C3+((r+1)*5+nt)*4,4)} offset:{1024*nt}')
scale=struct.unpack('<I',struct.pack('<f',2.0/(2048*640)))[0]
I('s_waitcnt vmcnt(0)')
I(f'v_sub_f32 v11, 1.0, v{vGg}'); I(f'v_cvt_pk_bf16_f32 v11, v11, v11'); I(f'v_and_b32 v11, 0xffff0000, v11'); I(f'v_mul_f32 v10, 0x{scale:x}, v{vGg}')
I('s_waitcnt lgkmcnt(0)'); I('s_barrier')
stamp(27)
AE=160; TBF=96; OA=40
for t_ in range(3):
    for p_ in range(2): I(f'ds_read_b128 {v(AE+(t_*2+p_)*4,4)}, v{vAR} offset:{p_*12288+t_*1024}')
rb_=[f'ds_read_b128 {v(TBF+(nt*3+r)*4,4)}, v{vTR} offset:{r*5120+nt*1024}' for nt in range(5) for r in range(3)]
emit(rb_[:9])
I('s_waitcnt lgkmcnt(9)')
emit(rb_[9:])
for u in range(5):
    t_=(0,1,0,1,2)[u]; e_,o_2=AE+t_*8,AE+t_*8+4; c=OA+4*u
    for p in range(2):
        if u<4: I(f'v_pk_add_f32 {v(c+2*p,2)}, {v(e_+2*p,2)}, {v(o_2+2*p,2)}'+(' neg_lo:[0,1] neg_hi:[0,1]' if u>=2 else ''))
        else: I(f'v_pk_fma_f32 {v(c+2*p,2)}, {v(o_2+2*p,2)}, v[{vSg}:{vSg+1}], {v(e_+2*p,2)} op_sel_hi:[1,0,1]')
        I(f'v_pk_mul_f32 {v(c+2*p,2)}, {v(c+2*p,2)}, v[10:11] op_sel_hi:[1,0]')
for u in range(5):
    I(f's_waitcnt lgkmcnt({12-2*u})')
    b0=TBF+u*12; c=OA+4*u; own=C3+u*4
    for p in range(2):
        I(f'v_pk_add_f32 {v(b0+2*p,2)}, {v(b0+2*p,2)}, {v(b0+4+2*p,2)}')
        I(f'v_pk_add_f32 {v(own+2*p,2)}, {v(own+2*p,2)}, {v(b0+8+2*p,2)}')
        I(f'v_pk_add_f32 {v(b0+2*p,2)}, {v(b0+2*p,2)}, {v(own+2*p,2)}')
        I(f'v_pk_fma_f32 {v(c+2*p,2)}, {v(b0+2*p,2)}, v[10:11], {v(c+2*p,2)} op_sel:[0,1,0]')
    I(f'v_cvt_pk_bf16_f32 v{c}, v{c}, v{c+1}'); I(f'v_cvt_pk_bf16_f32 v{c+1}, v{c+2}, v{c+3}')
    I(f'ds_write_b64 v{vOW if u<4 else vOW4}, {v(c,2)} offset:{(0,32,80,112,64)[u]}')
I('s_waitcnt lgkmcnt(0)')
for i in range(3): I(f'ds_read_b128 {v(64+4*i,4)}, v{vOR} offset:{1024*i}')
for i in range(3):
    I(f's_waitcnt lgkmcnt({2-i})'); I(f'buffer_store_dwordx4 {v(64+4*i,4)}, v{vOut+i}, {srd(sOUT)}, s{sB0} offen {OUTPOL}')
I(f's_or_b32 s{t0}, s2, s{sW}'); I(f's_cmp_eq_u32 s{t0}, 0'); I('s_cbranch_scc0 Lnoe')
vconst(15,WS_E); setflag(15,14)
lab('Lnoe')
if PADT:
    lab('Lpad'); I(f's_memrealtime s[{sTS}:{sTS+1}]'); I('s_waitcnt lgkmcnt(0)'); I(f's_sub_u32 s{t0}, s{sTS}, s{sTS+2}'); I(f's_cmp_lt_u32 s{t0}, {PADT}'); I('s_cbranch_scc1 Lpad')
if TS:
    stamp(28)
    I(f's_lshl_b32 s{t0}, s2, 2'); sacc(t0,sW); I(f's_lshl_b32 s{t0}, s{t0}, 8'); sadd(t0,t0,WS_TS)
    I(f'v_lshlrev_b32 v4, 2, v{vL}')
    I(f'buffer_store_dword v0, v4, {srd(sWS)}, s{t0} offen')
lab('Lend')
I('s_endpgm')
body_txt=A.finish()
hdr=open(os.path.join(os.path.dirname(os.path.abspath(__file__)),'..','cdna_kernels',NAME+'.s.ref')).read().split('; Override launch')[0]
o_=hdr+f'; @launch grid=(256,1,1) block=(256,1,1) lds={LDS_SZ}\n'
o_+=f'.amdgcn_target "amdgcn-amd-amdhsa--gfx950"\n.text\n.globl {K}\n.p2align 8\n.type {K},@function\n{K}:\n'+body_txt
o_+=f'''.section .rodata,"a"
.p2align 6
.amdhsa_kernel {K}
  .amdhsa_next_free_vgpr 512
  .amdhsa_next_free_sgpr 102
  .amdhsa_accum_offset 256
  .amdhsa_group_segment_fixed_size 0
  .amdhsa_kernarg_size 80
  .amdhsa_user_sgpr_count 2
  .amdhsa_user_sgpr_kernarg_segment_ptr 1
  .amdhsa_system_sgpr_workgroup_id_x 1
.end_amdhsa_kernel
'''
if DEV: o_+='.p2align 8\n.type tab_base,@object\ntab_base:\n@@INCBIN@@\n'
else: o_+=TB.emit()
o=[a for a in sys.argv[1:] if not a.startswith('--')]
open(o[0] if o else 'out.s','w').write(o_)
print('instructions:',sum(1 for l in body_txt.split('\n') if l.startswith('    ')),'nops inserted:',A.nnops,file=sys.stderr)
```

```python
import sys, os, struct
from asm import Asm
import tables as TB

NAME='gated_mix__spectral_gfnet__linear_attn_block__prompt'
DEV = '--dev' in sys.argv
TS  = '--ts' in sys.argv
E=lambda k,d: int(os.environ.get(k,str(d)))
PFX=E('PFX',0); PW=E('PW',0); POLW=os.environ.get('POLW',''); LEAD=E('LEAD',5); ROT=E('ROT',0 if PFX else 8); POLA=os.environ.get('POLA',''); POLB=os.environ.get('POLB',''); LDPOL=os.environ.get('LDPOL',''); HS=os.environ.get('HS','sc1')
CPF=E('CPF',1); KA=E('KA',1); KB=10-KA; R3=0; POI=E('POI',1); PF=E('PF',0); PFW=E('PFW',3); PFPOL=os.environ.get('PFPOL',''); PFE=E('PFE',0); HALF=1; PEEL=E('PEEL',1); WS1=E('WS1',16)
WS_Y=0; WS_R=2621440; WS_O=2*2621440; WS_KVA=3*2621440; WS_WOF=WS_KVA+65536; WS_G=WS_KVA+1048576
WS_FL=WS_G+8192
FL_Y=0; FL_KV=256; FL_R=768; FL_O=960; FL_E=1216; NFL=2240
WS_E=WS_FL+NFL*128; WS_TS=WS_E+128; WS_SZ=WS_TS+256*4*256
OOB=0x7ff00000
SLOT=36880; SEG0=16384; SEG1=16384+10240+16
L_G=2*SLOT+16384; L_FLG=155648; L_PP=L_FLG+64; LDS_SZ=L_PP+4096
L_PQ=[0,10880]; PQS=136; L_RED=0; L_XCH=[24576,24576+8704]; L_KVI=43008
L_TA=57344; L_TB=81920; L_OUT=143360
sX,sSEG,sWS,sWR,sWI,sTAB,sWO,sOUT,sGATE=4,8,12,16,20,24,28,32,36
sW,sWr,sWc,sTyp,sRb,sGrp,sTag,sCnt=40,41,42,43,44,45,46,47
sAo,sBo,sBstep,sMA,sMB,sDl,sIs,sDm=48,49,50,51,52,53,54,55
sT,sCh,sN2,sCt,sAct,sTo=56,57,58,59,60,61
t0,t1,t2,t3,t4,t5=62,63,64,65,66,67
sK=68; sEx=88; sTS=90; sB0,sB1,sGo,sA2=94,95,96,98; sBS=84; sGb,sGe,sRot=99,100,101
OUTPOL=os.environ.get('OUTPOL','')
ATP=os.environ.get('ATP','')
def srd(n): return f's[{n}:{n+3}]'
def v(a,n=1): return f'v{a}' if n==1 else f'v[{a}:{a+n-1}]'
def a_(a,n=1): return f'a{a}' if n==1 else f'a[{a}:{a+n-1}]'
vL,vN,vG=1,2,3
A=Asm(); out=[A]
class Buf(list):
    def __call__(s,t): s.append(t)
def I(t): out[-1](t)
def cap(f,*a):
    b=Buf(); out.append(b); f(*a); out.pop(); return list(b)
def emit(L):
    for x in L:
        if isinstance(x,(list,tuple)): emit(x)
        else: I(x)
def weave(P,F,start=0,end=None):
    end=len(P) if end is None else end
    n=end-start; k=0
    for i,p in enumerate(P):
        emit([p])
        if start<=i<end:
            tgt=((i-start+1)*len(F))//n
            while k<tgt: emit([F[k]]); k+=1
    while k<len(F): emit([F[k]]); k+=1
def lab(n): I(n+':')
def stamp(i):
    if E('PADT',0) and E('PADK',0)==i:
        I(f's_memrealtime s[{sTS+2}:{sTS+3}]'); I('s_waitcnt lgkmcnt(0)')
    if TS:
        I(f's_memrealtime s[{sTS}:{sTS+1}]'); I('s_waitcnt lgkmcnt(0)'); I(f'v_writelane_b32 v0, s{sTS}, {i}')
        if i in (3,14,12,26):
            I(f's_memtime s[{sTS}:{sTS+1}]'); I('s_waitcnt lgkmcnt(0)'); I(f'v_writelane_b32 v0, s{sTS}, {i+32}')
def smul(d,x,c): I(f's_mul_i32 s{d}, s{x}, {c}')
def sadd(d,x,c): I(f's_add_u32 s{d}, s{x}, {c if isinstance(c,int) else "s%d"%c[0]}')
def sacc(d,x): I(f's_add_u32 s{d}, s{d}, s{x}')
def vconst(r,c): I(f'v_mov_b32 v{r}, {c}')
def div10(dst,src): I(f'v_mul_u32_u24 v{dst}, 0x199a, v{src}'); I(f'v_lshrrev_b32 v{dst}, 16, v{dst}')
uid=[0]
SLP=E('SLP',6)
def poll(voffs,tmp):
    I(f's_mov_b32 s{sTo}, 0x40000')
    for i,vo in enumerate(voffs): I(f'buffer_load_dword v{tmp+i}, v{vo}, {srd(sWS)}, 0 offen sc1')
    for i,vo in enumerate(voffs):
        uid[0]+=1; L=f'Lpoll{uid[0]}'
        I(f's_waitcnt vmcnt({len(voffs)-1-i})')
        lab(L)
        I(f'v_cmp_ne_u32 vcc, s{sTag}, v{tmp+i}')
        I(f's_cbranch_vccz {L}d')
        I('s_mov_b64 exec, vcc')
        if E('SLP1',6): I(f's_sleep {E("SLP1",6)}')
        I(f'buffer_load_dword v{tmp+i}, v{vo}, {srd(sWS)}, 0 offen sc1')
        I(f's_sub_u32 s{sTo}, s{sTo}, 1')
        I('s_waitcnt vmcnt(0)')
        I(f's_cbranch_scc0 {L}'); lab(L+'d')
        I('s_mov_b64 exec, -1')
def poll2(vo,tmp):
    uid[0]+=1; L=f'Lpoll{uid[0]}'
    I(f's_mov_b32 s{sTo}, 0x40000')
    I(f'buffer_load_dwordx2 {v(tmp,2)}, v{vo}, {srd(sWS)}, 0 offen sc1')
    I(f's_waitcnt vmcnt(0)')
    lab(L)
    I(f'v_cmp_ne_u32 vcc, s{sTag}, v{tmp}'); I(f'v_cmp_ne_u32 s[{t4}:{t5}], s{sTag}, v{tmp+1}'); I(f's_or_b64 vcc, vcc, s[{t4}:{t5}]')
    I(f's_cbranch_vccz {L}d')
    I('s_mov_b64 exec, vcc')
    if SLP: I(f's_sleep {SLP}')
    I(f'buffer_load_dwordx2 {v(tmp,2)}, v{vo}, {srd(sWS)}, 0 offen sc1')
    I(f's_sub_u32 s{sTo}, s{sTo}, 1')
    I('s_waitcnt vmcnt(0)')
    I(f's_cbranch_scc0 {L}'); lab(L+'d')
    I('s_mov_b64 exec, -1')
def ldssync(vaddr,tmp):
    I(f'v_mov_b32 v{tmp}, 1'); I('s_waitcnt lgkmcnt(0)')
    I('s_mov_b64 exec, 1'); I(f'ds_add_u32 v{vaddr}, v{tmp}'); I('s_mov_b64 exec, -1')
    uid[0]+=1; L=f'Llp{uid[0]}'
    I(f's_mov_b32 s{sTo}, 0x400000'); lab(L)
    I(f'ds_read_b32 v{tmp}, v{vaddr}'); I('s_waitcnt lgkmcnt(0)')
    I(f'v_cmp_gt_u32 vcc, 2, v{tmp}')
    I(f's_cbranch_vccz {L}d'); I(f's_sub_u32 s{sTo}, s{sTo}, 1'); I(f's_cbranch_scc0 {L}'); lab(L+'d')
def setflag(voff,tmp):
    I(f'v_mov_b32 v{tmp}, s{sTag}'); I('s_mov_b64 exec, 1')
    I(f'buffer_store_dword v{tmp}, v{voff}, {srd(sWS)}, 0 offen sc1'); I('s_mov_b64 exec, -1')
def mksrd(d,p,n):
    I(f's_mov_b32 s{d}, s{p}'); I(f's_mov_b32 s{d+1}, s{p+1}'); I(f's_mov_b32 s{d+2}, {n}'); I(f's_mov_b32 s{d+3}, 0x20000')
MF='v_mfma_f32_16x16x32_bf16'
K=f'{NAME}_kernel'
ACC=16
FX=dict(A=100,B=116); FY=dict(A=140,B=156)
vAo=180; vBo=184; vRA=189; vRB=191
vKA=200; vE0=208; vWp,vWm,vWm0=214,215,216; WP=220
lab('Lstart')
I(f's_cmp_ge_u32 s2, 256'); I('s_cbranch_scc1 Lend')
PADT=E('PADT',0)
if TS or PADT: I(f's_memrealtime s[{sTS+2}:{sTS+3}]')
I(f's_load_dwordx16 s[{sK}:{sK+15}], s[0:1], 0')
I(f's_load_dwordx4 s[{sK+16}:{sK+19}], s[0:1], 64')
I(f'v_lshrrev_b32 v4, 6, v0'); I(f'v_and_b32 v{vL}, 63, v0')
I(f'v_readfirstlane_b32 s{sW}, v4')
I(f's_getpc_b64 s[{sGATE}:{sGATE+1}]')
lab('Lpc')
I(f's_add_u32 s{sTAB}, s{sGATE}, tab_base@rel32@lo+4'); I(f's_addc_u32 s{sTAB+1}, s{sGATE+1}, tab_base@rel32@hi+12')
I(f's_mov_b32 s{sGATE+2}, Lfin-Lpc'); I(f's_mov_b32 s{sGATE+3}, 0x20000')
I(f'v_lshlrev_b32 v9, 4, v{vL}')
I(f's_lshr_b32 s{t0}, s2, 3'); I(f's_and_b32 s{t1}, s2, 7')
if CPF:
    I(f's_lshl_b32 s{t2}, s{t0}, 10'); I(f's_cmp_eq_u32 s{sW}, 3'); I(f's_cbranch_scc0 Lnocpf')
    I(f'buffer_load_dwordx4 v[96:99], v9, {srd(sGATE)}, s{t2} offen'); lab('Lnocpf')
I(f'v_and_b32 v{vN}, 15, v{vL}'); I(f'v_lshrrev_b32 v{vG}, 4, v{vL}')
I(f's_lshr_b32 s{sRb}, s{t1}, 2'); I(f's_lshl_b32 s{sRb}, s{sRb}, 3'); I(f's_lshr_b32 s{t2}, s{t0}, 2'); sacc(sRb,t2)
I(f's_and_b32 s{sWr}, s{sW}, 1'); I(f's_lshr_b32 s{sWc}, s{sW}, 1')
I(f'v_and_b32 v5, 7, v{vL}'); I(f'v_xor_b32 v5, v5, v{vG}'); I(f'v_lshrrev_b32 v4, 3, v{vL}'); I(f'v_mul_u32_u24 v4, 40960, v4')
I(f'v_lshl_add_u32 v{vAo}, v5, 4, v4'); I(f'v_xor_b32 v{vAo+1}, 64, v{vAo}')
I(f's_lshl_b32 s{t3}, s{sRb}, 1'); sacc(t3,sWc); smul(t3,t3,1280); smul(t2,sWr,32*40960); I(f's_add_u32 s{sA2}, s{t3}, s{t2}')
I(f's_bfe_u32 s{sTyp}, s{t0}, 0x10001')
I(f's_and_b32 s{sGrp}, s{t1}, 3'); I(f's_lshl_b32 s{sGrp}, s{sGrp}, 1'); I(f's_and_b32 s{t2}, s{t0}, 1'); sacc(sGrp,t2)
if E('P3MAP',1)==0:
    I(f's_lshl_b32 s{sN2}, s{t1}, 2'); I(f's_lshr_b32 s{t2}, s{t0}, 3'); sacc(sN2,t2); I(f's_and_b32 s{sCt}, s{t0}, 7')
else:
    I(f's_lshr_b32 s{sN2}, s{t1}, 1'); I(f's_lshl_b32 s{sN2}, s{sN2}, 3'); I(f's_lshr_b32 s{t2}, s{t0}, 2'); sacc(sN2,t2)
    I(f's_and_b32 s{sCt}, s{t1}, 1'); I(f's_lshl_b32 s{sCt}, s{sCt}, 2'); I(f's_and_b32 s{t2}, s{t0}, 3'); sacc(sCt,t2)
if ROT:
    a,ma,b,mb,c,d={1:(5,7,10,3,0,0),2:(0,0,0,0,10,20),3:(20,1,20,1,0,0),4:(10,3,10,3,0,0),5:(20,1,0,0,10,0),6:(0,0,20,1,10,20),7:(10,1,20,1,0,0),8:(5,7,10,3,10,20),9:(0,0,0,0,0,20),10:(0,0,0,0,20,20)}[ROT]
    I(f's_lshr_b32 s{t2}, s{t0}, 2'); I(f's_and_b32 s{t2}, s{t2}, {ma}'); smul(t2,t2,a); I(f's_and_b32 s{t3}, s{t0}, {mb}'); smul(t3,t3,b); sacc(t2,t3)
    I(f's_and_b32 s{t3}, s{t1}, 3'); smul(t3,t3,c); sacc(t2,t3); I(f's_lshr_b32 s{t3}, s{t1}, 2'); smul(t3,t3,d); sacc(t2,t3)
    I(f's_lshr_b32 s{t2}, s{t2}, 2'); smul(t3,t2,26); I(f's_lshr_b32 s{t3}, s{t3}, 8'); smul(t3,t3,10); I(f's_sub_u32 s{sIs}, s{t2}, s{t3}')
else: I(f's_mov_b32 s{sIs}, 0')
I(f's_lshl_b32 s{sMA}, s{sW}, 12')
I(f's_lshl_b32 s{sAo}, s{sIs}, 7'); sacc(sAo,sA2)
I(f's_mov_b32 s{sTAB+2}, {TB.TAB_SZ}'); I(f's_mov_b32 s{sTAB+3}, 0x20000')
I(f's_andn2_b32 s{t0}, s{sTyp}, s{sWc}')
I(f's_sub_u32 s{t1}, 1, s{sTyp}'); sadd(t2,sWc,1); I(f's_mul_i32 s{t1}, s{t1}, s{t2}'); smul(t1,t1,1280)
smul(t2,sGrp,160); sacc(t1,t2); smul(t2,sWr,32*3840); sacc(t1,t2)
smul(t2,sGrp,102400); smul(t3,sWr,5120); sacc(t2,t3)
smul(sMB,sWc,10256); sacc(sMB,t3); sadd(sMB,sMB,SEG0)
I(f's_cmp_eq_u32 s{t0}, 1')
I(f's_cselect_b32 s{t1}, s{t2}, s{t1}')
I(f's_mov_b32 s{sBstep}, {64*3840}'); I(f's_cselect_b32 s{sBstep}, 10240, s{sBstep}')
I(f's_cselect_b64 s[{t4}:{t5}], -1, 0')
I(f's_mul_i32 s{sBo}, s{sIs}, s{sBstep}')
I(f's_mov_b32 s{t2}, 3840')
def dmaA(i): return [f's_add_u32 m0, s{sMA}, {1024*i}', f's_add_u32 s{t3}, s{sAo}, {i*8*40960}', f'buffer_load_dwordx4 v{vAo+(i&1)}, {srd(sX)}, s{t3} offen {POLA} lds']
def dmaB(i): return [f's_add_u32 m0, s{sMB}, {1024*i}', 's_nop 0', f'buffer_load_dwordx4 v{vBo+i}, {srd(sSEG)}, s{sBo} offen {POLB} lds']
def advA(d):
    return [f's_add_u32 s{sIs}, s{sIs}, 1', f's_cmp_eq_u32 s{sIs}, 10', f's_cselect_b32 s{sIs}, 0, s{sIs}',
            f's_lshl_b32 s{sAo}, s{sIs}, 7', f's_add_u32 s{sAo}, s{sAo}, s{sA2}', f's_add_u32 s{sMA}, s{sMA}, {d}']
def advB(d): return [f's_mul_i32 s{sBo}, s{sIs}, s{sBstep}', f's_add_u32 s{sMB}, s{sMB}, {d}']
def dma_adv(d):
    return [f's_add_u32 s{sIs}, s{sIs}, 1', f's_cmp_eq_u32 s{sIs}, 10', f's_cselect_b32 s{sIs}, 0, s{sIs}',
            f's_lshl_b32 s{sAo}, s{sIs}, 7', f's_add_u32 s{sAo}, s{sAo}, s{sA2}', f's_mul_i32 s{sBo}, s{sIs}, s{sBstep}',
            f's_add_u32 s{sMA}, s{sMA}, {d}', f's_add_u32 s{sMB}, s{sMB}, {d}']
def boff(i):
    I(f'v_add_u32 v4, {64*i}, v{vL}'); div10(5,4)
    I(f'v_lshlrev_b32 v4, 4, v4'); I(f'v_mul_u32_u24 v6, 160, v5'); I(f'v_sub_u32 v6, v4, v6')
    I(f'v_and_b32 v7, 3, v5'); I(f'v_bfe_u32 v8, v5, 2, 2'); I(f'v_lshl_or_b32 v7, v8, 3, v7')
    I(f'v_lshrrev_b32 v8, 4, v5'); I(f'v_lshl_or_b32 v7, v8, 2, v7')
    I(f'v_mad_u32_u24 v7, v7, s{t2}, v6'); I(f'v_cndmask_b32 v7, v7, v4, s[{t4}:{t5}]'); I(f'v_add_u32 v{vBo+i}, s{t1}, v7')
boff(0)
if TS: I(f's_memrealtime s[{sTS}:{sTS+1}]')
I('s_waitcnt lgkmcnt(0)')
if TS:
    I(f'v_writelane_b32 v0, s{sTS}, 4'); stamp(2)
mksrd(sX,sK+0,2621440)
WSB=E('WSB',128)*1048576
if WSB: I(f's_add_u32 s{sK+18}, s{sK+18}, {WSB}'); I(f's_addc_u32 s{sK+19}, s{sK+19}, 0')
I(f's_cmp_eq_u32 s{t0}, 1')
I(f's_cselect_b32 s{sSEG}, s{sTAB}, s{sK+8}'); I(f's_cselect_b32 s{sSEG+1}, s{sTAB+1}, s{sK+9}')
I(f's_mov_b32 s{sSEG+2}, 2457600'); I(f's_cselect_b32 s{sSEG+2}, {TB.TF_SZ}, s{sSEG+2}'); I(f's_mov_b32 s{sSEG+3}, 0x20000')
for i in range(4): emit(dmaA(i)); boff(i+1)
if TS: I(f'v_writelane_b32 v0, s{sTS+2}, 0')
def setup0():
    mksrd(sWS,sK+18,WS_SZ); mksrd(sWO,sK+10,819200)
    I(f's_lshl_b32 s{sDm}, s2, 2'); sacc(sDm,sW)
    smul(t0,sDm,0x667); I(f's_lshr_b32 s{t0}, s{t0}, 16')
    smul(t1,t0,40); I(f's_sub_u32 s{t1}, s{sDm}, s{t1}')
    smul(t2,t1,52); I(f's_lshr_b32 s{t2}, s{t2}, 8')
    smul(sGo,t2,5); I(f's_sub_u32 s{t1}, s{t1}, s{sGo}')
    smul(t2,t2,80)
    I(f's_lshl_b32 s{t0}, s{t0}, 2')
    I(f'v_bfe_u32 v4, v{vL}, 3, 2'); I(f'v_add_u32 v4, s{t0}, v4'); I(f'v_mul_u32_u24 v5, 0x3334, v4'); I(f'v_lshrrev_b32 v5, 16, v5')
    I(f'v_lshrrev_b32 v6, 5, v{vL}'); I(f'v_add_u32 v5, v5, v6')
    I(f'v_mul_u32_u24 v5, 20, v5'); I(f'v_lshl_add_u32 v5, v4, 2, v5'); I(f'v_bfe_u32 v4, v{vL}, 1, 2'); I(f'v_add_u32 v5, v5, v4')
    I(f's_lshr_b32 s{t0}, s{t1}, 1'); smul(t0,t0,640); I(f's_and_b32 s{sGo}, s{t1}, 1'); I(f's_lshl_b32 s{sGo}, s{sGo}, 5'); sacc(t0,sGo)
    I(f's_movk_i32 s{sGo}, 640')
    I([f's_cmp_eq_u32 s{t1}, 4', f's_cselect_b32 s{t0}, 64, s{t0}', f's_cselect_b32 s{t1}, s{sGo}, 16'])
    I(f'v_and_b32 v4, 1, v{vL}'); I(f'v_mul_u32_u24 v4, s{t1}, v4'); I(f's_movk_i32 s{t1}, 1280'); I(f'v_mad_u32_u24 v213, v5, s{t1}, v4')
    sacc(t0,t2)
    I([f's_cmp_lt_u32 s2, 200', f's_cselect_b32 s{sGo}, s{t0}, {OOB}'])
    I(f's_lshl_b32 s{t0}, s{sDm}, 6'); sadd(sDl,t0,WS_KVA)
    I(f'v_lshlrev_b32 v217, 2, v{vL}'); vconst(212,0)
def setupPF():
    I(f's_lshr_b32 s{t0}, s2, 3'); I(f's_lshl_b32 s{t0}, s{t0}, 2'); sacc(t0,sW)
    I(f's_lshl_b32 s{t1}, s{t0}, 3'); I(f'v_and_b32 v4, 7, v{vL}'); I(f'v_add_u32 v4, s{t1}, v4'); I(f'v_lshrrev_b32 v5, 4, v4'); I(f'v_and_b32 v4, 15, v4')
    I(f'v_lshl_add_u32 v4, v5, 5, v4'); I(f's_bfe_u32 s{t1}, s2, 0x10002'); I(f's_lshl_b32 s{t1}, s{t1}, 4'); I(f'v_add_u32 v4, s{t1}, v4'); I(f'v_mul_u32_u24 v10, 1280, v4')
    smul(t1,t0,5); I(f'v_subrev_u32 v4, 8, v{vL}'); I(f'v_add_u32 v4, s{t1}, v4'); I(f'v_min_u32 v4, 575, v4')
    I(f'v_mul_u32_u24 v5, 0x1c72, v4'); I(f'v_lshrrev_b32 v5, 16, v5'); I(f'v_mul_u32_u24 v6, 9, v5'); I(f'v_sub_u32 v6, v4, v6')
    I(f'v_mul_u32_u24 v7, 86, v6'); I(f'v_lshrrev_b32 v7, 8, v7'); I(f'v_mul_u32_u24 v8, 3, v7'); I(f'v_sub_u32 v8, v6, v8')
    I(f'v_mul_u32_u24 v5, 3840, v5'); I(f'v_mul_u32_u24 v7, 1280, v7'); I(f'v_lshlrev_b32 v8, 7, v8'); I(f'v_add3_u32 v5, v5, v7, v8')
    I(f's_and_b32 s{t2}, s2, 3'); smul(t1,t2,320); I(f's_and_b32 s{t1}, s{t1}, {0xffffff80}'); I(f'v_add_u32 v11, s{t1}, v5')
    I(f's_lshl_b32 s{t1}, s{t0}, 1'); I(f'v_subrev_u32 v4, 13, v{vL}'); I(f'v_add_u32 v4, s{t1}, v4'); I(f'v_min_u32 v4, 159, v4')
    I(f'v_lshlrev_b32 v5, 7, v4'); vconst(6,102400-10240); I(f'v_cmp_lt_u32 vcc, 79, v4'); I(f'v_cndmask_b32 v6, 0, v6, vcc'); I(f'v_add_u32 v5, v5, v6')
    smul(t1,t2,204800); I(f'v_add_u32 v12, s{t1}, v5')
    I(f'v_cmp_gt_u32 s[{t4}:{t5}], 8, v{vL}'); I(f'v_cmp_gt_u32 vcc, 13, v{vL}')
    I(f'v_cndmask_b32 v11, v12, v11, vcc'); I(f'v_cndmask_b32 v10, v11, v10, s[{t4}:{t5}]')
    for d,(x_,w_,f_) in ((96,(sK,sK+8,sTAB)),(97,(sK+1,sK+9,sTAB+1))):
        I(f'v_mov_b32 v4, s{f_}'); I(f'v_mov_b32 v5, s{w_}'); I(f'v_mov_b32 v6, s{x_}'); I(f'v_cndmask_b32 v4, v4, v5, vcc'); I(f'v_cndmask_b32 v{d}, v4, v6, s[{t4}:{t5}]')
    vconst(4,10240); vconst(5,64*3840); I(f'v_cndmask_b32 v4, v4, v5, vcc'); vconst(5,128); I(f'v_cndmask_b32 v98, v4, v5, s[{t4}:{t5}]')
    I(f'v_lshl_add_u32 v10, v98, 1, v10')
    I([f'v_add_co_u32 v96, vcc, v96, v10', f'v_addc_co_u32 v97, vcc, 0, v97, vcc'])
def pf(adv=True):
    L=['s_mov_b64 exec, 0x7fff', f'global_load_dword v99, v[96:97], off {PFPOL}', 's_mov_b64 exec, -1']
    if adv: L+=['v_add_co_u32 v96, vcc, v96, v98', 'v_addc_co_u32 v97, vcc, 0, v97, vcc']
    return L
def setup1():
    I([f's_add_u32 s{t0}, s{sK+18}, {WS_E}', f's_addc_u32 s{t1}, s{sK+19}, 0', f's_load_dword s{sTag}, s[{t0}:{t1}], 0'])
    mksrd(sWR,sK+2,1314816); mksrd(sWI,sK+4,1314816); mksrd(sGATE,sK+12,1280); mksrd(sOUT,sK+14,2621440)
    vconst(5,0); I(f'v_lshlrev_b32 v4, 2, v{vN}'); I(f'v_add_u32 v4, {L_FLG}, v4'); I(f'ds_write_b32 v4, v5')
    I(f'v_lshrrev_b32 v4, 1, v{vN}'); I(f'v_xor_b32 v4, v4, v{vG}'); I(f'v_lshlrev_b32 v4, 4, v4')
    I(f'v_lshl_add_u32 v4, v{vN}, 7, v4'); I(f's_lshl_b32 s{t0}, s{sWr}, 13'); I(f'v_add_u32 v{vRA}, s{t0}, v4'); I(f'v_xor_b32 v{vRA+1}, 64, v{vRA}')
    I(f'v_lshrrev_b32 v4, 2, v{vL}'); I(f'v_mul_u32_u24 v4, 160, v4'); I(f'v_and_b32 v5, 3, v{vL}'); I(f'v_lshlrev_b32 v5, 3, v5'); I(f'v_add_u32 v4, v4, v5')
    smul(t0,sWc,80); smul(t1,sWc,10256)
    I([f's_cmp_eq_u32 s{sTyp}, 0', f's_cselect_b32 s{t0}, s{t0}, s{t1}', f's_cselect_b32 s{t1}, {SEG1-SEG0-80}, 0']); sadd(t0,t0,SEG0)
    I(f'v_add_u32 v{vRB}, s{t0}, v4'); I(f'v_add_u32 v{vRB+1}, 32, v{vRB}')
    I(f'v_mov_b32 v6, s{t1}'); I(f'v_cmp_lt_u32 vcc, 8, v5'); I(f'v_cndmask_b32 v6, 0, v6, vcc'); I(f'v_add3_u32 v{vRB+2}, v{vRB}, v6, 64')
    I(f'v_add_u32 v4, s{t1}, v{vRB}'); I(f'v_add_u32 v{vRB+3}, 96, v4'); I(f'v_add_u32 v{vRB+4}, 0x80, v4')
    for i in range(80): vconst(ACC+i,0)
    I(f's_lshr_b32 s{t0}, s{sRb}, 1'); I(f's_lshl_b32 s{t0}, s{t0}, 3'); sacc(t0,sGrp)
    I(f's_lshr_b32 s{t1}, s{t0}, 4'); sadd(t1,t1,16)
    I(f's_and_b32 s{t2}, s{t0}, 15'); I(f's_lshl_b32 s{t2}, s{t2}, 1'); sacc(t2,sWr)
    I(f's_lshl_b32 s{t0}, s{sGrp}, 2'); sacc(t0,sW)
    I([f's_cmp_eq_u32 s{sTyp}, 0', f's_cselect_b32 s{sT}, s{t0}, s{t2}', f's_cselect_b32 s{sCh}, s{sRb}, s{t1}'])
    I(f's_or_b32 s{t0}, s{sRb}, s{sWc}'); I(f's_and_b32 s{t0}, s{t0}, s{sTyp}'); I(f's_xor_b32 s{sAct}, s{t0}, 1')
    for i in range(32): vconst(WP+i,0)
    I(f's_lshl_b32 s{t0}, s{sCh}, 6'); I([f's_cmp_ge_u32 s{sCh}, 10', f's_cselect_b32 s{t1}, 638, 0']); I(f's_sub_u32 s{t0}, s{t0}, s{t1}')
    I([f's_cmp_eq_u32 s{sAct}, 1', f's_cselect_b32 s{t0}, s{t0}, {OOB}'])
    I(f's_mov_b32 s{t1}, {256*642}'); I(f'v_lshlrev_b32 v10, 2, v{vN}'); I(f'v_add_u32 v10, s{t0}, v10')
    I(f'v_mad_u32_u24 v{vWp}, v{vG}, s{t1}, v10'); I(f'v_sub_u32 v11, 3, v{vG}'); I(f'v_mad_u32_u24 v{vWm}, v11, s{t1}, v10')
    I(f's_movk_i32 s{t2}, 1024')
    I([f's_cmp_eq_u32 s{sT}, 0', f's_cselect_b32 s{t0}, {1024*642}, 0', f's_cselect_b32 s{t2}, 32, s{t2}'])
    I(f'v_mov_b32 v11, s{t0}'); I(f'v_cmp_eq_u32 vcc, 0, v{vG}'); I(f'v_cndmask_b32 v11, 0, v11, vcc'); I(f'v_sub_u32 v11, {256*642}, v11'); I(f'v_add_u32 v{vWm0}, v{vWm}, v11')
    sacc(t2,sT); smul(sB0,sT,642); smul(sB1,t2,642)
    I(f'v_mul_u32_u24 v4, {64*642}, v{vN}'); I(f'v_mov_b32 v5, s{sB0}'); I(f'v_mov_b32 v6, s{sB1}')
    I(f'v_and_b32 v7, 16, v{vL}'); I(f'v_cmp_eq_u32 vcc, 0, v7'); I(f'v_cndmask_b32 v5, v6, v5, vcc'); I(f'v_add_u32 v4, v4, v5')
    I(f'v_sub_u32 v5, {2048*642}, v4'); vconst(6,1024*642); I(f'v_cmp_eq_u32 vcc, 0, v4'); I(f'v_cndmask_b32 v5, v5, v6, vcc')
    I(f'v_cmp_gt_u32 vcc, 32, v{vL}'); I(f'v_cndmask_b32 v4, v5, v4, vcc')
    I([f's_cmp_eq_u32 s{sCh}, 0', f's_cselect_b32 s{t0}, 0, {OOB}']); I(f'v_add_u32 v254, s{t0}, v4')
    for i in range(4): vconst(vE0+i,OOB)
    smul(t0,sWr,KA); smul(t1,sWr,KB); sadd(t1,t1,2*KA); I([f's_cmp_eq_u32 s{sWc}, 0', f's_cselect_b32 s{sRot}, s{t0}, s{t1}', f's_cselect_b32 s{t2}, {5*KA-1}, {5*KB-1}'])
    smul(t0,sCt,5120); smul(t1,sRot,40960); sacc(t0,t1); sadd(sGb,t0,WS_WOF); sadd(sGe,sGb,KB*40960)
    if R3:
        if E('P3MAP',1)==0: smul(t0,sCt,10); I(f's_lshr_b32 s85, s{t0}, 3')
        else: I(f's_and_b32 s{t0}, s{sCt}, 3'); smul(t0,t0,10); I(f's_lshr_b32 s85, s{t0}, 2')
    else: I('s_mov_b32 s85, 0')
    I(f's_min_u32 s84, s85, {KB-1}'); I([f's_cmp_eq_u32 s{sWc}, 0', f's_cselect_b32 s84, 0, s84'])
    smul(t0,84,40960); I(f's_add_u32 s{sGo}, s{sGb}, s{t0}')
    I(f'v_min_u32 v9, s{t2}, v{vL}')
    I(f'v_lshlrev_b32 v4, 3, v{vL}'); I(f's_lshl_b32 s{t0}, s{sW}, 10'); sadd(t0,t0,L_PP); I(f'v_add_u32 v213, s{t0}, v4')
    I(f's_lshl_b32 s{t0}, s{sDm}, 10'); sadd(t0,t0,WS_WOF); I([f's_cmp_lt_u32 s2, 200', f's_cselect_b32 s{sB0+3}, s{t0}, {OOB}'])
    I(f's_lshl_b32 s{t0}, s{sDm}, 2'); sadd(t0,t0,WS_FL+FL_E*128); I(f'v_mov_b32 v217, s{t0}')
    I(f'v_mov_b32 v4, v9'); I(f'v_mul_u32_u24 v5, 52, v4'); I(f'v_lshrrev_b32 v5, 8, v5'); I(f'v_mad_u32_u24 v4, v5, 35, v4')
    smul(t0,sRot,40); smul(t1,sCt,5); sacc(t0,t1); I(f'v_add_u32 v4, s{t0}, v4'); I(f'v_lshlrev_b32 v4, 2, v4'); I(f'v_add_u32 v196, {WS_FL+FL_E*128}, v4')
    I(f's_lshl_b32 s{t0}, s{sGrp}, 1'); sacc(t0,sWc); I(f's_lshl_b32 s{t0}, s{t0}, 8'); sadd(t0,t0,WS_FL+FL_E*128)
    I(f'v_lshlrev_b32 v4, 2, v{vL}'); I(f'v_add_u32 v197, s{t0}, v4')
    if PW:
        smul(t0,sDm,1408); I(f'v_lshlrev_b32 v4, 7, v{vL}'); I(f'v_add_u32 v5, s{t0}, v4'); vconst(7,OOB>>1); I(f'v_cmp_gt_u32 vcc, 11, v{vL}'); I(f'v_cndmask_b32 v98, v7, v5, vcc')
    if POI:
        smul(t0,sWr,16*81920); I(f's_lshl_b32 s{t1}, s{sCh}, 12'); sacc(t0,t1)
        I(f's_lshr_b32 s{t1}, s{sT}, 1'); I(f's_lshl_b32 s{t1}, s{t1}, 8'); sacc(t0,t1); sadd(t0,t0,WS_R)
        I([f's_cmp_eq_u32 s{sAct}, 1', f's_cselect_b32 s86, s{t0}, 0x30000000'])
        I(f's_lshl_b32 s{t1}, s{sRb}, 1'); sacc(t1,sWr); smul(t1,t1,81920); sadd(t1,t1,WS_O)
        smul(t2,sGrp,10); I(f's_lshr_b32 s{t0}, s{t2}, 2'); I(f's_lshl_b32 s{t0}, s{t0}, 12'); sacc(t1,t0); I(f's_and_b32 s{t0}, s{t2}, 3'); I(f's_lshl_b32 s{t0}, s{t0}, 8'); sacc(t1,t0)
        I(f's_and_b32 s{t0}, s{sTyp}, s{sWc}'); I(f's_mov_b32 s87, {4*81920}'); I(f's_mov_b32 s93, 0x30000000'); I(f's_mov_b32 s{t4}, 81920')
        I([f's_cmp_eq_u32 s{t0}, 1', f's_cselect_b32 s86, s{t1}, s86', f's_cselect_b32 s87, 256, s87', f's_cselect_b32 s93, 3072, s93', f's_cselect_b32 s92, s{t2}, 0', f's_cselect_b32 s{t4}, 1024, s{t4}'])
        I(f'v_lshlrev_b32 v255, 4, v{vN}'); I(f'v_mad_u32_u24 v255, v{vG}, s{t4}, v255')
        for i in range(4): vconst(176+i,-1)
    I(f'v_lshlrev_b32 v218, 4, v{vL}'); I(f'v_add_u32 v219, 0x1000, v218')
weave([dmaB(i) for i in range(5)]+[dma_adv(SLOT)],cap(setup0))
I(f's_lshl_b32 s{t0}, s{sW}, 10'); I(f's_add_u32 m0, s{t0}, {L_PP}'); I(f'buffer_load_dwordx4 v213, {srd(sWO)}, s{sGo} offen lds')
I('s_mov_b64 exec, 0xffff'); I(f'buffer_store_dword v212, v217, {srd(sWS)}, s{sDl} offen sc1'); I('s_mov_b64 exec, -1')
stamp(5)
if PFX:
    setupPF()
    for _ in range(LEAD-2): emit(pf())
setup1()
I(f's_cmp_eq_u32 s{sTyp}, 0'); I('s_cbranch_scc0 LsetFQ')
I(f's_lshl_b32 s{t0}, s{sWc}, 13'); smul(t1,sWr,1792); sacc(t0,t1); sadd(t0,t0,L_RED)
I(f'v_lshlrev_b32 v4, 2, v{vL}'); I(f'v_add_u32 v{vE0}, s{t0}, v4')
I(f's_lshl_b32 s{t0}, s{sGrp}, 1'); sacc(t0,sWc); I(f's_lshl_b32 s{t0}, s{t0}, 12'); sacc(t0,t1); sadd(t0,t0,WS_KVA)
I(f'v_add_u32 v{vE0+1}, s{t0}, v4')
I(f's_cmp_eq_u32 s{sWr}, 0'); I(f's_cselect_b32 s{t1}, 64, 8'); I(f'v_cmp_gt_u32 vcc, s{t1}, v{vL}')
I(f'v_cndmask_b32 v{vE0+2}, v{vE0+2}, v{vE0+1}, vcc')
I(f's_lshl_b32 s{t0}, s{sGrp}, 2'); sacc(t0,sW); I(f's_lshl_b32 s{t0}, s{t0}, 4'); sacc(t0,sRb)
I(f's_lshl_b32 s{t0}, s{t0}, 7'); sadd(t0,t0,WS_FL+FL_KV*128); I(f'v_mov_b32 v{vE0+3}, s{t0}')
I('s_branch Lsetdone')
lab('LsetFQ')
I(f's_cmp_eq_u32 s{sWc}, 0'); I('s_cbranch_scc0 Lsetdone')
I(f's_lshl_b32 s{t0}, s{sRb}, 1'); sacc(t0,sWr); smul(t0,t0,5120); smul(t1,sGrp,640); sacc(t0,t1)
I(f's_mov_b32 s{t1}, 163840'); I(f'v_lshlrev_b32 v4, 3, v{vN}'); I(f'v_mad_u32_u24 v4, v{vG}, s{t1}, v4'); I(f'v_add_u32 v{vE0}, s{t0}, v4')
I(f's_lshl_b32 s{t0}, s{sGrp}, 1'); sacc(t0,sWr); I(f's_lshl_b32 s{t0}, s{t0}, 4'); sacc(t0,sRb)
I(f's_lshl_b32 s{t0}, s{t0}, 7'); sadd(t0,t0,WS_FL+FL_Y*128); I(f'v_mov_b32 v{vE0+3}, s{t0}')
lab('Lsetdone')
def fhex(x): return hex(struct.unpack('<I',struct.pack('<f',x))[0])
GP,G1,G16,GA,GS,GT=100,106,112,118,119,120
smul(t0,sWc,160); sacc(t0,sWr); I(f'v_lshlrev_b32 v{GT+3}, 3, v{vG}'); I(f'v_add_u32 v{GT+3}, s{t0}, v{GT+3}')
smul(t1,sCt,40)
for nt in range(3):
    d_,p_=GT+4,GT+5
    if nt<2: I(f'v_add_u32 v{d_}, {16*nt}, v{vN}')
    else: I(f'v_and_b32 v{d_}, 7, v{vN}'); I(f'v_add_u32 v{d_}, 32, v{d_}')
    I(f'v_add_u32 v{d_}, s{t1}, v{d_}'); I(f'v_mul_u32_u24 v{p_}, v{d_}, v{GT+3}'); I(f'v_cvt_f32_u32 v{p_}, v{p_}'); I(f'v_cvt_f32_u32 v{d_}, v{d_}')
    I(f'v_mul_f32 v{GT}, {fhex(1/640)}, v{p_}'); I(f'v_cos_f32 v{GP+2*nt}, v{GT}'); I(f'v_sin_f32 v{GP+2*nt+1}, v{GT}')
    I(f'v_mul_f32 v{GT+1}, {fhex(1/320)}, v{d_}'); I(f'v_cos_f32 v{G1+2*nt}, v{GT+1}'); I(f'v_sin_f32 v{G1+2*nt+1}, v{GT+1}')
    I(f'v_mul_f32 v{GT+2}, {fhex(1/20)}, v{d_}'); I(f'v_cos_f32 v{G16+2*nt}, v{GT+2}'); I(f'v_sin_f32 v{G16+2*nt+1}, v{GT+2}')
I(f'v_and_b32 v{GS}, 1, v{vN}'); I(f'v_lshlrev_b32 v{GS}, 31, v{GS}'); I(f'v_xor_b32 v{GS}, 0xbf800000, v{GS}')
I(f's_cmp_eq_u32 s{sW}, 0'); I(f's_cselect_b32 s{sEx}, 0xffff, 0'); I(f's_mov_b32 s{sEx+1}, 0')
smul(t0,sWr,30720); smul(t1,sWc,15360); sacc(t0,t1); sadd(t0,t0,L_G); I(f'v_add_u32 v{GA}, s{t0}, v218')
def rot(d,p,r,dd=None):
    dd=d if dd is None else dd
    I(f'v_pk_mul_f32 {v(d,2)}, {v(p,2)}, {v(r,2)} op_sel_hi:[1,0]')
    I(f'v_pk_fma_f32 {v(dd,2)}, {v(p,2)}, {v(r,2)}, {v(d,2)} op_sel:[1,1,0] op_sel_hi:[0,1,1] neg_lo:[0,1,0]')
stamp(6)
I(f's_mov_b32 s{sCnt}, 5'); lab('Lgg')
for nt in range(3):
    T=GT+nt*12; P0=GP+2*nt
    rot(T,P0,G1+2*nt); rot(T+2,T,G1+2*nt); rot(T+4,T+2,G1+2*nt)
    I(f'v_cndmask_b32 v{T+6}, v{P0+1}, v{GS}, s[{sEx}:{sEx+1}]')
    I(f'v_cvt_pk_bf16_f32 v{T+8}, v{P0}, v{T}'); I(f'v_cvt_pk_bf16_f32 v{T+9}, v{T+2}, v{T+4}')
    I(f'v_cvt_pk_bf16_f32 v{T+10}, -v{T+6}, -v{T+1}'); I(f'v_cvt_pk_bf16_f32 v{T+11}, -v{T+3}, -v{T+5}')
    I(f'ds_write_b128 v{GA}, {v(T+8,4)} offset:{1024*nt}')
    rot(T,P0,G16+2*nt,P0)
I(f'v_add_u32 v{GA}, 0xc00, v{GA}'); I(f's_mov_b32 s{sEx}, 0')
I(f's_cmp_eq_u32 s{sCnt}, {E("A1AT",1)}'); I('s_cbranch_scc0 Lgga')
emit([dmaA(i) for i in range(4)]+[advA(SLOT)])
lab('Lgga')
I(f's_sub_u32 s{sCnt}, s{sCnt}, 1'); I(f's_cmp_lg_u32 s{sCnt}, 0'); I(f's_cbranch_scc1 Lgg')
AT1,AT2=192,224
stamp(7)
def tgen():
    TM=120; k=[0]
    def put(a,x,y):
        t=156+(k[0]&3); k[0]+=1
        I(f'v_cvt_pk_bf16_f32 v{t}, {x}, {y}'); I(f'v_accvgpr_write_b32 a{a}, v{t}'); return t
    I(f'v_lshlrev_b32 v4, 6, v{vN}'); I(f'v_add_u32 v4, s{sT}, v4'); I(f'v_cvt_f32_u32 v4, v4'); I(f'v_mul_f32 v4, 0x3a000000, v4'); I(f'v_add_f32 v5, 0.5, v4')
    I(f'v_lshlrev_b32 v6, 2, v{vG}'); I(f'v_cvt_f32_u32 v6, v6')
    for ks in range(2):
        for j in range(4):
            if 16*ks+j: I(f'v_add_f32 v7, {fhex(float(16*ks+j))}, v6')
            n2r=7 if 16*ks+j else 6
            for mh in range(2):
                c,s_=TM+4*mh,TM+4*mh+1
                I(f'v_mul_f32 v{s_}, v{4+mh}, v{n2r}'); I(f'v_cos_f32 v{c}, v{s_}'); I(f'v_sin_f32 v{s_}, v{s_}')
            for mh in range(2):
                c,s_=TM+4*mh,TM+4*mh+1
                put(AT1+(mh*2+ks)*4+j,f'v{c}',f'-v{s_}'); put(AT1+((2+mh)*2+ks)*4+j,f'v{s_}',f'v{c}')
    I(f'v_lshlrev_b32 v4, 8, v{vG}'); I(f'v_add_u32 v4, s{sT}, v4'); I(f'v_cvt_f32_u32 v4, v4'); I(f'v_mul_f32 v4, 0x3a000000, v4')
    I(f'v_cvt_f32_u32 v6, v{vN}'); I(f'v_add_f32 v7, 0x41800000, v6')
    for ks in range(2):
        for e in range(4):
            cst=0.5*ks+e/32.0
            if cst: I(f'v_add_f32 v5, {fhex(cst)}, v4')
            kr=5 if cst else 4
            for h in range(2):
                c,s_=TM+h*8+e,TM+h*8+4+e
                I(f'v_mul_f32 v{s_}, v{kr}, v{6+h}'); I(f'v_cos_f32 v{c}, v{s_}'); I(f'v_sin_f32 v{s_}, v{s_}')
        for h in range(2):
            c,s_=TM+h*8,TM+h*8+4; u0=AT2+(h*2+ks)*4; u1=AT2+((2+h)*2+ks)*4
            for p in range(2):
                t=put(u0+p,f'v{c+2*p}',f'v{c+2*p+1}'); I(f'v_accvgpr_write_b32 a{u1+2+p}, v{t}')
                put(u0+2+p,f'v{s_+2*p}',f'v{s_+2*p+1}'); put(u1+p,f'-v{s_+2*p}',f'-v{s_+2*p+1}')
I(f's_cmp_eq_u32 s{sAct}, 0'); I('s_cbranch_scc1 Lnotg')
TGL=cap(tgen); BAT=E('BAT',100)
if BAT<100:
    weave(TGL,[dmaB(i) for i in range(5)],len(TGL)*BAT//100,len(TGL)); I('s_branch Ltgd')
else: emit(TGL)
lab('Lnotg')
stamp(8)
emit([dmaB(i) for i in range(5)])
lab('Ltgd')
emit(advB(SLOT))
stamp(1)
def reads(F,ks):
    L=[]
    for mt in range(4): L.append(f'ds_read_b128 {v(F["A"]+4*mt,4)}, v{vRA+ks} offset:{2048*mt}')
    for nt in range(5):
        for h in range(2): L.append(f'ds_read_b64_tr_b16 {v(F["B"]+4*nt+2*h,2)}, v{vRB+nt} offset:{(32*ks+16*h)*160}')
    return L
def mfmas(F):
    L=[]
    for nt in range(5):
        for mt in range(4):
            c=v(ACC+(mt*5+nt)*4,4); L.append(f'{MF} {c}, {v(F["A"]+4*mt,4)}, {v(F["B"]+4*nt,4)}, {c}')
    return L
def block(M,R,X,pos):
    slots=[[] for _ in M]
    for g,x in R: slots[g].append(x)
    for g,x in zip(pos,X): slots[g].append(x)
    for m,s_ in zip(M,slots): I(m); emit(s_)
def adds(d): return [f'v_add_u32 v{r}, {d}, v{r}' for r in [vRA,vRB,vRB+1,vRB+2,vRB+3,vRB+4,vRA+1]]
I(f's_mov_b32 s{sCnt}, 0')
I(f's_waitcnt vmcnt({9+(LEAD-2 if PFX else 0)}) lgkmcnt(0)'); I('s_barrier')
I(f's_add_u32 s{sTag}, s{sTag}, 0x9e3779b9')
stamp(3)
I('ds_read_b64_tr_b16 v[4:5], v213'); I('ds_read_b64_tr_b16 v[6:7], v213 offset:512')
emit(reads(FX,0)[:12])
I(f'v_mov_b32 v212, s{sTag}')
I('s_waitcnt lgkmcnt(12)'); I(f'buffer_store_dwordx4 v[4:7], v218, {srd(sWS)}, s{sB0+3} offen sc1')
emit(reads(FX,0)[12:])
I(f's_cmp_eq_u32 s{sWc}, 0'); I('s_cbranch_scc0 Lnogr')
smul(t0,sWr,30720); sadd(t0,t0,L_G); I(f'v_add_u32 v8, s{t0}, v218'); smul(t0,85,3072)
for ks in range(10):
    I(f'v_add_u32 v9, s{t0}, v8'); sadd(t0,t0,3072); I(f's_cmp_eq_u32 s{t0}, 30720'); I(f's_cselect_b32 s{t0}, 0, s{t0}')
    if ks%2==0: I('s_waitcnt lgkmcnt(8)')
    for nt in range(3): I(f'ds_read_b128 {a_(4*(ks*3+nt),4)}, v9 offset:{nt*1024}')
lab('Lnogr')
def itertop(i=None):
    if TS and i==7: stamp(11)
    I('s_waitcnt lgkmcnt(0)')
I('s_waitcnt lgkmcnt(0)')
block(mfmas(FX),list(enumerate(reads(FY,1))),[dmaA(i) for i in range(4)]+[advA(SLOT)],[1,6,11,16,17])
I(f's_waitcnt vmcnt(5) lgkmcnt(0)'); I('s_barrier')
ad=adds(SLOT)
R2=[(0,ad[0]),(0,ad[1]),(1,ad[2]),(1,ad[3]),(2,ad[4]),(2,ad[5]),(3,ad[6])]+[(i+2,r) for i,r in enumerate(reads(FX,0))]
block(mfmas(FY),R2,[dmaB(i) for i in range(5)]+[advB(SLOT)+(pf() if PFX else [])+([f's_mov_b32 s{t2}, {OOB}', f'buffer_load_dword v99, v98, {srd(sWR)}, s{t2} offen', f'buffer_load_dword v99, v98, {srd(sWI)}, s{t2} offen'] if PW else [])]+[dmaA(i) for i in range(4)]+[advA(-3*SLOT)],[0,2,4,6,8,9,10,12,14,16,17])
I(f's_mov_b32 s{sCnt}, 1')
lab('Lmain')
itertop()
pre=[f's_add_u32 s{sCnt}, s{sCnt}, 1', f's_mov_b32 s{sDl}, {SLOT}', f's_mov_b32 s{sDm}, {SLOT}',
     f's_and_b32 s{t0}, s{sCnt}, 3', f's_cselect_b32 s{sDl}, s{sDl}, {-3*SLOT}', f's_cmp_eq_u32 s{t0}, 1', f's_cselect_b32 s{sDm}, {-3*SLOT}, s{sDm}']
eflag=[f's_cmp_eq_u32 s{sCnt}, {3 if HALF else 2}','s_cbranch_scc0 Lnoef','s_mov_b64 exec, 1',f'buffer_store_dword v212, v217, {srd(sWS)}, 0 offen sc1','s_mov_b64 exec, -1',
   f's_cmp_eq_u32 s{sTyp}, 0','s_cbranch_scc0 LefF',f's_mov_b32 s{t0}, {TB.KA_OFF}']+[f'buffer_load_dwordx4 {v(vKA+4*i,4)}, v218, {srd(sTAB)}, s{t0} offen offset:{1024*i}' for i in range(2)]+['s_branch LefT','LefF:',
   f's_cmp_eq_u32 s{sWc}, 0','s_cbranch_scc0 Lnoef',f's_mov_b32 s{t0}, {TB.D1_OFF}',f's_mov_b32 s{t1}, {TB.D1_OFF+4096}']+[f'buffer_load_dwordx4 {a_(120+4*i,4)}, v218, {srd(sTAB)}, s{t0+i//4} offen offset:{1024*(i%4)}' for i in range(8)]+['LefT:',
   f's_cmp_eq_u32 s{sWc}, 0','s_cbranch_scc0 LefU',f's_mov_b32 s{t0}, {TB.D2_OFF}',f's_mov_b32 s{t1}, {TB.D2_OFF+4096}']+[f'buffer_load_dwordx4 {a_(160+4*i,4)}, v218, {srd(sTAB)}, s{t0+i//4} offen offset:{1024*(i%4)}' for i in range(8)]+['LefU:',
   f's_cmp_eq_u32 s{sT}, 0','s_cbranch_scc0 Lnoef']+sum([([f's_mov_b32 s{t0}, {TB.T1_OFF+1024*i}'] if i%4==0 else [])+[f'buffer_load_dwordx4 {a_(AT1+4*i,4)}, v218, {srd(sTAB)}, s{t0} offen offset:{1024*(i%4)}'] for i in range(16)],[])+['Lnoef:']
ad=adds(f's{sDl}')
R2=[(0,ad[0]),(0,ad[1]),(1,ad[2]),(1,ad[3]),(2,ad[4]),(2,ad[5]),(3,ad[6])]+[(i+2,r) for i,r in enumerate(reads(FX,0))]
if HALF:
    preH=pre+[f's_mov_b32 s{t1}, {SLOT}', f's_cmp_eq_u32 s{t0}, 2', f's_cselect_b32 s{t1}, {-3*SLOT}, s{t1}']+advB(f's{t1}')
    pfl=([[f's_cmp_eq_u32 s{sCnt}, {10-LEAD}','s_cbranch_scc0 Lpfk','v_mov_b32 v98, 0','Lpfk:']+pf()] if PFX else [])
    if PW:
        pfl=[[f's_movk_i32 s{t2}, 0', f's_cmp_eq_u32 s{sCnt}, {PW+1}', f's_cselect_b32 s{t2}, s{t2}, {OOB}', f'buffer_load_dword v99, v98, {srd(sWR)}, s{t2} offen', f'buffer_load_dword v99, v98, {srd(sWI)}, s{t2} offen']]
    block(mfmas(FX),list(enumerate(reads(FY,1))),[dmaB(i) for i in range(5)]+[preH]+pfl,[1,5,9,13,16,17,18])
    I(f's_waitcnt vmcnt({11 if PFX else (13 if PW else 9)}) lgkmcnt(0)'); I('s_barrier')
    block(mfmas(FY),R2,[dmaA(i) for i in range(4)]+[advA(f's{sDm}'),eflag],[1,6,11,16,18,19])
else:
    block(mfmas(FX),list(enumerate(reads(FY,1))),[dmaA(i) for i in range(4)]+[pre],[1,6,11,16,18])
    I('s_waitcnt vmcnt(13) lgkmcnt(0)'); I('s_barrier')
    block(mfmas(FY),R2,[dmaB(i) for i in range(5)]+[dma_adv(f's{sDm}'),eflag],[1,5,9,13,17,18,19])
I(f's_cmp_lt_u32 s{sCnt}, 7'); I('s_cbranch_scc1 Lmain')
def wload(base,vp,vm,vm0,i,which):
    mh,r=i>>2,i&3; sb=(sB0,sB1)[mh]
    if which==0:
        return [f's_add_u32 s{t2}, s{sb}, {64*r*642}', f'buffer_load_short_d16_hi v{base+i}, v{vp}, {srd(sWR)}, s{t2} offen {POLW}', f'buffer_load_short_d16_hi v{base+8+i}, v{vp}, {srd(sWI)}, s{t2} offen {POLW}']
    m=vm0 if i==0 else vm
    return [f's_sub_u32 s{t2}, {(1280-64*r-(256 if i==0 else 0))*642}, s{sb}', f'buffer_load_short_d16_hi v{base+16+i}, v{m}, {srd(sWR)}, s{t2} offen {POLW}', f'buffer_load_short_d16_hi v{base+24+i}, v{m}, {srd(sWI)}, s{t2} offen {POLW}']
WL=[wload(WP,vWp,vWm,vWm0,i,w) for i in range(8) for w in range(2)]
PST=[[f'buffer_store_dwordx4 v[176:179], v255, {srd(sWS)}, s86 offen sc1', 's_add_u32 s86, s86, s87', 's_add_u32 s92, s92, 1', f's_and_b32 s{t1}, s92, 3', f's_cselect_b32 s{t1}, 0, s93', f's_add_u32 s86, s86, s{t1}'] for _ in range(10)] if POI else []
pplan={(7,0):0,(7,1):4,(8,0):3,(8,1):3,(9,0):0,(9,1):0}; pl_=0
wl=0; vm=0
W3L=['v_mov_b32 v252, 0','v_mov_b32 v253, 0',f'buffer_load_short_d16_hi v252, v254, {srd(sWR)}, 0 offen offset:640 {POLW}',f'buffer_load_short_d16_hi v253, v254, {srd(sWI)}, 0 offen offset:640 {POLW}']
FLG=[f'buffer_load_dword v198, v196, {srd(sWS)}, 0 offen sc1', f'buffer_load_dword v199, v197, {srd(sWS)}, 0 offen sc1']
plan={16:{(7,0):0,(7,1):3,(8,0):4,(8,1):4,(9,0):3,(9,1):2},8:{(7,0):0,(7,1):1,(8,0):2,(8,1):2,(9,0):2,(9,1):1},10:{(7,0):0,(7,1):2,(8,0):2,(8,1):2,(9,0):2,(9,1):2}}[WS1]
def pos(n,a=2,b=17): return [a+(b-a)*i//max(n-1,1) for i in range(n)]
for s_ in (7,8,9):
    itertop(s_)
    X=WL[wl:wl+plan[(s_,0)]]; wl+=plan[(s_,0)]
    X=PST[pl_:pl_+pplan[(s_,0)]]+X; pl_+=len(PST[pl_:pl_+pplan[(s_,0)]])
    if s_==7: X=([dmaB(i) for i in range(5)] if HALF else [])+[FLG]+X
    block(mfmas(FX),list(enumerate(reads(FY,1))),X,pos(len(X)))
    if s_==7: I(f's_waitcnt vmcnt({11+2*wl+(1 if PFX else (2 if PW else 0))}) lgkmcnt(0)')
    elif s_==8: I(f's_waitcnt vmcnt({2*wl+pl_}) lgkmcnt(0)')
    else: I('s_waitcnt lgkmcnt(0)')
    I('s_barrier')
    if s_<9:
        ad=adds(SLOT if s_==8 else -3*SLOT)
        R2=[(0,ad[0]),(0,ad[1]),(1,ad[2]),(1,ad[3]),(2,ad[4]),(2,ad[5]),(3,ad[6])]+[(i+2,r) for i,r in enumerate(reads(FX,0))]
    else: R2=[]
    X=WL[wl:wl+plan[(s_,1)]]; wl+=plan[(s_,1)]
    X=PST[pl_:pl_+pplan[(s_,1)]]+X; pl_+=len(PST[pl_:pl_+pplan[(s_,1)]])
    if s_==9: X=X+[W3L]
    block(mfmas(FY),R2,X,pos(len(X),3,18 if s_==9 else 16))
assert wl==WS1
I(f's_mov_b32 s{sAo}, 0x3fb8aa3b'); I(f's_mov_b32 s{sAo+1}, 0x358637bd')
I(f'v_cmp_ne_u32 vcc, s{sTag}, v198'); I(f'v_cmp_ne_u32 s[{t4}:{t5}], s{sTag}, v199'); I(f's_or_b64 vcc, vcc, s[{t4}:{t5}]'); I('s_cbranch_vccz Leok')
poll([196,197],198)
lab('Leok')
I('s_nop 3')
stamp(14)
def acc(mt,nt,r=0,n=1): return v(ACC+(mt*5+nt)*4+r,n)
def phi2(dst,src,tmp):
    I(f'v_pk_mul_f32 {v(tmp,2)}, {v(src,2)}, s[{sAo}:{sAo+1}] op_sel_hi:[1,0]')
    I(f'v_exp_f32 v{tmp}, v{tmp} clamp'); I(f'v_exp_f32 v{tmp+1}, v{tmp+1} clamp')
    I(f'v_max_f32 v{dst}, s{sAo+1}, v{src}'); I(f'v_max_f32 v{dst+1}, s{sAo+1}, v{src+1}')
    I(f'v_pk_add_f32 {v(dst,2)}, {v(dst,2)}, {v(tmp,2)}')
def bl(i,AB):
    ks,nt=divmod(i,5)
    L=[f'buffer_load_dwordx4 {a_(AB+4*i,4)}, v{218 if nt<4 else 219}, {srd(sWS)}, s{sGo} offen offset:{1024*(nt%4)}']
    return L+([f's_add_u32 s{sGo}, s{sGo}, 40960', f's_cmp_eq_u32 s{sGo}, s{sGe}', f's_cselect_b32 s{sGo}, s{sGb}, s{sGo}'] if nt==4 else [])
def bls(a,b,AB=0): return [bl(i,AB) for i in range(a,b)]
I(f's_cmp_eq_u32 s{sTyp}, 0'); I('s_cbranch_scc0 LepiFQ')
PK=100; VV=124; DD=148; PAIRS=TB.PAIRS
NB0=E('NB0',14); NB1=E('NB1',14)
def kvepi():
    for nt in (2,3,4):
        for mt in range(4):
            for p in range(2): I(f'v_cvt_pk_bf16_f32 v{VV+(nt-2)*8+mt*2+p}, {acc(mt,nt,2*p)}, {acc(mt,nt,2*p+1)}')
    I(f'v_cmp_gt_u32 vcc, 8, v{vN}'); vconst(4,0x3f803f80)
    I(f's_lshl_b32 s{t0}, s{sW}, 12'); sadd(t0,t0,L_RED)
    for i in range(8): I(f'v_cndmask_b32 v{VV+i}, v{VV+i}, v4, vcc')
    for i in range(8): I(f'v_add_u32 v{vKA+i}, s{t0}, v{vKA+i}')
    for nt in range(3):
        for mt in range(4):
            for p in range(2):
                b=ACC+(mt*5+nt)*4+2*p
                phi2(b,b,4+2*p); I(f'v_cvt_pk_bf16_f32 v{PK+nt*8+mt*2+p}, v{b}, v{b+1}')
        for kb in range(2):
            for i,(a,b) in enumerate(PAIRS):
                if a==nt: I(f'{MF} {v(DD+4*i,4)}, {v(PK+a*8+4*kb,4)}, {v(VV+(b-2)*8+4*kb,4)}, {"0" if kb==0 else v(DD+4*i,4)}')
        if nt>0:
            for i,(a,b) in enumerate(PAIRS):
                if a==nt-1: I(f'ds_write_b128 v{vKA+i}, {v(DD+4*i,4)}')
P=cap(kvepi)
def grp_if_b(L):
    uid[0]+=1; n=f'Lb{uid[0]}'
    return [f's_cmp_eq_u32 s{sWc}, 0', f's_cbranch_scc1 {n}']+L+[n+':']
NBE=E('NBE',0)
weave(P,[grp_if_b(bls(i,i+2)) for i in range(0,NBE,2)],0,len(P)*E('EPIF',70)//100)
for i,(a,b) in enumerate(PAIRS):
    if a==2: I(f'ds_write_b128 v{vKA+i}, {v(DD+4*i,4)}')
I('s_waitcnt lgkmcnt(0)'); I('s_barrier')
for i in range(7): I(f'ds_read2st64_b32 {v(16+2*i,2)}, v{vE0} offset0:{i} offset1:{i+16}')
for i in range(7):
    I(f's_waitcnt lgkmcnt({6-i})'); I(f'v_add_f32 v{16+2*i}, v{16+2*i}, v{17+2*i}')
    I(f'buffer_atomic_add_f32 v{16+2*i}, v{vE0+1+(i==6)}, {srd(sWS)}, 0 offen offset:{256*i} {ATP}')
stamp(15)
I('s_branch Lp2a')
lab('LepiFQ')
I(f's_cmp_eq_u32 s{sWc}, 0'); I('s_cbranch_scc0 LepiQ')
XB=100; YD=140
def xcv(nt):
    for mt in range(4):
        for p in range(2): I(f'v_cvt_pk_bf16_f32 v{XB+nt*8+mt*2+p}, {acc(mt,nt,2*p)}, {acc(mt,nt,2*p+1)}')
def ymf(nt):
    for kb in range(2):
        for jt in range(4):
            d=v(YD+(nt&1)*16+4*jt,4)
            I(f'{MF} {d}, {a_(120+(jt*2+kb)*4,4)}, {v(XB+nt*8+4*kb,4)}, {"0" if kb==0 else d}')
def yst(nt):
    for jt in range(4):
        b=YD+(nt&1)*16+4*jt; o=172+jt*2
        I([f'v_cvt_pk_bf16_f32 v{o}, v{b}, v{b+1}', f'v_cvt_pk_bf16_f32 v{o+1}, v{b+2}, v{b+3}',
           f'buffer_store_dwordx2 {v(o,2)}, v{vE0}, {srd(sWS)}, s{t0+jt} offen offset:{128*nt} sc1'])
for jt in range(4): I(f's_mov_b32 s{t0+jt}, {4*jt*163840}')
xcv(0)
weave(cap(ymf,0),cap(xcv,1))
for nt in range(5):
    if nt<4:
        F_=(cap(xcv,nt+2) if nt<3 else [])
        Y_=cap(yst,nt)
        M=cap(ymf,nt+1)
        for i,m in enumerate(M):
            I(m)
            if i<4: emit(F_[2*i:2*i+2])
            else: emit(Y_[i-4])
    else: yst(nt)
stamp(15)
I('s_waitcnt vmcnt(0)'); setflag(vE0+3,4)
stamp(16)
I(f's_cmp_eq_u32 s{sAct}, 0'); I('s_cbranch_scc1 Lp3')
emit(WL[WS1:])
T1,T2,W3,YF,EF,TM,PQ=16,48,112,144,160,80,184
vY,vF,vXW,vXR,vRS,vLF=8,9,10,11,12,13
def p2addr():
    smul(t0,sCh,32*0x334); sadd(t1,t0,31*0x334); I(f's_lshr_b32 s{t0}, s{t0}, 16'); I(f's_lshr_b32 s{t1}, s{t1}, 16')
    I(f'v_mov_b32 v4, s{t0}'); I(f'v_mov_b32 v5, s{t1}'); I(f'v_cmp_gt_u32 vcc, 32, v{vL}'); I(f'v_cndmask_b32 v4, v5, v4, vcc')
    I(f'v_and_b32 v5, 31, v{vL}'); I(f'v_lshl_add_u32 v4, v4, 5, v5'); I(f'v_lshlrev_b32 v4, 7, v4'); I(f'v_add_u32 v{vF}, {WS_FL+FL_Y*128}, v4')
    I(f's_lshr_b32 s{t0}, s{sT}, 1'); smul(t0,t0,163840); I(f's_lshl_b32 s{t1}, s{sCh}, 8'); sacc(t0,t1); I(f's_lshl_b32 s{t1}, s{sWr}, 2'); sacc(t0,t1)
    I(f'v_mul_u32_u24 v4, 20480, v{vG}'); I(f'v_lshl_add_u32 v4, v{vN}, 3, v4'); I(f'v_add_u32 v{vY}, s{t0}, v4')
    smul(t0,sWc,8704); sadd(t0,t0,L_XCH[0])
    I(f's_lshl_b32 s{t1}, s{sWr}, 5'); sacc(t1,t0)
    I(f'v_mul_u32_u24 v{vXW}, 272, v{vN}'); I(f'v_lshl_add_u32 v{vXW}, v{vG}, 6, v{vXW}'); I(f'v_add_u32 v{vXW}, s{t1}, v{vXW}')
    smul(t1,sWr,16*272); sacc(t1,t0)
    I(f'v_mul_u32_u24 v{vXR}, 272, v{vG}'); I(f'v_lshl_add_u32 v{vXR}, v{vN}, 4, v{vXR}'); I(f'v_add_u32 v{vXR}, s{t1}, v{vXR}')
    smul(t0,sWr,16*81920); I(f's_lshl_b32 s{t1}, s{sCh}, 12'); sacc(t0,t1)
    I(f's_lshr_b32 s{t1}, s{sT}, 1'); I(f's_lshl_b32 s{t1}, s{t1}, 8'); sacc(t0,t1); sadd(t0,t0,WS_R)
    I(f's_mov_b32 s{t1}, 81920'); I(f'v_lshlrev_b32 v{vRS}, 4, v{vN}'); I(f'v_mad_u32_u24 v{vRS}, v{vG}, s{t1}, v{vRS}'); I(f'v_add_u32 v{vRS}, s{t0}, v{vRS}')
    I(f's_lshl_b32 s{t0}, s{sWc}, 2'); sadd(t0,t0,L_FLG); I(f'v_mov_b32 v{vLF}, s{t0}')
    I(f's_lshl_b32 s{t0}, s{sCh}, 3'); sacc(t0,sGrp)
    I(f's_lshl_b32 s{t1}, s{sCh}, 4'); I(f's_lshr_b32 s{t2}, s{sT}, 1'); sacc(t1,t2); I(f's_sub_u32 s{t1}, s{t1}, 128')
    I([f's_cmp_eq_u32 s{sTyp}, 0', f's_cselect_b32 s{t0}, s{t0}, s{t1}', f's_cselect_b32 s{sAct}, 3, 1'])
    I(f's_and_b32 s{t1}, s{t0}, 1'); I(f's_lshl_b32 s{t1}, s{t1}, 2'); I(f's_lshr_b32 s{t0}, s{t0}, 1'); I(f's_lshl_b32 s{t0}, s{t0}, 7'); sacc(t0,t1); sadd(t0,t0,WS_FL+FL_R*128); I(f'v_mov_b32 v15, s{t0}')
lab('Lp2a')
p2addr()
I(f's_cmp_eq_u32 s{sTyp}, 0'); I('s_cbranch_scc0 Lp2b')
I('s_waitcnt vmcnt(0)')
setflag(vE0+3,4)
stamp(16)
lab('Lp2b')
I(f's_cmp_eq_u32 s{sCh}, 0'); I('s_cbranch_scc0 Lnosp1')
I(f's_lshl_b32 s{t0}, s{sW}, 9'); sadd(t0,t0,L_PP)
I(f'v_lshlrev_b32 v4, 2, v{vL}'); I(f'v_add_u32 v4, s{t0}, v4'); I(f'v_lshlrev_b32 v5, 4, v{vG}'); I(f'v_add_u32 v5, s{t0}, v5')
I(f'ds_write_b32 v4, v252'); I(f'ds_write_b32 v4, v253 offset:256')
for arr,off in ((0,0),(8,256),(16,128),(24,384)):
    for mh in range(2): I(f'ds_read_b128 {v(W3+arr+4*mh,4)}, v5 offset:{off+64*mh}')
lab('Lnosp1')
I('s_waitcnt lgkmcnt(0)')
stamp(17)
poll([vF],14)
stamp(18)
for ks in range(2):
    for i in range(4):
        I(f's_mov_b32 s{t0}, {(16*ks+i)*5120}')
        for ri in range(2): I(f'buffer_load_dword v{YF+(ri*2+ks)*4+i}, v{vY}, {srd(sWS)}, s{t0} offen offset:{128*ri} {HS}')
for ks in range(2):
    I(f's_waitcnt vmcnt({8-8*ks})')
    for mt in (0,2,1,3):
        for ri in range(2):
            d=v(EF+(mt*2+ri)*4,4)
            I(f'{MF} {d}, {a_(AT1+(mt*2+ks)*4,4)}, {v(YF+(ri*2+ks)*4,4)}, {"0" if ks==0 else d}')
stamp(19)
EF2=EF
def pk(op,d,*s,neg=None):
    t=f'v_pk_{op}_f32 {v(d,2)}, '+', '.join(v(x,2) for x in s)
    if neg: t+=f' neg_lo:{neg} neg_hi:{neg}'
    I(t)
PQ=16
Pre,Pim,Qre,Qim=PQ,PQ+8,PQ+16,PQ+24
def EFr(typ,mh,ri,p): return EF+((typ*2+mh)*2+ri)*4+2*p
for mh in range(2):
    for p in range(2):
        o=mh*4+2*p; Er,Ei,Fr,Fi=EFr(0,mh,0,p),EFr(0,mh,1,p),EFr(1,mh,0,p),EFr(1,mh,1,p)
        wpr,wpi,wmr,wmi=WP+o,WP+8+o,WP+16+o,WP+24+o
        T=TM+(p*16)
        pk('add',T,Er,Fi); pk('add',T+2,Ei,Fr,neg='[0,1]'); pk('add',T+4,Er,Fi,neg='[0,1]'); pk('add',T+6,Ei,Fr)
        pk('mul',T+8,T,wpr); pk('mul',T+10,T,wpi); pk('mul',T+12,T+4,wmr); pk('mul',T+14,T+4,wmi)
        pk('fma',T+8,T+2,wpi,T+8,neg='[1,0,0]'); pk('fma',T+10,T+2,wpr,T+10); pk('fma',T+12,T+6,wmi,T+12,neg='[1,0,0]'); pk('fma',T+14,T+6,wmr,T+14)
        pk('add',Pre+o,T+8,T+12); pk('add',Pim+o,T+10,T+14); pk('add',Qre+o,T+14,T+10,neg='[0,1]'); pk('add',Qim+o,T+8,T+12,neg='[0,1]')
I(f's_cmp_eq_u32 s{sT}, 0'); I('s_cbranch_scc0 Lnot0')
I('s_mov_b64 exec, 0xffff')
Er,Ei,Fr,Fi=EFr(0,0,0,0),EFr(0,0,1,0),EFr(1,0,0,0),EFr(1,0,1,0)
I(f'v_mul_f32 v{Pre}, v{Er}, v{WP}'); I(f'v_fma_f32 v{Pre}, -v{Ei}, v{WP+8}, v{Pre}')
I(f'v_mul_f32 v{Pim}, v{Er}, v{WP+8}'); I(f'v_fma_f32 v{Pim}, v{Ei}, v{WP}, v{Pim}')
I(f'v_mul_f32 v{Qre}, v{Fr}, v{WP+16}'); I(f'v_fma_f32 v{Qre}, -v{Fi}, v{WP+24}, v{Qre}')
I(f'v_mul_f32 v{Qim}, v{Fr}, v{WP+24}'); I(f'v_fma_f32 v{Qim}, v{Fi}, v{WP+16}, v{Qim}')
I('s_mov_b64 exec, -1')
lab('Lnot0')
I(f's_cmp_eq_u32 s{sCh}, 0'); I('s_cbranch_scc0 Lnosp2')
I(f's_mov_b32 exec_lo, 0x10001'); I(f's_mov_b32 exec_hi, 0x10001')
for mh in range(2):
    for p in range(2):
        o=mh*4+2*p; Er,Ei,Fr,Fi=EFr(0,mh,0,p),EFr(0,mh,1,p),EFr(1,mh,0,p),EFr(1,mh,1,p)
        T=TM
        pk('add',T,WP+o,WP+16+o); pk('add',T+2,WP+8+o,WP+24+o,neg='[0,1]'); pk('add',T+4,W3+o,W3+16+o); pk('add',T+6,W3+8+o,W3+24+o,neg='[0,1]')
        for q in range(4): I(f'v_pk_mul_f32 {v(T+2*q,2)}, {v(T+2*q,2)}, 0.5')
        pk('mul',Pre+o,Er,T); pk('mul',Qre+o,Fr,T); pk('mul',Pim+o,Ei,T+4); pk('mul',Qim+o,Fi,T+4)
        pk('fma',Pre+o,Fr,T+2,Pre+o); pk('fma',Qre+o,Er,T+2,Qre+o,neg='[1,0,0]'); pk('fma',Pim+o,Fi,T+6,Pim+o); pk('fma',Qim+o,Ei,T+6,Qim+o,neg='[1,0,0]')
I(f's_cmp_eq_u32 s{sT}, 0'); I('s_cbranch_scc0 Lnocorner')
I('s_mov_b64 exec, 1')
Er,Ei,Fr,Fi=EFr(0,0,0,0),EFr(0,0,1,0),EFr(1,0,0,0),EFr(1,0,1,0)
for d,x,w in ((Pre,Er,WP),(Pim,Ei,W3),(Qre,Fr,WP+16),(Qim,Fi,W3+16)):
    I(f'v_mul_f32 v{d}, v{x}, v{w}'); I(f'v_mul_f32 v{d}, 0.5, v{d}')
lab('Lnocorner')
I('s_mov_b64 exec, -1')
lab('Lnosp2')
for mh in range(2):
    for ri in range(2):
        for q,src in enumerate(((Pre,Pim)[ri],(Qre,Qim)[ri])):
            for p in range(2): I(f'v_cvt_pk_bf16_f32 v{YF+(ri*2+mh)*4+2*q+p}, v{src+mh*4+2*p}, v{src+mh*4+2*p+1}')
for ks in range(2):
    for nt in range(4):
        for ri in range(2):
            d=v(EF+(nt*2+ri)*4,4)
            I(f'{MF} {d}, {v(YF+(ri*2+ks)*4,4)}, {a_(AT2+(nt*2+ks)*4,4)}, {"0" if ks==0 else d}')
for nt in range(4):
    for ri in range(2):
        for p in range(2): I(f'v_cvt_pk_bf16_f32 v{TM+nt*4+ri*2+p}, v{EF+(nt*2+ri)*4+2*p}, v{EF+(nt*2+ri)*4+2*p+1}')
    I(f'ds_write_b128 v{vXW}, {v(TM+nt*4,4)} offset:{(nt&1)*16*272+(nt>>1)*16}')
stamp(20)
ldssync(vLF,14)
for i in range(4): I(f'ds_read_b128 {v(TM+16+4*i,4)}, v{vXR} offset:{4*272*i}')
for i in range(4):
    I(f's_mov_b32 s{t0}, {4*81920*i}'); I(f's_waitcnt lgkmcnt({3-i})')
    I(f'buffer_store_dwordx4 {v(TM+16+4*i,4)}, v{vRS}, {srd(sWS)}, s{t0} offen sc1')
vconst(10,L_FLG+8); vconst(11,1)
stamp(21)
if not POI: I('s_waitcnt vmcnt(0)')
I('s_mov_b64 exec, 1'); I('ds_add_rtn_u32 v11, v10, v11'); I('s_mov_b64 exec, -1'); I('s_waitcnt lgkmcnt(0)')
I(f'v_readfirstlane_b32 s{t0}, v11'); I(f's_cmp_eq_u32 s{t0}, s{sAct}'); I('s_cbranch_scc0 Lnopub')
setflag(15,12)
lab('Lnopub')
stamp(22)
I(f's_cmp_eq_u32 s{sWc}, 0'); I('s_cbranch_scc1 Lp3')
if E('WGW',1):
    I(f's_mov_b32 s{sTo}, 0x400000'); lab('Lwgw')
    I(f'ds_read_b32 v11, v10'); I('s_waitcnt lgkmcnt(0)'); I(f'v_cmp_ge_u32 vcc, s{sAct}, v11')
    I(f's_cbranch_vccz Lwb'); I(f's_sub_u32 s{sTo}, s{sTo}, 1'); I(f's_cbranch_scc0 Lwgw')
lab('Lwb')
NBE=E('NBE',0)
if not E('NOWB',0): emit(bls(NBE,5*KB))
I('s_branch Lp3')
lab('LepiQ')
vPW,vPR,vKR,vOS,vO5,vKW,vKP=4,5,100,104,106,108,112
I(f's_lshl_b32 s{t1}, s{sRb}, 1'); sacc(t1,sWr); smul(t2,t1,1280); smul(t3,sGrp,8*40960); sacc(t2,t3)
I(f'v_and_b32 v8, 7, v{vL}'); I(f'v_lshlrev_b32 v8, 4, v8'); I(f'v_lshrrev_b32 v9, 3, v{vL}'); I(f'v_mul_u32_u24 v10, 40960, v9'); I(f'v_add_u32 v10, v10, v8')
GX=120; GW=160
I(f'v_mov_b32 v115, v10'); I(f'v_mov_b32 v116, v8'); I(f's_mov_b32 s{sCnt}, s{t2}')
GLD=[[f'buffer_load_dwordx4 {v(GX+4*j,4)}, v115, {srd(sX)}, s{sCnt} offen offset:{128*j}', f'buffer_load_dwordx4 {v(GW+4*j,4)}, v116, {srd(sGATE)}, 0 offen offset:{128*j}'] for j in range(10)]
I(f's_lshl_b32 s{t2}, s{t1}, 8'); I(f's_lshl_b32 s{t3}, s{sGrp}, 5'); sacc(t2,t3); sadd(t2,t2,WS_G)
I(f'v_lshlrev_b32 v9, 2, v9'); I(f'v_add_u32 v9, s{t2}, v9'); vconst(10,OOB); I(f'v_cmp_eq_u32 vcc, 0, v8'); I(f'v_cndmask_b32 v114, v10, v9, vcc')
smul(t0,sWr,L_PQ[1]-L_PQ[0]); sadd(t0,t0,L_PQ[0])
I(f'v_mul_u32_u24 v{vPW}, {PQS}, v{vN}'); I(f'v_lshl_add_u32 v{vPW}, v{vG}, 3, v{vPW}'); I(f'v_add_u32 v{vPW}, s{t0}, v{vPW}')
def qepi():
    for nt in range(5):
        for mt in range(4):
            b=ACC+(mt*5+nt)*4
            phi2(b,b,8); phi2(b+2,b+2,10)
            I(f'v_cvt_pk_bf16_f32 v{b}, v{b}, v{b+1}'); I(f'v_cvt_pk_bf16_f32 v{b+1}, v{b+2}, v{b+3}')
            I(f'ds_write_b64 v{vPW}, {v(b,2)} offset:{16*nt*PQS+32*mt}')
QW=E('QW',0)
P_=cap(qepi)
weave(P_,GLD+bls(0,QW),len(P_)*E('QS',0)//100,len(P_))
stamp(15)
I(f's_waitcnt vmcnt({QW})')
stamp(16)
vconst(8,0); vconst(9,0)
for i in range(40): I(f'v_dot2_f32_bf16 v{8+(i&1)}, v{GX+i}, v{GW+i}, v{8+(i&1)}')
I('s_nop 2'); I('v_add_f32 v8, v8, v9')
for ctl in ('quad_perm:[1,0,3,2]','quad_perm:[2,3,0,1]','row_half_mirror'):
    I('s_nop 1'); I(f'v_add_f32_dpp v8, v8, v8 {ctl} row_mask:0xf bank_mask:0xf')
I('v_cvt_pk_bf16_f32 v8, v8, v8'); I('v_and_b32 v8, 0xffff0000, v8'); I(f'v_mul_f32 v8, s{sAo}, v8'); I('v_exp_f32 v8, -v8'); I('v_add_f32 v8, 1.0, v8'); I('v_rcp_f32 v8, v8')
I('v_cvt_pk_bf16_f32 v8, v8, v8'); I('v_and_b32 v8, 0xffff0000, v8')
I(f'buffer_store_dword v8, v114, {srd(sWS)}, 0 offen sc1')
I(f'v_bfe_u32 v8, v{vL}, 2, 2'); I(f'v_lshl_add_u32 v8, v{vG}, 3, v8'); I(f'v_and_b32 v9, 3, v{vL}'); I(f'v_lshlrev_b32 v9, 3, v9'); I(f'v_add_u32 v9, s{t0}, v9')
for hh in range(2):
    I(f'v_add_u32 v10, {4*hh}, v8'); I(f'v_min_u32 v10, 19, v10'); I(f'v_mul_u32_u24 v10, {PQS}, v10'); I(f'v_add_u32 v{vPR+hh}, v10, v9')
smul(t1,sWr,5504); sadd(t1,t1,L_KVI)
for i in range(4): vconst(8+i,0)
I(f'v_add_u32 v12, s{t1}, v218')
for i in range(5): I(f'ds_write_b128 v12, v[8:11] offset:{1024*i}')
I(f's_mov_b64 exec, 0xffffff'); I(f'ds_write_b128 v12, v[8:11] offset:5120'); I('s_mov_b64 exec, -1')
for i in range(4):
    I(f'v_add_u32 v8, {64*i}, v{vL}'); I(f'v_mul_u32_u24 v9, 0xc31, v8'); I(f'v_lshrrev_b32 v9, 16, v9')
    I(f'v_mul_u32_u24 v10, 21, v9'); I(f'v_sub_u32 v10, v8, v10')
    I(f'v_cmp_lt_u32 vcc, 4, v9'); I(f'v_cndmask_b32 v11, 0, 1, vcc')
    I(f'v_mad_u32_u24 v10, v11, 21, v10'); I(f'v_mul_u32_u24 v11, 5, v11'); I(f'v_sub_u32 v9, v9, v11')
    I(f'v_lshlrev_b32 v10, 6, v10'); I(f'v_lshl_add_u32 v10, v9, 3, v10'); I(f'v_add_u32 v{vKW+i}, s{t1}, v10')
vconst(11,L_PP); I(f'v_cmp_gt_u32 vcc, 18, v{vL}'); I(f'v_cndmask_b32 v{vKW+3}, v11, v{vKW+3}, vcc')
I(f'v_lshlrev_b32 v8, 4, v{vG}'); I(f'v_add_u32 v8, s{t1}, v8')
I(f'v_lshl_add_u32 v{vKR}, v{vN}, 6, v8'); I(f'v_add_u32 v{vKR+1}, {21*64}, v{vKR}')
I(f'v_and_b32 v9, 3, v{vN}'); I(f'v_lshrrev_b32 v10, 2, v{vN}')
for hb in range(2):
    I(f'v_and_b32 v11, 1, v10'); I(f'v_lshl_add_u32 v11, v11, 1, v9'); I(f'v_add_u32 v11, {21*hb+16}, v11')
    I(f'v_lshrrev_b32 v12, 1, v10'); I(f'v_cmp_eq_u32 vcc, {hb}, v12'); I(f'v_cmp_gt_u32 s[{t4}:{t5}], 2, v9'); I(f's_and_b64 vcc, vcc, s[{t4}:{t5}]')
    I(f'v_cndmask_b32 v11, 42, v11, vcc'); I(f'v_cmp_eq_u32 vcc, {2+hb}, v9'); I(f'v_cndmask_b32 v11, v11, {21*hb+20}, vcc')
    I(f'v_lshl_add_u32 v{vKR+2+hb}, v11, 6, v8')
I(f's_lshl_b32 s{t1}, s{sRb}, 1'); sacc(t1,sWr); smul(t2,t1,81920); sadd(t2,t2,WS_O)
smul(t3,sGrp,10)
for hp in range(2):
    I(f'v_add_u32 v8, {5*hp}, v{vG}'); I(f'v_add_u32 v8, s{t3}, v8')
    I(f'v_lshrrev_b32 v9, 2, v8'); I(f'v_and_b32 v8, 3, v8'); I(f'v_lshlrev_b32 v9, 12, v9'); I(f'v_lshl_add_u32 v9, v8, 8, v9')
    I(f'v_lshl_add_u32 v9, v{vN}, 4, v9'); I(f'v_add_u32 v{vOS+hp}, s{t2}, v9')
    sadd(t4,t3,5*hp+4); I(f's_lshr_b32 s{t5}, s{t4}, 2'); I(f's_lshl_b32 s{t5}, s{t5}, 12'); I(f's_and_b32 s{t4}, s{t4}, 3'); I(f's_lshl_b32 s{t4}, s{t4}, 8')
    sacc(t4,t5); sacc(t4,t2)
    I(f'v_lshlrev_b32 v9, 10, v{vG}'); I(f'v_lshl_add_u32 v9, v{vN}, 4, v9'); I(f'v_add_u32 v{vO5+hp}, s{t4}, v9')
I(f's_lshl_b32 s{t1}, s{t1}, 3'); sacc(t1,sGrp); I(f's_lshl_b32 s{t1}, s{t1}, 7'); sadd(t1,t1,WS_FL+FL_O*128); I(f'v_mov_b32 v15, s{t1}')
I(f's_lshl_b32 s{t1}, s{sGrp}, 13'); sadd(t1,t1,WS_KVA)
I(f'v_add_u32 v{vKP}, s{t1}, v218'); vconst(9,OOB); I(f'v_cmp_gt_u32 vcc, 18, v{vL}'); I(f'v_cndmask_b32 v{vKP+1}, v9, v{vKP}, vcc')
I(f's_lshl_b32 s{t1}, s{sGrp}, 6')
I(f'v_add_u32 v8, s{t1}, v{vL}'); I(f'v_lshlrev_b32 v8, 7, v8'); I(f'v_add_u32 v13, {WS_FL+FL_KV*128}, v8')
KF=16; QF=120; OD=48; O5=184; PB=48
I('s_waitcnt lgkmcnt(0)')
for u in range(8):
    rt,hp=u>>1,u&1
    for hb in range(2):
        for hh in range(2): I(f'ds_read_b64_tr_b16 {v(QF+u*8+hb*4+2*hh,2)}, v{vPR+hh} offset:{(2*hp+hb)*20*PQS+32*rt}')
    if u%2==1: I('s_waitcnt lgkmcnt(4)')
I(f's_mov_b32 s{sEx}, -1'); I(f's_mov_b32 s{sEx+1}, 0'); I(f's_movk_i32 s{t0}, 0x1000')
stamp(20)
NQ=E('NQ',5*KB)
emit(bls(QW,NQ))
stamp(17)
poll([13],9)
stamp(18)
for hp in range(2):
    for i in range(4): I(f'buffer_load_dwordx4 {v(PB+hp*16+4*i,4)}, v{vKP+(i==3)}, {srd(sWS)}, {"0" if hp==0 else "s%d"%t0} offen offset:{1024*i} sc1')
for hp in range(2):
    for i in range(4):
        b=PB+hp*16+4*i
        I(f's_waitcnt vmcnt({7-hp*4-i})')
        I(f'v_cvt_pk_bf16_f32 v{b}, v{b}, v{b+1}'); I(f'v_cvt_pk_bf16_f32 v{b+1}, v{b+2}, v{b+3}')
        I(f'ds_write_b64 v{vKW+i}, {v(b,2)} offset:{2752*hp}')
for hp in range(2):
    for j in (2,0,3,1): I(f'ds_read_b128 {v(KF+(hp*4+j)*4,4)}, v{vKR+j} offset:{2752*hp}')
stamp(19)
def omf(u):
    hp=u&1; q=QF+u*8; d=OD+(u%4)*12
    I(f'{MF} {v(d+8,4)}, {v(KF+(hp*4+2)*4,4)}, {v(q,4)}, 0')
    I(f'{MF} {v(d,4)}, {v(KF+(hp*4+0)*4,4)}, {v(q,4)}, 0')
    I(f'{MF} {v(d+8,4)}, {v(KF+(hp*4+3)*4,4)}, {v(q+4,4)}, {v(d+8,4)}')
    I(f'{MF} {v(d+4,4)}, {v(KF+(hp*4+1)*4,4)}, {v(q+4,4)}, 0')
def ofin(u):
    rt,hp=u>>1,u&1; d=OD+(u%4)*12; o=192+(u&1)*4
    I(f'v_pk_add_f32 {v(d+10,2)}, {v(d+10,2)}, s[{sAo}:{sAo+1}] op_sel:[0,1]')
    I(f'v_rcp_f32 v{d+10}, v{d+10}'); I(f'v_rcp_f32 v{d+11}, v{d+11}')
    I('s_nop 0')
    for p in range(2): I(f'v_pk_mul_f32 {v(d+2*p,2)}, {v(d+2*p,2)}, {v(d+10,2)} op_sel_hi:[1,0]')
    for p in range(2): I(f'v_pk_mul_f32 {v(d+4+2*p,2)}, {v(d+4+2*p,2)}, {v(d+10,2)} op_sel:[0,1]')
    I(f'v_cndmask_b32 v{d+10}, v{d+11}, v{d+10}, s[{sEx}:{sEx+1}]')
    for p in range(4): I(f'v_cvt_pk_bf16_f32 v{o+p}, v{d+2*p}, v{d+2*p+1}')
    I(f'buffer_store_dwordx4 {v(o,4)}, v{vOS+hp}, {srd(sWS)}, 0 offen offset:{1024*rt} sc1')
    I(f'v_pk_mul_f32 {v(d+8,2)}, {v(d+8,2)}, {v(d+10,2)} op_sel_hi:[1,0]')
    I(f'v_cvt_pk_bf16_f32 v{O5+hp*4+rt}, v{d+8}, v{d+9}')
I('s_waitcnt lgkmcnt(4)'); omf(0); I('s_waitcnt lgkmcnt(0)'); omf(1)
for u in range(8):
    if u+2<8: weave(cap(ofin,u),cap(omf,u+2))
    else: ofin(u)
for hp in range(2):
    b=O5+hp*4
    I(f'v_permlane32_swap_b32 v{b}, v{b+2}'); I(f'v_permlane32_swap_b32 v{b+1}, v{b+3}')
    I(f'v_permlane16_swap_b32 v{b}, v{b+1}'); I(f'v_permlane16_swap_b32 v{b+2}, v{b+3}')
    I(f'buffer_store_dwordx4 {v(b,4)}, v{vO5+hp}, {srd(sWS)}, 0 offen sc1')
stamp(21)
I(f'v_mov_b32 v10, s{sTag}'); I(f'v_mov_b32 v11, s{sTag}'); I('s_nop 0' if POI else 's_waitcnt vmcnt(0)'); I('s_mov_b64 exec, 1'); I(f'buffer_store_dwordx2 v[10:11], v15, {srd(sWS)}, 0 offen sc1'); I('s_mov_b64 exec, -1')
stamp(22)
emit(bls(NQ,5*KB))
lab('Lp3')
vA,vGg,vFa,vFo,vL16=4,5,8,9,6
vOA,vTW,vTR,vAR,vAW,vOW,vOW4,vOR,vOut,vSg=240,244,247,248,249,250,251,252,253,14
AD2=160
I(f'v_lshlrev_b32 v{vL16}, 4, v{vL}')
for r in range(4):
    sadd(t0,sW,r); I(f's_and_b32 s{t0}, s{t0}, 3'); I(f's_lshl_b32 s{t1}, s{t0}, 10'); I(f'v_add_u32 v{vOA+r}, s{t1}, v{vL16}')
    if r: smul(t0,t0,15360); sadd(t0,t0,L_TB+(r-1)*5120); I(f'v_add_u32 v{vTW+r-1}, s{t0}, v{vL16}')
smul(t0,sW,15360); sadd(t0,t0,L_TB); I(f'v_add_u32 v{vTR}, s{t0}, v{vL16}')
smul(t0,sW,3072); sadd(t0,t0,L_TA); I(f'v_add_u32 v{vAR}, s{t0}, v{vL16}')
smul(t0,sWr,12288); sadd(t0,t0,L_TA); I(f'v_add_u32 v{vAW}, s{t0}, v{vL16}')
I(f's_lshl_b32 s{t0}, s{sN2}, 3')
I(f'v_and_b32 v7, 7, v{vL}'); I(f'v_add_u32 v7, s{t0}, v7'); I(f'v_lshlrev_b32 v7, 7, v7'); I(f'v_add_u32 v{vFo}, {WS_FL+FL_O*128}, v7')
vconst(15,560)
for i in range(3):
    I(f'v_add_u32 v12, {64*i}, v{vL}'); div10(13,12); I(f'v_mul_u32_u24 v14, 10, v13'); I(f'v_sub_u32 v14, v12, v14')
    I(f'v_mul_u32_u24 v13, 40960, v13'); I(f'v_lshl_add_u32 v13, v14, 4, v13'); I(f'v_cmp_lt_u32 vcc, 4, v14'); I(f'v_cndmask_b32 v14, 0, v15, vcc'); I(f'v_add_u32 v{vOut+i}, v13, v14')
vconst(12,OOB); I(f'v_cmp_gt_u32 vcc, 32, v{vL}'); I(f'v_cndmask_b32 v{vOut+2}, v12, v{vOut+2}, vcc')
smul(sB0,sW,16*40960); smul(t1,sN2,1280); sacc(sB0,t1); smul(t1,sCt,80); sacc(sB0,t1)
smul(t2,sW,2560); sadd(t2,t2,L_OUT)
I(f'v_mul_u32_u24 v12, 160, v{vN}'); I(f'v_lshl_add_u32 v12, v{vG}, 3, v12'); I(f'v_add_u32 v{vOW}, s{t2}, v12'); I(f'v_add_u32 v{vOR}, s{t2}, v{vL16}')
I(f'v_lshrrev_b32 v12, 5, v{vL}'); I(f'v_lshl_add_u32 v{vOW4}, v12, 6, v{vOW}'); I(f'v_lshlrev_b32 v12, 31, v12'); I(f'v_or_b32 v{vSg}, 0x3f800000, v12')
I(f's_lshl_b32 s{sB1}, s{sN2}, 8'); I(f's_lshl_b32 s{t1}, s{sW}, 6'); sacc(sB1,t1); sadd(sB1,sB1,WS_G)
I(f'v_lshlrev_b32 v7, 2, v{vN}')
smul(sDl,sN2,81920); I(f's_lshl_b32 s{t1}, s{sRot}, 12'); I(f's_add_u32 s{sMA}, s{sDl}, s{t1}'); sadd(sMA,sMA,WS_O); sadd(sMB,sMA,KB*4096); I(f's_lshl_b32 s{t1}, s84, 12'); I(f's_add_u32 s{sA2}, s{sMA}, s{t1}')
C3=16; PA=E('PA',3)
I(f's_cmp_eq_u32 s{sWc}, 0'); I('s_cbranch_scc0 Lp3b')
emit(bls(0,5*KA,120))
I(f'v_lshrrev_b32 v{vA}, 2, v{vN}'); I(f'v_lshlrev_b32 v{vA}, 8, v{vA}'); I(f'v_lshl_add_u32 v{vA}, v{vG}, 6, v{vA}'); I(f'v_and_b32 v12, 3, v{vN}'); I(f'v_lshl_add_u32 v{vA}, v12, 4, v{vA}')
smul(t1,sWr,40960); I(f's_add_u32 s{sIs}, s{sDl}, s{t1}'); sadd(sIs,sIs,WS_R); sadd(sDm,sIs,40960); I(f's_lshl_b32 s{t1}, s85, 12'); I(f's_add_u32 s{sBstep}, s{sIs}, s{t1}')
smul(t0,sWr,40); I(f's_movk_i32 s{t1}, 95'); I(f's_cmp_eq_u32 s{sWr}, 0'); I(f's_cselect_b32 s{t1}, 39, s{t1}')
I(f'v_add_u32 v12, s{t0}, v{vL}'); I(f'v_min_u32 v12, s{t1}, v12'); I(f'v_lshlrev_b32 v12, 7, v12'); I(f'v_add_u32 v{vFa}, {WS_FL+FL_R*128}, v12')
stamp(24)
if E('PDELAY',24): I(f's_sleep {E("PDELAY",24)}')
poll2(vFa,10)
stamp(25)
RING=9; PAA=E('PAA',5)
RETRY=[]
def check(base,loads):
    if not POI: return
    uid[0]+=1; L=f'Lck{uid[0]}'
    lab(L)
    I(f'v_max3_u32 v12, v{base}, v{base+1}, v{base+2}')
    I(f'v_max3_u32 v13, v{base+3}, v{base+4}, v{base+5}')
    for i in range(5): I(f'v_max3_u32 v{12+(i&1)}, v{12+(i&1)}, v{base+6+2*i}, v{base+7+2*i}')
    I('v_max_u32 v12, v12, v13'); I('v_cmp_eq_u32 vcc, -1, v12'); I(f's_cbranch_vccnz {L}r')
    lab(L+'c')
    RETRY.append([L+'r:', f's_sub_u32 s{sTo}, s{sTo}, 1', f's_cbranch_scc1 {L}c', 's_sleep 2']+loads+['s_waitcnt vmcnt(0)', f's_branch {L}'])
def arf(i): return v(64+4*(i%(4*RING)),4)
def aload(ks): return [[f'buffer_load_dwordx4 {arf(ks*4+mt)}, v{vA}, {srd(sWS)}, s{sBstep} offen offset:{1024*mt} {HS}']+([f's_add_u32 s{sBstep}, s{sBstep}, 4096', f's_cmp_eq_u32 s{sBstep}, s{sDm}', f's_cselect_b32 s{sBstep}, s{sIs}, s{sBstep}'] if mt==3 else []) for mt in range(4)]
for ks in range(PAA): emit(aload(ks))
for ks in range(10):
    I(f's_waitcnt vmcnt({4*(min(10,ks+PAA)-ks-1)})')
    check(64+4*((ks*4)%(4*RING)),[f's_add_u32 s{t0}, s{sIs}, {4096*ks}']+[f'buffer_load_dwordx4 {arf(ks*4+mt)}, v{vA}, {srd(sWS)}, s{t0} offen offset:{1024*mt} sc1' for mt in range(4)])
    M=[f'{MF} {v(C3+(mt*3+nt)*4,4)}, {arf(ks*4+mt)}, {a_((ks*3+nt)*4,4)}, {"0" if ks==0 else v(C3+(mt*3+nt)*4,4)}' for nt in range(3) for mt in range(4)]
    weave(M,aload(ks+PAA) if ks+PAA<10 else [],0,len(M)-2)
OF=144
def oload(ks): return [[f'buffer_load_dwordx4 {v(OF+((ks%5)*4+r)*4,4)}, v{vOA+r}, {srd(sWS)}, s{sA2} offen {HS}']+([f's_add_u32 s{sA2}, s{sA2}, 4096', f's_cmp_eq_u32 s{sA2}, s{sMB}', f's_cselect_b32 s{sA2}, s{sMA}, s{sA2}'] if r==3 else []) for r in range(4)]
def bhead(NK):
    stamp(23)
    poll([vFo],10)
    stamp(12)
    pa=min(PA,NK)
    for ks in range(pa): emit(oload(ks))
    if pa==NK: I(f'buffer_load_dword v{vGg}, v7, {srd(sWS)}, s{sB1} offen sc1')
EO=E('EO',1)
if EO: bhead(KA)
TF_=208; AO=96
for nt in range(3):
    for kb in range(2):
        o=TF_+(nt*2+kb)*4
        for q in range(2):
            for p in range(2):
                b=C3+((2*kb+q)*3+nt)*4+2*p; I(f'v_cvt_pk_bf16_f32 v{o+2*q+p}, v{b}, v{b+1}')
for nt in range(3):
    for kb in range(2):
        for w_ in range(4):
            c=v(AO+(w_*3+nt)*4,4); I(f'{MF} {c}, {v(TF_+(nt*2+kb)*4,4)}, {a_(AD2+(w_*2+kb)*4,4)}, {"0" if kb==0 else c}')
for nt in range(3):
    for w_ in range(4): I(f'ds_write_b128 v{vAW}, {v(AO+(w_*3+nt)*4,4)} offset:{(w_*3+nt)*1024}')
def bmain(NK,AB,head=True):
    pa=min(PA,NK)
    gl=[f'buffer_load_dword v{vGg}, v7, {srd(sWS)}, s{sB1} offen sc1']
    if head: bhead(NK)
    g=1 if pa==NK else 0
    for ks in range(NK):
        I(f's_waitcnt vmcnt({4*(min(NK,ks+pa)-ks-1)+g})')
        check(OF+(ks%5)*16,[f's_add_u32 s{t0}, s{sMA}, {4096*ks}']+[f'buffer_load_dwordx4 {v(OF+((ks%5)*4+r)*4,4)}, v{vOA+r}, {srd(sWS)}, s{t0} offen sc1' for r in range(4)])
        last=ks==NK-1
        order=[(nt,r) for nt in range(5) for r in range(4)] if not last else [(nt,r) for r in (1,2,3,0) for nt in range(5)]
        M=[f'{MF} {v(C3+(r*5+nt)*4,4)}, {a_(AB+(ks*5+nt)*4,4)}, {v(OF+((ks%5)*4+r)*4,4)}, {"0" if ks==0 else v(C3+(r*5+nt)*4,4)}' for nt,r in order]
        X=[]
        if ks+pa<NK: X=oload(ks+pa)
        elif not g: X=[gl]; g=1
        if not last: weave(M,X,0,len(M)-2)
        else:
            emit(X)
            for i,m in enumerate(M):
                I(m)
                if i>=8: r,nt=divmod(i-8,5); I(f'ds_write_b128 v{vTW+r}, {v(C3+((r+1)*5+nt)*4,4)} offset:{1024*nt}')
bmain(KA,120,not EO)
I('s_branch Lp3t')
lab('Lp3b')
bmain(KB,0)
lab('Lp3t')
I('s_nop 7')
stamp(26)
for i in range(12,15):
    r,nt=divmod(i,5); I(f'ds_write_b128 v{vTW+r}, {v(C3+((r+1)*5+nt)*4,4)} offset:{1024*nt}')
scale=struct.unpack('<I',struct.pack('<f',2.0/(2048*640)))[0]
I('s_waitcnt vmcnt(0)')
I(f'v_sub_f32 v11, 1.0, v{vGg}'); I(f'v_cvt_pk_bf16_f32 v11, v11, v11'); I(f'v_and_b32 v11, 0xffff0000, v11'); I(f'v_mul_f32 v10, 0x{scale:x}, v{vGg}')
I('s_waitcnt lgkmcnt(0)'); I('s_barrier')
stamp(27)
AE=160; TBF=96; OA=40
for t_ in range(3):
    for p_ in range(2): I(f'ds_read_b128 {v(AE+(t_*2+p_)*4,4)}, v{vAR} offset:{p_*12288+t_*1024}')
rb_=[f'ds_read_b128 {v(TBF+(nt*3+r)*4,4)}, v{vTR} offset:{r*5120+nt*1024}' for nt in range(5) for r in range(3)]
emit(rb_[:9])
I('s_waitcnt lgkmcnt(9)')
emit(rb_[9:])
for u in range(5):
    t_=(0,1,0,1,2)[u]; e_,o_2=AE+t_*8,AE+t_*8+4; c=OA+4*u
    for p in range(2):
        if u<4: I(f'v_pk_add_f32 {v(c+2*p,2)}, {v(e_+2*p,2)}, {v(o_2+2*p,2)}'+(' neg_lo:[0,1] neg_hi:[0,1]' if u>=2 else ''))
        else: I(f'v_pk_fma_f32 {v(c+2*p,2)}, {v(o_2+2*p,2)}, v[{vSg}:{vSg+1}], {v(e_+2*p,2)} op_sel_hi:[1,0,1]')
        I(f'v_pk_mul_f32 {v(c+2*p,2)}, {v(c+2*p,2)}, v[10:11] op_sel_hi:[1,0]')
for u in range(5):
    I(f's_waitcnt lgkmcnt({12-2*u})')
    b0=TBF+u*12; c=OA+4*u; own=C3+u*4
    for p in range(2):
        I(f'v_pk_add_f32 {v(b0+2*p,2)}, {v(b0+2*p,2)}, {v(b0+4+2*p,2)}')
        I(f'v_pk_add_f32 {v(own+2*p,2)}, {v(own+2*p,2)}, {v(b0+8+2*p,2)}')
        I(f'v_pk_add_f32 {v(b0+2*p,2)}, {v(b0+2*p,2)}, {v(own+2*p,2)}')
        I(f'v_pk_fma_f32 {v(c+2*p,2)}, {v(b0+2*p,2)}, v[10:11], {v(c+2*p,2)} op_sel:[0,1,0]')
    I(f'v_cvt_pk_bf16_f32 v{c}, v{c}, v{c+1}'); I(f'v_cvt_pk_bf16_f32 v{c+1}, v{c+2}, v{c+3}')
    I(f'ds_write_b64 v{vOW if u<4 else vOW4}, {v(c,2)} offset:{(0,32,80,112,64)[u]}')
I('s_waitcnt lgkmcnt(0)')
for i in range(3): I(f'ds_read_b128 {v(64+4*i,4)}, v{vOR} offset:{1024*i}')
for i in range(3):
    I(f's_waitcnt lgkmcnt({2-i})'); I(f'buffer_store_dwordx4 {v(64+4*i,4)}, v{vOut+i}, {srd(sOUT)}, s{sB0} offen {OUTPOL}')
I(f's_or_b32 s{t0}, s2, s{sW}'); I(f's_cmp_eq_u32 s{t0}, 0'); I('s_cbranch_scc0 Lnoe')
vconst(15,WS_E); setflag(15,14)
lab('Lnoe')
if PADT:
    lab('Lpad'); I(f's_memrealtime s[{sTS}:{sTS+1}]'); I('s_waitcnt lgkmcnt(0)'); I(f's_sub_u32 s{t0}, s{sTS}, s{sTS+2}'); I(f's_cmp_lt_u32 s{t0}, {PADT}'); I('s_cbranch_scc1 Lpad')
if TS:
    stamp(28)
    I(f's_lshl_b32 s{t0}, s2, 2'); sacc(t0,sW); I(f's_lshl_b32 s{t0}, s{t0}, 8'); sadd(t0,t0,WS_TS)
    I(f'v_lshlrev_b32 v4, 2, v{vL}')
    I(f'buffer_store_dword v0, v4, {srd(sWS)}, s{t0} offen')
lab('Lend')
I('s_endpgm')
emit(RETRY)
lab('Lfin')
body_txt=A.finish()
hdr=open(os.path.join(os.path.dirname(os.path.abspath(__file__)),'..','cdna_kernels',NAME+'.s.ref')).read().split('; Override launch')[0]
o_=hdr+f'; @launch grid=(256,1,1) block=(256,1,1) lds={LDS_SZ}\n'
o_+=f'.amdgcn_target "amdgcn-amd-amdhsa--gfx950"\n.text\n.globl {K}\n.p2align 8\n.type {K},@function\n{K}:\n'+body_txt
o_+=f'''.section .rodata,"a"
.p2align 6
.amdhsa_kernel {K}
  .amdhsa_next_free_vgpr 512
  .amdhsa_next_free_sgpr 102
  .amdhsa_accum_offset 256
  .amdhsa_group_segment_fixed_size 0
  .amdhsa_kernarg_size 80
  .amdhsa_user_sgpr_count 2
  .amdhsa_user_sgpr_kernarg_segment_ptr 1
  .amdhsa_system_sgpr_workgroup_id_x 1
.end_amdhsa_kernel
'''
if DEV: o_+='.p2align 8\n.type tab_base,@object\ntab_base:\n@@INCBIN@@\n'
else: o_+=TB.emit()
o=[a for a in sys.argv[1:] if not a.startswith('--')]
open(o[0] if o else 'out.s','w').write(o_)
print('instructions:',sum(1 for l in body_txt.split('\n') if l.startswith('    ')),'nops inserted:',A.nnops,file=sys.stderr)
```

```python
import sys, os, struct
from asm import Asm
import tables as TB

NAME='gated_mix__spectral_gfnet__linear_attn_block__prompt'
DEV = '--dev' in sys.argv
TS  = '--ts' in sys.argv
E=lambda k,d: int(os.environ.get(k,str(d)))
PFX=E('PFX',0); PW=E('PW',0); POLW=os.environ.get('POLW',''); LEAD=E('LEAD',5); ROT=E('ROT',0 if PFX else 8); POLA=os.environ.get('POLA',''); POLB=os.environ.get('POLB',''); LDPOL=os.environ.get('LDPOL',''); HS=os.environ.get('HS','sc1')
CPF=E('CPF',1); KA=E('KA',1); KB=10-KA; R3=0; POI=0; TGF=E('TGF',0); PF=E('PF',0); PFW=E('PFW',3); PFPOL=os.environ.get('PFPOL',''); PFE=E('PFE',0); HALF=1; PEEL=E('PEEL',1); WS1=E('WS1',16)
WS_Y=0; WS_R=2621440; WS_O=2*2621440; WS_KVA=3*2621440; WS_WOF=WS_KVA+65536; WS_G=WS_KVA+1048576
WS_FL=WS_G+8192
FL_Y=0; FL_KV=256; FL_R=768; FL_O=960; FL_E=1216; NFL=2240
WS_E=WS_FL+NFL*128; WS_TS=WS_E+128; WS_SZ=WS_TS+256*4*256
OOB=0x7ff00000
SLOT=36880; SEG0=16384; SEG1=16384+10240+16
L_G=2*SLOT+16384; L_FLG=155648; L_PP=L_FLG+64; LDS_SZ=L_PP+4096
L_PQ=[0,10880]; PQS=136; L_RED=0; L_XCH=[24576,24576+8704]; L_KVI=43008
L_TA=57344; L_TB=81920; L_OUT=143360
sX,sSEG,sWS,sWR,sWI,sTAB,sWO,sOUT,sGATE=4,8,12,16,20,24,28,32,36
sW,sWr,sWc,sTyp,sRb,sGrp,sTag,sCnt=40,41,42,43,44,45,46,47
sAo,sBo,sBstep,sMA,sMB,sDl,sIs,sDm=48,49,50,51,52,53,54,55
sT,sCh,sN2,sCt,sAct,sTo=56,57,58,59,60,61
t0,t1,t2,t3,t4,t5=62,63,64,65,66,67
sK=68; sEx=88; sTS=90; sB0,sB1,sGo,sA2=94,95,96,98; sBS=84; sGb,sGe,sRot=99,100,101
OUTPOL=os.environ.get('OUTPOL','')
ATP=os.environ.get('ATP','')
def srd(n): return f's[{n}:{n+3}]'
def v(a,n=1): return f'v{a}' if n==1 else f'v[{a}:{a+n-1}]'
def a_(a,n=1): return f'a{a}' if n==1 else f'a[{a}:{a+n-1}]'
vL,vN,vG=1,2,3
A=Asm(); out=[A]
class Buf(list):
    def __call__(s,t): s.append(t)
def I(t): out[-1](t)
def cap(f,*a):
    b=Buf(); out.append(b); f(*a); out.pop(); return list(b)
def emit(L):
    for x in L:
        if isinstance(x,(list,tuple)): emit(x)
        else: I(x)
def weave(P,F,start=0,end=None):
    end=len(P) if end is None else end
    n=end-start; k=0
    for i,p in enumerate(P):
        emit([p])
        if start<=i<end:
            tgt=((i-start+1)*len(F))//n
            while k<tgt: emit([F[k]]); k+=1
    while k<len(F): emit([F[k]]); k+=1
def lab(n): I(n+':')
def stamp(i):
    if E('PADT',0) and E('PADK',0)==i:
        I(f's_memrealtime s[{sTS+2}:{sTS+3}]'); I('s_waitcnt lgkmcnt(0)')
    if TS:
        I(f's_memrealtime s[{sTS}:{sTS+1}]'); I('s_waitcnt lgkmcnt(0)'); I(f'v_writelane_b32 v0, s{sTS}, {i}')
        if i in (3,14,12,26):
            I(f's_memtime s[{sTS}:{sTS+1}]'); I('s_waitcnt lgkmcnt(0)'); I(f'v_writelane_b32 v0, s{sTS}, {i+32}')
def smul(d,x,c): I(f's_mul_i32 s{d}, s{x}, {c}')
def sadd(d,x,c): I(f's_add_u32 s{d}, s{x}, {c if isinstance(c,int) else "s%d"%c[0]}')
def sacc(d,x): I(f's_add_u32 s{d}, s{d}, s{x}')
def vconst(r,c): I(f'v_mov_b32 v{r}, {c}')
def div10(dst,src): I(f'v_mul_u32_u24 v{dst}, 0x199a, v{src}'); I(f'v_lshrrev_b32 v{dst}, 16, v{dst}')
uid=[0]
SLP=E('SLP',6)
def poll(voffs,tmp):
    I(f's_mov_b32 s{sTo}, 0x40000')
    for i,vo in enumerate(voffs): I(f'buffer_load_dword v{tmp+i}, v{vo}, {srd(sWS)}, 0 offen sc1')
    for i,vo in enumerate(voffs):
        uid[0]+=1; L=f'Lpoll{uid[0]}'
        I(f's_waitcnt vmcnt({len(voffs)-1-i})')
        lab(L)
        I(f'v_cmp_ne_u32 vcc, s{sTag}, v{tmp+i}')
        I(f's_cbranch_vccz {L}d')
        I('s_mov_b64 exec, vcc')
        if E('SLP1',6): I(f's_sleep {E("SLP1",6)}')
        I(f'buffer_load_dword v{tmp+i}, v{vo}, {srd(sWS)}, 0 offen sc1')
        I(f's_sub_u32 s{sTo}, s{sTo}, 1')
        I('s_waitcnt vmcnt(0)')
        I(f's_cbranch_scc0 {L}'); lab(L+'d')
        I('s_mov_b64 exec, -1')
def poll2(vo,tmp):
    uid[0]+=1; L=f'Lpoll{uid[0]}'
    I(f's_mov_b32 s{sTo}, 0x40000')
    I(f'buffer_load_dwordx2 {v(tmp,2)}, v{vo}, {srd(sWS)}, 0 offen sc1')
    I(f's_waitcnt vmcnt(0)')
    lab(L)
    I(f'v_cmp_ne_u32 vcc, s{sTag}, v{tmp}'); I(f'v_cmp_ne_u32 s[{t4}:{t5}], s{sTag}, v{tmp+1}'); I(f's_or_b64 vcc, vcc, s[{t4}:{t5}]')
    I(f's_cbranch_vccz {L}d')
    I('s_mov_b64 exec, vcc')
    if SLP: I(f's_sleep {SLP}')
    I(f'buffer_load_dwordx2 {v(tmp,2)}, v{vo}, {srd(sWS)}, 0 offen sc1')
    I(f's_sub_u32 s{sTo}, s{sTo}, 1')
    I('s_waitcnt vmcnt(0)')
    I(f's_cbranch_scc0 {L}'); lab(L+'d')
    I('s_mov_b64 exec, -1')
def ldssync(vaddr,tmp):
    I(f'v_mov_b32 v{tmp}, 1'); I('s_waitcnt lgkmcnt(0)')
    I('s_mov_b64 exec, 1'); I(f'ds_add_u32 v{vaddr}, v{tmp}'); I('s_mov_b64 exec, -1')
    uid[0]+=1; L=f'Llp{uid[0]}'
    I(f's_mov_b32 s{sTo}, 0x400000'); lab(L)
    I(f'ds_read_b32 v{tmp}, v{vaddr}'); I('s_waitcnt lgkmcnt(0)')
    I(f'v_cmp_gt_u32 vcc, 2, v{tmp}')
    I(f's_cbranch_vccz {L}d'); I(f's_sub_u32 s{sTo}, s{sTo}, 1'); I(f's_cbranch_scc0 {L}'); lab(L+'d')
def setflag(voff,tmp):
    I(f'v_mov_b32 v{tmp}, s{sTag}'); I('s_mov_b64 exec, 1')
    I(f'buffer_store_dword v{tmp}, v{voff}, {srd(sWS)}, 0 offen sc1'); I('s_mov_b64 exec, -1')
def mksrd(d,p,n):
    I(f's_mov_b32 s{d}, s{p}'); I(f's_mov_b32 s{d+1}, s{p+1}'); I(f's_mov_b32 s{d+2}, {n}'); I(f's_mov_b32 s{d+3}, 0x20000')
MF='v_mfma_f32_16x16x32_bf16'
K=f'{NAME}_kernel'
ACC=16
FX=dict(A=100,B=116); FY=dict(A=140,B=156)
vAo=180; vBo=184; vRA=189; vRB=191
vKA=200; vE0=208; vWp,vWm,vWm0=214,215,216; WP=220
lab('Lstart')
I(f's_cmp_ge_u32 s2, 256'); I('s_cbranch_scc1 Lend')
PADT=E('PADT',0)
if TS or PADT: I(f's_memrealtime s[{sTS+2}:{sTS+3}]')
I(f's_load_dwordx16 s[{sK}:{sK+15}], s[0:1], 0')
I(f's_load_dwordx4 s[{sK+16}:{sK+19}], s[0:1], 64')
I(f'v_lshrrev_b32 v4, 6, v0'); I(f'v_and_b32 v{vL}, 63, v0')
I(f'v_readfirstlane_b32 s{sW}, v4')
I(f's_getpc_b64 s[{sGATE}:{sGATE+1}]')
lab('Lpc')
I(f's_add_u32 s{sTAB}, s{sGATE}, tab_base@rel32@lo+4'); I(f's_addc_u32 s{sTAB+1}, s{sGATE+1}, tab_base@rel32@hi+12')
I(f's_mov_b32 s{sGATE+2}, Lfin-Lpc'); I(f's_mov_b32 s{sGATE+3}, 0x20000')
I(f'v_lshlrev_b32 v9, 4, v{vL}')
I(f's_lshr_b32 s{t0}, s2, 3'); I(f's_and_b32 s{t1}, s2, 7')
if CPF:
    I(f's_lshl_b32 s{t2}, s{t0}, 10'); I(f's_cmp_eq_u32 s{sW}, 3'); I(f's_cbranch_scc0 Lnocpf')
    I(f'buffer_load_dwordx4 v[96:99], v9, {srd(sGATE)}, s{t2} offen'); lab('Lnocpf')
I(f'v_and_b32 v{vN}, 15, v{vL}'); I(f'v_lshrrev_b32 v{vG}, 4, v{vL}')
I(f's_lshr_b32 s{sRb}, s{t1}, 2'); I(f's_lshl_b32 s{sRb}, s{sRb}, 3'); I(f's_lshr_b32 s{t2}, s{t0}, 2'); sacc(sRb,t2)
I(f's_and_b32 s{sWr}, s{sW}, 1'); I(f's_lshr_b32 s{sWc}, s{sW}, 1')
I(f'v_and_b32 v5, 7, v{vL}'); I(f'v_xor_b32 v5, v5, v{vG}'); I(f'v_lshrrev_b32 v4, 3, v{vL}'); I(f'v_mul_u32_u24 v4, 40960, v4')
I(f'v_lshl_add_u32 v{vAo}, v5, 4, v4'); I(f'v_xor_b32 v{vAo+1}, 64, v{vAo}')
I(f's_lshl_b32 s{t3}, s{sRb}, 1'); sacc(t3,sWc); smul(t3,t3,1280); smul(t2,sWr,32*40960); I(f's_add_u32 s{sA2}, s{t3}, s{t2}')
I(f's_bfe_u32 s{sTyp}, s{t0}, 0x10001')
I(f's_and_b32 s{sGrp}, s{t1}, 3'); I(f's_lshl_b32 s{sGrp}, s{sGrp}, 1'); I(f's_and_b32 s{t2}, s{t0}, 1'); sacc(sGrp,t2)
if E('P3MAP',1)==0:
    I(f's_lshl_b32 s{sN2}, s{t1}, 2'); I(f's_lshr_b32 s{t2}, s{t0}, 3'); sacc(sN2,t2); I(f's_and_b32 s{sCt}, s{t0}, 7')
else:
    I(f's_lshr_b32 s{sN2}, s{t1}, 1'); I(f's_lshl_b32 s{sN2}, s{sN2}, 3'); I(f's_lshr_b32 s{t2}, s{t0}, 2'); sacc(sN2,t2)
    I(f's_and_b32 s{sCt}, s{t1}, 1'); I(f's_lshl_b32 s{sCt}, s{sCt}, 2'); I(f's_and_b32 s{t2}, s{t0}, 3'); sacc(sCt,t2)
if ROT:
    a,ma,b,mb,c,d={1:(5,7,10,3,0,0),2:(0,0,0,0,10,20),3:(20,1,20,1,0,0),4:(10,3,10,3,0,0),5:(20,1,0,0,10,0),6:(0,0,20,1,10,20),7:(10,1,20,1,0,0),8:(5,7,10,3,10,20),9:(0,0,0,0,0,20),10:(0,0,0,0,20,20)}[ROT]
    I(f's_lshr_b32 s{t2}, s{t0}, 2'); I(f's_and_b32 s{t2}, s{t2}, {ma}'); smul(t2,t2,a); I(f's_and_b32 s{t3}, s{t0}, {mb}'); smul(t3,t3,b); sacc(t2,t3)
    I(f's_and_b32 s{t3}, s{t1}, 3'); smul(t3,t3,c); sacc(t2,t3); I(f's_lshr_b32 s{t3}, s{t1}, 2'); smul(t3,t3,d); sacc(t2,t3)
    I(f's_lshr_b32 s{t2}, s{t2}, 2'); smul(t3,t2,26); I(f's_lshr_b32 s{t3}, s{t3}, 8'); smul(t3,t3,10); I(f's_sub_u32 s{sIs}, s{t2}, s{t3}')
else: I(f's_mov_b32 s{sIs}, 0')
I(f's_lshl_b32 s{sMA}, s{sW}, 12')
I(f's_lshl_b32 s{sAo}, s{sIs}, 7'); sacc(sAo,sA2)
I(f's_mov_b32 s{sTAB+2}, {TB.TAB_SZ}'); I(f's_mov_b32 s{sTAB+3}, 0x20000')
I(f's_andn2_b32 s{t0}, s{sTyp}, s{sWc}')
I(f's_sub_u32 s{t1}, 1, s{sTyp}'); sadd(t2,sWc,1); I(f's_mul_i32 s{t1}, s{t1}, s{t2}'); smul(t1,t1,1280)
smul(t2,sGrp,160); sacc(t1,t2); smul(t2,sWr,32*3840); sacc(t1,t2)
smul(t2,sGrp,102400); smul(t3,sWr,5120); sacc(t2,t3)
smul(sMB,sWc,10256); sacc(sMB,t3); sadd(sMB,sMB,SEG0)
I(f's_cmp_eq_u32 s{t0}, 1')
I(f's_cselect_b32 s{t1}, s{t2}, s{t1}')
I(f's_mov_b32 s{sBstep}, {64*3840}'); I(f's_cselect_b32 s{sBstep}, 10240, s{sBstep}')
I(f's_cselect_b64 s[{t4}:{t5}], -1, 0')
I(f's_mul_i32 s{sBo}, s{sIs}, s{sBstep}')
I(f's_mov_b32 s{t2}, 3840')
def dmaA(i): return [f's_add_u32 m0, s{sMA}, {1024*i}', f's_add_u32 s{t3}, s{sAo}, {i*8*40960}', f'buffer_load_dwordx4 v{vAo+(i&1)}, {srd(sX)}, s{t3} offen {POLA} lds']
def dmaB(i): return [f's_add_u32 m0, s{sMB}, {1024*i}', 's_nop 0', f'buffer_load_dwordx4 v{vBo+i}, {srd(sSEG)}, s{sBo} offen {POLB} lds']
def advA(d):
    return [f's_add_u32 s{sIs}, s{sIs}, 1', f's_cmp_eq_u32 s{sIs}, 10', f's_cselect_b32 s{sIs}, 0, s{sIs}',
            f's_lshl_b32 s{sAo}, s{sIs}, 7', f's_add_u32 s{sAo}, s{sAo}, s{sA2}', f's_add_u32 s{sMA}, s{sMA}, {d}']
def advB(d): return [f's_mul_i32 s{sBo}, s{sIs}, s{sBstep}', f's_add_u32 s{sMB}, s{sMB}, {d}']
def dma_adv(d):
    return [f's_add_u32 s{sIs}, s{sIs}, 1', f's_cmp_eq_u32 s{sIs}, 10', f's_cselect_b32 s{sIs}, 0, s{sIs}',
            f's_lshl_b32 s{sAo}, s{sIs}, 7', f's_add_u32 s{sAo}, s{sAo}, s{sA2}', f's_mul_i32 s{sBo}, s{sIs}, s{sBstep}',
            f's_add_u32 s{sMA}, s{sMA}, {d}', f's_add_u32 s{sMB}, s{sMB}, {d}']
def boff(i):
    I(f'v_add_u32 v4, {64*i}, v{vL}'); div10(5,4)
    I(f'v_lshlrev_b32 v4, 4, v4'); I(f'v_mul_u32_u24 v6, 160, v5'); I(f'v_sub_u32 v6, v4, v6')
    I(f'v_and_b32 v7, 3, v5'); I(f'v_bfe_u32 v8, v5, 2, 2'); I(f'v_lshl_or_b32 v7, v8, 3, v7')
    I(f'v_lshrrev_b32 v8, 4, v5'); I(f'v_lshl_or_b32 v7, v8, 2, v7')
    I(f'v_mad_u32_u24 v7, v7, s{t2}, v6'); I(f'v_cndmask_b32 v7, v7, v4, s[{t4}:{t5}]'); I(f'v_add_u32 v{vBo+i}, s{t1}, v7')
boff(0)
if TS: I(f's_memrealtime s[{sTS}:{sTS+1}]')
I('s_waitcnt lgkmcnt(0)')
if TS:
    I(f'v_writelane_b32 v0, s{sTS}, 4'); stamp(2)
mksrd(sX,sK+0,2621440)
WSB=E('WSB',128)*1048576
if WSB: I(f's_add_u32 s{sK+18}, s{sK+18}, {WSB}'); I(f's_addc_u32 s{sK+19}, s{sK+19}, 0')
I(f's_cmp_eq_u32 s{t0}, 1')
I(f's_cselect_b32 s{sSEG}, s{sTAB}, s{sK+8}'); I(f's_cselect_b32 s{sSEG+1}, s{sTAB+1}, s{sK+9}')
I(f's_mov_b32 s{sSEG+2}, 2457600'); I(f's_cselect_b32 s{sSEG+2}, {TB.TF_SZ}, s{sSEG+2}'); I(f's_mov_b32 s{sSEG+3}, 0x20000')
for i in range(4): emit(dmaA(i)); boff(i+1)
if TS: I(f'v_writelane_b32 v0, s{sTS+2}, 0')
def setup0():
    mksrd(sWS,sK+18,WS_SZ); mksrd(sWO,sK+10,819200)
    I(f's_lshl_b32 s{sDm}, s2, 2'); sacc(sDm,sW)
    smul(t0,sDm,0x667); I(f's_lshr_b32 s{t0}, s{t0}, 16')
    smul(t1,t0,40); I(f's_sub_u32 s{t1}, s{sDm}, s{t1}')
    smul(t2,t1,52); I(f's_lshr_b32 s{t2}, s{t2}, 8')
    smul(sGo,t2,5); I(f's_sub_u32 s{t1}, s{t1}, s{sGo}')
    smul(t2,t2,80)
    I(f's_lshl_b32 s{t0}, s{t0}, 2')
    I(f'v_bfe_u32 v4, v{vL}, 3, 2'); I(f'v_add_u32 v4, s{t0}, v4'); I(f'v_mul_u32_u24 v5, 0x3334, v4'); I(f'v_lshrrev_b32 v5, 16, v5')
    I(f'v_lshrrev_b32 v6, 5, v{vL}'); I(f'v_add_u32 v5, v5, v6')
    I(f'v_mul_u32_u24 v5, 20, v5'); I(f'v_lshl_add_u32 v5, v4, 2, v5'); I(f'v_bfe_u32 v4, v{vL}, 1, 2'); I(f'v_add_u32 v5, v5, v4')
    I(f's_lshr_b32 s{t0}, s{t1}, 1'); smul(t0,t0,640); I(f's_and_b32 s{sGo}, s{t1}, 1'); I(f's_lshl_b32 s{sGo}, s{sGo}, 5'); sacc(t0,sGo)
    I(f's_movk_i32 s{sGo}, 640')
    I([f's_cmp_eq_u32 s{t1}, 4', f's_cselect_b32 s{t0}, 64, s{t0}', f's_cselect_b32 s{t1}, s{sGo}, 16'])
    I(f'v_and_b32 v4, 1, v{vL}'); I(f'v_mul_u32_u24 v4, s{t1}, v4'); I(f's_movk_i32 s{t1}, 1280'); I(f'v_mad_u32_u24 v213, v5, s{t1}, v4')
    sacc(t0,t2)
    I([f's_cmp_lt_u32 s2, 200', f's_cselect_b32 s{sGo}, s{t0}, {OOB}'])
    I(f's_lshl_b32 s{t0}, s{sDm}, 6'); sadd(sDl,t0,WS_KVA)
    I(f'v_lshlrev_b32 v217, 2, v{vL}'); vconst(212,0)
def setupPF():
    I(f's_lshr_b32 s{t0}, s2, 3'); I(f's_lshl_b32 s{t0}, s{t0}, 2'); sacc(t0,sW)
    I(f's_lshl_b32 s{t1}, s{t0}, 3'); I(f'v_and_b32 v4, 7, v{vL}'); I(f'v_add_u32 v4, s{t1}, v4'); I(f'v_lshrrev_b32 v5, 4, v4'); I(f'v_and_b32 v4, 15, v4')
    I(f'v_lshl_add_u32 v4, v5, 5, v4'); I(f's_bfe_u32 s{t1}, s2, 0x10002'); I(f's_lshl_b32 s{t1}, s{t1}, 4'); I(f'v_add_u32 v4, s{t1}, v4'); I(f'v_mul_u32_u24 v10, 1280, v4')
    smul(t1,t0,5); I(f'v_subrev_u32 v4, 8, v{vL}'); I(f'v_add_u32 v4, s{t1}, v4'); I(f'v_min_u32 v4, 575, v4')
    I(f'v_mul_u32_u24 v5, 0x1c72, v4'); I(f'v_lshrrev_b32 v5, 16, v5'); I(f'v_mul_u32_u24 v6, 9, v5'); I(f'v_sub_u32 v6, v4, v6')
    I(f'v_mul_u32_u24 v7, 86, v6'); I(f'v_lshrrev_b32 v7, 8, v7'); I(f'v_mul_u32_u24 v8, 3, v7'); I(f'v_sub_u32 v8, v6, v8')
    I(f'v_mul_u32_u24 v5, 3840, v5'); I(f'v_mul_u32_u24 v7, 1280, v7'); I(f'v_lshlrev_b32 v8, 7, v8'); I(f'v_add3_u32 v5, v5, v7, v8')
    I(f's_and_b32 s{t2}, s2, 3'); smul(t1,t2,320); I(f's_and_b32 s{t1}, s{t1}, {0xffffff80}'); I(f'v_add_u32 v11, s{t1}, v5')
    I(f's_lshl_b32 s{t1}, s{t0}, 1'); I(f'v_subrev_u32 v4, 13, v{vL}'); I(f'v_add_u32 v4, s{t1}, v4'); I(f'v_min_u32 v4, 159, v4')
    I(f'v_lshlrev_b32 v5, 7, v4'); vconst(6,102400-10240); I(f'v_cmp_lt_u32 vcc, 79, v4'); I(f'v_cndmask_b32 v6, 0, v6, vcc'); I(f'v_add_u32 v5, v5, v6')
    smul(t1,t2,204800); I(f'v_add_u32 v12, s{t1}, v5')
    I(f'v_cmp_gt_u32 s[{t4}:{t5}], 8, v{vL}'); I(f'v_cmp_gt_u32 vcc, 13, v{vL}')
    I(f'v_cndmask_b32 v11, v12, v11, vcc'); I(f'v_cndmask_b32 v10, v11, v10, s[{t4}:{t5}]')
    for d,(x_,w_,f_) in ((96,(sK,sK+8,sTAB)),(97,(sK+1,sK+9,sTAB+1))):
        I(f'v_mov_b32 v4, s{f_}'); I(f'v_mov_b32 v5, s{w_}'); I(f'v_mov_b32 v6, s{x_}'); I(f'v_cndmask_b32 v4, v4, v5, vcc'); I(f'v_cndmask_b32 v{d}, v4, v6, s[{t4}:{t5}]')
    vconst(4,10240); vconst(5,64*3840); I(f'v_cndmask_b32 v4, v4, v5, vcc'); vconst(5,128); I(f'v_cndmask_b32 v98, v4, v5, s[{t4}:{t5}]')
    I(f'v_lshl_add_u32 v10, v98, 1, v10')
    I([f'v_add_co_u32 v96, vcc, v96, v10', f'v_addc_co_u32 v97, vcc, 0, v97, vcc'])
def pf(adv=True):
    L=['s_mov_b64 exec, 0x7fff', f'global_load_dword v99, v[96:97], off {PFPOL}', 's_mov_b64 exec, -1']
    if adv: L+=['v_add_co_u32 v96, vcc, v96, v98', 'v_addc_co_u32 v97, vcc, 0, v97, vcc']
    return L
def setup1():
    I([f's_add_u32 s{t0}, s{sK+18}, {WS_E}', f's_addc_u32 s{t1}, s{sK+19}, 0', f's_load_dword s{sTag}, s[{t0}:{t1}], 0'])
    mksrd(sWR,sK+2,1314816); mksrd(sWI,sK+4,1314816); mksrd(sGATE,sK+12,1280); mksrd(sOUT,sK+14,2621440)
    vconst(5,0); I(f'v_lshlrev_b32 v4, 2, v{vN}'); I(f'v_add_u32 v4, {L_FLG}, v4'); I(f'ds_write_b32 v4, v5')
    I(f'v_lshrrev_b32 v4, 1, v{vN}'); I(f'v_xor_b32 v4, v4, v{vG}'); I(f'v_lshlrev_b32 v4, 4, v4')
    I(f'v_lshl_add_u32 v4, v{vN}, 7, v4'); I(f's_lshl_b32 s{t0}, s{sWr}, 13'); I(f'v_add_u32 v{vRA}, s{t0}, v4'); I(f'v_xor_b32 v{vRA+1}, 64, v{vRA}')
    I(f'v_lshrrev_b32 v4, 2, v{vL}'); I(f'v_mul_u32_u24 v4, 160, v4'); I(f'v_and_b32 v5, 3, v{vL}'); I(f'v_lshlrev_b32 v5, 3, v5'); I(f'v_add_u32 v4, v4, v5')
    smul(t0,sWc,80); smul(t1,sWc,10256)
    I([f's_cmp_eq_u32 s{sTyp}, 0', f's_cselect_b32 s{t0}, s{t0}, s{t1}', f's_cselect_b32 s{t1}, {SEG1-SEG0-80}, 0']); sadd(t0,t0,SEG0)
    I(f'v_add_u32 v{vRB}, s{t0}, v4'); I(f'v_add_u32 v{vRB+1}, 32, v{vRB}')
    I(f'v_mov_b32 v6, s{t1}'); I(f'v_cmp_lt_u32 vcc, 8, v5'); I(f'v_cndmask_b32 v6, 0, v6, vcc'); I(f'v_add3_u32 v{vRB+2}, v{vRB}, v6, 64')
    I(f'v_add_u32 v4, s{t1}, v{vRB}'); I(f'v_add_u32 v{vRB+3}, 96, v4'); I(f'v_add_u32 v{vRB+4}, 0x80, v4')
    I(f's_lshr_b32 s{t0}, s{sRb}, 1'); I(f's_lshl_b32 s{t0}, s{t0}, 3'); sacc(t0,sGrp)
    I(f's_lshr_b32 s{t1}, s{t0}, 4'); sadd(t1,t1,16)
    I(f's_and_b32 s{t2}, s{t0}, 15'); I(f's_lshl_b32 s{t2}, s{t2}, 1'); sacc(t2,sWr)
    I(f's_lshl_b32 s{t0}, s{sGrp}, 2'); sacc(t0,sW)
    I([f's_cmp_eq_u32 s{sTyp}, 0', f's_cselect_b32 s{sT}, s{t0}, s{t2}', f's_cselect_b32 s{sCh}, s{sRb}, s{t1}'])
    I(f's_or_b32 s{t0}, s{sRb}, s{sWc}'); I(f's_and_b32 s{t0}, s{t0}, s{sTyp}'); I(f's_xor_b32 s{sAct}, s{t0}, 1')
    I(f's_lshl_b32 s{t0}, s{sCh}, 6'); I([f's_cmp_ge_u32 s{sCh}, 10', f's_cselect_b32 s{t1}, 638, 0']); I(f's_sub_u32 s{t0}, s{t0}, s{t1}')
    I([f's_cmp_eq_u32 s{sAct}, 1', f's_cselect_b32 s{t0}, s{t0}, {OOB}'])
    I(f's_mov_b32 s{t1}, {256*642}'); I(f'v_lshlrev_b32 v10, 2, v{vN}'); I(f'v_add_u32 v10, s{t0}, v10')
    I(f'v_mad_u32_u24 v{vWp}, v{vG}, s{t1}, v10'); I(f'v_sub_u32 v11, 3, v{vG}'); I(f'v_mad_u32_u24 v{vWm}, v11, s{t1}, v10')
    I(f's_movk_i32 s{t2}, 1024')
    I([f's_cmp_eq_u32 s{sT}, 0', f's_cselect_b32 s{t0}, {1024*642}, 0', f's_cselect_b32 s{t2}, 32, s{t2}'])
    I(f'v_mov_b32 v11, s{t0}'); I(f'v_cmp_eq_u32 vcc, 0, v{vG}'); I(f'v_cndmask_b32 v11, 0, v11, vcc'); I(f'v_sub_u32 v11, {256*642}, v11'); I(f'v_add_u32 v{vWm0}, v{vWm}, v11')
    sacc(t2,sT); smul(sB0,sT,642); smul(sB1,t2,642)
    I(f'v_mul_u32_u24 v4, {64*642}, v{vN}'); I(f'v_mov_b32 v5, s{sB0}'); I(f'v_mov_b32 v6, s{sB1}')
    I(f'v_and_b32 v7, 16, v{vL}'); I(f'v_cmp_eq_u32 vcc, 0, v7'); I(f'v_cndmask_b32 v5, v6, v5, vcc'); I(f'v_add_u32 v4, v4, v5')
    I(f'v_sub_u32 v5, {2048*642}, v4'); vconst(6,1024*642); I(f'v_cmp_eq_u32 vcc, 0, v4'); I(f'v_cndmask_b32 v5, v5, v6, vcc')
    I(f'v_cmp_gt_u32 vcc, 32, v{vL}'); I(f'v_cndmask_b32 v4, v5, v4, vcc')
    I([f's_cmp_eq_u32 s{sCh}, 0', f's_cselect_b32 s{t0}, 0, {OOB}']); I(f'v_add_u32 v254, s{t0}, v4')
    for i in range(4): vconst(vE0+i,OOB)
    smul(t0,sWr,KA); smul(t1,sWr,KB); sadd(t1,t1,2*KA); I([f's_cmp_eq_u32 s{sWc}, 0', f's_cselect_b32 s{sRot}, s{t0}, s{t1}', f's_cselect_b32 s{t2}, {5*KA-1}, {5*KB-1}'])
    smul(t0,sCt,5120); smul(t1,sRot,40960); sacc(t0,t1); sadd(sGb,t0,WS_WOF); sadd(sGe,sGb,KB*40960)
    if R3:
        if E('P3MAP',1)==0: smul(t0,sCt,10); I(f's_lshr_b32 s85, s{t0}, 3')
        else: I(f's_and_b32 s{t0}, s{sCt}, 3'); smul(t0,t0,10); I(f's_lshr_b32 s85, s{t0}, 2')
    else: I('s_mov_b32 s85, 0')
    I(f's_min_u32 s84, s85, {KB-1}'); I([f's_cmp_eq_u32 s{sWc}, 0', f's_cselect_b32 s84, 0, s84'])
    smul(t0,84,40960); I(f's_add_u32 s{sGo}, s{sGb}, s{t0}')
    I(f'v_min_u32 v9, s{t2}, v{vL}')
    I(f'v_lshlrev_b32 v4, 3, v{vL}'); I(f's_lshl_b32 s{t0}, s{sW}, 10'); sadd(t0,t0,L_PP); I(f'v_add_u32 v213, s{t0}, v4')
    I(f's_lshl_b32 s{t0}, s{sDm}, 10'); sadd(t0,t0,WS_WOF); I([f's_cmp_lt_u32 s2, 200', f's_cselect_b32 s{sB0+3}, s{t0}, {OOB}'])
    I(f's_lshl_b32 s{t0}, s{sDm}, 2'); sadd(t0,t0,WS_FL+FL_E*128); I(f'v_mov_b32 v217, s{t0}')
    I(f'v_mov_b32 v4, v9'); I(f'v_mul_u32_u24 v5, 52, v4'); I(f'v_lshrrev_b32 v5, 8, v5'); I(f'v_mad_u32_u24 v4, v5, 35, v4')
    smul(t0,sRot,40); smul(t1,sCt,5); sacc(t0,t1); I(f'v_add_u32 v4, s{t0}, v4'); I(f'v_lshlrev_b32 v4, 2, v4'); I(f'v_add_u32 v196, {WS_FL+FL_E*128}, v4')
    I(f's_lshl_b32 s{t0}, s{sGrp}, 1'); sacc(t0,sWc); I(f's_lshl_b32 s{t0}, s{t0}, 8'); sadd(t0,t0,WS_FL+FL_E*128)
    I(f'v_lshlrev_b32 v4, 2, v{vL}'); I(f'v_add_u32 v197, s{t0}, v4')
    if PW:
        smul(t0,sDm,1408); I(f'v_lshlrev_b32 v4, 7, v{vL}'); I(f'v_add_u32 v5, s{t0}, v4'); vconst(7,OOB>>1); I(f'v_cmp_gt_u32 vcc, 11, v{vL}'); I(f'v_cndmask_b32 v98, v7, v5, vcc')
    if POI:
        smul(t0,sWr,16*81920); I(f's_lshl_b32 s{t1}, s{sCh}, 12'); sacc(t0,t1)
        I(f's_lshr_b32 s{t1}, s{sT}, 1'); I(f's_lshl_b32 s{t1}, s{t1}, 8'); sacc(t0,t1); sadd(t0,t0,WS_R)
        I([f's_cmp_eq_u32 s{sAct}, 1', f's_cselect_b32 s86, s{t0}, 0x30000000'])
        I(f's_lshl_b32 s{t1}, s{sRb}, 1'); sacc(t1,sWr); smul(t1,t1,81920); sadd(t1,t1,WS_O)
        smul(t2,sGrp,10); I(f's_lshr_b32 s{t0}, s{t2}, 2'); I(f's_lshl_b32 s{t0}, s{t0}, 12'); sacc(t1,t0); I(f's_and_b32 s{t0}, s{t2}, 3'); I(f's_lshl_b32 s{t0}, s{t0}, 8'); sacc(t1,t0)
        I(f's_and_b32 s{t0}, s{sTyp}, s{sWc}'); I(f's_mov_b32 s87, {4*81920}'); I(f's_mov_b32 s93, 0x30000000'); I(f's_mov_b32 s{t4}, 81920')
        I([f's_cmp_eq_u32 s{t0}, 1', f's_cselect_b32 s86, s{t1}, s86', f's_cselect_b32 s87, 256, s87', f's_cselect_b32 s93, 3072, s93', f's_cselect_b32 s92, s{t2}, 0', f's_cselect_b32 s{t4}, 1024, s{t4}'])
        I(f'v_lshlrev_b32 v255, 4, v{vN}'); I(f'v_mad_u32_u24 v255, v{vG}, s{t4}, v255')
        for i in range(4): vconst(176+i,-1)
    I(f'v_lshlrev_b32 v218, 4, v{vL}'); I(f'v_add_u32 v219, 0x1000, v218')
weave([dmaB(i) for i in range(5)]+[dma_adv(SLOT)],cap(setup0))
I(f's_lshl_b32 s{t0}, s{sW}, 10'); I(f's_add_u32 m0, s{t0}, {L_PP}'); I(f'buffer_load_dwordx4 v213, {srd(sWO)}, s{sGo} offen lds')
I('s_mov_b64 exec, 0xffff'); I(f'buffer_store_dword v212, v217, {srd(sWS)}, s{sDl} offen sc1'); I('s_mov_b64 exec, -1')
stamp(5)
if PFX:
    setupPF()
    for _ in range(LEAD-2): emit(pf())
setup1()
I(f's_cmp_eq_u32 s{sTyp}, 0'); I('s_cbranch_scc0 LsetFQ')
I(f's_lshl_b32 s{t0}, s{sWc}, 13'); smul(t1,sWr,1792); sacc(t0,t1); sadd(t0,t0,L_RED)
I(f'v_lshlrev_b32 v4, 2, v{vL}'); I(f'v_add_u32 v{vE0}, s{t0}, v4')
I(f's_lshl_b32 s{t0}, s{sGrp}, 1'); sacc(t0,sWc); I(f's_lshl_b32 s{t0}, s{t0}, 12'); sacc(t0,t1); sadd(t0,t0,WS_KVA)
I(f'v_add_u32 v{vE0+1}, s{t0}, v4')
I(f's_cmp_eq_u32 s{sWr}, 0'); I(f's_cselect_b32 s{t1}, 64, 8'); I(f'v_cmp_gt_u32 vcc, s{t1}, v{vL}')
I(f'v_cndmask_b32 v{vE0+2}, v{vE0+2}, v{vE0+1}, vcc')
I(f's_lshl_b32 s{t0}, s{sGrp}, 2'); sacc(t0,sW); I(f's_lshl_b32 s{t0}, s{t0}, 4'); sacc(t0,sRb)
I(f's_lshl_b32 s{t0}, s{t0}, 7'); sadd(t0,t0,WS_FL+FL_KV*128); I(f'v_mov_b32 v{vE0+3}, s{t0}')
I('s_branch Lsetdone')
lab('LsetFQ')
I(f's_cmp_eq_u32 s{sWc}, 0'); I('s_cbranch_scc0 Lsetdone')
I(f's_lshl_b32 s{t0}, s{sRb}, 1'); sacc(t0,sWr); smul(t0,t0,5120); smul(t1,sGrp,640); sacc(t0,t1)
I(f's_mov_b32 s{t1}, 163840'); I(f'v_lshlrev_b32 v4, 3, v{vN}'); I(f'v_mad_u32_u24 v4, v{vG}, s{t1}, v4'); I(f'v_add_u32 v{vE0}, s{t0}, v4')
I(f's_lshl_b32 s{t0}, s{sGrp}, 1'); sacc(t0,sWr); I(f's_lshl_b32 s{t0}, s{t0}, 4'); sacc(t0,sRb)
I(f's_lshl_b32 s{t0}, s{t0}, 7'); sadd(t0,t0,WS_FL+FL_Y*128); I(f'v_mov_b32 v{vE0+3}, s{t0}')
lab('Lsetdone')
def fhex(x): return hex(struct.unpack('<I',struct.pack('<f',x))[0])
GP,G1,G16,GA,GS,GT=100,106,112,118,119,120
smul(t0,sWc,160); sacc(t0,sWr); I(f'v_lshlrev_b32 v{GT+3}, 3, v{vG}'); I(f'v_add_u32 v{GT+3}, s{t0}, v{GT+3}')
smul(t1,sCt,40)
for nt in range(3):
    d_,p_=GT+4,GT+5
    if nt<2: I(f'v_add_u32 v{d_}, {16*nt}, v{vN}')
    else: I(f'v_and_b32 v{d_}, 7, v{vN}'); I(f'v_add_u32 v{d_}, 32, v{d_}')
    I(f'v_add_u32 v{d_}, s{t1}, v{d_}'); I(f'v_mul_u32_u24 v{p_}, v{d_}, v{GT+3}'); I(f'v_cvt_f32_u32 v{p_}, v{p_}'); I(f'v_cvt_f32_u32 v{d_}, v{d_}')
    I(f'v_mul_f32 v{GT}, {fhex(1/640)}, v{p_}'); I(f'v_cos_f32 v{GP+2*nt}, v{GT}'); I(f'v_sin_f32 v{GP+2*nt+1}, v{GT}')
    I(f'v_mul_f32 v{GT+1}, {fhex(1/320)}, v{d_}'); I(f'v_cos_f32 v{G1+2*nt}, v{GT+1}'); I(f'v_sin_f32 v{G1+2*nt+1}, v{GT+1}')
    I(f'v_mul_f32 v{GT+2}, {fhex(1/20)}, v{d_}'); I(f'v_cos_f32 v{G16+2*nt}, v{GT+2}'); I(f'v_sin_f32 v{G16+2*nt+1}, v{GT+2}')
I(f'v_and_b32 v{GS}, 1, v{vN}'); I(f'v_lshlrev_b32 v{GS}, 31, v{GS}'); I(f'v_xor_b32 v{GS}, 0xbf800000, v{GS}')
I(f's_cmp_eq_u32 s{sW}, 0'); I(f's_cselect_b32 s{sEx}, 0xffff, 0'); I(f's_mov_b32 s{sEx+1}, 0')
smul(t0,sWr,30720); smul(t1,sWc,15360); sacc(t0,t1); sadd(t0,t0,L_G); I(f'v_add_u32 v{GA}, s{t0}, v218')
def rot(d,p,r,dd=None):
    dd=d if dd is None else dd
    I(f'v_pk_mul_f32 {v(d,2)}, {v(p,2)}, {v(r,2)} op_sel_hi:[1,0]')
    I(f'v_pk_fma_f32 {v(dd,2)}, {v(p,2)}, {v(r,2)}, {v(d,2)} op_sel:[1,1,0] op_sel_hi:[0,1,1] neg_lo:[0,1,0]')
stamp(6)
I(f's_mov_b32 s{sCnt}, 5'); lab('Lgg')
for nt in range(3):
    T=GT+nt*12; P0=GP+2*nt
    rot(T,P0,G1+2*nt); rot(T+2,T,G1+2*nt); rot(T+4,T+2,G1+2*nt)
    I(f'v_cndmask_b32 v{T+6}, v{P0+1}, v{GS}, s[{sEx}:{sEx+1}]')
    I(f'v_cvt_pk_bf16_f32 v{T+8}, v{P0}, v{T}'); I(f'v_cvt_pk_bf16_f32 v{T+9}, v{T+2}, v{T+4}')
    I(f'v_cvt_pk_bf16_f32 v{T+10}, -v{T+6}, -v{T+1}'); I(f'v_cvt_pk_bf16_f32 v{T+11}, -v{T+3}, -v{T+5}')
    I(f'ds_write_b128 v{GA}, {v(T+8,4)} offset:{1024*nt}')
    rot(T,P0,G16+2*nt,P0)
I(f'v_add_u32 v{GA}, 0xc00, v{GA}'); I(f's_mov_b32 s{sEx}, 0')
I(f's_cmp_eq_u32 s{sCnt}, {E("A1AT",1)}'); I('s_cbranch_scc0 Lgga')
emit([dmaA(i) for i in range(4)]+[advA(SLOT)])
lab('Lgga')
I(f's_sub_u32 s{sCnt}, s{sCnt}, 1'); I(f's_cmp_lg_u32 s{sCnt}, 0'); I(f's_cbranch_scc1 Lgg')
AT1,AT2=192,224
stamp(7)
def tgen():
    TM=120; k=[0]
    def put(a,x,y):
        t=156+(k[0]&3); k[0]+=1
        I(f'v_cvt_pk_bf16_f32 v{t}, {x}, {y}'); I(f'v_accvgpr_write_b32 a{a}, v{t}'); return t
    I(f'v_lshlrev_b32 v4, 6, v{vN}'); I(f'v_add_u32 v4, s{sT}, v4'); I(f'v_cvt_f32_u32 v4, v4'); I(f'v_mul_f32 v4, 0x3a000000, v4'); I(f'v_add_f32 v5, 0.5, v4')
    I(f'v_lshlrev_b32 v6, 2, v{vG}'); I(f'v_cvt_f32_u32 v6, v6')
    for ks in range(2):
        for j in range(4):
            if 16*ks+j: I(f'v_add_f32 v7, {fhex(float(16*ks+j))}, v6')
            n2r=7 if 16*ks+j else 6
            for mh in range(2):
                c,s_=TM+4*mh,TM+4*mh+1
                I(f'v_mul_f32 v{s_}, v{4+mh}, v{n2r}'); I(f'v_cos_f32 v{c}, v{s_}'); I(f'v_sin_f32 v{s_}, v{s_}')
            for mh in range(2):
                c,s_=TM+4*mh,TM+4*mh+1
                put(AT1+(mh*2+ks)*4+j,f'v{c}',f'-v{s_}'); put(AT1+((2+mh)*2+ks)*4+j,f'v{s_}',f'v{c}')
    I(f'v_lshlrev_b32 v4, 8, v{vG}'); I(f'v_add_u32 v4, s{sT}, v4'); I(f'v_cvt_f32_u32 v4, v4'); I(f'v_mul_f32 v4, 0x3a000000, v4')
    I(f'v_cvt_f32_u32 v6, v{vN}'); I(f'v_add_f32 v7, 0x41800000, v6')
    for ks in range(2):
        for e in range(4):
            cst=0.5*ks+e/32.0
            if cst: I(f'v_add_f32 v5, {fhex(cst)}, v4')
            kr=5 if cst else 4
            for h in range(2):
                c,s_=TM+h*8+e,TM+h*8+4+e
                I(f'v_mul_f32 v{s_}, v{kr}, v{6+h}'); I(f'v_cos_f32 v{c}, v{s_}'); I(f'v_sin_f32 v{s_}, v{s_}')
        for h in range(2):
            c,s_=TM+h*8,TM+h*8+4; u0=AT2+(h*2+ks)*4; u1=AT2+((2+h)*2+ks)*4
            for p in range(2):
                t=put(u0+p,f'v{c+2*p}',f'v{c+2*p+1}'); I(f'v_accvgpr_write_b32 a{u1+2+p}, v{t}')
                put(u0+2+p,f'v{s_+2*p}',f'v{s_+2*p+1}'); put(u1+p,f'-v{s_+2*p}',f'-v{s_+2*p+1}')
TGL=cap(tgen)
if TGF:
    I(f's_cmp_eq_u32 s{sAct}, 0'); I('s_cbranch_scc1 Lnotg'); emit(TGL)
lab('Lnotg')
stamp(8)
emit([dmaB(i) for i in range(5)])
lab('Ltgd')
emit(advB(SLOT))
stamp(1)
def reads(F,ks):
    L=[]
    for mt in range(4): L.append(f'ds_read_b128 {v(F["A"]+4*mt,4)}, v{vRA+ks} offset:{2048*mt}')
    for nt in range(5):
        for h in range(2): L.append(f'ds_read_b64_tr_b16 {v(F["B"]+4*nt+2*h,2)}, v{vRB+nt} offset:{(32*ks+16*h)*160}')
    return L
def mfmas(F,z=False):
    L=[]
    for nt in range(5):
        for mt in range(4):
            c=v(ACC+(mt*5+nt)*4,4); L.append(f'{MF} {c}, {v(F["A"]+4*mt,4)}, {v(F["B"]+4*nt,4)}, {"0" if z else c}')
    return L
def block(M,R,X,pos):
    slots=[[] for _ in M]
    for g,x in R: slots[g].append(x)
    for g,x in zip(pos,X): slots[g].append(x)
    for m,s_ in zip(M,slots): I(m); emit(s_)
def adds(d): return [f'v_add_u32 v{r}, {d}, v{r}' for r in [vRA,vRB,vRB+1,vRB+2,vRB+3,vRB+4,vRA+1]]
I(f's_mov_b32 s{sCnt}, 0')
I(f's_waitcnt vmcnt({9+(LEAD-2 if PFX else 0)}) lgkmcnt(0)'); I('s_barrier')
I(f's_add_u32 s{sTag}, s{sTag}, 0x9e3779b9')
stamp(3)
I('ds_read_b64_tr_b16 v[4:5], v213'); I('ds_read_b64_tr_b16 v[6:7], v213 offset:512')
emit(reads(FX,0)[:12])
I(f'v_mov_b32 v212, s{sTag}')
I('s_waitcnt lgkmcnt(12)'); I(f'buffer_store_dwordx4 v[4:7], v218, {srd(sWS)}, s{sB0+3} offen sc1')
emit(reads(FX,0)[12:])
I(f's_cmp_eq_u32 s{sWc}, 0'); I('s_cbranch_scc0 Lnogr')
smul(t0,sWr,30720); sadd(t0,t0,L_G); I(f'v_add_u32 v8, s{t0}, v218'); smul(t0,85,3072)
for ks in range(10):
    I(f'v_add_u32 v9, s{t0}, v8'); sadd(t0,t0,3072); I(f's_cmp_eq_u32 s{t0}, 30720'); I(f's_cselect_b32 s{t0}, 0, s{t0}')
    if ks%2==0: I('s_waitcnt lgkmcnt(8)')
    for nt in range(3): I(f'ds_read_b128 {a_(4*(ks*3+nt),4)}, v9 offset:{nt*1024}')
lab('Lnogr')
def itertop(i=None):
    if TS and i==7: stamp(11)
    I('s_waitcnt lgkmcnt(0)')
I('s_waitcnt lgkmcnt(0)')
block(mfmas(FX,True),list(enumerate(reads(FY,1)))+[(i*20//32,f'v_mov_b32 v{WP+i}, 0') for i in range(32)],[dmaA(i) for i in range(4)]+[advA(SLOT)],[1,6,11,16,17])
I(f's_waitcnt vmcnt(5) lgkmcnt(0)'); I('s_barrier')
ad=adds(SLOT)
R2=[(0,ad[0]),(0,ad[1]),(1,ad[2]),(1,ad[3]),(2,ad[4]),(2,ad[5]),(3,ad[6])]+[(i+2,r) for i,r in enumerate(reads(FX,0))]
block(mfmas(FY),R2,[dmaB(i) for i in range(5)]+[advB(SLOT)+(pf() if PFX else [])+([f's_mov_b32 s{t2}, {OOB}', f'buffer_load_dword v99, v98, {srd(sWR)}, s{t2} offen', f'buffer_load_dword v99, v98, {srd(sWI)}, s{t2} offen'] if PW else [])]+[dmaA(i) for i in range(4)]+[advA(-3*SLOT)],[0,2,4,6,8,9,10,12,14,16,17])
I(f's_mov_b32 s{sCnt}, 1')
lab('Lmain')
itertop()
pre=[f's_add_u32 s{sCnt}, s{sCnt}, 1', f's_mov_b32 s{sDl}, {SLOT}', f's_mov_b32 s{sDm}, {SLOT}',
     f's_and_b32 s{t0}, s{sCnt}, 3', f's_cselect_b32 s{sDl}, s{sDl}, {-3*SLOT}', f's_cmp_eq_u32 s{t0}, 1', f's_cselect_b32 s{sDm}, {-3*SLOT}, s{sDm}']
eflag=[f's_cmp_eq_u32 s{sCnt}, {3 if HALF else 2}','s_cbranch_scc0 Lnoef','s_mov_b64 exec, 1',f'buffer_store_dword v212, v217, {srd(sWS)}, 0 offen sc1','s_mov_b64 exec, -1',
   f's_cmp_eq_u32 s{sTyp}, 0','s_cbranch_scc0 LefF',f's_mov_b32 s{t0}, {TB.KA_OFF}']+[f'buffer_load_dwordx4 {v(vKA+4*i,4)}, v218, {srd(sTAB)}, s{t0} offen offset:{1024*i}' for i in range(2)]+['s_branch LefT','LefF:',
   f's_cmp_eq_u32 s{sWc}, 0','s_cbranch_scc0 Lnoef',f's_mov_b32 s{t0}, {TB.D1_OFF}',f's_mov_b32 s{t1}, {TB.D1_OFF+4096}']+[f'buffer_load_dwordx4 {a_(120+4*i,4)}, v218, {srd(sTAB)}, s{t0+i//4} offen offset:{1024*(i%4)}' for i in range(8)]+['LefT:',
   f's_cmp_eq_u32 s{sWc}, 0','s_cbranch_scc0 LefU',f's_mov_b32 s{t0}, {TB.D2_OFF}',f's_mov_b32 s{t1}, {TB.D2_OFF+4096}']+[f'buffer_load_dwordx4 {a_(160+4*i,4)}, v218, {srd(sTAB)}, s{t0+i//4} offen offset:{1024*(i%4)}' for i in range(8)]+['LefU:',
   f's_cmp_eq_u32 s{sT}, 0','s_cbranch_scc0 Lnoef']+sum([([f's_mov_b32 s{t0}, {TB.T1_OFF+1024*i}'] if i%4==0 else [])+[f'buffer_load_dwordx4 {a_(AT1+4*i,4)}, v218, {srd(sTAB)}, s{t0} offen offset:{1024*(i%4)}'] for i in range(16)],[])+['Lnoef:']
ad=adds(f's{sDl}')
R2=[(0,ad[0]),(0,ad[1]),(1,ad[2]),(1,ad[3]),(2,ad[4]),(2,ad[5]),(3,ad[6])]+[(i+2,r) for i,r in enumerate(reads(FX,0))]
if HALF:
    preH=pre+[f's_mov_b32 s{t1}, {SLOT}', f's_cmp_eq_u32 s{t0}, 2', f's_cselect_b32 s{t1}, {-3*SLOT}, s{t1}']+advB(f's{t1}')
    pfl=([[f's_cmp_eq_u32 s{sCnt}, {10-LEAD}','s_cbranch_scc0 Lpfk','v_mov_b32 v98, 0','Lpfk:']+pf()] if PFX else [])
    if PW:
        pfl=[[f's_movk_i32 s{t2}, 0', f's_cmp_eq_u32 s{sCnt}, {PW+1}', f's_cselect_b32 s{t2}, s{t2}, {OOB}', f'buffer_load_dword v99, v98, {srd(sWR)}, s{t2} offen', f'buffer_load_dword v99, v98, {srd(sWI)}, s{t2} offen']]
    block(mfmas(FX),list(enumerate(reads(FY,1))),[dmaB(i) for i in range(5)]+[preH]+pfl,[1,5,9,13,16,17,18])
    I(f's_waitcnt vmcnt({11 if PFX else (13 if PW else 9)}) lgkmcnt(0)'); I('s_barrier')
    block(mfmas(FY),R2,[dmaA(i) for i in range(4)]+[advA(f's{sDm}'),eflag],[1,6,11,16,18,19])
else:
    block(mfmas(FX),list(enumerate(reads(FY,1))),[dmaA(i) for i in range(4)]+[pre],[1,6,11,16,18])
    I('s_waitcnt vmcnt(13) lgkmcnt(0)'); I('s_barrier')
    block(mfmas(FY),R2,[dmaB(i) for i in range(5)]+[dma_adv(f's{sDm}'),eflag],[1,5,9,13,17,18,19])
I(f's_cmp_lt_u32 s{sCnt}, 7'); I('s_cbranch_scc1 Lmain')
def wload(base,vp,vm,vm0,i,which):
    mh,r=i>>2,i&3; sb=(sB0,sB1)[mh]
    if which==0:
        return [f's_add_u32 s{t2}, s{sb}, {64*r*642}', f'buffer_load_short_d16_hi v{base+i}, v{vp}, {srd(sWR)}, s{t2} offen {POLW}', f'buffer_load_short_d16_hi v{base+8+i}, v{vp}, {srd(sWI)}, s{t2} offen {POLW}']
    m=vm0 if i==0 else vm
    return [f's_sub_u32 s{t2}, {(1280-64*r-(256 if i==0 else 0))*642}, s{sb}', f'buffer_load_short_d16_hi v{base+16+i}, v{m}, {srd(sWR)}, s{t2} offen {POLW}', f'buffer_load_short_d16_hi v{base+24+i}, v{m}, {srd(sWI)}, s{t2} offen {POLW}']
WL=[wload(WP,vWp,vWm,vWm0,i,w) for i in range(8) for w in range(2)]
PST=[[f'buffer_store_dwordx4 v[176:179], v255, {srd(sWS)}, s86 offen sc1', 's_add_u32 s86, s86, s87', 's_add_u32 s92, s92, 1', f's_and_b32 s{t1}, s92, 3', f's_cselect_b32 s{t1}, 0, s93', f's_add_u32 s86, s86, s{t1}'] for _ in range(10)] if POI else []
pplan={(7,0):0,(7,1):4,(8,0):3,(8,1):3,(9,0):0,(9,1):0}; pl_=0
wl=0; vm=0
W3L=['v_mov_b32 v252, 0','v_mov_b32 v253, 0',f'buffer_load_short_d16_hi v252, v254, {srd(sWR)}, 0 offen offset:640 {POLW}',f'buffer_load_short_d16_hi v253, v254, {srd(sWI)}, 0 offen offset:640 {POLW}']
FLG=[f'buffer_load_dword v198, v196, {srd(sWS)}, 0 offen sc1', f'buffer_load_dword v199, v197, {srd(sWS)}, 0 offen sc1']
plan={16:{(7,0):0,(7,1):3,(8,0):4,(8,1):4,(9,0):3,(9,1):2},8:{(7,0):0,(7,1):1,(8,0):2,(8,1):2,(9,0):2,(9,1):1},10:{(7,0):0,(7,1):2,(8,0):2,(8,1):2,(9,0):2,(9,1):2}}[WS1]
def pos(n,a=2,b=17): return [a+(b-a)*i//max(n-1,1) for i in range(n)]
for s_ in (7,8,9):
    itertop(s_)
    X=WL[wl:wl+plan[(s_,0)]]; wl+=plan[(s_,0)]
    X=PST[pl_:pl_+pplan[(s_,0)]]+X; pl_+=len(PST[pl_:pl_+pplan[(s_,0)]])
    if s_==7: X=([dmaB(i) for i in range(5)] if HALF else [])+[FLG]+X
    block(mfmas(FX),list(enumerate(reads(FY,1))),X,pos(len(X)))
    if s_==7: I(f's_waitcnt vmcnt({11+2*wl+(1 if PFX else (2 if PW else 0))}) lgkmcnt(0)')
    elif s_==8: I(f's_waitcnt vmcnt({2*wl+pl_}) lgkmcnt(0)')
    else: I('s_waitcnt lgkmcnt(0)')
    I('s_barrier')
    if s_<9:
        ad=adds(SLOT if s_==8 else -3*SLOT)
        R2=[(0,ad[0]),(0,ad[1]),(1,ad[2]),(1,ad[3]),(2,ad[4]),(2,ad[5]),(3,ad[6])]+[(i+2,r) for i,r in enumerate(reads(FX,0))]
    else: R2=[]
    X=WL[wl:wl+plan[(s_,1)]]; wl+=plan[(s_,1)]
    X=PST[pl_:pl_+pplan[(s_,1)]]+X; pl_+=len(PST[pl_:pl_+pplan[(s_,1)]])
    if s_==9: X=X+[W3L]
    block(mfmas(FY),R2,X,pos(len(X),3,18 if s_==9 else 16))
assert wl==WS1
I(f's_mov_b32 s{sAo}, 0x3fb8aa3b'); I(f's_mov_b32 s{sAo+1}, 0x358637bd')
I(f'v_cmp_ne_u32 vcc, s{sTag}, v198'); I(f'v_cmp_ne_u32 s[{t4}:{t5}], s{sTag}, v199'); I(f's_or_b64 vcc, vcc, s[{t4}:{t5}]'); I('s_cbranch_vccz Leok')
poll([196,197],198)
lab('Leok')
I('s_nop 3')
stamp(14)
def acc(mt,nt,r=0,n=1): return v(ACC+(mt*5+nt)*4+r,n)
def phi2(dst,src,tmp):
    I(f'v_pk_mul_f32 {v(tmp,2)}, {v(src,2)}, s[{sAo}:{sAo+1}] op_sel_hi:[1,0]')
    I(f'v_exp_f32 v{tmp}, v{tmp} clamp'); I(f'v_exp_f32 v{tmp+1}, v{tmp+1} clamp')
    I(f'v_max_f32 v{dst}, s{sAo+1}, v{src}'); I(f'v_max_f32 v{dst+1}, s{sAo+1}, v{src+1}')
    I(f'v_pk_add_f32 {v(dst,2)}, {v(dst,2)}, {v(tmp,2)}')
def bl(i,AB):
    ks,nt=divmod(i,5)
    L=[f'buffer_load_dwordx4 {a_(AB+4*i,4)}, v{218 if nt<4 else 219}, {srd(sWS)}, s{sGo} offen offset:{1024*(nt%4)}']
    return L+([f's_add_u32 s{sGo}, s{sGo}, 40960', f's_cmp_eq_u32 s{sGo}, s{sGe}', f's_cselect_b32 s{sGo}, s{sGb}, s{sGo}'] if nt==4 else [])
def bls(a,b,AB=0): return [bl(i,AB) for i in range(a,b)]
I(f's_cmp_eq_u32 s{sTyp}, 0'); I('s_cbranch_scc0 LepiFQ')
PK=100; VV=124; DD=148; PAIRS=TB.PAIRS
NB0=E('NB0',14); NB1=E('NB1',14)
def kvepi():
    for nt in (2,3,4):
        for mt in range(4):
            for p in range(2): I(f'v_cvt_pk_bf16_f32 v{VV+(nt-2)*8+mt*2+p}, {acc(mt,nt,2*p)}, {acc(mt,nt,2*p+1)}')
    I(f'v_cmp_gt_u32 vcc, 8, v{vN}'); vconst(4,0x3f803f80)
    I(f's_lshl_b32 s{t0}, s{sW}, 12'); sadd(t0,t0,L_RED)
    for i in range(8): I(f'v_cndmask_b32 v{VV+i}, v{VV+i}, v4, vcc')
    for i in range(8): I(f'v_add_u32 v{vKA+i}, s{t0}, v{vKA+i}')
    for nt in range(3):
        for mt in range(4):
            for p in range(2):
                b=ACC+(mt*5+nt)*4+2*p
                phi2(b,b,4+2*p); I(f'v_cvt_pk_bf16_f32 v{PK+nt*8+mt*2+p}, v{b}, v{b+1}')
        for kb in range(2):
            for i,(a,b) in enumerate(PAIRS):
                if a==nt: I(f'{MF} {v(DD+4*i,4)}, {v(PK+a*8+4*kb,4)}, {v(VV+(b-2)*8+4*kb,4)}, {"0" if kb==0 else v(DD+4*i,4)}')
        if nt>0:
            for i,(a,b) in enumerate(PAIRS):
                if a==nt-1: I(f'ds_write_b128 v{vKA+i}, {v(DD+4*i,4)}')
P=cap(kvepi)
def grp_if_b(L):
    uid[0]+=1; n=f'Lb{uid[0]}'
    return [f's_cmp_eq_u32 s{sWc}, 0', f's_cbranch_scc1 {n}']+L+[n+':']
NBE=E('NBE',0)
weave(P,[grp_if_b(bls(i,i+2)) for i in range(0,NBE,2)],0,len(P)*E('EPIF',70)//100)
for i,(a,b) in enumerate(PAIRS):
    if a==2: I(f'ds_write_b128 v{vKA+i}, {v(DD+4*i,4)}')
I('s_waitcnt lgkmcnt(0)'); I('s_barrier')
for i in range(7): I(f'ds_read2st64_b32 {v(16+2*i,2)}, v{vE0} offset0:{i} offset1:{i+16}')
for i in range(7):
    I(f's_waitcnt lgkmcnt({6-i})'); I(f'v_add_f32 v{16+2*i}, v{16+2*i}, v{17+2*i}')
    I(f'buffer_atomic_add_f32 v{16+2*i}, v{vE0+1+(i==6)}, {srd(sWS)}, 0 offen offset:{256*i} {ATP}')
stamp(15)
I('s_branch Lp2a')
lab('LepiFQ')
I(f's_cmp_eq_u32 s{sWc}, 0'); I('s_cbranch_scc0 LepiQ')
XB=100; YD=140
def xcv(nt):
    for mt in range(4):
        for p in range(2): I(f'v_cvt_pk_bf16_f32 v{XB+nt*8+mt*2+p}, {acc(mt,nt,2*p)}, {acc(mt,nt,2*p+1)}')
def ymf(nt):
    for kb in range(2):
        for jt in range(4):
            d=v(YD+(nt&1)*16+4*jt,4)
            I(f'{MF} {d}, {a_(120+(jt*2+kb)*4,4)}, {v(XB+nt*8+4*kb,4)}, {"0" if kb==0 else d}')
def yst(nt):
    for jt in range(4):
        b=YD+(nt&1)*16+4*jt; o=172+jt*2
        I([f'v_cvt_pk_bf16_f32 v{o}, v{b}, v{b+1}', f'v_cvt_pk_bf16_f32 v{o+1}, v{b+2}, v{b+3}',
           f'buffer_store_dwordx2 {v(o,2)}, v{vE0}, {srd(sWS)}, s{t0+jt} offen offset:{128*nt} sc1'])
for jt in range(4): I(f's_mov_b32 s{t0+jt}, {4*jt*163840}')
xcv(0)
weave(cap(ymf,0),cap(xcv,1))
for nt in range(5):
    if nt<4:
        F_=(cap(xcv,nt+2) if nt<3 else [])
        Y_=cap(yst,nt)
        M=cap(ymf,nt+1)
        for i,m in enumerate(M):
            I(m)
            if i<4: emit(F_[2*i:2*i+2])
            else: emit(Y_[i-4])
    else: yst(nt)
stamp(15)
I('s_waitcnt vmcnt(0)'); setflag(vE0+3,4)
stamp(16)
I(f's_cmp_eq_u32 s{sAct}, 0'); I('s_cbranch_scc1 Lp3')
emit(WL[WS1:])
T1,T2,W3,YF,EF,TM,PQ=16,48,112,144,160,80,184
vY,vF,vXW,vXR,vRS,vLF=8,9,10,11,12,13
def p2addr():
    smul(t0,sCh,32*0x334); sadd(t1,t0,31*0x334); I(f's_lshr_b32 s{t0}, s{t0}, 16'); I(f's_lshr_b32 s{t1}, s{t1}, 16')
    I(f'v_mov_b32 v4, s{t0}'); I(f'v_mov_b32 v5, s{t1}'); I(f'v_cmp_gt_u32 vcc, 32, v{vL}'); I(f'v_cndmask_b32 v4, v5, v4, vcc')
    I(f'v_and_b32 v5, 31, v{vL}'); I(f'v_lshl_add_u32 v4, v4, 5, v5'); I(f'v_lshlrev_b32 v4, 7, v4'); I(f'v_add_u32 v{vF}, {WS_FL+FL_Y*128}, v4')
    I(f's_lshr_b32 s{t0}, s{sT}, 1'); smul(t0,t0,163840); I(f's_lshl_b32 s{t1}, s{sCh}, 8'); sacc(t0,t1); I(f's_lshl_b32 s{t1}, s{sWr}, 2'); sacc(t0,t1)
    I(f'v_mul_u32_u24 v4, 20480, v{vG}'); I(f'v_lshl_add_u32 v4, v{vN}, 3, v4'); I(f'v_add_u32 v{vY}, s{t0}, v4')
    smul(t0,sWc,8704); sadd(t0,t0,L_XCH[0])
    I(f's_lshl_b32 s{t1}, s{sWr}, 5'); sacc(t1,t0)
    I(f'v_mul_u32_u24 v{vXW}, 272, v{vN}'); I(f'v_lshl_add_u32 v{vXW}, v{vG}, 6, v{vXW}'); I(f'v_add_u32 v{vXW}, s{t1}, v{vXW}')
    smul(t1,sWr,16*272); sacc(t1,t0)
    I(f'v_mul_u32_u24 v{vXR}, 272, v{vG}'); I(f'v_lshl_add_u32 v{vXR}, v{vN}, 4, v{vXR}'); I(f'v_add_u32 v{vXR}, s{t1}, v{vXR}')
    smul(t0,sWr,16*81920); I(f's_lshl_b32 s{t1}, s{sCh}, 12'); sacc(t0,t1)
    I(f's_lshr_b32 s{t1}, s{sT}, 1'); I(f's_lshl_b32 s{t1}, s{t1}, 8'); sacc(t0,t1); sadd(t0,t0,WS_R)
    I(f's_mov_b32 s{t1}, 81920'); I(f'v_lshlrev_b32 v{vRS}, 4, v{vN}'); I(f'v_mad_u32_u24 v{vRS}, v{vG}, s{t1}, v{vRS}'); I(f'v_add_u32 v{vRS}, s{t0}, v{vRS}')
    I(f's_lshl_b32 s{t0}, s{sWc}, 2'); sadd(t0,t0,L_FLG); I(f'v_mov_b32 v{vLF}, s{t0}')
    I(f's_lshl_b32 s{t0}, s{sCh}, 3'); sacc(t0,sGrp)
    I(f's_lshl_b32 s{t1}, s{sCh}, 4'); I(f's_lshr_b32 s{t2}, s{sT}, 1'); sacc(t1,t2); I(f's_sub_u32 s{t1}, s{t1}, 128')
    I([f's_cmp_eq_u32 s{sTyp}, 0', f's_cselect_b32 s{t0}, s{t0}, s{t1}', f's_cselect_b32 s{sAct}, 3, 1'])
    I(f's_and_b32 s{t1}, s{t0}, 1'); I(f's_lshl_b32 s{t1}, s{t1}, 2'); I(f's_lshr_b32 s{t0}, s{t0}, 1'); I(f's_lshl_b32 s{t0}, s{t0}, 7'); sacc(t0,t1); sadd(t0,t0,WS_FL+FL_R*128); I(f'v_mov_b32 v15, s{t0}')
lab('Lp2a')
if not TGF:
    I(f's_cmp_eq_u32 s{sT}, 0'); I('s_cbranch_scc1 Lskiptg'); emit(TGL); lab('Lskiptg')
p2addr()
I(f's_cmp_eq_u32 s{sTyp}, 0'); I('s_cbranch_scc0 Lp2b')
I('s_waitcnt vmcnt(0)')
setflag(vE0+3,4)
stamp(16)
lab('Lp2b')
I(f's_cmp_eq_u32 s{sCh}, 0'); I('s_cbranch_scc0 Lnosp1')
I(f's_lshl_b32 s{t0}, s{sW}, 9'); sadd(t0,t0,L_PP)
I(f'v_lshlrev_b32 v4, 2, v{vL}'); I(f'v_add_u32 v4, s{t0}, v4'); I(f'v_lshlrev_b32 v5, 4, v{vG}'); I(f'v_add_u32 v5, s{t0}, v5')
I(f'ds_write_b32 v4, v252'); I(f'ds_write_b32 v4, v253 offset:256')
for arr,off in ((0,0),(8,256),(16,128),(24,384)):
    for mh in range(2): I(f'ds_read_b128 {v(W3+arr+4*mh,4)}, v5 offset:{off+64*mh}')
lab('Lnosp1')
I('s_waitcnt lgkmcnt(0)')
stamp(17)
poll([vF],14)
stamp(18)
for ks in range(2):
    for i in range(4):
        I(f's_mov_b32 s{t0}, {(16*ks+i)*5120}')
        for ri in range(2): I(f'buffer_load_dword v{YF+(ri*2+ks)*4+i}, v{vY}, {srd(sWS)}, s{t0} offen offset:{128*ri} {HS}')
for ks in range(2):
    I(f's_waitcnt vmcnt({8-8*ks})')
    for mt in (0,2,1,3):
        for ri in range(2):
            d=v(EF+(mt*2+ri)*4,4)
            I(f'{MF} {d}, {a_(AT1+(mt*2+ks)*4,4)}, {v(YF+(ri*2+ks)*4,4)}, {"0" if ks==0 else d}')
stamp(19)
EF2=EF
def pk(op,d,*s,neg=None):
    t=f'v_pk_{op}_f32 {v(d,2)}, '+', '.join(v(x,2) for x in s)
    if neg: t+=f' neg_lo:{neg} neg_hi:{neg}'
    I(t)
PQ=16
Pre,Pim,Qre,Qim=PQ,PQ+8,PQ+16,PQ+24
def EFr(typ,mh,ri,p): return EF+((typ*2+mh)*2+ri)*4+2*p
for mh in range(2):
    for p in range(2):
        o=mh*4+2*p; Er,Ei,Fr,Fi=EFr(0,mh,0,p),EFr(0,mh,1,p),EFr(1,mh,0,p),EFr(1,mh,1,p)
        wpr,wpi,wmr,wmi=WP+o,WP+8+o,WP+16+o,WP+24+o
        T=TM+(p*16)
        pk('add',T,Er,Fi); pk('add',T+2,Ei,Fr,neg='[0,1]'); pk('add',T+4,Er,Fi,neg='[0,1]'); pk('add',T+6,Ei,Fr)
        pk('mul',T+8,T,wpr); pk('mul',T+10,T,wpi); pk('mul',T+12,T+4,wmr); pk('mul',T+14,T+4,wmi)
        pk('fma',T+8,T+2,wpi,T+8,neg='[1,0,0]'); pk('fma',T+10,T+2,wpr,T+10); pk('fma',T+12,T+6,wmi,T+12,neg='[1,0,0]'); pk('fma',T+14,T+6,wmr,T+14)
        pk('add',Pre+o,T+8,T+12); pk('add',Pim+o,T+10,T+14); pk('add',Qre+o,T+14,T+10,neg='[0,1]'); pk('add',Qim+o,T+8,T+12,neg='[0,1]')
I(f's_cmp_eq_u32 s{sT}, 0'); I('s_cbranch_scc0 Lnot0')
I('s_mov_b64 exec, 0xffff')
Er,Ei,Fr,Fi=EFr(0,0,0,0),EFr(0,0,1,0),EFr(1,0,0,0),EFr(1,0,1,0)
I(f'v_mul_f32 v{Pre}, v{Er}, v{WP}'); I(f'v_fma_f32 v{Pre}, -v{Ei}, v{WP+8}, v{Pre}')
I(f'v_mul_f32 v{Pim}, v{Er}, v{WP+8}'); I(f'v_fma_f32 v{Pim}, v{Ei}, v{WP}, v{Pim}')
I(f'v_mul_f32 v{Qre}, v{Fr}, v{WP+16}'); I(f'v_fma_f32 v{Qre}, -v{Fi}, v{WP+24}, v{Qre}')
I(f'v_mul_f32 v{Qim}, v{Fr}, v{WP+24}'); I(f'v_fma_f32 v{Qim}, v{Fi}, v{WP+16}, v{Qim}')
I('s_mov_b64 exec, -1')
lab('Lnot0')
I(f's_cmp_eq_u32 s{sCh}, 0'); I('s_cbranch_scc0 Lnosp2')
I(f's_mov_b32 exec_lo, 0x10001'); I(f's_mov_b32 exec_hi, 0x10001')
for mh in range(2):
    for p in range(2):
        o=mh*4+2*p; Er,Ei,Fr,Fi=EFr(0,mh,0,p),EFr(0,mh,1,p),EFr(1,mh,0,p),EFr(1,mh,1,p)
        T=TM
        pk('add',T,WP+o,WP+16+o); pk('add',T+2,WP+8+o,WP+24+o,neg='[0,1]'); pk('add',T+4,W3+o,W3+16+o); pk('add',T+6,W3+8+o,W3+24+o,neg='[0,1]')
        for q in range(4): I(f'v_pk_mul_f32 {v(T+2*q,2)}, {v(T+2*q,2)}, 0.5')
        pk('mul',Pre+o,Er,T); pk('mul',Qre+o,Fr,T); pk('mul',Pim+o,Ei,T+4); pk('mul',Qim+o,Fi,T+4)
        pk('fma',Pre+o,Fr,T+2,Pre+o); pk('fma',Qre+o,Er,T+2,Qre+o,neg='[1,0,0]'); pk('fma',Pim+o,Fi,T+6,Pim+o); pk('fma',Qim+o,Ei,T+6,Qim+o,neg='[1,0,0]')
I(f's_cmp_eq_u32 s{sT}, 0'); I('s_cbranch_scc0 Lnocorner')
I('s_mov_b64 exec, 1')
Er,Ei,Fr,Fi=EFr(0,0,0,0),EFr(0,0,1,0),EFr(1,0,0,0),EFr(1,0,1,0)
for d,x,w in ((Pre,Er,WP),(Pim,Ei,W3),(Qre,Fr,WP+16),(Qim,Fi,W3+16)):
    I(f'v_mul_f32 v{d}, v{x}, v{w}'); I(f'v_mul_f32 v{d}, 0.5, v{d}')
lab('Lnocorner')
I('s_mov_b64 exec, -1')
lab('Lnosp2')
for mh in range(2):
    for ri in range(2):
        for q,src in enumerate(((Pre,Pim)[ri],(Qre,Qim)[ri])):
            for p in range(2): I(f'v_cvt_pk_bf16_f32 v{YF+(ri*2+mh)*4+2*q+p}, v{src+mh*4+2*p}, v{src+mh*4+2*p+1}')
for ks in range(2):
    for nt in range(4):
        for ri in range(2):
            d=v(EF+(nt*2+ri)*4,4)
            I(f'{MF} {d}, {v(YF+(ri*2+ks)*4,4)}, {a_(AT2+(nt*2+ks)*4,4)}, {"0" if ks==0 else d}')
for nt in range(4):
    for ri in range(2):
        for p in range(2): I(f'v_cvt_pk_bf16_f32 v{TM+nt*4+ri*2+p}, v{EF+(nt*2+ri)*4+2*p}, v{EF+(nt*2+ri)*4+2*p+1}')
    I(f'ds_write_b128 v{vXW}, {v(TM+nt*4,4)} offset:{(nt&1)*16*272+(nt>>1)*16}')
stamp(20)
ldssync(vLF,14)
for i in range(4): I(f'ds_read_b128 {v(TM+16+4*i,4)}, v{vXR} offset:{4*272*i}')
for i in range(4):
    I(f's_mov_b32 s{t0}, {4*81920*i}'); I(f's_waitcnt lgkmcnt({3-i})')
    I(f'buffer_store_dwordx4 {v(TM+16+4*i,4)}, v{vRS}, {srd(sWS)}, s{t0} offen sc1')
vconst(10,L_FLG+8); vconst(11,1)
stamp(21)
if not POI: I('s_waitcnt vmcnt(0)')
I('s_mov_b64 exec, 1'); I('ds_add_rtn_u32 v11, v10, v11'); I('s_mov_b64 exec, -1'); I('s_waitcnt lgkmcnt(0)')
I(f'v_readfirstlane_b32 s{t0}, v11'); I(f's_cmp_eq_u32 s{t0}, s{sAct}'); I('s_cbranch_scc0 Lnopub')
setflag(15,12)
lab('Lnopub')
stamp(22)
I(f's_cmp_eq_u32 s{sWc}, 0'); I('s_cbranch_scc1 Lp3')
if E('WGW',1):
    I(f's_mov_b32 s{sTo}, 0x400000'); lab('Lwgw')
    I(f'ds_read_b32 v11, v10'); I('s_waitcnt lgkmcnt(0)'); I(f'v_cmp_ge_u32 vcc, s{sAct}, v11')
    I(f's_cbranch_vccz Lwb'); I(f's_sub_u32 s{sTo}, s{sTo}, 1'); I(f's_cbranch_scc0 Lwgw')
lab('Lwb')
NBE=E('NBE',0)
if not E('NOWB',0): emit(bls(NBE,5*KB))
I('s_branch Lp3')
lab('LepiQ')
vPW,vPR,vKR,vOS,vO5,vKW,vKP=4,5,100,104,106,108,112
I(f's_lshl_b32 s{t1}, s{sRb}, 1'); sacc(t1,sWr); smul(t2,t1,1280); smul(t3,sGrp,8*40960); sacc(t2,t3)
I(f'v_and_b32 v8, 7, v{vL}'); I(f'v_lshlrev_b32 v8, 4, v8'); I(f'v_lshrrev_b32 v9, 3, v{vL}'); I(f'v_mul_u32_u24 v10, 40960, v9'); I(f'v_add_u32 v10, v10, v8')
GX=120; GW=160
I(f'v_mov_b32 v115, v10'); I(f'v_mov_b32 v116, v8'); I(f's_mov_b32 s{sCnt}, s{t2}')
GLD=[[f'buffer_load_dwordx4 {v(GX+4*j,4)}, v115, {srd(sX)}, s{sCnt} offen offset:{128*j}', f'buffer_load_dwordx4 {v(GW+4*j,4)}, v116, {srd(sGATE)}, 0 offen offset:{128*j}'] for j in range(10)]
I(f's_lshl_b32 s{t2}, s{t1}, 8'); I(f's_lshl_b32 s{t3}, s{sGrp}, 5'); sacc(t2,t3); sadd(t2,t2,WS_G)
I(f'v_lshlrev_b32 v9, 2, v9'); I(f'v_add_u32 v9, s{t2}, v9'); vconst(10,OOB); I(f'v_cmp_eq_u32 vcc, 0, v8'); I(f'v_cndmask_b32 v114, v10, v9, vcc')
smul(t0,sWr,L_PQ[1]-L_PQ[0]); sadd(t0,t0,L_PQ[0])
I(f'v_mul_u32_u24 v{vPW}, {PQS}, v{vN}'); I(f'v_lshl_add_u32 v{vPW}, v{vG}, 3, v{vPW}'); I(f'v_add_u32 v{vPW}, s{t0}, v{vPW}')
def qepi():
    for nt in range(5):
        for mt in range(4):
            b=ACC+(mt*5+nt)*4
            phi2(b,b,8); phi2(b+2,b+2,10)
            I(f'v_cvt_pk_bf16_f32 v{b}, v{b}, v{b+1}'); I(f'v_cvt_pk_bf16_f32 v{b+1}, v{b+2}, v{b+3}')
            I(f'ds_write_b64 v{vPW}, {v(b,2)} offset:{16*nt*PQS+32*mt}')
QW=E('QW',0)
P_=cap(qepi)
weave(P_,GLD+bls(0,QW),len(P_)*E('QS',0)//100,len(P_))
stamp(15)
I(f's_waitcnt vmcnt({QW})')
stamp(16)
vconst(8,0); vconst(9,0)
for i in range(40): I(f'v_dot2_f32_bf16 v{8+(i&1)}, v{GX+i}, v{GW+i}, v{8+(i&1)}')
I('s_nop 2'); I('v_add_f32 v8, v8, v9')
for ctl in ('quad_perm:[1,0,3,2]','quad_perm:[2,3,0,1]','row_half_mirror'):
    I('s_nop 1'); I(f'v_add_f32_dpp v8, v8, v8 {ctl} row_mask:0xf bank_mask:0xf')
I('v_cvt_pk_bf16_f32 v8, v8, v8'); I('v_and_b32 v8, 0xffff0000, v8'); I(f'v_mul_f32 v8, s{sAo}, v8'); I('v_exp_f32 v8, -v8'); I('v_add_f32 v8, 1.0, v8'); I('v_rcp_f32 v8, v8')
I('v_cvt_pk_bf16_f32 v8, v8, v8'); I('v_and_b32 v8, 0xffff0000, v8')
I(f'buffer_store_dword v8, v114, {srd(sWS)}, 0 offen sc1')
I(f'v_bfe_u32 v8, v{vL}, 2, 2'); I(f'v_lshl_add_u32 v8, v{vG}, 3, v8'); I(f'v_and_b32 v9, 3, v{vL}'); I(f'v_lshlrev_b32 v9, 3, v9'); I(f'v_add_u32 v9, s{t0}, v9')
for hh in range(2):
    I(f'v_add_u32 v10, {4*hh}, v8'); I(f'v_min_u32 v10, 19, v10'); I(f'v_mul_u32_u24 v10, {PQS}, v10'); I(f'v_add_u32 v{vPR+hh}, v10, v9')
smul(t1,sWr,5504); sadd(t1,t1,L_KVI)
for i in range(4): vconst(8+i,0)
I(f'v_add_u32 v12, s{t1}, v218')
for i in range(5): I(f'ds_write_b128 v12, v[8:11] offset:{1024*i}')
I(f's_mov_b64 exec, 0xffffff'); I(f'ds_write_b128 v12, v[8:11] offset:5120'); I('s_mov_b64 exec, -1')
for i in range(4):
    I(f'v_add_u32 v8, {64*i}, v{vL}'); I(f'v_mul_u32_u24 v9, 0xc31, v8'); I(f'v_lshrrev_b32 v9, 16, v9')
    I(f'v_mul_u32_u24 v10, 21, v9'); I(f'v_sub_u32 v10, v8, v10')
    I(f'v_cmp_lt_u32 vcc, 4, v9'); I(f'v_cndmask_b32 v11, 0, 1, vcc')
    I(f'v_mad_u32_u24 v10, v11, 21, v10'); I(f'v_mul_u32_u24 v11, 5, v11'); I(f'v_sub_u32 v9, v9, v11')
    I(f'v_lshlrev_b32 v10, 6, v10'); I(f'v_lshl_add_u32 v10, v9, 3, v10'); I(f'v_add_u32 v{vKW+i}, s{t1}, v10')
vconst(11,L_PP); I(f'v_cmp_gt_u32 vcc, 18, v{vL}'); I(f'v_cndmask_b32 v{vKW+3}, v11, v{vKW+3}, vcc')
I(f'v_lshlrev_b32 v8, 4, v{vG}'); I(f'v_add_u32 v8, s{t1}, v8')
I(f'v_lshl_add_u32 v{vKR}, v{vN}, 6, v8'); I(f'v_add_u32 v{vKR+1}, {21*64}, v{vKR}')
I(f'v_and_b32 v9, 3, v{vN}'); I(f'v_lshrrev_b32 v10, 2, v{vN}')
for hb in range(2):
    I(f'v_and_b32 v11, 1, v10'); I(f'v_lshl_add_u32 v11, v11, 1, v9'); I(f'v_add_u32 v11, {21*hb+16}, v11')
    I(f'v_lshrrev_b32 v12, 1, v10'); I(f'v_cmp_eq_u32 vcc, {hb}, v12'); I(f'v_cmp_gt_u32 s[{t4}:{t5}], 2, v9'); I(f's_and_b64 vcc, vcc, s[{t4}:{t5}]')
    I(f'v_cndmask_b32 v11, 42, v11, vcc'); I(f'v_cmp_eq_u32 vcc, {2+hb}, v9'); I(f'v_cndmask_b32 v11, v11, {21*hb+20}, vcc')
    I(f'v_lshl_add_u32 v{vKR+2+hb}, v11, 6, v8')
I(f's_lshl_b32 s{t1}, s{sRb}, 1'); sacc(t1,sWr); smul(t2,t1,81920); sadd(t2,t2,WS_O)
smul(t3,sGrp,10)
for hp in range(2):
    I(f'v_add_u32 v8, {5*hp}, v{vG}'); I(f'v_add_u32 v8, s{t3}, v8')
    I(f'v_lshrrev_b32 v9, 2, v8'); I(f'v_and_b32 v8, 3, v8'); I(f'v_lshlrev_b32 v9, 12, v9'); I(f'v_lshl_add_u32 v9, v8, 8, v9')
    I(f'v_lshl_add_u32 v9, v{vN}, 4, v9'); I(f'v_add_u32 v{vOS+hp}, s{t2}, v9')
    sadd(t4,t3,5*hp+4); I(f's_lshr_b32 s{t5}, s{t4}, 2'); I(f's_lshl_b32 s{t5}, s{t5}, 12'); I(f's_and_b32 s{t4}, s{t4}, 3'); I(f's_lshl_b32 s{t4}, s{t4}, 8')
    sacc(t4,t5); sacc(t4,t2)
    I(f'v_lshlrev_b32 v9, 10, v{vG}'); I(f'v_lshl_add_u32 v9, v{vN}, 4, v9'); I(f'v_add_u32 v{vO5+hp}, s{t4}, v9')
I(f's_lshl_b32 s{t1}, s{t1}, 3'); sacc(t1,sGrp); I(f's_lshl_b32 s{t1}, s{t1}, 7'); sadd(t1,t1,WS_FL+FL_O*128); I(f'v_mov_b32 v15, s{t1}')
I(f's_lshl_b32 s{t1}, s{sGrp}, 13'); sadd(t1,t1,WS_KVA)
I(f'v_add_u32 v{vKP}, s{t1}, v218'); vconst(9,OOB); I(f'v_cmp_gt_u32 vcc, 18, v{vL}'); I(f'v_cndmask_b32 v{vKP+1}, v9, v{vKP}, vcc')
I(f's_lshl_b32 s{t1}, s{sGrp}, 6')
I(f'v_add_u32 v8, s{t1}, v{vL}'); I(f'v_lshlrev_b32 v8, 7, v8'); I(f'v_add_u32 v13, {WS_FL+FL_KV*128}, v8')
KF=16; QF=120; OD=48; O5=184; PB=48
I('s_waitcnt lgkmcnt(0)')
for u in range(8):
    rt,hp=u>>1,u&1
    for hb in range(2):
        for hh in range(2): I(f'ds_read_b64_tr_b16 {v(QF+u*8+hb*4+2*hh,2)}, v{vPR+hh} offset:{(2*hp+hb)*20*PQS+32*rt}')
    if u%2==1: I('s_waitcnt lgkmcnt(4)')
I(f's_mov_b32 s{sEx}, -1'); I(f's_mov_b32 s{sEx+1}, 0'); I(f's_movk_i32 s{t0}, 0x1000')
stamp(20)
NQ=E('NQ',5*KB)
emit(bls(QW,NQ))
stamp(17)
poll([13],9)
stamp(18)
for hp in range(2):
    for i in range(4): I(f'buffer_load_dwordx4 {v(PB+hp*16+4*i,4)}, v{vKP+(i==3)}, {srd(sWS)}, {"0" if hp==0 else "s%d"%t0} offen offset:{1024*i} sc1')
for hp in range(2):
    for i in range(4):
        b=PB+hp*16+4*i
        I(f's_waitcnt vmcnt({7-hp*4-i})')
        I(f'v_cvt_pk_bf16_f32 v{b}, v{b}, v{b+1}'); I(f'v_cvt_pk_bf16_f32 v{b+1}, v{b+2}, v{b+3}')
        I(f'ds_write_b64 v{vKW+i}, {v(b,2)} offset:{2752*hp}')
for hp in range(2):
    for j in (2,0,3,1): I(f'ds_read_b128 {v(KF+(hp*4+j)*4,4)}, v{vKR+j} offset:{2752*hp}')
stamp(19)
def omf(u):
    hp=u&1; q=QF+u*8; d=OD+(u%4)*12
    I(f'{MF} {v(d+8,4)}, {v(KF+(hp*4+2)*4,4)}, {v(q,4)}, 0')
    I(f'{MF} {v(d,4)}, {v(KF+(hp*4+0)*4,4)}, {v(q,4)}, 0')
    I(f'{MF} {v(d+8,4)}, {v(KF+(hp*4+3)*4,4)}, {v(q+4,4)}, {v(d+8,4)}')
    I(f'{MF} {v(d+4,4)}, {v(KF+(hp*4+1)*4,4)}, {v(q+4,4)}, 0')
def ofin(u):
    rt,hp=u>>1,u&1; d=OD+(u%4)*12; o=192+(u&1)*4
    I(f'v_pk_add_f32 {v(d+10,2)}, {v(d+10,2)}, s[{sAo}:{sAo+1}] op_sel:[0,1]')
    I(f'v_rcp_f32 v{d+10}, v{d+10}'); I(f'v_rcp_f32 v{d+11}, v{d+11}')
    I('s_nop 0')
    for p in range(2): I(f'v_pk_mul_f32 {v(d+2*p,2)}, {v(d+2*p,2)}, {v(d+10,2)} op_sel_hi:[1,0]')
    for p in range(2): I(f'v_pk_mul_f32 {v(d+4+2*p,2)}, {v(d+4+2*p,2)}, {v(d+10,2)} op_sel:[0,1]')
    I(f'v_cndmask_b32 v{d+10}, v{d+11}, v{d+10}, s[{sEx}:{sEx+1}]')
    for p in range(4): I(f'v_cvt_pk_bf16_f32 v{o+p}, v{d+2*p}, v{d+2*p+1}')
    I(f'buffer_store_dwordx4 {v(o,4)}, v{vOS+hp}, {srd(sWS)}, 0 offen offset:{1024*rt} sc1')
    I(f'v_pk_mul_f32 {v(d+8,2)}, {v(d+8,2)}, {v(d+10,2)} op_sel_hi:[1,0]')
    I(f'v_cvt_pk_bf16_f32 v{O5+hp*4+rt}, v{d+8}, v{d+9}')
I('s_waitcnt lgkmcnt(4)'); omf(0); I('s_waitcnt lgkmcnt(0)'); omf(1)
for u in range(8):
    if u+2<8: weave(cap(ofin,u),cap(omf,u+2))
    else: ofin(u)
for hp in range(2):
    b=O5+hp*4
    I(f'v_permlane32_swap_b32 v{b}, v{b+2}'); I(f'v_permlane32_swap_b32 v{b+1}, v{b+3}')
    I(f'v_permlane16_swap_b32 v{b}, v{b+1}'); I(f'v_permlane16_swap_b32 v{b+2}, v{b+3}')
    I(f'buffer_store_dwordx4 {v(b,4)}, v{vO5+hp}, {srd(sWS)}, 0 offen sc1')
stamp(21)
I(f'v_mov_b32 v10, s{sTag}'); I(f'v_mov_b32 v11, s{sTag}'); I('s_nop 0' if POI else 's_waitcnt vmcnt(0)'); I('s_mov_b64 exec, 1'); I(f'buffer_store_dwordx2 v[10:11], v15, {srd(sWS)}, 0 offen sc1'); I('s_mov_b64 exec, -1')
stamp(22)
emit(bls(NQ,5*KB))
lab('Lp3')
vA,vGg,vFa,vFo,vL16=4,5,8,9,6
vOA,vTW,vTR,vAR,vAW,vOW,vOW4,vOR,vOut,vSg=240,244,247,248,249,250,251,252,253,14
AD2=160
I(f'v_lshlrev_b32 v{vL16}, 4, v{vL}')
for r in range(4):
    sadd(t0,sW,r); I(f's_and_b32 s{t0}, s{t0}, 3'); I(f's_lshl_b32 s{t1}, s{t0}, 10'); I(f'v_add_u32 v{vOA+r}, s{t1}, v{vL16}')
    if r: smul(t0,t0,15360); sadd(t0,t0,L_TB+(r-1)*5120); I(f'v_add_u32 v{vTW+r-1}, s{t0}, v{vL16}')
smul(t0,sW,15360); sadd(t0,t0,L_TB); I(f'v_add_u32 v{vTR}, s{t0}, v{vL16}')
smul(t0,sW,3072); sadd(t0,t0,L_TA); I(f'v_add_u32 v{vAR}, s{t0}, v{vL16}')
smul(t0,sWr,12288); sadd(t0,t0,L_TA); I(f'v_add_u32 v{vAW}, s{t0}, v{vL16}')
I(f's_lshl_b32 s{t0}, s{sN2}, 3')
I(f'v_and_b32 v7, 7, v{vL}'); I(f'v_add_u32 v7, s{t0}, v7'); I(f'v_lshlrev_b32 v7, 7, v7'); I(f'v_add_u32 v{vFo}, {WS_FL+FL_O*128}, v7')
vconst(15,560)
for i in range(3):
    I(f'v_add_u32 v12, {64*i}, v{vL}'); div10(13,12); I(f'v_mul_u32_u24 v14, 10, v13'); I(f'v_sub_u32 v14, v12, v14')
    I(f'v_mul_u32_u24 v13, 40960, v13'); I(f'v_lshl_add_u32 v13, v14, 4, v13'); I(f'v_cmp_lt_u32 vcc, 4, v14'); I(f'v_cndmask_b32 v14, 0, v15, vcc'); I(f'v_add_u32 v{vOut+i}, v13, v14')
vconst(12,OOB); I(f'v_cmp_gt_u32 vcc, 32, v{vL}'); I(f'v_cndmask_b32 v{vOut+2}, v12, v{vOut+2}, vcc')
smul(sB0,sW,16*40960); smul(t1,sN2,1280); sacc(sB0,t1); smul(t1,sCt,80); sacc(sB0,t1)
smul(t2,sW,2560); sadd(t2,t2,L_OUT)
I(f'v_mul_u32_u24 v12, 160, v{vN}'); I(f'v_lshl_add_u32 v12, v{vG}, 3, v12'); I(f'v_add_u32 v{vOW}, s{t2}, v12'); I(f'v_add_u32 v{vOR}, s{t2}, v{vL16}')
I(f'v_lshrrev_b32 v12, 5, v{vL}'); I(f'v_lshl_add_u32 v{vOW4}, v12, 6, v{vOW}'); I(f'v_lshlrev_b32 v12, 31, v12'); I(f'v_or_b32 v{vSg}, 0x3f800000, v12')
I(f's_lshl_b32 s{sB1}, s{sN2}, 8'); I(f's_lshl_b32 s{t1}, s{sW}, 6'); sacc(sB1,t1); sadd(sB1,sB1,WS_G)
I(f'v_lshlrev_b32 v7, 2, v{vN}')
smul(sDl,sN2,81920); I(f's_lshl_b32 s{t1}, s{sRot}, 12'); I(f's_add_u32 s{sMA}, s{sDl}, s{t1}'); sadd(sMA,sMA,WS_O); sadd(sMB,sMA,KB*4096); I(f's_lshl_b32 s{t1}, s84, 12'); I(f's_add_u32 s{sA2}, s{sMA}, s{t1}')
C3=16; PA=E('PA',3)
I(f's_cmp_eq_u32 s{sWc}, 0'); I('s_cbranch_scc0 Lp3b')
emit(bls(0,5*KA,120))
I(f'v_lshrrev_b32 v{vA}, 2, v{vN}'); I(f'v_lshlrev_b32 v{vA}, 8, v{vA}'); I(f'v_lshl_add_u32 v{vA}, v{vG}, 6, v{vA}'); I(f'v_and_b32 v12, 3, v{vN}'); I(f'v_lshl_add_u32 v{vA}, v12, 4, v{vA}')
smul(t1,sWr,40960); I(f's_add_u32 s{sIs}, s{sDl}, s{t1}'); sadd(sIs,sIs,WS_R); sadd(sDm,sIs,40960); I(f's_lshl_b32 s{t1}, s85, 12'); I(f's_add_u32 s{sBstep}, s{sIs}, s{t1}')
smul(t0,sWr,40); I(f's_movk_i32 s{t1}, 95'); I(f's_cmp_eq_u32 s{sWr}, 0'); I(f's_cselect_b32 s{t1}, 39, s{t1}')
I(f'v_add_u32 v12, s{t0}, v{vL}'); I(f'v_min_u32 v12, s{t1}, v12'); I(f'v_lshlrev_b32 v12, 7, v12'); I(f'v_add_u32 v{vFa}, {WS_FL+FL_R*128}, v12')
stamp(24)
if E('PDELAY',24): I(f's_sleep {E("PDELAY",24)}')
poll2(vFa,10)
stamp(25)
RING=9; PAA=E('PAA',5)
RETRY=[]
def check(base,loads):
    if not POI: return
    uid[0]+=1; L=f'Lck{uid[0]}'
    lab(L)
    I(f'v_max3_u32 v12, v{base}, v{base+1}, v{base+2}')
    I(f'v_max3_u32 v13, v{base+3}, v{base+4}, v{base+5}')
    for i in range(5): I(f'v_max3_u32 v{12+(i&1)}, v{12+(i&1)}, v{base+6+2*i}, v{base+7+2*i}')
    I('v_max_u32 v12, v12, v13'); I('v_cmp_eq_u32 vcc, -1, v12'); I(f's_cbranch_vccnz {L}r')
    lab(L+'c')
    RETRY.append([L+'r:', f's_sub_u32 s{sTo}, s{sTo}, 1', f's_cbranch_scc1 {L}c', 's_sleep 2']+loads+['s_waitcnt vmcnt(0)', f's_branch {L}'])
def arf(i): return v(64+4*(i%(4*RING)),4)
def aload(ks): return [[f'buffer_load_dwordx4 {arf(ks*4+mt)}, v{vA}, {srd(sWS)}, s{sBstep} offen offset:{1024*mt} {HS}']+([f's_add_u32 s{sBstep}, s{sBstep}, 4096', f's_cmp_eq_u32 s{sBstep}, s{sDm}', f's_cselect_b32 s{sBstep}, s{sIs}, s{sBstep}'] if mt==3 else []) for mt in range(4)]
for ks in range(PAA): emit(aload(ks))
for ks in range(10):
    I(f's_waitcnt vmcnt({4*(min(10,ks+PAA)-ks-1)})')
    check(64+4*((ks*4)%(4*RING)),[f's_add_u32 s{t0}, s{sIs}, {4096*ks}']+[f'buffer_load_dwordx4 {arf(ks*4+mt)}, v{vA}, {srd(sWS)}, s{t0} offen offset:{1024*mt} sc1' for mt in range(4)])
    M=[f'{MF} {v(C3+(mt*3+nt)*4,4)}, {arf(ks*4+mt)}, {a_((ks*3+nt)*4,4)}, {"0" if ks==0 else v(C3+(mt*3+nt)*4,4)}' for nt in range(3) for mt in range(4)]
    weave(M,aload(ks+PAA) if ks+PAA<10 else [],0,len(M)-2)
OF=144
def oload(ks): return [[f'buffer_load_dwordx4 {v(OF+((ks%5)*4+r)*4,4)}, v{vOA+r}, {srd(sWS)}, s{sA2} offen {HS}']+([f's_add_u32 s{sA2}, s{sA2}, 4096', f's_cmp_eq_u32 s{sA2}, s{sMB}', f's_cselect_b32 s{sA2}, s{sMA}, s{sA2}'] if r==3 else []) for r in range(4)]
def bhead(NK):
    stamp(23)
    poll([vFo],10)
    stamp(12)
    pa=min(PA,NK)
    for ks in range(pa): emit(oload(ks))
    if pa==NK: I(f'buffer_load_dword v{vGg}, v7, {srd(sWS)}, s{sB1} offen sc1')
EO=E('EO',1)
if EO: bhead(KA)
TF_=208; AO=96
for nt in range(3):
    for kb in range(2):
        o=TF_+(nt*2+kb)*4
        for q in range(2):
            for p in range(2):
                b=C3+((2*kb+q)*3+nt)*4+2*p; I(f'v_cvt_pk_bf16_f32 v{o+2*q+p}, v{b}, v{b+1}')
for nt in range(3):
    for kb in range(2):
        for w_ in range(4):
            c=v(AO+(w_*3+nt)*4,4); I(f'{MF} {c}, {v(TF_+(nt*2+kb)*4,4)}, {a_(AD2+(w_*2+kb)*4,4)}, {"0" if kb==0 else c}')
for nt in range(3):
    for w_ in range(4): I(f'ds_write_b128 v{vAW}, {v(AO+(w_*3+nt)*4,4)} offset:{(w_*3+nt)*1024}')
def bmain(NK,AB,head=True):
    pa=min(PA,NK)
    gl=[f'buffer_load_dword v{vGg}, v7, {srd(sWS)}, s{sB1} offen sc1']
    if head: bhead(NK)
    g=1 if pa==NK else 0
    for ks in range(NK):
        I(f's_waitcnt vmcnt({4*(min(NK,ks+pa)-ks-1)+g})')
        check(OF+(ks%5)*16,[f's_add_u32 s{t0}, s{sMA}, {4096*ks}']+[f'buffer_load_dwordx4 {v(OF+((ks%5)*4+r)*4,4)}, v{vOA+r}, {srd(sWS)}, s{t0} offen sc1' for r in range(4)])
        last=ks==NK-1
        order=[(nt,r) for nt in range(5) for r in range(4)] if not last else [(nt,r) for r in (1,2,3,0) for nt in range(5)]
        M=[f'{MF} {v(C3+(r*5+nt)*4,4)}, {a_(AB+(ks*5+nt)*4,4)}, {v(OF+((ks%5)*4+r)*4,4)}, {"0" if ks==0 else v(C3+(r*5+nt)*4,4)}' for nt,r in order]
        X=[]
        if ks+pa<NK: X=oload(ks+pa)
        elif not g: X=[gl]; g=1
        if not last: weave(M,X,0,len(M)-2)
        else:
            emit(X)
            for i,m in enumerate(M):
                I(m)
                if i>=8: r,nt=divmod(i-8,5); I(f'ds_write_b128 v{vTW+r}, {v(C3+((r+1)*5+nt)*4,4)} offset:{1024*nt}')
bmain(KA,120,not EO)
I('s_branch Lp3t')
lab('Lp3b')
bmain(KB,0)
lab('Lp3t')
I('s_nop 7')
stamp(26)
for i in range(12,15):
    r,nt=divmod(i,5); I(f'ds_write_b128 v{vTW+r}, {v(C3+((r+1)*5+nt)*4,4)} offset:{1024*nt}')
scale=struct.unpack('<I',struct.pack('<f',2.0/(2048*640)))[0]
I('s_waitcnt vmcnt(0)')
I(f'v_sub_f32 v11, 1.0, v{vGg}'); I(f'v_cvt_pk_bf16_f32 v11, v11, v11'); I(f'v_and_b32 v11, 0xffff0000, v11'); I(f'v_mul_f32 v10, 0x{scale:x}, v{vGg}')
I('s_waitcnt lgkmcnt(0)'); I('s_barrier')
stamp(27)
AE=160; TBF=96; OA=40
for t_ in range(3):
    for p_ in range(2): I(f'ds_read_b128 {v(AE+(t_*2+p_)*4,4)}, v{vAR} offset:{p_*12288+t_*1024}')
rb_=[f'ds_read_b128 {v(TBF+(nt*3+r)*4,4)}, v{vTR} offset:{r*5120+nt*1024}' for nt in range(5) for r in range(3)]
emit(rb_[:9])
I('s_waitcnt lgkmcnt(9)')
emit(rb_[9:])
for u in range(5):
    t_=(0,1,0,1,2)[u]; e_,o_2=AE+t_*8,AE+t_*8+4; c=OA+4*u
    for p in range(2):
        if u<4: I(f'v_pk_add_f32 {v(c+2*p,2)}, {v(e_+2*p,2)}, {v(o_2+2*p,2)}'+(' neg_lo:[0,1] neg_hi:[0,1]' if u>=2 else ''))
        else: I(f'v_pk_fma_f32 {v(c+2*p,2)}, {v(o_2+2*p,2)}, v[{vSg}:{vSg+1}], {v(e_+2*p,2)} op_sel_hi:[1,0,1]')
        I(f'v_pk_mul_f32 {v(c+2*p,2)}, {v(c+2*p,2)}, v[10:11] op_sel_hi:[1,0]')
for u in range(5):
    I(f's_waitcnt lgkmcnt({12-2*u})')
    b0=TBF+u*12; c=OA+4*u; own=C3+u*4
    for p in range(2):
        I(f'v_pk_add_f32 {v(b0+2*p,2)}, {v(b0+2*p,2)}, {v(b0+4+2*p,2)}')
        I(f'v_pk_add_f32 {v(own+2*p,2)}, {v(own+2*p,2)}, {v(b0+8+2*p,2)}')
        I(f'v_pk_add_f32 {v(b0+2*p,2)}, {v(b0+2*p,2)}, {v(own+2*p,2)}')
        I(f'v_pk_fma_f32 {v(c+2*p,2)}, {v(b0+2*p,2)}, v[10:11], {v(c+2*p,2)} op_sel:[0,1,0]')
    I(f'v_cvt_pk_bf16_f32 v{c}, v{c}, v{c+1}'); I(f'v_cvt_pk_bf16_f32 v{c+1}, v{c+2}, v{c+3}')
    I(f'ds_write_b64 v{vOW if u<4 else vOW4}, {v(c,2)} offset:{(0,32,80,112,64)[u]}')
I('s_waitcnt lgkmcnt(0)')
for i in range(3): I(f'ds_read_b128 {v(64+4*i,4)}, v{vOR} offset:{1024*i}')
for i in range(3):
    I(f's_waitcnt lgkmcnt({2-i})'); I(f'buffer_store_dwordx4 {v(64+4*i,4)}, v{vOut+i}, {srd(sOUT)}, s{sB0} offen {OUTPOL}')
I(f's_or_b32 s{t0}, s2, s{sW}'); I(f's_cmp_eq_u32 s{t0}, 0'); I('s_cbranch_scc0 Lnoe')
vconst(15,WS_E); setflag(15,14)
lab('Lnoe')
if PADT:
    lab('Lpad'); I(f's_memrealtime s[{sTS}:{sTS+1}]'); I('s_waitcnt lgkmcnt(0)'); I(f's_sub_u32 s{t0}, s{sTS}, s{sTS+2}'); I(f's_cmp_lt_u32 s{t0}, {PADT}'); I('s_cbranch_scc1 Lpad')
if TS:
    stamp(28)
    I(f's_lshl_b32 s{t0}, s2, 2'); sacc(t0,sW); I(f's_lshl_b32 s{t0}, s{t0}, 8'); sadd(t0,t0,WS_TS)
    I(f'v_lshlrev_b32 v4, 2, v{vL}')
    I(f'buffer_store_dword v0, v4, {srd(sWS)}, s{t0} offen')
lab('Lend')
I('s_endpgm')
emit(RETRY)
lab('Lfin')
body_txt=A.finish()
hdr=open(os.path.join(os.path.dirname(os.path.abspath(__file__)),'..','cdna_kernels',NAME+'.s.ref')).read().split('; Override launch')[0]
o_=hdr+f'; @launch grid=(256,1,1) block=(256,1,1) lds={LDS_SZ}\n'
o_+=f'.amdgcn_target "amdgcn-amd-amdhsa--gfx950"\n.text\n.globl {K}\n.p2align 8\n.type {K},@function\n{K}:\n'+body_txt
o_+=f'''.section .rodata,"a"
.p2align 6
.amdhsa_kernel {K}
  .amdhsa_next_free_vgpr 512
  .amdhsa_next_free_sgpr 102
  .amdhsa_accum_offset 256
  .amdhsa_group_segment_fixed_size 0
  .amdhsa_kernarg_size 80
  .amdhsa_user_sgpr_count 2
  .amdhsa_user_sgpr_kernarg_segment_ptr 1
  .amdhsa_system_sgpr_workgroup_id_x 1
.end_amdhsa_kernel
'''
if DEV: o_+='.p2align 8\n.type tab_base,@object\ntab_base:\n@@INCBIN@@\n'
else: o_+=TB.emit()
o=[a for a in sys.argv[1:] if not a.startswith('--')]
open(o[0] if o else 'out.s','w').write(o_)
print('instructions:',sum(1 for l in body_txt.split('\n') if l.startswith('    ')),'nops inserted:',A.nnops,file=sys.stderr)
```

```python
import sys, os, struct
from asm import Asm
import tables as TB

NAME='gated_mix__spectral_gfnet__linear_attn_block__prompt'
DEV = '--dev' in sys.argv
TS  = '--ts' in sys.argv
E=lambda k,d: int(os.environ.get(k,str(d)))
PFX=E('PFX',0); PW=E('PW',0); POLW=os.environ.get('POLW',''); LEAD=E('LEAD',5); ROT=E('ROT',0 if PFX else 8); POLA=os.environ.get('POLA',''); POLB=os.environ.get('POLB',''); LDPOL=os.environ.get('LDPOL',''); HS=os.environ.get('HS','sc1')
CPF=E('CPF',1); KA=E('KA',1); KB=10-KA; R3=0; POI=0; PROG=E('PROG',0); TGF=E('TGF',0); PF=E('PF',0); PFW=E('PFW',3); PFPOL=os.environ.get('PFPOL',''); PFE=E('PFE',0); HALF=1; PEEL=E('PEEL',1); WS1=E('WS1',16)
WS_Y=0; WS_R=2621440; WS_O=2*2621440; WS_KVA=3*2621440; WS_WOF=WS_KVA+65536; WS_G=WS_KVA+1048576
WS_FL=WS_G+8192
FL_Y=0; FL_KV=256; FL_R=768; FL_O=960; FL_E=1216; NFL=2240
WS_E=WS_FL+NFL*128; WS_TS=WS_E+128; WS_SZ=WS_TS+256*4*256
OOB=0x7ff00000
SLOT=36880; SEG0=16384; SEG1=16384+10240+16
L_G=2*SLOT+16384; L_FLG=155648; L_PP=L_FLG+64; LDS_SZ=L_PP+4096
L_PQ=[0,10880]; PQS=136; L_RED=0; L_XCH=[24576,24576+8704]; L_KVI=43008
L_TA=57344; L_TB=81920; L_OUT=143360
sX,sSEG,sWS,sWR,sWI,sTAB,sWO,sOUT,sGATE=4,8,12,16,20,24,28,32,36
sW,sWr,sWc,sTyp,sRb,sGrp,sTag,sCnt=40,41,42,43,44,45,46,47
sAo,sBo,sBstep,sMA,sMB,sDl,sIs,sDm=48,49,50,51,52,53,54,55
sT,sCh,sN2,sCt,sAct,sTo=56,57,58,59,60,61
t0,t1,t2,t3,t4,t5=62,63,64,65,66,67
sK=68; sEx=88; sTS=90; sB0,sB1,sGo,sA2=94,95,96,98; sBS=84; sGb,sGe,sRot=99,100,101
OUTPOL=os.environ.get('OUTPOL','')
ATP=os.environ.get('ATP','')
def srd(n): return f's[{n}:{n+3}]'
def v(a,n=1): return f'v{a}' if n==1 else f'v[{a}:{a+n-1}]'
def a_(a,n=1): return f'a{a}' if n==1 else f'a[{a}:{a+n-1}]'
vL,vN,vG=1,2,3
A=Asm(); out=[A]
class Buf(list):
    def __call__(s,t): s.append(t)
def I(t): out[-1](t)
def cap(f,*a):
    b=Buf(); out.append(b); f(*a); out.pop(); return list(b)
def emit(L):
    for x in L:
        if isinstance(x,(list,tuple)): emit(x)
        else: I(x)
def weave(P,F,start=0,end=None):
    end=len(P) if end is None else end
    n=end-start; k=0
    for i,p in enumerate(P):
        emit([p])
        if start<=i<end:
            tgt=((i-start+1)*len(F))//n
            while k<tgt: emit([F[k]]); k+=1
    while k<len(F): emit([F[k]]); k+=1
def lab(n): I(n+':')
def stamp(i):
    if E('PADT',0) and E('PADK',0)==i:
        I(f's_memrealtime s[{sTS+2}:{sTS+3}]'); I('s_waitcnt lgkmcnt(0)')
    if TS:
        I(f's_memrealtime s[{sTS}:{sTS+1}]'); I('s_waitcnt lgkmcnt(0)'); I(f'v_writelane_b32 v0, s{sTS}, {i}')
        if i in (3,14,12,26):
            I(f's_memtime s[{sTS}:{sTS+1}]'); I('s_waitcnt lgkmcnt(0)'); I(f'v_writelane_b32 v0, s{sTS}, {i+32}')
def smul(d,x,c): I(f's_mul_i32 s{d}, s{x}, {c}')
def sadd(d,x,c): I(f's_add_u32 s{d}, s{x}, {c if isinstance(c,int) else "s%d"%c[0]}')
def sacc(d,x): I(f's_add_u32 s{d}, s{d}, s{x}')
def vconst(r,c): I(f'v_mov_b32 v{r}, {c}')
def div10(dst,src): I(f'v_mul_u32_u24 v{dst}, 0x199a, v{src}'); I(f'v_lshrrev_b32 v{dst}, 16, v{dst}')
uid=[0]
SLP=E('SLP',6)
def poll(voffs,tmp):
    I(f's_mov_b32 s{sTo}, 0x40000')
    for i,vo in enumerate(voffs): I(f'buffer_load_dword v{tmp+i}, v{vo}, {srd(sWS)}, 0 offen sc1')
    for i,vo in enumerate(voffs):
        uid[0]+=1; L=f'Lpoll{uid[0]}'
        I(f's_waitcnt vmcnt({len(voffs)-1-i})')
        lab(L)
        I(f'v_cmp_ne_u32 vcc, s{sTag}, v{tmp+i}')
        I(f's_cbranch_vccz {L}d')
        I('s_mov_b64 exec, vcc')
        if E('SLP1',6): I(f's_sleep {E("SLP1",6)}')
        I(f'buffer_load_dword v{tmp+i}, v{vo}, {srd(sWS)}, 0 offen sc1')
        I(f's_sub_u32 s{sTo}, s{sTo}, 1')
        I('s_waitcnt vmcnt(0)')
        I(f's_cbranch_scc0 {L}'); lab(L+'d')
        I('s_mov_b64 exec, -1')
def poll2(vo,tmp):
    uid[0]+=1; L=f'Lpoll{uid[0]}'
    I(f's_mov_b32 s{sTo}, 0x40000')
    I(f'buffer_load_dwordx2 {v(tmp,2)}, v{vo}, {srd(sWS)}, 0 offen sc1')
    I(f's_waitcnt vmcnt(0)')
    lab(L)
    I(f'v_cmp_ne_u32 vcc, s{sTag}, v{tmp}'); I(f'v_cmp_ne_u32 s[{t4}:{t5}], s{sTag}, v{tmp+1}'); I(f's_or_b64 vcc, vcc, s[{t4}:{t5}]')
    I(f's_cbranch_vccz {L}d')
    I('s_mov_b64 exec, vcc')
    if SLP: I(f's_sleep {SLP}')
    I(f'buffer_load_dwordx2 {v(tmp,2)}, v{vo}, {srd(sWS)}, 0 offen sc1')
    I(f's_sub_u32 s{sTo}, s{sTo}, 1')
    I('s_waitcnt vmcnt(0)')
    I(f's_cbranch_scc0 {L}'); lab(L+'d')
    I('s_mov_b64 exec, -1')
def ldssync(vaddr,tmp):
    I(f'v_mov_b32 v{tmp}, 1'); I('s_waitcnt lgkmcnt(0)')
    I('s_mov_b64 exec, 1'); I(f'ds_add_u32 v{vaddr}, v{tmp}'); I('s_mov_b64 exec, -1')
    uid[0]+=1; L=f'Llp{uid[0]}'
    I(f's_mov_b32 s{sTo}, 0x400000'); lab(L)
    I(f'ds_read_b32 v{tmp}, v{vaddr}'); I('s_waitcnt lgkmcnt(0)')
    I(f'v_cmp_gt_u32 vcc, 2, v{tmp}')
    I(f's_cbranch_vccz {L}d'); I(f's_sub_u32 s{sTo}, s{sTo}, 1'); I(f's_cbranch_scc0 {L}'); lab(L+'d')
def setflag(voff,tmp):
    I(f'v_mov_b32 v{tmp}, s{sTag}'); I('s_mov_b64 exec, 1')
    I(f'buffer_store_dword v{tmp}, v{voff}, {srd(sWS)}, 0 offen sc1'); I('s_mov_b64 exec, -1')
def mksrd(d,p,n):
    I(f's_mov_b32 s{d}, s{p}'); I(f's_mov_b32 s{d+1}, s{p+1}'); I(f's_mov_b32 s{d+2}, {n}'); I(f's_mov_b32 s{d+3}, 0x20000')
MF='v_mfma_f32_16x16x32_bf16'
K=f'{NAME}_kernel'
ACC=16
FX=dict(A=100,B=116); FY=dict(A=140,B=156)
vAo=180; vBo=184; vRA=189; vRB=191
vKA=200; vE0=208; vWp,vWm,vWm0=214,215,216; WP=220
lab('Lstart')
I(f's_cmp_ge_u32 s2, 256'); I('s_cbranch_scc1 Lend')
PADT=E('PADT',0)
if TS or PADT: I(f's_memrealtime s[{sTS+2}:{sTS+3}]')
I(f's_load_dwordx16 s[{sK}:{sK+15}], s[0:1], 0')
I(f's_load_dwordx4 s[{sK+16}:{sK+19}], s[0:1], 64')
I(f'v_lshrrev_b32 v4, 6, v0'); I(f'v_and_b32 v{vL}, 63, v0')
I(f'v_readfirstlane_b32 s{sW}, v4')
I(f's_getpc_b64 s[{sGATE}:{sGATE+1}]')
lab('Lpc')
I(f's_add_u32 s{sTAB}, s{sGATE}, tab_base@rel32@lo+4'); I(f's_addc_u32 s{sTAB+1}, s{sGATE+1}, tab_base@rel32@hi+12')
I(f's_mov_b32 s{sGATE+2}, Lfin-Lpc'); I(f's_mov_b32 s{sGATE+3}, 0x20000')
I(f'v_lshlrev_b32 v9, 4, v{vL}')
I(f's_lshr_b32 s{t0}, s2, 3'); I(f's_and_b32 s{t1}, s2, 7')
if CPF:
    I(f's_lshl_b32 s{t2}, s{t0}, 10'); I(f's_cmp_eq_u32 s{sW}, 3'); I(f's_cbranch_scc0 Lnocpf')
    I(f'buffer_load_dwordx4 v[96:99], v9, {srd(sGATE)}, s{t2} offen'); lab('Lnocpf')
I(f'v_and_b32 v{vN}, 15, v{vL}'); I(f'v_lshrrev_b32 v{vG}, 4, v{vL}')
I(f's_lshr_b32 s{sRb}, s{t1}, 2'); I(f's_lshl_b32 s{sRb}, s{sRb}, 3'); I(f's_lshr_b32 s{t2}, s{t0}, 2'); sacc(sRb,t2)
I(f's_and_b32 s{sWr}, s{sW}, 1'); I(f's_lshr_b32 s{sWc}, s{sW}, 1')
I(f'v_and_b32 v5, 7, v{vL}'); I(f'v_xor_b32 v5, v5, v{vG}'); I(f'v_lshrrev_b32 v4, 3, v{vL}'); I(f'v_mul_u32_u24 v4, 40960, v4')
I(f'v_lshl_add_u32 v{vAo}, v5, 4, v4'); I(f'v_xor_b32 v{vAo+1}, 64, v{vAo}')
I(f's_lshl_b32 s{t3}, s{sRb}, 1'); sacc(t3,sWc); smul(t3,t3,1280); smul(t2,sWr,32*40960); I(f's_add_u32 s{sA2}, s{t3}, s{t2}')
I(f's_bfe_u32 s{sTyp}, s{t0}, 0x10001')
I(f's_and_b32 s{sGrp}, s{t1}, 3'); I(f's_lshl_b32 s{sGrp}, s{sGrp}, 1'); I(f's_and_b32 s{t2}, s{t0}, 1'); sacc(sGrp,t2)
if E('P3MAP',1)==0:
    I(f's_lshl_b32 s{sN2}, s{t1}, 2'); I(f's_lshr_b32 s{t2}, s{t0}, 3'); sacc(sN2,t2); I(f's_and_b32 s{sCt}, s{t0}, 7')
else:
    I(f's_lshr_b32 s{sN2}, s{t1}, 1'); I(f's_lshl_b32 s{sN2}, s{sN2}, 3'); I(f's_lshr_b32 s{t2}, s{t0}, 2'); sacc(sN2,t2)
    I(f's_and_b32 s{sCt}, s{t1}, 1'); I(f's_lshl_b32 s{sCt}, s{sCt}, 2'); I(f's_and_b32 s{t2}, s{t0}, 3'); sacc(sCt,t2)
if ROT:
    a,ma,b,mb,c,d={1:(5,7,10,3,0,0),2:(0,0,0,0,10,20),3:(20,1,20,1,0,0),4:(10,3,10,3,0,0),5:(20,1,0,0,10,0),6:(0,0,20,1,10,20),7:(10,1,20,1,0,0),8:(5,7,10,3,10,20),9:(0,0,0,0,0,20),10:(0,0,0,0,20,20)}[ROT]
    I(f's_lshr_b32 s{t2}, s{t0}, 2'); I(f's_and_b32 s{t2}, s{t2}, {ma}'); smul(t2,t2,a); I(f's_and_b32 s{t3}, s{t0}, {mb}'); smul(t3,t3,b); sacc(t2,t3)
    I(f's_and_b32 s{t3}, s{t1}, 3'); smul(t3,t3,c); sacc(t2,t3); I(f's_lshr_b32 s{t3}, s{t1}, 2'); smul(t3,t3,d); sacc(t2,t3)
    I(f's_lshr_b32 s{t2}, s{t2}, 2'); smul(t3,t2,26); I(f's_lshr_b32 s{t3}, s{t3}, 8'); smul(t3,t3,10); I(f's_sub_u32 s{sIs}, s{t2}, s{t3}')
else: I(f's_mov_b32 s{sIs}, 0')
I(f's_lshl_b32 s{sMA}, s{sW}, 12')
I(f's_lshl_b32 s{sAo}, s{sIs}, 7'); sacc(sAo,sA2)
I(f's_mov_b32 s{sTAB+2}, {TB.TAB_SZ}'); I(f's_mov_b32 s{sTAB+3}, 0x20000')
I(f's_andn2_b32 s{t0}, s{sTyp}, s{sWc}')
I(f's_sub_u32 s{t1}, 1, s{sTyp}'); sadd(t2,sWc,1); I(f's_mul_i32 s{t1}, s{t1}, s{t2}'); smul(t1,t1,1280)
smul(t2,sGrp,160); sacc(t1,t2); smul(t2,sWr,32*3840); sacc(t1,t2)
smul(t2,sGrp,102400); smul(t3,sWr,5120); sacc(t2,t3)
smul(sMB,sWc,10256); sacc(sMB,t3); sadd(sMB,sMB,SEG0)
I(f's_cmp_eq_u32 s{t0}, 1')
I(f's_cselect_b32 s{t1}, s{t2}, s{t1}')
I(f's_mov_b32 s{sBstep}, {64*3840}'); I(f's_cselect_b32 s{sBstep}, 10240, s{sBstep}')
I(f's_cselect_b64 s[{t4}:{t5}], -1, 0')
I(f's_mul_i32 s{sBo}, s{sIs}, s{sBstep}')
I(f's_mov_b32 s{t2}, 3840')
def dmaA(i): return [f's_add_u32 m0, s{sMA}, {1024*i}', f's_add_u32 s{t3}, s{sAo}, {i*8*40960}', f'buffer_load_dwordx4 v{vAo+(i&1)}, {srd(sX)}, s{t3} offen {POLA} lds']
def dmaB(i): return [f's_add_u32 m0, s{sMB}, {1024*i}', 's_nop 0', f'buffer_load_dwordx4 v{vBo+i}, {srd(sSEG)}, s{sBo} offen {POLB} lds']
def advA(d):
    return [f's_add_u32 s{sIs}, s{sIs}, 1', f's_cmp_eq_u32 s{sIs}, 10', f's_cselect_b32 s{sIs}, 0, s{sIs}',
            f's_lshl_b32 s{sAo}, s{sIs}, 7', f's_add_u32 s{sAo}, s{sAo}, s{sA2}', f's_add_u32 s{sMA}, s{sMA}, {d}']
def advB(d): return [f's_mul_i32 s{sBo}, s{sIs}, s{sBstep}', f's_add_u32 s{sMB}, s{sMB}, {d}']
def dma_adv(d):
    return [f's_add_u32 s{sIs}, s{sIs}, 1', f's_cmp_eq_u32 s{sIs}, 10', f's_cselect_b32 s{sIs}, 0, s{sIs}',
            f's_lshl_b32 s{sAo}, s{sIs}, 7', f's_add_u32 s{sAo}, s{sAo}, s{sA2}', f's_mul_i32 s{sBo}, s{sIs}, s{sBstep}',
            f's_add_u32 s{sMA}, s{sMA}, {d}', f's_add_u32 s{sMB}, s{sMB}, {d}']
def boff(i):
    I(f'v_add_u32 v4, {64*i}, v{vL}'); div10(5,4)
    I(f'v_lshlrev_b32 v4, 4, v4'); I(f'v_mul_u32_u24 v6, 160, v5'); I(f'v_sub_u32 v6, v4, v6')
    I(f'v_and_b32 v7, 3, v5'); I(f'v_bfe_u32 v8, v5, 2, 2'); I(f'v_lshl_or_b32 v7, v8, 3, v7')
    I(f'v_lshrrev_b32 v8, 4, v5'); I(f'v_lshl_or_b32 v7, v8, 2, v7')
    I(f'v_mad_u32_u24 v7, v7, s{t2}, v6'); I(f'v_cndmask_b32 v7, v7, v4, s[{t4}:{t5}]'); I(f'v_add_u32 v{vBo+i}, s{t1}, v7')
boff(0)
if TS: I(f's_memrealtime s[{sTS}:{sTS+1}]')
I('s_waitcnt lgkmcnt(0)')
if TS:
    I(f'v_writelane_b32 v0, s{sTS}, 4'); stamp(2)
mksrd(sX,sK+0,2621440)
WSB=E('WSB',128)*1048576
if WSB: I(f's_add_u32 s{sK+18}, s{sK+18}, {WSB}'); I(f's_addc_u32 s{sK+19}, s{sK+19}, 0')
I(f's_cmp_eq_u32 s{t0}, 1')
I(f's_cselect_b32 s{sSEG}, s{sTAB}, s{sK+8}'); I(f's_cselect_b32 s{sSEG+1}, s{sTAB+1}, s{sK+9}')
I(f's_mov_b32 s{sSEG+2}, 2457600'); I(f's_cselect_b32 s{sSEG+2}, {TB.TF_SZ}, s{sSEG+2}'); I(f's_mov_b32 s{sSEG+3}, 0x20000')
for i in range(4): emit(dmaA(i)); boff(i+1)
if TS: I(f'v_writelane_b32 v0, s{sTS+2}, 0')
def setup0():
    mksrd(sWS,sK+18,WS_SZ); mksrd(sWO,sK+10,819200)
    I(f's_lshl_b32 s{sDm}, s2, 2'); sacc(sDm,sW)
    smul(t0,sDm,0x667); I(f's_lshr_b32 s{t0}, s{t0}, 16')
    smul(t1,t0,40); I(f's_sub_u32 s{t1}, s{sDm}, s{t1}')
    smul(t2,t1,52); I(f's_lshr_b32 s{t2}, s{t2}, 8')
    smul(sGo,t2,5); I(f's_sub_u32 s{t1}, s{t1}, s{sGo}')
    smul(t2,t2,80)
    I(f's_lshl_b32 s{t0}, s{t0}, 2')
    I(f'v_bfe_u32 v4, v{vL}, 3, 2'); I(f'v_add_u32 v4, s{t0}, v4'); I(f'v_mul_u32_u24 v5, 0x3334, v4'); I(f'v_lshrrev_b32 v5, 16, v5')
    I(f'v_lshrrev_b32 v6, 5, v{vL}'); I(f'v_add_u32 v5, v5, v6')
    I(f'v_mul_u32_u24 v5, 20, v5'); I(f'v_lshl_add_u32 v5, v4, 2, v5'); I(f'v_bfe_u32 v4, v{vL}, 1, 2'); I(f'v_add_u32 v5, v5, v4')
    I(f's_lshr_b32 s{t0}, s{t1}, 1'); smul(t0,t0,640); I(f's_and_b32 s{sGo}, s{t1}, 1'); I(f's_lshl_b32 s{sGo}, s{sGo}, 5'); sacc(t0,sGo)
    I(f's_movk_i32 s{sGo}, 640')
    I([f's_cmp_eq_u32 s{t1}, 4', f's_cselect_b32 s{t0}, 64, s{t0}', f's_cselect_b32 s{t1}, s{sGo}, 16'])
    I(f'v_and_b32 v4, 1, v{vL}'); I(f'v_mul_u32_u24 v4, s{t1}, v4'); I(f's_movk_i32 s{t1}, 1280'); I(f'v_mad_u32_u24 v213, v5, s{t1}, v4')
    sacc(t0,t2)
    I([f's_cmp_lt_u32 s2, 200', f's_cselect_b32 s{sGo}, s{t0}, {OOB}'])
    I(f's_lshl_b32 s{t0}, s{sDm}, 6'); sadd(sDl,t0,WS_KVA)
    I(f'v_lshlrev_b32 v217, 2, v{vL}'); vconst(212,0)
def setupPF():
    I(f's_lshr_b32 s{t0}, s2, 3'); I(f's_lshl_b32 s{t0}, s{t0}, 2'); sacc(t0,sW)
    I(f's_lshl_b32 s{t1}, s{t0}, 3'); I(f'v_and_b32 v4, 7, v{vL}'); I(f'v_add_u32 v4, s{t1}, v4'); I(f'v_lshrrev_b32 v5, 4, v4'); I(f'v_and_b32 v4, 15, v4')
    I(f'v_lshl_add_u32 v4, v5, 5, v4'); I(f's_bfe_u32 s{t1}, s2, 0x10002'); I(f's_lshl_b32 s{t1}, s{t1}, 4'); I(f'v_add_u32 v4, s{t1}, v4'); I(f'v_mul_u32_u24 v10, 1280, v4')
    smul(t1,t0,5); I(f'v_subrev_u32 v4, 8, v{vL}'); I(f'v_add_u32 v4, s{t1}, v4'); I(f'v_min_u32 v4, 575, v4')
    I(f'v_mul_u32_u24 v5, 0x1c72, v4'); I(f'v_lshrrev_b32 v5, 16, v5'); I(f'v_mul_u32_u24 v6, 9, v5'); I(f'v_sub_u32 v6, v4, v6')
    I(f'v_mul_u32_u24 v7, 86, v6'); I(f'v_lshrrev_b32 v7, 8, v7'); I(f'v_mul_u32_u24 v8, 3, v7'); I(f'v_sub_u32 v8, v6, v8')
    I(f'v_mul_u32_u24 v5, 3840, v5'); I(f'v_mul_u32_u24 v7, 1280, v7'); I(f'v_lshlrev_b32 v8, 7, v8'); I(f'v_add3_u32 v5, v5, v7, v8')
    I(f's_and_b32 s{t2}, s2, 3'); smul(t1,t2,320); I(f's_and_b32 s{t1}, s{t1}, {0xffffff80}'); I(f'v_add_u32 v11, s{t1}, v5')
    I(f's_lshl_b32 s{t1}, s{t0}, 1'); I(f'v_subrev_u32 v4, 13, v{vL}'); I(f'v_add_u32 v4, s{t1}, v4'); I(f'v_min_u32 v4, 159, v4')
    I(f'v_lshlrev_b32 v5, 7, v4'); vconst(6,102400-10240); I(f'v_cmp_lt_u32 vcc, 79, v4'); I(f'v_cndmask_b32 v6, 0, v6, vcc'); I(f'v_add_u32 v5, v5, v6')
    smul(t1,t2,204800); I(f'v_add_u32 v12, s{t1}, v5')
    I(f'v_cmp_gt_u32 s[{t4}:{t5}], 8, v{vL}'); I(f'v_cmp_gt_u32 vcc, 13, v{vL}')
    I(f'v_cndmask_b32 v11, v12, v11, vcc'); I(f'v_cndmask_b32 v10, v11, v10, s[{t4}:{t5}]')
    for d,(x_,w_,f_) in ((96,(sK,sK+8,sTAB)),(97,(sK+1,sK+9,sTAB+1))):
        I(f'v_mov_b32 v4, s{f_}'); I(f'v_mov_b32 v5, s{w_}'); I(f'v_mov_b32 v6, s{x_}'); I(f'v_cndmask_b32 v4, v4, v5, vcc'); I(f'v_cndmask_b32 v{d}, v4, v6, s[{t4}:{t5}]')
    vconst(4,10240); vconst(5,64*3840); I(f'v_cndmask_b32 v4, v4, v5, vcc'); vconst(5,128); I(f'v_cndmask_b32 v98, v4, v5, s[{t4}:{t5}]')
    I(f'v_lshl_add_u32 v10, v98, 1, v10')
    I([f'v_add_co_u32 v96, vcc, v96, v10', f'v_addc_co_u32 v97, vcc, 0, v97, vcc'])
def pf(adv=True):
    L=['s_mov_b64 exec, 0x7fff', f'global_load_dword v99, v[96:97], off {PFPOL}', 's_mov_b64 exec, -1']
    if adv: L+=['v_add_co_u32 v96, vcc, v96, v98', 'v_addc_co_u32 v97, vcc, 0, v97, vcc']
    return L
def setup1():
    I([f's_add_u32 s{t0}, s{sK+18}, {WS_E}', f's_addc_u32 s{t1}, s{sK+19}, 0', f's_load_dword s{sTag}, s[{t0}:{t1}], 0'])
    mksrd(sWR,sK+2,1314816); mksrd(sWI,sK+4,1314816); mksrd(sGATE,sK+12,1280); mksrd(sOUT,sK+14,2621440)
    vconst(5,0); I(f'v_lshlrev_b32 v4, 2, v{vN}'); I(f'v_add_u32 v4, {L_FLG}, v4'); I(f'ds_write_b32 v4, v5')
    I(f'v_lshrrev_b32 v4, 1, v{vN}'); I(f'v_xor_b32 v4, v4, v{vG}'); I(f'v_lshlrev_b32 v4, 4, v4')
    I(f'v_lshl_add_u32 v4, v{vN}, 7, v4'); I(f's_lshl_b32 s{t0}, s{sWr}, 13'); I(f'v_add_u32 v{vRA}, s{t0}, v4'); I(f'v_xor_b32 v{vRA+1}, 64, v{vRA}')
    I(f'v_lshrrev_b32 v4, 2, v{vL}'); I(f'v_mul_u32_u24 v4, 160, v4'); I(f'v_and_b32 v5, 3, v{vL}'); I(f'v_lshlrev_b32 v5, 3, v5'); I(f'v_add_u32 v4, v4, v5')
    smul(t0,sWc,80); smul(t1,sWc,10256)
    I([f's_cmp_eq_u32 s{sTyp}, 0', f's_cselect_b32 s{t0}, s{t0}, s{t1}', f's_cselect_b32 s{t1}, {SEG1-SEG0-80}, 0']); sadd(t0,t0,SEG0)
    I(f'v_add_u32 v{vRB}, s{t0}, v4'); I(f'v_add_u32 v{vRB+1}, 32, v{vRB}')
    I(f'v_mov_b32 v6, s{t1}'); I(f'v_cmp_lt_u32 vcc, 8, v5'); I(f'v_cndmask_b32 v6, 0, v6, vcc'); I(f'v_add3_u32 v{vRB+2}, v{vRB}, v6, 64')
    I(f'v_add_u32 v4, s{t1}, v{vRB}'); I(f'v_add_u32 v{vRB+3}, 96, v4'); I(f'v_add_u32 v{vRB+4}, 0x80, v4')
    I(f's_lshr_b32 s{t0}, s{sRb}, 1'); I(f's_lshl_b32 s{t0}, s{t0}, 3'); sacc(t0,sGrp)
    I(f's_lshr_b32 s{t1}, s{t0}, 4'); sadd(t1,t1,16)
    I(f's_and_b32 s{t2}, s{t0}, 15'); I(f's_lshl_b32 s{t2}, s{t2}, 1'); sacc(t2,sWr)
    I(f's_lshl_b32 s{t0}, s{sGrp}, 2'); sacc(t0,sW)
    I([f's_cmp_eq_u32 s{sTyp}, 0', f's_cselect_b32 s{sT}, s{t0}, s{t2}', f's_cselect_b32 s{sCh}, s{sRb}, s{t1}'])
    I(f's_or_b32 s{t0}, s{sRb}, s{sWc}'); I(f's_and_b32 s{t0}, s{t0}, s{sTyp}'); I(f's_xor_b32 s{sAct}, s{t0}, 1')
    I(f's_lshl_b32 s{t0}, s{sCh}, 6'); I([f's_cmp_ge_u32 s{sCh}, 10', f's_cselect_b32 s{t1}, 638, 0']); I(f's_sub_u32 s{t0}, s{t0}, s{t1}')
    I([f's_cmp_eq_u32 s{sAct}, 1', f's_cselect_b32 s{t0}, s{t0}, {OOB}'])
    I(f's_mov_b32 s{t1}, {256*642}'); I(f'v_lshlrev_b32 v10, 2, v{vN}'); I(f'v_add_u32 v10, s{t0}, v10')
    I(f'v_mad_u32_u24 v{vWp}, v{vG}, s{t1}, v10'); I(f'v_sub_u32 v11, 3, v{vG}'); I(f'v_mad_u32_u24 v{vWm}, v11, s{t1}, v10')
    I(f's_movk_i32 s{t2}, 1024')
    I([f's_cmp_eq_u32 s{sT}, 0', f's_cselect_b32 s{t0}, {1024*642}, 0', f's_cselect_b32 s{t2}, 32, s{t2}'])
    I(f'v_mov_b32 v11, s{t0}'); I(f'v_cmp_eq_u32 vcc, 0, v{vG}'); I(f'v_cndmask_b32 v11, 0, v11, vcc'); I(f'v_sub_u32 v11, {256*642}, v11'); I(f'v_add_u32 v{vWm0}, v{vWm}, v11')
    sacc(t2,sT); smul(sB0,sT,642); smul(sB1,t2,642)
    I(f'v_mul_u32_u24 v4, {64*642}, v{vN}'); I(f'v_mov_b32 v5, s{sB0}'); I(f'v_mov_b32 v6, s{sB1}')
    I(f'v_and_b32 v7, 16, v{vL}'); I(f'v_cmp_eq_u32 vcc, 0, v7'); I(f'v_cndmask_b32 v5, v6, v5, vcc'); I(f'v_add_u32 v4, v4, v5')
    I(f'v_sub_u32 v5, {2048*642}, v4'); vconst(6,1024*642); I(f'v_cmp_eq_u32 vcc, 0, v4'); I(f'v_cndmask_b32 v5, v5, v6, vcc')
    I(f'v_cmp_gt_u32 vcc, 32, v{vL}'); I(f'v_cndmask_b32 v4, v5, v4, vcc')
    I([f's_cmp_eq_u32 s{sCh}, 0', f's_cselect_b32 s{t0}, 0, {OOB}']); I(f'v_add_u32 v254, s{t0}, v4')
    for i in range(4): vconst(vE0+i,OOB)
    smul(t0,sWr,KA); smul(t1,sWr,KB); sadd(t1,t1,2*KA); I([f's_cmp_eq_u32 s{sWc}, 0', f's_cselect_b32 s{sRot}, s{t0}, s{t1}', f's_cselect_b32 s{t2}, {5*KA-1}, {5*KB-1}'])
    smul(t0,sCt,5120); smul(t1,sRot,40960); sacc(t0,t1); sadd(sGb,t0,WS_WOF); sadd(sGe,sGb,KB*40960)
    if R3:
        if E('P3MAP',1)==0: smul(t0,sCt,10); I(f's_lshr_b32 s85, s{t0}, 3')
        else: I(f's_and_b32 s{t0}, s{sCt}, 3'); smul(t0,t0,10); I(f's_lshr_b32 s85, s{t0}, 2')
    else: I('s_mov_b32 s85, 0')
    I(f's_min_u32 s84, s85, {KB-1}'); I([f's_cmp_eq_u32 s{sWc}, 0', f's_cselect_b32 s84, 0, s84'])
    smul(t0,84,40960); I(f's_add_u32 s{sGo}, s{sGb}, s{t0}')
    I(f'v_min_u32 v9, s{t2}, v{vL}')
    I(f'v_lshlrev_b32 v4, 3, v{vL}'); I(f's_lshl_b32 s{t0}, s{sW}, 10'); sadd(t0,t0,L_PP); I(f'v_add_u32 v213, s{t0}, v4')
    I(f's_lshl_b32 s{t0}, s{sDm}, 10'); sadd(t0,t0,WS_WOF); I([f's_cmp_lt_u32 s2, 200', f's_cselect_b32 s{sB0+3}, s{t0}, {OOB}'])
    I(f's_lshl_b32 s{t0}, s{sDm}, 2'); sadd(t0,t0,WS_FL+FL_E*128); I(f'v_mov_b32 v217, s{t0}')
    I(f'v_mov_b32 v4, v9'); I(f'v_mul_u32_u24 v5, 52, v4'); I(f'v_lshrrev_b32 v5, 8, v5'); I(f'v_mad_u32_u24 v4, v5, 35, v4')
    smul(t0,sRot,40); smul(t1,sCt,5); sacc(t0,t1); I(f'v_add_u32 v4, s{t0}, v4'); I(f'v_lshlrev_b32 v4, 2, v4'); I(f'v_add_u32 v196, {WS_FL+FL_E*128}, v4')
    I(f's_lshl_b32 s{t0}, s{sGrp}, 1'); sacc(t0,sWc); I(f's_lshl_b32 s{t0}, s{t0}, 8'); sadd(t0,t0,WS_FL+FL_E*128)
    I(f'v_lshlrev_b32 v4, 2, v{vL}'); I(f'v_add_u32 v197, s{t0}, v4')
    if PW:
        smul(t0,sDm,1408); I(f'v_lshlrev_b32 v4, 7, v{vL}'); I(f'v_add_u32 v5, s{t0}, v4'); vconst(7,OOB>>1); I(f'v_cmp_gt_u32 vcc, 11, v{vL}'); I(f'v_cndmask_b32 v98, v7, v5, vcc')
    if POI:
        smul(t0,sWr,16*81920); I(f's_lshl_b32 s{t1}, s{sCh}, 12'); sacc(t0,t1)
        I(f's_lshr_b32 s{t1}, s{sT}, 1'); I(f's_lshl_b32 s{t1}, s{t1}, 8'); sacc(t0,t1); sadd(t0,t0,WS_R)
        I([f's_cmp_eq_u32 s{sAct}, 1', f's_cselect_b32 s86, s{t0}, 0x30000000'])
        I(f's_lshl_b32 s{t1}, s{sRb}, 1'); sacc(t1,sWr); smul(t1,t1,81920); sadd(t1,t1,WS_O)
        smul(t2,sGrp,10); I(f's_lshr_b32 s{t0}, s{t2}, 2'); I(f's_lshl_b32 s{t0}, s{t0}, 12'); sacc(t1,t0); I(f's_and_b32 s{t0}, s{t2}, 3'); I(f's_lshl_b32 s{t0}, s{t0}, 8'); sacc(t1,t0)
        I(f's_and_b32 s{t0}, s{sTyp}, s{sWc}'); I(f's_mov_b32 s87, {4*81920}'); I(f's_mov_b32 s93, 0x30000000'); I(f's_mov_b32 s{t4}, 81920')
        I([f's_cmp_eq_u32 s{t0}, 1', f's_cselect_b32 s86, s{t1}, s86', f's_cselect_b32 s87, 256, s87', f's_cselect_b32 s93, 3072, s93', f's_cselect_b32 s92, s{t2}, 0', f's_cselect_b32 s{t4}, 1024, s{t4}'])
        I(f'v_lshlrev_b32 v255, 4, v{vN}'); I(f'v_mad_u32_u24 v255, v{vG}, s{t4}, v255')
        for i in range(4): vconst(176+i,-1)
    I(f'v_lshlrev_b32 v218, 4, v{vL}'); I(f'v_add_u32 v219, 0x1000, v218')
weave([dmaB(i) for i in range(5)]+[dma_adv(SLOT)],cap(setup0))
I(f's_lshl_b32 s{t0}, s{sW}, 10'); I(f's_add_u32 m0, s{t0}, {L_PP}'); I(f'buffer_load_dwordx4 v213, {srd(sWO)}, s{sGo} offen lds')
I('s_mov_b64 exec, 0xffff'); I(f'buffer_store_dword v212, v217, {srd(sWS)}, s{sDl} offen sc1'); I('s_mov_b64 exec, -1')
A1AT=E('A1AT',4); B1AT=E('B1AT',0); A2AT=E('A2AT',-1)
gA1=[dmaA(i) for i in range(4)]+[advA(SLOT)]; gB1=[dmaB(i) for i in range(5)]+[advB(SLOT)]
stamp(5)
if PFX:
    setupPF()
    for _ in range(LEAD-2): emit(pf())
if A1AT==7: weave(cap(setup1),gA1)
else: setup1()
I(f's_cmp_eq_u32 s{sTyp}, 0'); I('s_cbranch_scc0 LsetFQ')
I(f's_lshl_b32 s{t0}, s{sWc}, 13'); smul(t1,sWr,1792); sacc(t0,t1); sadd(t0,t0,L_RED)
I(f'v_lshlrev_b32 v4, 2, v{vL}'); I(f'v_add_u32 v{vE0}, s{t0}, v4')
I(f's_lshl_b32 s{t0}, s{sGrp}, 1'); sacc(t0,sWc); I(f's_lshl_b32 s{t0}, s{t0}, 12'); sacc(t0,t1); sadd(t0,t0,WS_KVA)
I(f'v_add_u32 v{vE0+1}, s{t0}, v4')
I(f's_cmp_eq_u32 s{sWr}, 0'); I(f's_cselect_b32 s{t1}, 64, 8'); I(f'v_cmp_gt_u32 vcc, s{t1}, v{vL}')
I(f'v_cndmask_b32 v{vE0+2}, v{vE0+2}, v{vE0+1}, vcc')
I(f's_lshl_b32 s{t0}, s{sGrp}, 2'); sacc(t0,sW); I(f's_lshl_b32 s{t0}, s{t0}, 4'); sacc(t0,sRb)
I(f's_lshl_b32 s{t0}, s{t0}, 7'); sadd(t0,t0,WS_FL+FL_KV*128); I(f'v_mov_b32 v{vE0+3}, s{t0}')
I('s_branch Lsetdone')
lab('LsetFQ')
I(f's_cmp_eq_u32 s{sWc}, 0'); I('s_cbranch_scc0 Lsetdone')
I(f's_lshl_b32 s{t0}, s{sRb}, 1'); sacc(t0,sWr); smul(t0,t0,5120); smul(t1,sGrp,640); sacc(t0,t1)
I(f's_mov_b32 s{t1}, 163840'); I(f'v_lshlrev_b32 v4, 3, v{vN}'); I(f'v_mad_u32_u24 v4, v{vG}, s{t1}, v4'); I(f'v_add_u32 v{vE0}, s{t0}, v4')
I(f's_lshl_b32 s{t0}, s{sGrp}, 1'); sacc(t0,sWr); I(f's_lshl_b32 s{t0}, s{t0}, 4'); sacc(t0,sRb)
I(f's_lshl_b32 s{t0}, s{t0}, 7'); sadd(t0,t0,WS_FL+FL_Y*128); I(f'v_mov_b32 v{vE0+3}, s{t0}')
lab('Lsetdone')
AT1,AT2=192,224
TBL=[f's_cmp_eq_u32 s{sTyp}, 0','s_cbranch_scc0 LefF',f's_mov_b32 s{t0}, {TB.KA_OFF}']+[f'buffer_load_dwordx4 {v(vKA+4*i,4)}, v218, {srd(sTAB)}, s{t0} offen offset:{1024*i}' for i in range(2)]+['s_branch LefT','LefF:',
   f's_cmp_eq_u32 s{sWc}, 0','s_cbranch_scc0 Lnotb',f's_mov_b32 s{t0}, {TB.D1_OFF}',f's_mov_b32 s{t1}, {TB.D1_OFF+4096}']+[f'buffer_load_dwordx4 {a_(120+4*i,4)}, v218, {srd(sTAB)}, s{t0+i//4} offen offset:{1024*(i%4)}' for i in range(8)]+['LefT:',
   f's_cmp_eq_u32 s{sWc}, 0','s_cbranch_scc0 LefU',f's_mov_b32 s{t0}, {TB.D2_OFF}',f's_mov_b32 s{t1}, {TB.D2_OFF+4096}']+[f'buffer_load_dwordx4 {a_(160+4*i,4)}, v218, {srd(sTAB)}, s{t0+i//4} offen offset:{1024*(i%4)}' for i in range(8)]+['LefU:',
   f's_cmp_eq_u32 s{sT}, 0','s_cbranch_scc0 Lnotb']+sum([([f's_mov_b32 s{t0}, {TB.T1_OFF+1024*i}'] if i%4==0 else [])+[f'buffer_load_dwordx4 {a_(AT1+4*i,4)}, v218, {srd(sTAB)}, s{t0} offen offset:{1024*(i%4)}'] for i in range(16)],[])+['Lnotb:']
emit(TBL)
def fhex(x): return hex(struct.unpack('<I',struct.pack('<f',x))[0])
GP,G1,G16,GA,GS,GT=100,106,112,118,119,120
smul(t0,sWc,160); sacc(t0,sWr); I(f'v_lshlrev_b32 v{GT+3}, 3, v{vG}'); I(f'v_add_u32 v{GT+3}, s{t0}, v{GT+3}')
smul(t1,sCt,40)
for nt in range(3):
    d_,p_=GT+4,GT+5
    if nt<2: I(f'v_add_u32 v{d_}, {16*nt}, v{vN}')
    else: I(f'v_and_b32 v{d_}, 7, v{vN}'); I(f'v_add_u32 v{d_}, 32, v{d_}')
    I(f'v_add_u32 v{d_}, s{t1}, v{d_}'); I(f'v_mul_u32_u24 v{p_}, v{d_}, v{GT+3}'); I(f'v_cvt_f32_u32 v{p_}, v{p_}'); I(f'v_cvt_f32_u32 v{d_}, v{d_}')
    I(f'v_mul_f32 v{GT}, {fhex(1/640)}, v{p_}'); I(f'v_cos_f32 v{GP+2*nt}, v{GT}'); I(f'v_sin_f32 v{GP+2*nt+1}, v{GT}')
    I(f'v_mul_f32 v{GT+1}, {fhex(1/320)}, v{d_}'); I(f'v_cos_f32 v{G1+2*nt}, v{GT+1}'); I(f'v_sin_f32 v{G1+2*nt+1}, v{GT+1}')
    I(f'v_mul_f32 v{GT+2}, {fhex(1/20)}, v{d_}'); I(f'v_cos_f32 v{G16+2*nt}, v{GT+2}'); I(f'v_sin_f32 v{G16+2*nt+1}, v{GT+2}')
I(f'v_and_b32 v{GS}, 1, v{vN}'); I(f'v_lshlrev_b32 v{GS}, 31, v{GS}'); I(f'v_xor_b32 v{GS}, 0xbf800000, v{GS}')
I(f's_cmp_eq_u32 s{sW}, 0'); I(f's_cselect_b32 s{sEx}, 0xffff, 0'); I(f's_mov_b32 s{sEx+1}, 0')
smul(t0,sWr,30720); smul(t1,sWc,15360); sacc(t0,t1); sadd(t0,t0,L_G); I(f'v_add_u32 v{GA}, s{t0}, v218')
def rot(d,p,r,dd=None):
    dd=d if dd is None else dd
    I(f'v_pk_mul_f32 {v(d,2)}, {v(p,2)}, {v(r,2)} op_sel_hi:[1,0]')
    I(f'v_pk_fma_f32 {v(dd,2)}, {v(p,2)}, {v(r,2)}, {v(d,2)} op_sel:[1,1,0] op_sel_hi:[0,1,1] neg_lo:[0,1,0]')
stamp(6)
if A1AT==6: emit(gA1)
if B1AT==6: emit(gB1)
I(f's_mov_b32 s{sCnt}, 5'); lab('Lgg')
for nt in range(3):
    T=GT+nt*12; P0=GP+2*nt
    rot(T,P0,G1+2*nt); rot(T+2,T,G1+2*nt); rot(T+4,T+2,G1+2*nt)
    I(f'v_cndmask_b32 v{T+6}, v{P0+1}, v{GS}, s[{sEx}:{sEx+1}]')
    I(f'v_cvt_pk_bf16_f32 v{T+8}, v{P0}, v{T}'); I(f'v_cvt_pk_bf16_f32 v{T+9}, v{T+2}, v{T+4}')
    I(f'v_cvt_pk_bf16_f32 v{T+10}, -v{T+6}, -v{T+1}'); I(f'v_cvt_pk_bf16_f32 v{T+11}, -v{T+3}, -v{T+5}')
    I(f'ds_write_b128 v{GA}, {v(T+8,4)} offset:{1024*nt}')
    rot(T,P0,G16+2*nt,P0)
I(f'v_add_u32 v{GA}, 0xc00, v{GA}'); I(f's_mov_b32 s{sEx}, 0')
for at,grp_,nm in ((A1AT,gA1,'a'),(B1AT,gB1,'b'),(A2AT,gA1,'c')):
    if 1<=at<=5:
        I(f's_cmp_eq_u32 s{sCnt}, {at}'); I(f's_cbranch_scc0 Lgg{nm}'); emit(grp_); lab(f'Lgg{nm}')
I(f's_sub_u32 s{sCnt}, s{sCnt}, 1'); I(f's_cmp_lg_u32 s{sCnt}, 0'); I(f's_cbranch_scc1 Lgg')
AT1,AT2=192,224
stamp(7)
def tgen():
    TM=120; k=[0]
    def put(a,x,y):
        t=156+(k[0]&3); k[0]+=1
        I(f'v_cvt_pk_bf16_f32 v{t}, {x}, {y}'); I(f'v_accvgpr_write_b32 a{a}, v{t}'); return t
    I(f'v_lshlrev_b32 v4, 6, v{vN}'); I(f'v_add_u32 v4, s{sT}, v4'); I(f'v_cvt_f32_u32 v4, v4'); I(f'v_mul_f32 v4, 0x3a000000, v4'); I(f'v_add_f32 v5, 0.5, v4')
    I(f'v_lshlrev_b32 v6, 2, v{vG}'); I(f'v_cvt_f32_u32 v6, v6')
    for ks in range(2):
        for j in range(4):
            if 16*ks+j: I(f'v_add_f32 v7, {fhex(float(16*ks+j))}, v6')
            n2r=7 if 16*ks+j else 6
            for mh in range(2):
                c,s_=TM+4*mh,TM+4*mh+1
                I(f'v_mul_f32 v{s_}, v{4+mh}, v{n2r}'); I(f'v_cos_f32 v{c}, v{s_}'); I(f'v_sin_f32 v{s_}, v{s_}')
            for mh in range(2):
                c,s_=TM+4*mh,TM+4*mh+1
                put(AT1+(mh*2+ks)*4+j,f'v{c}',f'-v{s_}'); put(AT1+((2+mh)*2+ks)*4+j,f'v{s_}',f'v{c}')
    I(f'v_lshlrev_b32 v4, 8, v{vG}'); I(f'v_add_u32 v4, s{sT}, v4'); I(f'v_cvt_f32_u32 v4, v4'); I(f'v_mul_f32 v4, 0x3a000000, v4')
    I(f'v_cvt_f32_u32 v6, v{vN}'); I(f'v_add_f32 v7, 0x41800000, v6')
    for ks in range(2):
        for e in range(4):
            cst=0.5*ks+e/32.0
            if cst: I(f'v_add_f32 v5, {fhex(cst)}, v4')
            kr=5 if cst else 4
            for h in range(2):
                c,s_=TM+h*8+e,TM+h*8+4+e
                I(f'v_mul_f32 v{s_}, v{kr}, v{6+h}'); I(f'v_cos_f32 v{c}, v{s_}'); I(f'v_sin_f32 v{s_}, v{s_}')
        for h in range(2):
            c,s_=TM+h*8,TM+h*8+4; u0=AT2+(h*2+ks)*4; u1=AT2+((2+h)*2+ks)*4
            for p in range(2):
                t=put(u0+p,f'v{c+2*p}',f'v{c+2*p+1}'); I(f'v_accvgpr_write_b32 a{u1+2+p}, v{t}')
                put(u0+2+p,f'v{s_+2*p}',f'v{s_+2*p+1}'); put(u1+p,f'-v{s_+2*p}',f'-v{s_+2*p+1}')
TGL=cap(tgen)
if TGF:
    I(f's_cmp_eq_u32 s{sAct}, 0'); I('s_cbranch_scc1 Lnotg'); emit(TGL)
lab('Lnotg')
stamp(8)
if B1AT==0: emit(gB1)
if A2AT==0: emit(gA1)
stamp(1)
def reads(F,ks):
    L=[]
    for mt in range(4): L.append(f'ds_read_b128 {v(F["A"]+4*mt,4)}, v{vRA+ks} offset:{2048*mt}')
    for nt in range(5):
        for h in range(2): L.append(f'ds_read_b64_tr_b16 {v(F["B"]+4*nt+2*h,2)}, v{vRB+nt} offset:{(32*ks+16*h)*160}')
    return L
def mfmas(F,z=False):
    L=[]
    for nt in range(5):
        for mt in range(4):
            c=v(ACC+(mt*5+nt)*4,4); L.append(f'{MF} {c}, {v(F["A"]+4*mt,4)}, {v(F["B"]+4*nt,4)}, {"0" if z else c}')
    return L
def block(M,R,X,pos):
    slots=[[] for _ in M]
    for g,x in R: slots[g].append(x)
    for g,x in zip(pos,X): slots[g].append(x)
    for m,s_ in zip(M,slots): I(m); emit(s_)
def adds(d): return [f'v_add_u32 v{r}, {d}, v{r}' for r in [vRA,vRB,vRB+1,vRB+2,vRB+3,vRB+4,vRA+1]]
I(f's_mov_b32 s{sCnt}, 0')
I(f's_waitcnt vmcnt({13 if A2AT>=0 else 9}) lgkmcnt(0)'); I('s_barrier')
I(f's_add_u32 s{sTag}, s{sTag}, 0x9e3779b9')
stamp(3)
I('ds_read_b64_tr_b16 v[4:5], v213'); I('ds_read_b64_tr_b16 v[6:7], v213 offset:512')
emit(reads(FX,0)[:12])
I(f'v_mov_b32 v212, s{sTag}')
I('s_waitcnt lgkmcnt(12)'); I(f'buffer_store_dwordx4 v[4:7], v218, {srd(sWS)}, s{sB0+3} offen sc1')
emit(reads(FX,0)[12:])
def itertop(i=None):
    if TS and i==7: stamp(11)
    if TS and E('ITS',0):
        if i is None: I(f's_add_u32 m0, s{sCnt}, 48'); stamp('m0')
        else: stamp(48+i)
    I('s_waitcnt lgkmcnt(0)')
smul(t0,sWr,30720); sadd(t0,t0,L_G); I(f'v_add_u32 v8, s{t0}, v218')
GR=[f'ds_read_b128 {a_(4*i,4)}, v8 offset:{i*1024}' for i in range(30)]
I(f's_cmp_eq_u32 s{sWc}, 0'); I('s_cbranch_scc0 Lit0b')
I('s_waitcnt lgkmcnt(0)')
block(mfmas(FX,True),[(i*20//44,r) for i,r in enumerate(reads(FY,1)+GR)]+[(i*20//32,f'v_mov_b32 v{WP+i}, 0') for i in range(32)],gA1,[1,6,11,16,17])
I('s_branch Lit0c')
lab('Lit0b')
I('s_waitcnt lgkmcnt(0)')
block(mfmas(FX,True),list(enumerate(reads(FY,1)))+[(i*20//32,f'v_mov_b32 v{WP+i}, 0') for i in range(32)],([] if A2AT>=0 else gA1),[1,6,11,16,17])
lab('Lit0c')
I(f's_waitcnt vmcnt(5) lgkmcnt(0)'); I('s_barrier')
ad=adds(SLOT)
R2=[(0,ad[0]),(0,ad[1]),(1,ad[2]),(1,ad[3]),(2,ad[4]),(2,ad[5]),(3,ad[6])]+[(i+2,r) for i,r in enumerate(reads(FX,0))]
block(mfmas(FY),R2,[dmaB(i) for i in range(5)]+[advB(SLOT)+(pf() if PFX else [])+([f's_mov_b32 s{t2}, {OOB}', f'buffer_load_dword v99, v98, {srd(sWR)}, s{t2} offen', f'buffer_load_dword v99, v98, {srd(sWI)}, s{t2} offen'] if PW else [])]+[dmaA(i) for i in range(4)]+[advA(-3*SLOT)],[0,2,4,6,8,9,10,12,14,16,17])
I(f's_mov_b32 s{sCnt}, 1')
POS=E('POS',0)
PB_,PA_={0:([1,5,9,13,16],[1,6,11,16]),1:([0,1,2,3,4],[0,1,2,3]),2:([0,2,4,6,8],[0,2,4,6]),3:([0,3,6,9,12],[0,3,6,9]),4:([6,9,12,14,16],[7,10,13,16])}[POS]
lab('Lmain')
itertop()
pre=[f's_add_u32 s{sCnt}, s{sCnt}, 1', f's_mov_b32 s{sDl}, {SLOT}', f's_mov_b32 s{sDm}, {SLOT}',
     f's_and_b32 s{t0}, s{sCnt}, 3', f's_cselect_b32 s{sDl}, s{sDl}, {-3*SLOT}', f's_cmp_eq_u32 s{t0}, 1', f's_cselect_b32 s{sDm}, {-3*SLOT}, s{sDm}']
eflag=[f's_cmp_eq_u32 s{sCnt}, {3 if HALF else 2}','s_cbranch_scc0 Lnoef','s_mov_b64 exec, 1',f'buffer_store_dword v212, v217, {srd(sWS)}, 0 offen sc1','s_mov_b64 exec, -1','Lnoef:']
ad=adds(f's{sDl}')
R2=[(0,ad[0]),(0,ad[1]),(1,ad[2]),(1,ad[3]),(2,ad[4]),(2,ad[5]),(3,ad[6])]+[(i+2,r) for i,r in enumerate(reads(FX,0))]
if HALF:
    preH=pre+[f's_mov_b32 s{t1}, {SLOT}', f's_cmp_eq_u32 s{t0}, 2', f's_cselect_b32 s{t1}, {-3*SLOT}, s{t1}']+advB(f's{t1}')
    pfl=([[f's_cmp_eq_u32 s{sCnt}, {10-LEAD}','s_cbranch_scc0 Lpfk','v_mov_b32 v98, 0','Lpfk:']+pf()] if PFX else [])
    if PW:
        pfl=[[f's_movk_i32 s{t2}, 0', f's_cmp_eq_u32 s{sCnt}, {PW+1}', f's_cselect_b32 s{t2}, s{t2}, {OOB}', f'buffer_load_dword v99, v98, {srd(sWR)}, s{t2} offen', f'buffer_load_dword v99, v98, {srd(sWI)}, s{t2} offen']]
    block(mfmas(FX),list(enumerate(reads(FY,1))),[dmaB(i) for i in range(5)]+[preH]+pfl,PB_+[17,18])
    I(f's_waitcnt vmcnt({11 if PFX else (13 if PW else 9)}) lgkmcnt(0)'); I('s_barrier')
    block(mfmas(FY),R2,[dmaA(i) for i in range(4)]+[advA(f's{sDm}'),eflag],PA_+[18,19])
else:
    block(mfmas(FX),list(enumerate(reads(FY,1))),[dmaA(i) for i in range(4)]+[pre],[1,6,11,16,18])
    I('s_waitcnt vmcnt(13) lgkmcnt(0)'); I('s_barrier')
    block(mfmas(FY),R2,[dmaB(i) for i in range(5)]+[dma_adv(f's{sDm}'),eflag],[1,5,9,13,17,18,19])
I(f's_cmp_lt_u32 s{sCnt}, 7'); I('s_cbranch_scc1 Lmain')
def wload(base,vp,vm,vm0,i,which):
    mh,r=i>>2,i&3; sb=(sB0,sB1)[mh]
    if which==0:
        return [f's_add_u32 s{t2}, s{sb}, {64*r*642}', f'buffer_load_short_d16_hi v{base+i}, v{vp}, {srd(sWR)}, s{t2} offen {POLW}', f'buffer_load_short_d16_hi v{base+8+i}, v{vp}, {srd(sWI)}, s{t2} offen {POLW}']
    m=vm0 if i==0 else vm
    return [f's_sub_u32 s{t2}, {(1280-64*r-(256 if i==0 else 0))*642}, s{sb}', f'buffer_load_short_d16_hi v{base+16+i}, v{m}, {srd(sWR)}, s{t2} offen {POLW}', f'buffer_load_short_d16_hi v{base+24+i}, v{m}, {srd(sWI)}, s{t2} offen {POLW}']
WL=[wload(WP,vWp,vWm,vWm0,i,w) for i in range(8) for w in range(2)]
PST=[[f'buffer_store_dwordx4 v[176:179], v255, {srd(sWS)}, s86 offen sc1', 's_add_u32 s86, s86, s87', 's_add_u32 s92, s92, 1', f's_and_b32 s{t1}, s92, 3', f's_cselect_b32 s{t1}, 0, s93', f's_add_u32 s86, s86, s{t1}'] for _ in range(10)] if POI else []
pplan={(7,0):0,(7,1):4,(8,0):3,(8,1):3,(9,0):0,(9,1):0}; pl_=0
wl=0; vm=0
W3L=['v_mov_b32 v252, 0','v_mov_b32 v253, 0',f'buffer_load_short_d16_hi v252, v254, {srd(sWR)}, 0 offen offset:640 {POLW}',f'buffer_load_short_d16_hi v253, v254, {srd(sWI)}, 0 offen offset:640 {POLW}']
FLG=[f'buffer_load_dword v198, v196, {srd(sWS)}, 0 offen sc1', f'buffer_load_dword v199, v197, {srd(sWS)}, 0 offen sc1']
plan={16:{(7,0):0,(7,1):3,(8,0):4,(8,1):4,(9,0):3,(9,1):2},8:{(7,0):0,(7,1):1,(8,0):2,(8,1):2,(9,0):2,(9,1):1},10:{(7,0):0,(7,1):2,(8,0):2,(8,1):2,(9,0):2,(9,1):2}}[WS1]
def pos(n,a=2,b=17): return [a+(b-a)*i//max(n-1,1) for i in range(n)]
for s_ in (7,8,9):
    itertop(s_)
    X=WL[wl:wl+plan[(s_,0)]]; wl+=plan[(s_,0)]
    X=PST[pl_:pl_+pplan[(s_,0)]]+X; pl_+=len(PST[pl_:pl_+pplan[(s_,0)]])
    if s_==7: X=([dmaB(i) for i in range(5)] if HALF else [])+[FLG]+X
    block(mfmas(FX),list(enumerate(reads(FY,1))),X,pos(len(X)))
    if s_==7: I(f's_waitcnt vmcnt({11+2*wl+(1 if PFX else (2 if PW else 0))}) lgkmcnt(0)')
    elif s_==8: I(f's_waitcnt vmcnt({2*wl+pl_}) lgkmcnt(0)')
    else: I('s_waitcnt lgkmcnt(0)')
    I('s_barrier')
    if s_<9:
        ad=adds(SLOT if s_==8 else -3*SLOT)
        R2=[(0,ad[0]),(0,ad[1]),(1,ad[2]),(1,ad[3]),(2,ad[4]),(2,ad[5]),(3,ad[6])]+[(i+2,r) for i,r in enumerate(reads(FX,0))]
    else: R2=[]
    X=WL[wl:wl+plan[(s_,1)]]; wl+=plan[(s_,1)]
    X=PST[pl_:pl_+pplan[(s_,1)]]+X; pl_+=len(PST[pl_:pl_+pplan[(s_,1)]])
    if s_==9: X=X+[W3L]
    block(mfmas(FY),R2,X,pos(len(X),3,18 if s_==9 else 16))
assert wl==WS1
I(f's_mov_b32 s{sAo}, 0x3fb8aa3b'); I(f's_mov_b32 s{sAo+1}, 0x358637bd')
I(f'v_cmp_ne_u32 vcc, s{sTag}, v198'); I(f'v_cmp_ne_u32 s[{t4}:{t5}], s{sTag}, v199'); I(f's_or_b64 vcc, vcc, s[{t4}:{t5}]'); I('s_cbranch_vccz Leok')
poll([196,197],198)
lab('Leok')
I('s_nop 3')
stamp(14)
def acc(mt,nt,r=0,n=1): return v(ACC+(mt*5+nt)*4+r,n)
def phi2(dst,src,tmp):
    I(f'v_pk_mul_f32 {v(tmp,2)}, {v(src,2)}, s[{sAo}:{sAo+1}] op_sel_hi:[1,0]')
    I(f'v_exp_f32 v{tmp}, v{tmp} clamp'); I(f'v_exp_f32 v{tmp+1}, v{tmp+1} clamp')
    I(f'v_max_f32 v{dst}, s{sAo+1}, v{src}'); I(f'v_max_f32 v{dst+1}, s{sAo+1}, v{src+1}')
    I(f'v_pk_add_f32 {v(dst,2)}, {v(dst,2)}, {v(tmp,2)}')
def bl(i,AB):
    ks,nt=divmod(i,5)
    L=[f'buffer_load_dwordx4 {a_(AB+4*i,4)}, v{218 if nt<4 else 219}, {srd(sWS)}, s{sGo} offen offset:{1024*(nt%4)}']
    return L+([f's_add_u32 s{sGo}, s{sGo}, 40960', f's_cmp_eq_u32 s{sGo}, s{sGe}', f's_cselect_b32 s{sGo}, s{sGb}, s{sGo}'] if nt==4 else [])
def bls(a,b,AB=0): return [bl(i,AB) for i in range(a,b)]
I(f's_cmp_eq_u32 s{sTyp}, 0'); I('s_cbranch_scc0 LepiFQ')
PK=100; VV=124; DD=148; PAIRS=TB.PAIRS
NB0=E('NB0',14); NB1=E('NB1',14)
def kvepi():
    for nt in (2,3,4):
        for mt in range(4):
            for p in range(2): I(f'v_cvt_pk_bf16_f32 v{VV+(nt-2)*8+mt*2+p}, {acc(mt,nt,2*p)}, {acc(mt,nt,2*p+1)}')
    I(f'v_cmp_gt_u32 vcc, 8, v{vN}'); vconst(4,0x3f803f80)
    I(f's_lshl_b32 s{t0}, s{sW}, 12'); sadd(t0,t0,L_RED)
    for i in range(8): I(f'v_cndmask_b32 v{VV+i}, v{VV+i}, v4, vcc')
    for i in range(8): I(f'v_add_u32 v{vKA+i}, s{t0}, v{vKA+i}')
    for nt in range(3):
        for mt in range(4):
            for p in range(2):
                b=ACC+(mt*5+nt)*4+2*p
                phi2(b,b,4+2*p); I(f'v_cvt_pk_bf16_f32 v{PK+nt*8+mt*2+p}, v{b}, v{b+1}')
        for kb in range(2):
            for i,(a,b) in enumerate(PAIRS):
                if a==nt: I(f'{MF} {v(DD+4*i,4)}, {v(PK+a*8+4*kb,4)}, {v(VV+(b-2)*8+4*kb,4)}, {"0" if kb==0 else v(DD+4*i,4)}')
        if nt>0:
            for i,(a,b) in enumerate(PAIRS):
                if a==nt-1: I(f'ds_write_b128 v{vKA+i}, {v(DD+4*i,4)}')
P=cap(kvepi)
def grp_if_b(L):
    uid[0]+=1; n=f'Lb{uid[0]}'
    return [f's_cmp_eq_u32 s{sWc}, 0', f's_cbranch_scc1 {n}']+L+[n+':']
NBE=E('NBE',0)
weave(P,[grp_if_b(bls(i,i+2)) for i in range(0,NBE,2)],0,len(P)*E('EPIF',70)//100)
for i,(a,b) in enumerate(PAIRS):
    if a==2: I(f'ds_write_b128 v{vKA+i}, {v(DD+4*i,4)}')
I('s_waitcnt lgkmcnt(0)'); I('s_barrier')
for i in range(7): I(f'ds_read2st64_b32 {v(16+2*i,2)}, v{vE0} offset0:{i} offset1:{i+16}')
for i in range(7):
    I(f's_waitcnt lgkmcnt({6-i})'); I(f'v_add_f32 v{16+2*i}, v{16+2*i}, v{17+2*i}')
    I(f'buffer_atomic_add_f32 v{16+2*i}, v{vE0+1+(i==6)}, {srd(sWS)}, 0 offen offset:{256*i} {ATP}')
stamp(15)
I('s_branch Lp2a')
lab('LepiFQ')
I(f's_cmp_eq_u32 s{sWc}, 0'); I('s_cbranch_scc0 LepiQ')
XB=100; YD=140
def xcv(nt):
    for mt in range(4):
        for p in range(2): I(f'v_cvt_pk_bf16_f32 v{XB+nt*8+mt*2+p}, {acc(mt,nt,2*p)}, {acc(mt,nt,2*p+1)}')
def ymf(nt):
    for kb in range(2):
        for jt in range(4):
            d=v(YD+(nt&1)*16+4*jt,4)
            I(f'{MF} {d}, {a_(120+(jt*2+kb)*4,4)}, {v(XB+nt*8+4*kb,4)}, {"0" if kb==0 else d}')
def yst(nt):
    for jt in range(4):
        b=YD+(nt&1)*16+4*jt; o=172+jt*2
        I([f'v_cvt_pk_bf16_f32 v{o}, v{b}, v{b+1}', f'v_cvt_pk_bf16_f32 v{o+1}, v{b+2}, v{b+3}',
           f'buffer_store_dwordx2 {v(o,2)}, v{vE0}, {srd(sWS)}, s{t0+jt} offen offset:{128*nt} sc1'])
for jt in range(4): I(f's_mov_b32 s{t0+jt}, {4*jt*163840}')
xcv(0)
weave(cap(ymf,0),cap(xcv,1))
for nt in range(5):
    if nt<4:
        F_=(cap(xcv,nt+2) if nt<3 else [])
        Y_=cap(yst,nt)
        M=cap(ymf,nt+1)
        for i,m in enumerate(M):
            I(m)
            if i<4: emit(F_[2*i:2*i+2])
            else: emit(Y_[i-4])
    else: yst(nt)
stamp(15)
I('s_waitcnt vmcnt(0)'); setflag(vE0+3,4)
stamp(16)
I(f's_cmp_eq_u32 s{sAct}, 0'); I('s_cbranch_scc1 Lp3')
emit(WL[WS1:])
T1,T2,W3,YF,EF,TM,PQ=16,48,112,144,160,80,184
vY,vF,vXW,vXR,vRS,vLF=8,9,10,11,12,13
def p2addr():
    smul(t0,sCh,32*0x334); sadd(t1,t0,31*0x334); I(f's_lshr_b32 s{t0}, s{t0}, 16'); I(f's_lshr_b32 s{t1}, s{t1}, 16')
    I(f'v_mov_b32 v4, s{t0}'); I(f'v_mov_b32 v5, s{t1}'); I(f'v_cmp_gt_u32 vcc, 32, v{vL}'); I(f'v_cndmask_b32 v4, v5, v4, vcc')
    I(f'v_and_b32 v5, 31, v{vL}'); I(f'v_lshl_add_u32 v4, v4, 5, v5'); I(f'v_lshlrev_b32 v4, 7, v4'); I(f'v_add_u32 v{vF}, {WS_FL+FL_Y*128}, v4')
    I(f's_lshr_b32 s{t0}, s{sT}, 1'); smul(t0,t0,163840); I(f's_lshl_b32 s{t1}, s{sCh}, 8'); sacc(t0,t1); I(f's_lshl_b32 s{t1}, s{sWr}, 2'); sacc(t0,t1)
    I(f'v_mul_u32_u24 v4, 20480, v{vG}'); I(f'v_lshl_add_u32 v4, v{vN}, 3, v4'); I(f'v_add_u32 v{vY}, s{t0}, v4')
    smul(t0,sWc,8704); sadd(t0,t0,L_XCH[0])
    I(f's_lshl_b32 s{t1}, s{sWr}, 5'); sacc(t1,t0)
    I(f'v_mul_u32_u24 v{vXW}, 272, v{vN}'); I(f'v_lshl_add_u32 v{vXW}, v{vG}, 6, v{vXW}'); I(f'v_add_u32 v{vXW}, s{t1}, v{vXW}')
    smul(t1,sWr,16*272); sacc(t1,t0)
    I(f'v_mul_u32_u24 v{vXR}, 272, v{vG}'); I(f'v_lshl_add_u32 v{vXR}, v{vN}, 4, v{vXR}'); I(f'v_add_u32 v{vXR}, s{t1}, v{vXR}')
    smul(t0,sWr,16*81920); I(f's_lshl_b32 s{t1}, s{sCh}, 12'); sacc(t0,t1)
    I(f's_lshr_b32 s{t1}, s{sT}, 1'); I(f's_lshl_b32 s{t1}, s{t1}, 8'); sacc(t0,t1); sadd(t0,t0,WS_R)
    I(f's_mov_b32 s{t1}, 81920'); I(f'v_lshlrev_b32 v{vRS}, 4, v{vN}'); I(f'v_mad_u32_u24 v{vRS}, v{vG}, s{t1}, v{vRS}'); I(f'v_add_u32 v{vRS}, s{t0}, v{vRS}')
    I(f's_lshl_b32 s{t0}, s{sWc}, 2'); sadd(t0,t0,L_FLG); I(f'v_mov_b32 v{vLF}, s{t0}')
    I(f's_lshl_b32 s{t0}, s{sCh}, 3'); sacc(t0,sGrp)
    I(f's_lshl_b32 s{t1}, s{sCh}, 4'); I(f's_lshr_b32 s{t2}, s{sT}, 1'); sacc(t1,t2); I(f's_sub_u32 s{t1}, s{t1}, 128')
    I([f's_cmp_eq_u32 s{sTyp}, 0', f's_cselect_b32 s{t0}, s{t0}, s{t1}', f's_cselect_b32 s{sAct}, 3, 1'])
    I(f's_and_b32 s{t1}, s{t0}, 1'); I(f's_lshl_b32 s{t1}, s{t1}, 2'); I(f's_lshr_b32 s{t0}, s{t0}, 1'); I(f's_lshl_b32 s{t0}, s{t0}, 7'); sacc(t0,t1); sadd(t0,t0,WS_FL+FL_R*128); I(f'v_mov_b32 v15, s{t0}')
lab('Lp2a')
if not TGF:
    I(f's_cmp_eq_u32 s{sT}, 0'); I('s_cbranch_scc1 Lskiptg'); emit(TGL); lab('Lskiptg')
p2addr()
I(f's_cmp_eq_u32 s{sTyp}, 0'); I('s_cbranch_scc0 Lp2b')
I('s_waitcnt vmcnt(0)')
setflag(vE0+3,4)
stamp(16)
lab('Lp2b')
I(f's_cmp_eq_u32 s{sCh}, 0'); I('s_cbranch_scc0 Lnosp1')
I(f's_lshl_b32 s{t0}, s{sW}, 9'); sadd(t0,t0,L_PP)
I(f'v_lshlrev_b32 v4, 2, v{vL}'); I(f'v_add_u32 v4, s{t0}, v4'); I(f'v_lshlrev_b32 v5, 4, v{vG}'); I(f'v_add_u32 v5, s{t0}, v5')
I(f'ds_write_b32 v4, v252'); I(f'ds_write_b32 v4, v253 offset:256')
for arr,off in ((0,0),(8,256),(16,128),(24,384)):
    for mh in range(2): I(f'ds_read_b128 {v(W3+arr+4*mh,4)}, v5 offset:{off+64*mh}')
lab('Lnosp1')
I('s_waitcnt lgkmcnt(0)')
stamp(17)
poll([vF],14)
stamp(18)
for ks in range(2):
    for i in range(4):
        I(f's_mov_b32 s{t0}, {(16*ks+i)*5120}')
        for ri in range(2): I(f'buffer_load_dword v{YF+(ri*2+ks)*4+i}, v{vY}, {srd(sWS)}, s{t0} offen offset:{128*ri} {HS}')
for ks in range(2):
    I(f's_waitcnt vmcnt({8-8*ks})')
    for mt in (0,2,1,3):
        for ri in range(2):
            d=v(EF+(mt*2+ri)*4,4)
            I(f'{MF} {d}, {a_(AT1+(mt*2+ks)*4,4)}, {v(YF+(ri*2+ks)*4,4)}, {"0" if ks==0 else d}')
stamp(19)
EF2=EF
def pk(op,d,*s,neg=None):
    t=f'v_pk_{op}_f32 {v(d,2)}, '+', '.join(v(x,2) for x in s)
    if neg: t+=f' neg_lo:{neg} neg_hi:{neg}'
    I(t)
PQ=16
Pre,Pim,Qre,Qim=PQ,PQ+8,PQ+16,PQ+24
def EFr(typ,mh,ri,p): return EF+((typ*2+mh)*2+ri)*4+2*p
for mh in range(2):
    for p in range(2):
        o=mh*4+2*p; Er,Ei,Fr,Fi=EFr(0,mh,0,p),EFr(0,mh,1,p),EFr(1,mh,0,p),EFr(1,mh,1,p)
        wpr,wpi,wmr,wmi=WP+o,WP+8+o,WP+16+o,WP+24+o
        T=TM+(p*16)
        pk('add',T,Er,Fi); pk('add',T+2,Ei,Fr,neg='[0,1]'); pk('add',T+4,Er,Fi,neg='[0,1]'); pk('add',T+6,Ei,Fr)
        pk('mul',T+8,T,wpr); pk('mul',T+10,T,wpi); pk('mul',T+12,T+4,wmr); pk('mul',T+14,T+4,wmi)
        pk('fma',T+8,T+2,wpi,T+8,neg='[1,0,0]'); pk('fma',T+10,T+2,wpr,T+10); pk('fma',T+12,T+6,wmi,T+12,neg='[1,0,0]'); pk('fma',T+14,T+6,wmr,T+14)
        pk('add',Pre+o,T+8,T+12); pk('add',Pim+o,T+10,T+14); pk('add',Qre+o,T+14,T+10,neg='[0,1]'); pk('add',Qim+o,T+8,T+12,neg='[0,1]')
I(f's_cmp_eq_u32 s{sT}, 0'); I('s_cbranch_scc0 Lnot0')
I('s_mov_b64 exec, 0xffff')
Er,Ei,Fr,Fi=EFr(0,0,0,0),EFr(0,0,1,0),EFr(1,0,0,0),EFr(1,0,1,0)
I(f'v_mul_f32 v{Pre}, v{Er}, v{WP}'); I(f'v_fma_f32 v{Pre}, -v{Ei}, v{WP+8}, v{Pre}')
I(f'v_mul_f32 v{Pim}, v{Er}, v{WP+8}'); I(f'v_fma_f32 v{Pim}, v{Ei}, v{WP}, v{Pim}')
I(f'v_mul_f32 v{Qre}, v{Fr}, v{WP+16}'); I(f'v_fma_f32 v{Qre}, -v{Fi}, v{WP+24}, v{Qre}')
I(f'v_mul_f32 v{Qim}, v{Fr}, v{WP+24}'); I(f'v_fma_f32 v{Qim}, v{Fi}, v{WP+16}, v{Qim}')
I('s_mov_b64 exec, -1')
lab('Lnot0')
I(f's_cmp_eq_u32 s{sCh}, 0'); I('s_cbranch_scc0 Lnosp2')
I(f's_mov_b32 exec_lo, 0x10001'); I(f's_mov_b32 exec_hi, 0x10001')
for mh in range(2):
    for p in range(2):
        o=mh*4+2*p; Er,Ei,Fr,Fi=EFr(0,mh,0,p),EFr(0,mh,1,p),EFr(1,mh,0,p),EFr(1,mh,1,p)
        T=TM
        pk('add',T,WP+o,WP+16+o); pk('add',T+2,WP+8+o,WP+24+o,neg='[0,1]'); pk('add',T+4,W3+o,W3+16+o); pk('add',T+6,W3+8+o,W3+24+o,neg='[0,1]')
        for q in range(4): I(f'v_pk_mul_f32 {v(T+2*q,2)}, {v(T+2*q,2)}, 0.5')
        pk('mul',Pre+o,Er,T); pk('mul',Qre+o,Fr,T); pk('mul',Pim+o,Ei,T+4); pk('mul',Qim+o,Fi,T+4)
        pk('fma',Pre+o,Fr,T+2,Pre+o); pk('fma',Qre+o,Er,T+2,Qre+o,neg='[1,0,0]'); pk('fma',Pim+o,Fi,T+6,Pim+o); pk('fma',Qim+o,Ei,T+6,Qim+o,neg='[1,0,0]')
I(f's_cmp_eq_u32 s{sT}, 0'); I('s_cbranch_scc0 Lnocorner')
I('s_mov_b64 exec, 1')
Er,Ei,Fr,Fi=EFr(0,0,0,0),EFr(0,0,1,0),EFr(1,0,0,0),EFr(1,0,1,0)
for d,x,w in ((Pre,Er,WP),(Pim,Ei,W3),(Qre,Fr,WP+16),(Qim,Fi,W3+16)):
    I(f'v_mul_f32 v{d}, v{x}, v{w}'); I(f'v_mul_f32 v{d}, 0.5, v{d}')
lab('Lnocorner')
I('s_mov_b64 exec, -1')
lab('Lnosp2')
for mh in range(2):
    for ri in range(2):
        for q,src in enumerate(((Pre,Pim)[ri],(Qre,Qim)[ri])):
            for p in range(2): I(f'v_cvt_pk_bf16_f32 v{YF+(ri*2+mh)*4+2*q+p}, v{src+mh*4+2*p}, v{src+mh*4+2*p+1}')
for ks in range(2):
    for nt in range(4):
        for ri in range(2):
            d=v(EF+(nt*2+ri)*4,4)
            I(f'{MF} {d}, {v(YF+(ri*2+ks)*4,4)}, {a_(AT2+(nt*2+ks)*4,4)}, {"0" if ks==0 else d}')
for nt in range(4):
    for ri in range(2):
        for p in range(2): I(f'v_cvt_pk_bf16_f32 v{TM+nt*4+ri*2+p}, v{EF+(nt*2+ri)*4+2*p}, v{EF+(nt*2+ri)*4+2*p+1}')
    I(f'ds_write_b128 v{vXW}, {v(TM+nt*4,4)} offset:{(nt&1)*16*272+(nt>>1)*16}')
stamp(20)
ldssync(vLF,14)
for i in range(4): I(f'ds_read_b128 {v(TM+16+4*i,4)}, v{vXR} offset:{4*272*i}')
for i in range(4):
    I(f's_mov_b32 s{t0}, {4*81920*i}'); I(f's_waitcnt lgkmcnt({3-i})')
    I(f'buffer_store_dwordx4 {v(TM+16+4*i,4)}, v{vRS}, {srd(sWS)}, s{t0} offen sc1')
vconst(10,L_FLG+8); vconst(11,1)
stamp(21)
if not POI: I('s_waitcnt vmcnt(0)')
I('s_mov_b64 exec, 1'); I('ds_add_rtn_u32 v11, v10, v11'); I('s_mov_b64 exec, -1'); I('s_waitcnt lgkmcnt(0)')
I(f'v_readfirstlane_b32 s{t0}, v11'); I(f's_cmp_eq_u32 s{t0}, s{sAct}'); I('s_cbranch_scc0 Lnopub')
setflag(15,12)
lab('Lnopub')
stamp(22)
I(f's_cmp_eq_u32 s{sWc}, 0'); I('s_cbranch_scc1 Lp3')
if E('WGW',1):
    I(f's_mov_b32 s{sTo}, 0x400000'); lab('Lwgw')
    I(f'ds_read_b32 v11, v10'); I('s_waitcnt lgkmcnt(0)'); I(f'v_cmp_ge_u32 vcc, s{sAct}, v11')
    I(f's_cbranch_vccz Lwb'); I(f's_sub_u32 s{sTo}, s{sTo}, 1'); I(f's_cbranch_scc0 Lwgw')
lab('Lwb')
NBE=E('NBE',0)
if not E('NOWB',0): emit(bls(NBE,5*KB))
I('s_branch Lp3')
lab('LepiQ')
vPW,vPR,vKR,vOS,vO5,vKW,vKP=4,5,100,104,106,108,112
I(f's_lshl_b32 s{t1}, s{sRb}, 1'); sacc(t1,sWr); smul(t2,t1,1280); smul(t3,sGrp,8*40960); sacc(t2,t3)
I(f'v_and_b32 v8, 7, v{vL}'); I(f'v_lshlrev_b32 v8, 4, v8'); I(f'v_lshrrev_b32 v9, 3, v{vL}'); I(f'v_mul_u32_u24 v10, 40960, v9'); I(f'v_add_u32 v10, v10, v8')
GX=120; GW=160
I(f'v_mov_b32 v115, v10'); I(f'v_mov_b32 v116, v8'); I(f's_mov_b32 s{sCnt}, s{t2}')
GLD=[[f'buffer_load_dwordx4 {v(GX+4*j,4)}, v115, {srd(sX)}, s{sCnt} offen offset:{128*j}', f'buffer_load_dwordx4 {v(GW+4*j,4)}, v116, {srd(sGATE)}, 0 offen offset:{128*j}'] for j in range(10)]
I(f's_lshl_b32 s{t2}, s{t1}, 8'); I(f's_lshl_b32 s{t3}, s{sGrp}, 5'); sacc(t2,t3); sadd(t2,t2,WS_G)
I(f'v_lshlrev_b32 v9, 2, v9'); I(f'v_add_u32 v9, s{t2}, v9'); vconst(10,OOB); I(f'v_cmp_eq_u32 vcc, 0, v8'); I(f'v_cndmask_b32 v114, v10, v9, vcc')
smul(t0,sWr,L_PQ[1]-L_PQ[0]); sadd(t0,t0,L_PQ[0])
I(f'v_mul_u32_u24 v{vPW}, {PQS}, v{vN}'); I(f'v_lshl_add_u32 v{vPW}, v{vG}, 3, v{vPW}'); I(f'v_add_u32 v{vPW}, s{t0}, v{vPW}')
def qepi():
    for nt in range(5):
        for mt in range(4):
            b=ACC+(mt*5+nt)*4
            phi2(b,b,8); phi2(b+2,b+2,10)
            I(f'v_cvt_pk_bf16_f32 v{b}, v{b}, v{b+1}'); I(f'v_cvt_pk_bf16_f32 v{b+1}, v{b+2}, v{b+3}')
            I(f'ds_write_b64 v{vPW}, {v(b,2)} offset:{16*nt*PQS+32*mt}')
QW=E('QW',0)
P_=cap(qepi)
weave(P_,GLD+bls(0,QW),len(P_)*E('QS',0)//100,len(P_))
stamp(15)
I(f's_waitcnt vmcnt({QW})')
stamp(16)
vconst(8,0); vconst(9,0)
for i in range(40): I(f'v_dot2_f32_bf16 v{8+(i&1)}, v{GX+i}, v{GW+i}, v{8+(i&1)}')
I('s_nop 2'); I('v_add_f32 v8, v8, v9')
for ctl in ('quad_perm:[1,0,3,2]','quad_perm:[2,3,0,1]','row_half_mirror'):
    I('s_nop 1'); I(f'v_add_f32_dpp v8, v8, v8 {ctl} row_mask:0xf bank_mask:0xf')
I('v_cvt_pk_bf16_f32 v8, v8, v8'); I('v_and_b32 v8, 0xffff0000, v8'); I(f'v_mul_f32 v8, s{sAo}, v8'); I('v_exp_f32 v8, -v8'); I('v_add_f32 v8, 1.0, v8'); I('v_rcp_f32 v8, v8')
I('v_cvt_pk_bf16_f32 v8, v8, v8'); I('v_and_b32 v8, 0xffff0000, v8')
I(f'buffer_store_dword v8, v114, {srd(sWS)}, 0 offen sc1')
I(f'v_bfe_u32 v8, v{vL}, 2, 2'); I(f'v_lshl_add_u32 v8, v{vG}, 3, v8'); I(f'v_and_b32 v9, 3, v{vL}'); I(f'v_lshlrev_b32 v9, 3, v9'); I(f'v_add_u32 v9, s{t0}, v9')
for hh in range(2):
    I(f'v_add_u32 v10, {4*hh}, v8'); I(f'v_min_u32 v10, 19, v10'); I(f'v_mul_u32_u24 v10, {PQS}, v10'); I(f'v_add_u32 v{vPR+hh}, v10, v9')
smul(t1,sWr,5504); sadd(t1,t1,L_KVI)
for i in range(4): vconst(8+i,0)
I(f'v_add_u32 v12, s{t1}, v218')
for i in range(5): I(f'ds_write_b128 v12, v[8:11] offset:{1024*i}')
I(f's_mov_b64 exec, 0xffffff'); I(f'ds_write_b128 v12, v[8:11] offset:5120'); I('s_mov_b64 exec, -1')
for i in range(4):
    I(f'v_add_u32 v8, {64*i}, v{vL}'); I(f'v_mul_u32_u24 v9, 0xc31, v8'); I(f'v_lshrrev_b32 v9, 16, v9')
    I(f'v_mul_u32_u24 v10, 21, v9'); I(f'v_sub_u32 v10, v8, v10')
    I(f'v_cmp_lt_u32 vcc, 4, v9'); I(f'v_cndmask_b32 v11, 0, 1, vcc')
    I(f'v_mad_u32_u24 v10, v11, 21, v10'); I(f'v_mul_u32_u24 v11, 5, v11'); I(f'v_sub_u32 v9, v9, v11')
    I(f'v_lshlrev_b32 v10, 6, v10'); I(f'v_lshl_add_u32 v10, v9, 3, v10'); I(f'v_add_u32 v{vKW+i}, s{t1}, v10')
vconst(11,L_PP); I(f'v_cmp_gt_u32 vcc, 18, v{vL}'); I(f'v_cndmask_b32 v{vKW+3}, v11, v{vKW+3}, vcc')
I(f'v_lshlrev_b32 v8, 4, v{vG}'); I(f'v_add_u32 v8, s{t1}, v8')
I(f'v_lshl_add_u32 v{vKR}, v{vN}, 6, v8'); I(f'v_add_u32 v{vKR+1}, {21*64}, v{vKR}')
I(f'v_and_b32 v9, 3, v{vN}'); I(f'v_lshrrev_b32 v10, 2, v{vN}')
for hb in range(2):
    I(f'v_and_b32 v11, 1, v10'); I(f'v_lshl_add_u32 v11, v11, 1, v9'); I(f'v_add_u32 v11, {21*hb+16}, v11')
    I(f'v_lshrrev_b32 v12, 1, v10'); I(f'v_cmp_eq_u32 vcc, {hb}, v12'); I(f'v_cmp_gt_u32 s[{t4}:{t5}], 2, v9'); I(f's_and_b64 vcc, vcc, s[{t4}:{t5}]')
    I(f'v_cndmask_b32 v11, 42, v11, vcc'); I(f'v_cmp_eq_u32 vcc, {2+hb}, v9'); I(f'v_cndmask_b32 v11, v11, {21*hb+20}, vcc')
    I(f'v_lshl_add_u32 v{vKR+2+hb}, v11, 6, v8')
I(f's_lshl_b32 s{t1}, s{sRb}, 1'); sacc(t1,sWr); smul(t2,t1,81920); sadd(t2,t2,WS_O)
smul(t3,sGrp,10)
for hp in range(2):
    I(f'v_add_u32 v8, {5*hp}, v{vG}'); I(f'v_add_u32 v8, s{t3}, v8')
    I(f'v_lshrrev_b32 v9, 2, v8'); I(f'v_and_b32 v8, 3, v8'); I(f'v_lshlrev_b32 v9, 12, v9'); I(f'v_lshl_add_u32 v9, v8, 8, v9')
    I(f'v_lshl_add_u32 v9, v{vN}, 4, v9'); I(f'v_add_u32 v{vOS+hp}, s{t2}, v9')
    sadd(t4,t3,5*hp+4); I(f's_lshr_b32 s{t5}, s{t4}, 2'); I(f's_lshl_b32 s{t5}, s{t5}, 12'); I(f's_and_b32 s{t4}, s{t4}, 3'); I(f's_lshl_b32 s{t4}, s{t4}, 8')
    sacc(t4,t5); sacc(t4,t2)
    I(f'v_lshlrev_b32 v9, 10, v{vG}'); I(f'v_lshl_add_u32 v9, v{vN}, 4, v9'); I(f'v_add_u32 v{vO5+hp}, s{t4}, v9')
I(f's_lshl_b32 s{t1}, s{t1}, 3'); sacc(t1,sGrp); I(f's_lshl_b32 s{t1}, s{t1}, 7'); sadd(t1,t1,WS_FL+FL_O*128); I(f'v_mov_b32 v15, s{t1}')
I(f's_lshl_b32 s{t1}, s{sGrp}, 13'); sadd(t1,t1,WS_KVA)
I(f'v_add_u32 v{vKP}, s{t1}, v218'); vconst(9,OOB); I(f'v_cmp_gt_u32 vcc, 18, v{vL}'); I(f'v_cndmask_b32 v{vKP+1}, v9, v{vKP}, vcc')
I(f's_lshl_b32 s{t1}, s{sGrp}, 6')
I(f'v_add_u32 v8, s{t1}, v{vL}'); I(f'v_lshlrev_b32 v8, 7, v8'); I(f'v_add_u32 v13, {WS_FL+FL_KV*128}, v8')
KF=16; QF=120; OD=48; O5=184; PB=48
I('s_waitcnt lgkmcnt(0)')
for u in range(8):
    rt,hp=u>>1,u&1
    for hb in range(2):
        for hh in range(2): I(f'ds_read_b64_tr_b16 {v(QF+u*8+hb*4+2*hh,2)}, v{vPR+hh} offset:{(2*hp+hb)*20*PQS+32*rt}')
    if u%2==1: I('s_waitcnt lgkmcnt(4)')
I(f's_mov_b32 s{sEx}, -1'); I(f's_mov_b32 s{sEx+1}, 0'); I(f's_movk_i32 s{t0}, 0x1000')
stamp(20)
NQ=E('NQ',5*KB)
emit(bls(QW,NQ))
stamp(17)
poll([13],9)
stamp(18)
for hp in range(2):
    for i in range(4): I(f'buffer_load_dwordx4 {v(PB+hp*16+4*i,4)}, v{vKP+(i==3)}, {srd(sWS)}, {"0" if hp==0 else "s%d"%t0} offen offset:{1024*i} sc1')
for hp in range(2):
    for i in range(4):
        b=PB+hp*16+4*i
        I(f's_waitcnt vmcnt({7-hp*4-i})')
        I(f'v_cvt_pk_bf16_f32 v{b}, v{b}, v{b+1}'); I(f'v_cvt_pk_bf16_f32 v{b+1}, v{b+2}, v{b+3}')
        I(f'ds_write_b64 v{vKW+i}, {v(b,2)} offset:{2752*hp}')
for hp in range(2):
    for j in (2,0,3,1): I(f'ds_read_b128 {v(KF+(hp*4+j)*4,4)}, v{vKR+j} offset:{2752*hp}')
stamp(19)
def omf(u):
    hp=u&1; q=QF+u*8; d=OD+(u%4)*12
    I(f'{MF} {v(d+8,4)}, {v(KF+(hp*4+2)*4,4)}, {v(q,4)}, 0')
    I(f'{MF} {v(d,4)}, {v(KF+(hp*4+0)*4,4)}, {v(q,4)}, 0')
    I(f'{MF} {v(d+8,4)}, {v(KF+(hp*4+3)*4,4)}, {v(q+4,4)}, {v(d+8,4)}')
    I(f'{MF} {v(d+4,4)}, {v(KF+(hp*4+1)*4,4)}, {v(q+4,4)}, 0')
def ofin(u):
    rt,hp=u>>1,u&1; d=OD+(u%4)*12; o=192+(u&1)*4
    I(f'v_pk_add_f32 {v(d+10,2)}, {v(d+10,2)}, s[{sAo}:{sAo+1}] op_sel:[0,1]')
    I(f'v_rcp_f32 v{d+10}, v{d+10}'); I(f'v_rcp_f32 v{d+11}, v{d+11}')
    I('s_nop 0')
    for p in range(2): I(f'v_pk_mul_f32 {v(d+2*p,2)}, {v(d+2*p,2)}, {v(d+10,2)} op_sel_hi:[1,0]')
    for p in range(2): I(f'v_pk_mul_f32 {v(d+4+2*p,2)}, {v(d+4+2*p,2)}, {v(d+10,2)} op_sel:[0,1]')
    I(f'v_cndmask_b32 v{d+10}, v{d+11}, v{d+10}, s[{sEx}:{sEx+1}]')
    for p in range(4): I(f'v_cvt_pk_bf16_f32 v{o+p}, v{d+2*p}, v{d+2*p+1}')
    I(f'buffer_store_dwordx4 {v(o,4)}, v{vOS+hp}, {srd(sWS)}, 0 offen offset:{1024*rt} sc1')
    I(f'v_pk_mul_f32 {v(d+8,2)}, {v(d+8,2)}, {v(d+10,2)} op_sel_hi:[1,0]')
    I(f'v_cvt_pk_bf16_f32 v{O5+hp*4+rt}, v{d+8}, v{d+9}')
I('s_waitcnt lgkmcnt(4)'); omf(0); I('s_waitcnt lgkmcnt(0)'); omf(1)
for u in range(8):
    if u+2<8: weave(cap(ofin,u),cap(omf,u+2))
    else: ofin(u)
for hp in range(2):
    b=O5+hp*4
    I(f'v_permlane32_swap_b32 v{b}, v{b+2}'); I(f'v_permlane32_swap_b32 v{b+1}, v{b+3}')
    I(f'v_permlane16_swap_b32 v{b}, v{b+1}'); I(f'v_permlane16_swap_b32 v{b+2}, v{b+3}')
    I(f'buffer_store_dwordx4 {v(b,4)}, v{vO5+hp}, {srd(sWS)}, 0 offen sc1')
stamp(21)
I(f'v_mov_b32 v10, s{sTag}'); I(f'v_mov_b32 v11, s{sTag}'); I('s_nop 0' if POI else 's_waitcnt vmcnt(0)'); I('s_mov_b64 exec, 1'); I(f'buffer_store_dwordx2 v[10:11], v15, {srd(sWS)}, 0 offen sc1'); I('s_mov_b64 exec, -1')
stamp(22)
emit(bls(NQ,5*KB))
lab('Lp3')
vA,vGg,vFa,vFo,vL16=4,5,8,9,6
vOA,vTW,vTR,vAR,vAW,vOW,vOW4,vOR,vOut,vSg=240,244,247,248,249,250,251,252,253,14
AD2=160
I(f'v_lshlrev_b32 v{vL16}, 4, v{vL}')
for r in range(4):
    sadd(t0,sW,r); I(f's_and_b32 s{t0}, s{t0}, 3'); I(f's_lshl_b32 s{t1}, s{t0}, 10'); I(f'v_add_u32 v{vOA+r}, s{t1}, v{vL16}')
    if r: smul(t0,t0,15360); sadd(t0,t0,L_TB+(r-1)*5120); I(f'v_add_u32 v{vTW+r-1}, s{t0}, v{vL16}')
smul(t0,sW,15360); sadd(t0,t0,L_TB); I(f'v_add_u32 v{vTR}, s{t0}, v{vL16}')
smul(t0,sW,3072); sadd(t0,t0,L_TA); I(f'v_add_u32 v{vAR}, s{t0}, v{vL16}')
smul(t0,sWr,12288); sadd(t0,t0,L_TA); I(f'v_add_u32 v{vAW}, s{t0}, v{vL16}')
I(f's_lshl_b32 s{t0}, s{sN2}, 3')
smul(t1,sRot,4*0x199a); I(f's_lshr_b32 s{t1}, s{t1}, 16'); I(f'v_add_u32 v7, s{t1}, v{vL}'); I(f'v_and_b32 v7, 7, v7'); I(f'v_add_u32 v7, s{t0}, v7'); I(f's_mov_b32 s{sT}, s{t1}'); I(f'v_lshlrev_b32 v7, 7, v7'); I(f'v_add_u32 v{vFo}, {WS_FL+FL_O*128}, v7')
vconst(15,560)
for i in range(3):
    I(f'v_add_u32 v12, {64*i}, v{vL}'); div10(13,12); I(f'v_mul_u32_u24 v14, 10, v13'); I(f'v_sub_u32 v14, v12, v14')
    I(f'v_mul_u32_u24 v13, 40960, v13'); I(f'v_lshl_add_u32 v13, v14, 4, v13'); I(f'v_cmp_lt_u32 vcc, 4, v14'); I(f'v_cndmask_b32 v14, 0, v15, vcc'); I(f'v_add_u32 v{vOut+i}, v13, v14')
vconst(12,OOB); I(f'v_cmp_gt_u32 vcc, 32, v{vL}'); I(f'v_cndmask_b32 v{vOut+2}, v12, v{vOut+2}, vcc')
smul(sB0,sW,16*40960); smul(t1,sN2,1280); sacc(sB0,t1); smul(t1,sCt,80); sacc(sB0,t1)
smul(t2,sW,2560); sadd(t2,t2,L_OUT)
I(f'v_mul_u32_u24 v12, 160, v{vN}'); I(f'v_lshl_add_u32 v12, v{vG}, 3, v12'); I(f'v_add_u32 v{vOW}, s{t2}, v12'); I(f'v_add_u32 v{vOR}, s{t2}, v{vL16}')
I(f'v_lshrrev_b32 v12, 5, v{vL}'); I(f'v_lshl_add_u32 v{vOW4}, v12, 6, v{vOW}'); I(f'v_lshlrev_b32 v12, 31, v12'); I(f'v_or_b32 v{vSg}, 0x3f800000, v12')
I(f's_lshl_b32 s{sB1}, s{sN2}, 8'); I(f's_lshl_b32 s{t1}, s{sW}, 6'); sacc(sB1,t1); sadd(sB1,sB1,WS_G)
I(f'v_lshlrev_b32 v7, 2, v{vN}')
smul(sDl,sN2,81920); I(f's_lshl_b32 s{t1}, s{sRot}, 12'); I(f's_add_u32 s{sMA}, s{sDl}, s{t1}'); sadd(sMA,sMA,WS_O); sadd(sMB,sMA,KB*4096); I(f's_lshl_b32 s{t1}, s84, 12'); I(f's_add_u32 s{sA2}, s{sMA}, s{t1}')
C3=16; PA=E('PA',3)
I(f's_cmp_eq_u32 s{sWc}, 0'); I('s_cbranch_scc0 Lp3b')
emit(bls(0,5*KA,120))
I(f'v_lshrrev_b32 v{vA}, 2, v{vN}'); I(f'v_lshlrev_b32 v{vA}, 8, v{vA}'); I(f'v_lshl_add_u32 v{vA}, v{vG}, 6, v{vA}'); I(f'v_and_b32 v12, 3, v{vN}'); I(f'v_lshl_add_u32 v{vA}, v12, 4, v{vA}')
smul(t1,sWr,40960); I(f's_add_u32 s{sIs}, s{sDl}, s{t1}'); sadd(sIs,sIs,WS_R); sadd(sDm,sIs,40960); I(f's_lshl_b32 s{t1}, s85, 12'); I(f's_add_u32 s{sBstep}, s{sIs}, s{t1}')
smul(t0,sWr,40); I(f's_movk_i32 s{t1}, 95'); I(f's_cmp_eq_u32 s{sWr}, 0'); I(f's_cselect_b32 s{t1}, 39, s{t1}')
I(f'v_add_u32 v12, s{t0}, v{vL}'); I(f'v_min_u32 v12, s{t1}, v12'); I(f'v_lshlrev_b32 v12, 7, v12'); I(f'v_add_u32 v{vFa}, {WS_FL+FL_R*128}, v12')
stamp(24)
if E('PDELAY',24): I(f's_sleep {E("PDELAY",24)}')
if not PROG: poll2(vFa,10)
stamp(25)
sFst=sBo
def ppoll(vo,x2,need):
    uid[0]+=1; L=f'Lpp{uid[0]}'
    I(f's_cmp_ge_u32 s{sFst}, {need}'); I(f's_cbranch_scc0 {L}r'); lab(L+'c')
    ld=f'buffer_load_dwordx2 v[10:11], v{vo}, {srd(sWS)}, 0 offen sc1' if x2 else f'buffer_load_dword v10, v{vo}, {srd(sWS)}, 0 offen sc1'
    R=[L+'r:', ld, 's_waitcnt vmcnt(0)', f'v_cmp_ne_u32 vcc, s{sTag}, v10']
    if x2: R+=[f'v_cmp_ne_u32 s[{t4}:{t5}], s{sTag}, v11', 's_nop 0', f's_or_b64 vcc, vcc, s[{t4}:{t5}]']
    else: R+=['s_nop 0']
    R+=[f's_ff1_i32_b64 s{sFst}, vcc', f's_cmp_ge_u32 s{sFst}, {need}', f's_cbranch_scc1 {L}c', f's_sub_u32 s{sTo}, s{sTo}, 1', f's_cbranch_scc1 {L}c', f's_sleep {SLP}', f's_branch {L}r']
    RETRY.append(R)
RING=9; PAA=E('PAA',5)
RETRY=[]
def check(base,loads):
    if not POI: return
    uid[0]+=1; L=f'Lck{uid[0]}'
    lab(L)
    I(f'v_max3_u32 v12, v{base}, v{base+1}, v{base+2}')
    I(f'v_max3_u32 v13, v{base+3}, v{base+4}, v{base+5}')
    for i in range(5): I(f'v_max3_u32 v{12+(i&1)}, v{12+(i&1)}, v{base+6+2*i}, v{base+7+2*i}')
    I('v_max_u32 v12, v12, v13'); I('v_cmp_eq_u32 vcc, -1, v12'); I(f's_cbranch_vccnz {L}r')
    lab(L+'c')
    RETRY.append([L+'r:', f's_sub_u32 s{sTo}, s{sTo}, 1', f's_cbranch_scc1 {L}c', 's_sleep 2']+loads+['s_waitcnt vmcnt(0)', f's_branch {L}'])
def arf(i): return v(64+4*(i%(4*RING)),4)
def aload(ks): return [[f'buffer_load_dwordx4 {arf(ks*4+mt)}, v{vA}, {srd(sWS)}, s{sBstep} offen offset:{1024*mt} {HS}']+([f's_add_u32 s{sBstep}, s{sBstep}, 4096', f's_cmp_eq_u32 s{sBstep}, s{sDm}', f's_cselect_b32 s{sBstep}, s{sIs}, s{sBstep}'] if mt==3 else []) for mt in range(4)]
def aneed(ks):
    if not PROG: return
    if ks<6: ppoll(vFa,True,4*(ks+1))
    else:
        I(f's_mul_i32 s{t1}, s{sWr}, {4*(ks-5)}'); sadd(t1,t1,4*(ks+1)); ppoll(vFa,True,f's{t1}')
I(f's_mov_b32 s{sFst}, 0'); I(f's_mov_b32 s{sTo}, 0x40000')
for ks in range(PAA): aneed(ks); emit(aload(ks))
for ks in range(10):
    I(f's_waitcnt vmcnt({4*(min(10,ks+PAA)-ks-1)})')
    check(64+4*((ks*4)%(4*RING)),[f's_add_u32 s{t0}, s{sIs}, {4096*ks}']+[f'buffer_load_dwordx4 {arf(ks*4+mt)}, v{vA}, {srd(sWS)}, s{t0} offen offset:{1024*mt} sc1' for mt in range(4)])
    M=[f'{MF} {v(C3+(mt*3+nt)*4,4)}, {arf(ks*4+mt)}, {a_((ks*3+nt)*4,4)}, {"0" if ks==0 else v(C3+(mt*3+nt)*4,4)}' for nt in range(3) for mt in range(4)]
    if ks+PAA<10: aneed(ks+PAA)
    weave(M,aload(ks+PAA) if ks+PAA<10 else [],0,len(M)-2)
OF=144
def oload(ks): return [[f'buffer_load_dwordx4 {v(OF+((ks%5)*4+r)*4,4)}, v{vOA+r}, {srd(sWS)}, s{sA2} offen {HS}']+([f's_add_u32 s{sA2}, s{sA2}, 4096', f's_cmp_eq_u32 s{sA2}, s{sMB}', f's_cselect_b32 s{sA2}, s{sMA}, s{sA2}'] if r==3 else []) for r in range(4)]
def oneed(ks):
    if not PROG: return
    smul(t1,sRot,4*0x199a); sadd(t1,t1,(4*ks+3)*0x199a); I(f's_lshr_b32 s{t1}, s{t1}, 16'); I(f's_sub_u32 s{t1}, s{t1}, s{sT}'); sadd(t1,t1,1)
    ppoll(vFo,False,f's{t1}')
def bhead(NK):
    stamp(23)
    if not PROG: poll([vFo],10)
    I(f's_mov_b32 s{sFst}, 0'); I(f's_mov_b32 s{sTo}, 0x40000')
    pa=min(PA,NK)
    for ks in range(pa):
        oneed(ks)
        if ks==0: stamp(12)
        emit(oload(ks))
    if pa==NK:
        if PROG: ppoll(vFo,False,8)
        I(f'buffer_load_dword v{vGg}, v7, {srd(sWS)}, s{sB1} offen sc1')
EO=E('EO',1)
if EO: bhead(KA)
TF_=208; AO=96
for nt in range(3):
    for kb in range(2):
        o=TF_+(nt*2+kb)*4
        for q in range(2):
            for p in range(2):
                b=C3+((2*kb+q)*3+nt)*4+2*p; I(f'v_cvt_pk_bf16_f32 v{o+2*q+p}, v{b}, v{b+1}')
for nt in range(3):
    for kb in range(2):
        for w_ in range(4):
            c=v(AO+(w_*3+nt)*4,4); I(f'{MF} {c}, {v(TF_+(nt*2+kb)*4,4)}, {a_(AD2+(w_*2+kb)*4,4)}, {"0" if kb==0 else c}')
for nt in range(3):
    for w_ in range(4): I(f'ds_write_b128 v{vAW}, {v(AO+(w_*3+nt)*4,4)} offset:{(w_*3+nt)*1024}')
def bmain(NK,AB,head=True):
    pa=min(PA,NK)
    gl=[f'buffer_load_dword v{vGg}, v7, {srd(sWS)}, s{sB1} offen sc1']
    if head: bhead(NK)
    g=1 if pa==NK else 0
    for ks in range(NK):
        I(f's_waitcnt vmcnt({4*(min(NK,ks+pa)-ks-1)+g})')
        check(OF+(ks%5)*16,[f's_add_u32 s{t0}, s{sMA}, {4096*ks}']+[f'buffer_load_dwordx4 {v(OF+((ks%5)*4+r)*4,4)}, v{vOA+r}, {srd(sWS)}, s{t0} offen sc1' for r in range(4)])
        last=ks==NK-1
        order=[(nt,r) for nt in range(5) for r in range(4)] if not last else [(nt,r) for r in (1,2,3,0) for nt in range(5)]
        M=[f'{MF} {v(C3+(r*5+nt)*4,4)}, {a_(AB+(ks*5+nt)*4,4)}, {v(OF+((ks%5)*4+r)*4,4)}, {"0" if ks==0 else v(C3+(r*5+nt)*4,4)}' for nt,r in order]
        X=[]
        if ks+pa<NK: oneed(ks+pa); X=oload(ks+pa)
        elif not g:
            if PROG: ppoll(vFo,False,8)
            X=[gl]; g=1
        if not last: weave(M,X,0,len(M)-2)
        else:
            emit(X)
            for i,m in enumerate(M):
                I(m)
                if i>=8: r,nt=divmod(i-8,5); I(f'ds_write_b128 v{vTW+r}, {v(C3+((r+1)*5+nt)*4,4)} offset:{1024*nt}')
bmain(KA,120,not EO)
I('s_branch Lp3t')
lab('Lp3b')
bmain(KB,0)
lab('Lp3t')
I('s_nop 7')
stamp(26)
for i in range(12,15):
    r,nt=divmod(i,5); I(f'ds_write_b128 v{vTW+r}, {v(C3+((r+1)*5+nt)*4,4)} offset:{1024*nt}')
scale=struct.unpack('<I',struct.pack('<f',2.0/(2048*640)))[0]
I('s_waitcnt vmcnt(0)')
I(f'v_sub_f32 v11, 1.0, v{vGg}'); I(f'v_cvt_pk_bf16_f32 v11, v11, v11'); I(f'v_and_b32 v11, 0xffff0000, v11'); I(f'v_mul_f32 v10, 0x{scale:x}, v{vGg}')
I('s_waitcnt lgkmcnt(0)'); I('s_barrier')
stamp(27)
AE=160; TBF=96; OA=40
for t_ in range(3):
    for p_ in range(2): I(f'ds_read_b128 {v(AE+(t_*2+p_)*4,4)}, v{vAR} offset:{p_*12288+t_*1024}')
rb_=[f'ds_read_b128 {v(TBF+(nt*3+r)*4,4)}, v{vTR} offset:{r*5120+nt*1024}' for nt in range(5) for r in range(3)]
emit(rb_[:9])
I('s_waitcnt lgkmcnt(9)')
emit(rb_[9:])
for u in range(5):
    t_=(0,1,0,1,2)[u]; e_,o_2=AE+t_*8,AE+t_*8+4; c=OA+4*u
    for p in range(2):
        if u<4: I(f'v_pk_add_f32 {v(c+2*p,2)}, {v(e_+2*p,2)}, {v(o_2+2*p,2)}'+(' neg_lo:[0,1] neg_hi:[0,1]' if u>=2 else ''))
        else: I(f'v_pk_fma_f32 {v(c+2*p,2)}, {v(o_2+2*p,2)}, v[{vSg}:{vSg+1}], {v(e_+2*p,2)} op_sel_hi:[1,0,1]')
        I(f'v_pk_mul_f32 {v(c+2*p,2)}, {v(c+2*p,2)}, v[10:11] op_sel_hi:[1,0]')
for u in range(5):
    I(f's_waitcnt lgkmcnt({12-2*u})')
    b0=TBF+u*12; c=OA+4*u; own=C3+u*4
    for p in range(2):
        I(f'v_pk_add_f32 {v(b0+2*p,2)}, {v(b0+2*p,2)}, {v(b0+4+2*p,2)}')
        I(f'v_pk_add_f32 {v(own+2*p,2)}, {v(own+2*p,2)}, {v(b0+8+2*p,2)}')
        I(f'v_pk_add_f32 {v(b0+2*p,2)}, {v(b0+2*p,2)}, {v(own+2*p,2)}')
        I(f'v_pk_fma_f32 {v(c+2*p,2)}, {v(b0+2*p,2)}, v[10:11], {v(c+2*p,2)} op_sel:[0,1,0]')
    I(f'v_cvt_pk_bf16_f32 v{c}, v{c}, v{c+1}'); I(f'v_cvt_pk_bf16_f32 v{c+1}, v{c+2}, v{c+3}')
    I(f'ds_write_b64 v{vOW if u<4 else vOW4}, {v(c,2)} offset:{(0,32,80,112,64)[u]}')
I('s_waitcnt lgkmcnt(0)')
for i in range(3): I(f'ds_read_b128 {v(64+4*i,4)}, v{vOR} offset:{1024*i}')
for i in range(3):
    I(f's_waitcnt lgkmcnt({2-i})'); I(f'buffer_store_dwordx4 {v(64+4*i,4)}, v{vOut+i}, {srd(sOUT)}, s{sB0} offen {OUTPOL}')
I(f's_or_b32 s{t0}, s2, s{sW}'); I(f's_cmp_eq_u32 s{t0}, 0'); I('s_cbranch_scc0 Lnoe')
vconst(15,WS_E); setflag(15,14)
lab('Lnoe')
if PADT:
    lab('Lpad'); I(f's_memrealtime s[{sTS}:{sTS+1}]'); I('s_waitcnt lgkmcnt(0)'); I(f's_sub_u32 s{t0}, s{sTS}, s{sTS+2}'); I(f's_cmp_lt_u32 s{t0}, {PADT}'); I('s_cbranch_scc1 Lpad')
if TS:
    stamp(28)
    I(f's_lshl_b32 s{t0}, s2, 2'); sacc(t0,sW); I(f's_lshl_b32 s{t0}, s{t0}, 8'); sadd(t0,t0,WS_TS)
    I(f'v_lshlrev_b32 v4, 2, v{vL}')
    I(f'buffer_store_dword v0, v4, {srd(sWS)}, s{t0} offen')
lab('Lend')
I('s_endpgm')
emit(RETRY)
lab('Lfin')
body_txt=A.finish()
hdr=open(os.path.join(os.path.dirname(os.path.abspath(__file__)),'..','cdna_kernels',NAME+'.s.ref')).read().split('; Override launch')[0]
o_=hdr+f'; @launch grid=(256,1,1) block=(256,1,1) lds={LDS_SZ}\n'
o_+=f'.amdgcn_target "amdgcn-amd-amdhsa--gfx950"\n.text\n.globl {K}\n.p2align 8\n.type {K},@function\n{K}:\n'+body_txt
o_+=f'''.section .rodata,"a"
.p2align 6
.amdhsa_kernel {K}
  .amdhsa_next_free_vgpr 512
  .amdhsa_next_free_sgpr 102
  .amdhsa_accum_offset 256
  .amdhsa_group_segment_fixed_size 0
  .amdhsa_kernarg_size 80
  .amdhsa_user_sgpr_count 2
  .amdhsa_user_sgpr_kernarg_segment_ptr 1
  .amdhsa_system_sgpr_workgroup_id_x 1
.end_amdhsa_kernel
'''
if DEV: o_+='.p2align 8\n.type tab_base,@object\ntab_base:\n@@INCBIN@@\n'
else: o_+=TB.emit()
o=[a for a in sys.argv[1:] if not a.startswith('--')]
open(o[0] if o else 'out.s','w').write(o_)
print('instructions:',sum(1 for l in body_txt.split('\n') if l.startswith('    ')),'nops inserted:',A.nnops,file=sys.stderr)
```

```python
import sys, os, struct
from asm import Asm
import tables as TB

NAME='gated_mix__spectral_gfnet__linear_attn_block__prompt'
DEV = '--dev' in sys.argv
TS  = '--ts' in sys.argv
E=lambda k,d: int(os.environ.get(k,str(d)))
PFX=E('PFX',0); PW=E('PW',0); POLW=os.environ.get('POLW',''); LEAD=E('LEAD',5); ROT=E('ROT',0 if PFX else 8); POLA=os.environ.get('POLA',''); POLB=os.environ.get('POLB',''); LDPOL=os.environ.get('LDPOL',''); HS=os.environ.get('HS','sc1')
CPF=E('CPF',1); KA=E('KA',1); KB=10-KA; R3=E('R3',0); POI=0; PROG=E('PROG',0); TGF=E('TGF',0); PF=E('PF',0); PFW=E('PFW',3); PFPOL=os.environ.get('PFPOL',''); PFE=E('PFE',0); HALF=1; PEEL=E('PEEL',1); WS1=E('WS1',16)
WS_Y=0; WS_R=2621440; WS_O=2*2621440; WS_KVA=3*2621440; WS_WOF=WS_KVA+65536; WS_G=WS_KVA+1048576
WS_FL=WS_G+8192
FL_Y=0; FL_KV=256; FL_R=768; FL_O=960; FL_E=1216; NFL=2240
WS_E=WS_FL+NFL*128; WS_TS=WS_E+128; WS_SZ=WS_TS+256*4*256
OOB=0x7ff00000
SLOT=36880; SEG0=16384; SEG1=16384+10240+16
L_G=2*SLOT+16384; L_FLG=155648; L_PP=L_FLG+64; LDS_SZ=L_PP+4096
L_PQ=[0,10880]; PQS=136; L_RED=0; L_XCH=[24576,24576+8704]; L_KVI=43008
L_TA=57344; L_TB=81920; L_OUT=143360
sX,sSEG,sWS,sWR,sWI,sTAB,sWO,sOUT,sGATE=4,8,12,16,20,24,28,32,36
sW,sWr,sWc,sTyp,sRb,sGrp,sTag,sCnt=40,41,42,43,44,45,46,47
sAo,sBo,sBstep,sMA,sMB,sDl,sIs,sDm=48,49,50,51,52,53,54,55
sT,sCh,sN2,sCt,sAct,sTo=56,57,58,59,60,61
t0,t1,t2,t3,t4,t5=62,63,64,65,66,67
sK=68; sEx=88; sTS=90; sB0,sB1,sGo,sA2=94,95,96,98; sBS=84; sGb,sGe,sRot=99,100,101
OUTPOL=os.environ.get('OUTPOL','')
ATP=os.environ.get('ATP','')
def srd(n): return f's[{n}:{n+3}]'
def v(a,n=1): return f'v{a}' if n==1 else f'v[{a}:{a+n-1}]'
def a_(a,n=1): return f'a{a}' if n==1 else f'a[{a}:{a+n-1}]'
vL,vN,vG=1,2,3
A=Asm(); out=[A]
class Buf(list):
    def __call__(s,t): s.append(t)
def I(t): out[-1](t)
def cap(f,*a):
    b=Buf(); out.append(b); f(*a); out.pop(); return list(b)
def emit(L):
    for x in L:
        if isinstance(x,(list,tuple)): emit(x)
        else: I(x)
def weave(P,F,start=0,end=None):
    end=len(P) if end is None else end
    n=end-start; k=0
    for i,p in enumerate(P):
        emit([p])
        if start<=i<end:
            tgt=((i-start+1)*len(F))//n
            while k<tgt: emit([F[k]]); k+=1
    while k<len(F): emit([F[k]]); k+=1
def lab(n): I(n+':')
def stamp(i):
    if E('PADT',0) and E('PADK',0)==i:
        I(f's_memrealtime s[{sTS+2}:{sTS+3}]'); I('s_waitcnt lgkmcnt(0)')
    if TS:
        I(f's_memrealtime s[{sTS}:{sTS+1}]'); I('s_waitcnt lgkmcnt(0)'); I(f'v_writelane_b32 v0, s{sTS}, {i}')
        if i in (3,14,12,26):
            I(f's_memtime s[{sTS}:{sTS+1}]'); I('s_waitcnt lgkmcnt(0)'); I(f'v_writelane_b32 v0, s{sTS}, {i+32}')
def smul(d,x,c): I(f's_mul_i32 s{d}, s{x}, {c}')
def sadd(d,x,c): I(f's_add_u32 s{d}, s{x}, {c if isinstance(c,int) else "s%d"%c[0]}')
def sacc(d,x): I(f's_add_u32 s{d}, s{d}, s{x}')
def vconst(r,c): I(f'v_mov_b32 v{r}, {c}')
def div10(dst,src): I(f'v_mul_u32_u24 v{dst}, 0x199a, v{src}'); I(f'v_lshrrev_b32 v{dst}, 16, v{dst}')
uid=[0]
SLP=E('SLP',6)
def poll(voffs,tmp):
    I(f's_mov_b32 s{sTo}, 0x40000')
    for i,vo in enumerate(voffs): I(f'buffer_load_dword v{tmp+i}, v{vo}, {srd(sWS)}, 0 offen sc1')
    for i,vo in enumerate(voffs):
        uid[0]+=1; L=f'Lpoll{uid[0]}'
        I(f's_waitcnt vmcnt({len(voffs)-1-i})')
        lab(L)
        I(f'v_cmp_ne_u32 vcc, s{sTag}, v{tmp+i}')
        I(f's_cbranch_vccz {L}d')
        I('s_mov_b64 exec, vcc')
        if E('SLP1',6): I(f's_sleep {E("SLP1",6)}')
        I(f'buffer_load_dword v{tmp+i}, v{vo}, {srd(sWS)}, 0 offen sc1')
        I(f's_sub_u32 s{sTo}, s{sTo}, 1')
        I('s_waitcnt vmcnt(0)')
        I(f's_cbranch_scc0 {L}'); lab(L+'d')
        I('s_mov_b64 exec, -1')
def poll2(vo,tmp):
    uid[0]+=1; L=f'Lpoll{uid[0]}'
    I(f's_mov_b32 s{sTo}, 0x40000')
    I(f'buffer_load_dwordx2 {v(tmp,2)}, v{vo}, {srd(sWS)}, 0 offen sc1')
    I(f's_waitcnt vmcnt(0)')
    lab(L)
    I(f'v_cmp_ne_u32 vcc, s{sTag}, v{tmp}'); I(f'v_cmp_ne_u32 s[{t4}:{t5}], s{sTag}, v{tmp+1}'); I(f's_or_b64 vcc, vcc, s[{t4}:{t5}]')
    I(f's_cbranch_vccz {L}d')
    I('s_mov_b64 exec, vcc')
    if SLP: I(f's_sleep {SLP}')
    I(f'buffer_load_dwordx2 {v(tmp,2)}, v{vo}, {srd(sWS)}, 0 offen sc1')
    I(f's_sub_u32 s{sTo}, s{sTo}, 1')
    I('s_waitcnt vmcnt(0)')
    I(f's_cbranch_scc0 {L}'); lab(L+'d')
    I('s_mov_b64 exec, -1')
def ldssync(vaddr,tmp):
    I(f'v_mov_b32 v{tmp}, 1'); I('s_waitcnt lgkmcnt(0)')
    I('s_mov_b64 exec, 1'); I(f'ds_add_u32 v{vaddr}, v{tmp}'); I('s_mov_b64 exec, -1')
    uid[0]+=1; L=f'Llp{uid[0]}'
    I(f's_mov_b32 s{sTo}, 0x400000'); lab(L)
    I(f'ds_read_b32 v{tmp}, v{vaddr}'); I('s_waitcnt lgkmcnt(0)')
    I(f'v_cmp_gt_u32 vcc, 2, v{tmp}')
    I(f's_cbranch_vccz {L}d'); I(f's_sub_u32 s{sTo}, s{sTo}, 1'); I(f's_cbranch_scc0 {L}'); lab(L+'d')
def setflag(voff,tmp):
    I(f'v_mov_b32 v{tmp}, s{sTag}'); I('s_mov_b64 exec, 1')
    I(f'buffer_store_dword v{tmp}, v{voff}, {srd(sWS)}, 0 offen sc1'); I('s_mov_b64 exec, -1')
def mksrd(d,p,n):
    I(f's_mov_b32 s{d}, s{p}'); I(f's_mov_b32 s{d+1}, s{p+1}'); I(f's_mov_b32 s{d+2}, {n}'); I(f's_mov_b32 s{d+3}, 0x20000')
MF='v_mfma_f32_16x16x32_bf16'
K=f'{NAME}_kernel'
ACC=16
FX=dict(A=100,B=116); FY=dict(A=140,B=156)
vAo=180; vBo=184; vRA=189; vRB=191
vKA=200; vE0=208; vWp,vWm,vWm0=214,215,216; WP=220
lab('Lstart')
I(f's_cmp_ge_u32 s2, 256'); I('s_cbranch_scc1 Lend')
PADT=E('PADT',0)
if TS or PADT: I(f's_memrealtime s[{sTS+2}:{sTS+3}]')
I(f's_load_dwordx16 s[{sK}:{sK+15}], s[0:1], 0')
I(f's_load_dwordx4 s[{sK+16}:{sK+19}], s[0:1], 64')
I(f'v_lshrrev_b32 v4, 6, v0'); I(f'v_and_b32 v{vL}, 63, v0')
I(f'v_readfirstlane_b32 s{sW}, v4')
I(f's_getpc_b64 s[{sGATE}:{sGATE+1}]')
lab('Lpc')
I(f's_add_u32 s{sTAB}, s{sGATE}, tab_base@rel32@lo+4'); I(f's_addc_u32 s{sTAB+1}, s{sGATE+1}, tab_base@rel32@hi+12')
I(f's_mov_b32 s{sGATE+2}, Lfin-Lpc'); I(f's_mov_b32 s{sGATE+3}, 0x20000')
I(f'v_lshlrev_b32 v9, 4, v{vL}')
I(f's_lshr_b32 s{t0}, s2, 3'); I(f's_and_b32 s{t1}, s2, 7')
if CPF:
    I(f's_lshl_b32 s{t2}, s{t0}, 10'); I(f's_cmp_eq_u32 s{sW}, 3'); I(f's_cbranch_scc0 Lnocpf')
    I(f'buffer_load_dwordx4 v[96:99], v9, {srd(sGATE)}, s{t2} offen'); lab('Lnocpf')
I(f'v_and_b32 v{vN}, 15, v{vL}'); I(f'v_lshrrev_b32 v{vG}, 4, v{vL}')
I(f's_lshr_b32 s{sRb}, s{t1}, 2'); I(f's_lshl_b32 s{sRb}, s{sRb}, 3'); I(f's_lshr_b32 s{t2}, s{t0}, 2'); sacc(sRb,t2)
I(f's_and_b32 s{sWr}, s{sW}, 1'); I(f's_lshr_b32 s{sWc}, s{sW}, 1')
I(f'v_and_b32 v5, 7, v{vL}'); I(f'v_xor_b32 v5, v5, v{vG}'); I(f'v_lshrrev_b32 v4, 3, v{vL}'); I(f'v_mul_u32_u24 v4, 40960, v4')
I(f'v_lshl_add_u32 v{vAo}, v5, 4, v4'); I(f'v_xor_b32 v{vAo+1}, 64, v{vAo}')
I(f's_lshl_b32 s{t3}, s{sRb}, 1'); sacc(t3,sWc); smul(t3,t3,1280); smul(t2,sWr,32*40960); I(f's_add_u32 s{sA2}, s{t3}, s{t2}')
I(f's_bfe_u32 s{sTyp}, s{t0}, 0x10001')
I(f's_and_b32 s{sGrp}, s{t1}, 3'); I(f's_lshl_b32 s{sGrp}, s{sGrp}, 1'); I(f's_and_b32 s{t2}, s{t0}, 1'); sacc(sGrp,t2)
if E('P3MAP',1)==0:
    I(f's_lshl_b32 s{sN2}, s{t1}, 2'); I(f's_lshr_b32 s{t2}, s{t0}, 3'); sacc(sN2,t2); I(f's_and_b32 s{sCt}, s{t0}, 7')
else:
    I(f's_lshr_b32 s{sN2}, s{t1}, 1'); I(f's_lshl_b32 s{sN2}, s{sN2}, 3'); I(f's_lshr_b32 s{t2}, s{t0}, 2'); sacc(sN2,t2)
    I(f's_and_b32 s{sCt}, s{t1}, 1'); I(f's_lshl_b32 s{sCt}, s{sCt}, 2'); I(f's_and_b32 s{t2}, s{t0}, 3'); sacc(sCt,t2)
if ROT:
    a,ma,b,mb,c,d={1:(5,7,10,3,0,0),2:(0,0,0,0,10,20),3:(20,1,20,1,0,0),4:(10,3,10,3,0,0),5:(20,1,0,0,10,0),6:(0,0,20,1,10,20),7:(10,1,20,1,0,0),8:(5,7,10,3,10,20),9:(0,0,0,0,0,20),10:(0,0,0,0,20,20)}[ROT]
    I(f's_lshr_b32 s{t2}, s{t0}, 2'); I(f's_and_b32 s{t2}, s{t2}, {ma}'); smul(t2,t2,a); I(f's_and_b32 s{t3}, s{t0}, {mb}'); smul(t3,t3,b); sacc(t2,t3)
    I(f's_and_b32 s{t3}, s{t1}, 3'); smul(t3,t3,c); sacc(t2,t3); I(f's_lshr_b32 s{t3}, s{t1}, 2'); smul(t3,t3,d); sacc(t2,t3)
    I(f's_lshr_b32 s{t2}, s{t2}, 2'); smul(t3,t2,26); I(f's_lshr_b32 s{t3}, s{t3}, 8'); smul(t3,t3,10); I(f's_sub_u32 s{sIs}, s{t2}, s{t3}')
else: I(f's_mov_b32 s{sIs}, 0')
I(f's_lshl_b32 s{sMA}, s{sW}, 12')
I(f's_lshl_b32 s{sAo}, s{sIs}, 7'); sacc(sAo,sA2)
I(f's_mov_b32 s{sTAB+2}, {TB.TAB_SZ}'); I(f's_mov_b32 s{sTAB+3}, 0x20000')
I(f's_andn2_b32 s{t0}, s{sTyp}, s{sWc}')
I(f's_sub_u32 s{t1}, 1, s{sTyp}'); sadd(t2,sWc,1); I(f's_mul_i32 s{t1}, s{t1}, s{t2}'); smul(t1,t1,1280)
smul(t2,sGrp,160); sacc(t1,t2); smul(t2,sWr,32*3840); sacc(t1,t2)
smul(t2,sGrp,102400); smul(t3,sWr,5120); sacc(t2,t3)
smul(sMB,sWc,10256); sacc(sMB,t3); sadd(sMB,sMB,SEG0)
I(f's_cmp_eq_u32 s{t0}, 1')
I(f's_cselect_b32 s{t1}, s{t2}, s{t1}')
I(f's_mov_b32 s{sBstep}, {64*3840}'); I(f's_cselect_b32 s{sBstep}, 10240, s{sBstep}')
I(f's_cselect_b64 s[{t4}:{t5}], -1, 0')
I(f's_mul_i32 s{sBo}, s{sIs}, s{sBstep}')
I(f's_mov_b32 s{t2}, 3840')
def dmaA(i): return [f's_add_u32 m0, s{sMA}, {1024*i}', f's_add_u32 s{t3}, s{sAo}, {i*8*40960}', f'buffer_load_dwordx4 v{vAo+(i&1)}, {srd(sX)}, s{t3} offen {POLA} lds']
def dmaB(i): return [f's_add_u32 m0, s{sMB}, {1024*i}', 's_nop 0', f'buffer_load_dwordx4 v{vBo+i}, {srd(sSEG)}, s{sBo} offen {POLB} lds']
def advA(d):
    return [f's_add_u32 s{sIs}, s{sIs}, 1', f's_cmp_eq_u32 s{sIs}, 10', f's_cselect_b32 s{sIs}, 0, s{sIs}',
            f's_lshl_b32 s{sAo}, s{sIs}, 7', f's_add_u32 s{sAo}, s{sAo}, s{sA2}', f's_add_u32 s{sMA}, s{sMA}, {d}']
def advB(d): return [f's_mul_i32 s{sBo}, s{sIs}, s{sBstep}', f's_add_u32 s{sMB}, s{sMB}, {d}']
def dma_adv(d):
    return [f's_add_u32 s{sIs}, s{sIs}, 1', f's_cmp_eq_u32 s{sIs}, 10', f's_cselect_b32 s{sIs}, 0, s{sIs}',
            f's_lshl_b32 s{sAo}, s{sIs}, 7', f's_add_u32 s{sAo}, s{sAo}, s{sA2}', f's_mul_i32 s{sBo}, s{sIs}, s{sBstep}',
            f's_add_u32 s{sMA}, s{sMA}, {d}', f's_add_u32 s{sMB}, s{sMB}, {d}']
def boff(i):
    I(f'v_add_u32 v4, {64*i}, v{vL}'); div10(5,4)
    I(f'v_lshlrev_b32 v4, 4, v4'); I(f'v_mul_u32_u24 v6, 160, v5'); I(f'v_sub_u32 v6, v4, v6')
    I(f'v_and_b32 v7, 3, v5'); I(f'v_bfe_u32 v8, v5, 2, 2'); I(f'v_lshl_or_b32 v7, v8, 3, v7')
    I(f'v_lshrrev_b32 v8, 4, v5'); I(f'v_lshl_or_b32 v7, v8, 2, v7')
    I(f'v_mad_u32_u24 v7, v7, s{t2}, v6'); I(f'v_cndmask_b32 v7, v7, v4, s[{t4}:{t5}]'); I(f'v_add_u32 v{vBo+i}, s{t1}, v7')
boff(0)
if TS: I(f's_memrealtime s[{sTS}:{sTS+1}]')
I('s_waitcnt lgkmcnt(0)')
if TS:
    I(f'v_writelane_b32 v0, s{sTS}, 4'); stamp(2)
mksrd(sX,sK+0,2621440)
WSB=E('WSB',128)*1048576
if WSB: I(f's_add_u32 s{sK+18}, s{sK+18}, {WSB}'); I(f's_addc_u32 s{sK+19}, s{sK+19}, 0')
I(f's_cmp_eq_u32 s{t0}, 1')
I(f's_cselect_b32 s{sSEG}, s{sTAB}, s{sK+8}'); I(f's_cselect_b32 s{sSEG+1}, s{sTAB+1}, s{sK+9}')
I(f's_mov_b32 s{sSEG+2}, 2457600'); I(f's_cselect_b32 s{sSEG+2}, {TB.TF_SZ}, s{sSEG+2}'); I(f's_mov_b32 s{sSEG+3}, 0x20000')
for i in range(4): emit(dmaA(i)); boff(i+1)
if TS: I(f'v_writelane_b32 v0, s{sTS+2}, 0')
def setup0():
    mksrd(sWS,sK+18,WS_SZ); mksrd(sWO,sK+10,819200)
    I(f's_lshl_b32 s{sDm}, s2, 2'); sacc(sDm,sW)
    smul(t0,sDm,0x667); I(f's_lshr_b32 s{t0}, s{t0}, 16')
    smul(t1,t0,40); I(f's_sub_u32 s{t1}, s{sDm}, s{t1}')
    smul(t2,t1,52); I(f's_lshr_b32 s{t2}, s{t2}, 8')
    smul(sGo,t2,5); I(f's_sub_u32 s{t1}, s{t1}, s{sGo}')
    smul(t2,t2,80)
    I(f's_lshl_b32 s{t0}, s{t0}, 2')
    I(f'v_bfe_u32 v4, v{vL}, 3, 2'); I(f'v_add_u32 v4, s{t0}, v4'); I(f'v_mul_u32_u24 v5, 0x3334, v4'); I(f'v_lshrrev_b32 v5, 16, v5')
    I(f'v_lshrrev_b32 v6, 5, v{vL}'); I(f'v_add_u32 v5, v5, v6')
    I(f'v_mul_u32_u24 v5, 20, v5'); I(f'v_lshl_add_u32 v5, v4, 2, v5'); I(f'v_bfe_u32 v4, v{vL}, 1, 2'); I(f'v_add_u32 v5, v5, v4')
    I(f's_lshr_b32 s{t0}, s{t1}, 1'); smul(t0,t0,640); I(f's_and_b32 s{sGo}, s{t1}, 1'); I(f's_lshl_b32 s{sGo}, s{sGo}, 5'); sacc(t0,sGo)
    I(f's_movk_i32 s{sGo}, 640')
    I([f's_cmp_eq_u32 s{t1}, 4', f's_cselect_b32 s{t0}, 64, s{t0}', f's_cselect_b32 s{t1}, s{sGo}, 16'])
    I(f'v_and_b32 v4, 1, v{vL}'); I(f'v_mul_u32_u24 v4, s{t1}, v4'); I(f's_movk_i32 s{t1}, 1280'); I(f'v_mad_u32_u24 v213, v5, s{t1}, v4')
    sacc(t0,t2)
    I([f's_cmp_lt_u32 s2, 200', f's_cselect_b32 s{sGo}, s{t0}, {OOB}'])
    I(f's_lshl_b32 s{t0}, s{sDm}, 6'); sadd(sDl,t0,WS_KVA)
    I(f'v_lshlrev_b32 v217, 2, v{vL}'); vconst(212,0)
def setupPF():
    I(f's_lshr_b32 s{t0}, s2, 3'); I(f's_lshl_b32 s{t0}, s{t0}, 2'); sacc(t0,sW)
    I(f's_lshl_b32 s{t1}, s{t0}, 3'); I(f'v_and_b32 v4, 7, v{vL}'); I(f'v_add_u32 v4, s{t1}, v4'); I(f'v_lshrrev_b32 v5, 4, v4'); I(f'v_and_b32 v4, 15, v4')
    I(f'v_lshl_add_u32 v4, v5, 5, v4'); I(f's_bfe_u32 s{t1}, s2, 0x10002'); I(f's_lshl_b32 s{t1}, s{t1}, 4'); I(f'v_add_u32 v4, s{t1}, v4'); I(f'v_mul_u32_u24 v10, 1280, v4')
    smul(t1,t0,5); I(f'v_subrev_u32 v4, 8, v{vL}'); I(f'v_add_u32 v4, s{t1}, v4'); I(f'v_min_u32 v4, 575, v4')
    I(f'v_mul_u32_u24 v5, 0x1c72, v4'); I(f'v_lshrrev_b32 v5, 16, v5'); I(f'v_mul_u32_u24 v6, 9, v5'); I(f'v_sub_u32 v6, v4, v6')
    I(f'v_mul_u32_u24 v7, 86, v6'); I(f'v_lshrrev_b32 v7, 8, v7'); I(f'v_mul_u32_u24 v8, 3, v7'); I(f'v_sub_u32 v8, v6, v8')
    I(f'v_mul_u32_u24 v5, 3840, v5'); I(f'v_mul_u32_u24 v7, 1280, v7'); I(f'v_lshlrev_b32 v8, 7, v8'); I(f'v_add3_u32 v5, v5, v7, v8')
    I(f's_and_b32 s{t2}, s2, 3'); smul(t1,t2,320); I(f's_and_b32 s{t1}, s{t1}, {0xffffff80}'); I(f'v_add_u32 v11, s{t1}, v5')
    I(f's_lshl_b32 s{t1}, s{t0}, 1'); I(f'v_subrev_u32 v4, 13, v{vL}'); I(f'v_add_u32 v4, s{t1}, v4'); I(f'v_min_u32 v4, 159, v4')
    I(f'v_lshlrev_b32 v5, 7, v4'); vconst(6,102400-10240); I(f'v_cmp_lt_u32 vcc, 79, v4'); I(f'v_cndmask_b32 v6, 0, v6, vcc'); I(f'v_add_u32 v5, v5, v6')
    smul(t1,t2,204800); I(f'v_add_u32 v12, s{t1}, v5')
    I(f'v_cmp_gt_u32 s[{t4}:{t5}], 8, v{vL}'); I(f'v_cmp_gt_u32 vcc, 13, v{vL}')
    I(f'v_cndmask_b32 v11, v12, v11, vcc'); I(f'v_cndmask_b32 v10, v11, v10, s[{t4}:{t5}]')
    for d,(x_,w_,f_) in ((96,(sK,sK+8,sTAB)),(97,(sK+1,sK+9,sTAB+1))):
        I(f'v_mov_b32 v4, s{f_}'); I(f'v_mov_b32 v5, s{w_}'); I(f'v_mov_b32 v6, s{x_}'); I(f'v_cndmask_b32 v4, v4, v5, vcc'); I(f'v_cndmask_b32 v{d}, v4, v6, s[{t4}:{t5}]')
    vconst(4,10240); vconst(5,64*3840); I(f'v_cndmask_b32 v4, v4, v5, vcc'); vconst(5,128); I(f'v_cndmask_b32 v98, v4, v5, s[{t4}:{t5}]')
    I(f'v_lshl_add_u32 v10, v98, 1, v10')
    I([f'v_add_co_u32 v96, vcc, v96, v10', f'v_addc_co_u32 v97, vcc, 0, v97, vcc'])
def pf(adv=True):
    L=['s_mov_b64 exec, 0x7fff', f'global_load_dword v99, v[96:97], off {PFPOL}', 's_mov_b64 exec, -1']
    if adv: L+=['v_add_co_u32 v96, vcc, v96, v98', 'v_addc_co_u32 v97, vcc, 0, v97, vcc']
    return L
def setup1():
    I([f's_add_u32 s{t0}, s{sK+18}, {WS_E}', f's_addc_u32 s{t1}, s{sK+19}, 0', f's_load_dword s{sTag}, s[{t0}:{t1}], 0'])
    mksrd(sWR,sK+2,1314816); mksrd(sWI,sK+4,1314816); mksrd(sGATE,sK+12,1280); mksrd(sOUT,sK+14,2621440)
    vconst(5,0); I(f'v_lshlrev_b32 v4, 2, v{vN}'); I(f'v_add_u32 v4, {L_FLG}, v4'); I(f'ds_write_b32 v4, v5')
    I(f'v_lshrrev_b32 v4, 1, v{vN}'); I(f'v_xor_b32 v4, v4, v{vG}'); I(f'v_lshlrev_b32 v4, 4, v4')
    I(f'v_lshl_add_u32 v4, v{vN}, 7, v4'); I(f's_lshl_b32 s{t0}, s{sWr}, 13'); I(f'v_add_u32 v{vRA}, s{t0}, v4'); I(f'v_xor_b32 v{vRA+1}, 64, v{vRA}')
    I(f'v_lshrrev_b32 v4, 2, v{vL}'); I(f'v_mul_u32_u24 v4, 160, v4'); I(f'v_and_b32 v5, 3, v{vL}'); I(f'v_lshlrev_b32 v5, 3, v5'); I(f'v_add_u32 v4, v4, v5')
    smul(t0,sWc,80); smul(t1,sWc,10256)
    I([f's_cmp_eq_u32 s{sTyp}, 0', f's_cselect_b32 s{t0}, s{t0}, s{t1}', f's_cselect_b32 s{t1}, {SEG1-SEG0-80}, 0']); sadd(t0,t0,SEG0)
    I(f'v_add_u32 v{vRB}, s{t0}, v4'); I(f'v_add_u32 v{vRB+1}, 32, v{vRB}')
    I(f'v_mov_b32 v6, s{t1}'); I(f'v_cmp_lt_u32 vcc, 8, v5'); I(f'v_cndmask_b32 v6, 0, v6, vcc'); I(f'v_add3_u32 v{vRB+2}, v{vRB}, v6, 64')
    I(f'v_add_u32 v4, s{t1}, v{vRB}'); I(f'v_add_u32 v{vRB+3}, 96, v4'); I(f'v_add_u32 v{vRB+4}, 0x80, v4')
    I(f's_lshr_b32 s{t0}, s{sRb}, 1'); I(f's_lshl_b32 s{t0}, s{t0}, 3'); sacc(t0,sGrp)
    I(f's_lshr_b32 s{t1}, s{t0}, 4'); sadd(t1,t1,16)
    I(f's_and_b32 s{t2}, s{t0}, 15'); I(f's_lshl_b32 s{t2}, s{t2}, 1'); sacc(t2,sWr)
    I(f's_lshl_b32 s{t0}, s{sGrp}, 2'); sacc(t0,sW)
    I([f's_cmp_eq_u32 s{sTyp}, 0', f's_cselect_b32 s{sT}, s{t0}, s{t2}', f's_cselect_b32 s{sCh}, s{sRb}, s{t1}'])
    I(f's_or_b32 s{t0}, s{sRb}, s{sWc}'); I(f's_and_b32 s{t0}, s{t0}, s{sTyp}'); I(f's_xor_b32 s{sAct}, s{t0}, 1')
    I(f's_lshl_b32 s{t0}, s{sCh}, 6'); I([f's_cmp_ge_u32 s{sCh}, 10', f's_cselect_b32 s{t1}, 638, 0']); I(f's_sub_u32 s{t0}, s{t0}, s{t1}')
    I([f's_cmp_eq_u32 s{sAct}, 1', f's_cselect_b32 s{t0}, s{t0}, {OOB}'])
    I(f's_mov_b32 s{t1}, {256*642}'); I(f'v_lshlrev_b32 v10, 2, v{vN}'); I(f'v_add_u32 v10, s{t0}, v10')
    I(f'v_mad_u32_u24 v{vWp}, v{vG}, s{t1}, v10'); I(f'v_sub_u32 v11, 3, v{vG}'); I(f'v_mad_u32_u24 v{vWm}, v11, s{t1}, v10')
    I(f's_movk_i32 s{t2}, 1024')
    I([f's_cmp_eq_u32 s{sT}, 0', f's_cselect_b32 s{t0}, {1024*642}, 0', f's_cselect_b32 s{t2}, 32, s{t2}'])
    I(f'v_mov_b32 v11, s{t0}'); I(f'v_cmp_eq_u32 vcc, 0, v{vG}'); I(f'v_cndmask_b32 v11, 0, v11, vcc'); I(f'v_sub_u32 v11, {256*642}, v11'); I(f'v_add_u32 v{vWm0}, v{vWm}, v11')
    sacc(t2,sT); smul(sB0,sT,642); smul(sB1,t2,642)
    I(f'v_mul_u32_u24 v4, {64*642}, v{vN}'); I(f'v_mov_b32 v5, s{sB0}'); I(f'v_mov_b32 v6, s{sB1}')
    I(f'v_and_b32 v7, 16, v{vL}'); I(f'v_cmp_eq_u32 vcc, 0, v7'); I(f'v_cndmask_b32 v5, v6, v5, vcc'); I(f'v_add_u32 v4, v4, v5')
    I(f'v_sub_u32 v5, {2048*642}, v4'); vconst(6,1024*642); I(f'v_cmp_eq_u32 vcc, 0, v4'); I(f'v_cndmask_b32 v5, v5, v6, vcc')
    I(f'v_cmp_gt_u32 vcc, 32, v{vL}'); I(f'v_cndmask_b32 v4, v5, v4, vcc')
    I([f's_cmp_eq_u32 s{sCh}, 0', f's_cselect_b32 s{t0}, 0, {OOB}']); I(f'v_add_u32 v254, s{t0}, v4')
    for i in range(4): vconst(vE0+i,OOB)
    smul(t0,sWr,KA); smul(t1,sWr,KB); sadd(t1,t1,2*KA); I([f's_cmp_eq_u32 s{sWc}, 0', f's_cselect_b32 s{sRot}, s{t0}, s{t1}', f's_cselect_b32 s{t2}, {5*KA-1}, {5*KB-1}'])
    smul(t0,sCt,5120); smul(t1,sRot,40960); sacc(t0,t1); sadd(sGb,t0,WS_WOF); sadd(sGe,sGb,KB*40960)
    if R3:
        if E('P3MAP',1)==0: smul(t0,sCt,10); I(f's_lshr_b32 s85, s{t0}, 3')
        else: I(f's_and_b32 s{t0}, s{sCt}, 3'); smul(t0,t0,10); I(f's_lshr_b32 s85, s{t0}, 2')
    else: I('s_mov_b32 s85, 0')
    I(f's_min_u32 s84, s85, {KB-1}'); I([f's_cmp_eq_u32 s{sWc}, 0', f's_cselect_b32 s84, 0, s84'])
    smul(t0,84,40960); I(f's_add_u32 s{sGo}, s{sGb}, s{t0}')
    I(f'v_min_u32 v9, s{t2}, v{vL}')
    I(f'v_lshlrev_b32 v4, 3, v{vL}'); I(f's_lshl_b32 s{t0}, s{sW}, 10'); sadd(t0,t0,L_PP); I(f'v_add_u32 v213, s{t0}, v4')
    I(f's_lshl_b32 s{t0}, s{sDm}, 10'); sadd(t0,t0,WS_WOF); I([f's_cmp_lt_u32 s2, 200', f's_cselect_b32 s{sB0+3}, s{t0}, {OOB}'])
    I(f's_lshl_b32 s{t0}, s{sDm}, 2'); sadd(t0,t0,WS_FL+FL_E*128); I(f'v_mov_b32 v217, s{t0}')
    I(f'v_mov_b32 v4, v9'); I(f'v_mul_u32_u24 v5, 52, v4'); I(f'v_lshrrev_b32 v5, 8, v5'); I(f'v_mad_u32_u24 v4, v5, 35, v4')
    smul(t0,sRot,40); smul(t1,sCt,5); sacc(t0,t1); I(f'v_add_u32 v4, s{t0}, v4'); I(f'v_lshlrev_b32 v4, 2, v4'); I(f'v_add_u32 v196, {WS_FL+FL_E*128}, v4')
    I(f's_lshl_b32 s{t0}, s{sGrp}, 1'); sacc(t0,sWc); I(f's_lshl_b32 s{t0}, s{t0}, 8'); sadd(t0,t0,WS_FL+FL_E*128)
    I(f'v_lshlrev_b32 v4, 2, v{vL}'); I(f'v_add_u32 v197, s{t0}, v4')
    if PW:
        smul(t0,sDm,1408); I(f'v_lshlrev_b32 v4, 7, v{vL}'); I(f'v_add_u32 v5, s{t0}, v4'); vconst(7,OOB>>1); I(f'v_cmp_gt_u32 vcc, 11, v{vL}'); I(f'v_cndmask_b32 v98, v7, v5, vcc')
    if POI:
        smul(t0,sWr,16*81920); I(f's_lshl_b32 s{t1}, s{sCh}, 12'); sacc(t0,t1)
        I(f's_lshr_b32 s{t1}, s{sT}, 1'); I(f's_lshl_b32 s{t1}, s{t1}, 8'); sacc(t0,t1); sadd(t0,t0,WS_R)
        I([f's_cmp_eq_u32 s{sAct}, 1', f's_cselect_b32 s86, s{t0}, 0x30000000'])
        I(f's_lshl_b32 s{t1}, s{sRb}, 1'); sacc(t1,sWr); smul(t1,t1,81920); sadd(t1,t1,WS_O)
        smul(t2,sGrp,10); I(f's_lshr_b32 s{t0}, s{t2}, 2'); I(f's_lshl_b32 s{t0}, s{t0}, 12'); sacc(t1,t0); I(f's_and_b32 s{t0}, s{t2}, 3'); I(f's_lshl_b32 s{t0}, s{t0}, 8'); sacc(t1,t0)
        I(f's_and_b32 s{t0}, s{sTyp}, s{sWc}'); I(f's_mov_b32 s87, {4*81920}'); I(f's_mov_b32 s93, 0x30000000'); I(f's_mov_b32 s{t4}, 81920')
        I([f's_cmp_eq_u32 s{t0}, 1', f's_cselect_b32 s86, s{t1}, s86', f's_cselect_b32 s87, 256, s87', f's_cselect_b32 s93, 3072, s93', f's_cselect_b32 s92, s{t2}, 0', f's_cselect_b32 s{t4}, 1024, s{t4}'])
        I(f'v_lshlrev_b32 v255, 4, v{vN}'); I(f'v_mad_u32_u24 v255, v{vG}, s{t4}, v255')
        for i in range(4): vconst(176+i,-1)
    I(f'v_lshlrev_b32 v218, 4, v{vL}'); I(f'v_add_u32 v219, 0x1000, v218')
weave([dmaB(i) for i in range(5)]+[dma_adv(SLOT)],cap(setup0))
I(f's_lshl_b32 s{t0}, s{sW}, 10'); I(f's_add_u32 m0, s{t0}, {L_PP}'); I(f'buffer_load_dwordx4 v213, {srd(sWO)}, s{sGo} offen lds')
I('s_mov_b64 exec, 0xffff'); I(f'buffer_store_dword v212, v217, {srd(sWS)}, s{sDl} offen sc1'); I('s_mov_b64 exec, -1')
A1AT=E('A1AT',4); B1AT=E('B1AT',0); A2AT=E('A2AT',-1)
gA1=[dmaA(i) for i in range(4)]+[advA(SLOT)]; gB1=[dmaB(i) for i in range(5)]+[advB(SLOT)]
stamp(5)
if PFX:
    setupPF()
    for _ in range(LEAD-2): emit(pf())
if A1AT==7: weave(cap(setup1),gA1)
else: setup1()
I(f's_cmp_eq_u32 s{sTyp}, 0'); I('s_cbranch_scc0 LsetFQ')
I(f's_lshl_b32 s{t0}, s{sWc}, 13'); smul(t1,sWr,1792); sacc(t0,t1); sadd(t0,t0,L_RED)
I(f'v_lshlrev_b32 v4, 2, v{vL}'); I(f'v_add_u32 v{vE0}, s{t0}, v4')
I(f's_lshl_b32 s{t0}, s{sGrp}, 1'); sacc(t0,sWc); I(f's_lshl_b32 s{t0}, s{t0}, 12'); sacc(t0,t1); sadd(t0,t0,WS_KVA)
I(f'v_add_u32 v{vE0+1}, s{t0}, v4')
I(f's_cmp_eq_u32 s{sWr}, 0'); I(f's_cselect_b32 s{t1}, 64, 8'); I(f'v_cmp_gt_u32 vcc, s{t1}, v{vL}')
I(f'v_cndmask_b32 v{vE0+2}, v{vE0+2}, v{vE0+1}, vcc')
I(f's_lshl_b32 s{t0}, s{sGrp}, 2'); sacc(t0,sW); I(f's_lshl_b32 s{t0}, s{t0}, 4'); sacc(t0,sRb)
I(f's_lshl_b32 s{t0}, s{t0}, 7'); sadd(t0,t0,WS_FL+FL_KV*128); I(f'v_mov_b32 v{vE0+3}, s{t0}')
I('s_branch Lsetdone')
lab('LsetFQ')
I(f's_cmp_eq_u32 s{sWc}, 0'); I('s_cbranch_scc0 Lsetdone')
I(f's_lshl_b32 s{t0}, s{sRb}, 1'); sacc(t0,sWr); smul(t0,t0,5120); smul(t1,sGrp,640); sacc(t0,t1)
I(f's_mov_b32 s{t1}, 163840'); I(f'v_lshlrev_b32 v4, 3, v{vN}'); I(f'v_mad_u32_u24 v4, v{vG}, s{t1}, v4'); I(f'v_add_u32 v{vE0}, s{t0}, v4')
I(f's_lshl_b32 s{t0}, s{sGrp}, 1'); sacc(t0,sWr); I(f's_lshl_b32 s{t0}, s{t0}, 4'); sacc(t0,sRb)
I(f's_lshl_b32 s{t0}, s{t0}, 7'); sadd(t0,t0,WS_FL+FL_Y*128); I(f'v_mov_b32 v{vE0+3}, s{t0}')
lab('Lsetdone')
def fhex(x): return hex(struct.unpack('<I',struct.pack('<f',x))[0])
GP,G1,G16,GA,GS,GT=100,106,112,118,119,120
smul(t0,sWc,160); sacc(t0,sWr); I(f'v_lshlrev_b32 v{GT+3}, 3, v{vG}'); I(f'v_add_u32 v{GT+3}, s{t0}, v{GT+3}')
smul(t1,sCt,40)
for nt in range(3):
    d_,p_=GT+4,GT+5
    if nt<2: I(f'v_add_u32 v{d_}, {16*nt}, v{vN}')
    else: I(f'v_and_b32 v{d_}, 7, v{vN}'); I(f'v_add_u32 v{d_}, 32, v{d_}')
    I(f'v_add_u32 v{d_}, s{t1}, v{d_}'); I(f'v_mul_u32_u24 v{p_}, v{d_}, v{GT+3}'); I(f'v_cvt_f32_u32 v{p_}, v{p_}'); I(f'v_cvt_f32_u32 v{d_}, v{d_}')
    I(f'v_mul_f32 v{GT}, {fhex(1/640)}, v{p_}'); I(f'v_cos_f32 v{GP+2*nt}, v{GT}'); I(f'v_sin_f32 v{GP+2*nt+1}, v{GT}')
    I(f'v_mul_f32 v{GT+1}, {fhex(1/320)}, v{d_}'); I(f'v_cos_f32 v{G1+2*nt}, v{GT+1}'); I(f'v_sin_f32 v{G1+2*nt+1}, v{GT+1}')
    I(f'v_mul_f32 v{GT+2}, {fhex(1/20)}, v{d_}'); I(f'v_cos_f32 v{G16+2*nt}, v{GT+2}'); I(f'v_sin_f32 v{G16+2*nt+1}, v{GT+2}')
I(f'v_and_b32 v{GS}, 1, v{vN}'); I(f'v_lshlrev_b32 v{GS}, 31, v{GS}'); I(f'v_xor_b32 v{GS}, 0xbf800000, v{GS}')
I(f's_cmp_eq_u32 s{sW}, 0'); I(f's_cselect_b32 s{sEx}, 0xffff, 0'); I(f's_mov_b32 s{sEx+1}, 0')
smul(t0,sWr,30720); smul(t1,sWc,15360); sacc(t0,t1); sadd(t0,t0,L_G); I(f'v_add_u32 v{GA}, s{t0}, v218')
def rot(d,p,r,dd=None):
    dd=d if dd is None else dd
    I(f'v_pk_mul_f32 {v(d,2)}, {v(p,2)}, {v(r,2)} op_sel_hi:[1,0]')
    I(f'v_pk_fma_f32 {v(dd,2)}, {v(p,2)}, {v(r,2)}, {v(d,2)} op_sel:[1,1,0] op_sel_hi:[0,1,1] neg_lo:[0,1,0]')
stamp(6)
if A1AT==6: emit(gA1)
if B1AT==6: emit(gB1)
I(f's_mov_b32 s{sCnt}, 5'); lab('Lgg')
for nt in range(3):
    T=GT+nt*12; P0=GP+2*nt
    rot(T,P0,G1+2*nt); rot(T+2,T,G1+2*nt); rot(T+4,T+2,G1+2*nt)
    I(f'v_cndmask_b32 v{T+6}, v{P0+1}, v{GS}, s[{sEx}:{sEx+1}]')
    I(f'v_cvt_pk_bf16_f32 v{T+8}, v{P0}, v{T}'); I(f'v_cvt_pk_bf16_f32 v{T+9}, v{T+2}, v{T+4}')
    I(f'v_cvt_pk_bf16_f32 v{T+10}, -v{T+6}, -v{T+1}'); I(f'v_cvt_pk_bf16_f32 v{T+11}, -v{T+3}, -v{T+5}')
    I(f'ds_write_b128 v{GA}, {v(T+8,4)} offset:{1024*nt}')
    rot(T,P0,G16+2*nt,P0)
I(f'v_add_u32 v{GA}, 0xc00, v{GA}'); I(f's_mov_b32 s{sEx}, 0')
for at,grp_,nm in ((A1AT,gA1,'a'),(B1AT,gB1,'b'),(A2AT,gA1,'c')):
    if 1<=at<=5:
        I(f's_cmp_eq_u32 s{sCnt}, {at}'); I(f's_cbranch_scc0 Lgg{nm}'); emit(grp_); lab(f'Lgg{nm}')
I(f's_sub_u32 s{sCnt}, s{sCnt}, 1'); I(f's_cmp_lg_u32 s{sCnt}, 0'); I(f's_cbranch_scc1 Lgg')
AT1,AT2=192,224
stamp(7)
def tgen():
    TM=120; k=[0]
    def put(a,x,y):
        t=156+(k[0]&3); k[0]+=1
        I(f'v_cvt_pk_bf16_f32 v{t}, {x}, {y}'); I(f'v_accvgpr_write_b32 a{a}, v{t}'); return t
    I(f'v_lshlrev_b32 v4, 6, v{vN}'); I(f'v_add_u32 v4, s{sT}, v4'); I(f'v_cvt_f32_u32 v4, v4'); I(f'v_mul_f32 v4, 0x3a000000, v4'); I(f'v_add_f32 v5, 0.5, v4')
    I(f'v_lshlrev_b32 v6, 2, v{vG}'); I(f'v_cvt_f32_u32 v6, v6')
    for ks in range(2):
        for j in range(4):
            if 16*ks+j: I(f'v_add_f32 v7, {fhex(float(16*ks+j))}, v6')
            n2r=7 if 16*ks+j else 6
            for mh in range(2):
                c,s_=TM+4*mh,TM+4*mh+1
                I(f'v_mul_f32 v{s_}, v{4+mh}, v{n2r}'); I(f'v_cos_f32 v{c}, v{s_}'); I(f'v_sin_f32 v{s_}, v{s_}')
            for mh in range(2):
                c,s_=TM+4*mh,TM+4*mh+1
                put(AT1+(mh*2+ks)*4+j,f'v{c}',f'-v{s_}'); put(AT1+((2+mh)*2+ks)*4+j,f'v{s_}',f'v{c}')
    I(f'v_lshlrev_b32 v4, 8, v{vG}'); I(f'v_add_u32 v4, s{sT}, v4'); I(f'v_cvt_f32_u32 v4, v4'); I(f'v_mul_f32 v4, 0x3a000000, v4')
    I(f'v_cvt_f32_u32 v6, v{vN}'); I(f'v_add_f32 v7, 0x41800000, v6')
    for ks in range(2):
        for e in range(4):
            cst=0.5*ks+e/32.0
            if cst: I(f'v_add_f32 v5, {fhex(cst)}, v4')
            kr=5 if cst else 4
            for h in range(2):
                c,s_=TM+h*8+e,TM+h*8+4+e
                I(f'v_mul_f32 v{s_}, v{kr}, v{6+h}'); I(f'v_cos_f32 v{c}, v{s_}'); I(f'v_sin_f32 v{s_}, v{s_}')
        for h in range(2):
            c,s_=TM+h*8,TM+h*8+4; u0=AT2+(h*2+ks)*4; u1=AT2+((2+h)*2+ks)*4
            for p in range(2):
                t=put(u0+p,f'v{c+2*p}',f'v{c+2*p+1}'); I(f'v_accvgpr_write_b32 a{u1+2+p}, v{t}')
                put(u0+2+p,f'v{s_+2*p}',f'v{s_+2*p+1}'); put(u1+p,f'-v{s_+2*p}',f'-v{s_+2*p+1}')
TGL=cap(tgen)
if TGF:
    I(f's_cmp_eq_u32 s{sAct}, 0'); I('s_cbranch_scc1 Lnotg'); emit(TGL)
lab('Lnotg')
stamp(8)
if B1AT==0: emit(gB1)
if A2AT==0: emit(gA1)
stamp(1)
def reads(F,ks):
    L=[]
    for mt in range(4): L.append(f'ds_read_b128 {v(F["A"]+4*mt,4)}, v{vRA+ks} offset:{2048*mt}')
    for nt in range(5):
        for h in range(2): L.append(f'ds_read_b64_tr_b16 {v(F["B"]+4*nt+2*h,2)}, v{vRB+nt} offset:{(32*ks+16*h)*160}')
    return L
def mfmas(F,z=False):
    L=[]
    for nt in range(5):
        for mt in range(4):
            c=v(ACC+(mt*5+nt)*4,4); L.append(f'{MF} {c}, {v(F["A"]+4*mt,4)}, {v(F["B"]+4*nt,4)}, {"0" if z else c}')
    return L
def block(M,R,X,pos):
    slots=[[] for _ in M]
    for g,x in R: slots[g].append(x)
    for g,x in zip(pos,X): slots[g].append(x)
    for m,s_ in zip(M,slots): I(m); emit(s_)
def adds(d): return [f'v_add_u32 v{r}, {d}, v{r}' for r in [vRA,vRB,vRB+1,vRB+2,vRB+3,vRB+4,vRA+1]]
I(f's_mov_b32 s{sCnt}, 0')
I(f's_waitcnt vmcnt({13 if A2AT>=0 else 9}) lgkmcnt(0)'); I('s_barrier')
I(f's_add_u32 s{sTag}, s{sTag}, 0x9e3779b9')
stamp(3)
I('ds_read_b64_tr_b16 v[4:5], v213'); I('ds_read_b64_tr_b16 v[6:7], v213 offset:512')
emit(reads(FX,0)[:12])
I(f'v_mov_b32 v212, s{sTag}')
I('s_waitcnt lgkmcnt(12)'); I(f'buffer_store_dwordx4 v[4:7], v218, {srd(sWS)}, s{sB0+3} offen sc1')
emit(reads(FX,0)[12:])
I(f's_cmp_eq_u32 s{sWc}, 0'); I('s_cbranch_scc0 Lnogr')
smul(t0,sWr,30720); sadd(t0,t0,L_G); I(f'v_add_u32 v8, s{t0}, v218'); smul(t0,85,3072)
for ks in range(10):
    I(f'v_add_u32 v9, s{t0}, v8'); sadd(t0,t0,3072); I(f's_cmp_eq_u32 s{t0}, 30720'); I(f's_cselect_b32 s{t0}, 0, s{t0}')
    if ks%2==0: I('s_waitcnt lgkmcnt(8)')
    for nt in range(3): I(f'ds_read_b128 {a_(4*(ks*3+nt),4)}, v9 offset:{nt*1024}')
lab('Lnogr')
def itertop(i=None):
    if TS and i==7: stamp(11)
    if TS and E('ITS',0):
        if i is None: I(f's_add_u32 m0, s{sCnt}, 48'); stamp('m0')
        else: stamp(48+i)
    I('s_waitcnt lgkmcnt(0)')
I('s_waitcnt lgkmcnt(0)')
block(mfmas(FX,True),list(enumerate(reads(FY,1)))+[(i*20//32,f'v_mov_b32 v{WP+i}, 0') for i in range(32)],([] if A2AT>=0 else gA1),[1,6,11,16,17])
I(f's_waitcnt vmcnt(5) lgkmcnt(0)'); I('s_barrier')
ad=adds(SLOT)
R2=[(0,ad[0]),(0,ad[1]),(1,ad[2]),(1,ad[3]),(2,ad[4]),(2,ad[5]),(3,ad[6])]+[(i+2,r) for i,r in enumerate(reads(FX,0))]
block(mfmas(FY),R2,[dmaB(i) for i in range(5)]+[advB(SLOT)+(pf() if PFX else [])+([f's_mov_b32 s{t2}, {OOB}', f'buffer_load_dword v99, v98, {srd(sWR)}, s{t2} offen', f'buffer_load_dword v99, v98, {srd(sWI)}, s{t2} offen'] if PW else [])]+[dmaA(i) for i in range(4)]+[advA(-3*SLOT)],[0,2,4,6,8,9,10,12,14,16,17])
I(f's_mov_b32 s{sCnt}, 1')
POS=E('POS',0)
PB_,PA_={0:([1,5,9,13,16],[1,6,11,16]),1:([0,1,2,3,4],[0,1,2,3]),2:([0,2,4,6,8],[0,2,4,6]),3:([0,3,6,9,12],[0,3,6,9]),4:([6,9,12,14,16],[7,10,13,16])}[POS]
lab('Lmain')
itertop()
pre=[f's_add_u32 s{sCnt}, s{sCnt}, 1', f's_mov_b32 s{sDl}, {SLOT}', f's_mov_b32 s{sDm}, {SLOT}',
     f's_and_b32 s{t0}, s{sCnt}, 3', f's_cselect_b32 s{sDl}, s{sDl}, {-3*SLOT}', f's_cmp_eq_u32 s{t0}, 1', f's_cselect_b32 s{sDm}, {-3*SLOT}, s{sDm}']
eflag=[f's_cmp_eq_u32 s{sCnt}, {3 if HALF else 2}','s_cbranch_scc0 Lnoef','s_mov_b64 exec, 1',f'buffer_store_dword v212, v217, {srd(sWS)}, 0 offen sc1','s_mov_b64 exec, -1',
   f's_cmp_eq_u32 s{sTyp}, 0','s_cbranch_scc0 LefF',f's_mov_b32 s{t0}, {TB.KA_OFF}']+[f'buffer_load_dwordx4 {v(vKA+4*i,4)}, v218, {srd(sTAB)}, s{t0} offen offset:{1024*i}' for i in range(2)]+['s_branch LefT','LefF:',
   f's_cmp_eq_u32 s{sWc}, 0','s_cbranch_scc0 Lnoef',f's_mov_b32 s{t0}, {TB.D1_OFF}',f's_mov_b32 s{t1}, {TB.D1_OFF+4096}']+[f'buffer_load_dwordx4 {a_(120+4*i,4)}, v218, {srd(sTAB)}, s{t0+i//4} offen offset:{1024*(i%4)}' for i in range(8)]+['LefT:',
   f's_cmp_eq_u32 s{sWc}, 0','s_cbranch_scc0 LefU',f's_mov_b32 s{t0}, {TB.D2_OFF}',f's_mov_b32 s{t1}, {TB.D2_OFF+4096}']+[f'buffer_load_dwordx4 {a_(160+4*i,4)}, v218, {srd(sTAB)}, s{t0+i//4} offen offset:{1024*(i%4)}' for i in range(8)]+['LefU:',
   f's_cmp_eq_u32 s{sT}, 0','s_cbranch_scc0 Lnoef']+sum([([f's_mov_b32 s{t0}, {TB.T1_OFF+1024*i}'] if i%4==0 else [])+[f'buffer_load_dwordx4 {a_(AT1+4*i,4)}, v218, {srd(sTAB)}, s{t0} offen offset:{1024*(i%4)}'] for i in range(16)],[])+['Lnoef:']
ad=adds(f's{sDl}')
R2=[(0,ad[0]),(0,ad[1]),(1,ad[2]),(1,ad[3]),(2,ad[4]),(2,ad[5]),(3,ad[6])]+[(i+2,r) for i,r in enumerate(reads(FX,0))]
if HALF:
    preH=pre+[f's_mov_b32 s{t1}, {SLOT}', f's_cmp_eq_u32 s{t0}, 2', f's_cselect_b32 s{t1}, {-3*SLOT}, s{t1}']+advB(f's{t1}')
    pfl=([[f's_cmp_eq_u32 s{sCnt}, {10-LEAD}','s_cbranch_scc0 Lpfk','v_mov_b32 v98, 0','Lpfk:']+pf()] if PFX else [])
    if PW:
        pfl=[[f's_movk_i32 s{t2}, 0', f's_cmp_eq_u32 s{sCnt}, {PW+1}', f's_cselect_b32 s{t2}, s{t2}, {OOB}', f'buffer_load_dword v99, v98, {srd(sWR)}, s{t2} offen', f'buffer_load_dword v99, v98, {srd(sWI)}, s{t2} offen']]
    block(mfmas(FX),list(enumerate(reads(FY,1))),[dmaB(i) for i in range(5)]+[preH]+pfl,PB_+[17,18])
    I(f's_waitcnt vmcnt({11 if PFX else (13 if PW else 9)}) lgkmcnt(0)'); I('s_barrier')
    block(mfmas(FY),R2,[dmaA(i) for i in range(4)]+[advA(f's{sDm}'),eflag],PA_+[18,19])
else:
    block(mfmas(FX),list(enumerate(reads(FY,1))),[dmaA(i) for i in range(4)]+[pre],[1,6,11,16,18])
    I('s_waitcnt vmcnt(13) lgkmcnt(0)'); I('s_barrier')
    block(mfmas(FY),R2,[dmaB(i) for i in range(5)]+[dma_adv(f's{sDm}'),eflag],[1,5,9,13,17,18,19])
I(f's_cmp_lt_u32 s{sCnt}, 7'); I('s_cbranch_scc1 Lmain')
def wload(base,vp,vm,vm0,i,which):
    mh,r=i>>2,i&3; sb=(sB0,sB1)[mh]
    if which==0:
        return [f's_add_u32 s{t2}, s{sb}, {64*r*642}', f'buffer_load_short_d16_hi v{base+i}, v{vp}, {srd(sWR)}, s{t2} offen {POLW}', f'buffer_load_short_d16_hi v{base+8+i}, v{vp}, {srd(sWI)}, s{t2} offen {POLW}']
    m=vm0 if i==0 else vm
    return [f's_sub_u32 s{t2}, {(1280-64*r-(256 if i==0 else 0))*642}, s{sb}', f'buffer_load_short_d16_hi v{base+16+i}, v{m}, {srd(sWR)}, s{t2} offen {POLW}', f'buffer_load_short_d16_hi v{base+24+i}, v{m}, {srd(sWI)}, s{t2} offen {POLW}']
WL=[wload(WP,vWp,vWm,vWm0,i,w) for i in range(8) for w in range(2)]
PST=[[f'buffer_store_dwordx4 v[176:179], v255, {srd(sWS)}, s86 offen sc1', 's_add_u32 s86, s86, s87', 's_add_u32 s92, s92, 1', f's_and_b32 s{t1}, s92, 3', f's_cselect_b32 s{t1}, 0, s93', f's_add_u32 s86, s86, s{t1}'] for _ in range(10)] if POI else []
pplan={(7,0):0,(7,1):4,(8,0):3,(8,1):3,(9,0):0,(9,1):0}; pl_=0
wl=0; vm=0
W3L=['v_mov_b32 v252, 0','v_mov_b32 v253, 0',f'buffer_load_short_d16_hi v252, v254, {srd(sWR)}, 0 offen offset:640 {POLW}',f'buffer_load_short_d16_hi v253, v254, {srd(sWI)}, 0 offen offset:640 {POLW}']
FLG=[f'buffer_load_dword v198, v196, {srd(sWS)}, 0 offen sc1', f'buffer_load_dword v199, v197, {srd(sWS)}, 0 offen sc1']
plan={16:{(7,0):0,(7,1):3,(8,0):4,(8,1):4,(9,0):3,(9,1):2},8:{(7,0):0,(7,1):1,(8,0):2,(8,1):2,(9,0):2,(9,1):1},10:{(7,0):0,(7,1):2,(8,0):2,(8,1):2,(9,0):2,(9,1):2}}[WS1]
def pos(n,a=2,b=17): return [a+(b-a)*i//max(n-1,1) for i in range(n)]
for s_ in (7,8,9):
    itertop(s_)
    X=WL[wl:wl+plan[(s_,0)]]; wl+=plan[(s_,0)]
    X=PST[pl_:pl_+pplan[(s_,0)]]+X; pl_+=len(PST[pl_:pl_+pplan[(s_,0)]])
    if s_==7: X=([dmaB(i) for i in range(5)] if HALF else [])+[FLG]+X
    block(mfmas(FX),list(enumerate(reads(FY,1))),X,pos(len(X)))
    if s_==7: I(f's_waitcnt vmcnt({11+2*wl+(1 if PFX else (2 if PW else 0))}) lgkmcnt(0)')
    elif s_==8: I(f's_waitcnt vmcnt({2*wl+pl_}) lgkmcnt(0)')
    else: I('s_waitcnt lgkmcnt(0)')
    I('s_barrier')
    if s_<9:
        ad=adds(SLOT if s_==8 else -3*SLOT)
        R2=[(0,ad[0]),(0,ad[1]),(1,ad[2]),(1,ad[3]),(2,ad[4]),(2,ad[5]),(3,ad[6])]+[(i+2,r) for i,r in enumerate(reads(FX,0))]
    else: R2=[]
    X=WL[wl:wl+plan[(s_,1)]]; wl+=plan[(s_,1)]
    X=PST[pl_:pl_+pplan[(s_,1)]]+X; pl_+=len(PST[pl_:pl_+pplan[(s_,1)]])
    if s_==9: X=X+[W3L]
    block(mfmas(FY),R2,X,pos(len(X),3,18 if s_==9 else 16))
assert wl==WS1
I(f's_mov_b32 s{sAo}, 0x3fb8aa3b'); I(f's_mov_b32 s{sAo+1}, 0x358637bd')
I(f'v_cmp_ne_u32 vcc, s{sTag}, v198'); I(f'v_cmp_ne_u32 s[{t4}:{t5}], s{sTag}, v199'); I(f's_or_b64 vcc, vcc, s[{t4}:{t5}]'); I('s_cbranch_vccz Leok')
poll([196,197],198)
lab('Leok')
I('s_nop 3')
stamp(14)
def acc(mt,nt,r=0,n=1): return v(ACC+(mt*5+nt)*4+r,n)
def phi2(dst,src,tmp):
    I(f'v_pk_mul_f32 {v(tmp,2)}, {v(src,2)}, s[{sAo}:{sAo+1}] op_sel_hi:[1,0]')
    I(f'v_exp_f32 v{tmp}, v{tmp} clamp'); I(f'v_exp_f32 v{tmp+1}, v{tmp+1} clamp')
    I(f'v_max_f32 v{dst}, s{sAo+1}, v{src}'); I(f'v_max_f32 v{dst+1}, s{sAo+1}, v{src+1}')
    I(f'v_pk_add_f32 {v(dst,2)}, {v(dst,2)}, {v(tmp,2)}')
def bl(i,AB):
    ks,nt=divmod(i,5)
    L=[f'buffer_load_dwordx4 {a_(AB+4*i,4)}, v{218 if nt<4 else 219}, {srd(sWS)}, s{sGo} offen offset:{1024*(nt%4)}']
    return L+([f's_add_u32 s{sGo}, s{sGo}, 40960', f's_cmp_eq_u32 s{sGo}, s{sGe}', f's_cselect_b32 s{sGo}, s{sGb}, s{sGo}'] if nt==4 else [])
def bls(a,b,AB=0): return [bl(i,AB) for i in range(a,b)]
I(f's_cmp_eq_u32 s{sTyp}, 0'); I('s_cbranch_scc0 LepiFQ')
PK=100; VV=124; DD=148; PAIRS=TB.PAIRS
NB0=E('NB0',14); NB1=E('NB1',14)
def kvepi():
    for nt in (2,3,4):
        for mt in range(4):
            for p in range(2): I(f'v_cvt_pk_bf16_f32 v{VV+(nt-2)*8+mt*2+p}, {acc(mt,nt,2*p)}, {acc(mt,nt,2*p+1)}')
    I(f'v_cmp_gt_u32 vcc, 8, v{vN}'); vconst(4,0x3f803f80)
    I(f's_lshl_b32 s{t0}, s{sW}, 12'); sadd(t0,t0,L_RED)
    for i in range(8): I(f'v_cndmask_b32 v{VV+i}, v{VV+i}, v4, vcc')
    for i in range(8): I(f'v_add_u32 v{vKA+i}, s{t0}, v{vKA+i}')
    for nt in range(3):
        for mt in range(4):
            for p in range(2):
                b=ACC+(mt*5+nt)*4+2*p
                phi2(b,b,4+2*p); I(f'v_cvt_pk_bf16_f32 v{PK+nt*8+mt*2+p}, v{b}, v{b+1}')
        for kb in range(2):
            for i,(a,b) in enumerate(PAIRS):
                if a==nt: I(f'{MF} {v(DD+4*i,4)}, {v(PK+a*8+4*kb,4)}, {v(VV+(b-2)*8+4*kb,4)}, {"0" if kb==0 else v(DD+4*i,4)}')
        if nt>0:
            for i,(a,b) in enumerate(PAIRS):
                if a==nt-1: I(f'ds_write_b128 v{vKA+i}, {v(DD+4*i,4)}')
P=cap(kvepi)
def grp_if_b(L):
    uid[0]+=1; n=f'Lb{uid[0]}'
    return [f's_cmp_eq_u32 s{sWc}, 0', f's_cbranch_scc1 {n}']+L+[n+':']
NBE=E('NBE',0)
weave(P,[grp_if_b(bls(i,i+2)) for i in range(0,NBE,2)],0,len(P)*E('EPIF',70)//100)
for i,(a,b) in enumerate(PAIRS):
    if a==2: I(f'ds_write_b128 v{vKA+i}, {v(DD+4*i,4)}')
I('s_waitcnt lgkmcnt(0)'); I('s_barrier')
for i in range(7): I(f'ds_read2st64_b32 {v(16+2*i,2)}, v{vE0} offset0:{i} offset1:{i+16}')
for i in range(7):
    I(f's_waitcnt lgkmcnt({6-i})'); I(f'v_add_f32 v{16+2*i}, v{16+2*i}, v{17+2*i}')
    I(f'buffer_atomic_add_f32 v{16+2*i}, v{vE0+1+(i==6)}, {srd(sWS)}, 0 offen offset:{256*i} {ATP}')
stamp(15)
I('s_branch Lp2a')
lab('LepiFQ')
I(f's_cmp_eq_u32 s{sWc}, 0'); I('s_cbranch_scc0 LepiQ')
XB=100; YD=140
def xcv(nt):
    for mt in range(4):
        for p in range(2): I(f'v_cvt_pk_bf16_f32 v{XB+nt*8+mt*2+p}, {acc(mt,nt,2*p)}, {acc(mt,nt,2*p+1)}')
def ymf(nt):
    for kb in range(2):
        for jt in range(4):
            d=v(YD+(nt&1)*16+4*jt,4)
            I(f'{MF} {d}, {a_(120+(jt*2+kb)*4,4)}, {v(XB+nt*8+4*kb,4)}, {"0" if kb==0 else d}')
def yst(nt):
    for jt in range(4):
        b=YD+(nt&1)*16+4*jt; o=172+jt*2
        I([f'v_cvt_pk_bf16_f32 v{o}, v{b}, v{b+1}', f'v_cvt_pk_bf16_f32 v{o+1}, v{b+2}, v{b+3}',
           f'buffer_store_dwordx2 {v(o,2)}, v{vE0}, {srd(sWS)}, s{t0+jt} offen offset:{128*nt} sc1'])
for jt in range(4): I(f's_mov_b32 s{t0+jt}, {4*jt*163840}')
xcv(0)
weave(cap(ymf,0),cap(xcv,1))
for nt in range(5):
    if nt<4:
        F_=(cap(xcv,nt+2) if nt<3 else [])
        Y_=cap(yst,nt)
        M=cap(ymf,nt+1)
        for i,m in enumerate(M):
            I(m)
            if i<4: emit(F_[2*i:2*i+2])
            else: emit(Y_[i-4])
    else: yst(nt)
stamp(15)
I('s_waitcnt vmcnt(0)'); setflag(vE0+3,4)
stamp(16)
I(f's_cmp_eq_u32 s{sAct}, 0'); I('s_cbranch_scc1 Lp3')
emit(WL[WS1:])
T1,T2,W3,YF,EF,TM,PQ=16,48,112,144,160,80,184
vY,vF,vXW,vXR,vRS,vLF=8,9,10,11,12,13
def p2addr():
    smul(t0,sCh,32*0x334); sadd(t1,t0,31*0x334); I(f's_lshr_b32 s{t0}, s{t0}, 16'); I(f's_lshr_b32 s{t1}, s{t1}, 16')
    I(f'v_mov_b32 v4, s{t0}'); I(f'v_mov_b32 v5, s{t1}'); I(f'v_cmp_gt_u32 vcc, 32, v{vL}'); I(f'v_cndmask_b32 v4, v5, v4, vcc')
    I(f'v_and_b32 v5, 31, v{vL}'); I(f'v_lshl_add_u32 v4, v4, 5, v5'); I(f'v_lshlrev_b32 v4, 7, v4'); I(f'v_add_u32 v{vF}, {WS_FL+FL_Y*128}, v4')
    I(f's_lshr_b32 s{t0}, s{sT}, 1'); smul(t0,t0,163840); I(f's_lshl_b32 s{t1}, s{sCh}, 8'); sacc(t0,t1); I(f's_lshl_b32 s{t1}, s{sWr}, 2'); sacc(t0,t1)
    I(f'v_mul_u32_u24 v4, 20480, v{vG}'); I(f'v_lshl_add_u32 v4, v{vN}, 3, v4'); I(f'v_add_u32 v{vY}, s{t0}, v4')
    smul(t0,sWc,8704); sadd(t0,t0,L_XCH[0])
    I(f's_lshl_b32 s{t1}, s{sWr}, 5'); sacc(t1,t0)
    I(f'v_mul_u32_u24 v{vXW}, 272, v{vN}'); I(f'v_lshl_add_u32 v{vXW}, v{vG}, 6, v{vXW}'); I(f'v_add_u32 v{vXW}, s{t1}, v{vXW}')
    smul(t1,sWr,16*272); sacc(t1,t0)
    I(f'v_mul_u32_u24 v{vXR}, 272, v{vG}'); I(f'v_lshl_add_u32 v{vXR}, v{vN}, 4, v{vXR}'); I(f'v_add_u32 v{vXR}, s{t1}, v{vXR}')
    smul(t0,sWr,16*81920); I(f's_lshl_b32 s{t1}, s{sCh}, 12'); sacc(t0,t1)
    I(f's_lshr_b32 s{t1}, s{sT}, 1'); I(f's_lshl_b32 s{t1}, s{t1}, 8'); sacc(t0,t1); sadd(t0,t0,WS_R)
    I(f's_mov_b32 s{t1}, 81920'); I(f'v_lshlrev_b32 v{vRS}, 4, v{vN}'); I(f'v_mad_u32_u24 v{vRS}, v{vG}, s{t1}, v{vRS}'); I(f'v_add_u32 v{vRS}, s{t0}, v{vRS}')
    I(f's_lshl_b32 s{t0}, s{sWc}, 2'); sadd(t0,t0,L_FLG); I(f'v_mov_b32 v{vLF}, s{t0}')
    I(f's_lshl_b32 s{t0}, s{sCh}, 3'); sacc(t0,sGrp)
    I(f's_lshl_b32 s{t1}, s{sCh}, 4'); I(f's_lshr_b32 s{t2}, s{sT}, 1'); sacc(t1,t2); I(f's_sub_u32 s{t1}, s{t1}, 128')
    I([f's_cmp_eq_u32 s{sTyp}, 0', f's_cselect_b32 s{t0}, s{t0}, s{t1}', f's_cselect_b32 s{sAct}, 3, 1'])
    I(f's_and_b32 s{t1}, s{t0}, 1'); I(f's_lshl_b32 s{t1}, s{t1}, 2'); I(f's_lshr_b32 s{t0}, s{t0}, 1'); I(f's_lshl_b32 s{t0}, s{t0}, 7'); sacc(t0,t1); sadd(t0,t0,WS_FL+FL_R*128); I(f'v_mov_b32 v15, s{t0}')
lab('Lp2a')
if not TGF:
    I(f's_cmp_eq_u32 s{sT}, 0'); I('s_cbranch_scc1 Lskiptg'); emit(TGL); lab('Lskiptg')
p2addr()
I(f's_cmp_eq_u32 s{sTyp}, 0'); I('s_cbranch_scc0 Lp2b')
I('s_waitcnt vmcnt(0)')
setflag(vE0+3,4)
stamp(16)
lab('Lp2b')
I(f's_cmp_eq_u32 s{sCh}, 0'); I('s_cbranch_scc0 Lnosp1')
I(f's_lshl_b32 s{t0}, s{sW}, 9'); sadd(t0,t0,L_PP)
I(f'v_lshlrev_b32 v4, 2, v{vL}'); I(f'v_add_u32 v4, s{t0}, v4'); I(f'v_lshlrev_b32 v5, 4, v{vG}'); I(f'v_add_u32 v5, s{t0}, v5')
I(f'ds_write_b32 v4, v252'); I(f'ds_write_b32 v4, v253 offset:256')
for arr,off in ((0,0),(8,256),(16,128),(24,384)):
    for mh in range(2): I(f'ds_read_b128 {v(W3+arr+4*mh,4)}, v5 offset:{off+64*mh}')
lab('Lnosp1')
I('s_waitcnt lgkmcnt(0)')
stamp(17)
poll([vF],14)
stamp(18)
for ks in range(2):
    for i in range(4):
        I(f's_mov_b32 s{t0}, {(16*ks+i)*5120}')
        for ri in range(2): I(f'buffer_load_dword v{YF+(ri*2+ks)*4+i}, v{vY}, {srd(sWS)}, s{t0} offen offset:{128*ri} {HS}')
for ks in range(2):
    I(f's_waitcnt vmcnt({8-8*ks})')
    for mt in (0,2,1,3):
        for ri in range(2):
            d=v(EF+(mt*2+ri)*4,4)
            I(f'{MF} {d}, {a_(AT1+(mt*2+ks)*4,4)}, {v(YF+(ri*2+ks)*4,4)}, {"0" if ks==0 else d}')
stamp(19)
EF2=EF
def pk(op,d,*s,neg=None):
    t=f'v_pk_{op}_f32 {v(d,2)}, '+', '.join(v(x,2) for x in s)
    if neg: t+=f' neg_lo:{neg} neg_hi:{neg}'
    I(t)
PQ=16
Pre,Pim,Qre,Qim=PQ,PQ+8,PQ+16,PQ+24
def EFr(typ,mh,ri,p): return EF+((typ*2+mh)*2+ri)*4+2*p
for mh in range(2):
    for p in range(2):
        o=mh*4+2*p; Er,Ei,Fr,Fi=EFr(0,mh,0,p),EFr(0,mh,1,p),EFr(1,mh,0,p),EFr(1,mh,1,p)
        wpr,wpi,wmr,wmi=WP+o,WP+8+o,WP+16+o,WP+24+o
        T=TM+(p*16)
        pk('add',T,Er,Fi); pk('add',T+2,Ei,Fr,neg='[0,1]'); pk('add',T+4,Er,Fi,neg='[0,1]'); pk('add',T+6,Ei,Fr)
        pk('mul',T+8,T,wpr); pk('mul',T+10,T,wpi); pk('mul',T+12,T+4,wmr); pk('mul',T+14,T+4,wmi)
        pk('fma',T+8,T+2,wpi,T+8,neg='[1,0,0]'); pk('fma',T+10,T+2,wpr,T+10); pk('fma',T+12,T+6,wmi,T+12,neg='[1,0,0]'); pk('fma',T+14,T+6,wmr,T+14)
        pk('add',Pre+o,T+8,T+12); pk('add',Pim+o,T+10,T+14); pk('add',Qre+o,T+14,T+10,neg='[0,1]'); pk('add',Qim+o,T+8,T+12,neg='[0,1]')
I(f's_cmp_eq_u32 s{sT}, 0'); I('s_cbranch_scc0 Lnot0')
I('s_mov_b64 exec, 0xffff')
Er,Ei,Fr,Fi=EFr(0,0,0,0),EFr(0,0,1,0),EFr(1,0,0,0),EFr(1,0,1,0)
I(f'v_mul_f32 v{Pre}, v{Er}, v{WP}'); I(f'v_fma_f32 v{Pre}, -v{Ei}, v{WP+8}, v{Pre}')
I(f'v_mul_f32 v{Pim}, v{Er}, v{WP+8}'); I(f'v_fma_f32 v{Pim}, v{Ei}, v{WP}, v{Pim}')
I(f'v_mul_f32 v{Qre}, v{Fr}, v{WP+16}'); I(f'v_fma_f32 v{Qre}, -v{Fi}, v{WP+24}, v{Qre}')
I(f'v_mul_f32 v{Qim}, v{Fr}, v{WP+24}'); I(f'v_fma_f32 v{Qim}, v{Fi}, v{WP+16}, v{Qim}')
I('s_mov_b64 exec, -1')
lab('Lnot0')
I(f's_cmp_eq_u32 s{sCh}, 0'); I('s_cbranch_scc0 Lnosp2')
I(f's_mov_b32 exec_lo, 0x10001'); I(f's_mov_b32 exec_hi, 0x10001')
for mh in range(2):
    for p in range(2):
        o=mh*4+2*p; Er,Ei,Fr,Fi=EFr(0,mh,0,p),EFr(0,mh,1,p),EFr(1,mh,0,p),EFr(1,mh,1,p)
        T=TM
        pk('add',T,WP+o,WP+16+o); pk('add',T+2,WP+8+o,WP+24+o,neg='[0,1]'); pk('add',T+4,W3+o,W3+16+o); pk('add',T+6,W3+8+o,W3+24+o,neg='[0,1]')
        for q in range(4): I(f'v_pk_mul_f32 {v(T+2*q,2)}, {v(T+2*q,2)}, 0.5')
        pk('mul',Pre+o,Er,T); pk('mul',Qre+o,Fr,T); pk('mul',Pim+o,Ei,T+4); pk('mul',Qim+o,Fi,T+4)
        pk('fma',Pre+o,Fr,T+2,Pre+o); pk('fma',Qre+o,Er,T+2,Qre+o,neg='[1,0,0]'); pk('fma',Pim+o,Fi,T+6,Pim+o); pk('fma',Qim+o,Ei,T+6,Qim+o,neg='[1,0,0]')
I(f's_cmp_eq_u32 s{sT}, 0'); I('s_cbranch_scc0 Lnocorner')
I('s_mov_b64 exec, 1')
Er,Ei,Fr,Fi=EFr(0,0,0,0),EFr(0,0,1,0),EFr(1,0,0,0),EFr(1,0,1,0)
for d,x,w in ((Pre,Er,WP),(Pim,Ei,W3),(Qre,Fr,WP+16),(Qim,Fi,W3+16)):
    I(f'v_mul_f32 v{d}, v{x}, v{w}'); I(f'v_mul_f32 v{d}, 0.5, v{d}')
lab('Lnocorner')
I('s_mov_b64 exec, -1')
lab('Lnosp2')
for mh in range(2):
    for ri in range(2):
        for q,src in enumerate(((Pre,Pim)[ri],(Qre,Qim)[ri])):
            for p in range(2): I(f'v_cvt_pk_bf16_f32 v{YF+(ri*2+mh)*4+2*q+p}, v{src+mh*4+2*p}, v{src+mh*4+2*p+1}')
for ks in range(2):
    for nt in range(4):
        for ri in range(2):
            d=v(EF+(nt*2+ri)*4,4)
            I(f'{MF} {d}, {v(YF+(ri*2+ks)*4,4)}, {a_(AT2+(nt*2+ks)*4,4)}, {"0" if ks==0 else d}')
for nt in range(4):
    for ri in range(2):
        for p in range(2): I(f'v_cvt_pk_bf16_f32 v{TM+nt*4+ri*2+p}, v{EF+(nt*2+ri)*4+2*p}, v{EF+(nt*2+ri)*4+2*p+1}')
    I(f'ds_write_b128 v{vXW}, {v(TM+nt*4,4)} offset:{(nt&1)*16*272+(nt>>1)*16}')
stamp(20)
ldssync(vLF,14)
for i in range(4): I(f'ds_read_b128 {v(TM+16+4*i,4)}, v{vXR} offset:{4*272*i}')
for i in range(4):
    I(f's_mov_b32 s{t0}, {4*81920*i}'); I(f's_waitcnt lgkmcnt({3-i})')
    I(f'buffer_store_dwordx4 {v(TM+16+4*i,4)}, v{vRS}, {srd(sWS)}, s{t0} offen sc1')
vconst(10,L_FLG+8); vconst(11,1)
stamp(21)
if not POI: I('s_waitcnt vmcnt(0)')
I('s_mov_b64 exec, 1'); I('ds_add_rtn_u32 v11, v10, v11'); I('s_mov_b64 exec, -1'); I('s_waitcnt lgkmcnt(0)')
I(f'v_readfirstlane_b32 s{t0}, v11'); I(f's_cmp_eq_u32 s{t0}, s{sAct}'); I('s_cbranch_scc0 Lnopub')
setflag(15,12)
lab('Lnopub')
stamp(22)
I(f's_cmp_eq_u32 s{sWc}, 0'); I('s_cbranch_scc1 Lp3')
if E('WGW',1):
    I(f's_mov_b32 s{sTo}, 0x400000'); lab('Lwgw')
    I(f'ds_read_b32 v11, v10'); I('s_waitcnt lgkmcnt(0)'); I(f'v_cmp_ge_u32 vcc, s{sAct}, v11')
    I(f's_cbranch_vccz Lwb'); I(f's_sub_u32 s{sTo}, s{sTo}, 1'); I(f's_cbranch_scc0 Lwgw')
lab('Lwb')
NBE=E('NBE',0)
if not E('NOWB',0): emit(bls(NBE,5*KB))
I('s_branch Lp3')
lab('LepiQ')
vPW,vPR,vKR,vOS,vO5,vKW,vKP=4,5,100,104,106,108,112
I(f's_lshl_b32 s{t1}, s{sRb}, 1'); sacc(t1,sWr); smul(t2,t1,1280); smul(t3,sGrp,8*40960); sacc(t2,t3)
I(f'v_and_b32 v8, 7, v{vL}'); I(f'v_lshlrev_b32 v8, 4, v8'); I(f'v_lshrrev_b32 v9, 3, v{vL}'); I(f'v_mul_u32_u24 v10, 40960, v9'); I(f'v_add_u32 v10, v10, v8')
GX=120; GW=160
I(f'v_mov_b32 v115, v10'); I(f'v_mov_b32 v116, v8'); I(f's_mov_b32 s{sCnt}, s{t2}')
GLD=[[f'buffer_load_dwordx4 {v(GX+4*j,4)}, v115, {srd(sX)}, s{sCnt} offen offset:{128*j}', f'buffer_load_dwordx4 {v(GW+4*j,4)}, v116, {srd(sGATE)}, 0 offen offset:{128*j}'] for j in range(10)]
I(f's_lshl_b32 s{t2}, s{t1}, 8'); I(f's_lshl_b32 s{t3}, s{sGrp}, 5'); sacc(t2,t3); sadd(t2,t2,WS_G)
I(f'v_lshlrev_b32 v9, 2, v9'); I(f'v_add_u32 v9, s{t2}, v9'); vconst(10,OOB); I(f'v_cmp_eq_u32 vcc, 0, v8'); I(f'v_cndmask_b32 v114, v10, v9, vcc')
smul(t0,sWr,L_PQ[1]-L_PQ[0]); sadd(t0,t0,L_PQ[0])
I(f'v_mul_u32_u24 v{vPW}, {PQS}, v{vN}'); I(f'v_lshl_add_u32 v{vPW}, v{vG}, 3, v{vPW}'); I(f'v_add_u32 v{vPW}, s{t0}, v{vPW}')
def qepi():
    for nt in range(5):
        for mt in range(4):
            b=ACC+(mt*5+nt)*4
            phi2(b,b,8); phi2(b+2,b+2,10)
            I(f'v_cvt_pk_bf16_f32 v{b}, v{b}, v{b+1}'); I(f'v_cvt_pk_bf16_f32 v{b+1}, v{b+2}, v{b+3}')
            I(f'ds_write_b64 v{vPW}, {v(b,2)} offset:{16*nt*PQS+32*mt}')
QW=E('QW',0)
P_=cap(qepi)
weave(P_,GLD+bls(0,QW),len(P_)*E('QS',0)//100,len(P_))
stamp(15)
I(f's_waitcnt vmcnt({QW})')
stamp(16)
vconst(8,0); vconst(9,0)
for i in range(40): I(f'v_dot2_f32_bf16 v{8+(i&1)}, v{GX+i}, v{GW+i}, v{8+(i&1)}')
I('s_nop 2'); I('v_add_f32 v8, v8, v9')
for ctl in ('quad_perm:[1,0,3,2]','quad_perm:[2,3,0,1]','row_half_mirror'):
    I('s_nop 1'); I(f'v_add_f32_dpp v8, v8, v8 {ctl} row_mask:0xf bank_mask:0xf')
I('v_cvt_pk_bf16_f32 v8, v8, v8'); I('v_and_b32 v8, 0xffff0000, v8'); I(f'v_mul_f32 v8, s{sAo}, v8'); I('v_exp_f32 v8, -v8'); I('v_add_f32 v8, 1.0, v8'); I('v_rcp_f32 v8, v8')
I('v_cvt_pk_bf16_f32 v8, v8, v8'); I('v_and_b32 v8, 0xffff0000, v8')
I(f'buffer_store_dword v8, v114, {srd(sWS)}, 0 offen sc1')
I(f'v_bfe_u32 v8, v{vL}, 2, 2'); I(f'v_lshl_add_u32 v8, v{vG}, 3, v8'); I(f'v_and_b32 v9, 3, v{vL}'); I(f'v_lshlrev_b32 v9, 3, v9'); I(f'v_add_u32 v9, s{t0}, v9')
for hh in range(2):
    I(f'v_add_u32 v10, {4*hh}, v8'); I(f'v_min_u32 v10, 19, v10'); I(f'v_mul_u32_u24 v10, {PQS}, v10'); I(f'v_add_u32 v{vPR+hh}, v10, v9')
smul(t1,sWr,5504); sadd(t1,t1,L_KVI)
for i in range(4): vconst(8+i,0)
I(f'v_add_u32 v12, s{t1}, v218')
for i in range(5): I(f'ds_write_b128 v12, v[8:11] offset:{1024*i}')
I(f's_mov_b64 exec, 0xffffff'); I(f'ds_write_b128 v12, v[8:11] offset:5120'); I('s_mov_b64 exec, -1')
for i in range(4):
    I(f'v_add_u32 v8, {64*i}, v{vL}'); I(f'v_mul_u32_u24 v9, 0xc31, v8'); I(f'v_lshrrev_b32 v9, 16, v9')
    I(f'v_mul_u32_u24 v10, 21, v9'); I(f'v_sub_u32 v10, v8, v10')
    I(f'v_cmp_lt_u32 vcc, 4, v9'); I(f'v_cndmask_b32 v11, 0, 1, vcc')
    I(f'v_mad_u32_u24 v10, v11, 21, v10'); I(f'v_mul_u32_u24 v11, 5, v11'); I(f'v_sub_u32 v9, v9, v11')
    I(f'v_lshlrev_b32 v10, 6, v10'); I(f'v_lshl_add_u32 v10, v9, 3, v10'); I(f'v_add_u32 v{vKW+i}, s{t1}, v10')
vconst(11,L_PP); I(f'v_cmp_gt_u32 vcc, 18, v{vL}'); I(f'v_cndmask_b32 v{vKW+3}, v11, v{vKW+3}, vcc')
I(f'v_lshlrev_b32 v8, 4, v{vG}'); I(f'v_add_u32 v8, s{t1}, v8')
I(f'v_lshl_add_u32 v{vKR}, v{vN}, 6, v8'); I(f'v_add_u32 v{vKR+1}, {21*64}, v{vKR}')
I(f'v_and_b32 v9, 3, v{vN}'); I(f'v_lshrrev_b32 v10, 2, v{vN}')
for hb in range(2):
    I(f'v_and_b32 v11, 1, v10'); I(f'v_lshl_add_u32 v11, v11, 1, v9'); I(f'v_add_u32 v11, {21*hb+16}, v11')
    I(f'v_lshrrev_b32 v12, 1, v10'); I(f'v_cmp_eq_u32 vcc, {hb}, v12'); I(f'v_cmp_gt_u32 s[{t4}:{t5}], 2, v9'); I(f's_and_b64 vcc, vcc, s[{t4}:{t5}]')
    I(f'v_cndmask_b32 v11, 42, v11, vcc'); I(f'v_cmp_eq_u32 vcc, {2+hb}, v9'); I(f'v_cndmask_b32 v11, v11, {21*hb+20}, vcc')
    I(f'v_lshl_add_u32 v{vKR+2+hb}, v11, 6, v8')
I(f's_lshl_b32 s{t1}, s{sRb}, 1'); sacc(t1,sWr); smul(t2,t1,81920); sadd(t2,t2,WS_O)
smul(t3,sGrp,10)
for hp in range(2):
    I(f'v_add_u32 v8, {5*hp}, v{vG}'); I(f'v_add_u32 v8, s{t3}, v8')
    I(f'v_lshrrev_b32 v9, 2, v8'); I(f'v_and_b32 v8, 3, v8'); I(f'v_lshlrev_b32 v9, 12, v9'); I(f'v_lshl_add_u32 v9, v8, 8, v9')
    I(f'v_lshl_add_u32 v9, v{vN}, 4, v9'); I(f'v_add_u32 v{vOS+hp}, s{t2}, v9')
    sadd(t4,t3,5*hp+4); I(f's_lshr_b32 s{t5}, s{t4}, 2'); I(f's_lshl_b32 s{t5}, s{t5}, 12'); I(f's_and_b32 s{t4}, s{t4}, 3'); I(f's_lshl_b32 s{t4}, s{t4}, 8')
    sacc(t4,t5); sacc(t4,t2)
    I(f'v_lshlrev_b32 v9, 10, v{vG}'); I(f'v_lshl_add_u32 v9, v{vN}, 4, v9'); I(f'v_add_u32 v{vO5+hp}, s{t4}, v9')
I(f's_lshl_b32 s{t1}, s{t1}, 3'); sacc(t1,sGrp); I(f's_lshl_b32 s{t1}, s{t1}, 7'); sadd(t1,t1,WS_FL+FL_O*128); I(f'v_mov_b32 v15, s{t1}')
I(f's_lshl_b32 s{t1}, s{sGrp}, 13'); sadd(t1,t1,WS_KVA)
I(f'v_add_u32 v{vKP}, s{t1}, v218'); vconst(9,OOB); I(f'v_cmp_gt_u32 vcc, 18, v{vL}'); I(f'v_cndmask_b32 v{vKP+1}, v9, v{vKP}, vcc')
I(f's_lshl_b32 s{t1}, s{sGrp}, 6')
I(f'v_add_u32 v8, s{t1}, v{vL}'); I(f'v_lshlrev_b32 v8, 7, v8'); I(f'v_add_u32 v13, {WS_FL+FL_KV*128}, v8')
KF=16; QF=120; OD=48; O5=184; PB=48
I('s_waitcnt lgkmcnt(0)')
for u in range(8):
    rt,hp=u>>1,u&1
    for hb in range(2):
        for hh in range(2): I(f'ds_read_b64_tr_b16 {v(QF+u*8+hb*4+2*hh,2)}, v{vPR+hh} offset:{(2*hp+hb)*20*PQS+32*rt}')
    if u%2==1: I('s_waitcnt lgkmcnt(4)')
I(f's_mov_b32 s{sEx}, -1'); I(f's_mov_b32 s{sEx+1}, 0'); I(f's_movk_i32 s{t0}, 0x1000')
stamp(20)
NQ=E('NQ',5*KB)
emit(bls(QW,NQ))
stamp(17)
poll([13],9)
stamp(18)
for hp in range(2):
    for i in range(4): I(f'buffer_load_dwordx4 {v(PB+hp*16+4*i,4)}, v{vKP+(i==3)}, {srd(sWS)}, {"0" if hp==0 else "s%d"%t0} offen offset:{1024*i} sc1')
for hp in range(2):
    for i in range(4):
        b=PB+hp*16+4*i
        I(f's_waitcnt vmcnt({7-hp*4-i})')
        I(f'v_cvt_pk_bf16_f32 v{b}, v{b}, v{b+1}'); I(f'v_cvt_pk_bf16_f32 v{b+1}, v{b+2}, v{b+3}')
        I(f'ds_write_b64 v{vKW+i}, {v(b,2)} offset:{2752*hp}')
for hp in range(2):
    for j in (2,0,3,1): I(f'ds_read_b128 {v(KF+(hp*4+j)*4,4)}, v{vKR+j} offset:{2752*hp}')
stamp(19)
def omf(u):
    hp=u&1; q=QF+u*8; d=OD+(u%4)*12
    I(f'{MF} {v(d+8,4)}, {v(KF+(hp*4+2)*4,4)}, {v(q,4)}, 0')
    I(f'{MF} {v(d,4)}, {v(KF+(hp*4+0)*4,4)}, {v(q,4)}, 0')
    I(f'{MF} {v(d+8,4)}, {v(KF+(hp*4+3)*4,4)}, {v(q+4,4)}, {v(d+8,4)}')
    I(f'{MF} {v(d+4,4)}, {v(KF+(hp*4+1)*4,4)}, {v(q+4,4)}, 0')
def ofin(u):
    rt,hp=u>>1,u&1; d=OD+(u%4)*12; o=192+(u&1)*4
    I(f'v_pk_add_f32 {v(d+10,2)}, {v(d+10,2)}, s[{sAo}:{sAo+1}] op_sel:[0,1]')
    I(f'v_rcp_f32 v{d+10}, v{d+10}'); I(f'v_rcp_f32 v{d+11}, v{d+11}')
    I('s_nop 0')
    for p in range(2): I(f'v_pk_mul_f32 {v(d+2*p,2)}, {v(d+2*p,2)}, {v(d+10,2)} op_sel_hi:[1,0]')
    for p in range(2): I(f'v_pk_mul_f32 {v(d+4+2*p,2)}, {v(d+4+2*p,2)}, {v(d+10,2)} op_sel:[0,1]')
    I(f'v_cndmask_b32 v{d+10}, v{d+11}, v{d+10}, s[{sEx}:{sEx+1}]')
    for p in range(4): I(f'v_cvt_pk_bf16_f32 v{o+p}, v{d+2*p}, v{d+2*p+1}')
    I(f'buffer_store_dwordx4 {v(o,4)}, v{vOS+hp}, {srd(sWS)}, 0 offen offset:{1024*rt} sc1')
    I(f'v_pk_mul_f32 {v(d+8,2)}, {v(d+8,2)}, {v(d+10,2)} op_sel_hi:[1,0]')
    I(f'v_cvt_pk_bf16_f32 v{O5+hp*4+rt}, v{d+8}, v{d+9}')
I('s_waitcnt lgkmcnt(4)'); omf(0); I('s_waitcnt lgkmcnt(0)'); omf(1)
for u in range(8):
    if u+2<8: weave(cap(ofin,u),cap(omf,u+2))
    else: ofin(u)
for hp in range(2):
    b=O5+hp*4
    I(f'v_permlane32_swap_b32 v{b}, v{b+2}'); I(f'v_permlane32_swap_b32 v{b+1}, v{b+3}')
    I(f'v_permlane16_swap_b32 v{b}, v{b+1}'); I(f'v_permlane16_swap_b32 v{b+2}, v{b+3}')
    I(f'buffer_store_dwordx4 {v(b,4)}, v{vO5+hp}, {srd(sWS)}, 0 offen sc1')
stamp(21)
I(f'v_mov_b32 v10, s{sTag}'); I(f'v_mov_b32 v11, s{sTag}'); I('s_nop 0' if POI else 's_waitcnt vmcnt(0)'); I('s_mov_b64 exec, 1'); I(f'buffer_store_dwordx2 v[10:11], v15, {srd(sWS)}, 0 offen sc1'); I('s_mov_b64 exec, -1')
stamp(22)
emit(bls(NQ,5*KB))
lab('Lp3')
vA,vGg,vFa,vFo,vL16=4,5,8,9,6
vOA,vTW,vTR,vAR,vAW,vOW,vOW4,vOR,vOut,vSg=240,244,247,248,249,250,251,252,253,14
AD2=160
I(f'v_lshlrev_b32 v{vL16}, 4, v{vL}')
for r in range(4):
    sadd(t0,sW,r); I(f's_and_b32 s{t0}, s{t0}, 3'); I(f's_lshl_b32 s{t1}, s{t0}, 10'); I(f'v_add_u32 v{vOA+r}, s{t1}, v{vL16}')
    if r: smul(t0,t0,15360); sadd(t0,t0,L_TB+(r-1)*5120); I(f'v_add_u32 v{vTW+r-1}, s{t0}, v{vL16}')
smul(t0,sW,15360); sadd(t0,t0,L_TB); I(f'v_add_u32 v{vTR}, s{t0}, v{vL16}')
smul(t0,sW,3072); sadd(t0,t0,L_TA); I(f'v_add_u32 v{vAR}, s{t0}, v{vL16}')
smul(t0,sWr,12288); sadd(t0,t0,L_TA); I(f'v_add_u32 v{vAW}, s{t0}, v{vL16}')
I(f's_lshl_b32 s{t0}, s{sN2}, 3')
smul(t1,sRot,4*0x199a); I(f's_lshr_b32 s{t1}, s{t1}, 16'); I(f'v_add_u32 v7, s{t1}, v{vL}'); I(f'v_and_b32 v7, 7, v7'); I(f'v_add_u32 v7, s{t0}, v7'); I(f's_mov_b32 s{sT}, s{t1}'); I(f'v_lshlrev_b32 v7, 7, v7'); I(f'v_add_u32 v{vFo}, {WS_FL+FL_O*128}, v7')
vconst(15,560)
for i in range(3):
    I(f'v_add_u32 v12, {64*i}, v{vL}'); div10(13,12); I(f'v_mul_u32_u24 v14, 10, v13'); I(f'v_sub_u32 v14, v12, v14')
    I(f'v_mul_u32_u24 v13, 40960, v13'); I(f'v_lshl_add_u32 v13, v14, 4, v13'); I(f'v_cmp_lt_u32 vcc, 4, v14'); I(f'v_cndmask_b32 v14, 0, v15, vcc'); I(f'v_add_u32 v{vOut+i}, v13, v14')
vconst(12,OOB); I(f'v_cmp_gt_u32 vcc, 32, v{vL}'); I(f'v_cndmask_b32 v{vOut+2}, v12, v{vOut+2}, vcc')
smul(sB0,sW,16*40960); smul(t1,sN2,1280); sacc(sB0,t1); smul(t1,sCt,80); sacc(sB0,t1)
smul(t2,sW,2560); sadd(t2,t2,L_OUT)
I(f'v_mul_u32_u24 v12, 160, v{vN}'); I(f'v_lshl_add_u32 v12, v{vG}, 3, v12'); I(f'v_add_u32 v{vOW}, s{t2}, v12'); I(f'v_add_u32 v{vOR}, s{t2}, v{vL16}')
I(f'v_lshrrev_b32 v12, 5, v{vL}'); I(f'v_lshl_add_u32 v{vOW4}, v12, 6, v{vOW}'); I(f'v_lshlrev_b32 v12, 31, v12'); I(f'v_or_b32 v{vSg}, 0x3f800000, v12')
I(f's_lshl_b32 s{sB1}, s{sN2}, 8'); I(f's_lshl_b32 s{t1}, s{sW}, 6'); sacc(sB1,t1); sadd(sB1,sB1,WS_G)
I(f'v_lshlrev_b32 v7, 2, v{vN}')
smul(sDl,sN2,81920); I(f's_lshl_b32 s{t1}, s{sRot}, 12'); I(f's_add_u32 s{sMA}, s{sDl}, s{t1}'); sadd(sMA,sMA,WS_O); sadd(sMB,sMA,KB*4096); I(f's_lshl_b32 s{t1}, s84, 12'); I(f's_add_u32 s{sA2}, s{sMA}, s{t1}')
C3=16; PA=E('PA',3)
I(f's_cmp_eq_u32 s{sWc}, 0'); I('s_cbranch_scc0 Lp3b')
emit(bls(0,5*KA,120))
I(f'v_lshrrev_b32 v{vA}, 2, v{vN}'); I(f'v_lshlrev_b32 v{vA}, 8, v{vA}'); I(f'v_lshl_add_u32 v{vA}, v{vG}, 6, v{vA}'); I(f'v_and_b32 v12, 3, v{vN}'); I(f'v_lshl_add_u32 v{vA}, v12, 4, v{vA}')
smul(t1,sWr,40960); I(f's_add_u32 s{sIs}, s{sDl}, s{t1}'); sadd(sIs,sIs,WS_R); sadd(sDm,sIs,40960); I(f's_lshl_b32 s{t1}, s85, 12'); I(f's_add_u32 s{sBstep}, s{sIs}, s{t1}')
smul(t0,sWr,40); I(f's_movk_i32 s{t1}, 95'); I(f's_cmp_eq_u32 s{sWr}, 0'); I(f's_cselect_b32 s{t1}, 39, s{t1}')
I(f'v_add_u32 v12, s{t0}, v{vL}'); I(f'v_min_u32 v12, s{t1}, v12'); I(f'v_lshlrev_b32 v12, 7, v12'); I(f'v_add_u32 v{vFa}, {WS_FL+FL_R*128}, v12')
stamp(24)
if E('PDELAY',24): I(f's_sleep {E("PDELAY",24)}')
if not PROG: poll2(vFa,10)
stamp(25)
sFst=sBo
def ppoll(vo,x2,need):
    uid[0]+=1; L=f'Lpp{uid[0]}'
    I(f's_cmp_ge_u32 s{sFst}, {need}'); I(f's_cbranch_scc0 {L}r'); lab(L+'c')
    ld=f'buffer_load_dwordx2 v[10:11], v{vo}, {srd(sWS)}, 0 offen sc1' if x2 else f'buffer_load_dword v10, v{vo}, {srd(sWS)}, 0 offen sc1'
    R=[L+'r:', ld, 's_waitcnt vmcnt(0)', f'v_cmp_ne_u32 vcc, s{sTag}, v10']
    if x2: R+=[f'v_cmp_ne_u32 s[{t4}:{t5}], s{sTag}, v11', 's_nop 0', f's_or_b64 vcc, vcc, s[{t4}:{t5}]']
    else: R+=['s_nop 0']
    R+=[f's_ff1_i32_b64 s{sFst}, vcc', f's_cmp_ge_u32 s{sFst}, {need}', f's_cbranch_scc1 {L}c', f's_sub_u32 s{sTo}, s{sTo}, 1', f's_cbranch_scc1 {L}c', f's_sleep {SLP}', f's_branch {L}r']
    RETRY.append(R)
RING=9; PAA=E('PAA',5)
RETRY=[]
def check(base,loads):
    if not POI: return
    uid[0]+=1; L=f'Lck{uid[0]}'
    lab(L)
    I(f'v_max3_u32 v12, v{base}, v{base+1}, v{base+2}')
    I(f'v_max3_u32 v13, v{base+3}, v{base+4}, v{base+5}')
    for i in range(5): I(f'v_max3_u32 v{12+(i&1)}, v{12+(i&1)}, v{base+6+2*i}, v{base+7+2*i}')
    I('v_max_u32 v12, v12, v13'); I('v_cmp_eq_u32 vcc, -1, v12'); I(f's_cbranch_vccnz {L}r')
    lab(L+'c')
    RETRY.append([L+'r:', f's_sub_u32 s{sTo}, s{sTo}, 1', f's_cbranch_scc1 {L}c', 's_sleep 2']+loads+['s_waitcnt vmcnt(0)', f's_branch {L}'])
def arf(i): return v(64+4*(i%(4*RING)),4)
def aload(ks): return [[f'buffer_load_dwordx4 {arf(ks*4+mt)}, v{vA}, {srd(sWS)}, s{sBstep} offen offset:{1024*mt} {HS}']+([f's_add_u32 s{sBstep}, s{sBstep}, 4096', f's_cmp_eq_u32 s{sBstep}, s{sDm}', f's_cselect_b32 s{sBstep}, s{sIs}, s{sBstep}'] if mt==3 else []) for mt in range(4)]
def aneed(ks):
    if not PROG: return
    if ks<6: ppoll(vFa,True,4*(ks+1))
    else:
        I(f's_mul_i32 s{t1}, s{sWr}, {4*(ks-5)}'); sadd(t1,t1,4*(ks+1)); ppoll(vFa,True,f's{t1}')
I(f's_mov_b32 s{sFst}, 0'); I(f's_mov_b32 s{sTo}, 0x40000')
for ks in range(PAA): aneed(ks); emit(aload(ks))
for ks in range(10):
    I(f's_waitcnt vmcnt({4*(min(10,ks+PAA)-ks-1)})')
    check(64+4*((ks*4)%(4*RING)),[f's_add_u32 s{t0}, s{sIs}, {4096*ks}']+[f'buffer_load_dwordx4 {arf(ks*4+mt)}, v{vA}, {srd(sWS)}, s{t0} offen offset:{1024*mt} sc1' for mt in range(4)])
    M=[f'{MF} {v(C3+(mt*3+nt)*4,4)}, {arf(ks*4+mt)}, {a_((ks*3+nt)*4,4)}, {"0" if ks==0 else v(C3+(mt*3+nt)*4,4)}' for nt in range(3) for mt in range(4)]
    if ks+PAA<10: aneed(ks+PAA)
    weave(M,aload(ks+PAA) if ks+PAA<10 else [],0,len(M)-2)
OF=144
def oload(ks): return [[f'buffer_load_dwordx4 {v(OF+((ks%5)*4+r)*4,4)}, v{vOA+r}, {srd(sWS)}, s{sA2} offen {HS}']+([f's_add_u32 s{sA2}, s{sA2}, 4096', f's_cmp_eq_u32 s{sA2}, s{sMB}', f's_cselect_b32 s{sA2}, s{sMA}, s{sA2}'] if r==3 else []) for r in range(4)]
def oneed(ks):
    if not PROG: return
    smul(t1,sRot,4*0x199a); sadd(t1,t1,(4*ks+3)*0x199a); I(f's_lshr_b32 s{t1}, s{t1}, 16'); I(f's_sub_u32 s{t1}, s{t1}, s{sT}'); sadd(t1,t1,1)
    ppoll(vFo,False,f's{t1}')
def bhead(NK):
    stamp(23)
    if not PROG: poll([vFo],10)
    I(f's_mov_b32 s{sFst}, 0'); I(f's_mov_b32 s{sTo}, 0x40000')
    pa=min(PA,NK)
    for ks in range(pa):
        oneed(ks)
        if ks==0: stamp(12)
        emit(oload(ks))
    if pa==NK:
        if PROG: ppoll(vFo,False,8)
        I(f'buffer_load_dword v{vGg}, v7, {srd(sWS)}, s{sB1} offen sc1')
EO=E('EO',1)
if EO: bhead(KA)
TF_=208; AO=96
for nt in range(3):
    for kb in range(2):
        o=TF_+(nt*2+kb)*4
        for q in range(2):
            for p in range(2):
                b=C3+((2*kb+q)*3+nt)*4+2*p; I(f'v_cvt_pk_bf16_f32 v{o+2*q+p}, v{b}, v{b+1}')
for nt in range(3):
    for kb in range(2):
        for w_ in range(4):
            c=v(AO+(w_*3+nt)*4,4); I(f'{MF} {c}, {v(TF_+(nt*2+kb)*4,4)}, {a_(AD2+(w_*2+kb)*4,4)}, {"0" if kb==0 else c}')
for nt in range(3):
    for w_ in range(4): I(f'ds_write_b128 v{vAW}, {v(AO+(w_*3+nt)*4,4)} offset:{(w_*3+nt)*1024}')
def bmain(NK,AB,head=True):
    pa=min(PA,NK)
    gl=[f'buffer_load_dword v{vGg}, v7, {srd(sWS)}, s{sB1} offen sc1']
    if head: bhead(NK)
    g=1 if pa==NK else 0
    for ks in range(NK):
        I(f's_waitcnt vmcnt({4*(min(NK,ks+pa)-ks-1)+g})')
        check(OF+(ks%5)*16,[f's_add_u32 s{t0}, s{sMA}, {4096*ks}']+[f'buffer_load_dwordx4 {v(OF+((ks%5)*4+r)*4,4)}, v{vOA+r}, {srd(sWS)}, s{t0} offen sc1' for r in range(4)])
        last=ks==NK-1
        order=[(nt,r) for nt in range(5) for r in range(4)] if not last else [(nt,r) for r in (1,2,3,0) for nt in range(5)]
        M=[f'{MF} {v(C3+(r*5+nt)*4,4)}, {a_(AB+(ks*5+nt)*4,4)}, {v(OF+((ks%5)*4+r)*4,4)}, {"0" if ks==0 else v(C3+(r*5+nt)*4,4)}' for nt,r in order]
        X=[]
        if ks+pa<NK: oneed(ks+pa); X=oload(ks+pa)
        elif not g:
            if PROG: ppoll(vFo,False,8)
            X=[gl]; g=1
        if not last: weave(M,X,0,len(M)-2)
        else:
            emit(X)
            for i,m in enumerate(M):
                I(m)
                if i>=8: r,nt=divmod(i-8,5); I(f'ds_write_b128 v{vTW+r}, {v(C3+((r+1)*5+nt)*4,4)} offset:{1024*nt}')
bmain(KA,120,not EO)
I('s_branch Lp3t')
lab('Lp3b')
bmain(KB,0)
lab('Lp3t')
I('s_nop 7')
stamp(26)
for i in range(12,15):
    r,nt=divmod(i,5); I(f'ds_write_b128 v{vTW+r}, {v(C3+((r+1)*5+nt)*4,4)} offset:{1024*nt}')
scale=struct.unpack('<I',struct.pack('<f',2.0/(2048*640)))[0]
I('s_waitcnt vmcnt(0)')
I(f'v_sub_f32 v11, 1.0, v{vGg}'); I(f'v_cvt_pk_bf16_f32 v11, v11, v11'); I(f'v_and_b32 v11, 0xffff0000, v11'); I(f'v_mul_f32 v10, 0x{scale:x}, v{vGg}')
I('s_waitcnt lgkmcnt(0)'); I('s_barrier')
stamp(27)
AE=160; TBF=96; OA=40
for t_ in range(3):
    for p_ in range(2): I(f'ds_read_b128 {v(AE+(t_*2+p_)*4,4)}, v{vAR} offset:{p_*12288+t_*1024}')
rb_=[f'ds_read_b128 {v(TBF+(nt*3+r)*4,4)}, v{vTR} offset:{r*5120+nt*1024}' for nt in range(5) for r in range(3)]
emit(rb_[:9])
I('s_waitcnt lgkmcnt(9)')
emit(rb_[9:])
for u in range(5):
    t_=(0,1,0,1,2)[u]; e_,o_2=AE+t_*8,AE+t_*8+4; c=OA+4*u
    for p in range(2):
        if u<4: I(f'v_pk_add_f32 {v(c+2*p,2)}, {v(e_+2*p,2)}, {v(o_2+2*p,2)}'+(' neg_lo:[0,1] neg_hi:[0,1]' if u>=2 else ''))
        else: I(f'v_pk_fma_f32 {v(c+2*p,2)}, {v(o_2+2*p,2)}, v[{vSg}:{vSg+1}], {v(e_+2*p,2)} op_sel_hi:[1,0,1]')
        I(f'v_pk_mul_f32 {v(c+2*p,2)}, {v(c+2*p,2)}, v[10:11] op_sel_hi:[1,0]')
for u in range(5):
    I(f's_waitcnt lgkmcnt({12-2*u})')
    b0=TBF+u*12; c=OA+4*u; own=C3+u*4
    for p in range(2):
        I(f'v_pk_add_f32 {v(b0+2*p,2)}, {v(b0+2*p,2)}, {v(b0+4+2*p,2)}')
        I(f'v_pk_add_f32 {v(own+2*p,2)}, {v(own+2*p,2)}, {v(b0+8+2*p,2)}')
        I(f'v_pk_add_f32 {v(b0+2*p,2)}, {v(b0+2*p,2)}, {v(own+2*p,2)}')
        I(f'v_pk_fma_f32 {v(c+2*p,2)}, {v(b0+2*p,2)}, v[10:11], {v(c+2*p,2)} op_sel:[0,1,0]')
    I(f'v_cvt_pk_bf16_f32 v{c}, v{c}, v{c+1}'); I(f'v_cvt_pk_bf16_f32 v{c+1}, v{c+2}, v{c+3}')
    I(f'ds_write_b64 v{vOW if u<4 else vOW4}, {v(c,2)} offset:{(0,32,80,112,64)[u]}')
I('s_waitcnt lgkmcnt(0)')
for i in range(3): I(f'ds_read_b128 {v(64+4*i,4)}, v{vOR} offset:{1024*i}')
for i in range(3):
    I(f's_waitcnt lgkmcnt({2-i})'); I(f'buffer_store_dwordx4 {v(64+4*i,4)}, v{vOut+i}, {srd(sOUT)}, s{sB0} offen {OUTPOL}')
I(f's_or_b32 s{t0}, s2, s{sW}'); I(f's_cmp_eq_u32 s{t0}, 0'); I('s_cbranch_scc0 Lnoe')
vconst(15,WS_E); setflag(15,14)
lab('Lnoe')
if PADT:
    lab('Lpad'); I(f's_memrealtime s[{sTS}:{sTS+1}]'); I('s_waitcnt lgkmcnt(0)'); I(f's_sub_u32 s{t0}, s{sTS}, s{sTS+2}'); I(f's_cmp_lt_u32 s{t0}, {PADT}'); I('s_cbranch_scc1 Lpad')
if TS:
    stamp(28)
    I(f's_lshl_b32 s{t0}, s2, 2'); sacc(t0,sW); I(f's_lshl_b32 s{t0}, s{t0}, 8'); sadd(t0,t0,WS_TS)
    I(f'v_lshlrev_b32 v4, 2, v{vL}')
    I(f'buffer_store_dword v0, v4, {srd(sWS)}, s{t0} offen')
lab('Lend')
I('s_endpgm')
emit(RETRY)
lab('Lfin')
body_txt=A.finish()
hdr=open(os.path.join(os.path.dirname(os.path.abspath(__file__)),'..','cdna_kernels',NAME+'.s.ref')).read().split('; Override launch')[0]
o_=hdr+f'; @launch grid=(256,1,1) block=(256,1,1) lds={LDS_SZ}\n'
o_+=f'.amdgcn_target "amdgcn-amd-amdhsa--gfx950"\n.text\n.globl {K}\n.p2align 8\n.type {K},@function\n{K}:\n'+body_txt
o_+=f'''.section .rodata,"a"
.p2align 6
.amdhsa_kernel {K}
  .amdhsa_next_free_vgpr 512
  .amdhsa_next_free_sgpr 102
  .amdhsa_accum_offset 256
  .amdhsa_group_segment_fixed_size 0
  .amdhsa_kernarg_size 80
  .amdhsa_user_sgpr_count 2
  .amdhsa_user_sgpr_kernarg_segment_ptr 1
  .amdhsa_system_sgpr_workgroup_id_x 1
.end_amdhsa_kernel
'''
if DEV: o_+='.p2align 8\n.type tab_base,@object\ntab_base:\n@@INCBIN@@\n'
else: o_+=TB.emit()
o=[a for a in sys.argv[1:] if not a.startswith('--')]
open(o[0] if o else 'out.s','w').write(o_)
print('instructions:',sum(1 for l in body_txt.split('\n') if l.startswith('    ')),'nops inserted:',A.nnops,file=sys.stderr)
```

```python
import sys, os, struct
from asm import Asm
import tables as TB

NAME='gated_mix__spectral_gfnet__linear_attn_block__prompt'
DEV = '--dev' in sys.argv
TS  = '--ts' in sys.argv
E=lambda k,d: int(os.environ.get(k,str(d)))
PFX=E('PFX',0); PW=E('PW',0); POLW=os.environ.get('POLW',''); LEAD=E('LEAD',5); ROT=E('ROT',0 if PFX else 8); POLA=os.environ.get('POLA',''); POLB=os.environ.get('POLB',''); LDPOL=os.environ.get('LDPOL',''); HS=os.environ.get('HS','sc1')
CPF=E('CPF',1); KA=E('KA',1); KB=10-KA; R3=0; POI=0; PROG=E('PROG',0); TGF=E('TGF',0); PF=E('PF',0); PFW=E('PFW',3); PFPOL=os.environ.get('PFPOL',''); PFE=E('PFE',0); HALF=1; PEEL=E('PEEL',1); WS1=E('WS1',16)
WS_Y=0; WS_R=2621440; WS_O=2*2621440; WS_KVA=3*2621440; WS_WOF=WS_KVA+65536; WS_G=WS_KVA+1048576
WS_FL=WS_G+8192
FL_Y=0; FL_KV=256; FL_R=768; FL_O=960; FL_E=1216; NFL=2240
WS_E=WS_FL+NFL*128; WS_TS=WS_E+128; WS_SZ=WS_TS+256*4*256
OOB=0x7ff00000
SLOT=36880; SEG0=16384; SEG1=16384+10240+16
L_G=2*SLOT+16384; L_FLG=155648; L_PP=L_FLG+64; LDS_SZ=L_PP+4096
L_PQ=[0,10880]; PQS=136; L_RED=0; L_XCH=[24576,24576+8704]; L_KVI=43008
L_TA=57344; L_TB=81920; L_OUT=143360
sX,sSEG,sWS,sWR,sWI,sTAB,sWO,sOUT,sGATE=4,8,12,16,20,24,28,32,36
sW,sWr,sWc,sTyp,sRb,sGrp,sTag,sCnt=40,41,42,43,44,45,46,47
sAo,sBo,sBstep,sMA,sMB,sDl,sIs,sDm=48,49,50,51,52,53,54,55
sT,sCh,sN2,sCt,sAct,sTo=56,57,58,59,60,61
t0,t1,t2,t3,t4,t5=62,63,64,65,66,67
sK=68; sEx=88; sTS=90; sB0,sB1,sGo,sA2=94,95,96,98; sBS=84; sGb,sGe,sRot=99,100,101
OUTPOL=os.environ.get('OUTPOL','')
ATP=os.environ.get('ATP','')
def srd(n): return f's[{n}:{n+3}]'
def v(a,n=1): return f'v{a}' if n==1 else f'v[{a}:{a+n-1}]'
def a_(a,n=1): return f'a{a}' if n==1 else f'a[{a}:{a+n-1}]'
vL,vN,vG=1,2,3
A=Asm(); out=[A]
class Buf(list):
    def __call__(s,t): s.append(t)
def I(t): out[-1](t)
def cap(f,*a):
    b=Buf(); out.append(b); f(*a); out.pop(); return list(b)
def emit(L):
    for x in L:
        if isinstance(x,(list,tuple)): emit(x)
        else: I(x)
def weave(P,F,start=0,end=None):
    end=len(P) if end is None else end
    n=end-start; k=0
    for i,p in enumerate(P):
        emit([p])
        if start<=i<end:
            tgt=((i-start+1)*len(F))//n
            while k<tgt: emit([F[k]]); k+=1
    while k<len(F): emit([F[k]]); k+=1
def lab(n): I(n+':')
def stamp(i):
    if E('PADT',0) and E('PADK',0)==i:
        I(f's_memrealtime s[{sTS+2}:{sTS+3}]'); I('s_waitcnt lgkmcnt(0)')
    if TS:
        I(f's_memrealtime s[{sTS}:{sTS+1}]'); I('s_waitcnt lgkmcnt(0)'); I(f'v_writelane_b32 v0, s{sTS}, {i}')
        if i in (3,14,12,26):
            I(f's_memtime s[{sTS}:{sTS+1}]'); I('s_waitcnt lgkmcnt(0)'); I(f'v_writelane_b32 v0, s{sTS}, {i+32}')
def smul(d,x,c): I(f's_mul_i32 s{d}, s{x}, {c}')
def sadd(d,x,c): I(f's_add_u32 s{d}, s{x}, {c if isinstance(c,int) else "s%d"%c[0]}')
def sacc(d,x): I(f's_add_u32 s{d}, s{d}, s{x}')
def vconst(r,c): I(f'v_mov_b32 v{r}, {c}')
def div10(dst,src): I(f'v_mul_u32_u24 v{dst}, 0x199a, v{src}'); I(f'v_lshrrev_b32 v{dst}, 16, v{dst}')
uid=[0]
SLP=E('SLP',6)
def poll(voffs,tmp):
    I(f's_mov_b32 s{sTo}, 0x40000')
    for i,vo in enumerate(voffs): I(f'buffer_load_dword v{tmp+i}, v{vo}, {srd(sWS)}, 0 offen sc1')
    for i,vo in enumerate(voffs):
        uid[0]+=1; L=f'Lpoll{uid[0]}'
        I(f's_waitcnt vmcnt({len(voffs)-1-i})')
        lab(L)
        I(f'v_cmp_ne_u32 vcc, s{sTag}, v{tmp+i}')
        I(f's_cbranch_vccz {L}d')
        I('s_mov_b64 exec, vcc')
        if E('SLP1',6): I(f's_sleep {E("SLP1",6)}')
        I(f'buffer_load_dword v{tmp+i}, v{vo}, {srd(sWS)}, 0 offen sc1')
        I(f's_sub_u32 s{sTo}, s{sTo}, 1')
        I('s_waitcnt vmcnt(0)')
        I(f's_cbranch_scc0 {L}'); lab(L+'d')
        I('s_mov_b64 exec, -1')
def poll2(vo,tmp):
    uid[0]+=1; L=f'Lpoll{uid[0]}'
    I(f's_mov_b32 s{sTo}, 0x40000')
    I(f'buffer_load_dwordx2 {v(tmp,2)}, v{vo}, {srd(sWS)}, 0 offen sc1')
    I(f's_waitcnt vmcnt(0)')
    lab(L)
    I(f'v_cmp_ne_u32 vcc, s{sTag}, v{tmp}'); I(f'v_cmp_ne_u32 s[{t4}:{t5}], s{sTag}, v{tmp+1}'); I(f's_or_b64 vcc, vcc, s[{t4}:{t5}]')
    I(f's_cbranch_vccz {L}d')
    I('s_mov_b64 exec, vcc')
    if SLP: I(f's_sleep {SLP}')
    I(f'buffer_load_dwordx2 {v(tmp,2)}, v{vo}, {srd(sWS)}, 0 offen sc1')
    I(f's_sub_u32 s{sTo}, s{sTo}, 1')
    I('s_waitcnt vmcnt(0)')
    I(f's_cbranch_scc0 {L}'); lab(L+'d')
    I('s_mov_b64 exec, -1')
def ldssync(vaddr,tmp):
    I(f'v_mov_b32 v{tmp}, 1'); I('s_waitcnt lgkmcnt(0)')
    I('s_mov_b64 exec, 1'); I(f'ds_add_u32 v{vaddr}, v{tmp}'); I('s_mov_b64 exec, -1')
    uid[0]+=1; L=f'Llp{uid[0]}'
    I(f's_mov_b32 s{sTo}, 0x400000'); lab(L)
    I(f'ds_read_b32 v{tmp}, v{vaddr}'); I('s_waitcnt lgkmcnt(0)')
    I(f'v_cmp_gt_u32 vcc, 2, v{tmp}')
    I(f's_cbranch_vccz {L}d'); I(f's_sub_u32 s{sTo}, s{sTo}, 1'); I(f's_cbranch_scc0 {L}'); lab(L+'d')
def setflag(voff,tmp):
    I(f'v_mov_b32 v{tmp}, s{sTag}'); I('s_mov_b64 exec, 1')
    I(f'buffer_store_dword v{tmp}, v{voff}, {srd(sWS)}, 0 offen sc1'); I('s_mov_b64 exec, -1')
def mksrd(d,p,n):
    I(f's_mov_b32 s{d}, s{p}'); I(f's_mov_b32 s{d+1}, s{p+1}'); I(f's_mov_b32 s{d+2}, {n}'); I(f's_mov_b32 s{d+3}, 0x20000')
MF='v_mfma_f32_16x16x32_bf16'
K=f'{NAME}_kernel'
ACC=16
FX=dict(A=100,B=116); FY=dict(A=140,B=156)
vAo=180; vBo=184; vRA=189; vRB=191
vKA=200; vE0=208; vWp,vWm,vWm0=214,215,216; WP=220
lab('Lstart')
I(f's_cmp_ge_u32 s2, 256'); I('s_cbranch_scc1 Lend')
PADT=E('PADT',0)
if TS or PADT: I(f's_memrealtime s[{sTS+2}:{sTS+3}]')
I(f's_load_dwordx16 s[{sK}:{sK+15}], s[0:1], 0')
I(f's_load_dwordx4 s[{sK+16}:{sK+19}], s[0:1], 64')
I(f'v_lshrrev_b32 v4, 6, v0'); I(f'v_and_b32 v{vL}, 63, v0')
I(f'v_readfirstlane_b32 s{sW}, v4')
I(f's_getpc_b64 s[{sGATE}:{sGATE+1}]')
lab('Lpc')
I(f's_add_u32 s{sTAB}, s{sGATE}, tab_base@rel32@lo+4'); I(f's_addc_u32 s{sTAB+1}, s{sGATE+1}, tab_base@rel32@hi+12')
I(f's_mov_b32 s{sGATE+2}, Lfin-Lpc'); I(f's_mov_b32 s{sGATE+3}, 0x20000')
I(f'v_lshlrev_b32 v9, 4, v{vL}')
I(f's_lshr_b32 s{t0}, s2, 3'); I(f's_and_b32 s{t1}, s2, 7')
if CPF:
    I(f's_lshl_b32 s{t2}, s{t0}, 10'); I(f's_cmp_eq_u32 s{sW}, 3'); I(f's_cbranch_scc0 Lnocpf')
    I(f'buffer_load_dwordx4 v[96:99], v9, {srd(sGATE)}, s{t2} offen'); lab('Lnocpf')
I(f'v_and_b32 v{vN}, 15, v{vL}'); I(f'v_lshrrev_b32 v{vG}, 4, v{vL}')
I(f's_lshr_b32 s{sRb}, s{t1}, 2'); I(f's_lshl_b32 s{sRb}, s{sRb}, 3'); I(f's_lshr_b32 s{t2}, s{t0}, 2'); sacc(sRb,t2)
I(f's_and_b32 s{sWr}, s{sW}, 1'); I(f's_lshr_b32 s{sWc}, s{sW}, 1')
I(f'v_and_b32 v5, 7, v{vL}'); I(f'v_xor_b32 v5, v5, v{vG}'); I(f'v_lshrrev_b32 v4, 3, v{vL}'); I(f'v_mul_u32_u24 v4, 40960, v4')
I(f'v_lshl_add_u32 v{vAo}, v5, 4, v4'); I(f'v_xor_b32 v{vAo+1}, 64, v{vAo}')
I(f's_lshl_b32 s{t3}, s{sRb}, 1'); sacc(t3,sWc); smul(t3,t3,1280); smul(t2,sWr,32*40960); I(f's_add_u32 s{sA2}, s{t3}, s{t2}')
I(f's_bfe_u32 s{sTyp}, s{t0}, 0x10001')
I(f's_and_b32 s{sGrp}, s{t1}, 3'); I(f's_lshl_b32 s{sGrp}, s{sGrp}, 1'); I(f's_and_b32 s{t2}, s{t0}, 1'); sacc(sGrp,t2)
if E('P3MAP',0)==0:
    I(f's_lshl_b32 s{sN2}, s{t1}, 2'); I(f's_lshr_b32 s{t2}, s{t0}, 3'); sacc(sN2,t2); I(f's_and_b32 s{sCt}, s{t0}, 7')
else:
    I(f's_lshr_b32 s{sN2}, s{t1}, 1'); I(f's_lshl_b32 s{sN2}, s{sN2}, 3'); I(f's_lshr_b32 s{t2}, s{t0}, 2'); sacc(sN2,t2)
    I(f's_and_b32 s{sCt}, s{t1}, 1'); I(f's_lshl_b32 s{sCt}, s{sCt}, 2'); I(f's_and_b32 s{t2}, s{t0}, 3'); sacc(sCt,t2)
if ROT:
    a,ma,b,mb,c,d={1:(5,7,10,3,0,0),2:(0,0,0,0,10,20),3:(20,1,20,1,0,0),4:(10,3,10,3,0,0),5:(20,1,0,0,10,0),6:(0,0,20,1,10,20),7:(10,1,20,1,0,0),8:(5,7,10,3,10,20),9:(0,0,0,0,0,20),10:(0,0,0,0,20,20)}[ROT]
    I(f's_lshr_b32 s{t2}, s{t0}, 2'); I(f's_and_b32 s{t2}, s{t2}, {ma}'); smul(t2,t2,a); I(f's_and_b32 s{t3}, s{t0}, {mb}'); smul(t3,t3,b); sacc(t2,t3)
    I(f's_and_b32 s{t3}, s{t1}, 3'); smul(t3,t3,c); sacc(t2,t3); I(f's_lshr_b32 s{t3}, s{t1}, 2'); smul(t3,t3,d); sacc(t2,t3)
    I(f's_lshr_b32 s{t2}, s{t2}, 2'); smul(t3,t2,26); I(f's_lshr_b32 s{t3}, s{t3}, 8'); smul(t3,t3,10); I(f's_sub_u32 s{sIs}, s{t2}, s{t3}')
else: I(f's_mov_b32 s{sIs}, 0')
I(f's_lshl_b32 s{sMA}, s{sW}, 12')
I(f's_lshl_b32 s{sAo}, s{sIs}, 7'); sacc(sAo,sA2)
I(f's_mov_b32 s{sTAB+2}, {TB.TAB_SZ}'); I(f's_mov_b32 s{sTAB+3}, 0x20000')
I(f's_andn2_b32 s{t0}, s{sTyp}, s{sWc}')
I(f's_sub_u32 s{t1}, 1, s{sTyp}'); sadd(t2,sWc,1); I(f's_mul_i32 s{t1}, s{t1}, s{t2}'); smul(t1,t1,1280)
smul(t2,sGrp,160); sacc(t1,t2); smul(t2,sWr,32*3840); sacc(t1,t2)
smul(t2,sGrp,102400); smul(t3,sWr,5120); sacc(t2,t3)
smul(sMB,sWc,10256); sacc(sMB,t3); sadd(sMB,sMB,SEG0)
I(f's_cmp_eq_u32 s{t0}, 1')
I(f's_cselect_b32 s{t1}, s{t2}, s{t1}')
I(f's_mov_b32 s{sBstep}, {64*3840}'); I(f's_cselect_b32 s{sBstep}, 10240, s{sBstep}')
I(f's_cselect_b64 s[{t4}:{t5}], -1, 0')
I(f's_mul_i32 s{sBo}, s{sIs}, s{sBstep}')
I(f's_mov_b32 s{t2}, 3840')
def dmaA(i): return [f's_add_u32 m0, s{sMA}, {1024*i}', f's_add_u32 s{t3}, s{sAo}, {i*8*40960}', f'buffer_load_dwordx4 v{vAo+(i&1)}, {srd(sX)}, s{t3} offen {POLA} lds']
def dmaB(i): return [f's_add_u32 m0, s{sMB}, {1024*i}', 's_nop 0', f'buffer_load_dwordx4 v{vBo+i}, {srd(sSEG)}, s{sBo} offen {POLB} lds']
def advA(d):
    return [f's_add_u32 s{sIs}, s{sIs}, 1', f's_cmp_eq_u32 s{sIs}, 10', f's_cselect_b32 s{sIs}, 0, s{sIs}',
            f's_lshl_b32 s{sAo}, s{sIs}, 7', f's_add_u32 s{sAo}, s{sAo}, s{sA2}', f's_add_u32 s{sMA}, s{sMA}, {d}']
def advB(d): return [f's_mul_i32 s{sBo}, s{sIs}, s{sBstep}', f's_add_u32 s{sMB}, s{sMB}, {d}']
def dma_adv(d):
    return [f's_add_u32 s{sIs}, s{sIs}, 1', f's_cmp_eq_u32 s{sIs}, 10', f's_cselect_b32 s{sIs}, 0, s{sIs}',
            f's_lshl_b32 s{sAo}, s{sIs}, 7', f's_add_u32 s{sAo}, s{sAo}, s{sA2}', f's_mul_i32 s{sBo}, s{sIs}, s{sBstep}',
            f's_add_u32 s{sMA}, s{sMA}, {d}', f's_add_u32 s{sMB}, s{sMB}, {d}']
def boff(i):
    I(f'v_add_u32 v4, {64*i}, v{vL}'); div10(5,4)
    I(f'v_lshlrev_b32 v4, 4, v4'); I(f'v_mul_u32_u24 v6, 160, v5'); I(f'v_sub_u32 v6, v4, v6')
    I(f'v_and_b32 v7, 3, v5'); I(f'v_bfe_u32 v8, v5, 2, 2'); I(f'v_lshl_or_b32 v7, v8, 3, v7')
    I(f'v_lshrrev_b32 v8, 4, v5'); I(f'v_lshl_or_b32 v7, v8, 2, v7')
    I(f'v_mad_u32_u24 v7, v7, s{t2}, v6'); I(f'v_cndmask_b32 v7, v7, v4, s[{t4}:{t5}]'); I(f'v_add_u32 v{vBo+i}, s{t1}, v7')
boff(0)
if TS: I(f's_memrealtime s[{sTS}:{sTS+1}]')
I('s_waitcnt lgkmcnt(0)')
if TS:
    I(f'v_writelane_b32 v0, s{sTS}, 4'); stamp(2)
mksrd(sX,sK+0,2621440)
WSB=E('WSB',128)*1048576
if WSB: I(f's_add_u32 s{sK+18}, s{sK+18}, {WSB}'); I(f's_addc_u32 s{sK+19}, s{sK+19}, 0')
I(f's_cmp_eq_u32 s{t0}, 1')
I(f's_cselect_b32 s{sSEG}, s{sTAB}, s{sK+8}'); I(f's_cselect_b32 s{sSEG+1}, s{sTAB+1}, s{sK+9}')
I(f's_mov_b32 s{sSEG+2}, 2457600'); I(f's_cselect_b32 s{sSEG+2}, {TB.TF_SZ}, s{sSEG+2}'); I(f's_mov_b32 s{sSEG+3}, 0x20000')
for i in range(4): emit(dmaA(i)); boff(i+1)
if TS: I(f'v_writelane_b32 v0, s{sTS+2}, 0')
def setup0():
    mksrd(sWS,sK+18,WS_SZ); mksrd(sWO,sK+10,819200)
    I(f's_lshl_b32 s{sDm}, s2, 2'); sacc(sDm,sW)
    smul(t0,sDm,0x667); I(f's_lshr_b32 s{t0}, s{t0}, 16')
    smul(t1,t0,40); I(f's_sub_u32 s{t1}, s{sDm}, s{t1}')
    smul(t2,t1,52); I(f's_lshr_b32 s{t2}, s{t2}, 8')
    smul(sGo,t2,5); I(f's_sub_u32 s{t1}, s{t1}, s{sGo}')
    smul(t2,t2,80)
    I(f's_lshl_b32 s{t0}, s{t0}, 2')
    I(f'v_bfe_u32 v4, v{vL}, 3, 2'); I(f'v_add_u32 v4, s{t0}, v4'); I(f'v_mul_u32_u24 v5, 0x3334, v4'); I(f'v_lshrrev_b32 v5, 16, v5')
    I(f'v_lshrrev_b32 v6, 5, v{vL}'); I(f'v_add_u32 v5, v5, v6')
    I(f'v_mul_u32_u24 v5, 20, v5'); I(f'v_lshl_add_u32 v5, v4, 2, v5'); I(f'v_bfe_u32 v4, v{vL}, 1, 2'); I(f'v_add_u32 v5, v5, v4')
    I(f's_lshr_b32 s{t0}, s{t1}, 1'); smul(t0,t0,640); I(f's_and_b32 s{sGo}, s{t1}, 1'); I(f's_lshl_b32 s{sGo}, s{sGo}, 5'); sacc(t0,sGo)
    I(f's_movk_i32 s{sGo}, 640')
    I([f's_cmp_eq_u32 s{t1}, 4', f's_cselect_b32 s{t0}, 64, s{t0}', f's_cselect_b32 s{t1}, s{sGo}, 16'])
    I(f'v_and_b32 v4, 1, v{vL}'); I(f'v_mul_u32_u24 v4, s{t1}, v4'); I(f's_movk_i32 s{t1}, 1280'); I(f'v_mad_u32_u24 v213, v5, s{t1}, v4')
    sacc(t0,t2)
    I([f's_cmp_lt_u32 s2, 200', f's_cselect_b32 s{sGo}, s{t0}, {OOB}'])
    I(f's_lshl_b32 s{t0}, s{sDm}, 6'); sadd(sDl,t0,WS_KVA)
    I(f'v_lshlrev_b32 v217, 2, v{vL}'); vconst(212,0)
def setupPF():
    I(f's_lshr_b32 s{t0}, s2, 3'); I(f's_lshl_b32 s{t0}, s{t0}, 2'); sacc(t0,sW)
    I(f's_lshl_b32 s{t1}, s{t0}, 3'); I(f'v_and_b32 v4, 7, v{vL}'); I(f'v_add_u32 v4, s{t1}, v4'); I(f'v_lshrrev_b32 v5, 4, v4'); I(f'v_and_b32 v4, 15, v4')
    I(f'v_lshl_add_u32 v4, v5, 5, v4'); I(f's_bfe_u32 s{t1}, s2, 0x10002'); I(f's_lshl_b32 s{t1}, s{t1}, 4'); I(f'v_add_u32 v4, s{t1}, v4'); I(f'v_mul_u32_u24 v10, 1280, v4')
    smul(t1,t0,5); I(f'v_subrev_u32 v4, 8, v{vL}'); I(f'v_add_u32 v4, s{t1}, v4'); I(f'v_min_u32 v4, 575, v4')
    I(f'v_mul_u32_u24 v5, 0x1c72, v4'); I(f'v_lshrrev_b32 v5, 16, v5'); I(f'v_mul_u32_u24 v6, 9, v5'); I(f'v_sub_u32 v6, v4, v6')
    I(f'v_mul_u32_u24 v7, 86, v6'); I(f'v_lshrrev_b32 v7, 8, v7'); I(f'v_mul_u32_u24 v8, 3, v7'); I(f'v_sub_u32 v8, v6, v8')
    I(f'v_mul_u32_u24 v5, 3840, v5'); I(f'v_mul_u32_u24 v7, 1280, v7'); I(f'v_lshlrev_b32 v8, 7, v8'); I(f'v_add3_u32 v5, v5, v7, v8')
    I(f's_and_b32 s{t2}, s2, 3'); smul(t1,t2,320); I(f's_and_b32 s{t1}, s{t1}, {0xffffff80}'); I(f'v_add_u32 v11, s{t1}, v5')
    I(f's_lshl_b32 s{t1}, s{t0}, 1'); I(f'v_subrev_u32 v4, 13, v{vL}'); I(f'v_add_u32 v4, s{t1}, v4'); I(f'v_min_u32 v4, 159, v4')
    I(f'v_lshlrev_b32 v5, 7, v4'); vconst(6,102400-10240); I(f'v_cmp_lt_u32 vcc, 79, v4'); I(f'v_cndmask_b32 v6, 0, v6, vcc'); I(f'v_add_u32 v5, v5, v6')
    smul(t1,t2,204800); I(f'v_add_u32 v12, s{t1}, v5')
    I(f'v_cmp_gt_u32 s[{t4}:{t5}], 8, v{vL}'); I(f'v_cmp_gt_u32 vcc, 13, v{vL}')
    I(f'v_cndmask_b32 v11, v12, v11, vcc'); I(f'v_cndmask_b32 v10, v11, v10, s[{t4}:{t5}]')
    for d,(x_,w_,f_) in ((96,(sK,sK+8,sTAB)),(97,(sK+1,sK+9,sTAB+1))):
        I(f'v_mov_b32 v4, s{f_}'); I(f'v_mov_b32 v5, s{w_}'); I(f'v_mov_b32 v6, s{x_}'); I(f'v_cndmask_b32 v4, v4, v5, vcc'); I(f'v_cndmask_b32 v{d}, v4, v6, s[{t4}:{t5}]')
    vconst(4,10240); vconst(5,64*3840); I(f'v_cndmask_b32 v4, v4, v5, vcc'); vconst(5,128); I(f'v_cndmask_b32 v98, v4, v5, s[{t4}:{t5}]')
    I(f'v_lshl_add_u32 v10, v98, 1, v10')
    I([f'v_add_co_u32 v96, vcc, v96, v10', f'v_addc_co_u32 v97, vcc, 0, v97, vcc'])
def pf(adv=True):
    L=['s_mov_b64 exec, 0x7fff', f'global_load_dword v99, v[96:97], off {PFPOL}', 's_mov_b64 exec, -1']
    if adv: L+=['v_add_co_u32 v96, vcc, v96, v98', 'v_addc_co_u32 v97, vcc, 0, v97, vcc']
    return L
def setup1():
    I([f's_add_u32 s{t0}, s{sK+18}, {WS_E}', f's_addc_u32 s{t1}, s{sK+19}, 0', f's_load_dword s{sTag}, s[{t0}:{t1}], 0'])
    mksrd(sWR,sK+2,1314816); mksrd(sWI,sK+4,1314816); mksrd(sGATE,sK+12,1280); mksrd(sOUT,sK+14,2621440)
    vconst(5,0); I(f'v_lshlrev_b32 v4, 2, v{vN}'); I(f'v_add_u32 v4, {L_FLG}, v4'); I(f'ds_write_b32 v4, v5')
    I(f'v_lshrrev_b32 v4, 1, v{vN}'); I(f'v_xor_b32 v4, v4, v{vG}'); I(f'v_lshlrev_b32 v4, 4, v4')
    I(f'v_lshl_add_u32 v4, v{vN}, 7, v4'); I(f's_lshl_b32 s{t0}, s{sWr}, 13'); I(f'v_add_u32 v{vRA}, s{t0}, v4'); I(f'v_xor_b32 v{vRA+1}, 64, v{vRA}')
    I(f'v_lshrrev_b32 v4, 2, v{vL}'); I(f'v_mul_u32_u24 v4, 160, v4'); I(f'v_and_b32 v5, 3, v{vL}'); I(f'v_lshlrev_b32 v5, 3, v5'); I(f'v_add_u32 v4, v4, v5')
    smul(t0,sWc,80); smul(t1,sWc,10256)
    I([f's_cmp_eq_u32 s{sTyp}, 0', f's_cselect_b32 s{t0}, s{t0}, s{t1}', f's_cselect_b32 s{t1}, {SEG1-SEG0-80}, 0']); sadd(t0,t0,SEG0)
    I(f'v_add_u32 v{vRB}, s{t0}, v4'); I(f'v_add_u32 v{vRB+1}, 32, v{vRB}')
    I(f'v_mov_b32 v6, s{t1}'); I(f'v_cmp_lt_u32 vcc, 8, v5'); I(f'v_cndmask_b32 v6, 0, v6, vcc'); I(f'v_add3_u32 v{vRB+2}, v{vRB}, v6, 64')
    I(f'v_add_u32 v4, s{t1}, v{vRB}'); I(f'v_add_u32 v{vRB+3}, 96, v4'); I(f'v_add_u32 v{vRB+4}, 0x80, v4')
    I(f's_lshr_b32 s{t0}, s{sRb}, 1'); I(f's_lshl_b32 s{t0}, s{t0}, 3'); sacc(t0,sGrp)
    I(f's_lshr_b32 s{t1}, s{t0}, 5'); sadd(t1,t1,8); I(f's_bfe_u32 s{t2}, s{t0}, 0x10004'); smul(t2,t2,10); sacc(t1,t2)
    I(f's_and_b32 s{sCh}, s{sRb}, 3'); I(f's_lshr_b32 s{t2}, s{sRb}, 3'); I(f's_lshl_b32 s{t2}, s{t2}, 2'); sacc(sCh,t2); I(f's_bfe_u32 s{t2}, s{sRb}, 0x10002'); smul(t2,t2,10); sacc(sCh,t2)
    I(f's_and_b32 s{t2}, s{t0}, 15'); I(f's_lshl_b32 s{t2}, s{t2}, 1'); sacc(t2,sWr)
    I(f's_lshl_b32 s{t0}, s{sGrp}, 2'); sacc(t0,sW)
    I([f's_cmp_eq_u32 s{sTyp}, 0', f's_cselect_b32 s{sT}, s{t0}, s{t2}', f's_cselect_b32 s{sCh}, s{sCh}, s{t1}'])
    I(f's_or_b32 s{t0}, s{sRb}, s{sWc}'); I(f's_and_b32 s{t0}, s{t0}, s{sTyp}'); I(f's_xor_b32 s{sAct}, s{t0}, 1')
    I(f's_lshl_b32 s{t0}, s{sCh}, 6'); I([f's_cmp_ge_u32 s{sCh}, 10', f's_cselect_b32 s{t1}, 638, 0']); I(f's_sub_u32 s{t0}, s{t0}, s{t1}')
    I([f's_cmp_eq_u32 s{sAct}, 1', f's_cselect_b32 s{t0}, s{t0}, {OOB}'])
    I(f's_mov_b32 s{t1}, {256*642}'); I(f'v_lshlrev_b32 v10, 2, v{vN}'); I(f'v_add_u32 v10, s{t0}, v10')
    I(f'v_mad_u32_u24 v{vWp}, v{vG}, s{t1}, v10'); I(f'v_sub_u32 v11, 3, v{vG}'); I(f'v_mad_u32_u24 v{vWm}, v11, s{t1}, v10')
    I(f's_movk_i32 s{t2}, 1024')
    I([f's_cmp_eq_u32 s{sT}, 0', f's_cselect_b32 s{t0}, {1024*642}, 0', f's_cselect_b32 s{t2}, 32, s{t2}'])
    I(f'v_mov_b32 v11, s{t0}'); I(f'v_cmp_eq_u32 vcc, 0, v{vG}'); I(f'v_cndmask_b32 v11, 0, v11, vcc'); I(f'v_sub_u32 v11, {256*642}, v11'); I(f'v_add_u32 v{vWm0}, v{vWm}, v11')
    sacc(t2,sT); smul(sB0,sT,642); smul(sB1,t2,642)
    I(f'v_mul_u32_u24 v4, {64*642}, v{vN}'); I(f'v_mov_b32 v5, s{sB0}'); I(f'v_mov_b32 v6, s{sB1}')
    I(f'v_and_b32 v7, 16, v{vL}'); I(f'v_cmp_eq_u32 vcc, 0, v7'); I(f'v_cndmask_b32 v5, v6, v5, vcc'); I(f'v_add_u32 v4, v4, v5')
    I(f'v_sub_u32 v5, {2048*642}, v4'); vconst(6,1024*642); I(f'v_cmp_eq_u32 vcc, 0, v4'); I(f'v_cndmask_b32 v5, v5, v6, vcc')
    I(f'v_cmp_gt_u32 vcc, 32, v{vL}'); I(f'v_cndmask_b32 v4, v5, v4, vcc')
    I([f's_cmp_eq_u32 s{sCh}, 0', f's_cselect_b32 s{t0}, 0, {OOB}']); I(f'v_add_u32 v254, s{t0}, v4')
    for i in range(4): vconst(vE0+i,OOB)
    smul(t0,sWr,KA); smul(t1,sWr,KB); sadd(t1,t1,2*KA); I([f's_cmp_eq_u32 s{sWc}, 0', f's_cselect_b32 s{sRot}, s{t0}, s{t1}', f's_cselect_b32 s{t2}, {5*KA-1}, {5*KB-1}'])
    smul(t0,sCt,5120); smul(t1,sRot,40960); sacc(t0,t1); sadd(sGb,t0,WS_WOF); sadd(sGe,sGb,KB*40960)
    if R3:
        if E('P3MAP',0)==0: smul(t0,sCt,10); I(f's_lshr_b32 s85, s{t0}, 3')
        else: I(f's_and_b32 s{t0}, s{sCt}, 3'); smul(t0,t0,10); I(f's_lshr_b32 s85, s{t0}, 2')
    else: I('s_mov_b32 s85, 0')
    I(f's_min_u32 s84, s85, {KB-1}'); I([f's_cmp_eq_u32 s{sWc}, 0', f's_cselect_b32 s84, 0, s84'])
    smul(t0,84,40960); I(f's_add_u32 s{sGo}, s{sGb}, s{t0}')
    I(f'v_min_u32 v9, s{t2}, v{vL}')
    I(f'v_lshlrev_b32 v4, 3, v{vL}'); I(f's_lshl_b32 s{t0}, s{sW}, 10'); sadd(t0,t0,L_PP); I(f'v_add_u32 v213, s{t0}, v4')
    I(f's_lshl_b32 s{t0}, s{sDm}, 10'); sadd(t0,t0,WS_WOF); I([f's_cmp_lt_u32 s2, 200', f's_cselect_b32 s{sB0+3}, s{t0}, {OOB}'])
    I(f's_lshl_b32 s{t0}, s{sDm}, 2'); sadd(t0,t0,WS_FL+FL_E*128); I(f'v_mov_b32 v217, s{t0}')
    I(f'v_mov_b32 v4, v9'); I(f'v_mul_u32_u24 v5, 52, v4'); I(f'v_lshrrev_b32 v5, 8, v5'); I(f'v_mad_u32_u24 v4, v5, 35, v4')
    smul(t0,sRot,40); smul(t1,sCt,5); sacc(t0,t1); I(f'v_add_u32 v4, s{t0}, v4'); I(f'v_lshlrev_b32 v4, 2, v4'); I(f'v_add_u32 v196, {WS_FL+FL_E*128}, v4')
    I(f's_lshl_b32 s{t0}, s{sGrp}, 1'); sacc(t0,sWc); I(f's_lshl_b32 s{t0}, s{t0}, 8'); sadd(t0,t0,WS_FL+FL_E*128)
    I(f'v_lshlrev_b32 v4, 2, v{vL}'); I(f'v_add_u32 v197, s{t0}, v4')
    if PW:
        smul(t0,sDm,1408); I(f'v_lshlrev_b32 v4, 7, v{vL}'); I(f'v_add_u32 v5, s{t0}, v4'); vconst(7,OOB>>1); I(f'v_cmp_gt_u32 vcc, 11, v{vL}'); I(f'v_cndmask_b32 v98, v7, v5, vcc')
    if POI:
        smul(t0,sWr,16*81920); I(f's_lshl_b32 s{t1}, s{sCh}, 12'); sacc(t0,t1)
        I(f's_lshr_b32 s{t1}, s{sT}, 1'); I(f's_lshl_b32 s{t1}, s{t1}, 8'); sacc(t0,t1); sadd(t0,t0,WS_R)
        I([f's_cmp_eq_u32 s{sAct}, 1', f's_cselect_b32 s86, s{t0}, 0x30000000'])
        I(f's_lshl_b32 s{t1}, s{sRb}, 1'); sacc(t1,sWr); smul(t1,t1,81920); sadd(t1,t1,WS_O)
        smul(t2,sGrp,10); I(f's_lshr_b32 s{t0}, s{t2}, 2'); I(f's_lshl_b32 s{t0}, s{t0}, 12'); sacc(t1,t0); I(f's_and_b32 s{t0}, s{t2}, 3'); I(f's_lshl_b32 s{t0}, s{t0}, 8'); sacc(t1,t0)
        I(f's_and_b32 s{t0}, s{sTyp}, s{sWc}'); I(f's_mov_b32 s87, {4*81920}'); I(f's_mov_b32 s93, 0x30000000'); I(f's_mov_b32 s{t4}, 81920')
        I([f's_cmp_eq_u32 s{t0}, 1', f's_cselect_b32 s86, s{t1}, s86', f's_cselect_b32 s87, 256, s87', f's_cselect_b32 s93, 3072, s93', f's_cselect_b32 s92, s{t2}, 0', f's_cselect_b32 s{t4}, 1024, s{t4}'])
        I(f'v_lshlrev_b32 v255, 4, v{vN}'); I(f'v_mad_u32_u24 v255, v{vG}, s{t4}, v255')
        for i in range(4): vconst(176+i,-1)
    I(f'v_lshlrev_b32 v218, 4, v{vL}'); I(f'v_add_u32 v219, 0x1000, v218')
weave([dmaB(i) for i in range(5)]+[dma_adv(SLOT)],cap(setup0))
I(f's_lshl_b32 s{t0}, s{sW}, 10'); I(f's_add_u32 m0, s{t0}, {L_PP}'); I(f'buffer_load_dwordx4 v213, {srd(sWO)}, s{sGo} offen lds')
I('s_mov_b64 exec, 0xffff'); I(f'buffer_store_dword v212, v217, {srd(sWS)}, s{sDl} offen sc1'); I('s_mov_b64 exec, -1')
A1AT=E('A1AT',4); B1AT=E('B1AT',0); A2AT=E('A2AT',-1)
gA1=[dmaA(i) for i in range(4)]+[advA(SLOT)]; gB1=[dmaB(i) for i in range(5)]+[advB(SLOT)]
stamp(5)
if PFX:
    setupPF()
    for _ in range(LEAD-2): emit(pf())
if A1AT==7: weave(cap(setup1),gA1)
else: setup1()
I(f's_cmp_eq_u32 s{sTyp}, 0'); I('s_cbranch_scc0 LsetFQ')
I(f's_lshl_b32 s{t0}, s{sWc}, 13'); smul(t1,sWr,1792); sacc(t0,t1); sadd(t0,t0,L_RED)
I(f'v_lshlrev_b32 v4, 2, v{vL}'); I(f'v_add_u32 v{vE0}, s{t0}, v4')
I(f's_lshl_b32 s{t0}, s{sGrp}, 1'); sacc(t0,sWc); I(f's_lshl_b32 s{t0}, s{t0}, 12'); sacc(t0,t1); sadd(t0,t0,WS_KVA)
I(f'v_add_u32 v{vE0+1}, s{t0}, v4')
I(f's_cmp_eq_u32 s{sWr}, 0'); I(f's_cselect_b32 s{t1}, 64, 8'); I(f'v_cmp_gt_u32 vcc, s{t1}, v{vL}')
I(f'v_cndmask_b32 v{vE0+2}, v{vE0+2}, v{vE0+1}, vcc')
I(f's_lshl_b32 s{t0}, s{sGrp}, 2'); sacc(t0,sW); I(f's_lshl_b32 s{t0}, s{t0}, 4'); sacc(t0,sRb)
I(f's_lshl_b32 s{t0}, s{t0}, 7'); sadd(t0,t0,WS_FL+FL_KV*128); I(f'v_mov_b32 v{vE0+3}, s{t0}')
I('s_branch Lsetdone')
lab('LsetFQ')
I(f's_cmp_eq_u32 s{sWc}, 0'); I('s_cbranch_scc0 Lsetdone')
I(f's_lshl_b32 s{t0}, s{sRb}, 1'); sacc(t0,sWr); smul(t0,t0,5120); smul(t1,sGrp,640); sacc(t0,t1)
I(f's_mov_b32 s{t1}, 163840'); I(f'v_lshlrev_b32 v4, 3, v{vN}'); I(f'v_mad_u32_u24 v4, v{vG}, s{t1}, v4'); I(f'v_add_u32 v{vE0}, s{t0}, v4')
I(f's_lshl_b32 s{t0}, s{sGrp}, 1'); sacc(t0,sWr); I(f's_lshl_b32 s{t0}, s{t0}, 4'); sacc(t0,sRb)
I(f's_lshl_b32 s{t0}, s{t0}, 7'); sadd(t0,t0,WS_FL+FL_Y*128); I(f'v_mov_b32 v{vE0+3}, s{t0}')
lab('Lsetdone')
AT1,AT2=192,224
TBL=[f's_cmp_eq_u32 s{sTyp}, 0','s_cbranch_scc0 LefF',f's_mov_b32 s{t0}, {TB.KA_OFF}']+[f'buffer_load_dwordx4 {v(vKA+4*i,4)}, v218, {srd(sTAB)}, s{t0} offen offset:{1024*i}' for i in range(2)]+['s_branch LefT','LefF:',
   f's_cmp_eq_u32 s{sWc}, 0','s_cbranch_scc0 Lnotb',f's_mov_b32 s{t0}, {TB.D1_OFF}',f's_mov_b32 s{t1}, {TB.D1_OFF+4096}']+[f'buffer_load_dwordx4 {a_(120+4*i,4)}, v218, {srd(sTAB)}, s{t0+i//4} offen offset:{1024*(i%4)}' for i in range(8)]+['LefT:',
   f's_cmp_eq_u32 s{sWc}, 0','s_cbranch_scc0 LefU',f's_mov_b32 s{t0}, {TB.D2_OFF}',f's_mov_b32 s{t1}, {TB.D2_OFF+4096}']+[f'buffer_load_dwordx4 {a_(160+4*i,4)}, v218, {srd(sTAB)}, s{t0+i//4} offen offset:{1024*(i%4)}' for i in range(8)]+['LefU:',
   f's_cmp_eq_u32 s{sT}, 0','s_cbranch_scc0 Lnotb']+sum([([f's_mov_b32 s{t0}, {TB.T1_OFF+1024*i}'] if i%4==0 else [])+[f'buffer_load_dwordx4 {a_(AT1+4*i,4)}, v218, {srd(sTAB)}, s{t0} offen offset:{1024*(i%4)}'] for i in range(16)],[])+['Lnotb:']
emit(TBL)
def fhex(x): return hex(struct.unpack('<I',struct.pack('<f',x))[0])
GP,G1,G16,GA,GS,GT=100,106,112,118,119,120
smul(t0,sWc,160); sacc(t0,sWr); I(f'v_lshlrev_b32 v{GT+3}, 3, v{vG}'); I(f'v_add_u32 v{GT+3}, s{t0}, v{GT+3}')
smul(t1,sCt,40)
for nt in range(3):
    d_,p_=GT+4,GT+5
    if nt<2: I(f'v_add_u32 v{d_}, {16*nt}, v{vN}')
    else: I(f'v_and_b32 v{d_}, 7, v{vN}'); I(f'v_add_u32 v{d_}, 32, v{d_}')
    I(f'v_add_u32 v{d_}, s{t1}, v{d_}'); I(f'v_mul_u32_u24 v{p_}, v{d_}, v{GT+3}'); I(f'v_cvt_f32_u32 v{p_}, v{p_}'); I(f'v_cvt_f32_u32 v{d_}, v{d_}')
    I(f'v_mul_f32 v{GT}, {fhex(1/640)}, v{p_}'); I(f'v_cos_f32 v{GP+2*nt}, v{GT}'); I(f'v_sin_f32 v{GP+2*nt+1}, v{GT}')
    I(f'v_mul_f32 v{GT+1}, {fhex(1/320)}, v{d_}'); I(f'v_cos_f32 v{G1+2*nt}, v{GT+1}'); I(f'v_sin_f32 v{G1+2*nt+1}, v{GT+1}')
    I(f'v_mul_f32 v{GT+2}, {fhex(1/20)}, v{d_}'); I(f'v_cos_f32 v{G16+2*nt}, v{GT+2}'); I(f'v_sin_f32 v{G16+2*nt+1}, v{GT+2}')
I(f'v_and_b32 v{GS}, 1, v{vN}'); I(f'v_lshlrev_b32 v{GS}, 31, v{GS}'); I(f'v_xor_b32 v{GS}, 0xbf800000, v{GS}')
I(f's_cmp_eq_u32 s{sW}, 0'); I(f's_cselect_b32 s{sEx}, 0xffff, 0'); I(f's_mov_b32 s{sEx+1}, 0')
smul(t0,sWr,30720); smul(t1,sWc,15360); sacc(t0,t1); sadd(t0,t0,L_G); I(f'v_add_u32 v{GA}, s{t0}, v218')
def rot(d,p,r,dd=None):
    dd=d if dd is None else dd
    I(f'v_pk_mul_f32 {v(d,2)}, {v(p,2)}, {v(r,2)} op_sel_hi:[1,0]')
    I(f'v_pk_fma_f32 {v(dd,2)}, {v(p,2)}, {v(r,2)}, {v(d,2)} op_sel:[1,1,0] op_sel_hi:[0,1,1] neg_lo:[0,1,0]')
stamp(6)
if A1AT==6: emit(gA1)
if B1AT==6: emit(gB1)
I(f's_mov_b32 s{sCnt}, 5'); lab('Lgg')
for nt in range(3):
    T=GT+nt*12; P0=GP+2*nt
    rot(T,P0,G1+2*nt); rot(T+2,T,G1+2*nt); rot(T+4,T+2,G1+2*nt)
    I(f'v_cndmask_b32 v{T+6}, v{P0+1}, v{GS}, s[{sEx}:{sEx+1}]')
    I(f'v_cvt_pk_bf16_f32 v{T+8}, v{P0}, v{T}'); I(f'v_cvt_pk_bf16_f32 v{T+9}, v{T+2}, v{T+4}')
    I(f'v_cvt_pk_bf16_f32 v{T+10}, -v{T+6}, -v{T+1}'); I(f'v_cvt_pk_bf16_f32 v{T+11}, -v{T+3}, -v{T+5}')
    I(f'ds_write_b128 v{GA}, {v(T+8,4)} offset:{1024*nt}')
    rot(T,P0,G16+2*nt,P0)
I(f'v_add_u32 v{GA}, 0xc00, v{GA}'); I(f's_mov_b32 s{sEx}, 0')
for at,grp_,nm in ((A1AT,gA1,'a'),(B1AT,gB1,'b'),(A2AT,gA1,'c')):
    if 1<=at<=5:
        I(f's_cmp_eq_u32 s{sCnt}, {at}'); I(f's_cbranch_scc0 Lgg{nm}'); emit(grp_); lab(f'Lgg{nm}')
I(f's_sub_u32 s{sCnt}, s{sCnt}, 1'); I(f's_cmp_lg_u32 s{sCnt}, 0'); I(f's_cbranch_scc1 Lgg')
AT1,AT2=192,224
stamp(7)
def tgen():
    TM=120; k=[0]
    def put(a,x,y):
        t=156+(k[0]&3); k[0]+=1
        I(f'v_cvt_pk_bf16_f32 v{t}, {x}, {y}'); I(f'v_accvgpr_write_b32 a{a}, v{t}'); return t
    I(f'v_lshlrev_b32 v4, 6, v{vN}'); I(f'v_add_u32 v4, s{sT}, v4'); I(f'v_cvt_f32_u32 v4, v4'); I(f'v_mul_f32 v4, 0x3a000000, v4'); I(f'v_add_f32 v5, 0.5, v4')
    I(f'v_lshlrev_b32 v6, 2, v{vG}'); I(f'v_cvt_f32_u32 v6, v6')
    for ks in range(2):
        for j in range(4):
            if 16*ks+j: I(f'v_add_f32 v7, {fhex(float(16*ks+j))}, v6')
            n2r=7 if 16*ks+j else 6
            for mh in range(2):
                c,s_=TM+4*mh,TM+4*mh+1
                I(f'v_mul_f32 v{s_}, v{4+mh}, v{n2r}'); I(f'v_cos_f32 v{c}, v{s_}'); I(f'v_sin_f32 v{s_}, v{s_}')
            for mh in range(2):
                c,s_=TM+4*mh,TM+4*mh+1
                put(AT1+(mh*2+ks)*4+j,f'v{c}',f'-v{s_}'); put(AT1+((2+mh)*2+ks)*4+j,f'v{s_}',f'v{c}')
    I(f'v_lshlrev_b32 v4, 8, v{vG}'); I(f'v_add_u32 v4, s{sT}, v4'); I(f'v_cvt_f32_u32 v4, v4'); I(f'v_mul_f32 v4, 0x3a000000, v4')
    I(f'v_cvt_f32_u32 v6, v{vN}'); I(f'v_add_f32 v7, 0x41800000, v6')
    for ks in range(2):
        for e in range(4):
            cst=0.5*ks+e/32.0
            if cst: I(f'v_add_f32 v5, {fhex(cst)}, v4')
            kr=5 if cst else 4
            for h in range(2):
                c,s_=TM+h*8+e,TM+h*8+4+e
                I(f'v_mul_f32 v{s_}, v{kr}, v{6+h}'); I(f'v_cos_f32 v{c}, v{s_}'); I(f'v_sin_f32 v{s_}, v{s_}')
        for h in range(2):
            c,s_=TM+h*8,TM+h*8+4; u0=AT2+(h*2+ks)*4; u1=AT2+((2+h)*2+ks)*4
            for p in range(2):
                t=put(u0+p,f'v{c+2*p}',f'v{c+2*p+1}'); I(f'v_accvgpr_write_b32 a{u1+2+p}, v{t}')
                put(u0+2+p,f'v{s_+2*p}',f'v{s_+2*p+1}'); put(u1+p,f'-v{s_+2*p}',f'-v{s_+2*p+1}')
TGL=cap(tgen)
if TGF:
    I(f's_cmp_eq_u32 s{sAct}, 0'); I('s_cbranch_scc1 Lnotg')
    if TGF==2: I(f's_cmp_eq_u32 s{sTyp}, 0'); I('s_cbranch_scc1 Lnotg'); I(f's_cmp_eq_u32 s{sT}, 0'); I('s_cbranch_scc1 Lnotg')
    emit(TGL)
lab('Lnotg')
stamp(8)
if B1AT==0: emit(gB1)
if A2AT==0: emit(gA1)
stamp(1)
def reads(F,ks):
    L=[]
    for mt in range(4): L.append(f'ds_read_b128 {v(F["A"]+4*mt,4)}, v{vRA+ks} offset:{2048*mt}')
    for nt in range(5):
        for h in range(2): L.append(f'ds_read_b64_tr_b16 {v(F["B"]+4*nt+2*h,2)}, v{vRB+nt} offset:{(32*ks+16*h)*160}')
    return L
def mfmas(F,z=False):
    L=[]
    for nt in range(5):
        for mt in range(4):
            c=v(ACC+(mt*5+nt)*4,4); L.append(f'{MF} {c}, {v(F["A"]+4*mt,4)}, {v(F["B"]+4*nt,4)}, {"0" if z else c}')
    return L
def block(M,R,X,pos):
    slots=[[] for _ in M]
    for g,x in R: slots[g].append(x)
    for g,x in zip(pos,X): slots[g].append(x)
    for m,s_ in zip(M,slots): I(m); emit(s_)
def adds(d): return [f'v_add_u32 v{r}, {d}, v{r}' for r in [vRA,vRB,vRB+1,vRB+2,vRB+3,vRB+4,vRA+1]]
I(f's_mov_b32 s{sCnt}, 0')
I(f's_waitcnt vmcnt({13 if A2AT>=0 else 9}) lgkmcnt(0)'); I('s_barrier')
I(f's_add_u32 s{sTag}, s{sTag}, 0x9e3779b9')
stamp(3)
I('ds_read_b64_tr_b16 v[4:5], v213'); I('ds_read_b64_tr_b16 v[6:7], v213 offset:512')
emit(reads(FX,0)[:12])
I(f'v_mov_b32 v212, s{sTag}')
I('s_waitcnt lgkmcnt(12)'); I(f'buffer_store_dwordx4 v[4:7], v218, {srd(sWS)}, s{sB0+3} offen sc1')
emit(reads(FX,0)[12:])
def itertop(i=None):
    if TS and i==7: stamp(11)
    if TS and E('ITS',0):
        if i is None: I(f's_add_u32 m0, s{sCnt}, 48'); stamp('m0')
        else: stamp(48+i)
    I('s_waitcnt lgkmcnt(0)')
smul(t0,sWr,30720); sadd(t0,t0,L_G); I(f'v_add_u32 v8, s{t0}, v218')
GR=[f'ds_read_b128 {a_(4*i,4)}, v8 offset:{i*1024}' for i in range(30)]
I(f's_cmp_eq_u32 s{sWc}, 0'); I('s_cbranch_scc0 Lit0b')
I('s_waitcnt lgkmcnt(0)')
block(mfmas(FX,True),[(i*20//44,r) for i,r in enumerate(reads(FY,1)+GR)]+[(i*20//32,f'v_mov_b32 v{WP+i}, 0') for i in range(32)],gA1,[1,6,11,16,17])
I('s_branch Lit0c')
lab('Lit0b')
I('s_waitcnt lgkmcnt(0)')
block(mfmas(FX,True),list(enumerate(reads(FY,1)))+[(i*20//32,f'v_mov_b32 v{WP+i}, 0') for i in range(32)],([] if A2AT>=0 else gA1),[1,6,11,16,17])
lab('Lit0c')
I(f's_waitcnt vmcnt(5) lgkmcnt(0)'); I('s_barrier')
ad=adds(SLOT)
R2=[(0,ad[0]),(0,ad[1]),(1,ad[2]),(1,ad[3]),(2,ad[4]),(2,ad[5]),(3,ad[6])]+[(i+2,r) for i,r in enumerate(reads(FX,0))]
block(mfmas(FY),R2,[dmaB(i) for i in range(5)]+[advB(SLOT)+(pf() if PFX else [])+([f's_mov_b32 s{t2}, {OOB}', f'buffer_load_dword v99, v98, {srd(sWR)}, s{t2} offen', f'buffer_load_dword v99, v98, {srd(sWI)}, s{t2} offen'] if PW else [])]+[dmaA(i) for i in range(4)]+[advA(-3*SLOT)],[0,2,4,6,8,9,10,12,14,16,17])
I(f's_mov_b32 s{sCnt}, 1')
POS=E('POS',0)
PB_,PA_={0:([1,5,9,13,16],[1,6,11,16]),1:([0,1,2,3,4],[0,1,2,3]),2:([0,2,4,6,8],[0,2,4,6]),3:([0,3,6,9,12],[0,3,6,9]),4:([6,9,12,14,16],[7,10,13,16])}[POS]
lab('Lmain')
itertop()
pre=[f's_add_u32 s{sCnt}, s{sCnt}, 1', f's_mov_b32 s{sDl}, {SLOT}', f's_mov_b32 s{sDm}, {SLOT}',
     f's_and_b32 s{t0}, s{sCnt}, 3', f's_cselect_b32 s{sDl}, s{sDl}, {-3*SLOT}', f's_cmp_eq_u32 s{t0}, 1', f's_cselect_b32 s{sDm}, {-3*SLOT}, s{sDm}']
eflag=[f's_cmp_eq_u32 s{sCnt}, {3 if HALF else 2}','s_cbranch_scc0 Lnoef','s_mov_b64 exec, 1',f'buffer_store_dword v212, v217, {srd(sWS)}, 0 offen sc1','s_mov_b64 exec, -1','Lnoef:']
ad=adds(f's{sDl}')
R2=[(0,ad[0]),(0,ad[1]),(1,ad[2]),(1,ad[3]),(2,ad[4]),(2,ad[5]),(3,ad[6])]+[(i+2,r) for i,r in enumerate(reads(FX,0))]
if HALF:
    preH=pre+[f's_mov_b32 s{t1}, {SLOT}', f's_cmp_eq_u32 s{t0}, 2', f's_cselect_b32 s{t1}, {-3*SLOT}, s{t1}']+advB(f's{t1}')
    pfl=([[f's_cmp_eq_u32 s{sCnt}, {10-LEAD}','s_cbranch_scc0 Lpfk','v_mov_b32 v98, 0','Lpfk:']+pf()] if PFX else [])
    if PW:
        pfl=[[f's_movk_i32 s{t2}, 0', f's_cmp_eq_u32 s{sCnt}, {PW+1}', f's_cselect_b32 s{t2}, s{t2}, {OOB}', f'buffer_load_dword v99, v98, {srd(sWR)}, s{t2} offen', f'buffer_load_dword v99, v98, {srd(sWI)}, s{t2} offen']]
    block(mfmas(FX),list(enumerate(reads(FY,1))),[dmaB(i) for i in range(5)]+[preH]+pfl,PB_+[17,18])
    I(f's_waitcnt vmcnt({11 if PFX else (13 if PW else 9)}) lgkmcnt(0)'); I('s_barrier')
    block(mfmas(FY),R2,[dmaA(i) for i in range(4)]+[advA(f's{sDm}'),eflag],PA_+[18,19])
else:
    block(mfmas(FX),list(enumerate(reads(FY,1))),[dmaA(i) for i in range(4)]+[pre],[1,6,11,16,18])
    I('s_waitcnt vmcnt(13) lgkmcnt(0)'); I('s_barrier')
    block(mfmas(FY),R2,[dmaB(i) for i in range(5)]+[dma_adv(f's{sDm}'),eflag],[1,5,9,13,17,18,19])
I(f's_cmp_lt_u32 s{sCnt}, 7'); I('s_cbranch_scc1 Lmain')
def wload(base,vp,vm,vm0,i,which):
    mh,r=i>>2,i&3; sb=(sB0,sB1)[mh]
    if which==0:
        return [f's_add_u32 s{t2}, s{sb}, {64*r*642}', f'buffer_load_short_d16_hi v{base+i}, v{vp}, {srd(sWR)}, s{t2} offen {POLW}', f'buffer_load_short_d16_hi v{base+8+i}, v{vp}, {srd(sWI)}, s{t2} offen {POLW}']
    m=vm0 if i==0 else vm
    return [f's_sub_u32 s{t2}, {(1280-64*r-(256 if i==0 else 0))*642}, s{sb}', f'buffer_load_short_d16_hi v{base+16+i}, v{m}, {srd(sWR)}, s{t2} offen {POLW}', f'buffer_load_short_d16_hi v{base+24+i}, v{m}, {srd(sWI)}, s{t2} offen {POLW}']
WL=[wload(WP,vWp,vWm,vWm0,i,w) for i in range(8) for w in range(2)]
PST=[[f'buffer_store_dwordx4 v[176:179], v255, {srd(sWS)}, s86 offen sc1', 's_add_u32 s86, s86, s87', 's_add_u32 s92, s92, 1', f's_and_b32 s{t1}, s92, 3', f's_cselect_b32 s{t1}, 0, s93', f's_add_u32 s86, s86, s{t1}'] for _ in range(10)] if POI else []
pplan={(7,0):0,(7,1):4,(8,0):3,(8,1):3,(9,0):0,(9,1):0}; pl_=0
wl=0; vm=0
W3L=['v_mov_b32 v252, 0','v_mov_b32 v253, 0',f'buffer_load_short_d16_hi v252, v254, {srd(sWR)}, 0 offen offset:640 {POLW}',f'buffer_load_short_d16_hi v253, v254, {srd(sWI)}, 0 offen offset:640 {POLW}']
FLG=[f'buffer_load_dword v198, v196, {srd(sWS)}, 0 offen sc1', f'buffer_load_dword v199, v197, {srd(sWS)}, 0 offen sc1']
plan={16:{(7,0):0,(7,1):3,(8,0):4,(8,1):4,(9,0):3,(9,1):2},8:{(7,0):0,(7,1):1,(8,0):2,(8,1):2,(9,0):2,(9,1):1},10:{(7,0):0,(7,1):2,(8,0):2,(8,1):2,(9,0):2,(9,1):2}}[WS1]
def pos(n,a=2,b=17): return [a+(b-a)*i//max(n-1,1) for i in range(n)]
for s_ in (7,8,9):
    itertop(s_)
    X=WL[wl:wl+plan[(s_,0)]]; wl+=plan[(s_,0)]
    X=PST[pl_:pl_+pplan[(s_,0)]]+X; pl_+=len(PST[pl_:pl_+pplan[(s_,0)]])
    if s_==7: X=([dmaB(i) for i in range(5)] if HALF else [])+[FLG]+X
    block(mfmas(FX),list(enumerate(reads(FY,1))),X,pos(len(X)))
    if s_==7: I(f's_waitcnt vmcnt({11+2*wl+(1 if PFX else (2 if PW else 0))}) lgkmcnt(0)')
    elif s_==8: I(f's_waitcnt vmcnt({2*wl+pl_}) lgkmcnt(0)')
    else: I('s_waitcnt lgkmcnt(0)')
    I('s_barrier')
    if s_<9:
        ad=adds(SLOT if s_==8 else -3*SLOT)
        R2=[(0,ad[0]),(0,ad[1]),(1,ad[2]),(1,ad[3]),(2,ad[4]),(2,ad[5]),(3,ad[6])]+[(i+2,r) for i,r in enumerate(reads(FX,0))]
    else: R2=[]
    X=WL[wl:wl+plan[(s_,1)]]; wl+=plan[(s_,1)]
    X=PST[pl_:pl_+pplan[(s_,1)]]+X; pl_+=len(PST[pl_:pl_+pplan[(s_,1)]])
    if s_==9: X=X+[W3L]
    block(mfmas(FY),R2,X,pos(len(X),3,18 if s_==9 else 16))
assert wl==WS1
I(f's_mov_b32 s{sAo}, 0x3fb8aa3b'); I(f's_mov_b32 s{sAo+1}, 0x358637bd')
I(f'v_cmp_ne_u32 vcc, s{sTag}, v198'); I(f'v_cmp_ne_u32 s[{t4}:{t5}], s{sTag}, v199'); I(f's_or_b64 vcc, vcc, s[{t4}:{t5}]'); I('s_cbranch_vccz Leok')
poll([196,197],198)
lab('Leok')
I('s_nop 3')
stamp(14)
def acc(mt,nt,r=0,n=1): return v(ACC+(mt*5+nt)*4+r,n)
def phi2(dst,src,tmp):
    I(f'v_pk_mul_f32 {v(tmp,2)}, {v(src,2)}, s[{sAo}:{sAo+1}] op_sel_hi:[1,0]')
    I(f'v_exp_f32 v{tmp}, v{tmp} clamp'); I(f'v_exp_f32 v{tmp+1}, v{tmp+1} clamp')
    I(f'v_max_f32 v{dst}, s{sAo+1}, v{src}'); I(f'v_max_f32 v{dst+1}, s{sAo+1}, v{src+1}')
    I(f'v_pk_add_f32 {v(dst,2)}, {v(dst,2)}, {v(tmp,2)}')
def bl(i,AB):
    ks,nt=divmod(i,5)
    L=[f'buffer_load_dwordx4 {a_(AB+4*i,4)}, v{218 if nt<4 else 219}, {srd(sWS)}, s{sGo} offen offset:{1024*(nt%4)}']
    return L+([f's_add_u32 s{sGo}, s{sGo}, 40960', f's_cmp_eq_u32 s{sGo}, s{sGe}', f's_cselect_b32 s{sGo}, s{sGb}, s{sGo}'] if nt==4 else [])
def bls(a,b,AB=0): return [bl(i,AB) for i in range(a,b)]
I(f's_cmp_eq_u32 s{sTyp}, 0'); I('s_cbranch_scc0 LepiFQ')
PK=100; VV=124; DD=148; PAIRS=TB.PAIRS
NB0=E('NB0',14); NB1=E('NB1',14)
def kvepi():
    for nt in (2,3,4):
        for mt in range(4):
            for p in range(2): I(f'v_cvt_pk_bf16_f32 v{VV+(nt-2)*8+mt*2+p}, {acc(mt,nt,2*p)}, {acc(mt,nt,2*p+1)}')
    I(f'v_cmp_gt_u32 vcc, 8, v{vN}'); vconst(4,0x3f803f80)
    I(f's_lshl_b32 s{t0}, s{sW}, 12'); sadd(t0,t0,L_RED)
    for i in range(8): I(f'v_cndmask_b32 v{VV+i}, v{VV+i}, v4, vcc')
    for i in range(8): I(f'v_add_u32 v{vKA+i}, s{t0}, v{vKA+i}')
    for nt in range(3):
        for mt in range(4):
            for p in range(2):
                b=ACC+(mt*5+nt)*4+2*p
                phi2(b,b,4+2*p); I(f'v_cvt_pk_bf16_f32 v{PK+nt*8+mt*2+p}, v{b}, v{b+1}')
        for kb in range(2):
            for i,(a,b) in enumerate(PAIRS):
                if a==nt: I(f'{MF} {v(DD+4*i,4)}, {v(PK+a*8+4*kb,4)}, {v(VV+(b-2)*8+4*kb,4)}, {"0" if kb==0 else v(DD+4*i,4)}')
        if nt>0:
            for i,(a,b) in enumerate(PAIRS):
                if a==nt-1: I(f'ds_write_b128 v{vKA+i}, {v(DD+4*i,4)}')
P=cap(kvepi)
def grp_if_b(L):
    uid[0]+=1; n=f'Lb{uid[0]}'
    return [f's_cmp_eq_u32 s{sWc}, 0', f's_cbranch_scc1 {n}']+L+[n+':']
NBE=E('NBE',0)
weave(P,[grp_if_b(bls(i,i+2)) for i in range(0,NBE,2)],0,len(P)*E('EPIF',70)//100)
for i,(a,b) in enumerate(PAIRS):
    if a==2: I(f'ds_write_b128 v{vKA+i}, {v(DD+4*i,4)}')
I('s_waitcnt lgkmcnt(0)'); I('s_barrier')
for i in range(7): I(f'ds_read2st64_b32 {v(16+2*i,2)}, v{vE0} offset0:{i} offset1:{i+16}')
for i in range(7):
    I(f's_waitcnt lgkmcnt({6-i})'); I(f'v_add_f32 v{16+2*i}, v{16+2*i}, v{17+2*i}')
    I(f'buffer_atomic_add_f32 v{16+2*i}, v{vE0+1+(i==6)}, {srd(sWS)}, 0 offen offset:{256*i} {ATP}')
stamp(15)
I('s_branch Lp2a')
lab('LepiFQ')
I(f's_cmp_eq_u32 s{sWc}, 0'); I('s_cbranch_scc0 LepiQ')
XB=100; YD=140
def xcv(nt):
    for mt in range(4):
        for p in range(2): I(f'v_cvt_pk_bf16_f32 v{XB+nt*8+mt*2+p}, {acc(mt,nt,2*p)}, {acc(mt,nt,2*p+1)}')
def ymf(nt):
    for kb in range(2):
        for jt in range(4):
            d=v(YD+(nt&1)*16+4*jt,4)
            I(f'{MF} {d}, {a_(120+(jt*2+kb)*4,4)}, {v(XB+nt*8+4*kb,4)}, {"0" if kb==0 else d}')
def yst(nt):
    for jt in range(4):
        b=YD+(nt&1)*16+4*jt; o=172+jt*2
        I([f'v_cvt_pk_bf16_f32 v{o}, v{b}, v{b+1}', f'v_cvt_pk_bf16_f32 v{o+1}, v{b+2}, v{b+3}',
           f'buffer_store_dwordx2 {v(o,2)}, v{vE0}, {srd(sWS)}, s{t0+jt} offen offset:{128*nt} sc1'])
for jt in range(4): I(f's_mov_b32 s{t0+jt}, {4*jt*163840}')
xcv(0)
weave(cap(ymf,0),cap(xcv,1))
for nt in range(5):
    if nt<4:
        F_=(cap(xcv,nt+2) if nt<3 else [])
        Y_=cap(yst,nt)
        M=cap(ymf,nt+1)
        for i,m in enumerate(M):
            I(m)
            if i<4: emit(F_[2*i:2*i+2])
            else: emit(Y_[i-4])
    else: yst(nt)
stamp(15)
I('s_waitcnt vmcnt(0)'); setflag(vE0+3,4)
stamp(16)
TCH=E('TCH',0)
I(f's_cmp_eq_u32 s{sAct}, 0'); I(f's_cbranch_scc{0 if TCH else 1} {"Lact" if TCH else "Lp3"}')
if TCH:
    I(f's_lshr_b32 s{t0}, s2, 6'); I(f's_lshl_b32 s{t0}, s{t0}, 2'); I(f's_bfe_u32 s{t1}, s2, 0x10003'); I(f's_lshl_b32 s{t1}, s{t1}, 1'); sacc(t0,t1); sacc(t0,sWr); smul(t0,t0,200)
    I(f's_and_b32 s{t1}, s2, 1'); smul(t1,t1,20480); sadd(t1,t1,WS_WOF)
    for q in range(4):
        I(f'v_add_u32 v4, {50*q}, v{vL}'); I(f'v_min_u32 v4, {50*q+49}, v4'); I(f'v_add_u32 v4, s{t0}, v4')
        I(f'v_mul_u32_u24 v5, 0x6667, v4'); I(f'v_lshrrev_b32 v5, 22, v5'); I(f'v_mul_u32_u24 v5, 20480, v5'); I(f'v_lshl_add_u32 v4, v4, 7, v5')
        I(f'buffer_load_dword v{232+q}, v4, {srd(sWS)}, s{t1} offen sc1')
    I('s_branch Lp3')
    lab('Lact')
emit(WL[WS1:])
T1,T2,W3,YF,EF,TM,PQ=16,48,112,144,160,80,184
vY,vF,vXW,vXR,vRS,vLF=8,9,10,11,12,13
def p2addr():
    smul(t0,sCh,32*0x334); sadd(t1,t0,31*0x334); I(f's_lshr_b32 s{t0}, s{t0}, 16'); I(f's_lshr_b32 s{t1}, s{t1}, 16')
    I(f'v_mov_b32 v4, s{t0}'); I(f'v_mov_b32 v5, s{t1}'); I(f'v_cmp_gt_u32 vcc, 32, v{vL}'); I(f'v_cndmask_b32 v4, v5, v4, vcc')
    I(f'v_and_b32 v5, 31, v{vL}'); I(f'v_lshl_add_u32 v4, v4, 5, v5'); I(f'v_lshlrev_b32 v4, 7, v4'); I(f'v_add_u32 v{vF}, {WS_FL+FL_Y*128}, v4')
    I(f's_lshr_b32 s{t0}, s{sT}, 1'); smul(t0,t0,163840); I(f's_lshl_b32 s{t1}, s{sCh}, 8'); sacc(t0,t1); I(f's_lshl_b32 s{t1}, s{sWr}, 2'); sacc(t0,t1)
    I(f'v_mul_u32_u24 v4, 20480, v{vG}'); I(f'v_lshl_add_u32 v4, v{vN}, 3, v4'); I(f'v_add_u32 v{vY}, s{t0}, v4')
    smul(t0,sWc,8704); sadd(t0,t0,L_XCH[0])
    I(f's_lshl_b32 s{t1}, s{sWr}, 5'); sacc(t1,t0)
    I(f'v_mul_u32_u24 v{vXW}, 272, v{vN}'); I(f'v_lshl_add_u32 v{vXW}, v{vG}, 6, v{vXW}'); I(f'v_add_u32 v{vXW}, s{t1}, v{vXW}')
    smul(t1,sWr,16*272); sacc(t1,t0)
    I(f'v_mul_u32_u24 v{vXR}, 272, v{vG}'); I(f'v_lshl_add_u32 v{vXR}, v{vN}, 4, v{vXR}'); I(f'v_add_u32 v{vXR}, s{t1}, v{vXR}')
    smul(t0,sWr,16*81920); I(f's_lshl_b32 s{t1}, s{sCh}, 12'); sacc(t0,t1)
    I(f's_lshr_b32 s{t1}, s{sT}, 1'); I(f's_lshl_b32 s{t1}, s{t1}, 8'); sacc(t0,t1); sadd(t0,t0,WS_R)
    I(f's_mov_b32 s{t1}, 81920'); I(f'v_lshlrev_b32 v{vRS}, 4, v{vN}'); I(f'v_mad_u32_u24 v{vRS}, v{vG}, s{t1}, v{vRS}'); I(f'v_add_u32 v{vRS}, s{t0}, v{vRS}')
    I(f's_lshl_b32 s{t0}, s{sWc}, 2'); sadd(t0,t0,L_FLG); I(f'v_mov_b32 v{vLF}, s{t0}')
    I([f's_cmp_ge_u32 s{sCh}, 10', f's_cselect_b32 s{t3}, 10, 0', f's_cselect_b32 s{t4}, 96, 0']); I(f's_sub_u32 s{t3}, s{sCh}, s{t3}')
    I(f's_lshl_b32 s{t0}, s{t3}, 3'); sacc(t0,sGrp); sacc(t0,t4)
    I(f's_lshl_b32 s{t1}, s{t3}, 4'); I(f's_lshr_b32 s{t2}, s{sT}, 1'); sacc(t1,t2); I(f's_sub_u32 s{t1}, s{t1}, 64'); sacc(t1,t4)
    I([f's_cmp_eq_u32 s{sTyp}, 0', f's_cselect_b32 s{t0}, s{t0}, s{t1}', f's_cselect_b32 s{sAct}, 3, 1'])
    I(f's_and_b32 s{t1}, s{t0}, 1'); I(f's_lshl_b32 s{t1}, s{t1}, 2'); I(f's_lshr_b32 s{t0}, s{t0}, 1'); I(f's_lshl_b32 s{t0}, s{t0}, 7'); sacc(t0,t1); sadd(t0,t0,WS_FL+FL_R*128); I(f'v_mov_b32 v15, s{t0}')
lab('Lp2a')
if TGF!=1:
    if TGF==2: I(f's_cmp_eq_u32 s{sTyp}, 1'); I('s_cbranch_scc1 Lskiptg')
    I(f's_cmp_eq_u32 s{sT}, 0'); I('s_cbranch_scc1 Lskiptg'); emit(TGL); lab('Lskiptg')
p2addr()
I(f's_cmp_eq_u32 s{sTyp}, 0'); I('s_cbranch_scc0 Lp2b')
I('s_waitcnt vmcnt(0)')
setflag(vE0+3,4)
stamp(16)
lab('Lp2b')
I(f's_cmp_eq_u32 s{sCh}, 0'); I('s_cbranch_scc0 Lnosp1')
I(f's_lshl_b32 s{t0}, s{sW}, 9'); sadd(t0,t0,L_PP)
I(f'v_lshlrev_b32 v4, 2, v{vL}'); I(f'v_add_u32 v4, s{t0}, v4'); I(f'v_lshlrev_b32 v5, 4, v{vG}'); I(f'v_add_u32 v5, s{t0}, v5')
I(f'ds_write_b32 v4, v252'); I(f'ds_write_b32 v4, v253 offset:256')
for arr,off in ((0,0),(8,256),(16,128),(24,384)):
    for mh in range(2): I(f'ds_read_b128 {v(W3+arr+4*mh,4)}, v5 offset:{off+64*mh}')
lab('Lnosp1')
I('s_waitcnt lgkmcnt(0)')
stamp(17)
poll([vF],14)
stamp(18)
for ks in range(2):
    for i in range(4):
        I(f's_mov_b32 s{t0}, {(16*ks+i)*5120}')
        for ri in range(2): I(f'buffer_load_dword v{YF+(ri*2+ks)*4+i}, v{vY}, {srd(sWS)}, s{t0} offen offset:{128*ri} {HS}')
for ks in range(2):
    I(f's_waitcnt vmcnt({8-8*ks})')
    for mt in (0,2,1,3):
        for ri in range(2):
            d=v(EF+(mt*2+ri)*4,4)
            I(f'{MF} {d}, {a_(AT1+(mt*2+ks)*4,4)}, {v(YF+(ri*2+ks)*4,4)}, {"0" if ks==0 else d}')
stamp(19)
EF2=EF
def pk(op,d,*s,neg=None):
    t=f'v_pk_{op}_f32 {v(d,2)}, '+', '.join(v(x,2) for x in s)
    if neg: t+=f' neg_lo:{neg} neg_hi:{neg}'
    I(t)
PQ=16
Pre,Pim,Qre,Qim=PQ,PQ+8,PQ+16,PQ+24
def EFr(typ,mh,ri,p): return EF+((typ*2+mh)*2+ri)*4+2*p
for mh in range(2):
    for p in range(2):
        o=mh*4+2*p; Er,Ei,Fr,Fi=EFr(0,mh,0,p),EFr(0,mh,1,p),EFr(1,mh,0,p),EFr(1,mh,1,p)
        wpr,wpi,wmr,wmi=WP+o,WP+8+o,WP+16+o,WP+24+o
        T=TM+(p*16)
        pk('add',T,Er,Fi); pk('add',T+2,Ei,Fr,neg='[0,1]'); pk('add',T+4,Er,Fi,neg='[0,1]'); pk('add',T+6,Ei,Fr)
        pk('mul',T+8,T,wpr); pk('mul',T+10,T,wpi); pk('mul',T+12,T+4,wmr); pk('mul',T+14,T+4,wmi)
        pk('fma',T+8,T+2,wpi,T+8,neg='[1,0,0]'); pk('fma',T+10,T+2,wpr,T+10); pk('fma',T+12,T+6,wmi,T+12,neg='[1,0,0]'); pk('fma',T+14,T+6,wmr,T+14)
        pk('add',Pre+o,T+8,T+12); pk('add',Pim+o,T+10,T+14); pk('add',Qre+o,T+14,T+10,neg='[0,1]'); pk('add',Qim+o,T+8,T+12,neg='[0,1]')
I(f's_cmp_eq_u32 s{sT}, 0'); I('s_cbranch_scc0 Lnot0')
I('s_mov_b64 exec, 0xffff')
Er,Ei,Fr,Fi=EFr(0,0,0,0),EFr(0,0,1,0),EFr(1,0,0,0),EFr(1,0,1,0)
I(f'v_mul_f32 v{Pre}, v{Er}, v{WP}'); I(f'v_fma_f32 v{Pre}, -v{Ei}, v{WP+8}, v{Pre}')
I(f'v_mul_f32 v{Pim}, v{Er}, v{WP+8}'); I(f'v_fma_f32 v{Pim}, v{Ei}, v{WP}, v{Pim}')
I(f'v_mul_f32 v{Qre}, v{Fr}, v{WP+16}'); I(f'v_fma_f32 v{Qre}, -v{Fi}, v{WP+24}, v{Qre}')
I(f'v_mul_f32 v{Qim}, v{Fr}, v{WP+24}'); I(f'v_fma_f32 v{Qim}, v{Fi}, v{WP+16}, v{Qim}')
I('s_mov_b64 exec, -1')
lab('Lnot0')
I(f's_cmp_eq_u32 s{sCh}, 0'); I('s_cbranch_scc0 Lnosp2')
I(f's_mov_b32 exec_lo, 0x10001'); I(f's_mov_b32 exec_hi, 0x10001')
for mh in range(2):
    for p in range(2):
        o=mh*4+2*p; Er,Ei,Fr,Fi=EFr(0,mh,0,p),EFr(0,mh,1,p),EFr(1,mh,0,p),EFr(1,mh,1,p)
        T=TM
        pk('add',T,WP+o,WP+16+o); pk('add',T+2,WP+8+o,WP+24+o,neg='[0,1]'); pk('add',T+4,W3+o,W3+16+o); pk('add',T+6,W3+8+o,W3+24+o,neg='[0,1]')
        for q in range(4): I(f'v_pk_mul_f32 {v(T+2*q,2)}, {v(T+2*q,2)}, 0.5')
        pk('mul',Pre+o,Er,T); pk('mul',Qre+o,Fr,T); pk('mul',Pim+o,Ei,T+4); pk('mul',Qim+o,Fi,T+4)
        pk('fma',Pre+o,Fr,T+2,Pre+o); pk('fma',Qre+o,Er,T+2,Qre+o,neg='[1,0,0]'); pk('fma',Pim+o,Fi,T+6,Pim+o); pk('fma',Qim+o,Ei,T+6,Qim+o,neg='[1,0,0]')
I(f's_cmp_eq_u32 s{sT}, 0'); I('s_cbranch_scc0 Lnocorner')
I('s_mov_b64 exec, 1')
Er,Ei,Fr,Fi=EFr(0,0,0,0),EFr(0,0,1,0),EFr(1,0,0,0),EFr(1,0,1,0)
for d,x,w in ((Pre,Er,WP),(Pim,Ei,W3),(Qre,Fr,WP+16),(Qim,Fi,W3+16)):
    I(f'v_mul_f32 v{d}, v{x}, v{w}'); I(f'v_mul_f32 v{d}, 0.5, v{d}')
lab('Lnocorner')
I('s_mov_b64 exec, -1')
lab('Lnosp2')
for mh in range(2):
    for ri in range(2):
        for q,src in enumerate(((Pre,Pim)[ri],(Qre,Qim)[ri])):
            for p in range(2): I(f'v_cvt_pk_bf16_f32 v{YF+(ri*2+mh)*4+2*q+p}, v{src+mh*4+2*p}, v{src+mh*4+2*p+1}')
for ks in range(2):
    for nt in range(4):
        for ri in range(2):
            d=v(EF+(nt*2+ri)*4,4)
            I(f'{MF} {d}, {v(YF+(ri*2+ks)*4,4)}, {a_(AT2+(nt*2+ks)*4,4)}, {"0" if ks==0 else d}')
for nt in range(4):
    for ri in range(2):
        for p in range(2): I(f'v_cvt_pk_bf16_f32 v{TM+nt*4+ri*2+p}, v{EF+(nt*2+ri)*4+2*p}, v{EF+(nt*2+ri)*4+2*p+1}')
    I(f'ds_write_b128 v{vXW}, {v(TM+nt*4,4)} offset:{(nt&1)*16*272+(nt>>1)*16}')
stamp(20)
ldssync(vLF,14)
for i in range(4): I(f'ds_read_b128 {v(TM+16+4*i,4)}, v{vXR} offset:{4*272*i}')
for i in range(4):
    I(f's_mov_b32 s{t0}, {4*81920*i}'); I(f's_waitcnt lgkmcnt({3-i})')
    I(f'buffer_store_dwordx4 {v(TM+16+4*i,4)}, v{vRS}, {srd(sWS)}, s{t0} offen sc1')
vconst(10,L_FLG+8); vconst(11,1)
stamp(21)
if not POI: I('s_waitcnt vmcnt(0)')
I('s_mov_b64 exec, 1'); I('ds_add_rtn_u32 v11, v10, v11'); I('s_mov_b64 exec, -1'); I('s_waitcnt lgkmcnt(0)')
I(f'v_readfirstlane_b32 s{t0}, v11'); I(f's_cmp_eq_u32 s{t0}, s{sAct}'); I('s_cbranch_scc0 Lnopub')
setflag(15,12)
lab('Lnopub')
stamp(22)
I(f's_cmp_eq_u32 s{sWc}, 0'); I('s_cbranch_scc1 Lp3')
if E('WGW',1):
    I(f's_mov_b32 s{sTo}, 0x400000'); lab('Lwgw')
    I(f'ds_read_b32 v11, v10'); I('s_waitcnt lgkmcnt(0)'); I(f'v_cmp_ge_u32 vcc, s{sAct}, v11')
    I(f's_cbranch_vccz Lwb'); I(f's_sub_u32 s{sTo}, s{sTo}, 1'); I(f's_cbranch_scc0 Lwgw')
lab('Lwb')
NBE=E('NBE',0)
if not E('NOWB',0): emit(bls(NBE,5*KB))
I('s_branch Lp3')
lab('LepiQ')
vPW,vPR,vKR,vOS,vO5,vKW,vKP=4,5,100,104,106,108,112
I(f's_lshl_b32 s{t1}, s{sRb}, 1'); sacc(t1,sWr); smul(t2,t1,1280); smul(t3,sGrp,8*40960); sacc(t2,t3)
I(f'v_and_b32 v8, 7, v{vL}'); I(f'v_lshlrev_b32 v8, 4, v8'); I(f'v_lshrrev_b32 v9, 3, v{vL}'); I(f'v_mul_u32_u24 v10, 40960, v9'); I(f'v_add_u32 v10, v10, v8')
GX=120; GW=160
I(f'v_mov_b32 v115, v10'); I(f'v_mov_b32 v116, v8'); I(f's_mov_b32 s{sCnt}, s{t2}')
GLD=[[f'buffer_load_dwordx4 {v(GX+4*j,4)}, v115, {srd(sX)}, s{sCnt} offen offset:{128*j}', f'buffer_load_dwordx4 {v(GW+4*j,4)}, v116, {srd(sGATE)}, 0 offen offset:{128*j}'] for j in range(10)]
I(f's_lshl_b32 s{t2}, s{t1}, 8'); I(f's_lshl_b32 s{t3}, s{sGrp}, 5'); sacc(t2,t3); sadd(t2,t2,WS_G)
I(f'v_lshlrev_b32 v9, 2, v9'); I(f'v_add_u32 v9, s{t2}, v9'); vconst(10,OOB); I(f'v_cmp_eq_u32 vcc, 0, v8'); I(f'v_cndmask_b32 v114, v10, v9, vcc')
smul(t0,sWr,L_PQ[1]-L_PQ[0]); sadd(t0,t0,L_PQ[0])
I(f'v_mul_u32_u24 v{vPW}, {PQS}, v{vN}'); I(f'v_lshl_add_u32 v{vPW}, v{vG}, 3, v{vPW}'); I(f'v_add_u32 v{vPW}, s{t0}, v{vPW}')
def qepi():
    for nt in range(5):
        for mt in range(4):
            b=ACC+(mt*5+nt)*4
            phi2(b,b,8); phi2(b+2,b+2,10)
            I(f'v_cvt_pk_bf16_f32 v{b}, v{b}, v{b+1}'); I(f'v_cvt_pk_bf16_f32 v{b+1}, v{b+2}, v{b+3}')
            I(f'ds_write_b64 v{vPW}, {v(b,2)} offset:{16*nt*PQS+32*mt}')
QW=E('QW',20)
P_=cap(qepi)
weave(P_,GLD+bls(0,QW),len(P_)*E('QS',30)//100,len(P_))
stamp(15)
I(f's_waitcnt vmcnt({QW})')
stamp(16)
vconst(8,0); vconst(9,0)
for i in range(40): I(f'v_dot2_f32_bf16 v{8+(i&1)}, v{GX+i}, v{GW+i}, v{8+(i&1)}')
I('s_nop 2'); I('v_add_f32 v8, v8, v9')
for ctl in ('quad_perm:[1,0,3,2]','quad_perm:[2,3,0,1]','row_half_mirror'):
    I('s_nop 1'); I(f'v_add_f32_dpp v8, v8, v8 {ctl} row_mask:0xf bank_mask:0xf')
I('v_cvt_pk_bf16_f32 v8, v8, v8'); I('v_and_b32 v8, 0xffff0000, v8'); I(f'v_mul_f32 v8, s{sAo}, v8'); I('v_exp_f32 v8, -v8'); I('v_add_f32 v8, 1.0, v8'); I('v_rcp_f32 v8, v8')
I('v_cvt_pk_bf16_f32 v8, v8, v8'); I('v_and_b32 v8, 0xffff0000, v8')
I(f'buffer_store_dword v8, v114, {srd(sWS)}, 0 offen sc1')
I(f'v_bfe_u32 v8, v{vL}, 2, 2'); I(f'v_lshl_add_u32 v8, v{vG}, 3, v8'); I(f'v_and_b32 v9, 3, v{vL}'); I(f'v_lshlrev_b32 v9, 3, v9'); I(f'v_add_u32 v9, s{t0}, v9')
for hh in range(2):
    I(f'v_add_u32 v10, {4*hh}, v8'); I(f'v_min_u32 v10, 19, v10'); I(f'v_mul_u32_u24 v10, {PQS}, v10'); I(f'v_add_u32 v{vPR+hh}, v10, v9')
smul(t1,sWr,5504); sadd(t1,t1,L_KVI)
for i in range(4): vconst(8+i,0)
I(f'v_add_u32 v12, s{t1}, v218')
for i in range(5): I(f'ds_write_b128 v12, v[8:11] offset:{1024*i}')
I(f's_mov_b64 exec, 0xffffff'); I(f'ds_write_b128 v12, v[8:11] offset:5120'); I('s_mov_b64 exec, -1')
for i in range(4):
    I(f'v_add_u32 v8, {64*i}, v{vL}'); I(f'v_mul_u32_u24 v9, 0xc31, v8'); I(f'v_lshrrev_b32 v9, 16, v9')
    I(f'v_mul_u32_u24 v10, 21, v9'); I(f'v_sub_u32 v10, v8, v10')
    I(f'v_cmp_lt_u32 vcc, 4, v9'); I(f'v_cndmask_b32 v11, 0, 1, vcc')
    I(f'v_mad_u32_u24 v10, v11, 21, v10'); I(f'v_mul_u32_u24 v11, 5, v11'); I(f'v_sub_u32 v9, v9, v11')
    I(f'v_lshlrev_b32 v10, 6, v10'); I(f'v_lshl_add_u32 v10, v9, 3, v10'); I(f'v_add_u32 v{vKW+i}, s{t1}, v10')
vconst(11,L_PP); I(f'v_cmp_gt_u32 vcc, 18, v{vL}'); I(f'v_cndmask_b32 v{vKW+3}, v11, v{vKW+3}, vcc')
I(f'v_lshlrev_b32 v8, 4, v{vG}'); I(f'v_add_u32 v8, s{t1}, v8')
I(f'v_lshl_add_u32 v{vKR}, v{vN}, 6, v8'); I(f'v_add_u32 v{vKR+1}, {21*64}, v{vKR}')
I(f'v_and_b32 v9, 3, v{vN}'); I(f'v_lshrrev_b32 v10, 2, v{vN}')
for hb in range(2):
    I(f'v_and_b32 v11, 1, v10'); I(f'v_lshl_add_u32 v11, v11, 1, v9'); I(f'v_add_u32 v11, {21*hb+16}, v11')
    I(f'v_lshrrev_b32 v12, 1, v10'); I(f'v_cmp_eq_u32 vcc, {hb}, v12'); I(f'v_cmp_gt_u32 s[{t4}:{t5}], 2, v9'); I(f's_and_b64 vcc, vcc, s[{t4}:{t5}]')
    I(f'v_cndmask_b32 v11, 42, v11, vcc'); I(f'v_cmp_eq_u32 vcc, {2+hb}, v9'); I(f'v_cndmask_b32 v11, v11, {21*hb+20}, vcc')
    I(f'v_lshl_add_u32 v{vKR+2+hb}, v11, 6, v8')
I(f's_lshl_b32 s{t1}, s{sRb}, 1'); sacc(t1,sWr); smul(t2,t1,81920); sadd(t2,t2,WS_O)
smul(t3,sGrp,10)
for hp in range(2):
    I(f'v_add_u32 v8, {5*hp}, v{vG}'); I(f'v_add_u32 v8, s{t3}, v8')
    I(f'v_lshrrev_b32 v9, 2, v8'); I(f'v_and_b32 v8, 3, v8'); I(f'v_lshlrev_b32 v9, 12, v9'); I(f'v_lshl_add_u32 v9, v8, 8, v9')
    I(f'v_lshl_add_u32 v9, v{vN}, 4, v9'); I(f'v_add_u32 v{vOS+hp}, s{t2}, v9')
    sadd(t4,t3,5*hp+4); I(f's_lshr_b32 s{t5}, s{t4}, 2'); I(f's_lshl_b32 s{t5}, s{t5}, 12'); I(f's_and_b32 s{t4}, s{t4}, 3'); I(f's_lshl_b32 s{t4}, s{t4}, 8')
    sacc(t4,t5); sacc(t4,t2)
    I(f'v_lshlrev_b32 v9, 10, v{vG}'); I(f'v_lshl_add_u32 v9, v{vN}, 4, v9'); I(f'v_add_u32 v{vO5+hp}, s{t4}, v9')
I(f's_lshl_b32 s{t1}, s{t1}, 3'); sacc(t1,sGrp); I(f's_lshl_b32 s{t1}, s{t1}, 7'); sadd(t1,t1,WS_FL+FL_O*128); I(f'v_mov_b32 v15, s{t1}')
I(f's_lshl_b32 s{t1}, s{sGrp}, 13'); sadd(t1,t1,WS_KVA)
I(f'v_add_u32 v{vKP}, s{t1}, v218'); vconst(9,OOB); I(f'v_cmp_gt_u32 vcc, 18, v{vL}'); I(f'v_cndmask_b32 v{vKP+1}, v9, v{vKP}, vcc')
I(f's_lshl_b32 s{t1}, s{sGrp}, 6')
I(f'v_add_u32 v8, s{t1}, v{vL}'); I(f'v_lshlrev_b32 v8, 7, v8'); I(f'v_add_u32 v13, {WS_FL+FL_KV*128}, v8')
KF=16; QF=120; OD=48; O5=184; PB=48
I('s_waitcnt lgkmcnt(0)')
for u in range(8):
    rt,hp=u>>1,u&1
    for hb in range(2):
        for hh in range(2): I(f'ds_read_b64_tr_b16 {v(QF+u*8+hb*4+2*hh,2)}, v{vPR+hh} offset:{(2*hp+hb)*20*PQS+32*rt}')
    if u%2==1: I('s_waitcnt lgkmcnt(4)')
I(f's_mov_b32 s{sEx}, -1'); I(f's_mov_b32 s{sEx+1}, 0'); I(f's_movk_i32 s{t0}, 0x1000')
stamp(20)
NQ=E('NQ',5*KB)
emit(bls(QW,NQ))
stamp(17)
poll([13],9)
stamp(18)
for hp in range(2):
    for i in range(4): I(f'buffer_load_dwordx4 {v(PB+hp*16+4*i,4)}, v{vKP+(i==3)}, {srd(sWS)}, {"0" if hp==0 else "s%d"%t0} offen offset:{1024*i} sc1')
for hp in range(2):
    for i in range(4):
        b=PB+hp*16+4*i
        I(f's_waitcnt vmcnt({7-hp*4-i})')
        I(f'v_cvt_pk_bf16_f32 v{b}, v{b}, v{b+1}'); I(f'v_cvt_pk_bf16_f32 v{b+1}, v{b+2}, v{b+3}')
        I(f'ds_write_b64 v{vKW+i}, {v(b,2)} offset:{2752*hp}')
for hp in range(2):
    for j in (2,0,3,1): I(f'ds_read_b128 {v(KF+(hp*4+j)*4,4)}, v{vKR+j} offset:{2752*hp}')
stamp(19)
def omf(u):
    hp=u&1; q=QF+u*8; d=OD+(u%4)*12
    I(f'{MF} {v(d+8,4)}, {v(KF+(hp*4+2)*4,4)}, {v(q,4)}, 0')
    I(f'{MF} {v(d,4)}, {v(KF+(hp*4+0)*4,4)}, {v(q,4)}, 0')
    I(f'{MF} {v(d+8,4)}, {v(KF+(hp*4+3)*4,4)}, {v(q+4,4)}, {v(d+8,4)}')
    I(f'{MF} {v(d+4,4)}, {v(KF+(hp*4+1)*4,4)}, {v(q+4,4)}, 0')
def ofin(u):
    rt,hp=u>>1,u&1; d=OD+(u%4)*12; o=192+(u&1)*4
    I(f'v_pk_add_f32 {v(d+10,2)}, {v(d+10,2)}, s[{sAo}:{sAo+1}] op_sel:[0,1]')
    I(f'v_rcp_f32 v{d+10}, v{d+10}'); I(f'v_rcp_f32 v{d+11}, v{d+11}')
    I('s_nop 0')
    for p in range(2): I(f'v_pk_mul_f32 {v(d+2*p,2)}, {v(d+2*p,2)}, {v(d+10,2)} op_sel_hi:[1,0]')
    for p in range(2): I(f'v_pk_mul_f32 {v(d+4+2*p,2)}, {v(d+4+2*p,2)}, {v(d+10,2)} op_sel:[0,1]')
    I(f'v_cndmask_b32 v{d+10}, v{d+11}, v{d+10}, s[{sEx}:{sEx+1}]')
    for p in range(4): I(f'v_cvt_pk_bf16_f32 v{o+p}, v{d+2*p}, v{d+2*p+1}')
    I(f'buffer_store_dwordx4 {v(o,4)}, v{vOS+hp}, {srd(sWS)}, 0 offen offset:{1024*rt} sc1')
    I(f'v_pk_mul_f32 {v(d+8,2)}, {v(d+8,2)}, {v(d+10,2)} op_sel_hi:[1,0]')
    I(f'v_cvt_pk_bf16_f32 v{O5+hp*4+rt}, v{d+8}, v{d+9}')
I('s_waitcnt lgkmcnt(4)'); omf(0); I('s_waitcnt lgkmcnt(0)'); omf(1)
for u in range(8):
    if u+2<8: weave(cap(ofin,u),cap(omf,u+2))
    else: ofin(u)
for hp in range(2):
    b=O5+hp*4
    I(f'v_permlane32_swap_b32 v{b}, v{b+2}'); I(f'v_permlane32_swap_b32 v{b+1}, v{b+3}')
    I(f'v_permlane16_swap_b32 v{b}, v{b+1}'); I(f'v_permlane16_swap_b32 v{b+2}, v{b+3}')
    I(f'buffer_store_dwordx4 {v(b,4)}, v{vO5+hp}, {srd(sWS)}, 0 offen sc1')
stamp(21)
I(f'v_mov_b32 v10, s{sTag}'); I(f'v_mov_b32 v11, s{sTag}'); I('s_nop 0' if POI else 's_waitcnt vmcnt(0)'); I('s_mov_b64 exec, 1'); I(f'buffer_store_dwordx2 v[10:11], v15, {srd(sWS)}, 0 offen sc1'); I('s_mov_b64 exec, -1')
stamp(22)
emit(bls(NQ,5*KB))
lab('Lp3')
vA,vGg,vFa,vFo,vL16=4,5,8,9,6
vOA,vTW,vTR,vAR,vAW,vOW,vOW4,vOR,vOut,vSg=240,244,247,248,249,250,251,252,253,14
AD2=160
I(f'v_lshlrev_b32 v{vL16}, 4, v{vL}')
for r in range(4):
    sadd(t0,sW,r); I(f's_and_b32 s{t0}, s{t0}, 3'); I(f's_lshl_b32 s{t1}, s{t0}, 10'); I(f'v_add_u32 v{vOA+r}, s{t1}, v{vL16}')
    if r: smul(t0,t0,15360); sadd(t0,t0,L_TB+(r-1)*5120); I(f'v_add_u32 v{vTW+r-1}, s{t0}, v{vL16}')
smul(t0,sW,15360); sadd(t0,t0,L_TB); I(f'v_add_u32 v{vTR}, s{t0}, v{vL16}')
smul(t0,sW,3072); sadd(t0,t0,L_TA); I(f'v_add_u32 v{vAR}, s{t0}, v{vL16}')
smul(t0,sWr,12288); sadd(t0,t0,L_TA); I(f'v_add_u32 v{vAW}, s{t0}, v{vL16}')
I(f's_lshl_b32 s{t0}, s{sN2}, 3')
smul(t1,sRot,4*0x199a); I(f's_lshr_b32 s{t1}, s{t1}, 16'); I(f'v_add_u32 v7, s{t1}, v{vL}'); I(f'v_and_b32 v7, 7, v7'); I(f'v_add_u32 v7, s{t0}, v7'); I(f's_mov_b32 s{sT}, s{t1}'); I(f'v_lshlrev_b32 v7, 7, v7'); I(f'v_add_u32 v{vFo}, {WS_FL+FL_O*128}, v7')
vconst(15,560)
for i in range(3):
    I(f'v_add_u32 v12, {64*i}, v{vL}'); div10(13,12); I(f'v_mul_u32_u24 v14, 10, v13'); I(f'v_sub_u32 v14, v12, v14')
    I(f'v_mul_u32_u24 v13, 40960, v13'); I(f'v_lshl_add_u32 v13, v14, 4, v13'); I(f'v_cmp_lt_u32 vcc, 4, v14'); I(f'v_cndmask_b32 v14, 0, v15, vcc'); I(f'v_add_u32 v{vOut+i}, v13, v14')
vconst(12,OOB); I(f'v_cmp_gt_u32 vcc, 32, v{vL}'); I(f'v_cndmask_b32 v{vOut+2}, v12, v{vOut+2}, vcc')
smul(sB0,sW,16*40960); smul(t1,sN2,1280); sacc(sB0,t1); smul(t1,sCt,80); sacc(sB0,t1)
smul(t2,sW,2560); sadd(t2,t2,L_OUT)
I(f'v_mul_u32_u24 v12, 160, v{vN}'); I(f'v_lshl_add_u32 v12, v{vG}, 3, v12'); I(f'v_add_u32 v{vOW}, s{t2}, v12'); I(f'v_add_u32 v{vOR}, s{t2}, v{vL16}')
I(f'v_lshrrev_b32 v12, 5, v{vL}'); I(f'v_lshl_add_u32 v{vOW4}, v12, 6, v{vOW}'); I(f'v_lshlrev_b32 v12, 31, v12'); I(f'v_or_b32 v{vSg}, 0x3f800000, v12')
I(f's_lshl_b32 s{sB1}, s{sN2}, 8'); I(f's_lshl_b32 s{t1}, s{sW}, 6'); sacc(sB1,t1); sadd(sB1,sB1,WS_G)
I(f'v_lshlrev_b32 v7, 2, v{vN}')
smul(sDl,sN2,81920); I(f's_lshl_b32 s{t1}, s{sRot}, 12'); I(f's_add_u32 s{sMA}, s{sDl}, s{t1}'); sadd(sMA,sMA,WS_O); sadd(sMB,sMA,KB*4096); I(f's_lshl_b32 s{t1}, s84, 12'); I(f's_add_u32 s{sA2}, s{sMA}, s{t1}')
C3=16; PA=E('PA',3)
I(f's_cmp_eq_u32 s{sWc}, 0'); I('s_cbranch_scc0 Lp3b')
emit(bls(0,5*KA,120))
I(f'v_lshrrev_b32 v{vA}, 2, v{vN}'); I(f'v_lshlrev_b32 v{vA}, 8, v{vA}'); I(f'v_lshl_add_u32 v{vA}, v{vG}, 6, v{vA}'); I(f'v_and_b32 v12, 3, v{vN}'); I(f'v_lshl_add_u32 v{vA}, v12, 4, v{vA}')
smul(t1,sWr,40960); I(f's_add_u32 s{sIs}, s{sDl}, s{t1}'); sadd(sIs,sIs,WS_R); sadd(sDm,sIs,40960); I(f's_lshl_b32 s{t1}, s85, 12'); I(f's_add_u32 s{sBstep}, s{sIs}, s{t1}')
smul(t0,sWr,48); sadd(t1,t0,47)
I(f'v_add_u32 v12, s{t0}, v{vL}'); I(f'v_min_u32 v12, s{t1}, v12'); I(f'v_lshlrev_b32 v12, 7, v12'); I(f'v_add_u32 v{vFa}, {WS_FL+FL_R*128}, v12')
stamp(24)
if E('PDELAY',0): I(f's_sleep {E("PDELAY",0)}')
if not PROG: poll2(vFa,10)
stamp(25)
sFst=sBo
def ppoll(vo,x2,need):
    uid[0]+=1; L=f'Lpp{uid[0]}'
    I(f's_cmp_ge_u32 s{sFst}, {need}'); I(f's_cbranch_scc0 {L}r'); lab(L+'c')
    ld=f'buffer_load_dwordx2 v[10:11], v{vo}, {srd(sWS)}, 0 offen sc1' if x2 else f'buffer_load_dword v10, v{vo}, {srd(sWS)}, 0 offen sc1'
    R=[L+'r:', ld, 's_waitcnt vmcnt(0)', f'v_cmp_ne_u32 vcc, s{sTag}, v10']
    if x2: R+=[f'v_cmp_ne_u32 s[{t4}:{t5}], s{sTag}, v11', 's_nop 0', f's_or_b64 vcc, vcc, s[{t4}:{t5}]']
    else: R+=['s_nop 0']
    R+=[f's_ff1_i32_b64 s{sFst}, vcc', f's_cmp_ge_u32 s{sFst}, {need}', f's_cbranch_scc1 {L}c', f's_sub_u32 s{sTo}, s{sTo}, 1', f's_cbranch_scc1 {L}c', f's_sleep {SLP}', f's_branch {L}r']
    RETRY.append(R)
RING=9; PAA=E('PAA',4)
RETRY=[]
def check(base,loads):
    if not POI: return
    uid[0]+=1; L=f'Lck{uid[0]}'
    lab(L)
    I(f'v_max3_u32 v12, v{base}, v{base+1}, v{base+2}')
    I(f'v_max3_u32 v13, v{base+3}, v{base+4}, v{base+5}')
    for i in range(5): I(f'v_max3_u32 v{12+(i&1)}, v{12+(i&1)}, v{base+6+2*i}, v{base+7+2*i}')
    I('v_max_u32 v12, v12, v13'); I('v_cmp_eq_u32 vcc, -1, v12'); I(f's_cbranch_vccnz {L}r')
    lab(L+'c')
    RETRY.append([L+'r:', f's_sub_u32 s{sTo}, s{sTo}, 1', f's_cbranch_scc1 {L}c', 's_sleep 2']+loads+['s_waitcnt vmcnt(0)', f's_branch {L}'])
def arf(i): return v(64+4*(i%(4*RING)),4)
def aload(ks): return [[f'buffer_load_dwordx4 {arf(ks*4+mt)}, v{vA}, {srd(sWS)}, s{sBstep} offen offset:{1024*mt} {HS}']+([f's_add_u32 s{sBstep}, s{sBstep}, 4096', f's_cmp_eq_u32 s{sBstep}, s{sDm}', f's_cselect_b32 s{sBstep}, s{sIs}, s{sBstep}'] if mt==3 else []) for mt in range(4)]
def aneed(ks):
    if not PROG: return
    if ks<6: ppoll(vFa,True,4*(ks+1))
    else:
        I(f's_mul_i32 s{t1}, s{sWr}, {4*(ks-5)}'); sadd(t1,t1,4*(ks+1)); ppoll(vFa,True,f's{t1}')
I(f's_mov_b32 s{sFst}, 0'); I(f's_mov_b32 s{sTo}, 0x40000')
for ks in range(PAA): aneed(ks); emit(aload(ks))
OF=144
def oload(ks): return [[f'buffer_load_dwordx4 {v(OF+((ks%5)*4+r)*4,4)}, v{vOA+r}, {srd(sWS)}, s{sA2} offen {HS}']+([f's_add_u32 s{sA2}, s{sA2}, 4096', f's_cmp_eq_u32 s{sA2}, s{sMB}', f's_cselect_b32 s{sA2}, s{sMA}, s{sA2}'] if r==3 else []) for r in range(4)]
def oneed(ks):
    if not PROG: return
    smul(t1,sRot,4*0x199a); sadd(t1,t1,(4*ks+3)*0x199a); I(f's_lshr_b32 s{t1}, s{t1}, 16'); I(f's_sub_u32 s{t1}, s{t1}, s{sT}'); sadd(t1,t1,1)
    ppoll(vFo,False,f's{t1}')
def bhead(NK):
    stamp(23)
    if not PROG: poll([vFo],10)
    I(f's_mov_b32 s{sFst}, 0'); I(f's_mov_b32 s{sTo}, 0x40000')
    pa=min(PA,NK)
    for ks in range(pa):
        oneed(ks)
        if ks==0: stamp(12)
        emit(oload(ks))
    if pa==NK:
        if PROG: ppoll(vFo,False,8)
        I(f'buffer_load_dword v{vGg}, v7, {srd(sWS)}, s{sB1} offen sc1')
EC=E('EC',1)
ext=0
for ks in range(10):
    I(f's_waitcnt vmcnt({4*(min(10,ks+PAA)-ks-1)+ext})')
    M=[f'{MF} {v(C3+(mt*3+nt)*4,4)}, {arf(ks*4+mt)}, {a_((ks*3+nt)*4,4)}, {"0" if ks==0 else v(C3+(mt*3+nt)*4,4)}' for nt in range(3) for mt in range(4)]
    X=aload(ks+PAA) if ks+PAA<10 else []
    if EC and ks==10-PAA: X=[[f'buffer_load_dword v10, v{vFo}, {srd(sWS)}, 0 offen sc1']]; ext=1
    weave(M,X,0,len(M)-2)
if EC:
    stamp(23)
    I('s_waitcnt vmcnt(0)'); I(f'v_cmp_ne_u32 vcc, s{sTag}, v10'); I('s_cbranch_vccz LoOK')
    poll([vFo],10)
    lab('LoOK')
    stamp(12)
    for ks in range(KA): emit(oload(ks))
    I(f'buffer_load_dword v{vGg}, v7, {srd(sWS)}, s{sB1} offen sc1')
EO=E('EO',1)
if EO and not EC: bhead(KA)
TF_=208; AO=96
for nt in range(3):
    for kb in range(2):
        o=TF_+(nt*2+kb)*4
        for q in range(2):
            for p in range(2):
                b=C3+((2*kb+q)*3+nt)*4+2*p; I(f'v_cvt_pk_bf16_f32 v{o+2*q+p}, v{b}, v{b+1}')
for nt in range(3):
    for kb in range(2):
        for w_ in range(4):
            c=v(AO+(w_*3+nt)*4,4); I(f'{MF} {c}, {v(TF_+(nt*2+kb)*4,4)}, {a_(AD2+(w_*2+kb)*4,4)}, {"0" if kb==0 else c}')
TAW=[f'ds_write_b128 v{vAW}, {v(AO+(w_*3+nt)*4,4)} offset:{(w_*3+nt)*1024}' for nt in range(3) for w_ in range(4)]
WV=E('WV',1)
if not WV: emit(TAW)
def bmain(NK,AB,head=True,extra=[]):
    extra=list(extra)
    pa=min(PA,NK)
    gl=[f'buffer_load_dword v{vGg}, v7, {srd(sWS)}, s{sB1} offen sc1']
    if head: bhead(NK)
    g=1 if pa==NK else 0
    for ks in range(NK):
        I(f's_waitcnt vmcnt({4*(min(NK,ks+pa)-ks-1)+g})')
        check(OF+(ks%5)*16,[f's_add_u32 s{t0}, s{sMA}, {4096*ks}']+[f'buffer_load_dwordx4 {v(OF+((ks%5)*4+r)*4,4)}, v{vOA+r}, {srd(sWS)}, s{t0} offen sc1' for r in range(4)])
        last=ks==NK-1
        order=[(nt,r) for nt in range(5) for r in range(4)] if not last else [(nt,r) for r in (1,2,3,0) for nt in range(5)]
        M=[f'{MF} {v(C3+(r*5+nt)*4,4)}, {a_(AB+(ks*5+nt)*4,4)}, {v(OF+((ks%5)*4+r)*4,4)}, {"0" if ks==0 else v(C3+(r*5+nt)*4,4)}' for nt,r in order]
        X=[]
        if ks+pa<NK: oneed(ks+pa); X=oload(ks+pa)
        elif not g:
            if PROG: ppoll(vFo,False,8)
            X=[gl]; g=1
        if not last: weave(M,X,0,len(M)-2)
        else:
            emit(X)
            for i,m in enumerate(M):
                I(m)
                if i<8: emit(extra[len(extra)*i//8:len(extra)*(i+1)//8])
                if i>=8: r,nt=divmod(i-8,5); I(f'ds_write_b128 v{vTW+r}, {v(C3+((r+1)*5+nt)*4,4)} offset:{1024*nt}')
bmain(KA,120,not EO,TAW if WV else [])
I('s_branch Lp3t')
lab('Lp3b')
bmain(KB,0)
lab('Lp3t')
I('s_nop 7')
stamp(26)
for i in range(12,15):
    r,nt=divmod(i,5); I(f'ds_write_b128 v{vTW+r}, {v(C3+((r+1)*5+nt)*4,4)} offset:{1024*nt}')
scale=struct.unpack('<I',struct.pack('<f',2.0/(2048*640)))[0]
I('s_waitcnt vmcnt(0)')
I(f'v_sub_f32 v11, 1.0, v{vGg}'); I(f'v_cvt_pk_bf16_f32 v11, v11, v11'); I(f'v_and_b32 v11, 0xffff0000, v11'); I(f'v_mul_f32 v10, 0x{scale:x}, v{vGg}')
I('s_waitcnt lgkmcnt(0)'); I('s_barrier')
stamp(27)
AE=160; TBF=96; OA=40
for t_ in range(3):
    for p_ in range(2): I(f'ds_read_b128 {v(AE+(t_*2+p_)*4,4)}, v{vAR} offset:{p_*12288+t_*1024}')
rb_=[f'ds_read_b128 {v(TBF+(nt*3+r)*4,4)}, v{vTR} offset:{r*5120+nt*1024}' for nt in range(5) for r in range(3)]
emit(rb_[:9])
I('s_waitcnt lgkmcnt(9)')
emit(rb_[9:])
for u in range(5):
    t_=(0,1,0,1,2)[u]; e_,o_2=AE+t_*8,AE+t_*8+4; c=OA+4*u
    for p in range(2):
        if u<4: I(f'v_pk_add_f32 {v(c+2*p,2)}, {v(e_+2*p,2)}, {v(o_2+2*p,2)}'+(' neg_lo:[0,1] neg_hi:[0,1]' if u>=2 else ''))
        else: I(f'v_pk_fma_f32 {v(c+2*p,2)}, {v(o_2+2*p,2)}, v[{vSg}:{vSg+1}], {v(e_+2*p,2)} op_sel_hi:[1,0,1]')
        I(f'v_pk_mul_f32 {v(c+2*p,2)}, {v(c+2*p,2)}, v[10:11] op_sel_hi:[1,0]')
for u in range(5):
    I(f's_waitcnt lgkmcnt({12-2*u})')
    b0=TBF+u*12; c=OA+4*u; own=C3+u*4
    for p in range(2):
        I(f'v_pk_add_f32 {v(b0+2*p,2)}, {v(b0+2*p,2)}, {v(b0+4+2*p,2)}')
        I(f'v_pk_add_f32 {v(own+2*p,2)}, {v(own+2*p,2)}, {v(b0+8+2*p,2)}')
        I(f'v_pk_add_f32 {v(b0+2*p,2)}, {v(b0+2*p,2)}, {v(own+2*p,2)}')
        I(f'v_pk_fma_f32 {v(c+2*p,2)}, {v(b0+2*p,2)}, v[10:11], {v(c+2*p,2)} op_sel:[0,1,0]')
    I(f'v_cvt_pk_bf16_f32 v{c}, v{c}, v{c+1}'); I(f'v_cvt_pk_bf16_f32 v{c+1}, v{c+2}, v{c+3}')
    I(f'ds_write_b64 v{vOW if u<4 else vOW4}, {v(c,2)} offset:{(0,32,80,112,64)[u]}')
I('s_waitcnt lgkmcnt(0)')
for i in range(3): I(f'ds_read_b128 {v(64+4*i,4)}, v{vOR} offset:{1024*i}')
for i in range(3):
    I(f's_waitcnt lgkmcnt({2-i})'); I(f'buffer_store_dwordx4 {v(64+4*i,4)}, v{vOut+i}, {srd(sOUT)}, s{sB0} offen {OUTPOL}')
I(f's_or_b32 s{t0}, s2, s{sW}'); I(f's_cmp_eq_u32 s{t0}, 0'); I('s_cbranch_scc0 Lnoe')
vconst(15,WS_E); setflag(15,14)
lab('Lnoe')
if PADT:
    lab('Lpad'); I(f's_memrealtime s[{sTS}:{sTS+1}]'); I('s_waitcnt lgkmcnt(0)'); I(f's_sub_u32 s{t0}, s{sTS}, s{sTS+2}'); I(f's_cmp_lt_u32 s{t0}, {PADT}'); I('s_cbranch_scc1 Lpad')
if TS:
    stamp(28)
    I(f's_lshl_b32 s{t0}, s2, 2'); sacc(t0,sW); I(f's_lshl_b32 s{t0}, s{t0}, 8'); sadd(t0,t0,WS_TS)
    I(f'v_lshlrev_b32 v4, 2, v{vL}')
    I(f'buffer_store_dword v0, v4, {srd(sWS)}, s{t0} offen')
lab('Lend')
I('s_endpgm')
emit(RETRY)
lab('Lfin')
body_txt=A.finish()
hdr=open(os.path.join(os.path.dirname(os.path.abspath(__file__)),'..','cdna_kernels',NAME+'.s.ref')).read().split('; Override launch')[0]
o_=hdr+f'; @launch grid=(256,1,1) block=(256,1,1) lds={LDS_SZ}\n'
o_+=f'.amdgcn_target "amdgcn-amd-amdhsa--gfx950"\n.text\n.globl {K}\n.p2align 8\n.type {K},@function\n{K}:\n'+body_txt
o_+=f'''.section .rodata,"a"
.p2align 6
.amdhsa_kernel {K}
  .amdhsa_next_free_vgpr 512
  .amdhsa_next_free_sgpr 102
  .amdhsa_accum_offset 256
  .amdhsa_group_segment_fixed_size 0
  .amdhsa_kernarg_size 80
  .amdhsa_user_sgpr_count 2
  .amdhsa_user_sgpr_kernarg_segment_ptr 1
  .amdhsa_system_sgpr_workgroup_id_x 1
.end_amdhsa_kernel
'''
if DEV: o_+='.p2align 8\n.type tab_base,@object\ntab_base:\n@@INCBIN@@\n'
else: o_+=TB.emit()
o=[a for a in sys.argv[1:] if not a.startswith('--')]
open(o[0] if o else 'out.s','w').write(o_)
print('instructions:',sum(1 for l in body_txt.split('\n') if l.startswith('    ')),'nops inserted:',A.nnops,file=sys.stderr)
```

```python
import sys, os, struct
from asm import Asm
import tables as TB

NAME='gated_mix__spectral_gfnet__linear_attn_block__prompt'
DEV = '--dev' in sys.argv
TS  = '--ts' in sys.argv
E=lambda k,d: int(os.environ.get(k,str(d)))
PFX=E('PFX',0); PW=E('PW',0); POLW=os.environ.get('POLW',''); LEAD=E('LEAD',5); ROT=E('ROT',0 if PFX else 8); POLA=os.environ.get('POLA',''); POLB=os.environ.get('POLB',''); LDPOL=os.environ.get('LDPOL',''); HS=os.environ.get('HS','sc1')
CPF=E('CPF',1); KA=E('KA',1); KB=10-KA; R3=0; POI=0; PROG=E('PROG',0); TGF=E('TGF',0); PF=E('PF',0); PFW=E('PFW',3); PFPOL=os.environ.get('PFPOL',''); PFE=E('PFE',0); HALF=1; PEEL=E('PEEL',1); WS1=E('WS1',16)
WS_Y=0; WS_R=2621440; WS_O=2*2621440; WS_KVA=3*2621440; WS_WOF=WS_KVA+65536; WS_G=WS_KVA+1048576
WS_FL=WS_G+8192
FL_Y=0; FL_KV=256; FL_R=768; FL_O=960; FL_E=1216; NFL=2240
WS_E=WS_FL+NFL*128; WS_TS=WS_E+128; WS_SZ=WS_TS+256*4*256
OOB=0x7ff00000
SLOT=36880; SEG0=16384; SEG1=16384+10240+16
L_G=2*SLOT+16384; L_FLG=155648; L_PP=L_FLG+64; LDS_SZ=L_PP+4096
L_PQ=[0,10880]; PQS=136; L_RED=0; L_XCH=[24576,24576+8704]; L_KVI=43008
L_TA=57344; L_TB=81920; L_OUT=143360
sX,sSEG,sWS,sWR,sWI,sTAB,sWO,sOUT,sGATE=4,8,12,16,20,24,28,32,36
sW,sWr,sWc,sTyp,sRb,sGrp,sTag,sCnt=40,41,42,43,44,45,46,47
sAo,sBo,sBstep,sMA,sMB,sDl,sIs,sDm=48,49,50,51,52,53,54,55
sT,sCh,sN2,sCt,sAct,sTo=56,57,58,59,60,61
t0,t1,t2,t3,t4,t5=62,63,64,65,66,67
sK=68; sEx=88; sTS=90; sB0,sB1,sGo,sA2=94,95,96,98; sBS=84; sGb,sGe,sRot=99,100,101
OUTPOL=os.environ.get('OUTPOL','')
ATP=os.environ.get('ATP','')
def srd(n): return f's[{n}:{n+3}]'
def v(a,n=1): return f'v{a}' if n==1 else f'v[{a}:{a+n-1}]'
def a_(a,n=1): return f'a{a}' if n==1 else f'a[{a}:{a+n-1}]'
vL,vN,vG=1,2,3
A=Asm(); out=[A]
class Buf(list):
    def __call__(s,t): s.append(t)
def I(t): out[-1](t)
def cap(f,*a):
    b=Buf(); out.append(b); f(*a); out.pop(); return list(b)
def emit(L):
    for x in L:
        if isinstance(x,(list,tuple)): emit(x)
        else: I(x)
def weave(P,F,start=0,end=None):
    end=len(P) if end is None else end
    n=end-start; k=0
    for i,p in enumerate(P):
        emit([p])
        if start<=i<end:
            tgt=((i-start+1)*len(F))//n
            while k<tgt: emit([F[k]]); k+=1
    while k<len(F): emit([F[k]]); k+=1
def lab(n): I(n+':')
def stamp(i):
    if E('PADT',0) and E('PADK',0)==i:
        I(f's_memrealtime s[{sTS+2}:{sTS+3}]'); I('s_waitcnt lgkmcnt(0)')
    if TS:
        I(f's_memrealtime s[{sTS}:{sTS+1}]'); I('s_waitcnt lgkmcnt(0)'); I(f'v_writelane_b32 v0, s{sTS}, {i}')
        if i in (3,14,12,26):
            I(f's_memtime s[{sTS}:{sTS+1}]'); I('s_waitcnt lgkmcnt(0)'); I(f'v_writelane_b32 v0, s{sTS}, {i+32}')
def smul(d,x,c): I(f's_mul_i32 s{d}, s{x}, {c}')
def sadd(d,x,c): I(f's_add_u32 s{d}, s{x}, {c if isinstance(c,int) else "s%d"%c[0]}')
def sacc(d,x): I(f's_add_u32 s{d}, s{d}, s{x}')
def vconst(r,c): I(f'v_mov_b32 v{r}, {c}')
def div10(dst,src): I(f'v_mul_u32_u24 v{dst}, 0x199a, v{src}'); I(f'v_lshrrev_b32 v{dst}, 16, v{dst}')
uid=[0]
SLP=E('SLP',6)
def poll(voffs,tmp):
    I(f's_mov_b32 s{sTo}, 0x40000')
    for i,vo in enumerate(voffs): I(f'buffer_load_dword v{tmp+i}, v{vo}, {srd(sWS)}, 0 offen sc1')
    for i,vo in enumerate(voffs):
        uid[0]+=1; L=f'Lpoll{uid[0]}'
        I(f's_waitcnt vmcnt({len(voffs)-1-i})')
        lab(L)
        I(f'v_cmp_ne_u32 vcc, s{sTag}, v{tmp+i}')
        I(f's_cbranch_vccz {L}d')
        I('s_mov_b64 exec, vcc')
        if E('SLP1',6): I(f's_sleep {E("SLP1",6)}')
        I(f'buffer_load_dword v{tmp+i}, v{vo}, {srd(sWS)}, 0 offen sc1')
        I(f's_sub_u32 s{sTo}, s{sTo}, 1')
        I('s_waitcnt vmcnt(0)')
        I(f's_cbranch_scc0 {L}'); lab(L+'d')
        I('s_mov_b64 exec, -1')
def poll2(vo,tmp):
    uid[0]+=1; L=f'Lpoll{uid[0]}'
    I(f's_mov_b32 s{sTo}, 0x40000')
    I(f'buffer_load_dwordx2 {v(tmp,2)}, v{vo}, {srd(sWS)}, 0 offen sc1')
    I(f's_waitcnt vmcnt(0)')
    lab(L)
    I(f'v_cmp_ne_u32 vcc, s{sTag}, v{tmp}'); I(f'v_cmp_ne_u32 s[{t4}:{t5}], s{sTag}, v{tmp+1}'); I(f's_or_b64 vcc, vcc, s[{t4}:{t5}]')
    I(f's_cbranch_vccz {L}d')
    I('s_mov_b64 exec, vcc')
    if E('SLPA',0):
        I(f's_cmp_eq_u32 s{sTo}, 0x40000'); I(f's_cbranch_scc0 {L}s'); I(f's_sleep {E("SLPA",0)}'); lab(L+'s')
    if SLP: I(f's_sleep {SLP}')
    I(f'buffer_load_dwordx2 {v(tmp,2)}, v{vo}, {srd(sWS)}, 0 offen sc1')
    I(f's_sub_u32 s{sTo}, s{sTo}, 1')
    I('s_waitcnt vmcnt(0)')
    I(f's_cbranch_scc0 {L}'); lab(L+'d')
    I('s_mov_b64 exec, -1')
def ldssync(vaddr,tmp):
    I(f'v_mov_b32 v{tmp}, 1'); I('s_waitcnt lgkmcnt(0)')
    I('s_mov_b64 exec, 1'); I(f'ds_add_u32 v{vaddr}, v{tmp}'); I('s_mov_b64 exec, -1')
    uid[0]+=1; L=f'Llp{uid[0]}'
    I(f's_mov_b32 s{sTo}, 0x400000'); lab(L)
    I(f'ds_read_b32 v{tmp}, v{vaddr}'); I('s_waitcnt lgkmcnt(0)')
    I(f'v_cmp_gt_u32 vcc, 2, v{tmp}')
    I(f's_cbranch_vccz {L}d'); I(f's_sub_u32 s{sTo}, s{sTo}, 1'); I(f's_cbranch_scc0 {L}'); lab(L+'d')
def setflag(voff,tmp):
    I(f'v_mov_b32 v{tmp}, s{sTag}'); I('s_mov_b64 exec, 1')
    I(f'buffer_store_dword v{tmp}, v{voff}, {srd(sWS)}, 0 offen sc1'); I('s_mov_b64 exec, -1')
def mksrd(d,p,n):
    I(f's_mov_b32 s{d}, s{p}'); I(f's_mov_b32 s{d+1}, s{p+1}'); I(f's_mov_b32 s{d+2}, {n}'); I(f's_mov_b32 s{d+3}, 0x20000')
MF='v_mfma_f32_16x16x32_bf16'
K=f'{NAME}_kernel'
ACC=16
FX=dict(A=100,B=116); FY=dict(A=140,B=156)
vAo=180; vBo=184; vRA=189; vRB=191
vKA=200; vE0=208; vWp,vWm,vWm0=214,215,216; WP=220
lab('Lstart')
I(f's_cmp_ge_u32 s2, 256'); I('s_cbranch_scc1 Lend')
PADT=E('PADT',0)
if TS or PADT: I(f's_memrealtime s[{sTS+2}:{sTS+3}]')
I(f's_load_dwordx16 s[{sK}:{sK+15}], s[0:1], 0')
I(f's_load_dwordx4 s[{sK+16}:{sK+19}], s[0:1], 64')
I(f'v_lshrrev_b32 v4, 6, v0'); I(f'v_and_b32 v{vL}, 63, v0')
I(f'v_readfirstlane_b32 s{sW}, v4')
I(f's_getpc_b64 s[{sGATE}:{sGATE+1}]')
lab('Lpc')
I(f's_add_u32 s{sTAB}, s{sGATE}, tab_base@rel32@lo+4'); I(f's_addc_u32 s{sTAB+1}, s{sGATE+1}, tab_base@rel32@hi+12')
I(f's_mov_b32 s{sGATE+2}, Lfin-Lpc'); I(f's_mov_b32 s{sGATE+3}, 0x20000')
I(f'v_lshlrev_b32 v9, 4, v{vL}')
I(f's_lshr_b32 s{t0}, s2, 3'); I(f's_and_b32 s{t1}, s2, 7')
if CPF:
    I(f's_lshl_b32 s{t2}, s{t0}, 10'); I(f's_cmp_eq_u32 s{sW}, 3'); I(f's_cbranch_scc0 Lnocpf')
    I(f'buffer_load_dwordx4 v[96:99], v9, {srd(sGATE)}, s{t2} offen'); lab('Lnocpf')
I(f'v_and_b32 v{vN}, 15, v{vL}'); I(f'v_lshrrev_b32 v{vG}, 4, v{vL}')
I(f's_lshr_b32 s{sRb}, s{t1}, 2'); I(f's_lshl_b32 s{sRb}, s{sRb}, 3'); I(f's_lshr_b32 s{t2}, s{t0}, 2'); sacc(sRb,t2)
I(f's_and_b32 s{sWr}, s{sW}, 1'); I(f's_lshr_b32 s{sWc}, s{sW}, 1')
I(f'v_and_b32 v5, 7, v{vL}'); I(f'v_xor_b32 v5, v5, v{vG}'); I(f'v_lshrrev_b32 v4, 3, v{vL}'); I(f'v_mul_u32_u24 v4, 40960, v4')
I(f'v_lshl_add_u32 v{vAo}, v5, 4, v4'); I(f'v_xor_b32 v{vAo+1}, 64, v{vAo}')
I(f's_lshl_b32 s{t3}, s{sRb}, 1'); sacc(t3,sWc); smul(t3,t3,1280); smul(t2,sWr,32*40960); I(f's_add_u32 s{sA2}, s{t3}, s{t2}')
I(f's_bfe_u32 s{sTyp}, s{t0}, 0x10001')
I(f's_and_b32 s{sGrp}, s{t1}, 3'); I(f's_lshl_b32 s{sGrp}, s{sGrp}, 1'); I(f's_and_b32 s{t2}, s{t0}, 1'); sacc(sGrp,t2)
if E('P3MAP',0)==0:
    I(f's_lshl_b32 s{sN2}, s{t1}, 2'); I(f's_lshr_b32 s{t2}, s{t0}, 3'); sacc(sN2,t2); I(f's_and_b32 s{sCt}, s{t0}, 7')
else:
    I(f's_lshr_b32 s{sN2}, s{t1}, 1'); I(f's_lshl_b32 s{sN2}, s{sN2}, 3'); I(f's_lshr_b32 s{t2}, s{t0}, 2'); sacc(sN2,t2)
    I(f's_and_b32 s{sCt}, s{t1}, 1'); I(f's_lshl_b32 s{sCt}, s{sCt}, 2'); I(f's_and_b32 s{t2}, s{t0}, 3'); sacc(sCt,t2)
if ROT:
    a,ma,b,mb,c,d={1:(5,7,10,3,0,0),2:(0,0,0,0,10,20),3:(20,1,20,1,0,0),4:(10,3,10,3,0,0),5:(20,1,0,0,10,0),6:(0,0,20,1,10,20),7:(10,1,20,1,0,0),8:(5,7,10,3,10,20),9:(0,0,0,0,0,20),10:(0,0,0,0,20,20)}[ROT]
    I(f's_lshr_b32 s{t2}, s{t0}, 2'); I(f's_and_b32 s{t2}, s{t2}, {ma}'); smul(t2,t2,a); I(f's_and_b32 s{t3}, s{t0}, {mb}'); smul(t3,t3,b); sacc(t2,t3)
    I(f's_and_b32 s{t3}, s{t1}, 3'); smul(t3,t3,c); sacc(t2,t3); I(f's_lshr_b32 s{t3}, s{t1}, 2'); smul(t3,t3,d); sacc(t2,t3)
    I(f's_lshr_b32 s{t2}, s{t2}, 2'); smul(t3,t2,26); I(f's_lshr_b32 s{t3}, s{t3}, 8'); smul(t3,t3,10); I(f's_sub_u32 s{sIs}, s{t2}, s{t3}')
else: I(f's_mov_b32 s{sIs}, 0')
I(f's_lshl_b32 s{sMA}, s{sW}, 12')
I(f's_lshl_b32 s{sAo}, s{sIs}, 7'); sacc(sAo,sA2)
I(f's_mov_b32 s{sTAB+2}, {TB.TAB_SZ}'); I(f's_mov_b32 s{sTAB+3}, 0x20000')
I(f's_andn2_b32 s{t0}, s{sTyp}, s{sWc}')
I(f's_sub_u32 s{t1}, 1, s{sTyp}'); sadd(t2,sWc,1); I(f's_mul_i32 s{t1}, s{t1}, s{t2}'); smul(t1,t1,1280)
smul(t2,sGrp,160); sacc(t1,t2); smul(t2,sWr,32*3840); sacc(t1,t2)
smul(t2,sGrp,102400); smul(t3,sWr,5120); sacc(t2,t3)
smul(sMB,sWc,10256); sacc(sMB,t3); sadd(sMB,sMB,SEG0)
I(f's_cmp_eq_u32 s{t0}, 1')
I(f's_cselect_b32 s{t1}, s{t2}, s{t1}')
I(f's_mov_b32 s{sBstep}, {64*3840}'); I(f's_cselect_b32 s{sBstep}, 10240, s{sBstep}')
I(f's_cselect_b64 s[{t4}:{t5}], -1, 0')
I(f's_mul_i32 s{sBo}, s{sIs}, s{sBstep}')
I(f's_mov_b32 s{t2}, 3840')
def dmaA(i): return [f's_add_u32 m0, s{sMA}, {1024*i}', f's_add_u32 s{t3}, s{sAo}, {i*8*40960}', f'buffer_load_dwordx4 v{vAo+(i&1)}, {srd(sX)}, s{t3} offen {POLA} lds']
def dmaB(i): return [f's_add_u32 m0, s{sMB}, {1024*i}', 's_nop 0', f'buffer_load_dwordx4 v{vBo+i}, {srd(sSEG)}, s{sBo} offen {POLB} lds']
def advA(d):
    return [f's_add_u32 s{sIs}, s{sIs}, 1', f's_cmp_eq_u32 s{sIs}, 10', f's_cselect_b32 s{sIs}, 0, s{sIs}',
            f's_lshl_b32 s{sAo}, s{sIs}, 7', f's_add_u32 s{sAo}, s{sAo}, s{sA2}', f's_add_u32 s{sMA}, s{sMA}, {d}']
def advB(d): return [f's_mul_i32 s{sBo}, s{sIs}, s{sBstep}', f's_add_u32 s{sMB}, s{sMB}, {d}']
def dma_adv(d):
    return [f's_add_u32 s{sIs}, s{sIs}, 1', f's_cmp_eq_u32 s{sIs}, 10', f's_cselect_b32 s{sIs}, 0, s{sIs}',
            f's_lshl_b32 s{sAo}, s{sIs}, 7', f's_add_u32 s{sAo}, s{sAo}, s{sA2}', f's_mul_i32 s{sBo}, s{sIs}, s{sBstep}',
            f's_add_u32 s{sMA}, s{sMA}, {d}', f's_add_u32 s{sMB}, s{sMB}, {d}']
def boff(i):
    I(f'v_add_u32 v4, {64*i}, v{vL}'); div10(5,4)
    I(f'v_lshlrev_b32 v4, 4, v4'); I(f'v_mul_u32_u24 v6, 160, v5'); I(f'v_sub_u32 v6, v4, v6')
    I(f'v_and_b32 v7, 3, v5'); I(f'v_bfe_u32 v8, v5, 2, 2'); I(f'v_lshl_or_b32 v7, v8, 3, v7')
    I(f'v_lshrrev_b32 v8, 4, v5'); I(f'v_lshl_or_b32 v7, v8, 2, v7')
    I(f'v_mad_u32_u24 v7, v7, s{t2}, v6'); I(f'v_cndmask_b32 v7, v7, v4, s[{t4}:{t5}]'); I(f'v_add_u32 v{vBo+i}, s{t1}, v7')
boff(0)
if TS: I(f's_memrealtime s[{sTS}:{sTS+1}]')
I('s_waitcnt lgkmcnt(0)')
if TS:
    I(f'v_writelane_b32 v0, s{sTS}, 4'); stamp(2)
mksrd(sX,sK+0,2621440)
WSB=E('WSB',0)*1048576
if WSB: I(f's_add_u32 s{sK+18}, s{sK+18}, {WSB}'); I(f's_addc_u32 s{sK+19}, s{sK+19}, 0')
I(f's_cmp_eq_u32 s{t0}, 1')
I(f's_cselect_b32 s{sSEG}, s{sTAB}, s{sK+8}'); I(f's_cselect_b32 s{sSEG+1}, s{sTAB+1}, s{sK+9}')
I(f's_mov_b32 s{sSEG+2}, 2457600'); I(f's_cselect_b32 s{sSEG+2}, {TB.TF_SZ}, s{sSEG+2}'); I(f's_mov_b32 s{sSEG+3}, 0x20000')
for i in range(4): emit(dmaA(i)); boff(i+1)
if TS: I(f'v_writelane_b32 v0, s{sTS+2}, 0')
def setup0():
    mksrd(sWS,sK+18,WS_SZ); mksrd(sWO,sK+10,819200)
    I(f's_lshl_b32 s{sDm}, s2, 2'); sacc(sDm,sW)
    smul(t0,sDm,0x667); I(f's_lshr_b32 s{t0}, s{t0}, 16')
    smul(t1,t0,40); I(f's_sub_u32 s{t1}, s{sDm}, s{t1}')
    smul(t2,t1,52); I(f's_lshr_b32 s{t2}, s{t2}, 8')
    smul(sGo,t2,5); I(f's_sub_u32 s{t1}, s{t1}, s{sGo}')
    smul(t2,t2,80)
    I(f's_lshl_b32 s{t0}, s{t0}, 2')
    I(f'v_bfe_u32 v4, v{vL}, 3, 2'); I(f'v_add_u32 v4, s{t0}, v4'); I(f'v_mul_u32_u24 v5, 0x3334, v4'); I(f'v_lshrrev_b32 v5, 16, v5')
    I(f'v_lshrrev_b32 v6, 5, v{vL}'); I(f'v_add_u32 v5, v5, v6')
    I(f'v_mul_u32_u24 v5, 20, v5'); I(f'v_lshl_add_u32 v5, v4, 2, v5'); I(f'v_bfe_u32 v4, v{vL}, 1, 2'); I(f'v_add_u32 v5, v5, v4')
    I(f's_lshr_b32 s{t0}, s{t1}, 1'); smul(t0,t0,640); I(f's_and_b32 s{sGo}, s{t1}, 1'); I(f's_lshl_b32 s{sGo}, s{sGo}, 5'); sacc(t0,sGo)
    I(f's_movk_i32 s{sGo}, 640')
    I([f's_cmp_eq_u32 s{t1}, 4', f's_cselect_b32 s{t0}, 64, s{t0}', f's_cselect_b32 s{t1}, s{sGo}, 16'])
    I(f'v_and_b32 v4, 1, v{vL}'); I(f'v_mul_u32_u24 v4, s{t1}, v4'); I(f's_movk_i32 s{t1}, 1280'); I(f'v_mad_u32_u24 v213, v5, s{t1}, v4')
    sacc(t0,t2)
    I([f's_cmp_lt_u32 s2, 200', f's_cselect_b32 s{sGo}, s{t0}, {OOB}'])
    I(f's_lshl_b32 s{t0}, s{sDm}, 6'); sadd(sDl,t0,WS_KVA)
    I(f'v_lshlrev_b32 v217, 2, v{vL}'); vconst(212,0)
def setupPF():
    I(f's_lshr_b32 s{t0}, s2, 3'); I(f's_lshl_b32 s{t0}, s{t0}, 2'); sacc(t0,sW)
    I(f's_lshl_b32 s{t1}, s{t0}, 3'); I(f'v_and_b32 v4, 7, v{vL}'); I(f'v_add_u32 v4, s{t1}, v4'); I(f'v_lshrrev_b32 v5, 4, v4'); I(f'v_and_b32 v4, 15, v4')
    I(f'v_lshl_add_u32 v4, v5, 5, v4'); I(f's_bfe_u32 s{t1}, s2, 0x10002'); I(f's_lshl_b32 s{t1}, s{t1}, 4'); I(f'v_add_u32 v4, s{t1}, v4'); I(f'v_mul_u32_u24 v10, 1280, v4')
    smul(t1,t0,5); I(f'v_subrev_u32 v4, 8, v{vL}'); I(f'v_add_u32 v4, s{t1}, v4'); I(f'v_min_u32 v4, 575, v4')
    I(f'v_mul_u32_u24 v5, 0x1c72, v4'); I(f'v_lshrrev_b32 v5, 16, v5'); I(f'v_mul_u32_u24 v6, 9, v5'); I(f'v_sub_u32 v6, v4, v6')
    I(f'v_mul_u32_u24 v7, 86, v6'); I(f'v_lshrrev_b32 v7, 8, v7'); I(f'v_mul_u32_u24 v8, 3, v7'); I(f'v_sub_u32 v8, v6, v8')
    I(f'v_mul_u32_u24 v5, 3840, v5'); I(f'v_mul_u32_u24 v7, 1280, v7'); I(f'v_lshlrev_b32 v8, 7, v8'); I(f'v_add3_u32 v5, v5, v7, v8')
    I(f's_and_b32 s{t2}, s2, 3'); smul(t1,t2,320); I(f's_and_b32 s{t1}, s{t1}, {0xffffff80}'); I(f'v_add_u32 v11, s{t1}, v5')
    I(f's_lshl_b32 s{t1}, s{t0}, 1'); I(f'v_subrev_u32 v4, 13, v{vL}'); I(f'v_add_u32 v4, s{t1}, v4'); I(f'v_min_u32 v4, 159, v4')
    I(f'v_lshlrev_b32 v5, 7, v4'); vconst(6,102400-10240); I(f'v_cmp_lt_u32 vcc, 79, v4'); I(f'v_cndmask_b32 v6, 0, v6, vcc'); I(f'v_add_u32 v5, v5, v6')
    smul(t1,t2,204800); I(f'v_add_u32 v12, s{t1}, v5')
    I(f'v_cmp_gt_u32 s[{t4}:{t5}], 8, v{vL}'); I(f'v_cmp_gt_u32 vcc, 13, v{vL}')
    I(f'v_cndmask_b32 v11, v12, v11, vcc'); I(f'v_cndmask_b32 v10, v11, v10, s[{t4}:{t5}]')
    for d,(x_,w_,f_) in ((96,(sK,sK+8,sTAB)),(97,(sK+1,sK+9,sTAB+1))):
        I(f'v_mov_b32 v4, s{f_}'); I(f'v_mov_b32 v5, s{w_}'); I(f'v_mov_b32 v6, s{x_}'); I(f'v_cndmask_b32 v4, v4, v5, vcc'); I(f'v_cndmask_b32 v{d}, v4, v6, s[{t4}:{t5}]')
    vconst(4,10240); vconst(5,64*3840); I(f'v_cndmask_b32 v4, v4, v5, vcc'); vconst(5,128); I(f'v_cndmask_b32 v98, v4, v5, s[{t4}:{t5}]')
    I(f'v_lshl_add_u32 v10, v98, 1, v10')
    I([f'v_add_co_u32 v96, vcc, v96, v10', f'v_addc_co_u32 v97, vcc, 0, v97, vcc'])
def pf(adv=True):
    L=['s_mov_b64 exec, 0x7fff', f'global_load_dword v99, v[96:97], off {PFPOL}', 's_mov_b64 exec, -1']
    if adv: L+=['v_add_co_u32 v96, vcc, v96, v98', 'v_addc_co_u32 v97, vcc, 0, v97, vcc']
    return L
def setup1():
    vconst(179,WS_E); I(f'buffer_load_dword v179, v179, {srd(sWS)}, 0 offen sc1')
    mksrd(sWR,sK+2,1314816); mksrd(sWI,sK+4,1314816); mksrd(sGATE,sK+12,1280); mksrd(sOUT,sK+14,2621440)
    vconst(5,0); I(f'v_lshlrev_b32 v4, 2, v{vN}'); I(f'v_add_u32 v4, {L_FLG}, v4'); I(f'ds_write_b32 v4, v5')
    I(f'v_lshrrev_b32 v4, 1, v{vN}'); I(f'v_xor_b32 v4, v4, v{vG}'); I(f'v_lshlrev_b32 v4, 4, v4')
    I(f'v_lshl_add_u32 v4, v{vN}, 7, v4'); I(f's_lshl_b32 s{t0}, s{sWr}, 13'); I(f'v_add_u32 v{vRA}, s{t0}, v4'); I(f'v_xor_b32 v{vRA+1}, 64, v{vRA}')
    I(f'v_lshrrev_b32 v4, 2, v{vL}'); I(f'v_mul_u32_u24 v4, 160, v4'); I(f'v_and_b32 v5, 3, v{vL}'); I(f'v_lshlrev_b32 v5, 3, v5'); I(f'v_add_u32 v4, v4, v5')
    smul(t0,sWc,80); smul(t1,sWc,10256)
    I([f's_cmp_eq_u32 s{sTyp}, 0', f's_cselect_b32 s{t0}, s{t0}, s{t1}', f's_cselect_b32 s{t1}, {SEG1-SEG0-80}, 0']); sadd(t0,t0,SEG0)
    I(f'v_add_u32 v{vRB}, s{t0}, v4'); I(f'v_add_u32 v{vRB+1}, 32, v{vRB}')
    I(f'v_mov_b32 v6, s{t1}'); I(f'v_cmp_lt_u32 vcc, 8, v5'); I(f'v_cndmask_b32 v6, 0, v6, vcc'); I(f'v_add3_u32 v{vRB+2}, v{vRB}, v6, 64')
    I(f'v_add_u32 v4, s{t1}, v{vRB}'); I(f'v_add_u32 v{vRB+3}, 96, v4'); I(f'v_add_u32 v{vRB+4}, 0x80, v4')
    I(f's_lshr_b32 s{t0}, s{sRb}, 1'); I(f's_lshl_b32 s{t0}, s{t0}, 3'); sacc(t0,sGrp)
    I(f's_lshr_b32 s{t1}, s{t0}, 5'); sadd(t1,t1,8); I(f's_bfe_u32 s{t2}, s{t0}, 0x10004'); smul(t2,t2,10); sacc(t1,t2)
    I(f's_and_b32 s{sCh}, s{sRb}, 3'); I(f's_lshr_b32 s{t2}, s{sRb}, 3'); I(f's_lshl_b32 s{t2}, s{t2}, 2'); sacc(sCh,t2); I(f's_bfe_u32 s{t2}, s{sRb}, 0x10002'); smul(t2,t2,10); sacc(sCh,t2)
    I(f's_and_b32 s{t2}, s{t0}, 15'); I(f's_lshl_b32 s{t2}, s{t2}, 1'); sacc(t2,sWr)
    I(f's_lshl_b32 s{t0}, s{sGrp}, 2'); sacc(t0,sW)
    I([f's_cmp_eq_u32 s{sTyp}, 0', f's_cselect_b32 s{sT}, s{t0}, s{t2}', f's_cselect_b32 s{sCh}, s{sCh}, s{t1}'])
    I(f's_or_b32 s{t0}, s{sRb}, s{sWc}'); I(f's_and_b32 s{t0}, s{t0}, s{sTyp}'); I(f's_xor_b32 s{sAct}, s{t0}, 1')
    I(f's_lshl_b32 s{t0}, s{sCh}, 6'); I([f's_cmp_ge_u32 s{sCh}, 10', f's_cselect_b32 s{t1}, 638, 0']); I(f's_sub_u32 s{t0}, s{t0}, s{t1}')
    I([f's_cmp_eq_u32 s{sAct}, 1', f's_cselect_b32 s{t0}, s{t0}, {OOB}'])
    I(f's_mov_b32 s{t1}, {256*642}'); I(f'v_lshlrev_b32 v10, 2, v{vN}'); I(f'v_add_u32 v10, s{t0}, v10')
    I(f'v_mad_u32_u24 v{vWp}, v{vG}, s{t1}, v10'); I(f'v_sub_u32 v11, 3, v{vG}'); I(f'v_mad_u32_u24 v{vWm}, v11, s{t1}, v10')
    I(f's_movk_i32 s{t2}, 1024')
    I([f's_cmp_eq_u32 s{sT}, 0', f's_cselect_b32 s{t0}, {1024*642}, 0', f's_cselect_b32 s{t2}, 32, s{t2}'])
    I(f'v_mov_b32 v11, s{t0}'); I(f'v_cmp_eq_u32 vcc, 0, v{vG}'); I(f'v_cndmask_b32 v11, 0, v11, vcc'); I(f'v_sub_u32 v11, {256*642}, v11'); I(f'v_add_u32 v{vWm0}, v{vWm}, v11')
    sacc(t2,sT); smul(sB0,sT,642); smul(sB1,t2,642)
    I(f'v_mul_u32_u24 v4, {64*642}, v{vN}'); I(f'v_mov_b32 v5, s{sB0}'); I(f'v_mov_b32 v6, s{sB1}')
    I(f'v_and_b32 v7, 16, v{vL}'); I(f'v_cmp_eq_u32 vcc, 0, v7'); I(f'v_cndmask_b32 v5, v6, v5, vcc'); I(f'v_add_u32 v4, v4, v5')
    I(f'v_sub_u32 v5, {2048*642}, v4'); vconst(6,1024*642); I(f'v_cmp_eq_u32 vcc, 0, v4'); I(f'v_cndmask_b32 v5, v5, v6, vcc')
    I(f'v_cmp_gt_u32 vcc, 32, v{vL}'); I(f'v_cndmask_b32 v4, v5, v4, vcc')
    I([f's_cmp_eq_u32 s{sCh}, 0', f's_cselect_b32 s{t0}, 0, {OOB}']); I(f'v_add_u32 v254, s{t0}, v4')
    for i in range(4): vconst(vE0+i,OOB)
    smul(t0,sWr,KA); smul(t1,sWr,KB); sadd(t1,t1,2*KA); I([f's_cmp_eq_u32 s{sWc}, 0', f's_cselect_b32 s{sRot}, s{t0}, s{t1}', f's_cselect_b32 s{t2}, {5*KA-1}, {5*KB-1}'])
    smul(t0,sCt,5120); smul(t1,sRot,40960); sacc(t0,t1); sadd(sGb,t0,WS_WOF); sadd(sGe,sGb,KB*40960)
    if R3:
        if E('P3MAP',0)==0: smul(t0,sCt,10); I(f's_lshr_b32 s85, s{t0}, 3')
        else: I(f's_and_b32 s{t0}, s{sCt}, 3'); smul(t0,t0,10); I(f's_lshr_b32 s85, s{t0}, 2')
    else: I('s_mov_b32 s85, 0')
    I(f's_min_u32 s84, s85, {KB-1}'); I([f's_cmp_eq_u32 s{sWc}, 0', f's_cselect_b32 s84, 0, s84'])
    smul(t0,84,40960); I(f's_add_u32 s{sGo}, s{sGb}, s{t0}')
    I(f'v_min_u32 v9, s{t2}, v{vL}')
    I(f'v_lshlrev_b32 v4, 3, v{vL}'); I(f's_lshl_b32 s{t0}, s{sW}, 10'); sadd(t0,t0,L_PP); I(f'v_add_u32 v213, s{t0}, v4')
    I(f's_lshl_b32 s{t0}, s{sDm}, 10'); sadd(t0,t0,WS_WOF); I([f's_cmp_lt_u32 s2, 200', f's_cselect_b32 s{sB0+3}, s{t0}, {OOB}'])
    I(f's_lshl_b32 s{t0}, s{sDm}, 2'); sadd(t0,t0,WS_FL+FL_E*128); I(f'v_mov_b32 v217, s{t0}')
    I(f'v_mov_b32 v4, v9'); I(f'v_mul_u32_u24 v5, 52, v4'); I(f'v_lshrrev_b32 v5, 8, v5'); I(f'v_mad_u32_u24 v4, v5, 35, v4')
    smul(t0,sRot,40); smul(t1,sCt,5); sacc(t0,t1); I(f'v_add_u32 v4, s{t0}, v4'); I(f'v_lshlrev_b32 v4, 2, v4'); I(f'v_add_u32 v196, {WS_FL+FL_E*128}, v4')
    I(f's_lshl_b32 s{t0}, s{sGrp}, 1'); sacc(t0,sWc); I(f's_lshl_b32 s{t0}, s{t0}, 8'); sadd(t0,t0,WS_FL+FL_E*128)
    I(f'v_lshlrev_b32 v4, 2, v{vL}'); I(f'v_add_u32 v197, s{t0}, v4')
    if PW:
        smul(t0,sDm,1408); I(f'v_lshlrev_b32 v4, 7, v{vL}'); I(f'v_add_u32 v5, s{t0}, v4'); vconst(7,OOB>>1); I(f'v_cmp_gt_u32 vcc, 11, v{vL}'); I(f'v_cndmask_b32 v98, v7, v5, vcc')
    if POI:
        smul(t0,sWr,16*81920); I(f's_lshl_b32 s{t1}, s{sCh}, 12'); sacc(t0,t1)
        I(f's_lshr_b32 s{t1}, s{sT}, 1'); I(f's_lshl_b32 s{t1}, s{t1}, 8'); sacc(t0,t1); sadd(t0,t0,WS_R)
        I([f's_cmp_eq_u32 s{sAct}, 1', f's_cselect_b32 s86, s{t0}, 0x30000000'])
        I(f's_lshl_b32 s{t1}, s{sRb}, 1'); sacc(t1,sWr); smul(t1,t1,81920); sadd(t1,t1,WS_O)
        smul(t2,sGrp,10); I(f's_lshr_b32 s{t0}, s{t2}, 2'); I(f's_lshl_b32 s{t0}, s{t0}, 12'); sacc(t1,t0); I(f's_and_b32 s{t0}, s{t2}, 3'); I(f's_lshl_b32 s{t0}, s{t0}, 8'); sacc(t1,t0)
        I(f's_and_b32 s{t0}, s{sTyp}, s{sWc}'); I(f's_mov_b32 s87, {4*81920}'); I(f's_mov_b32 s93, 0x30000000'); I(f's_mov_b32 s{t4}, 81920')
        I([f's_cmp_eq_u32 s{t0}, 1', f's_cselect_b32 s86, s{t1}, s86', f's_cselect_b32 s87, 256, s87', f's_cselect_b32 s93, 3072, s93', f's_cselect_b32 s92, s{t2}, 0', f's_cselect_b32 s{t4}, 1024, s{t4}'])
        I(f'v_lshlrev_b32 v255, 4, v{vN}'); I(f'v_mad_u32_u24 v255, v{vG}, s{t4}, v255')
        for i in range(4): vconst(176+i,-1)
    I(f'v_lshlrev_b32 v218, 4, v{vL}'); I(f'v_add_u32 v219, 0x1000, v218')
weave([dmaB(i) for i in range(5)]+[dma_adv(SLOT)],cap(setup0))
I(f's_lshl_b32 s{t0}, s{sW}, 10'); I(f's_add_u32 m0, s{t0}, {L_PP}'); I(f'buffer_load_dwordx4 v213, {srd(sWO)}, s{sGo} offen lds')
I('s_mov_b64 exec, 0xffff'); I(f'buffer_store_dword v212, v217, {srd(sWS)}, s{sDl} offen sc1'); I('s_mov_b64 exec, -1')
A1AT=E('A1AT',4); B1AT=E('B1AT',0); A2AT=E('A2AT',-1)
gA1=[dmaA(i) for i in range(4)]+[advA(SLOT)]; gB1=[dmaB(i) for i in range(5)]+[advB(SLOT)]
stamp(5)
if PFX:
    setupPF()
    for _ in range(LEAD-2): emit(pf())
if A1AT==7: weave(cap(setup1),gA1)
else: setup1()
I(f's_cmp_eq_u32 s{sTyp}, 0'); I('s_cbranch_scc0 LsetFQ')
I(f's_lshl_b32 s{t0}, s{sWc}, 13'); smul(t1,sWr,1792); sacc(t0,t1); sadd(t0,t0,L_RED)
I(f'v_lshlrev_b32 v4, 2, v{vL}'); I(f'v_add_u32 v{vE0}, s{t0}, v4')
I(f's_lshl_b32 s{t0}, s{sGrp}, 1'); sacc(t0,sWc); I(f's_lshl_b32 s{t0}, s{t0}, 12'); sacc(t0,t1); sadd(t0,t0,WS_KVA)
I(f'v_add_u32 v{vE0+1}, s{t0}, v4')
I(f's_cmp_eq_u32 s{sWr}, 0'); I(f's_cselect_b32 s{t1}, 64, 8'); I(f'v_cmp_gt_u32 vcc, s{t1}, v{vL}')
I(f'v_cndmask_b32 v{vE0+2}, v{vE0+2}, v{vE0+1}, vcc')
I(f's_lshl_b32 s{t0}, s{sGrp}, 2'); sacc(t0,sW); I(f's_lshl_b32 s{t0}, s{t0}, 4'); sacc(t0,sRb)
I(f's_lshl_b32 s{t0}, s{t0}, 7'); sadd(t0,t0,WS_FL+FL_KV*128); I(f'v_mov_b32 v{vE0+3}, s{t0}')
I('s_branch Lsetdone')
lab('LsetFQ')
I(f's_cmp_eq_u32 s{sWc}, 0'); I('s_cbranch_scc0 Lsetdone')
I(f's_lshl_b32 s{t0}, s{sRb}, 1'); sacc(t0,sWr); smul(t0,t0,5120); smul(t1,sGrp,640); sacc(t0,t1)
I(f's_mov_b32 s{t1}, 163840'); I(f'v_lshlrev_b32 v4, 3, v{vN}'); I(f'v_mad_u32_u24 v4, v{vG}, s{t1}, v4'); I(f'v_add_u32 v{vE0}, s{t0}, v4')
I(f's_lshl_b32 s{t0}, s{sGrp}, 1'); sacc(t0,sWr); I(f's_lshl_b32 s{t0}, s{t0}, 4'); sacc(t0,sRb)
I(f's_lshl_b32 s{t0}, s{t0}, 7'); sadd(t0,t0,WS_FL+FL_Y*128); I(f'v_mov_b32 v{vE0+3}, s{t0}')
lab('Lsetdone')
AT1,AT2=192,224
TBL=[f's_cmp_eq_u32 s{sTyp}, 0','s_cbranch_scc0 LefF',f's_mov_b32 s{t0}, {TB.KA_OFF}']+[f'buffer_load_dwordx4 {v(vKA+4*i,4)}, v218, {srd(sTAB)}, s{t0} offen offset:{1024*i}' for i in range(2)]+['s_branch LefT','LefF:',
   f's_cmp_eq_u32 s{sWc}, 0','s_cbranch_scc0 Lnotb',f's_mov_b32 s{t0}, {TB.D1_OFF}',f's_mov_b32 s{t1}, {TB.D1_OFF+4096}']+[f'buffer_load_dwordx4 {a_(120+4*i,4)}, v218, {srd(sTAB)}, s{t0+i//4} offen offset:{1024*(i%4)}' for i in range(8)]+['LefT:',
   f's_cmp_eq_u32 s{sWc}, 0','s_cbranch_scc0 LefU',f's_mov_b32 s{t0}, {TB.D2_OFF}',f's_mov_b32 s{t1}, {TB.D2_OFF+4096}']+[f'buffer_load_dwordx4 {a_(160+4*i,4)}, v218, {srd(sTAB)}, s{t0+i//4} offen offset:{1024*(i%4)}' for i in range(8)]+['LefU:',
   f's_cmp_eq_u32 s{sT}, 0','s_cbranch_scc0 Lnotb']+sum([([f's_mov_b32 s{t0}, {TB.T1_OFF+1024*i}'] if i%4==0 else [])+[f'buffer_load_dwordx4 {a_(AT1+4*i,4)}, v218, {srd(sTAB)}, s{t0} offen offset:{1024*(i%4)}'] for i in range(16)],[])+['Lnotb:']
emit(TBL)
def fhex(x): return hex(struct.unpack('<I',struct.pack('<f',x))[0])
GP,G1,G16,GA,GS,GT=100,106,112,118,119,120
smul(t0,sWc,160); sacc(t0,sWr); I(f'v_lshlrev_b32 v{GT+3}, 3, v{vG}'); I(f'v_add_u32 v{GT+3}, s{t0}, v{GT+3}')
smul(t1,sCt,40)
for nt in range(3):
    d_,p_=GT+4,GT+5
    if nt<2: I(f'v_add_u32 v{d_}, {16*nt}, v{vN}')
    else: I(f'v_and_b32 v{d_}, 7, v{vN}'); I(f'v_add_u32 v{d_}, 32, v{d_}')
    I(f'v_add_u32 v{d_}, s{t1}, v{d_}'); I(f'v_mul_u32_u24 v{p_}, v{d_}, v{GT+3}'); I(f'v_cvt_f32_u32 v{p_}, v{p_}'); I(f'v_cvt_f32_u32 v{d_}, v{d_}')
    I(f'v_mul_f32 v{GT}, {fhex(1/640)}, v{p_}'); I(f'v_cos_f32 v{GP+2*nt}, v{GT}'); I(f'v_sin_f32 v{GP+2*nt+1}, v{GT}')
    I(f'v_mul_f32 v{GT+1}, {fhex(1/320)}, v{d_}'); I(f'v_cos_f32 v{G1+2*nt}, v{GT+1}'); I(f'v_sin_f32 v{G1+2*nt+1}, v{GT+1}')
    I(f'v_mul_f32 v{GT+2}, {fhex(1/20)}, v{d_}'); I(f'v_cos_f32 v{G16+2*nt}, v{GT+2}'); I(f'v_sin_f32 v{G16+2*nt+1}, v{GT+2}')
I(f'v_and_b32 v{GS}, 1, v{vN}'); I(f'v_lshlrev_b32 v{GS}, 31, v{GS}'); I(f'v_xor_b32 v{GS}, 0xbf800000, v{GS}')
I(f's_cmp_eq_u32 s{sW}, 0'); I(f's_cselect_b32 s{sEx}, 0xffff, 0'); I(f's_mov_b32 s{sEx+1}, 0')
smul(t0,sWr,30720); smul(t1,sWc,15360); sacc(t0,t1); sadd(t0,t0,L_G); I(f'v_add_u32 v{GA}, s{t0}, v218')
def rot(d,p,r,dd=None):
    dd=d if dd is None else dd
    I(f'v_pk_mul_f32 {v(d,2)}, {v(p,2)}, {v(r,2)} op_sel_hi:[1,0]')
    I(f'v_pk_fma_f32 {v(dd,2)}, {v(p,2)}, {v(r,2)}, {v(d,2)} op_sel:[1,1,0] op_sel_hi:[0,1,1] neg_lo:[0,1,0]')
stamp(6)
if A1AT==6: emit(gA1)
if B1AT==6: emit(gB1)
I(f's_mov_b32 s{sCnt}, 5'); lab('Lgg')
for nt in range(3):
    T=GT+nt*12; P0=GP+2*nt
    rot(T,P0,G1+2*nt); rot(T+2,T,G1+2*nt); rot(T+4,T+2,G1+2*nt)
    I(f'v_cndmask_b32 v{T+6}, v{P0+1}, v{GS}, s[{sEx}:{sEx+1}]')
    I(f'v_cvt_pk_bf16_f32 v{T+8}, v{P0}, v{T}'); I(f'v_cvt_pk_bf16_f32 v{T+9}, v{T+2}, v{T+4}')
    I(f'v_cvt_pk_bf16_f32 v{T+10}, -v{T+6}, -v{T+1}'); I(f'v_cvt_pk_bf16_f32 v{T+11}, -v{T+3}, -v{T+5}')
    I(f'ds_write_b128 v{GA}, {v(T+8,4)} offset:{1024*nt}')
    rot(T,P0,G16+2*nt,P0)
I(f'v_add_u32 v{GA}, 0xc00, v{GA}'); I(f's_mov_b32 s{sEx}, 0')
for at,grp_,nm in ((A1AT,gA1,'a'),(B1AT,gB1,'b'),(A2AT,gA1,'c')):
    if 1<=at<=5:
        I(f's_cmp_eq_u32 s{sCnt}, {at}'); I(f's_cbranch_scc0 Lgg{nm}'); emit(grp_); lab(f'Lgg{nm}')
I(f's_sub_u32 s{sCnt}, s{sCnt}, 1'); I(f's_cmp_lg_u32 s{sCnt}, 0'); I(f's_cbranch_scc1 Lgg')
AT1,AT2=192,224
stamp(7)
def tgen():
    TM=120; k=[0]
    def put(a,x,y):
        t=156+(k[0]&3); k[0]+=1
        I(f'v_cvt_pk_bf16_f32 v{t}, {x}, {y}'); I(f'v_accvgpr_write_b32 a{a}, v{t}'); return t
    I(f'v_lshlrev_b32 v4, 6, v{vN}'); I(f'v_add_u32 v4, s{sT}, v4'); I(f'v_cvt_f32_u32 v4, v4'); I(f'v_mul_f32 v4, 0x3a000000, v4'); I(f'v_add_f32 v5, 0.5, v4')
    I(f'v_lshlrev_b32 v6, 2, v{vG}'); I(f'v_cvt_f32_u32 v6, v6')
    for ks in range(2):
        for j in range(4):
            if 16*ks+j: I(f'v_add_f32 v7, {fhex(float(16*ks+j))}, v6')
            n2r=7 if 16*ks+j else 6
            for mh in range(2):
                c,s_=TM+4*mh,TM+4*mh+1
                I(f'v_mul_f32 v{s_}, v{4+mh}, v{n2r}'); I(f'v_cos_f32 v{c}, v{s_}'); I(f'v_sin_f32 v{s_}, v{s_}')
            for mh in range(2):
                c,s_=TM+4*mh,TM+4*mh+1
                put(AT1+(mh*2+ks)*4+j,f'v{c}',f'-v{s_}'); put(AT1+((2+mh)*2+ks)*4+j,f'v{s_}',f'v{c}')
    I(f'v_lshlrev_b32 v4, 8, v{vG}'); I(f'v_add_u32 v4, s{sT}, v4'); I(f'v_cvt_f32_u32 v4, v4'); I(f'v_mul_f32 v4, 0x3a000000, v4')
    I(f'v_cvt_f32_u32 v6, v{vN}'); I(f'v_add_f32 v7, 0x41800000, v6')
    for ks in range(2):
        for e in range(4):
            cst=0.5*ks+e/32.0
            if cst: I(f'v_add_f32 v5, {fhex(cst)}, v4')
            kr=5 if cst else 4
            for h in range(2):
                c,s_=TM+h*8+e,TM+h*8+4+e
                I(f'v_mul_f32 v{s_}, v{kr}, v{6+h}'); I(f'v_cos_f32 v{c}, v{s_}'); I(f'v_sin_f32 v{s_}, v{s_}')
        for h in range(2):
            c,s_=TM+h*8,TM+h*8+4; u0=AT2+(h*2+ks)*4; u1=AT2+((2+h)*2+ks)*4
            for p in range(2):
                t=put(u0+p,f'v{c+2*p}',f'v{c+2*p+1}'); I(f'v_accvgpr_write_b32 a{u1+2+p}, v{t}')
                put(u0+2+p,f'v{s_+2*p}',f'v{s_+2*p+1}'); put(u1+p,f'-v{s_+2*p}',f'-v{s_+2*p+1}')
TGL=cap(tgen)
if TGF:
    I(f's_cmp_eq_u32 s{sAct}, 0'); I('s_cbranch_scc1 Lnotg')
    if TGF==2: I(f's_cmp_eq_u32 s{sTyp}, 0'); I('s_cbranch_scc1 Lnotg'); I(f's_cmp_eq_u32 s{sT}, 0'); I('s_cbranch_scc1 Lnotg')
    emit(TGL)
lab('Lnotg')
stamp(8)
if B1AT==0: emit(gB1)
if A2AT==0: emit(gA1)
stamp(1)
def reads(F,ks):
    L=[]
    for mt in range(4): L.append(f'ds_read_b128 {v(F["A"]+4*mt,4)}, v{vRA+ks} offset:{2048*mt}')
    for nt in range(5):
        for h in range(2): L.append(f'ds_read_b64_tr_b16 {v(F["B"]+4*nt+2*h,2)}, v{vRB+nt} offset:{(32*ks+16*h)*160}')
    return L
def mfmas(F,z=False):
    L=[]
    for nt in range(5):
        for mt in range(4):
            c=v(ACC+(mt*5+nt)*4,4); L.append(f'{MF} {c}, {v(F["A"]+4*mt,4)}, {v(F["B"]+4*nt,4)}, {"0" if z else c}')
    return L
def block(M,R,X,pos):
    slots=[[] for _ in M]
    for g,x in R: slots[g].append(x)
    for g,x in zip(pos,X): slots[g].append(x)
    for m,s_ in zip(M,slots): I(m); emit(s_)
def adds(d): return [f'v_add_u32 v{r}, {d}, v{r}' for r in [vRA,vRB,vRB+1,vRB+2,vRB+3,vRB+4,vRA+1]]
I(f's_mov_b32 s{sCnt}, 0')
I(f's_waitcnt vmcnt({13 if A2AT>=0 else 9}) lgkmcnt(0)'); I('s_barrier')
I(f'v_readfirstlane_b32 s{sTag}, v179'); I(f's_add_u32 s{sTag}, s{sTag}, 0x9e3779b9')
stamp(3)
I('ds_read_b64_tr_b16 v[4:5], v213'); I('ds_read_b64_tr_b16 v[6:7], v213 offset:512')
emit(reads(FX,0)[:12])
I(f'v_mov_b32 v212, s{sTag}')
I('s_waitcnt lgkmcnt(12)'); I(f'buffer_store_dwordx4 v[4:7], v218, {srd(sWS)}, s{sB0+3} offen sc1')
emit(reads(FX,0)[12:])
def itertop(i=None):
    if TS and i==7: stamp(11)
    if TS and E('ITS',0):
        if i is None: I(f's_add_u32 m0, s{sCnt}, 48'); stamp('m0')
        else: stamp(48+i)
    I('s_waitcnt lgkmcnt(0)')
smul(t0,sWr,30720); sadd(t0,t0,L_G); I(f'v_add_u32 v8, s{t0}, v218')
GR=[f'ds_read_b128 {a_(4*i,4)}, v8 offset:{i*1024}' for i in range(30)]
I(f's_cmp_eq_u32 s{sWc}, 0'); I('s_cbranch_scc0 Lit0b')
I('s_waitcnt lgkmcnt(0)')
block(mfmas(FX,True),[(i*20//44,r) for i,r in enumerate(reads(FY,1)+GR)]+[(i*20//32,f'v_mov_b32 v{WP+i}, 0') for i in range(32)],gA1,[1,6,11,16,17])
I('s_branch Lit0c')
lab('Lit0b')
I('s_waitcnt lgkmcnt(0)')
block(mfmas(FX,True),list(enumerate(reads(FY,1)))+[(i*20//32,f'v_mov_b32 v{WP+i}, 0') for i in range(32)],([] if A2AT>=0 else gA1),[1,6,11,16,17])
lab('Lit0c')
I(f's_waitcnt vmcnt(5) lgkmcnt(0)'); I('s_barrier')
ad=adds(SLOT)
R2=[(0,ad[0]),(0,ad[1]),(1,ad[2]),(1,ad[3]),(2,ad[4]),(2,ad[5]),(3,ad[6])]+[(i+2,r) for i,r in enumerate(reads(FX,0))]
block(mfmas(FY),R2,[dmaB(i) for i in range(5)]+[advB(SLOT)+(pf() if PFX else [])+([f's_mov_b32 s{t2}, {OOB}', f'buffer_load_dword v99, v98, {srd(sWR)}, s{t2} offen', f'buffer_load_dword v99, v98, {srd(sWI)}, s{t2} offen'] if PW else [])]+[dmaA(i) for i in range(4)]+[advA(-3*SLOT)],[0,2,4,6,8,9,10,12,14,16,17])
I(f's_mov_b32 s{sCnt}, 1')
POS=E('POS',0)
PB_,PA_={0:([1,5,9,13,16],[1,6,11,16]),1:([0,1,2,3,4],[0,1,2,3]),2:([0,2,4,6,8],[0,2,4,6]),3:([0,3,6,9,12],[0,3,6,9]),4:([6,9,12,14,16],[7,10,13,16])}[POS]
lab('Lmain')
itertop()
pre=[f's_add_u32 s{sCnt}, s{sCnt}, 1', f's_mov_b32 s{sDl}, {SLOT}', f's_mov_b32 s{sDm}, {SLOT}',
     f's_and_b32 s{t0}, s{sCnt}, 3', f's_cselect_b32 s{sDl}, s{sDl}, {-3*SLOT}', f's_cmp_eq_u32 s{t0}, 1', f's_cselect_b32 s{sDm}, {-3*SLOT}, s{sDm}']
eflag=[f's_cmp_eq_u32 s{sCnt}, {3 if HALF else 2}','s_cbranch_scc0 Lnoef','s_mov_b64 exec, 1',f'buffer_store_dword v212, v217, {srd(sWS)}, 0 offen sc1','s_mov_b64 exec, -1','Lnoef:']
ad=adds(f's{sDl}')
R2=[(0,ad[0]),(0,ad[1]),(1,ad[2]),(1,ad[3]),(2,ad[4]),(2,ad[5]),(3,ad[6])]+[(i+2,r) for i,r in enumerate(reads(FX,0))]
if HALF:
    preH=pre+[f's_mov_b32 s{t1}, {SLOT}', f's_cmp_eq_u32 s{t0}, 2', f's_cselect_b32 s{t1}, {-3*SLOT}, s{t1}']+advB(f's{t1}')
    pfl=([[f's_cmp_eq_u32 s{sCnt}, {10-LEAD}','s_cbranch_scc0 Lpfk','v_mov_b32 v98, 0','Lpfk:']+pf()] if PFX else [])
    if PW:
        pfl=[[f's_movk_i32 s{t2}, 0', f's_cmp_eq_u32 s{sCnt}, {PW+1}', f's_cselect_b32 s{t2}, s{t2}, {OOB}', f'buffer_load_dword v99, v98, {srd(sWR)}, s{t2} offen', f'buffer_load_dword v99, v98, {srd(sWI)}, s{t2} offen']]
    block(mfmas(FX),list(enumerate(reads(FY,1))),[dmaB(i) for i in range(5)]+[preH]+pfl,PB_+[17,18])
    I(f's_waitcnt vmcnt({11 if PFX else (13 if PW else 9)}) lgkmcnt(0)'); I('s_barrier')
    block(mfmas(FY),R2,[dmaA(i) for i in range(4)]+[advA(f's{sDm}'),eflag],PA_+[18,19])
else:
    block(mfmas(FX),list(enumerate(reads(FY,1))),[dmaA(i) for i in range(4)]+[pre],[1,6,11,16,18])
    I('s_waitcnt vmcnt(13) lgkmcnt(0)'); I('s_barrier')
    block(mfmas(FY),R2,[dmaB(i) for i in range(5)]+[dma_adv(f's{sDm}'),eflag],[1,5,9,13,17,18,19])
I(f's_cmp_lt_u32 s{sCnt}, 7'); I('s_cbranch_scc1 Lmain')
def wload(base,vp,vm,vm0,i,which):
    mh,r=i>>2,i&3; sb=(sB0,sB1)[mh]
    if which==0:
        return [f's_add_u32 s{t2}, s{sb}, {64*r*642}', f'buffer_load_short_d16_hi v{base+i}, v{vp}, {srd(sWR)}, s{t2} offen {POLW}', f'buffer_load_short_d16_hi v{base+8+i}, v{vp}, {srd(sWI)}, s{t2} offen {POLW}']
    m=vm0 if i==0 else vm
    return [f's_sub_u32 s{t2}, {(1280-64*r-(256 if i==0 else 0))*642}, s{sb}', f'buffer_load_short_d16_hi v{base+16+i}, v{m}, {srd(sWR)}, s{t2} offen {POLW}', f'buffer_load_short_d16_hi v{base+24+i}, v{m}, {srd(sWI)}, s{t2} offen {POLW}']
WL=[wload(WP,vWp,vWm,vWm0,i,w) for i in range(8) for w in range(2)]
PST=[[f'buffer_store_dwordx4 v[176:179], v255, {srd(sWS)}, s86 offen sc1', 's_add_u32 s86, s86, s87', 's_add_u32 s92, s92, 1', f's_and_b32 s{t1}, s92, 3', f's_cselect_b32 s{t1}, 0, s93', f's_add_u32 s86, s86, s{t1}'] for _ in range(10)] if POI else []
pplan={(7,0):0,(7,1):4,(8,0):3,(8,1):3,(9,0):0,(9,1):0}; pl_=0
wl=0; vm=0
W3L=['v_mov_b32 v252, 0','v_mov_b32 v253, 0',f'buffer_load_short_d16_hi v252, v254, {srd(sWR)}, 0 offen offset:640 {POLW}',f'buffer_load_short_d16_hi v253, v254, {srd(sWI)}, 0 offen offset:640 {POLW}']
FLG=[f'buffer_load_dword v198, v196, {srd(sWS)}, 0 offen sc1', f'buffer_load_dword v199, v197, {srd(sWS)}, 0 offen sc1']
plan={16:{(7,0):0,(7,1):3,(8,0):4,(8,1):4,(9,0):3,(9,1):2},8:{(7,0):0,(7,1):1,(8,0):2,(8,1):2,(9,0):2,(9,1):1},10:{(7,0):0,(7,1):2,(8,0):2,(8,1):2,(9,0):2,(9,1):2},0:{(7,0):0,(7,1):0,(8,0):0,(8,1):0,(9,0):0,(9,1):0},6:{(7,0):0,(7,1):2,(8,0):2,(8,1):2,(9,0):0,(9,1):0}}[WS1]
def pos(n,a=2,b=17): return [a+(b-a)*i//max(n-1,1) for i in range(n)]
for s_ in (7,8,9):
    itertop(s_)
    X=WL[wl:wl+plan[(s_,0)]]; wl+=plan[(s_,0)]
    X=PST[pl_:pl_+pplan[(s_,0)]]+X; pl_+=len(PST[pl_:pl_+pplan[(s_,0)]])
    if s_==7: X=([dmaB(i) for i in range(5)] if HALF else [])+[FLG]+X
    block(mfmas(FX),list(enumerate(reads(FY,1))),X,pos(len(X)))
    if s_==7: I(f's_waitcnt vmcnt({11+2*wl+(1 if PFX else (2 if PW else 0))}) lgkmcnt(0)')
    elif s_==8: I(f's_waitcnt vmcnt({2*wl+pl_}) lgkmcnt(0)')
    else: I('s_waitcnt lgkmcnt(0)')
    I('s_barrier')
    if s_<9:
        ad=adds(SLOT if s_==8 else -3*SLOT)
        R2=[(0,ad[0]),(0,ad[1]),(1,ad[2]),(1,ad[3]),(2,ad[4]),(2,ad[5]),(3,ad[6])]+[(i+2,r) for i,r in enumerate(reads(FX,0))]
    else: R2=[]
    X=WL[wl:wl+plan[(s_,1)]]; wl+=plan[(s_,1)]
    X=PST[pl_:pl_+pplan[(s_,1)]]+X; pl_+=len(PST[pl_:pl_+pplan[(s_,1)]])
    if s_==9: X=X+[W3L]
    block(mfmas(FY),R2,X,pos(len(X),3,18 if s_==9 else 16))
assert wl==WS1
I(f's_mov_b32 s{sAo}, 0x3fb8aa3b'); I(f's_mov_b32 s{sAo+1}, 0x358637bd')
I(f'v_cmp_ne_u32 vcc, s{sTag}, v198'); I(f'v_cmp_ne_u32 s[{t4}:{t5}], s{sTag}, v199'); I(f's_or_b64 vcc, vcc, s[{t4}:{t5}]'); I('s_cbranch_vccz Leok')
poll([196,197],198)
lab('Leok')
I('s_nop 3')
stamp(14)
def acc(mt,nt,r=0,n=1): return v(ACC+(mt*5+nt)*4+r,n)
def phi2(dst,src,tmp):
    I(f'v_pk_mul_f32 {v(tmp,2)}, {v(src,2)}, s[{sAo}:{sAo+1}] op_sel_hi:[1,0]')
    I(f'v_exp_f32 v{tmp}, v{tmp} clamp'); I(f'v_exp_f32 v{tmp+1}, v{tmp+1} clamp')
    I(f'v_max_f32 v{dst}, s{sAo+1}, v{src}'); I(f'v_max_f32 v{dst+1}, s{sAo+1}, v{src+1}')
    I(f'v_pk_add_f32 {v(dst,2)}, {v(dst,2)}, {v(tmp,2)}')
def bl(i,AB):
    ks,nt=divmod(i,5)
    L=[f'buffer_load_dwordx4 {a_(AB+4*i,4)}, v{218 if nt<4 else 219}, {srd(sWS)}, s{sGo} offen offset:{1024*(nt%4)} sc1']
    return L+([f's_add_u32 s{sGo}, s{sGo}, 40960', f's_cmp_eq_u32 s{sGo}, s{sGe}', f's_cselect_b32 s{sGo}, s{sGb}, s{sGo}'] if nt==4 else [])
def bls(a,b,AB=0): return [bl(i,AB) for i in range(a,b)]
I(f's_cmp_eq_u32 s{sTyp}, 0'); I('s_cbranch_scc0 LepiFQ')
PK=100; VV=124; DD=148; PAIRS=TB.PAIRS
NB0=E('NB0',14); NB1=E('NB1',14)
def kvepi():
    for nt in (2,3,4):
        for mt in range(4):
            for p in range(2): I(f'v_cvt_pk_bf16_f32 v{VV+(nt-2)*8+mt*2+p}, {acc(mt,nt,2*p)}, {acc(mt,nt,2*p+1)}')
    I(f'v_cmp_gt_u32 vcc, 8, v{vN}'); vconst(4,0x3f803f80)
    I(f's_lshl_b32 s{t0}, s{sW}, 12'); sadd(t0,t0,L_RED)
    for i in range(8): I(f'v_cndmask_b32 v{VV+i}, v{VV+i}, v4, vcc')
    for i in range(8): I(f'v_add_u32 v{vKA+i}, s{t0}, v{vKA+i}')
    for nt in range(3):
        for mt in range(4):
            for p in range(2):
                b=ACC+(mt*5+nt)*4+2*p
                phi2(b,b,4+2*p); I(f'v_cvt_pk_bf16_f32 v{PK+nt*8+mt*2+p}, v{b}, v{b+1}')
        for kb in range(2):
            for i,(a,b) in enumerate(PAIRS):
                if a==nt: I(f'{MF} {v(DD+4*i,4)}, {v(PK+a*8+4*kb,4)}, {v(VV+(b-2)*8+4*kb,4)}, {"0" if kb==0 else v(DD+4*i,4)}')
        if nt>0:
            for i,(a,b) in enumerate(PAIRS):
                if a==nt-1: I(f'ds_write_b128 v{vKA+i}, {v(DD+4*i,4)}')
P=cap(kvepi)
def grp_if_b(L):
    uid[0]+=1; n=f'Lb{uid[0]}'
    return [f's_cmp_eq_u32 s{sWc}, 0', f's_cbranch_scc1 {n}']+L+[n+':']
NBE=E('NBE',0)
weave(P,[grp_if_b(bls(i,i+2)) for i in range(0,NBE,2)],0,len(P)*E('EPIF',70)//100)
for i,(a,b) in enumerate(PAIRS):
    if a==2: I(f'ds_write_b128 v{vKA+i}, {v(DD+4*i,4)}')
I('s_waitcnt lgkmcnt(0)'); I('s_barrier')
for i in range(7): I(f'ds_read2st64_b32 {v(16+2*i,2)}, v{vE0} offset0:{i} offset1:{i+16}')
for i in range(7):
    I(f's_waitcnt lgkmcnt({6-i})'); I(f'v_add_f32 v{16+2*i}, v{16+2*i}, v{17+2*i}')
    I(f'buffer_atomic_add_f32 v{16+2*i}, v{vE0+1+(i==6)}, {srd(sWS)}, 0 offen offset:{256*i} {ATP}')
stamp(15)
I('s_branch Lp2a')
lab('LepiFQ')
I(f's_cmp_eq_u32 s{sWc}, 0'); I('s_cbranch_scc0 LepiQ')
XB=100; YD=140
def xcv(nt):
    for mt in range(4):
        for p in range(2): I(f'v_cvt_pk_bf16_f32 v{XB+nt*8+mt*2+p}, {acc(mt,nt,2*p)}, {acc(mt,nt,2*p+1)}')
def ymf(nt):
    for kb in range(2):
        for jt in range(4):
            d=v(YD+(nt&1)*16+4*jt,4)
            I(f'{MF} {d}, {a_(120+(jt*2+kb)*4,4)}, {v(XB+nt*8+4*kb,4)}, {"0" if kb==0 else d}')
def yst(nt):
    for jt in range(4):
        b=YD+(nt&1)*16+4*jt; o=172+jt*2
        I([f'v_cvt_pk_bf16_f32 v{o}, v{b}, v{b+1}', f'v_cvt_pk_bf16_f32 v{o+1}, v{b+2}, v{b+3}',
           f'buffer_store_dwordx2 {v(o,2)}, v{vE0}, {srd(sWS)}, s{t0+jt} offen offset:{128*nt} sc1'])
for jt in range(4): I(f's_mov_b32 s{t0+jt}, {4*jt*163840}')
xcv(0)
weave(cap(ymf,0),cap(xcv,1))
for nt in range(5):
    if nt<4:
        F_=(cap(xcv,nt+2) if nt<3 else [])
        Y_=cap(yst,nt)
        M=cap(ymf,nt+1)
        for i,m in enumerate(M):
            I(m)
            if i<4: emit(F_[2*i:2*i+2])
            else: emit(Y_[i-4])
    else: yst(nt)
stamp(15)
I('s_waitcnt vmcnt(0)'); setflag(vE0+3,4)
stamp(16)
TCH=E('TCH',0)
I(f's_cmp_eq_u32 s{sAct}, 0'); I(f's_cbranch_scc{0 if TCH else 1} {"Lact" if TCH else "Lp3"}')
if TCH:
    I(f's_lshr_b32 s{t0}, s2, 6'); I(f's_lshl_b32 s{t0}, s{t0}, 2'); I(f's_bfe_u32 s{t1}, s2, 0x10003'); I(f's_lshl_b32 s{t1}, s{t1}, 1'); sacc(t0,t1); sacc(t0,sWr); smul(t0,t0,200)
    I(f's_and_b32 s{t1}, s2, 1'); smul(t1,t1,20480); sadd(t1,t1,WS_WOF)
    for q in range(4):
        I(f'v_add_u32 v4, {50*q}, v{vL}'); I(f'v_min_u32 v4, {50*q+49}, v4'); I(f'v_add_u32 v4, s{t0}, v4')
        I(f'v_mul_u32_u24 v5, 0x6667, v4'); I(f'v_lshrrev_b32 v5, 22, v5'); I(f'v_mul_u32_u24 v5, 20480, v5'); I(f'v_lshl_add_u32 v4, v4, 7, v5')
        I(f'buffer_load_dword v{232+q}, v4, {srd(sWS)}, s{t1} offen sc1')
    I('s_branch Lp3')
    lab('Lact')
T1,T2,W3,YF,EF,TM,PQ=16,48,112,144,160,80,184
vY,vF,vXW,vXR,vRS,vLF=8,9,10,11,12,13
def p2addr():
    smul(t0,sCh,32*0x334); sadd(t1,t0,31*0x334); I(f's_lshr_b32 s{t0}, s{t0}, 16'); I(f's_lshr_b32 s{t1}, s{t1}, 16')
    I(f'v_mov_b32 v4, s{t0}'); I(f'v_mov_b32 v5, s{t1}'); I(f'v_cmp_gt_u32 vcc, 32, v{vL}'); I(f'v_cndmask_b32 v4, v5, v4, vcc')
    I(f'v_and_b32 v5, 31, v{vL}'); I(f'v_lshl_add_u32 v4, v4, 5, v5'); I(f'v_lshlrev_b32 v4, 7, v4'); I(f'v_add_u32 v{vF}, {WS_FL+FL_Y*128}, v4')
    I(f's_lshr_b32 s{t0}, s{sT}, 1'); smul(t0,t0,163840); I(f's_lshl_b32 s{t1}, s{sCh}, 8'); sacc(t0,t1); I(f's_lshl_b32 s{t1}, s{sWr}, 2'); sacc(t0,t1)
    I(f'v_mul_u32_u24 v4, 20480, v{vG}'); I(f'v_lshl_add_u32 v4, v{vN}, 3, v4'); I(f'v_add_u32 v{vY}, s{t0}, v4')
    smul(t0,sWc,8704); sadd(t0,t0,L_XCH[0])
    I(f's_lshl_b32 s{t1}, s{sWr}, 5'); sacc(t1,t0)
    I(f'v_mul_u32_u24 v{vXW}, 272, v{vN}'); I(f'v_lshl_add_u32 v{vXW}, v{vG}, 6, v{vXW}'); I(f'v_add_u32 v{vXW}, s{t1}, v{vXW}')
    smul(t1,sWr,16*272); sacc(t1,t0)
    I(f'v_mul_u32_u24 v{vXR}, 272, v{vG}'); I(f'v_lshl_add_u32 v{vXR}, v{vN}, 4, v{vXR}'); I(f'v_add_u32 v{vXR}, s{t1}, v{vXR}')
    smul(t0,sWr,16*81920); I(f's_lshl_b32 s{t1}, s{sCh}, 12'); sacc(t0,t1)
    I(f's_lshr_b32 s{t1}, s{sT}, 1'); I(f's_lshl_b32 s{t1}, s{t1}, 8'); sacc(t0,t1); sadd(t0,t0,WS_R)
    I(f's_mov_b32 s{t1}, 81920'); I(f'v_lshlrev_b32 v{vRS}, 4, v{vN}'); I(f'v_mad_u32_u24 v{vRS}, v{vG}, s{t1}, v{vRS}'); I(f'v_add_u32 v{vRS}, s{t0}, v{vRS}')
    I(f's_lshl_b32 s{t0}, s{sWc}, 2'); sadd(t0,t0,L_FLG); I(f'v_mov_b32 v{vLF}, s{t0}')
    I([f's_cmp_ge_u32 s{sCh}, 10', f's_cselect_b32 s{t3}, 10, 0', f's_cselect_b32 s{t4}, 96, 0']); I(f's_sub_u32 s{t3}, s{sCh}, s{t3}')
    I(f's_lshl_b32 s{t0}, s{t3}, 3'); sacc(t0,sGrp); sacc(t0,t4)
    I(f's_lshl_b32 s{t1}, s{t3}, 4'); I(f's_lshr_b32 s{t2}, s{sT}, 1'); sacc(t1,t2); I(f's_sub_u32 s{t1}, s{t1}, 64'); sacc(t1,t4)
    I([f's_cmp_eq_u32 s{sTyp}, 0', f's_cselect_b32 s{t0}, s{t0}, s{t1}', f's_cselect_b32 s{sAct}, 3, 1'])
    I(f's_and_b32 s{t1}, s{t0}, 1'); I(f's_lshl_b32 s{t1}, s{t1}, 2'); I(f's_lshr_b32 s{t0}, s{t0}, 1'); I(f's_lshl_b32 s{t0}, s{t0}, 7'); sacc(t0,t1); sadd(t0,t0,WS_FL+FL_R*128); I(f'v_mov_b32 v15, s{t0}')
lab('Lp2a')
assert WS1==16
W2=[]
TSP=E('TSP',80)
def pub1(n):
    I(f's_cmp_eq_u32 s{sTyp}, 0'); I(f's_cbranch_scc0 Lnp{n}')
    I('s_waitcnt vmcnt(0)'); setflag(vE0+3,8); stamp(16); lab(f'Lnp{n}')
I(f's_cmp_eq_u32 s{sT}, 0'); I('s_cbranch_scc0 Ldotg'); pub1(0); I('s_branch Lskiptg')
lab('Ldotg'); k_=len(TGL)*TSP//100
emit(TGL[:k_]); pub1(1); emit(TGL[k_:]); lab('Lskiptg')
p2addr()
lab('Lp2b')
emit(W2)
I(f's_cmp_eq_u32 s{sCh}, 0'); I('s_cbranch_scc0 Lnosp1')
I(f's_lshl_b32 s{t0}, s{sW}, 9'); sadd(t0,t0,L_PP)
I(f'v_lshlrev_b32 v4, 2, v{vL}'); I(f'v_add_u32 v4, s{t0}, v4'); I(f'v_lshlrev_b32 v5, 4, v{vG}'); I(f'v_add_u32 v5, s{t0}, v5')
I(f'ds_write_b32 v4, v252'); I(f'ds_write_b32 v4, v253 offset:256')
for arr,off in ((0,0),(8,256),(16,128),(24,384)):
    for mh in range(2): I(f'ds_read_b128 {v(W3+arr+4*mh,4)}, v5 offset:{off+64*mh}')
lab('Lnosp1')
I('s_waitcnt lgkmcnt(0)')
stamp(17)
poll([vF],14)
stamp(18)
for ks in range(2):
    for i in range(4):
        I(f's_mov_b32 s{t0}, {(16*ks+i)*5120}')
        for ri in range(2): I(f'buffer_load_dword v{YF+(ri*2+ks)*4+i}, v{vY}, {srd(sWS)}, s{t0} offen offset:{128*ri} {HS}')
for ks in range(2):
    I(f's_waitcnt vmcnt({8-8*ks})')
    for mt in (0,2,1,3):
        for ri in range(2):
            d=v(EF+(mt*2+ri)*4,4)
            I(f'{MF} {d}, {a_(AT1+(mt*2+ks)*4,4)}, {v(YF+(ri*2+ks)*4,4)}, {"0" if ks==0 else d}')
stamp(19)
EF2=EF
def pk(op,d,*s,neg=None):
    t=f'v_pk_{op}_f32 {v(d,2)}, '+', '.join(v(x,2) for x in s)
    if neg: t+=f' neg_lo:{neg} neg_hi:{neg}'
    I(t)
PQ=16
Pre,Pim,Qre,Qim=PQ,PQ+8,PQ+16,PQ+24
def EFr(typ,mh,ri,p): return EF+((typ*2+mh)*2+ri)*4+2*p
for mh in range(2):
    for p in range(2):
        o=mh*4+2*p; Er,Ei,Fr,Fi=EFr(0,mh,0,p),EFr(0,mh,1,p),EFr(1,mh,0,p),EFr(1,mh,1,p)
        wpr,wpi,wmr,wmi=WP+o,WP+8+o,WP+16+o,WP+24+o
        T=TM+(p*16)
        pk('add',T,Er,Fi); pk('add',T+2,Ei,Fr,neg='[0,1]'); pk('add',T+4,Er,Fi,neg='[0,1]'); pk('add',T+6,Ei,Fr)
        pk('mul',T+8,T,wpr); pk('mul',T+10,T,wpi); pk('mul',T+12,T+4,wmr); pk('mul',T+14,T+4,wmi)
        pk('fma',T+8,T+2,wpi,T+8,neg='[1,0,0]'); pk('fma',T+10,T+2,wpr,T+10); pk('fma',T+12,T+6,wmi,T+12,neg='[1,0,0]'); pk('fma',T+14,T+6,wmr,T+14)
        pk('add',Pre+o,T+8,T+12); pk('add',Pim+o,T+10,T+14); pk('add',Qre+o,T+14,T+10,neg='[0,1]'); pk('add',Qim+o,T+8,T+12,neg='[0,1]')
I(f's_cmp_eq_u32 s{sT}, 0'); I('s_cbranch_scc0 Lnot0')
I('s_mov_b64 exec, 0xffff')
Er,Ei,Fr,Fi=EFr(0,0,0,0),EFr(0,0,1,0),EFr(1,0,0,0),EFr(1,0,1,0)
I(f'v_mul_f32 v{Pre}, v{Er}, v{WP}'); I(f'v_fma_f32 v{Pre}, -v{Ei}, v{WP+8}, v{Pre}')
I(f'v_mul_f32 v{Pim}, v{Er}, v{WP+8}'); I(f'v_fma_f32 v{Pim}, v{Ei}, v{WP}, v{Pim}')
I(f'v_mul_f32 v{Qre}, v{Fr}, v{WP+16}'); I(f'v_fma_f32 v{Qre}, -v{Fi}, v{WP+24}, v{Qre}')
I(f'v_mul_f32 v{Qim}, v{Fr}, v{WP+24}'); I(f'v_fma_f32 v{Qim}, v{Fi}, v{WP+16}, v{Qim}')
I('s_mov_b64 exec, -1')
lab('Lnot0')
I(f's_cmp_eq_u32 s{sCh}, 0'); I('s_cbranch_scc0 Lnosp2')
I(f's_mov_b32 exec_lo, 0x10001'); I(f's_mov_b32 exec_hi, 0x10001')
for mh in range(2):
    for p in range(2):
        o=mh*4+2*p; Er,Ei,Fr,Fi=EFr(0,mh,0,p),EFr(0,mh,1,p),EFr(1,mh,0,p),EFr(1,mh,1,p)
        T=TM
        pk('add',T,WP+o,WP+16+o); pk('add',T+2,WP+8+o,WP+24+o,neg='[0,1]'); pk('add',T+4,W3+o,W3+16+o); pk('add',T+6,W3+8+o,W3+24+o,neg='[0,1]')
        for q in range(4): I(f'v_pk_mul_f32 {v(T+2*q,2)}, {v(T+2*q,2)}, 0.5')
        pk('mul',Pre+o,Er,T); pk('mul',Qre+o,Fr,T); pk('mul',Pim+o,Ei,T+4); pk('mul',Qim+o,Fi,T+4)
        pk('fma',Pre+o,Fr,T+2,Pre+o); pk('fma',Qre+o,Er,T+2,Qre+o,neg='[1,0,0]'); pk('fma',Pim+o,Fi,T+6,Pim+o); pk('fma',Qim+o,Ei,T+6,Qim+o,neg='[1,0,0]')
I(f's_cmp_eq_u32 s{sT}, 0'); I('s_cbranch_scc0 Lnocorner')
I('s_mov_b64 exec, 1')
Er,Ei,Fr,Fi=EFr(0,0,0,0),EFr(0,0,1,0),EFr(1,0,0,0),EFr(1,0,1,0)
for d,x,w in ((Pre,Er,WP),(Pim,Ei,W3),(Qre,Fr,WP+16),(Qim,Fi,W3+16)):
    I(f'v_mul_f32 v{d}, v{x}, v{w}'); I(f'v_mul_f32 v{d}, 0.5, v{d}')
lab('Lnocorner')
I('s_mov_b64 exec, -1')
lab('Lnosp2')
for mh in range(2):
    for ri in range(2):
        for q,src in enumerate(((Pre,Pim)[ri],(Qre,Qim)[ri])):
            for p in range(2): I(f'v_cvt_pk_bf16_f32 v{YF+(ri*2+mh)*4+2*q+p}, v{src+mh*4+2*p}, v{src+mh*4+2*p+1}')
for ks in range(2):
    for nt in range(4):
        for ri in range(2):
            d=v(EF+(nt*2+ri)*4,4)
            I(f'{MF} {d}, {v(YF+(ri*2+ks)*4,4)}, {a_(AT2+(nt*2+ks)*4,4)}, {"0" if ks==0 else d}')
for nt in range(4):
    for ri in range(2):
        for p in range(2): I(f'v_cvt_pk_bf16_f32 v{TM+nt*4+ri*2+p}, v{EF+(nt*2+ri)*4+2*p}, v{EF+(nt*2+ri)*4+2*p+1}')
    I(f'ds_write_b128 v{vXW}, {v(TM+nt*4,4)} offset:{(nt&1)*16*272+(nt>>1)*16}')
stamp(20)
ldssync(vLF,14)
for i in range(4): I(f'ds_read_b128 {v(TM+16+4*i,4)}, v{vXR} offset:{4*272*i}')
for i in range(4):
    I(f's_mov_b32 s{t0}, {4*81920*i}'); I(f's_waitcnt lgkmcnt({3-i})')
    I(f'buffer_store_dwordx4 {v(TM+16+4*i,4)}, v{vRS}, {srd(sWS)}, s{t0} offen sc1')
vconst(10,L_FLG+8); vconst(11,1)
stamp(21)
if not POI: I('s_waitcnt vmcnt(0)')
I('s_mov_b64 exec, 1'); I('ds_add_rtn_u32 v11, v10, v11'); I('s_mov_b64 exec, -1'); I('s_waitcnt lgkmcnt(0)')
I(f'v_readfirstlane_b32 s{t0}, v11'); I(f's_cmp_eq_u32 s{t0}, s{sAct}'); I('s_cbranch_scc0 Lnopub')
setflag(15,12)
lab('Lnopub')
stamp(22)
I(f's_cmp_eq_u32 s{sWc}, 0'); I('s_cbranch_scc1 Lp3')
if E('WGW',1):
    I(f's_mov_b32 s{sTo}, 0x400000'); lab('Lwgw')
    I(f'ds_read_b32 v11, v10'); I('s_waitcnt lgkmcnt(0)'); I(f'v_cmp_ge_u32 vcc, s{sAct}, v11')
    I(f's_cbranch_vccz Lwb'); I(f's_sub_u32 s{sTo}, s{sTo}, 1'); I(f's_cbranch_scc0 Lwgw')
lab('Lwb')
NBE=E('NBE',0)
if not E('NOWB',0): emit(bls(NBE,5*KB))
I('s_branch Lp3')
lab('LepiQ')
vPW,vPR,vKR,vOS,vO5,vKW,vKP=4,5,100,104,106,108,112
I(f's_lshl_b32 s{t1}, s{sRb}, 1'); sacc(t1,sWr); smul(t2,t1,1280); smul(t3,sGrp,8*40960); sacc(t2,t3)
I(f'v_and_b32 v8, 7, v{vL}'); I(f'v_lshlrev_b32 v8, 4, v8'); I(f'v_lshrrev_b32 v9, 3, v{vL}'); I(f'v_mul_u32_u24 v10, 40960, v9'); I(f'v_add_u32 v10, v10, v8')
GX=120; GW=160
I(f'v_mov_b32 v115, v10'); I(f'v_mov_b32 v116, v8'); I(f's_mov_b32 s{sCnt}, s{t2}')
GLD=[[f'buffer_load_dwordx4 {v(GX+4*j,4)}, v115, {srd(sX)}, s{sCnt} offen offset:{128*j}', f'buffer_load_dwordx4 {v(GW+4*j,4)}, v116, {srd(sGATE)}, 0 offen offset:{128*j}'] for j in range(10)]
I(f's_lshl_b32 s{t2}, s{t1}, 8'); I(f's_lshl_b32 s{t3}, s{sGrp}, 5'); sacc(t2,t3); sadd(t2,t2,WS_G)
I(f'v_lshlrev_b32 v9, 2, v9'); I(f'v_add_u32 v9, s{t2}, v9'); vconst(10,OOB); I(f'v_cmp_eq_u32 vcc, 0, v8'); I(f'v_cndmask_b32 v114, v10, v9, vcc')
smul(t0,sWr,L_PQ[1]-L_PQ[0]); sadd(t0,t0,L_PQ[0])
I(f'v_mul_u32_u24 v{vPW}, {PQS}, v{vN}'); I(f'v_lshl_add_u32 v{vPW}, v{vG}, 3, v{vPW}'); I(f'v_add_u32 v{vPW}, s{t0}, v{vPW}')
def qepi():
    for nt in range(5):
        for mt in range(4):
            b=ACC+(mt*5+nt)*4
            phi2(b,b,8); phi2(b+2,b+2,10)
            I(f'v_cvt_pk_bf16_f32 v{b}, v{b}, v{b+1}'); I(f'v_cvt_pk_bf16_f32 v{b+1}, v{b+2}, v{b+3}')
            I(f'ds_write_b64 v{vPW}, {v(b,2)} offset:{16*nt*PQS+32*mt}')
QW=E('QW',20)
P_=cap(qepi)
weave(P_,GLD+bls(0,QW),len(P_)*E('QS',30)//100,len(P_))
stamp(15)
I(f's_waitcnt vmcnt({QW})')
stamp(16)
vconst(8,0); vconst(9,0)
for i in range(40): I(f'v_dot2_f32_bf16 v{8+(i&1)}, v{GX+i}, v{GW+i}, v{8+(i&1)}')
I('s_nop 2'); I('v_add_f32 v8, v8, v9')
for ctl in ('quad_perm:[1,0,3,2]','quad_perm:[2,3,0,1]','row_half_mirror'):
    I('s_nop 1'); I(f'v_add_f32_dpp v8, v8, v8 {ctl} row_mask:0xf bank_mask:0xf')
I('v_cvt_pk_bf16_f32 v8, v8, v8'); I('v_and_b32 v8, 0xffff0000, v8'); I(f'v_mul_f32 v8, s{sAo}, v8'); I('v_exp_f32 v8, -v8'); I('v_add_f32 v8, 1.0, v8'); I('v_rcp_f32 v8, v8')
I('v_cvt_pk_bf16_f32 v8, v8, v8'); I('v_and_b32 v8, 0xffff0000, v8')
I(f'buffer_store_dword v8, v114, {srd(sWS)}, 0 offen sc1')
I(f'v_bfe_u32 v8, v{vL}, 2, 2'); I(f'v_lshl_add_u32 v8, v{vG}, 3, v8'); I(f'v_and_b32 v9, 3, v{vL}'); I(f'v_lshlrev_b32 v9, 3, v9'); I(f'v_add_u32 v9, s{t0}, v9')
for hh in range(2):
    I(f'v_add_u32 v10, {4*hh}, v8'); I(f'v_min_u32 v10, 19, v10'); I(f'v_mul_u32_u24 v10, {PQS}, v10'); I(f'v_add_u32 v{vPR+hh}, v10, v9')
smul(t1,sWr,5504); sadd(t1,t1,L_KVI)
for i in range(4): vconst(8+i,0)
I(f'v_add_u32 v12, s{t1}, v218')
for i in range(5): I(f'ds_write_b128 v12, v[8:11] offset:{1024*i}')
I(f's_mov_b64 exec, 0xffffff'); I(f'ds_write_b128 v12, v[8:11] offset:5120'); I('s_mov_b64 exec, -1')
for i in range(4):
    I(f'v_add_u32 v8, {64*i}, v{vL}'); I(f'v_mul_u32_u24 v9, 0xc31, v8'); I(f'v_lshrrev_b32 v9, 16, v9')
    I(f'v_mul_u32_u24 v10, 21, v9'); I(f'v_sub_u32 v10, v8, v10')
    I(f'v_cmp_lt_u32 vcc, 4, v9'); I(f'v_cndmask_b32 v11, 0, 1, vcc')
    I(f'v_mad_u32_u24 v10, v11, 21, v10'); I(f'v_mul_u32_u24 v11, 5, v11'); I(f'v_sub_u32 v9, v9, v11')
    I(f'v_lshlrev_b32 v10, 6, v10'); I(f'v_lshl_add_u32 v10, v9, 3, v10'); I(f'v_add_u32 v{vKW+i}, s{t1}, v10')
vconst(11,L_PP); I(f'v_cmp_gt_u32 vcc, 18, v{vL}'); I(f'v_cndmask_b32 v{vKW+3}, v11, v{vKW+3}, vcc')
I(f'v_lshlrev_b32 v8, 4, v{vG}'); I(f'v_add_u32 v8, s{t1}, v8')
I(f'v_lshl_add_u32 v{vKR}, v{vN}, 6, v8'); I(f'v_add_u32 v{vKR+1}, {21*64}, v{vKR}')
I(f'v_and_b32 v9, 3, v{vN}'); I(f'v_lshrrev_b32 v10, 2, v{vN}')
for hb in range(2):
    I(f'v_and_b32 v11, 1, v10'); I(f'v_lshl_add_u32 v11, v11, 1, v9'); I(f'v_add_u32 v11, {21*hb+16}, v11')
    I(f'v_lshrrev_b32 v12, 1, v10'); I(f'v_cmp_eq_u32 vcc, {hb}, v12'); I(f'v_cmp_gt_u32 s[{t4}:{t5}], 2, v9'); I(f's_and_b64 vcc, vcc, s[{t4}:{t5}]')
    I(f'v_cndmask_b32 v11, 42, v11, vcc'); I(f'v_cmp_eq_u32 vcc, {2+hb}, v9'); I(f'v_cndmask_b32 v11, v11, {21*hb+20}, vcc')
    I(f'v_lshl_add_u32 v{vKR+2+hb}, v11, 6, v8')
I(f's_lshl_b32 s{t1}, s{sRb}, 1'); sacc(t1,sWr); smul(t2,t1,81920); sadd(t2,t2,WS_O)
smul(t3,sGrp,10)
for hp in range(2):
    I(f'v_add_u32 v8, {5*hp}, v{vG}'); I(f'v_add_u32 v8, s{t3}, v8')
    I(f'v_lshrrev_b32 v9, 2, v8'); I(f'v_and_b32 v8, 3, v8'); I(f'v_lshlrev_b32 v9, 12, v9'); I(f'v_lshl_add_u32 v9, v8, 8, v9')
    I(f'v_lshl_add_u32 v9, v{vN}, 4, v9'); I(f'v_add_u32 v{vOS+hp}, s{t2}, v9')
    sadd(t4,t3,5*hp+4); I(f's_lshr_b32 s{t5}, s{t4}, 2'); I(f's_lshl_b32 s{t5}, s{t5}, 12'); I(f's_and_b32 s{t4}, s{t4}, 3'); I(f's_lshl_b32 s{t4}, s{t4}, 8')
    sacc(t4,t5); sacc(t4,t2)
    I(f'v_lshlrev_b32 v9, 10, v{vG}'); I(f'v_lshl_add_u32 v9, v{vN}, 4, v9'); I(f'v_add_u32 v{vO5+hp}, s{t4}, v9')
I(f's_lshl_b32 s{t1}, s{t1}, 3'); sacc(t1,sGrp); I(f's_lshl_b32 s{t1}, s{t1}, 7'); sadd(t1,t1,WS_FL+FL_O*128); I(f'v_mov_b32 v15, s{t1}')
I(f's_lshl_b32 s{t1}, s{sGrp}, 13'); sadd(t1,t1,WS_KVA)
I(f'v_add_u32 v{vKP}, s{t1}, v218'); vconst(9,OOB); I(f'v_cmp_gt_u32 vcc, 18, v{vL}'); I(f'v_cndmask_b32 v{vKP+1}, v9, v{vKP}, vcc')
I(f's_lshl_b32 s{t1}, s{sGrp}, 6')
I(f'v_add_u32 v8, s{t1}, v{vL}'); I(f'v_lshlrev_b32 v8, 7, v8'); I(f'v_add_u32 v13, {WS_FL+FL_KV*128}, v8')
KF=16; QF=120; OD=48; O5=184; PB=48
I('s_waitcnt lgkmcnt(0)')
for u in range(8):
    rt,hp=u>>1,u&1
    for hb in range(2):
        for hh in range(2): I(f'ds_read_b64_tr_b16 {v(QF+u*8+hb*4+2*hh,2)}, v{vPR+hh} offset:{(2*hp+hb)*20*PQS+32*rt}')
    if u%2==1: I('s_waitcnt lgkmcnt(4)')
I(f's_mov_b32 s{sEx}, -1'); I(f's_mov_b32 s{sEx+1}, 0'); I(f's_movk_i32 s{t0}, 0x1000')
stamp(20)
NQ=E('NQ',5*KB)
emit(bls(QW,NQ))
stamp(17)
poll([13],9)
stamp(18)
for hp in range(2):
    for i in range(4): I(f'buffer_load_dwordx4 {v(PB+hp*16+4*i,4)}, v{vKP+(i==3)}, {srd(sWS)}, {"0" if hp==0 else "s%d"%t0} offen offset:{1024*i} sc1')
for hp in range(2):
    for i in range(4):
        b=PB+hp*16+4*i
        I(f's_waitcnt vmcnt({7-hp*4-i})')
        I(f'v_cvt_pk_bf16_f32 v{b}, v{b}, v{b+1}'); I(f'v_cvt_pk_bf16_f32 v{b+1}, v{b+2}, v{b+3}')
        I(f'ds_write_b64 v{vKW+i}, {v(b,2)} offset:{2752*hp}')
for hp in range(2):
    for j in (2,0,3,1): I(f'ds_read_b128 {v(KF+(hp*4+j)*4,4)}, v{vKR+j} offset:{2752*hp}')
stamp(19)
def omf(u):
    hp=u&1; q=QF+u*8; d=OD+(u%4)*12
    I(f'{MF} {v(d+8,4)}, {v(KF+(hp*4+2)*4,4)}, {v(q,4)}, 0')
    I(f'{MF} {v(d,4)}, {v(KF+(hp*4+0)*4,4)}, {v(q,4)}, 0')
    I(f'{MF} {v(d+8,4)}, {v(KF+(hp*4+3)*4,4)}, {v(q+4,4)}, {v(d+8,4)}')
    I(f'{MF} {v(d+4,4)}, {v(KF+(hp*4+1)*4,4)}, {v(q+4,4)}, 0')
def ofin(u):
    rt,hp=u>>1,u&1; d=OD+(u%4)*12; o=192+(u&1)*4
    I(f'v_pk_add_f32 {v(d+10,2)}, {v(d+10,2)}, s[{sAo}:{sAo+1}] op_sel:[0,1]')
    I(f'v_rcp_f32 v{d+10}, v{d+10}'); I(f'v_rcp_f32 v{d+11}, v{d+11}')
    I('s_nop 0')
    for p in range(2): I(f'v_pk_mul_f32 {v(d+2*p,2)}, {v(d+2*p,2)}, {v(d+10,2)} op_sel_hi:[1,0]')
    for p in range(2): I(f'v_pk_mul_f32 {v(d+4+2*p,2)}, {v(d+4+2*p,2)}, {v(d+10,2)} op_sel:[0,1]')
    I(f'v_cndmask_b32 v{d+10}, v{d+11}, v{d+10}, s[{sEx}:{sEx+1}]')
    for p in range(4): I(f'v_cvt_pk_bf16_f32 v{o+p}, v{d+2*p}, v{d+2*p+1}')
    I(f'buffer_store_dwordx4 {v(o,4)}, v{vOS+hp}, {srd(sWS)}, 0 offen offset:{1024*rt} sc1')
    I(f'v_pk_mul_f32 {v(d+8,2)}, {v(d+8,2)}, {v(d+10,2)} op_sel_hi:[1,0]')
    I(f'v_cvt_pk_bf16_f32 v{O5+hp*4+rt}, v{d+8}, v{d+9}')
I('s_waitcnt lgkmcnt(4)'); omf(0); I('s_waitcnt lgkmcnt(0)'); omf(1)
for u in range(8):
    if u+2<8: weave(cap(ofin,u),cap(omf,u+2))
    else: ofin(u)
for hp in range(2):
    b=O5+hp*4
    I(f'v_permlane32_swap_b32 v{b}, v{b+2}'); I(f'v_permlane32_swap_b32 v{b+1}, v{b+3}')
    I(f'v_permlane16_swap_b32 v{b}, v{b+1}'); I(f'v_permlane16_swap_b32 v{b+2}, v{b+3}')
    I(f'buffer_store_dwordx4 {v(b,4)}, v{vO5+hp}, {srd(sWS)}, 0 offen sc1')
stamp(21)
I(f'v_mov_b32 v10, s{sTag}'); I(f'v_mov_b32 v11, s{sTag}'); I('s_nop 0' if POI else 's_waitcnt vmcnt(0)'); I('s_mov_b64 exec, 1'); I(f'buffer_store_dwordx2 v[10:11], v15, {srd(sWS)}, 0 offen sc1'); I('s_mov_b64 exec, -1')
stamp(22)
emit(bls(NQ,5*KB))
lab('Lp3')
vA,vGg,vFa,vFo,vL16=4,5,8,9,6
vOA,vTW,vTR,vAR,vAW,vOW,vOW4,vOR,vOut,vSg=240,244,247,248,249,250,251,252,253,14
AD2=160
I(f'v_lshlrev_b32 v{vL16}, 4, v{vL}')
for r in range(4):
    sadd(t0,sW,r); I(f's_and_b32 s{t0}, s{t0}, 3'); I(f's_lshl_b32 s{t1}, s{t0}, 10'); I(f'v_add_u32 v{vOA+r}, s{t1}, v{vL16}')
    if r: smul(t0,t0,15360); sadd(t0,t0,L_TB+(r-1)*5120); I(f'v_add_u32 v{vTW+r-1}, s{t0}, v{vL16}')
smul(t0,sW,15360); sadd(t0,t0,L_TB); I(f'v_add_u32 v{vTR}, s{t0}, v{vL16}')
smul(t0,sW,3072); sadd(t0,t0,L_TA); I(f'v_add_u32 v{vAR}, s{t0}, v{vL16}')
smul(t0,sWr,12288); sadd(t0,t0,L_TA); I(f'v_add_u32 v{vAW}, s{t0}, v{vL16}')
I(f's_lshl_b32 s{t0}, s{sN2}, 3')
smul(t1,sRot,4*0x199a); I(f's_lshr_b32 s{t1}, s{t1}, 16'); I(f'v_add_u32 v7, s{t1}, v{vL}'); I(f'v_and_b32 v7, 7, v7'); I(f'v_add_u32 v7, s{t0}, v7'); I(f's_mov_b32 s{sT}, s{t1}'); I(f'v_lshlrev_b32 v7, 7, v7'); I(f'v_add_u32 v{vFo}, {WS_FL+FL_O*128}, v7')
vconst(15,560)
for i in range(3):
    I(f'v_add_u32 v12, {64*i}, v{vL}'); div10(13,12); I(f'v_mul_u32_u24 v14, 10, v13'); I(f'v_sub_u32 v14, v12, v14')
    I(f'v_mul_u32_u24 v13, 40960, v13'); I(f'v_lshl_add_u32 v13, v14, 4, v13'); I(f'v_cmp_lt_u32 vcc, 4, v14'); I(f'v_cndmask_b32 v14, 0, v15, vcc'); I(f'v_add_u32 v{vOut+i}, v13, v14')
vconst(12,OOB); I(f'v_cmp_gt_u32 vcc, 32, v{vL}'); I(f'v_cndmask_b32 v{vOut+2}, v12, v{vOut+2}, vcc')
smul(sB0,sW,16*40960); smul(t1,sN2,1280); sacc(sB0,t1); smul(t1,sCt,80); sacc(sB0,t1)
smul(t2,sW,2560); sadd(t2,t2,L_OUT)
I(f'v_mul_u32_u24 v12, 160, v{vN}'); I(f'v_lshl_add_u32 v12, v{vG}, 3, v12'); I(f'v_add_u32 v{vOW}, s{t2}, v12'); I(f'v_add_u32 v{vOR}, s{t2}, v{vL16}')
I(f'v_lshrrev_b32 v12, 5, v{vL}'); I(f'v_lshl_add_u32 v{vOW4}, v12, 6, v{vOW}'); I(f'v_lshlrev_b32 v12, 31, v12'); I(f'v_or_b32 v{vSg}, 0x3f800000, v12')
I(f's_lshl_b32 s{sB1}, s{sN2}, 8'); I(f's_lshl_b32 s{t1}, s{sW}, 6'); sacc(sB1,t1); sadd(sB1,sB1,WS_G)
I(f'v_lshlrev_b32 v7, 2, v{vN}')
smul(sDl,sN2,81920); I(f's_lshl_b32 s{t1}, s{sRot}, 12'); I(f's_add_u32 s{sMA}, s{sDl}, s{t1}'); sadd(sMA,sMA,WS_O); sadd(sMB,sMA,KB*4096); I(f's_lshl_b32 s{t1}, s84, 12'); I(f's_add_u32 s{sA2}, s{sMA}, s{t1}')
C3=16; PA=E('PA',3)
I(f's_cmp_eq_u32 s{sWc}, 0'); I('s_cbranch_scc0 Lp3b')
emit(bls(0,5*KA,120))
I(f'v_lshrrev_b32 v{vA}, 2, v{vN}'); I(f'v_lshlrev_b32 v{vA}, 8, v{vA}'); I(f'v_lshl_add_u32 v{vA}, v{vG}, 6, v{vA}'); I(f'v_and_b32 v12, 3, v{vN}'); I(f'v_lshl_add_u32 v{vA}, v12, 4, v{vA}')
smul(t1,sWr,40960); I(f's_add_u32 s{sIs}, s{sDl}, s{t1}'); sadd(sIs,sIs,WS_R); sadd(sDm,sIs,40960); I(f's_lshl_b32 s{t1}, s85, 12'); I(f's_add_u32 s{sBstep}, s{sIs}, s{t1}')
smul(t0,sWr,48); sadd(t1,t0,47)
I(f'v_add_u32 v12, s{t0}, v{vL}'); I(f'v_min_u32 v12, s{t1}, v12'); I(f'v_lshlrev_b32 v12, 7, v12'); I(f'v_add_u32 v{vFa}, {WS_FL+FL_R*128}, v12')
stamp(24)
if E('PDELAY',0): I(f's_sleep {E("PDELAY",0)}')
if not PROG: poll2(vFa,10)
stamp(25)
sFst=sBo
def ppoll(vo,x2,need):
    uid[0]+=1; L=f'Lpp{uid[0]}'
    I(f's_cmp_ge_u32 s{sFst}, {need}'); I(f's_cbranch_scc0 {L}r'); lab(L+'c')
    ld=f'buffer_load_dwordx2 v[10:11], v{vo}, {srd(sWS)}, 0 offen sc1' if x2 else f'buffer_load_dword v10, v{vo}, {srd(sWS)}, 0 offen sc1'
    R=[L+'r:', ld, 's_waitcnt vmcnt(0)', f'v_cmp_ne_u32 vcc, s{sTag}, v10']
    if x2: R+=[f'v_cmp_ne_u32 s[{t4}:{t5}], s{sTag}, v11', 's_nop 0', f's_or_b64 vcc, vcc, s[{t4}:{t5}]']
    else: R+=['s_nop 0']
    R+=[f's_ff1_i32_b64 s{sFst}, vcc', f's_cmp_ge_u32 s{sFst}, {need}', f's_cbranch_scc1 {L}c', f's_sub_u32 s{sTo}, s{sTo}, 1', f's_cbranch_scc1 {L}c', f's_sleep {SLP}', f's_branch {L}r']
    RETRY.append(R)
RING=9; PAA=E('PAA',4)
RETRY=[]
def check(base,loads):
    if not POI: return
    uid[0]+=1; L=f'Lck{uid[0]}'
    lab(L)
    I(f'v_max3_u32 v12, v{base}, v{base+1}, v{base+2}')
    I(f'v_max3_u32 v13, v{base+3}, v{base+4}, v{base+5}')
    for i in range(5): I(f'v_max3_u32 v{12+(i&1)}, v{12+(i&1)}, v{base+6+2*i}, v{base+7+2*i}')
    I('v_max_u32 v12, v12, v13'); I('v_cmp_eq_u32 vcc, -1, v12'); I(f's_cbranch_vccnz {L}r')
    lab(L+'c')
    RETRY.append([L+'r:', f's_sub_u32 s{sTo}, s{sTo}, 1', f's_cbranch_scc1 {L}c', 's_sleep 2']+loads+['s_waitcnt vmcnt(0)', f's_branch {L}'])
def arf(i): return v(64+4*(i%(4*RING)),4)
def aload(ks): return [[f'buffer_load_dwordx4 {arf(ks*4+mt)}, v{vA}, {srd(sWS)}, s{sBstep} offen offset:{1024*mt} {HS}']+([f's_add_u32 s{sBstep}, s{sBstep}, 4096', f's_cmp_eq_u32 s{sBstep}, s{sDm}', f's_cselect_b32 s{sBstep}, s{sIs}, s{sBstep}'] if mt==3 else []) for mt in range(4)]
def aneed(ks):
    if not PROG: return
    if ks<6: ppoll(vFa,True,4*(ks+1))
    else:
        I(f's_mul_i32 s{t1}, s{sWr}, {4*(ks-5)}'); sadd(t1,t1,4*(ks+1)); ppoll(vFa,True,f's{t1}')
I(f's_mov_b32 s{sFst}, 0'); I(f's_mov_b32 s{sTo}, 0x40000')
for ks in range(PAA): aneed(ks); emit(aload(ks))
OF=144
def oload(ks): return [[f'buffer_load_dwordx4 {v(OF+((ks%5)*4+r)*4,4)}, v{vOA+r}, {srd(sWS)}, s{sA2} offen {HS}']+([f's_add_u32 s{sA2}, s{sA2}, 4096', f's_cmp_eq_u32 s{sA2}, s{sMB}', f's_cselect_b32 s{sA2}, s{sMA}, s{sA2}'] if r==3 else []) for r in range(4)]
def oneed(ks):
    if not PROG: return
    smul(t1,sRot,4*0x199a); sadd(t1,t1,(4*ks+3)*0x199a); I(f's_lshr_b32 s{t1}, s{t1}, 16'); I(f's_sub_u32 s{t1}, s{t1}, s{sT}'); sadd(t1,t1,1)
    ppoll(vFo,False,f's{t1}')
def bhead(NK):
    stamp(23)
    if not PROG: poll([vFo],10)
    I(f's_mov_b32 s{sFst}, 0'); I(f's_mov_b32 s{sTo}, 0x40000')
    pa=min(PA,NK)
    for ks in range(pa):
        oneed(ks)
        if ks==0: stamp(12)
        emit(oload(ks))
    if pa==NK:
        if PROG: ppoll(vFo,False,8)
        I(f'buffer_load_dword v{vGg}, v7, {srd(sWS)}, s{sB1} offen sc1')
EC=E('EC',1)
ext=0
for ks in range(10):
    I(f's_waitcnt vmcnt({4*(min(10,ks+PAA)-ks-1)+ext})')
    M=[f'{MF} {v(C3+(mt*3+nt)*4,4)}, {arf(ks*4+mt)}, {a_((ks*3+nt)*4,4)}, {"0" if ks==0 else v(C3+(mt*3+nt)*4,4)}' for nt in range(3) for mt in range(4)]
    X=aload(ks+PAA) if ks+PAA<10 else []
    if EC and ks==10-PAA: X=[[f'buffer_load_dword v10, v{vFo}, {srd(sWS)}, 0 offen sc1']]; ext=1
    weave(M,X,0,len(M)-2)
if EC:
    stamp(23)
    I('s_waitcnt vmcnt(0)'); I(f'v_cmp_ne_u32 vcc, s{sTag}, v10'); I('s_cbranch_vccz LoOK')
    poll([vFo],10)
    lab('LoOK')
    stamp(12)
    for ks in range(KA): emit(oload(ks))
    I(f'buffer_load_dword v{vGg}, v7, {srd(sWS)}, s{sB1} offen sc1')
EO=E('EO',1)
if EO and not EC: bhead(KA)
TF_=208; AO=96
for nt in range(3):
    for kb in range(2):
        o=TF_+(nt*2+kb)*4
        for q in range(2):
            for p in range(2):
                b=C3+((2*kb+q)*3+nt)*4+2*p; I(f'v_cvt_pk_bf16_f32 v{o+2*q+p}, v{b}, v{b+1}')
for nt in range(3):
    for kb in range(2):
        for w_ in range(4):
            c=v(AO+(w_*3+nt)*4,4); I(f'{MF} {c}, {v(TF_+(nt*2+kb)*4,4)}, {a_(AD2+(w_*2+kb)*4,4)}, {"0" if kb==0 else c}')
TAW=[f'ds_write_b128 v{vAW}, {v(AO+(w_*3+nt)*4,4)} offset:{(w_*3+nt)*1024}' for nt in range(3) for w_ in range(4)]
WV=E('WV',1)
if not WV: emit(TAW)
def bmain(NK,AB,head=True,extra=[]):
    extra=list(extra)
    pa=min(PA,NK)
    gl=[f'buffer_load_dword v{vGg}, v7, {srd(sWS)}, s{sB1} offen sc1']
    if head: bhead(NK)
    g=1 if pa==NK else 0
    for ks in range(NK):
        I(f's_waitcnt vmcnt({4*(min(NK,ks+pa)-ks-1)+g})')
        check(OF+(ks%5)*16,[f's_add_u32 s{t0}, s{sMA}, {4096*ks}']+[f'buffer_load_dwordx4 {v(OF+((ks%5)*4+r)*4,4)}, v{vOA+r}, {srd(sWS)}, s{t0} offen sc1' for r in range(4)])
        last=ks==NK-1
        order=[(nt,r) for nt in range(5) for r in range(4)] if not last else [(nt,r) for r in (1,2,3,0) for nt in range(5)]
        M=[f'{MF} {v(C3+(r*5+nt)*4,4)}, {a_(AB+(ks*5+nt)*4,4)}, {v(OF+((ks%5)*4+r)*4,4)}, {"0" if ks==0 else v(C3+(r*5+nt)*4,4)}' for nt,r in order]
        X=[]
        if ks+pa<NK: oneed(ks+pa); X=oload(ks+pa)
        elif not g:
            if PROG: ppoll(vFo,False,8)
            X=[gl]; g=1
        if not last: weave(M,X,0,len(M)-2)
        else:
            emit(X)
            for i,m in enumerate(M):
                I(m)
                if i<8: emit(extra[len(extra)*i//8:len(extra)*(i+1)//8])
                if i>=8: r,nt=divmod(i-8,5); I(f'ds_write_b128 v{vTW+r}, {v(C3+((r+1)*5+nt)*4,4)} offset:{1024*nt}')
bmain(KA,120,not EO,TAW if WV else [])
I('s_branch Lp3t')
lab('Lp3b')
bmain(KB,0)
lab('Lp3t')
I('s_nop 7')
stamp(26)
for i in range(12,15):
    r,nt=divmod(i,5); I(f'ds_write_b128 v{vTW+r}, {v(C3+((r+1)*5+nt)*4,4)} offset:{1024*nt}')
scale=struct.unpack('<I',struct.pack('<f',2.0/(2048*640)))[0]
I('s_waitcnt vmcnt(0)')
I(f'v_sub_f32 v11, 1.0, v{vGg}'); I(f'v_cvt_pk_bf16_f32 v11, v11, v11'); I(f'v_and_b32 v11, 0xffff0000, v11'); I(f'v_mul_f32 v10, 0x{scale:x}, v{vGg}')
I('s_waitcnt lgkmcnt(0)'); I('s_barrier')
stamp(27)
AE=160; TBF=96; OA=40
for t_ in range(3):
    for p_ in range(2): I(f'ds_read_b128 {v(AE+(t_*2+p_)*4,4)}, v{vAR} offset:{p_*12288+t_*1024}')
rb_=[f'ds_read_b128 {v(TBF+(nt*3+r)*4,4)}, v{vTR} offset:{r*5120+nt*1024}' for nt in range(5) for r in range(3)]
emit(rb_[:9])
I('s_waitcnt lgkmcnt(9)')
emit(rb_[9:])
for u in range(5):
    t_=(0,1,0,1,2)[u]; e_,o_2=AE+t_*8,AE+t_*8+4; c=OA+4*u
    for p in range(2):
        if u<4: I(f'v_pk_add_f32 {v(c+2*p,2)}, {v(e_+2*p,2)}, {v(o_2+2*p,2)}'+(' neg_lo:[0,1] neg_hi:[0,1]' if u>=2 else ''))
        else: I(f'v_pk_fma_f32 {v(c+2*p,2)}, {v(o_2+2*p,2)}, v[{vSg}:{vSg+1}], {v(e_+2*p,2)} op_sel_hi:[1,0,1]')
        I(f'v_pk_mul_f32 {v(c+2*p,2)}, {v(c+2*p,2)}, v[10:11] op_sel_hi:[1,0]')
for u in range(5):
    I(f's_waitcnt lgkmcnt({12-2*u})')
    b0=TBF+u*12; c=OA+4*u; own=C3+u*4
    for p in range(2):
        I(f'v_pk_add_f32 {v(b0+2*p,2)}, {v(b0+2*p,2)}, {v(b0+4+2*p,2)}')
        I(f'v_pk_add_f32 {v(own+2*p,2)}, {v(own+2*p,2)}, {v(b0+8+2*p,2)}')
        I(f'v_pk_add_f32 {v(b0+2*p,2)}, {v(b0+2*p,2)}, {v(own+2*p,2)}')
        I(f'v_pk_fma_f32 {v(c+2*p,2)}, {v(b0+2*p,2)}, v[10:11], {v(c+2*p,2)} op_sel:[0,1,0]')
    I(f'v_cvt_pk_bf16_f32 v{c}, v{c}, v{c+1}'); I(f'v_cvt_pk_bf16_f32 v{c+1}, v{c+2}, v{c+3}')
    I(f'ds_write_b64 v{vOW if u<4 else vOW4}, {v(c,2)} offset:{(0,32,80,112,64)[u]}')
I('s_waitcnt lgkmcnt(0)')
for i in range(3): I(f'ds_read_b128 {v(64+4*i,4)}, v{vOR} offset:{1024*i}')
for i in range(3):
    I(f's_waitcnt lgkmcnt({2-i})'); I(f'buffer_store_dwordx4 {v(64+4*i,4)}, v{vOut+i}, {srd(sOUT)}, s{sB0} offen {OUTPOL}')
I(f's_or_b32 s{t0}, s2, s{sW}'); I(f's_cmp_eq_u32 s{t0}, 0'); I('s_cbranch_scc0 Lnoe')
vconst(15,WS_E); setflag(15,14)
lab('Lnoe')
if PADT:
    lab('Lpad'); I(f's_memrealtime s[{sTS}:{sTS+1}]'); I('s_waitcnt lgkmcnt(0)'); I(f's_sub_u32 s{t0}, s{sTS}, s{sTS+2}'); I(f's_cmp_lt_u32 s{t0}, {PADT}'); I('s_cbranch_scc1 Lpad')
if TS:
    stamp(28)
    I(f's_lshl_b32 s{t0}, s2, 2'); sacc(t0,sW); I(f's_lshl_b32 s{t0}, s{t0}, 8'); sadd(t0,t0,WS_TS)
    I(f'v_lshlrev_b32 v4, 2, v{vL}')
    I(f'buffer_store_dword v0, v4, {srd(sWS)}, s{t0} offen')
lab('Lend')
I('s_endpgm')
emit(RETRY)
lab('Lfin')
body_txt=A.finish()
hdr=open(os.path.join(os.path.dirname(os.path.abspath(__file__)),'..','cdna_kernels',NAME+'.s.ref')).read().split('; Override launch')[0]
o_=hdr+f'; @launch grid=(256,1,1) block=(256,1,1) lds={LDS_SZ}\n'
o_+=f'.amdgcn_target "amdgcn-amd-amdhsa--gfx950"\n.text\n.globl {K}\n.p2align 8\n.type {K},@function\n{K}:\n'+body_txt
o_+=f'''.section .rodata,"a"
.p2align 6
.amdhsa_kernel {K}
  .amdhsa_next_free_vgpr 512
  .amdhsa_next_free_sgpr 102
  .amdhsa_accum_offset 256
  .amdhsa_group_segment_fixed_size 0
  .amdhsa_kernarg_size 80
  .amdhsa_user_sgpr_count 2
  .amdhsa_user_sgpr_kernarg_segment_ptr 1
  .amdhsa_system_sgpr_workgroup_id_x 1
.end_amdhsa_kernel
'''
if DEV: o_+='.p2align 8\n.type tab_base,@object\ntab_base:\n@@INCBIN@@\n'
else: o_+=TB.emit()
o=[a for a in sys.argv[1:] if not a.startswith('--')]
open(o[0] if o else 'out.s','w').write(o_)
print('instructions:',sum(1 for l in body_txt.split('\n') if l.startswith('    ')),'nops inserted:',A.nnops,file=sys.stderr)
```

```python
import sys, os, struct
from asm import Asm
import tables as TB

NAME='gated_mix__spectral_gfnet__linear_attn_block__prompt'
DEV = '--dev' in sys.argv
TS  = '--ts' in sys.argv
E=lambda k,d: int(os.environ.get(k,str(d)))
PFX=E('PFX',0); PW=E('PW',0); POLW=os.environ.get('POLW',''); LEAD=E('LEAD',5); ROT=E('ROT',0 if PFX else 8); POLA=os.environ.get('POLA',''); POLB=os.environ.get('POLB',''); LDPOL=os.environ.get('LDPOL',''); HS=os.environ.get('HS','sc1')
CPF=E('CPF',1); KA=E('KA',1); KB=10-KA; R3=0; POI=0; WOP=os.environ.get('WOP','sc1'); PROG=E('PROG',0); TGF=E('TGF',0); PF=E('PF',0); PFW=E('PFW',3); PFPOL=os.environ.get('PFPOL',''); PFE=E('PFE',0); HALF=1; PEEL=E('PEEL',1); WS1=E('WS1',16)
WS_Y=0; WS_R=2621440; WS_O=2*2621440; WS_KVA=3*2621440; WS_WOF=WS_KVA+65536; WS_G=WS_KVA+1048576
WS_FL=WS_G+8192
FL_Y=0; FL_KV=256; FL_R=768; FL_O=960; FL_E=1216; NFL=2240
WS_E=WS_FL+NFL*128; WS_TS=WS_E+128; WS_SZ=WS_TS+256*4*256
OOB=0x7ff00000
SLOT=36880; SEG0=16384; SEG1=16384+10240+16
L_G=2*SLOT+16384; L_FLG=155648; L_PP=L_FLG+64; LDS_SZ=L_PP+4096
L_PQ=[0,10880]; PQS=136; L_RED=0; L_XCH=[24576,24576+8704]; L_KVI=43008
L_TA=57344; L_TB=81920; L_OUT=143360
sX,sSEG,sWS,sWR,sWI,sTAB,sWO,sOUT,sGATE=4,8,12,16,20,24,28,32,36
sW,sWr,sWc,sTyp,sRb,sGrp,sTag,sCnt=40,41,42,43,44,45,46,47
sAo,sBo,sBstep,sMA,sMB,sDl,sIs,sDm=48,49,50,51,52,53,54,55
sT,sCh,sN2,sCt,sAct,sTo=56,57,58,59,60,61
t0,t1,t2,t3,t4,t5=62,63,64,65,66,67
sK=68; sEx=88; sTS=90; sB0,sB1,sGo,sA2=94,95,96,98; sBS=84; sGb,sGe,sRot=99,100,101
OUTPOL=os.environ.get('OUTPOL','')
ATP=os.environ.get('ATP','')
def srd(n): return f's[{n}:{n+3}]'
def v(a,n=1): return f'v{a}' if n==1 else f'v[{a}:{a+n-1}]'
def a_(a,n=1): return f'a{a}' if n==1 else f'a[{a}:{a+n-1}]'
vL,vN,vG=1,2,3
A=Asm(); out=[A]
class Buf(list):
    def __call__(s,t): s.append(t)
def I(t): out[-1](t)
def cap(f,*a):
    b=Buf(); out.append(b); f(*a); out.pop(); return list(b)
def emit(L):
    for x in L:
        if isinstance(x,(list,tuple)): emit(x)
        else: I(x)
def weave(P,F,start=0,end=None):
    end=len(P) if end is None else end
    n=end-start; k=0
    for i,p in enumerate(P):
        emit([p])
        if start<=i<end:
            tgt=((i-start+1)*len(F))//n
            while k<tgt: emit([F[k]]); k+=1
    while k<len(F): emit([F[k]]); k+=1
def lab(n): I(n+':')
def stamp(i):
    if E('PADT',0) and E('PADK',0)==i:
        I(f's_memrealtime s[{sTS+2}:{sTS+3}]'); I('s_waitcnt lgkmcnt(0)')
    if TS:
        I(f's_memrealtime s[{sTS}:{sTS+1}]'); I('s_waitcnt lgkmcnt(0)'); I(f'v_writelane_b32 v0, s{sTS}, {i}')
        if i in (3,14,12,26):
            I(f's_memtime s[{sTS}:{sTS+1}]'); I('s_waitcnt lgkmcnt(0)'); I(f'v_writelane_b32 v0, s{sTS}, {i+32}')
def smul(d,x,c): I(f's_mul_i32 s{d}, s{x}, {c}')
def sadd(d,x,c): I(f's_add_u32 s{d}, s{x}, {c if isinstance(c,int) else "s%d"%c[0]}')
def sacc(d,x): I(f's_add_u32 s{d}, s{d}, s{x}')
def vconst(r,c): I(f'v_mov_b32 v{r}, {c}')
def div10(dst,src): I(f'v_mul_u32_u24 v{dst}, 0x199a, v{src}'); I(f'v_lshrrev_b32 v{dst}, 16, v{dst}')
uid=[0]
SLP=E('SLP',6)
def poll(voffs,tmp):
    I(f's_mov_b32 s{sTo}, 0x40000')
    for i,vo in enumerate(voffs): I(f'buffer_load_dword v{tmp+i}, v{vo}, {srd(sWS)}, 0 offen sc1')
    for i,vo in enumerate(voffs):
        uid[0]+=1; L=f'Lpoll{uid[0]}'
        I(f's_waitcnt vmcnt({len(voffs)-1-i})')
        lab(L)
        I(f'v_cmp_ne_u32 vcc, s{sTag}, v{tmp+i}')
        I(f's_cbranch_vccz {L}d')
        I('s_mov_b64 exec, vcc')
        if E('SLP1',6): I(f's_sleep {E("SLP1",6)}')
        I(f'buffer_load_dword v{tmp+i}, v{vo}, {srd(sWS)}, 0 offen sc1')
        I(f's_sub_u32 s{sTo}, s{sTo}, 1')
        I('s_waitcnt vmcnt(0)')
        I(f's_cbranch_scc0 {L}'); lab(L+'d')
        I('s_mov_b64 exec, -1')
def poll2(vo,tmp):
    uid[0]+=1; L=f'Lpoll{uid[0]}'
    I(f's_mov_b32 s{sTo}, 0x40000')
    I(f'buffer_load_dwordx2 {v(tmp,2)}, v{vo}, {srd(sWS)}, 0 offen sc1')
    I(f's_waitcnt vmcnt(0)')
    lab(L)
    I(f'v_cmp_ne_u32 vcc, s{sTag}, v{tmp}'); I(f'v_cmp_ne_u32 s[{t4}:{t5}], s{sTag}, v{tmp+1}'); I(f's_or_b64 vcc, vcc, s[{t4}:{t5}]')
    I(f's_cbranch_vccz {L}d')
    I('s_mov_b64 exec, vcc')
    if E('SLPA',0):
        I(f's_cmp_eq_u32 s{sTo}, 0x40000'); I(f's_cbranch_scc0 {L}s'); I(f's_sleep {E("SLPA",0)}'); lab(L+'s')
    if SLP: I(f's_sleep {SLP}')
    I(f'buffer_load_dwordx2 {v(tmp,2)}, v{vo}, {srd(sWS)}, 0 offen sc1')
    I(f's_sub_u32 s{sTo}, s{sTo}, 1')
    I('s_waitcnt vmcnt(0)')
    I(f's_cbranch_scc0 {L}'); lab(L+'d')
    I('s_mov_b64 exec, -1')
def ldssync(vaddr,tmp):
    I(f'v_mov_b32 v{tmp}, 1'); I('s_waitcnt lgkmcnt(0)')
    I('s_mov_b64 exec, 1'); I(f'ds_add_u32 v{vaddr}, v{tmp}'); I('s_mov_b64 exec, -1')
    uid[0]+=1; L=f'Llp{uid[0]}'
    I(f's_mov_b32 s{sTo}, 0x400000'); lab(L)
    I(f'ds_read_b32 v{tmp}, v{vaddr}'); I('s_waitcnt lgkmcnt(0)')
    I(f'v_cmp_gt_u32 vcc, 2, v{tmp}')
    I(f's_cbranch_vccz {L}d'); I(f's_sub_u32 s{sTo}, s{sTo}, 1'); I(f's_cbranch_scc0 {L}'); lab(L+'d')
def setflag(voff,tmp):
    I(f'v_mov_b32 v{tmp}, s{sTag}'); I('s_mov_b64 exec, 1')
    I(f'buffer_store_dword v{tmp}, v{voff}, {srd(sWS)}, 0 offen sc1'); I('s_mov_b64 exec, -1')
def mksrd(d,p,n):
    I(f's_mov_b32 s{d}, s{p}'); I(f's_mov_b32 s{d+1}, s{p+1}'); I(f's_mov_b32 s{d+2}, {n}'); I(f's_mov_b32 s{d+3}, 0x20000')
MF='v_mfma_f32_16x16x32_bf16'
K=f'{NAME}_kernel'
ACC=16
FX=dict(A=100,B=116); FY=dict(A=140,B=156)
vAo=180; vBo=184; vRA=189; vRB=191
vKA=200; vE0=208; vWp,vWm,vWm0=214,215,216; WP=220
lab('Lstart')
I(f's_cmp_ge_u32 s2, 256'); I('s_cbranch_scc1 Lend')
PADT=E('PADT',0)
if TS or PADT: I(f's_memrealtime s[{sTS+2}:{sTS+3}]')
I(f's_load_dwordx16 s[{sK}:{sK+15}], s[0:1], 0')
I(f's_load_dwordx4 s[{sK+16}:{sK+19}], s[0:1], 64')
I(f'v_lshrrev_b32 v4, 6, v0'); I(f'v_and_b32 v{vL}, 63, v0')
I(f'v_readfirstlane_b32 s{sW}, v4')
I(f's_getpc_b64 s[{sGATE}:{sGATE+1}]')
lab('Lpc')
I(f's_add_u32 s{sTAB}, s{sGATE}, tab_base@rel32@lo+4'); I(f's_addc_u32 s{sTAB+1}, s{sGATE+1}, tab_base@rel32@hi+12')
I(f's_mov_b32 s{sGATE+2}, Lfin-Lpc'); I(f's_mov_b32 s{sGATE+3}, 0x20000')
I(f'v_lshlrev_b32 v9, 4, v{vL}')
I(f's_lshr_b32 s{t0}, s2, 3'); I(f's_and_b32 s{t1}, s2, 7')
if CPF:
    I(f's_lshl_b32 s{t2}, s{t0}, 10'); I(f's_cmp_eq_u32 s{sW}, 3'); I(f's_cbranch_scc0 Lnocpf')
    I(f'buffer_load_dwordx4 v[96:99], v9, {srd(sGATE)}, s{t2} offen'); lab('Lnocpf')
I(f'v_and_b32 v{vN}, 15, v{vL}'); I(f'v_lshrrev_b32 v{vG}, 4, v{vL}')
I(f's_lshr_b32 s{sRb}, s{t1}, 2'); I(f's_lshl_b32 s{sRb}, s{sRb}, 3'); I(f's_lshr_b32 s{t2}, s{t0}, 2'); sacc(sRb,t2)
I(f's_and_b32 s{sWr}, s{sW}, 1'); I(f's_lshr_b32 s{sWc}, s{sW}, 1')
I(f'v_and_b32 v5, 7, v{vL}'); I(f'v_xor_b32 v5, v5, v{vG}'); I(f'v_lshrrev_b32 v4, 3, v{vL}'); I(f'v_mul_u32_u24 v4, 40960, v4')
I(f'v_lshl_add_u32 v{vAo}, v5, 4, v4'); I(f'v_xor_b32 v{vAo+1}, 64, v{vAo}')
I(f's_lshl_b32 s{t3}, s{sRb}, 1'); sacc(t3,sWc); smul(t3,t3,1280); smul(t2,sWr,32*40960); I(f's_add_u32 s{sA2}, s{t3}, s{t2}')
I(f's_bfe_u32 s{sTyp}, s{t0}, 0x10001')
I(f's_and_b32 s{sGrp}, s{t1}, 3'); I(f's_lshl_b32 s{sGrp}, s{sGrp}, 1'); I(f's_and_b32 s{t2}, s{t0}, 1'); sacc(sGrp,t2)
if E('P3MAP',0)==0:
    I(f's_lshl_b32 s{sN2}, s{t1}, 2'); I(f's_lshr_b32 s{t2}, s{t0}, 3'); sacc(sN2,t2); I(f's_and_b32 s{sCt}, s{t0}, 7')
else:
    I(f's_lshr_b32 s{sN2}, s{t1}, 1'); I(f's_lshl_b32 s{sN2}, s{sN2}, 3'); I(f's_lshr_b32 s{t2}, s{t0}, 2'); sacc(sN2,t2)
    I(f's_and_b32 s{sCt}, s{t1}, 1'); I(f's_lshl_b32 s{sCt}, s{sCt}, 2'); I(f's_and_b32 s{t2}, s{t0}, 3'); sacc(sCt,t2)
if ROT:
    a,ma,b,mb,c,d={1:(5,7,10,3,0,0),2:(0,0,0,0,10,20),3:(20,1,20,1,0,0),4:(10,3,10,3,0,0),5:(20,1,0,0,10,0),6:(0,0,20,1,10,20),7:(10,1,20,1,0,0),8:(5,7,10,3,10,20),9:(0,0,0,0,0,20),10:(0,0,0,0,20,20)}[ROT]
    I(f's_lshr_b32 s{t2}, s{t0}, 2'); I(f's_and_b32 s{t2}, s{t2}, {ma}'); smul(t2,t2,a); I(f's_and_b32 s{t3}, s{t0}, {mb}'); smul(t3,t3,b); sacc(t2,t3)
    I(f's_and_b32 s{t3}, s{t1}, 3'); smul(t3,t3,c); sacc(t2,t3); I(f's_lshr_b32 s{t3}, s{t1}, 2'); smul(t3,t3,d); sacc(t2,t3)
    I(f's_lshr_b32 s{t2}, s{t2}, 2'); smul(t3,t2,26); I(f's_lshr_b32 s{t3}, s{t3}, 8'); smul(t3,t3,10); I(f's_sub_u32 s{sIs}, s{t2}, s{t3}')
else: I(f's_mov_b32 s{sIs}, 0')
I(f's_lshl_b32 s{sMA}, s{sW}, 12')
I(f's_lshl_b32 s{sAo}, s{sIs}, 7'); sacc(sAo,sA2)
I(f's_mov_b32 s{sTAB+2}, {TB.TAB_SZ}'); I(f's_mov_b32 s{sTAB+3}, 0x20000')
I(f's_andn2_b32 s{t0}, s{sTyp}, s{sWc}')
I(f's_sub_u32 s{t1}, 1, s{sTyp}'); sadd(t2,sWc,1); I(f's_mul_i32 s{t1}, s{t1}, s{t2}'); smul(t1,t1,1280)
smul(t2,sGrp,160); sacc(t1,t2); smul(t2,sWr,32*3840); sacc(t1,t2)
smul(t2,sGrp,102400); smul(t3,sWr,5120); sacc(t2,t3)
smul(sMB,sWc,10256); sacc(sMB,t3); sadd(sMB,sMB,SEG0)
I(f's_cmp_eq_u32 s{t0}, 1')
I(f's_cselect_b32 s{t1}, s{t2}, s{t1}')
I(f's_mov_b32 s{sBstep}, {64*3840}'); I(f's_cselect_b32 s{sBstep}, 10240, s{sBstep}')
I(f's_cselect_b64 s[{t4}:{t5}], -1, 0')
I(f's_mul_i32 s{sBo}, s{sIs}, s{sBstep}')
I(f's_mov_b32 s{t2}, 3840')
def dmaA(i): return [f's_add_u32 m0, s{sMA}, {1024*i}', f's_add_u32 s{t3}, s{sAo}, {i*8*40960}', f'buffer_load_dwordx4 v{vAo+(i&1)}, {srd(sX)}, s{t3} offen {POLA} lds']
def dmaB(i): return [f's_add_u32 m0, s{sMB}, {1024*i}', 's_nop 0', f'buffer_load_dwordx4 v{vBo+i}, {srd(sSEG)}, s{sBo} offen {POLB} lds']
def advA(d):
    return [f's_add_u32 s{sIs}, s{sIs}, 1', f's_cmp_eq_u32 s{sIs}, 10', f's_cselect_b32 s{sIs}, 0, s{sIs}',
            f's_lshl_b32 s{sAo}, s{sIs}, 7', f's_add_u32 s{sAo}, s{sAo}, s{sA2}', f's_add_u32 s{sMA}, s{sMA}, {d}']
def advB(d): return [f's_mul_i32 s{sBo}, s{sIs}, s{sBstep}', f's_add_u32 s{sMB}, s{sMB}, {d}']
def dma_adv(d):
    return [f's_add_u32 s{sIs}, s{sIs}, 1', f's_cmp_eq_u32 s{sIs}, 10', f's_cselect_b32 s{sIs}, 0, s{sIs}',
            f's_lshl_b32 s{sAo}, s{sIs}, 7', f's_add_u32 s{sAo}, s{sAo}, s{sA2}', f's_mul_i32 s{sBo}, s{sIs}, s{sBstep}',
            f's_add_u32 s{sMA}, s{sMA}, {d}', f's_add_u32 s{sMB}, s{sMB}, {d}']
def boff(i):
    I(f'v_add_u32 v4, {64*i}, v{vL}'); div10(5,4)
    I(f'v_lshlrev_b32 v4, 4, v4'); I(f'v_mul_u32_u24 v6, 160, v5'); I(f'v_sub_u32 v6, v4, v6')
    I(f'v_and_b32 v7, 3, v5'); I(f'v_bfe_u32 v8, v5, 2, 2'); I(f'v_lshl_or_b32 v7, v8, 3, v7')
    I(f'v_lshrrev_b32 v8, 4, v5'); I(f'v_lshl_or_b32 v7, v8, 2, v7')
    I(f'v_mad_u32_u24 v7, v7, s{t2}, v6'); I(f'v_cndmask_b32 v7, v7, v4, s[{t4}:{t5}]'); I(f'v_add_u32 v{vBo+i}, s{t1}, v7')
boff(0)
if TS: I(f's_memrealtime s[{sTS}:{sTS+1}]')
I('s_waitcnt lgkmcnt(0)')
if TS:
    I(f'v_writelane_b32 v0, s{sTS}, 4'); stamp(2)
mksrd(sX,sK+0,2621440)
WSB=E('WSB',0)*1048576
if WSB: I(f's_add_u32 s{sK+18}, s{sK+18}, {WSB}'); I(f's_addc_u32 s{sK+19}, s{sK+19}, 0')
I(f's_cmp_eq_u32 s{t0}, 1')
I(f's_cselect_b32 s{sSEG}, s{sTAB}, s{sK+8}'); I(f's_cselect_b32 s{sSEG+1}, s{sTAB+1}, s{sK+9}')
I(f's_mov_b32 s{sSEG+2}, 2457600'); I(f's_cselect_b32 s{sSEG+2}, {TB.TF_SZ}, s{sSEG+2}'); I(f's_mov_b32 s{sSEG+3}, 0x20000')
for i in range(4): emit(dmaA(i)); boff(i+1)
if TS: I(f'v_writelane_b32 v0, s{sTS+2}, 0')
def setup0():
    mksrd(sWS,sK+18,WS_SZ); mksrd(sWO,sK+10,819200)
    I(f's_lshl_b32 s{sDm}, s2, 2'); sacc(sDm,sW)
    smul(t0,sDm,0x667); I(f's_lshr_b32 s{t0}, s{t0}, 16')
    smul(t1,t0,40); I(f's_sub_u32 s{t1}, s{sDm}, s{t1}')
    smul(t2,t1,52); I(f's_lshr_b32 s{t2}, s{t2}, 8')
    smul(sGo,t2,5); I(f's_sub_u32 s{t1}, s{t1}, s{sGo}')
    smul(t2,t2,80)
    I(f's_lshl_b32 s{t0}, s{t0}, 2')
    I(f'v_bfe_u32 v4, v{vL}, 3, 2'); I(f'v_add_u32 v4, s{t0}, v4'); I(f'v_mul_u32_u24 v5, 0x3334, v4'); I(f'v_lshrrev_b32 v5, 16, v5')
    I(f'v_lshrrev_b32 v6, 5, v{vL}'); I(f'v_add_u32 v5, v5, v6')
    I(f'v_mul_u32_u24 v5, 20, v5'); I(f'v_lshl_add_u32 v5, v4, 2, v5'); I(f'v_bfe_u32 v4, v{vL}, 1, 2'); I(f'v_add_u32 v5, v5, v4')
    I(f's_lshr_b32 s{t0}, s{t1}, 1'); smul(t0,t0,640); I(f's_and_b32 s{sGo}, s{t1}, 1'); I(f's_lshl_b32 s{sGo}, s{sGo}, 5'); sacc(t0,sGo)
    I(f's_movk_i32 s{sGo}, 640')
    I([f's_cmp_eq_u32 s{t1}, 4', f's_cselect_b32 s{t0}, 64, s{t0}', f's_cselect_b32 s{t1}, s{sGo}, 16'])
    I(f'v_and_b32 v4, 1, v{vL}'); I(f'v_mul_u32_u24 v4, s{t1}, v4'); I(f's_movk_i32 s{t1}, 1280'); I(f'v_mad_u32_u24 v213, v5, s{t1}, v4')
    sacc(t0,t2)
    I([f's_cmp_lt_u32 s2, 200', f's_cselect_b32 s{sGo}, s{t0}, {OOB}'])
    I(f's_lshl_b32 s{t0}, s{sDm}, 6'); sadd(sDl,t0,WS_KVA)
    I(f'v_lshlrev_b32 v217, 2, v{vL}'); vconst(212,0)
def setupPF():
    I(f's_lshr_b32 s{t0}, s2, 3'); I(f's_lshl_b32 s{t0}, s{t0}, 2'); sacc(t0,sW)
    I(f's_lshl_b32 s{t1}, s{t0}, 3'); I(f'v_and_b32 v4, 7, v{vL}'); I(f'v_add_u32 v4, s{t1}, v4'); I(f'v_lshrrev_b32 v5, 4, v4'); I(f'v_and_b32 v4, 15, v4')
    I(f'v_lshl_add_u32 v4, v5, 5, v4'); I(f's_bfe_u32 s{t1}, s2, 0x10002'); I(f's_lshl_b32 s{t1}, s{t1}, 4'); I(f'v_add_u32 v4, s{t1}, v4'); I(f'v_mul_u32_u24 v10, 1280, v4')
    smul(t1,t0,5); I(f'v_subrev_u32 v4, 8, v{vL}'); I(f'v_add_u32 v4, s{t1}, v4'); I(f'v_min_u32 v4, 575, v4')
    I(f'v_mul_u32_u24 v5, 0x1c72, v4'); I(f'v_lshrrev_b32 v5, 16, v5'); I(f'v_mul_u32_u24 v6, 9, v5'); I(f'v_sub_u32 v6, v4, v6')
    I(f'v_mul_u32_u24 v7, 86, v6'); I(f'v_lshrrev_b32 v7, 8, v7'); I(f'v_mul_u32_u24 v8, 3, v7'); I(f'v_sub_u32 v8, v6, v8')
    I(f'v_mul_u32_u24 v5, 3840, v5'); I(f'v_mul_u32_u24 v7, 1280, v7'); I(f'v_lshlrev_b32 v8, 7, v8'); I(f'v_add3_u32 v5, v5, v7, v8')
    I(f's_and_b32 s{t2}, s2, 3'); smul(t1,t2,320); I(f's_and_b32 s{t1}, s{t1}, {0xffffff80}'); I(f'v_add_u32 v11, s{t1}, v5')
    I(f's_lshl_b32 s{t1}, s{t0}, 1'); I(f'v_subrev_u32 v4, 13, v{vL}'); I(f'v_add_u32 v4, s{t1}, v4'); I(f'v_min_u32 v4, 159, v4')
    I(f'v_lshlrev_b32 v5, 7, v4'); vconst(6,102400-10240); I(f'v_cmp_lt_u32 vcc, 79, v4'); I(f'v_cndmask_b32 v6, 0, v6, vcc'); I(f'v_add_u32 v5, v5, v6')
    smul(t1,t2,204800); I(f'v_add_u32 v12, s{t1}, v5')
    I(f'v_cmp_gt_u32 s[{t4}:{t5}], 8, v{vL}'); I(f'v_cmp_gt_u32 vcc, 13, v{vL}')
    I(f'v_cndmask_b32 v11, v12, v11, vcc'); I(f'v_cndmask_b32 v10, v11, v10, s[{t4}:{t5}]')
    for d,(x_,w_,f_) in ((96,(sK,sK+8,sTAB)),(97,(sK+1,sK+9,sTAB+1))):
        I(f'v_mov_b32 v4, s{f_}'); I(f'v_mov_b32 v5, s{w_}'); I(f'v_mov_b32 v6, s{x_}'); I(f'v_cndmask_b32 v4, v4, v5, vcc'); I(f'v_cndmask_b32 v{d}, v4, v6, s[{t4}:{t5}]')
    vconst(4,10240); vconst(5,64*3840); I(f'v_cndmask_b32 v4, v4, v5, vcc'); vconst(5,128); I(f'v_cndmask_b32 v98, v4, v5, s[{t4}:{t5}]')
    I(f'v_lshl_add_u32 v10, v98, 1, v10')
    I([f'v_add_co_u32 v96, vcc, v96, v10', f'v_addc_co_u32 v97, vcc, 0, v97, vcc'])
def pf(adv=True):
    L=['s_mov_b64 exec, 0x7fff', f'global_load_dword v99, v[96:97], off {PFPOL}', 's_mov_b64 exec, -1']
    if adv: L+=['v_add_co_u32 v96, vcc, v96, v98', 'v_addc_co_u32 v97, vcc, 0, v97, vcc']
    return L
def setup1():
    mksrd(sWR,sK+2,1314816); mksrd(sWI,sK+4,1314816); mksrd(sGATE,sK+12,1280); mksrd(sOUT,sK+14,2621440)
    vconst(5,0); I(f'v_lshlrev_b32 v4, 2, v{vN}'); I(f'v_add_u32 v4, {L_FLG}, v4'); I(f'ds_write_b32 v4, v5')
    I(f'v_lshrrev_b32 v4, 1, v{vN}'); I(f'v_xor_b32 v4, v4, v{vG}'); I(f'v_lshlrev_b32 v4, 4, v4')
    I(f'v_lshl_add_u32 v4, v{vN}, 7, v4'); I(f's_lshl_b32 s{t0}, s{sWr}, 13'); I(f'v_add_u32 v{vRA}, s{t0}, v4'); I(f'v_xor_b32 v{vRA+1}, 64, v{vRA}')
    I(f'v_lshrrev_b32 v4, 2, v{vL}'); I(f'v_mul_u32_u24 v4, 160, v4'); I(f'v_and_b32 v5, 3, v{vL}'); I(f'v_lshlrev_b32 v5, 3, v5'); I(f'v_add_u32 v4, v4, v5')
    smul(t0,sWc,80); smul(t1,sWc,10256)
    I([f's_cmp_eq_u32 s{sTyp}, 0', f's_cselect_b32 s{t0}, s{t0}, s{t1}', f's_cselect_b32 s{t1}, {SEG1-SEG0-80}, 0']); sadd(t0,t0,SEG0)
    I(f'v_add_u32 v{vRB}, s{t0}, v4'); I(f'v_add_u32 v{vRB+1}, 32, v{vRB}')
    I(f'v_mov_b32 v6, s{t1}'); I(f'v_cmp_lt_u32 vcc, 8, v5'); I(f'v_cndmask_b32 v6, 0, v6, vcc'); I(f'v_add3_u32 v{vRB+2}, v{vRB}, v6, 64')
    I(f'v_add_u32 v4, s{t1}, v{vRB}'); I(f'v_add_u32 v{vRB+3}, 96, v4'); I(f'v_add_u32 v{vRB+4}, 0x80, v4')
    I(f's_lshr_b32 s{t0}, s{sRb}, 1'); I(f's_lshl_b32 s{t0}, s{t0}, 3'); sacc(t0,sGrp)
    I(f's_lshr_b32 s{t1}, s{t0}, 5'); sadd(t1,t1,8); I(f's_bfe_u32 s{t2}, s{t0}, 0x10004'); smul(t2,t2,10); sacc(t1,t2)
    I(f's_and_b32 s{sCh}, s{sRb}, 3'); I(f's_lshr_b32 s{t2}, s{sRb}, 3'); I(f's_lshl_b32 s{t2}, s{t2}, 2'); sacc(sCh,t2); I(f's_bfe_u32 s{t2}, s{sRb}, 0x10002'); smul(t2,t2,10); sacc(sCh,t2)
    I(f's_and_b32 s{t2}, s{t0}, 15'); I(f's_lshl_b32 s{t2}, s{t2}, 1'); sacc(t2,sWr)
    I(f's_lshl_b32 s{t0}, s{sGrp}, 2'); sacc(t0,sW)
    I([f's_cmp_eq_u32 s{sTyp}, 0', f's_cselect_b32 s{sT}, s{t0}, s{t2}', f's_cselect_b32 s{sCh}, s{sCh}, s{t1}'])
    I(f's_or_b32 s{t0}, s{sRb}, s{sWc}'); I(f's_and_b32 s{t0}, s{t0}, s{sTyp}'); I(f's_xor_b32 s{sAct}, s{t0}, 1')
    I(f's_lshl_b32 s{t0}, s{sCh}, 6'); I([f's_cmp_ge_u32 s{sCh}, 10', f's_cselect_b32 s{t1}, 638, 0']); I(f's_sub_u32 s{t0}, s{t0}, s{t1}')
    I([f's_cmp_eq_u32 s{sAct}, 1', f's_cselect_b32 s{t0}, s{t0}, {OOB}'])
    I(f's_mov_b32 s{t1}, {256*642}'); I(f'v_lshlrev_b32 v10, 2, v{vN}'); I(f'v_add_u32 v10, s{t0}, v10')
    I(f'v_mad_u32_u24 v{vWp}, v{vG}, s{t1}, v10'); I(f'v_sub_u32 v11, 3, v{vG}'); I(f'v_mad_u32_u24 v{vWm}, v11, s{t1}, v10')
    I(f's_movk_i32 s{t2}, 1024')
    I([f's_cmp_eq_u32 s{sT}, 0', f's_cselect_b32 s{t0}, {1024*642}, 0', f's_cselect_b32 s{t2}, 32, s{t2}'])
    I(f'v_mov_b32 v11, s{t0}'); I(f'v_cmp_eq_u32 vcc, 0, v{vG}'); I(f'v_cndmask_b32 v11, 0, v11, vcc'); I(f'v_sub_u32 v11, {256*642}, v11'); I(f'v_add_u32 v{vWm0}, v{vWm}, v11')
    sacc(t2,sT); smul(sB0,sT,642); smul(sB1,t2,642)
    I(f'v_mul_u32_u24 v4, {64*642}, v{vN}'); I(f'v_mov_b32 v5, s{sB0}'); I(f'v_mov_b32 v6, s{sB1}')
    I(f'v_and_b32 v7, 16, v{vL}'); I(f'v_cmp_eq_u32 vcc, 0, v7'); I(f'v_cndmask_b32 v5, v6, v5, vcc'); I(f'v_add_u32 v4, v4, v5')
    I(f'v_sub_u32 v5, {2048*642}, v4'); vconst(6,1024*642); I(f'v_cmp_eq_u32 vcc, 0, v4'); I(f'v_cndmask_b32 v5, v5, v6, vcc')
    I(f'v_cmp_gt_u32 vcc, 32, v{vL}'); I(f'v_cndmask_b32 v4, v5, v4, vcc')
    I([f's_cmp_eq_u32 s{sCh}, 0', f's_cselect_b32 s{t0}, 0, {OOB}']); I(f'v_add_u32 v254, s{t0}, v4')
    for i in range(4): vconst(vE0+i,OOB)
    smul(t0,sWr,KA); smul(t1,sWr,KB); sadd(t1,t1,2*KA); I([f's_cmp_eq_u32 s{sWc}, 0', f's_cselect_b32 s{sRot}, s{t0}, s{t1}', f's_cselect_b32 s{t2}, {5*KA-1}, {5*KB-1}'])
    smul(t0,sCt,5120); smul(t1,sRot,40960); sacc(t0,t1); sadd(sGb,t0,WS_WOF); sadd(sGe,sGb,KB*40960)
    if R3:
        if E('P3MAP',0)==0: smul(t0,sCt,10); I(f's_lshr_b32 s85, s{t0}, 3')
        else: I(f's_and_b32 s{t0}, s{sCt}, 3'); smul(t0,t0,10); I(f's_lshr_b32 s85, s{t0}, 2')
    else: I('s_mov_b32 s85, 0')
    I(f's_min_u32 s84, s85, {KB-1}'); I([f's_cmp_eq_u32 s{sWc}, 0', f's_cselect_b32 s84, 0, s84'])
    smul(t0,84,40960); I(f's_add_u32 s{sGo}, s{sGb}, s{t0}')
    I(f'v_min_u32 v9, s{t2}, v{vL}')
    I(f'v_lshlrev_b32 v4, 3, v{vL}'); I(f's_lshl_b32 s{t0}, s{sW}, 10'); sadd(t0,t0,L_PP); I(f'v_add_u32 v213, s{t0}, v4')
    I(f's_lshl_b32 s{t0}, s{sDm}, 10'); sadd(t0,t0,WS_WOF); I([f's_cmp_lt_u32 s2, 200', f's_cselect_b32 s{sB0+3}, s{t0}, {OOB}'])
    I(f's_lshl_b32 s{t0}, s{sDm}, 2'); sadd(t0,t0,WS_FL+FL_E*128); I(f'v_mov_b32 v217, s{t0}')
    I(f'v_mov_b32 v4, v9'); I(f'v_mul_u32_u24 v5, 52, v4'); I(f'v_lshrrev_b32 v5, 8, v5'); I(f'v_mad_u32_u24 v4, v5, 35, v4')
    smul(t0,sRot,40); smul(t1,sCt,5); sacc(t0,t1); I(f'v_add_u32 v4, s{t0}, v4'); I(f'v_lshlrev_b32 v4, 2, v4'); I(f'v_add_u32 v196, {WS_FL+FL_E*128}, v4')
    I(f's_lshl_b32 s{t0}, s{sGrp}, 1'); sacc(t0,sWc); I(f's_lshl_b32 s{t0}, s{t0}, 8'); sadd(t0,t0,WS_FL+FL_E*128)
    I(f'v_lshlrev_b32 v4, 2, v{vL}'); I(f'v_add_u32 v197, s{t0}, v4')
    if PW:
        smul(t0,sDm,1408); I(f'v_lshlrev_b32 v4, 7, v{vL}'); I(f'v_add_u32 v5, s{t0}, v4'); vconst(7,OOB>>1); I(f'v_cmp_gt_u32 vcc, 11, v{vL}'); I(f'v_cndmask_b32 v98, v7, v5, vcc')
    if POI:
        smul(t0,sWr,16*81920); I(f's_lshl_b32 s{t1}, s{sCh}, 12'); sacc(t0,t1)
        I(f's_lshr_b32 s{t1}, s{sT}, 1'); I(f's_lshl_b32 s{t1}, s{t1}, 8'); sacc(t0,t1); sadd(t0,t0,WS_R)
        I([f's_cmp_eq_u32 s{sAct}, 1', f's_cselect_b32 s86, s{t0}, 0x30000000'])
        I(f's_lshl_b32 s{t1}, s{sRb}, 1'); sacc(t1,sWr); smul(t1,t1,81920); sadd(t1,t1,WS_O)
        smul(t2,sGrp,10); I(f's_lshr_b32 s{t0}, s{t2}, 2'); I(f's_lshl_b32 s{t0}, s{t0}, 12'); sacc(t1,t0); I(f's_and_b32 s{t0}, s{t2}, 3'); I(f's_lshl_b32 s{t0}, s{t0}, 8'); sacc(t1,t0)
        I(f's_and_b32 s{t0}, s{sTyp}, s{sWc}'); I(f's_mov_b32 s87, {4*81920}'); I(f's_mov_b32 s93, 0x30000000'); I(f's_mov_b32 s{t4}, 81920')
        I([f's_cmp_eq_u32 s{t0}, 1', f's_cselect_b32 s86, s{t1}, s86', f's_cselect_b32 s87, 256, s87', f's_cselect_b32 s93, 3072, s93', f's_cselect_b32 s92, s{t2}, 0', f's_cselect_b32 s{t4}, 1024, s{t4}'])
        I(f'v_lshlrev_b32 v255, 4, v{vN}'); I(f'v_mad_u32_u24 v255, v{vG}, s{t4}, v255')
        for i in range(4): vconst(176+i,-1)
    I(f'v_lshlrev_b32 v218, 4, v{vL}'); I(f'v_add_u32 v219, 0x1000, v218')
weave([dmaB(i) for i in range(5)]+[dma_adv(SLOT)],cap(setup0))
I(f's_lshl_b32 s{t0}, s{sW}, 10'); I(f's_add_u32 m0, s{t0}, {L_PP}'); I(f'buffer_load_dwordx4 v213, {srd(sWO)}, s{sGo} offen lds')
I('s_mov_b64 exec, 0xffff'); I(f'buffer_store_dword v212, v217, {srd(sWS)}, s{sDl} offen sc1'); I('s_mov_b64 exec, -1')
A1AT=E('A1AT',4); B1AT=E('B1AT',0); A2AT=E('A2AT',-1)
gA1=[dmaA(i) for i in range(4)]+[advA(SLOT)]; gB1=[dmaB(i) for i in range(5)]+[advB(SLOT)]
stamp(5)
if PFX:
    setupPF()
    for _ in range(LEAD-2): emit(pf())
if A1AT==7: weave(cap(setup1),gA1)
else: setup1()
I(f's_cmp_eq_u32 s{sTyp}, 0'); I('s_cbranch_scc0 LsetFQ')
I(f's_lshl_b32 s{t0}, s{sWc}, 13'); smul(t1,sWr,1792); sacc(t0,t1); sadd(t0,t0,L_RED)
I(f'v_lshlrev_b32 v4, 2, v{vL}'); I(f'v_add_u32 v{vE0}, s{t0}, v4')
I(f's_lshl_b32 s{t0}, s{sGrp}, 1'); sacc(t0,sWc); I(f's_lshl_b32 s{t0}, s{t0}, 12'); sacc(t0,t1); sadd(t0,t0,WS_KVA)
I(f'v_add_u32 v{vE0+1}, s{t0}, v4')
I(f's_cmp_eq_u32 s{sWr}, 0'); I(f's_cselect_b32 s{t1}, 64, 8'); I(f'v_cmp_gt_u32 vcc, s{t1}, v{vL}')
I(f'v_cndmask_b32 v{vE0+2}, v{vE0+2}, v{vE0+1}, vcc')
I(f's_lshl_b32 s{t0}, s{sGrp}, 2'); sacc(t0,sW); I(f's_lshl_b32 s{t0}, s{t0}, 4'); sacc(t0,sRb)
I(f's_lshl_b32 s{t0}, s{t0}, 7'); sadd(t0,t0,WS_FL+FL_KV*128); I(f'v_mov_b32 v{vE0+3}, s{t0}')
I('s_branch Lsetdone')
lab('LsetFQ')
I(f's_cmp_eq_u32 s{sWc}, 0'); I('s_cbranch_scc0 Lsetdone')
I(f's_lshl_b32 s{t0}, s{sRb}, 1'); sacc(t0,sWr); smul(t0,t0,5120); smul(t1,sGrp,640); sacc(t0,t1)
I(f's_mov_b32 s{t1}, 163840'); I(f'v_lshlrev_b32 v4, 3, v{vN}'); I(f'v_mad_u32_u24 v4, v{vG}, s{t1}, v4'); I(f'v_add_u32 v{vE0}, s{t0}, v4')
I(f's_lshl_b32 s{t0}, s{sGrp}, 1'); sacc(t0,sWr); I(f's_lshl_b32 s{t0}, s{t0}, 4'); sacc(t0,sRb)
I(f's_lshl_b32 s{t0}, s{t0}, 7'); sadd(t0,t0,WS_FL+FL_Y*128); I(f'v_mov_b32 v{vE0+3}, s{t0}')
lab('Lsetdone')
AT1,AT2=192,224
TBL=[f's_cmp_eq_u32 s{sTyp}, 0','s_cbranch_scc0 LefF',f's_mov_b32 s{t0}, {TB.KA_OFF}']+[f'buffer_load_dwordx4 {v(vKA+4*i,4)}, v218, {srd(sTAB)}, s{t0} offen offset:{1024*i}' for i in range(2)]+['s_branch LefT','LefF:',
   f's_cmp_eq_u32 s{sWc}, 0','s_cbranch_scc0 Lnotb',f's_mov_b32 s{t0}, {TB.D1_OFF}',f's_mov_b32 s{t1}, {TB.D1_OFF+4096}']+[f'buffer_load_dwordx4 {a_(120+4*i,4)}, v218, {srd(sTAB)}, s{t0+i//4} offen offset:{1024*(i%4)}' for i in range(8)]+['LefT:',
   f's_cmp_eq_u32 s{sWc}, 0','s_cbranch_scc0 LefU',f's_mov_b32 s{t0}, {TB.D2_OFF}',f's_mov_b32 s{t1}, {TB.D2_OFF+4096}']+[f'buffer_load_dwordx4 {a_(160+4*i,4)}, v218, {srd(sTAB)}, s{t0+i//4} offen offset:{1024*(i%4)}' for i in range(8)]+['LefU:',
   f's_cmp_eq_u32 s{sT}, 0','s_cbranch_scc0 Lnotb']+sum([([f's_mov_b32 s{t0}, {TB.T1_OFF+1024*i}'] if i%4==0 else [])+[f'buffer_load_dwordx4 {a_(AT1+4*i,4)}, v218, {srd(sTAB)}, s{t0} offen offset:{1024*(i%4)}'] for i in range(16)],[])+['Lnotb:']
emit(TBL)
def fhex(x): return hex(struct.unpack('<I',struct.pack('<f',x))[0])
GP,G1,G16,GA,GS,GT=100,106,112,118,119,120
smul(t0,sWc,160); sacc(t0,sWr); I(f'v_lshlrev_b32 v{GT+3}, 3, v{vG}'); I(f'v_add_u32 v{GT+3}, s{t0}, v{GT+3}')
smul(t1,sCt,40)
for nt in range(3):
    d_,p_=GT+4,GT+5
    if nt<2: I(f'v_add_u32 v{d_}, {16*nt}, v{vN}')
    else: I(f'v_and_b32 v{d_}, 7, v{vN}'); I(f'v_add_u32 v{d_}, 32, v{d_}')
    I(f'v_add_u32 v{d_}, s{t1}, v{d_}'); I(f'v_mul_u32_u24 v{p_}, v{d_}, v{GT+3}'); I(f'v_cvt_f32_u32 v{p_}, v{p_}'); I(f'v_cvt_f32_u32 v{d_}, v{d_}')
    I(f'v_mul_f32 v{GT}, {fhex(1/640)}, v{p_}'); I(f'v_cos_f32 v{GP+2*nt}, v{GT}'); I(f'v_sin_f32 v{GP+2*nt+1}, v{GT}')
    I(f'v_mul_f32 v{GT+1}, {fhex(1/320)}, v{d_}'); I(f'v_cos_f32 v{G1+2*nt}, v{GT+1}'); I(f'v_sin_f32 v{G1+2*nt+1}, v{GT+1}')
    I(f'v_mul_f32 v{GT+2}, {fhex(1/20)}, v{d_}'); I(f'v_cos_f32 v{G16+2*nt}, v{GT+2}'); I(f'v_sin_f32 v{G16+2*nt+1}, v{GT+2}')
I(f'v_and_b32 v{GS}, 1, v{vN}'); I(f'v_lshlrev_b32 v{GS}, 31, v{GS}'); I(f'v_xor_b32 v{GS}, 0xbf800000, v{GS}')
I(f's_cmp_eq_u32 s{sW}, 0'); I(f's_cselect_b32 s{sEx}, 0xffff, 0'); I(f's_mov_b32 s{sEx+1}, 0')
smul(t0,sWr,30720); smul(t1,sWc,15360); sacc(t0,t1); sadd(t0,t0,L_G); I(f'v_add_u32 v{GA}, s{t0}, v218')
def rot(d,p,r,dd=None):
    dd=d if dd is None else dd
    I(f'v_pk_mul_f32 {v(d,2)}, {v(p,2)}, {v(r,2)} op_sel_hi:[1,0]')
    I(f'v_pk_fma_f32 {v(dd,2)}, {v(p,2)}, {v(r,2)}, {v(d,2)} op_sel:[1,1,0] op_sel_hi:[0,1,1] neg_lo:[0,1,0]')
stamp(6)
if A1AT==6: emit(gA1)
if B1AT==6: emit(gB1)
I(f's_mov_b32 s{sCnt}, 5'); lab('Lgg')
for nt in range(3):
    T=GT+nt*12; P0=GP+2*nt
    rot(T,P0,G1+2*nt); rot(T+2,T,G1+2*nt); rot(T+4,T+2,G1+2*nt)
    I(f'v_cndmask_b32 v{T+6}, v{P0+1}, v{GS}, s[{sEx}:{sEx+1}]')
    I(f'v_cvt_pk_bf16_f32 v{T+8}, v{P0}, v{T}'); I(f'v_cvt_pk_bf16_f32 v{T+9}, v{T+2}, v{T+4}')
    I(f'v_cvt_pk_bf16_f32 v{T+10}, -v{T+6}, -v{T+1}'); I(f'v_cvt_pk_bf16_f32 v{T+11}, -v{T+3}, -v{T+5}')
    I(f'ds_write_b128 v{GA}, {v(T+8,4)} offset:{1024*nt}')
    rot(T,P0,G16+2*nt,P0)
I(f'v_add_u32 v{GA}, 0xc00, v{GA}'); I(f's_mov_b32 s{sEx}, 0')
for at,grp_,nm in ((A1AT,gA1,'a'),(B1AT,gB1,'b'),(A2AT,gA1,'c')):
    if 1<=at<=5:
        I(f's_cmp_eq_u32 s{sCnt}, {at}'); I(f's_cbranch_scc0 Lgg{nm}'); emit(grp_); lab(f'Lgg{nm}')
I(f's_sub_u32 s{sCnt}, s{sCnt}, 1'); I(f's_cmp_lg_u32 s{sCnt}, 0'); I(f's_cbranch_scc1 Lgg')
AT1,AT2=192,224
stamp(7)
def tgen():
    TM=120; k=[0]
    def put(a,x,y):
        t=156+(k[0]&3); k[0]+=1
        I(f'v_cvt_pk_bf16_f32 v{t}, {x}, {y}'); I(f'v_accvgpr_write_b32 a{a}, v{t}'); return t
    I(f'v_lshlrev_b32 v4, 6, v{vN}'); I(f'v_add_u32 v4, s{sT}, v4'); I(f'v_cvt_f32_u32 v4, v4'); I(f'v_mul_f32 v4, 0x3a000000, v4'); I(f'v_add_f32 v5, 0.5, v4')
    I(f'v_lshlrev_b32 v6, 2, v{vG}'); I(f'v_cvt_f32_u32 v6, v6')
    for ks in range(2):
        for j in range(4):
            if 16*ks+j: I(f'v_add_f32 v7, {fhex(float(16*ks+j))}, v6')
            n2r=7 if 16*ks+j else 6
            for mh in range(2):
                c,s_=TM+4*mh,TM+4*mh+1
                I(f'v_mul_f32 v{s_}, v{4+mh}, v{n2r}'); I(f'v_cos_f32 v{c}, v{s_}'); I(f'v_sin_f32 v{s_}, v{s_}')
            for mh in range(2):
                c,s_=TM+4*mh,TM+4*mh+1
                put(AT1+(mh*2+ks)*4+j,f'v{c}',f'-v{s_}'); put(AT1+((2+mh)*2+ks)*4+j,f'v{s_}',f'v{c}')
    I(f'v_lshlrev_b32 v4, 8, v{vG}'); I(f'v_add_u32 v4, s{sT}, v4'); I(f'v_cvt_f32_u32 v4, v4'); I(f'v_mul_f32 v4, 0x3a000000, v4')
    I(f'v_cvt_f32_u32 v6, v{vN}'); I(f'v_add_f32 v7, 0x41800000, v6')
    for ks in range(2):
        for e in range(4):
            cst=0.5*ks+e/32.0
            if cst: I(f'v_add_f32 v5, {fhex(cst)}, v4')
            kr=5 if cst else 4
            for h in range(2):
                c,s_=TM+h*8+e,TM+h*8+4+e
                I(f'v_mul_f32 v{s_}, v{kr}, v{6+h}'); I(f'v_cos_f32 v{c}, v{s_}'); I(f'v_sin_f32 v{s_}, v{s_}')
        for h in range(2):
            c,s_=TM+h*8,TM+h*8+4; u0=AT2+(h*2+ks)*4; u1=AT2+((2+h)*2+ks)*4
            for p in range(2):
                t=put(u0+p,f'v{c+2*p}',f'v{c+2*p+1}'); I(f'v_accvgpr_write_b32 a{u1+2+p}, v{t}')
                put(u0+2+p,f'v{s_+2*p}',f'v{s_+2*p+1}'); put(u1+p,f'-v{s_+2*p}',f'-v{s_+2*p+1}')
TGL=cap(tgen)
if TGF:
    I(f's_cmp_eq_u32 s{sAct}, 0'); I('s_cbranch_scc1 Lnotg')
    if TGF==2: I(f's_cmp_eq_u32 s{sTyp}, 0'); I('s_cbranch_scc1 Lnotg'); I(f's_cmp_eq_u32 s{sT}, 0'); I('s_cbranch_scc1 Lnotg')
    emit(TGL)
lab('Lnotg')
stamp(8)
if B1AT==0: emit(gB1)
if A2AT==0: emit(gA1)
stamp(1)
def reads(F,ks):
    L=[]
    for mt in range(4): L.append(f'ds_read_b128 {v(F["A"]+4*mt,4)}, v{vRA+ks} offset:{2048*mt}')
    for nt in range(5):
        for h in range(2): L.append(f'ds_read_b64_tr_b16 {v(F["B"]+4*nt+2*h,2)}, v{vRB+nt} offset:{(32*ks+16*h)*160}')
    return L
def mfmas(F,z=False):
    L=[]
    for nt in range(5):
        for mt in range(4):
            c=v(ACC+(mt*5+nt)*4,4); L.append(f'{MF} {c}, {v(F["A"]+4*mt,4)}, {v(F["B"]+4*nt,4)}, {"0" if z else c}')
    return L
def block(M,R,X,pos):
    slots=[[] for _ in M]
    for g,x in R: slots[g].append(x)
    for g,x in zip(pos,X): slots[g].append(x)
    for m,s_ in zip(M,slots): I(m); emit(s_)
def adds(d): return [f'v_add_u32 v{r}, {d}, v{r}' for r in [vRA,vRB,vRB+1,vRB+2,vRB+3,vRB+4,vRA+1]]
I(f's_mov_b32 s{sCnt}, 0')
vconst(179,WS_E); I(f'buffer_load_dword v179, v179, {srd(sWS)}, 0 offen sc1')
I(f's_waitcnt vmcnt(10) lgkmcnt(0)'); I('s_barrier')
stamp(3)
I('ds_read_b64_tr_b16 v[4:5], v213'); I('ds_read_b64_tr_b16 v[6:7], v213 offset:512')
emit(reads(FX,0)[:12])
I('s_waitcnt lgkmcnt(12)'); I(f'buffer_store_dwordx4 v[4:7], v218, {srd(sWS)}, s{sB0+3} offen sc1')
emit(reads(FX,0)[12:])
def itertop(i=None):
    if TS and i==7: stamp(11)
    if TS and E('ITS',0):
        if i is None: I(f's_add_u32 m0, s{sCnt}, 48'); stamp('m0')
        else: stamp(48+i)
    I('s_waitcnt lgkmcnt(0)')
smul(t0,sWr,30720); sadd(t0,t0,L_G); I(f'v_add_u32 v8, s{t0}, v218')
GR=[f'ds_read_b128 {a_(4*i,4)}, v8 offset:{i*1024}' for i in range(30)]
I(f's_cmp_eq_u32 s{sWc}, 0'); I('s_cbranch_scc0 Lit0b')
I('s_waitcnt lgkmcnt(0)')
block(mfmas(FX,True),[(i*20//44,r) for i,r in enumerate(reads(FY,1)+GR)]+[(i*20//32,f'v_mov_b32 v{WP+i}, 0') for i in range(32)],gA1,[1,6,11,16,17])
I('s_branch Lit0c')
lab('Lit0b')
I('s_waitcnt lgkmcnt(0)')
block(mfmas(FX,True),list(enumerate(reads(FY,1)))+[(i*20//32,f'v_mov_b32 v{WP+i}, 0') for i in range(32)],([] if A2AT>=0 else gA1),[1,6,11,16,17])
lab('Lit0c')
I(f's_waitcnt vmcnt(5) lgkmcnt(0)'); I('s_barrier')
I(f'v_add_u32 v212, 0x9e3779b9, v179'); I('s_nop 0'); I(f'v_readfirstlane_b32 s{sTag}, v212')
ad=adds(SLOT)
R2=[(0,ad[0]),(0,ad[1]),(1,ad[2]),(1,ad[3]),(2,ad[4]),(2,ad[5]),(3,ad[6])]+[(i+2,r) for i,r in enumerate(reads(FX,0))]
block(mfmas(FY),R2,[dmaB(i) for i in range(5)]+[advB(SLOT)+(pf() if PFX else [])+([f's_mov_b32 s{t2}, {OOB}', f'buffer_load_dword v99, v98, {srd(sWR)}, s{t2} offen', f'buffer_load_dword v99, v98, {srd(sWI)}, s{t2} offen'] if PW else [])]+[dmaA(i) for i in range(4)]+[advA(-3*SLOT)],[0,2,4,6,8,9,10,12,14,16,17])
I(f's_mov_b32 s{sCnt}, 1')
POS=E('POS',0)
PB_,PA_={0:([1,5,9,13,16],[1,6,11,16]),1:([0,1,2,3,4],[0,1,2,3]),2:([0,2,4,6,8],[0,2,4,6]),3:([0,3,6,9,12],[0,3,6,9]),4:([6,9,12,14,16],[7,10,13,16])}[POS]
lab('Lmain')
itertop()
pre=[f's_add_u32 s{sCnt}, s{sCnt}, 1', f's_mov_b32 s{sDl}, {SLOT}', f's_mov_b32 s{sDm}, {SLOT}',
     f's_and_b32 s{t0}, s{sCnt}, 3', f's_cselect_b32 s{sDl}, s{sDl}, {-3*SLOT}', f's_cmp_eq_u32 s{t0}, 1', f's_cselect_b32 s{sDm}, {-3*SLOT}, s{sDm}']
eflag=[f's_cmp_eq_u32 s{sCnt}, {3 if HALF else 2}','s_cbranch_scc0 Lnoef','s_mov_b64 exec, 1',f'buffer_store_dword v212, v217, {srd(sWS)}, 0 offen sc1','s_mov_b64 exec, -1','Lnoef:']
ad=adds(f's{sDl}')
R2=[(0,ad[0]),(0,ad[1]),(1,ad[2]),(1,ad[3]),(2,ad[4]),(2,ad[5]),(3,ad[6])]+[(i+2,r) for i,r in enumerate(reads(FX,0))]
if HALF:
    preH=pre+[f's_mov_b32 s{t1}, {SLOT}', f's_cmp_eq_u32 s{t0}, 2', f's_cselect_b32 s{t1}, {-3*SLOT}, s{t1}']+advB(f's{t1}')
    pfl=([[f's_cmp_eq_u32 s{sCnt}, {10-LEAD}','s_cbranch_scc0 Lpfk','v_mov_b32 v98, 0','Lpfk:']+pf()] if PFX else [])
    if PW:
        pfl=[[f's_movk_i32 s{t2}, 0', f's_cmp_eq_u32 s{sCnt}, {PW+1}', f's_cselect_b32 s{t2}, s{t2}, {OOB}', f'buffer_load_dword v99, v98, {srd(sWR)}, s{t2} offen', f'buffer_load_dword v99, v98, {srd(sWI)}, s{t2} offen']]
    block(mfmas(FX),list(enumerate(reads(FY,1))),[dmaB(i) for i in range(5)]+[preH]+pfl,PB_+[17,18])
    I(f's_waitcnt vmcnt({11 if PFX else (13 if PW else 9)}) lgkmcnt(0)'); I('s_barrier')
    block(mfmas(FY),R2,[dmaA(i) for i in range(4)]+[advA(f's{sDm}'),eflag],PA_+[18,19])
else:
    block(mfmas(FX),list(enumerate(reads(FY,1))),[dmaA(i) for i in range(4)]+[pre],[1,6,11,16,18])
    I('s_waitcnt vmcnt(13) lgkmcnt(0)'); I('s_barrier')
    block(mfmas(FY),R2,[dmaB(i) for i in range(5)]+[dma_adv(f's{sDm}'),eflag],[1,5,9,13,17,18,19])
I(f's_cmp_lt_u32 s{sCnt}, 7'); I('s_cbranch_scc1 Lmain')
def wload(base,vp,vm,vm0,i,which):
    mh,r=i>>2,i&3; sb=(sB0,sB1)[mh]
    if which==0:
        return [f's_add_u32 s{t2}, s{sb}, {64*r*642}', f'buffer_load_short_d16_hi v{base+i}, v{vp}, {srd(sWR)}, s{t2} offen {POLW}', f'buffer_load_short_d16_hi v{base+8+i}, v{vp}, {srd(sWI)}, s{t2} offen {POLW}']
    m=vm0 if i==0 else vm
    return [f's_sub_u32 s{t2}, {(1280-64*r-(256 if i==0 else 0))*642}, s{sb}', f'buffer_load_short_d16_hi v{base+16+i}, v{m}, {srd(sWR)}, s{t2} offen {POLW}', f'buffer_load_short_d16_hi v{base+24+i}, v{m}, {srd(sWI)}, s{t2} offen {POLW}']
WL=[wload(WP,vWp,vWm,vWm0,i,w) for i in range(8) for w in range(2)]
PST=[[f'buffer_store_dwordx4 v[176:179], v255, {srd(sWS)}, s86 offen sc1', 's_add_u32 s86, s86, s87', 's_add_u32 s92, s92, 1', f's_and_b32 s{t1}, s92, 3', f's_cselect_b32 s{t1}, 0, s93', f's_add_u32 s86, s86, s{t1}'] for _ in range(10)] if POI else []
pplan={(7,0):0,(7,1):4,(8,0):3,(8,1):3,(9,0):0,(9,1):0}; pl_=0
wl=0; vm=0
W3L=['v_mov_b32 v252, 0','v_mov_b32 v253, 0',f'buffer_load_short_d16_hi v252, v254, {srd(sWR)}, 0 offen offset:640 {POLW}',f'buffer_load_short_d16_hi v253, v254, {srd(sWI)}, 0 offen offset:640 {POLW}']
FLG=[f'buffer_load_dword v198, v196, {srd(sWS)}, 0 offen sc1', f'buffer_load_dword v199, v197, {srd(sWS)}, 0 offen sc1']
plan={16:{(7,0):0,(7,1):3,(8,0):4,(8,1):4,(9,0):3,(9,1):2},8:{(7,0):0,(7,1):1,(8,0):2,(8,1):2,(9,0):2,(9,1):1},10:{(7,0):0,(7,1):2,(8,0):2,(8,1):2,(9,0):2,(9,1):2},0:{(7,0):0,(7,1):0,(8,0):0,(8,1):0,(9,0):0,(9,1):0},6:{(7,0):0,(7,1):2,(8,0):2,(8,1):2,(9,0):0,(9,1):0}}[WS1]
def pos(n,a=2,b=17): return [a+(b-a)*i//max(n-1,1) for i in range(n)]
for s_ in (7,8,9):
    itertop(s_)
    X=WL[wl:wl+plan[(s_,0)]]; wl+=plan[(s_,0)]
    X=PST[pl_:pl_+pplan[(s_,0)]]+X; pl_+=len(PST[pl_:pl_+pplan[(s_,0)]])
    if s_==7: X=([dmaB(i) for i in range(5)] if HALF else [])+[FLG]+X
    block(mfmas(FX),list(enumerate(reads(FY,1))),X,pos(len(X)))
    if s_==7: I(f's_waitcnt vmcnt({11+2*wl+(1 if PFX else (2 if PW else 0))}) lgkmcnt(0)')
    elif s_==8: I(f's_waitcnt vmcnt({2*wl+pl_}) lgkmcnt(0)')
    else: I('s_waitcnt lgkmcnt(0)')
    I('s_barrier')
    if s_<9:
        ad=adds(SLOT if s_==8 else -3*SLOT)
        R2=[(0,ad[0]),(0,ad[1]),(1,ad[2]),(1,ad[3]),(2,ad[4]),(2,ad[5]),(3,ad[6])]+[(i+2,r) for i,r in enumerate(reads(FX,0))]
    else: R2=[]
    X=WL[wl:wl+plan[(s_,1)]]; wl+=plan[(s_,1)]
    X=PST[pl_:pl_+pplan[(s_,1)]]+X; pl_+=len(PST[pl_:pl_+pplan[(s_,1)]])
    if s_==9: X=X+[W3L]
    block(mfmas(FY),R2,X,pos(len(X),3,18 if s_==9 else 16))
assert wl==WS1
I(f's_mov_b32 s{sAo}, 0x3fb8aa3b'); I(f's_mov_b32 s{sAo+1}, 0x358637bd')
I(f'v_cmp_ne_u32 vcc, s{sTag}, v198'); I(f'v_cmp_ne_u32 s[{t4}:{t5}], s{sTag}, v199'); I(f's_or_b64 vcc, vcc, s[{t4}:{t5}]'); I('s_cbranch_vccz Leok')
poll([196,197],198)
lab('Leok')
I('s_nop 3')
stamp(14)
def acc(mt,nt,r=0,n=1): return v(ACC+(mt*5+nt)*4+r,n)
def phi2(dst,src,tmp):
    I(f'v_pk_mul_f32 {v(tmp,2)}, {v(src,2)}, s[{sAo}:{sAo+1}] op_sel_hi:[1,0]')
    I(f'v_exp_f32 v{tmp}, v{tmp} clamp'); I(f'v_exp_f32 v{tmp+1}, v{tmp+1} clamp')
    I(f'v_max_f32 v{dst}, s{sAo+1}, v{src}'); I(f'v_max_f32 v{dst+1}, s{sAo+1}, v{src+1}')
    I(f'v_pk_add_f32 {v(dst,2)}, {v(dst,2)}, {v(tmp,2)}')
def bl(i,AB):
    ks,nt=divmod(i,5)
    L=[f'buffer_load_dwordx4 {a_(AB+4*i,4)}, v{218 if nt<4 else 219}, {srd(sWS)}, s{sGo} offen offset:{1024*(nt%4)} {WOP}']
    return L+([f's_add_u32 s{sGo}, s{sGo}, 40960', f's_cmp_eq_u32 s{sGo}, s{sGe}', f's_cselect_b32 s{sGo}, s{sGb}, s{sGo}'] if nt==4 else [])
def bls(a,b,AB=0): return [bl(i,AB) for i in range(a,b)]
I(f's_cmp_eq_u32 s{sTyp}, 0'); I('s_cbranch_scc0 LepiFQ')
PK=100; VV=124; DD=148; PAIRS=TB.PAIRS
NB0=E('NB0',14); NB1=E('NB1',14)
def kvepi():
    for nt in (2,3,4):
        for mt in range(4):
            for p in range(2): I(f'v_cvt_pk_bf16_f32 v{VV+(nt-2)*8+mt*2+p}, {acc(mt,nt,2*p)}, {acc(mt,nt,2*p+1)}')
    I(f'v_cmp_gt_u32 vcc, 8, v{vN}'); vconst(4,0x3f803f80)
    I(f's_lshl_b32 s{t0}, s{sW}, 12'); sadd(t0,t0,L_RED)
    for i in range(8): I(f'v_cndmask_b32 v{VV+i}, v{VV+i}, v4, vcc')
    for i in range(8): I(f'v_add_u32 v{vKA+i}, s{t0}, v{vKA+i}')
    for nt in range(3):
        for mt in range(4):
            for p in range(2):
                b=ACC+(mt*5+nt)*4+2*p
                phi2(b,b,4+2*p); I(f'v_cvt_pk_bf16_f32 v{PK+nt*8+mt*2+p}, v{b}, v{b+1}')
        for kb in range(2):
            for i,(a,b) in enumerate(PAIRS):
                if a==nt: I(f'{MF} {v(DD+4*i,4)}, {v(PK+a*8+4*kb,4)}, {v(VV+(b-2)*8+4*kb,4)}, {"0" if kb==0 else v(DD+4*i,4)}')
        if nt>0:
            for i,(a,b) in enumerate(PAIRS):
                if a==nt-1: I(f'ds_write_b128 v{vKA+i}, {v(DD+4*i,4)}')
P=cap(kvepi)
def grp_if_b(L):
    uid[0]+=1; n=f'Lb{uid[0]}'
    return [f's_cmp_eq_u32 s{sWc}, 0', f's_cbranch_scc1 {n}']+L+[n+':']
NBE=E('NBE',0)
weave(P,[grp_if_b(bls(i,i+2)) for i in range(0,NBE,2)],0,len(P)*E('EPIF',70)//100)
for i,(a,b) in enumerate(PAIRS):
    if a==2: I(f'ds_write_b128 v{vKA+i}, {v(DD+4*i,4)}')
I('s_waitcnt lgkmcnt(0)'); I('s_barrier')
for i in range(7): I(f'ds_read2st64_b32 {v(16+2*i,2)}, v{vE0} offset0:{i} offset1:{i+16}')
for i in range(7):
    I(f's_waitcnt lgkmcnt({6-i})'); I(f'v_add_f32 v{16+2*i}, v{16+2*i}, v{17+2*i}')
    I(f'buffer_atomic_add_f32 v{16+2*i}, v{vE0+1+(i==6)}, {srd(sWS)}, 0 offen offset:{256*i} {ATP}')
stamp(15)
I('s_branch Lp2a')
lab('LepiFQ')
I(f's_cmp_eq_u32 s{sWc}, 0'); I('s_cbranch_scc0 LepiQ')
XB=100; YD=140
def xcv(nt):
    for mt in range(4):
        for p in range(2): I(f'v_cvt_pk_bf16_f32 v{XB+nt*8+mt*2+p}, {acc(mt,nt,2*p)}, {acc(mt,nt,2*p+1)}')
def ymf(nt):
    for kb in range(2):
        for jt in range(4):
            d=v(YD+(nt&1)*16+4*jt,4)
            I(f'{MF} {d}, {a_(120+(jt*2+kb)*4,4)}, {v(XB+nt*8+4*kb,4)}, {"0" if kb==0 else d}')
def yst(nt):
    for jt in range(4):
        b=YD+(nt&1)*16+4*jt; o=172+jt*2
        I([f'v_cvt_pk_bf16_f32 v{o}, v{b}, v{b+1}', f'v_cvt_pk_bf16_f32 v{o+1}, v{b+2}, v{b+3}',
           f'buffer_store_dwordx2 {v(o,2)}, v{vE0}, {srd(sWS)}, s{t0+jt} offen offset:{128*nt} sc1'])
for jt in range(4): I(f's_mov_b32 s{t0+jt}, {4*jt*163840}')
xcv(0)
weave(cap(ymf,0),cap(xcv,1))
for nt in range(5):
    if nt<4:
        F_=(cap(xcv,nt+2) if nt<3 else [])
        Y_=cap(yst,nt)
        M=cap(ymf,nt+1)
        for i,m in enumerate(M):
            I(m)
            if i<4: emit(F_[2*i:2*i+2])
            else: emit(Y_[i-4])
    else: yst(nt)
stamp(15)
I('s_waitcnt vmcnt(0)'); setflag(vE0+3,4)
stamp(16)
TCH=E('TCH',0)
I(f's_cmp_eq_u32 s{sAct}, 0'); I(f's_cbranch_scc{0 if TCH else 1} {"Lact" if TCH else "Lp3"}')
if TCH:
    I(f's_lshr_b32 s{t0}, s2, 6'); I(f's_lshl_b32 s{t0}, s{t0}, 2'); I(f's_bfe_u32 s{t1}, s2, 0x10003'); I(f's_lshl_b32 s{t1}, s{t1}, 1'); sacc(t0,t1); sacc(t0,sWr); smul(t0,t0,200)
    I(f's_and_b32 s{t1}, s2, 1'); smul(t1,t1,20480); sadd(t1,t1,WS_WOF)
    for q in range(4):
        I(f'v_add_u32 v4, {50*q}, v{vL}'); I(f'v_min_u32 v4, {50*q+49}, v4'); I(f'v_add_u32 v4, s{t0}, v4')
        I(f'v_mul_u32_u24 v5, 0x6667, v4'); I(f'v_lshrrev_b32 v5, 22, v5'); I(f'v_mul_u32_u24 v5, 20480, v5'); I(f'v_lshl_add_u32 v4, v4, 7, v5')
        I(f'buffer_load_dword v{232+q}, v4, {srd(sWS)}, s{t1} offen sc1')
    I('s_branch Lp3')
    lab('Lact')
T1,T2,W3,YF,EF,TM,PQ=16,48,112,144,160,80,184
vY,vF,vXW,vXR,vRS,vLF=8,9,10,11,12,13
def p2addr():
    smul(t0,sCh,32*0x334); sadd(t1,t0,31*0x334); I(f's_lshr_b32 s{t0}, s{t0}, 16'); I(f's_lshr_b32 s{t1}, s{t1}, 16')
    I(f'v_mov_b32 v4, s{t0}'); I(f'v_mov_b32 v5, s{t1}'); I(f'v_cmp_gt_u32 vcc, 32, v{vL}'); I(f'v_cndmask_b32 v4, v5, v4, vcc')
    I(f'v_and_b32 v5, 31, v{vL}'); I(f'v_lshl_add_u32 v4, v4, 5, v5'); I(f'v_lshlrev_b32 v4, 7, v4'); I(f'v_add_u32 v{vF}, {WS_FL+FL_Y*128}, v4')
    I(f's_lshr_b32 s{t0}, s{sT}, 1'); smul(t0,t0,163840); I(f's_lshl_b32 s{t1}, s{sCh}, 8'); sacc(t0,t1); I(f's_lshl_b32 s{t1}, s{sWr}, 2'); sacc(t0,t1)
    I(f'v_mul_u32_u24 v4, 20480, v{vG}'); I(f'v_lshl_add_u32 v4, v{vN}, 3, v4'); I(f'v_add_u32 v{vY}, s{t0}, v4')
    smul(t0,sWc,8704); sadd(t0,t0,L_XCH[0])
    I(f's_lshl_b32 s{t1}, s{sWr}, 5'); sacc(t1,t0)
    I(f'v_mul_u32_u24 v{vXW}, 272, v{vN}'); I(f'v_lshl_add_u32 v{vXW}, v{vG}, 6, v{vXW}'); I(f'v_add_u32 v{vXW}, s{t1}, v{vXW}')
    smul(t1,sWr,16*272); sacc(t1,t0)
    I(f'v_mul_u32_u24 v{vXR}, 272, v{vG}'); I(f'v_lshl_add_u32 v{vXR}, v{vN}, 4, v{vXR}'); I(f'v_add_u32 v{vXR}, s{t1}, v{vXR}')
    smul(t0,sWr,16*81920); I(f's_lshl_b32 s{t1}, s{sCh}, 12'); sacc(t0,t1)
    I(f's_lshr_b32 s{t1}, s{sT}, 1'); I(f's_lshl_b32 s{t1}, s{t1}, 8'); sacc(t0,t1); sadd(t0,t0,WS_R)
    I(f's_mov_b32 s{t1}, 81920'); I(f'v_lshlrev_b32 v{vRS}, 4, v{vN}'); I(f'v_mad_u32_u24 v{vRS}, v{vG}, s{t1}, v{vRS}'); I(f'v_add_u32 v{vRS}, s{t0}, v{vRS}')
    I(f's_lshl_b32 s{t0}, s{sWc}, 2'); sadd(t0,t0,L_FLG); I(f'v_mov_b32 v{vLF}, s{t0}')
    I([f's_cmp_ge_u32 s{sCh}, 10', f's_cselect_b32 s{t3}, 10, 0', f's_cselect_b32 s{t4}, 96, 0']); I(f's_sub_u32 s{t3}, s{sCh}, s{t3}')
    I(f's_lshl_b32 s{t0}, s{t3}, 3'); sacc(t0,sGrp); sacc(t0,t4)
    I(f's_lshl_b32 s{t1}, s{t3}, 4'); I(f's_lshr_b32 s{t2}, s{sT}, 1'); sacc(t1,t2); I(f's_sub_u32 s{t1}, s{t1}, 64'); sacc(t1,t4)
    I([f's_cmp_eq_u32 s{sTyp}, 0', f's_cselect_b32 s{t0}, s{t0}, s{t1}', f's_cselect_b32 s{sAct}, 3, 1'])
    I(f's_and_b32 s{t1}, s{t0}, 1'); I(f's_lshl_b32 s{t1}, s{t1}, 2'); I(f's_lshr_b32 s{t0}, s{t0}, 1'); I(f's_lshl_b32 s{t0}, s{t0}, 7'); sacc(t0,t1); sadd(t0,t0,WS_FL+FL_R*128); I(f'v_mov_b32 v15, s{t0}')
lab('Lp2a')
assert WS1==16
W2=[]
TSP=E('TSP',80)
def pub1(n):
    I(f's_cmp_eq_u32 s{sTyp}, 0'); I(f's_cbranch_scc0 Lnp{n}')
    I('s_waitcnt vmcnt(0)'); setflag(vE0+3,8); stamp(16); lab(f'Lnp{n}')
I(f's_cmp_eq_u32 s{sT}, 0'); I('s_cbranch_scc0 Ldotg'); pub1(0); I('s_branch Lskiptg')
lab('Ldotg'); k_=len(TGL)*TSP//100
emit(TGL[:k_]); pub1(1); emit(TGL[k_:]); lab('Lskiptg')
p2addr()
lab('Lp2b')
emit(W2)
I(f's_cmp_eq_u32 s{sCh}, 0'); I('s_cbranch_scc0 Lnosp1')
I(f's_lshl_b32 s{t0}, s{sW}, 9'); sadd(t0,t0,L_PP)
I(f'v_lshlrev_b32 v4, 2, v{vL}'); I(f'v_add_u32 v4, s{t0}, v4'); I(f'v_lshlrev_b32 v5, 4, v{vG}'); I(f'v_add_u32 v5, s{t0}, v5')
I(f'ds_write_b32 v4, v252'); I(f'ds_write_b32 v4, v253 offset:256')
for arr,off in ((0,0),(8,256),(16,128),(24,384)):
    for mh in range(2): I(f'ds_read_b128 {v(W3+arr+4*mh,4)}, v5 offset:{off+64*mh}')
lab('Lnosp1')
I('s_waitcnt lgkmcnt(0)')
stamp(17)
poll([vF],14)
stamp(18)
for ks in range(2):
    for i in range(4):
        I(f's_mov_b32 s{t0}, {(16*ks+i)*5120}')
        for ri in range(2): I(f'buffer_load_dword v{YF+(ri*2+ks)*4+i}, v{vY}, {srd(sWS)}, s{t0} offen offset:{128*ri} {HS}')
for ks in range(2):
    I(f's_waitcnt vmcnt({8-8*ks})')
    for mt in (0,2,1,3):
        for ri in range(2):
            d=v(EF+(mt*2+ri)*4,4)
            I(f'{MF} {d}, {a_(AT1+(mt*2+ks)*4,4)}, {v(YF+(ri*2+ks)*4,4)}, {"0" if ks==0 else d}')
stamp(19)
EF2=EF
def pk(op,d,*s,neg=None):
    t=f'v_pk_{op}_f32 {v(d,2)}, '+', '.join(v(x,2) for x in s)
    if neg: t+=f' neg_lo:{neg} neg_hi:{neg}'
    I(t)
PQ=16
Pre,Pim,Qre,Qim=PQ,PQ+8,PQ+16,PQ+24
def EFr(typ,mh,ri,p): return EF+((typ*2+mh)*2+ri)*4+2*p
for mh in range(2):
    for p in range(2):
        o=mh*4+2*p; Er,Ei,Fr,Fi=EFr(0,mh,0,p),EFr(0,mh,1,p),EFr(1,mh,0,p),EFr(1,mh,1,p)
        wpr,wpi,wmr,wmi=WP+o,WP+8+o,WP+16+o,WP+24+o
        T=TM+(p*16)
        pk('add',T,Er,Fi); pk('add',T+2,Ei,Fr,neg='[0,1]'); pk('add',T+4,Er,Fi,neg='[0,1]'); pk('add',T+6,Ei,Fr)
        pk('mul',T+8,T,wpr); pk('mul',T+10,T,wpi); pk('mul',T+12,T+4,wmr); pk('mul',T+14,T+4,wmi)
        pk('fma',T+8,T+2,wpi,T+8,neg='[1,0,0]'); pk('fma',T+10,T+2,wpr,T+10); pk('fma',T+12,T+6,wmi,T+12,neg='[1,0,0]'); pk('fma',T+14,T+6,wmr,T+14)
        pk('add',Pre+o,T+8,T+12); pk('add',Pim+o,T+10,T+14); pk('add',Qre+o,T+14,T+10,neg='[0,1]'); pk('add',Qim+o,T+8,T+12,neg='[0,1]')
I(f's_cmp_eq_u32 s{sT}, 0'); I('s_cbranch_scc0 Lnot0')
I('s_mov_b64 exec, 0xffff')
Er,Ei,Fr,Fi=EFr(0,0,0,0),EFr(0,0,1,0),EFr(1,0,0,0),EFr(1,0,1,0)
I(f'v_mul_f32 v{Pre}, v{Er}, v{WP}'); I(f'v_fma_f32 v{Pre}, -v{Ei}, v{WP+8}, v{Pre}')
I(f'v_mul_f32 v{Pim}, v{Er}, v{WP+8}'); I(f'v_fma_f32 v{Pim}, v{Ei}, v{WP}, v{Pim}')
I(f'v_mul_f32 v{Qre}, v{Fr}, v{WP+16}'); I(f'v_fma_f32 v{Qre}, -v{Fi}, v{WP+24}, v{Qre}')
I(f'v_mul_f32 v{Qim}, v{Fr}, v{WP+24}'); I(f'v_fma_f32 v{Qim}, v{Fi}, v{WP+16}, v{Qim}')
I('s_mov_b64 exec, -1')
lab('Lnot0')
I(f's_cmp_eq_u32 s{sCh}, 0'); I('s_cbranch_scc0 Lnosp2')
I(f's_mov_b32 exec_lo, 0x10001'); I(f's_mov_b32 exec_hi, 0x10001')
for mh in range(2):
    for p in range(2):
        o=mh*4+2*p; Er,Ei,Fr,Fi=EFr(0,mh,0,p),EFr(0,mh,1,p),EFr(1,mh,0,p),EFr(1,mh,1,p)
        T=TM
        pk('add',T,WP+o,WP+16+o); pk('add',T+2,WP+8+o,WP+24+o,neg='[0,1]'); pk('add',T+4,W3+o,W3+16+o); pk('add',T+6,W3+8+o,W3+24+o,neg='[0,1]')
        for q in range(4): I(f'v_pk_mul_f32 {v(T+2*q,2)}, {v(T+2*q,2)}, 0.5')
        pk('mul',Pre+o,Er,T); pk('mul',Qre+o,Fr,T); pk('mul',Pim+o,Ei,T+4); pk('mul',Qim+o,Fi,T+4)
        pk('fma',Pre+o,Fr,T+2,Pre+o); pk('fma',Qre+o,Er,T+2,Qre+o,neg='[1,0,0]'); pk('fma',Pim+o,Fi,T+6,Pim+o); pk('fma',Qim+o,Ei,T+6,Qim+o,neg='[1,0,0]')
I(f's_cmp_eq_u32 s{sT}, 0'); I('s_cbranch_scc0 Lnocorner')
I('s_mov_b64 exec, 1')
Er,Ei,Fr,Fi=EFr(0,0,0,0),EFr(0,0,1,0),EFr(1,0,0,0),EFr(1,0,1,0)
for d,x,w in ((Pre,Er,WP),(Pim,Ei,W3),(Qre,Fr,WP+16),(Qim,Fi,W3+16)):
    I(f'v_mul_f32 v{d}, v{x}, v{w}'); I(f'v_mul_f32 v{d}, 0.5, v{d}')
lab('Lnocorner')
I('s_mov_b64 exec, -1')
lab('Lnosp2')
for mh in range(2):
    for ri in range(2):
        for q,src in enumerate(((Pre,Pim)[ri],(Qre,Qim)[ri])):
            for p in range(2): I(f'v_cvt_pk_bf16_f32 v{YF+(ri*2+mh)*4+2*q+p}, v{src+mh*4+2*p}, v{src+mh*4+2*p+1}')
for ks in range(2):
    for nt in range(4):
        for ri in range(2):
            d=v(EF+(nt*2+ri)*4,4)
            I(f'{MF} {d}, {v(YF+(ri*2+ks)*4,4)}, {a_(AT2+(nt*2+ks)*4,4)}, {"0" if ks==0 else d}')
for nt in range(4):
    for ri in range(2):
        for p in range(2): I(f'v_cvt_pk_bf16_f32 v{TM+nt*4+ri*2+p}, v{EF+(nt*2+ri)*4+2*p}, v{EF+(nt*2+ri)*4+2*p+1}')
    I(f'ds_write_b128 v{vXW}, {v(TM+nt*4,4)} offset:{(nt&1)*16*272+(nt>>1)*16}')
stamp(20)
ldssync(vLF,14)
for i in range(4): I(f'ds_read_b128 {v(TM+16+4*i,4)}, v{vXR} offset:{4*272*i}')
for i in range(4):
    I(f's_mov_b32 s{t0}, {4*81920*i}'); I(f's_waitcnt lgkmcnt({3-i})')
    I(f'buffer_store_dwordx4 {v(TM+16+4*i,4)}, v{vRS}, {srd(sWS)}, s{t0} offen sc1')
vconst(10,L_FLG+8); vconst(11,1)
stamp(21)
if not POI: I('s_waitcnt vmcnt(0)')
I('s_mov_b64 exec, 1'); I('ds_add_rtn_u32 v11, v10, v11'); I('s_mov_b64 exec, -1'); I('s_waitcnt lgkmcnt(0)')
I(f'v_readfirstlane_b32 s{t0}, v11'); I(f's_cmp_eq_u32 s{t0}, s{sAct}'); I('s_cbranch_scc0 Lnopub')
setflag(15,12)
lab('Lnopub')
stamp(22)
I(f's_cmp_eq_u32 s{sWc}, 0'); I('s_cbranch_scc1 Lp3')
if E('WGW',1):
    I(f's_mov_b32 s{sTo}, 0x400000'); lab('Lwgw')
    I(f'ds_read_b32 v11, v10'); I('s_waitcnt lgkmcnt(0)'); I(f'v_cmp_ge_u32 vcc, s{sAct}, v11')
    I(f's_cbranch_vccz Lwb'); I(f's_sub_u32 s{sTo}, s{sTo}, 1'); I(f's_cbranch_scc0 Lwgw')
lab('Lwb')
NBE=E('NBE',0)
if not E('NOWB',0): emit(bls(NBE,5*KB))
I('s_branch Lp3')
lab('LepiQ')
vPW,vPR,vKR,vOS,vO5,vKW,vKP=4,5,100,104,106,108,112
I(f's_lshl_b32 s{t1}, s{sRb}, 1'); sacc(t1,sWr); smul(t2,t1,1280); smul(t3,sGrp,8*40960); sacc(t2,t3)
I(f'v_and_b32 v8, 7, v{vL}'); I(f'v_lshlrev_b32 v8, 4, v8'); I(f'v_lshrrev_b32 v9, 3, v{vL}'); I(f'v_mul_u32_u24 v10, 40960, v9'); I(f'v_add_u32 v10, v10, v8')
GX=120; GW=160
I(f'v_mov_b32 v115, v10'); I(f'v_mov_b32 v116, v8'); I(f's_mov_b32 s{sCnt}, s{t2}')
GLD=[[f'buffer_load_dwordx4 {v(GX+4*j,4)}, v115, {srd(sX)}, s{sCnt} offen offset:{128*j}', f'buffer_load_dwordx4 {v(GW+4*j,4)}, v116, {srd(sGATE)}, 0 offen offset:{128*j}'] for j in range(10)]
I(f's_lshl_b32 s{t2}, s{t1}, 8'); I(f's_lshl_b32 s{t3}, s{sGrp}, 5'); sacc(t2,t3); sadd(t2,t2,WS_G)
I(f'v_lshlrev_b32 v9, 2, v9'); I(f'v_add_u32 v9, s{t2}, v9'); vconst(10,OOB); I(f'v_cmp_eq_u32 vcc, 0, v8'); I(f'v_cndmask_b32 v114, v10, v9, vcc')
smul(t0,sWr,L_PQ[1]-L_PQ[0]); sadd(t0,t0,L_PQ[0])
I(f'v_mul_u32_u24 v{vPW}, {PQS}, v{vN}'); I(f'v_lshl_add_u32 v{vPW}, v{vG}, 3, v{vPW}'); I(f'v_add_u32 v{vPW}, s{t0}, v{vPW}')
def qepi():
    for nt in range(5):
        for mt in range(4):
            b=ACC+(mt*5+nt)*4
            phi2(b,b,8); phi2(b+2,b+2,10)
            I(f'v_cvt_pk_bf16_f32 v{b}, v{b}, v{b+1}'); I(f'v_cvt_pk_bf16_f32 v{b+1}, v{b+2}, v{b+3}')
            I(f'ds_write_b64 v{vPW}, {v(b,2)} offset:{16*nt*PQS+32*mt}')
QW=E('QW',20)
P_=cap(qepi)
weave(P_,GLD+bls(0,QW),len(P_)*E('QS',30)//100,len(P_))
stamp(15)
I(f's_waitcnt vmcnt({QW})')
stamp(16)
vconst(8,0); vconst(9,0)
for i in range(40): I(f'v_dot2_f32_bf16 v{8+(i&1)}, v{GX+i}, v{GW+i}, v{8+(i&1)}')
I('s_nop 2'); I('v_add_f32 v8, v8, v9')
for ctl in ('quad_perm:[1,0,3,2]','quad_perm:[2,3,0,1]','row_half_mirror'):
    I('s_nop 1'); I(f'v_add_f32_dpp v8, v8, v8 {ctl} row_mask:0xf bank_mask:0xf')
I('v_cvt_pk_bf16_f32 v8, v8, v8'); I('v_and_b32 v8, 0xffff0000, v8'); I(f'v_mul_f32 v8, s{sAo}, v8'); I('v_exp_f32 v8, -v8'); I('v_add_f32 v8, 1.0, v8'); I('v_rcp_f32 v8, v8')
I('v_cvt_pk_bf16_f32 v8, v8, v8'); I('v_and_b32 v8, 0xffff0000, v8')
I(f'buffer_store_dword v8, v114, {srd(sWS)}, 0 offen sc1')
I(f'v_bfe_u32 v8, v{vL}, 2, 2'); I(f'v_lshl_add_u32 v8, v{vG}, 3, v8'); I(f'v_and_b32 v9, 3, v{vL}'); I(f'v_lshlrev_b32 v9, 3, v9'); I(f'v_add_u32 v9, s{t0}, v9')
for hh in range(2):
    I(f'v_add_u32 v10, {4*hh}, v8'); I(f'v_min_u32 v10, 19, v10'); I(f'v_mul_u32_u24 v10, {PQS}, v10'); I(f'v_add_u32 v{vPR+hh}, v10, v9')
smul(t1,sWr,5504); sadd(t1,t1,L_KVI)
for i in range(4): vconst(8+i,0)
I(f'v_add_u32 v12, s{t1}, v218')
for i in range(5): I(f'ds_write_b128 v12, v[8:11] offset:{1024*i}')
I(f's_mov_b64 exec, 0xffffff'); I(f'ds_write_b128 v12, v[8:11] offset:5120'); I('s_mov_b64 exec, -1')
for i in range(4):
    I(f'v_add_u32 v8, {64*i}, v{vL}'); I(f'v_mul_u32_u24 v9, 0xc31, v8'); I(f'v_lshrrev_b32 v9, 16, v9')
    I(f'v_mul_u32_u24 v10, 21, v9'); I(f'v_sub_u32 v10, v8, v10')
    I(f'v_cmp_lt_u32 vcc, 4, v9'); I(f'v_cndmask_b32 v11, 0, 1, vcc')
    I(f'v_mad_u32_u24 v10, v11, 21, v10'); I(f'v_mul_u32_u24 v11, 5, v11'); I(f'v_sub_u32 v9, v9, v11')
    I(f'v_lshlrev_b32 v10, 6, v10'); I(f'v_lshl_add_u32 v10, v9, 3, v10'); I(f'v_add_u32 v{vKW+i}, s{t1}, v10')
vconst(11,L_PP); I(f'v_cmp_gt_u32 vcc, 18, v{vL}'); I(f'v_cndmask_b32 v{vKW+3}, v11, v{vKW+3}, vcc')
I(f'v_lshlrev_b32 v8, 4, v{vG}'); I(f'v_add_u32 v8, s{t1}, v8')
I(f'v_lshl_add_u32 v{vKR}, v{vN}, 6, v8'); I(f'v_add_u32 v{vKR+1}, {21*64}, v{vKR}')
I(f'v_and_b32 v9, 3, v{vN}'); I(f'v_lshrrev_b32 v10, 2, v{vN}')
for hb in range(2):
    I(f'v_and_b32 v11, 1, v10'); I(f'v_lshl_add_u32 v11, v11, 1, v9'); I(f'v_add_u32 v11, {21*hb+16}, v11')
    I(f'v_lshrrev_b32 v12, 1, v10'); I(f'v_cmp_eq_u32 vcc, {hb}, v12'); I(f'v_cmp_gt_u32 s[{t4}:{t5}], 2, v9'); I(f's_and_b64 vcc, vcc, s[{t4}:{t5}]')
    I(f'v_cndmask_b32 v11, 42, v11, vcc'); I(f'v_cmp_eq_u32 vcc, {2+hb}, v9'); I(f'v_cndmask_b32 v11, v11, {21*hb+20}, vcc')
    I(f'v_lshl_add_u32 v{vKR+2+hb}, v11, 6, v8')
I(f's_lshl_b32 s{t1}, s{sRb}, 1'); sacc(t1,sWr); smul(t2,t1,81920); sadd(t2,t2,WS_O)
smul(t3,sGrp,10)
for hp in range(2):
    I(f'v_add_u32 v8, {5*hp}, v{vG}'); I(f'v_add_u32 v8, s{t3}, v8')
    I(f'v_lshrrev_b32 v9, 2, v8'); I(f'v_and_b32 v8, 3, v8'); I(f'v_lshlrev_b32 v9, 12, v9'); I(f'v_lshl_add_u32 v9, v8, 8, v9')
    I(f'v_lshl_add_u32 v9, v{vN}, 4, v9'); I(f'v_add_u32 v{vOS+hp}, s{t2}, v9')
    sadd(t4,t3,5*hp+4); I(f's_lshr_b32 s{t5}, s{t4}, 2'); I(f's_lshl_b32 s{t5}, s{t5}, 12'); I(f's_and_b32 s{t4}, s{t4}, 3'); I(f's_lshl_b32 s{t4}, s{t4}, 8')
    sacc(t4,t5); sacc(t4,t2)
    I(f'v_lshlrev_b32 v9, 10, v{vG}'); I(f'v_lshl_add_u32 v9, v{vN}, 4, v9'); I(f'v_add_u32 v{vO5+hp}, s{t4}, v9')
I(f's_lshl_b32 s{t1}, s{t1}, 3'); sacc(t1,sGrp); I(f's_lshl_b32 s{t1}, s{t1}, 7'); sadd(t1,t1,WS_FL+FL_O*128); I(f'v_mov_b32 v15, s{t1}')
I(f's_lshl_b32 s{t1}, s{sGrp}, 13'); sadd(t1,t1,WS_KVA)
I(f'v_add_u32 v{vKP}, s{t1}, v218'); vconst(9,OOB); I(f'v_cmp_gt_u32 vcc, 18, v{vL}'); I(f'v_cndmask_b32 v{vKP+1}, v9, v{vKP}, vcc')
I(f's_lshl_b32 s{t1}, s{sGrp}, 6')
I(f'v_add_u32 v8, s{t1}, v{vL}'); I(f'v_lshlrev_b32 v8, 7, v8'); I(f'v_add_u32 v13, {WS_FL+FL_KV*128}, v8')
KF=16; QF=120; OD=48; O5=184; PB=48
I('s_waitcnt lgkmcnt(0)')
for u in range(8):
    rt,hp=u>>1,u&1
    for hb in range(2):
        for hh in range(2): I(f'ds_read_b64_tr_b16 {v(QF+u*8+hb*4+2*hh,2)}, v{vPR+hh} offset:{(2*hp+hb)*20*PQS+32*rt}')
    if u%2==1: I('s_waitcnt lgkmcnt(4)')
I(f's_mov_b32 s{sEx}, -1'); I(f's_mov_b32 s{sEx+1}, 0'); I(f's_movk_i32 s{t0}, 0x1000')
stamp(20)
NQ=E('NQ',5*KB)
emit(bls(QW,NQ))
stamp(17)
poll([13],9)
stamp(18)
for hp in range(2):
    for i in range(4): I(f'buffer_load_dwordx4 {v(PB+hp*16+4*i,4)}, v{vKP+(i==3)}, {srd(sWS)}, {"0" if hp==0 else "s%d"%t0} offen offset:{1024*i} sc1')
for hp in range(2):
    for i in range(4):
        b=PB+hp*16+4*i
        I(f's_waitcnt vmcnt({7-hp*4-i})')
        I(f'v_cvt_pk_bf16_f32 v{b}, v{b}, v{b+1}'); I(f'v_cvt_pk_bf16_f32 v{b+1}, v{b+2}, v{b+3}')
        I(f'ds_write_b64 v{vKW+i}, {v(b,2)} offset:{2752*hp}')
for hp in range(2):
    for j in (2,0,3,1): I(f'ds_read_b128 {v(KF+(hp*4+j)*4,4)}, v{vKR+j} offset:{2752*hp}')
stamp(19)
def omf(u):
    hp=u&1; q=QF+u*8; d=OD+(u%4)*12
    I(f'{MF} {v(d+8,4)}, {v(KF+(hp*4+2)*4,4)}, {v(q,4)}, 0')
    I(f'{MF} {v(d,4)}, {v(KF+(hp*4+0)*4,4)}, {v(q,4)}, 0')
    I(f'{MF} {v(d+8,4)}, {v(KF+(hp*4+3)*4,4)}, {v(q+4,4)}, {v(d+8,4)}')
    I(f'{MF} {v(d+4,4)}, {v(KF+(hp*4+1)*4,4)}, {v(q+4,4)}, 0')
def ofin(u):
    rt,hp=u>>1,u&1; d=OD+(u%4)*12; o=192+(u&1)*4
    I(f'v_pk_add_f32 {v(d+10,2)}, {v(d+10,2)}, s[{sAo}:{sAo+1}] op_sel:[0,1]')
    I(f'v_rcp_f32 v{d+10}, v{d+10}'); I(f'v_rcp_f32 v{d+11}, v{d+11}')
    I('s_nop 0')
    for p in range(2): I(f'v_pk_mul_f32 {v(d+2*p,2)}, {v(d+2*p,2)}, {v(d+10,2)} op_sel_hi:[1,0]')
    for p in range(2): I(f'v_pk_mul_f32 {v(d+4+2*p,2)}, {v(d+4+2*p,2)}, {v(d+10,2)} op_sel:[0,1]')
    I(f'v_cndmask_b32 v{d+10}, v{d+11}, v{d+10}, s[{sEx}:{sEx+1}]')
    for p in range(4): I(f'v_cvt_pk_bf16_f32 v{o+p}, v{d+2*p}, v{d+2*p+1}')
    I(f'buffer_store_dwordx4 {v(o,4)}, v{vOS+hp}, {srd(sWS)}, 0 offen offset:{1024*rt} sc1')
    I(f'v_pk_mul_f32 {v(d+8,2)}, {v(d+8,2)}, {v(d+10,2)} op_sel_hi:[1,0]')
    I(f'v_cvt_pk_bf16_f32 v{O5+hp*4+rt}, v{d+8}, v{d+9}')
I('s_waitcnt lgkmcnt(4)'); omf(0); I('s_waitcnt lgkmcnt(0)'); omf(1)
for u in range(8):
    if u+2<8: weave(cap(ofin,u),cap(omf,u+2))
    else: ofin(u)
for hp in range(2):
    b=O5+hp*4
    I(f'v_permlane32_swap_b32 v{b}, v{b+2}'); I(f'v_permlane32_swap_b32 v{b+1}, v{b+3}')
    I(f'v_permlane16_swap_b32 v{b}, v{b+1}'); I(f'v_permlane16_swap_b32 v{b+2}, v{b+3}')
    I(f'buffer_store_dwordx4 {v(b,4)}, v{vO5+hp}, {srd(sWS)}, 0 offen sc1')
stamp(21)
I(f'v_mov_b32 v10, s{sTag}'); I(f'v_mov_b32 v11, s{sTag}'); I('s_nop 0' if POI else 's_waitcnt vmcnt(0)'); I('s_mov_b64 exec, 1'); I(f'buffer_store_dwordx2 v[10:11], v15, {srd(sWS)}, 0 offen sc1'); I('s_mov_b64 exec, -1')
stamp(22)
emit(bls(NQ,5*KB))
lab('Lp3')
vA,vGg,vFa,vFo,vL16=4,5,8,9,6
vOA,vTW,vTR,vAR,vAW,vOW,vOW4,vOR,vOut,vSg=240,244,247,248,249,250,251,252,253,14
AD2=160
I(f'v_lshlrev_b32 v{vL16}, 4, v{vL}')
for r in range(4):
    sadd(t0,sW,r); I(f's_and_b32 s{t0}, s{t0}, 3'); I(f's_lshl_b32 s{t1}, s{t0}, 10'); I(f'v_add_u32 v{vOA+r}, s{t1}, v{vL16}')
    if r: smul(t0,t0,15360); sadd(t0,t0,L_TB+(r-1)*5120); I(f'v_add_u32 v{vTW+r-1}, s{t0}, v{vL16}')
smul(t0,sW,15360); sadd(t0,t0,L_TB); I(f'v_add_u32 v{vTR}, s{t0}, v{vL16}')
smul(t0,sW,3072); sadd(t0,t0,L_TA); I(f'v_add_u32 v{vAR}, s{t0}, v{vL16}')
smul(t0,sWr,12288); sadd(t0,t0,L_TA); I(f'v_add_u32 v{vAW}, s{t0}, v{vL16}')
I(f's_lshl_b32 s{t0}, s{sN2}, 3')
smul(t1,sRot,4*0x199a); I(f's_lshr_b32 s{t1}, s{t1}, 16'); I(f'v_add_u32 v7, s{t1}, v{vL}'); I(f'v_and_b32 v7, 7, v7'); I(f'v_add_u32 v7, s{t0}, v7'); I(f's_mov_b32 s{sT}, s{t1}'); I(f'v_lshlrev_b32 v7, 7, v7'); I(f'v_add_u32 v{vFo}, {WS_FL+FL_O*128}, v7')
vconst(15,560)
for i in range(3):
    I(f'v_add_u32 v12, {64*i}, v{vL}'); div10(13,12); I(f'v_mul_u32_u24 v14, 10, v13'); I(f'v_sub_u32 v14, v12, v14')
    I(f'v_mul_u32_u24 v13, 40960, v13'); I(f'v_lshl_add_u32 v13, v14, 4, v13'); I(f'v_cmp_lt_u32 vcc, 4, v14'); I(f'v_cndmask_b32 v14, 0, v15, vcc'); I(f'v_add_u32 v{vOut+i}, v13, v14')
vconst(12,OOB); I(f'v_cmp_gt_u32 vcc, 32, v{vL}'); I(f'v_cndmask_b32 v{vOut+2}, v12, v{vOut+2}, vcc')
smul(sB0,sW,16*40960); smul(t1,sN2,1280); sacc(sB0,t1); smul(t1,sCt,80); sacc(sB0,t1)
smul(t2,sW,2560); sadd(t2,t2,L_OUT)
I(f'v_mul_u32_u24 v12, 160, v{vN}'); I(f'v_lshl_add_u32 v12, v{vG}, 3, v12'); I(f'v_add_u32 v{vOW}, s{t2}, v12'); I(f'v_add_u32 v{vOR}, s{t2}, v{vL16}')
I(f'v_lshrrev_b32 v12, 5, v{vL}'); I(f'v_lshl_add_u32 v{vOW4}, v12, 6, v{vOW}'); I(f'v_lshlrev_b32 v12, 31, v12'); I(f'v_or_b32 v{vSg}, 0x3f800000, v12')
I(f's_lshl_b32 s{sB1}, s{sN2}, 8'); I(f's_lshl_b32 s{t1}, s{sW}, 6'); sacc(sB1,t1); sadd(sB1,sB1,WS_G)
I(f'v_lshlrev_b32 v7, 2, v{vN}')
smul(sDl,sN2,81920); I(f's_lshl_b32 s{t1}, s{sRot}, 12'); I(f's_add_u32 s{sMA}, s{sDl}, s{t1}'); sadd(sMA,sMA,WS_O); sadd(sMB,sMA,KB*4096); I(f's_lshl_b32 s{t1}, s84, 12'); I(f's_add_u32 s{sA2}, s{sMA}, s{t1}')
C3=16; PA=E('PA',3)
I(f's_cmp_eq_u32 s{sWc}, 0'); I('s_cbranch_scc0 Lp3b')
emit(bls(0,5*KA,120))
I(f'v_lshrrev_b32 v{vA}, 2, v{vN}'); I(f'v_lshlrev_b32 v{vA}, 8, v{vA}'); I(f'v_lshl_add_u32 v{vA}, v{vG}, 6, v{vA}'); I(f'v_and_b32 v12, 3, v{vN}'); I(f'v_lshl_add_u32 v{vA}, v12, 4, v{vA}')
smul(t1,sWr,40960); I(f's_add_u32 s{sIs}, s{sDl}, s{t1}'); sadd(sIs,sIs,WS_R); sadd(sDm,sIs,40960); I(f's_lshl_b32 s{t1}, s85, 12'); I(f's_add_u32 s{sBstep}, s{sIs}, s{t1}')
smul(t0,sWr,48); sadd(t1,t0,47)
I(f'v_add_u32 v12, s{t0}, v{vL}'); I(f'v_min_u32 v12, s{t1}, v12'); I(f'v_lshlrev_b32 v12, 7, v12'); I(f'v_add_u32 v{vFa}, {WS_FL+FL_R*128}, v12')
stamp(24)
if E('PDELAY',0): I(f's_sleep {E("PDELAY",0)}')
if not PROG: poll2(vFa,10)
stamp(25)
sFst=sBo
def ppoll(vo,x2,need):
    uid[0]+=1; L=f'Lpp{uid[0]}'
    I(f's_cmp_ge_u32 s{sFst}, {need}'); I(f's_cbranch_scc0 {L}r'); lab(L+'c')
    ld=f'buffer_load_dwordx2 v[10:11], v{vo}, {srd(sWS)}, 0 offen sc1' if x2 else f'buffer_load_dword v10, v{vo}, {srd(sWS)}, 0 offen sc1'
    R=[L+'r:', ld, 's_waitcnt vmcnt(0)', f'v_cmp_ne_u32 vcc, s{sTag}, v10']
    if x2: R+=[f'v_cmp_ne_u32 s[{t4}:{t5}], s{sTag}, v11', 's_nop 0', f's_or_b64 vcc, vcc, s[{t4}:{t5}]']
    else: R+=['s_nop 0']
    R+=[f's_ff1_i32_b64 s{sFst}, vcc', f's_cmp_ge_u32 s{sFst}, {need}', f's_cbranch_scc1 {L}c', f's_sub_u32 s{sTo}, s{sTo}, 1', f's_cbranch_scc1 {L}c', f's_sleep {SLP}', f's_branch {L}r']
    RETRY.append(R)
RING=9; PAA=E('PAA',4)
RETRY=[]
def check(base,loads):
    if not POI: return
    uid[0]+=1; L=f'Lck{uid[0]}'
    lab(L)
    I(f'v_max3_u32 v12, v{base}, v{base+1}, v{base+2}')
    I(f'v_max3_u32 v13, v{base+3}, v{base+4}, v{base+5}')
    for i in range(5): I(f'v_max3_u32 v{12+(i&1)}, v{12+(i&1)}, v{base+6+2*i}, v{base+7+2*i}')
    I('v_max_u32 v12, v12, v13'); I('v_cmp_eq_u32 vcc, -1, v12'); I(f's_cbranch_vccnz {L}r')
    lab(L+'c')
    RETRY.append([L+'r:', f's_sub_u32 s{sTo}, s{sTo}, 1', f's_cbranch_scc1 {L}c', 's_sleep 2']+loads+['s_waitcnt vmcnt(0)', f's_branch {L}'])
def arf(i): return v(64+4*(i%(4*RING)),4)
def aload(ks): return [[f'buffer_load_dwordx4 {arf(ks*4+mt)}, v{vA}, {srd(sWS)}, s{sBstep} offen offset:{1024*mt} {HS}']+([f's_add_u32 s{sBstep}, s{sBstep}, 4096', f's_cmp_eq_u32 s{sBstep}, s{sDm}', f's_cselect_b32 s{sBstep}, s{sIs}, s{sBstep}'] if mt==3 else []) for mt in range(4)]
def aneed(ks):
    if not PROG: return
    if ks<6: ppoll(vFa,True,4*(ks+1))
    else:
        I(f's_mul_i32 s{t1}, s{sWr}, {4*(ks-5)}'); sadd(t1,t1,4*(ks+1)); ppoll(vFa,True,f's{t1}')
I(f's_mov_b32 s{sFst}, 0'); I(f's_mov_b32 s{sTo}, 0x40000')
for ks in range(PAA): aneed(ks); emit(aload(ks))
OF=144
def oload(ks): return [[f'buffer_load_dwordx4 {v(OF+((ks%5)*4+r)*4,4)}, v{vOA+r}, {srd(sWS)}, s{sA2} offen {HS}']+([f's_add_u32 s{sA2}, s{sA2}, 4096', f's_cmp_eq_u32 s{sA2}, s{sMB}', f's_cselect_b32 s{sA2}, s{sMA}, s{sA2}'] if r==3 else []) for r in range(4)]
def oneed(ks):
    if not PROG: return
    smul(t1,sRot,4*0x199a); sadd(t1,t1,(4*ks+3)*0x199a); I(f's_lshr_b32 s{t1}, s{t1}, 16'); I(f's_sub_u32 s{t1}, s{t1}, s{sT}'); sadd(t1,t1,1)
    ppoll(vFo,False,f's{t1}')
def bhead(NK):
    stamp(23)
    if not PROG: poll([vFo],10)
    I(f's_mov_b32 s{sFst}, 0'); I(f's_mov_b32 s{sTo}, 0x40000')
    pa=min(PA,NK)
    for ks in range(pa):
        oneed(ks)
        if ks==0: stamp(12)
        emit(oload(ks))
    if pa==NK:
        if PROG: ppoll(vFo,False,8)
        I(f'buffer_load_dword v{vGg}, v7, {srd(sWS)}, s{sB1} offen sc1')
EC=E('EC',1)
ext=0
for ks in range(10):
    I(f's_waitcnt vmcnt({4*(min(10,ks+PAA)-ks-1)+ext})')
    M=[f'{MF} {v(C3+(mt*3+nt)*4,4)}, {arf(ks*4+mt)}, {a_((ks*3+nt)*4,4)}, {"0" if ks==0 else v(C3+(mt*3+nt)*4,4)}' for nt in range(3) for mt in range(4)]
    X=aload(ks+PAA) if ks+PAA<10 else []
    if EC and ks==10-PAA: X=[[f'buffer_load_dword v10, v{vFo}, {srd(sWS)}, 0 offen sc1']]; ext=1
    weave(M,X,0,len(M)-2)
if EC:
    stamp(23)
    I('s_waitcnt vmcnt(0)'); I(f'v_cmp_ne_u32 vcc, s{sTag}, v10'); I('s_cbranch_vccz LoOK')
    poll([vFo],10)
    lab('LoOK')
    stamp(12)
    for ks in range(KA): emit(oload(ks))
    I(f'buffer_load_dword v{vGg}, v7, {srd(sWS)}, s{sB1} offen sc1')
EO=E('EO',1)
if EO and not EC: bhead(KA)
TF_=208; AO=96
for nt in range(3):
    for kb in range(2):
        o=TF_+(nt*2+kb)*4
        for q in range(2):
            for p in range(2):
                b=C3+((2*kb+q)*3+nt)*4+2*p; I(f'v_cvt_pk_bf16_f32 v{o+2*q+p}, v{b}, v{b+1}')
for nt in range(3):
    for kb in range(2):
        for w_ in range(4):
            c=v(AO+(w_*3+nt)*4,4); I(f'{MF} {c}, {v(TF_+(nt*2+kb)*4,4)}, {a_(AD2+(w_*2+kb)*4,4)}, {"0" if kb==0 else c}')
TAW=[f'ds_write_b128 v{vAW}, {v(AO+(w_*3+nt)*4,4)} offset:{(w_*3+nt)*1024}' for nt in range(3) for w_ in range(4)]
WV=E('WV',1)
if not WV: emit(TAW)
def bmain(NK,AB,head=True,extra=[]):
    extra=list(extra)
    pa=min(PA,NK)
    gl=[f'buffer_load_dword v{vGg}, v7, {srd(sWS)}, s{sB1} offen sc1']
    if head: bhead(NK)
    g=1 if pa==NK else 0
    for ks in range(NK):
        I(f's_waitcnt vmcnt({4*(min(NK,ks+pa)-ks-1)+g})')
        check(OF+(ks%5)*16,[f's_add_u32 s{t0}, s{sMA}, {4096*ks}']+[f'buffer_load_dwordx4 {v(OF+((ks%5)*4+r)*4,4)}, v{vOA+r}, {srd(sWS)}, s{t0} offen sc1' for r in range(4)])
        last=ks==NK-1
        order=[(nt,r) for nt in range(5) for r in range(4)] if not last else [(nt,r) for r in (1,2,3,0) for nt in range(5)]
        M=[f'{MF} {v(C3+(r*5+nt)*4,4)}, {a_(AB+(ks*5+nt)*4,4)}, {v(OF+((ks%5)*4+r)*4,4)}, {"0" if ks==0 else v(C3+(r*5+nt)*4,4)}' for nt,r in order]
        X=[]
        if ks+pa<NK: oneed(ks+pa); X=oload(ks+pa)
        elif not g:
            if PROG: ppoll(vFo,False,8)
            X=[gl]; g=1
        if not last: weave(M,X,0,len(M)-2)
        else:
            emit(X)
            for i,m in enumerate(M):
                I(m)
                if i<8: emit(extra[len(extra)*i//8:len(extra)*(i+1)//8])
                if i>=8: r,nt=divmod(i-8,5); I(f'ds_write_b128 v{vTW+r}, {v(C3+((r+1)*5+nt)*4,4)} offset:{1024*nt}')
bmain(KA,120,not EO,TAW if WV else [])
I('s_branch Lp3t')
lab('Lp3b')
bmain(KB,0)
lab('Lp3t')
I('s_nop 7')
stamp(26)
for i in range(12,15):
    r,nt=divmod(i,5); I(f'ds_write_b128 v{vTW+r}, {v(C3+((r+1)*5+nt)*4,4)} offset:{1024*nt}')
scale=struct.unpack('<I',struct.pack('<f',2.0/(2048*640)))[0]
I('s_waitcnt vmcnt(0)')
I(f'v_sub_f32 v11, 1.0, v{vGg}'); I(f'v_cvt_pk_bf16_f32 v11, v11, v11'); I(f'v_and_b32 v11, 0xffff0000, v11'); I(f'v_mul_f32 v10, 0x{scale:x}, v{vGg}')
I('s_waitcnt lgkmcnt(0)'); I('s_barrier')
stamp(27)
AE=160; TBF=96; OA=40
for t_ in range(3):
    for p_ in range(2): I(f'ds_read_b128 {v(AE+(t_*2+p_)*4,4)}, v{vAR} offset:{p_*12288+t_*1024}')
rb_=[f'ds_read_b128 {v(TBF+(nt*3+r)*4,4)}, v{vTR} offset:{r*5120+nt*1024}' for nt in range(5) for r in range(3)]
emit(rb_[:9])
I('s_waitcnt lgkmcnt(9)')
emit(rb_[9:])
for u in range(5):
    t_=(0,1,0,1,2)[u]; e_,o_2=AE+t_*8,AE+t_*8+4; c=OA+4*u
    for p in range(2):
        if u<4: I(f'v_pk_add_f32 {v(c+2*p,2)}, {v(e_+2*p,2)}, {v(o_2+2*p,2)}'+(' neg_lo:[0,1] neg_hi:[0,1]' if u>=2 else ''))
        else: I(f'v_pk_fma_f32 {v(c+2*p,2)}, {v(o_2+2*p,2)}, v[{vSg}:{vSg+1}], {v(e_+2*p,2)} op_sel_hi:[1,0,1]')
        I(f'v_pk_mul_f32 {v(c+2*p,2)}, {v(c+2*p,2)}, v[10:11] op_sel_hi:[1,0]')
for u in range(5):
    I(f's_waitcnt lgkmcnt({12-2*u})')
    b0=TBF+u*12; c=OA+4*u; own=C3+u*4
    for p in range(2):
        I(f'v_pk_add_f32 {v(b0+2*p,2)}, {v(b0+2*p,2)}, {v(b0+4+2*p,2)}')
        I(f'v_pk_add_f32 {v(own+2*p,2)}, {v(own+2*p,2)}, {v(b0+8+2*p,2)}')
        I(f'v_pk_add_f32 {v(b0+2*p,2)}, {v(b0+2*p,2)}, {v(own+2*p,2)}')
        I(f'v_pk_fma_f32 {v(c+2*p,2)}, {v(b0+2*p,2)}, v[10:11], {v(c+2*p,2)} op_sel:[0,1,0]')
    I(f'v_cvt_pk_bf16_f32 v{c}, v{c}, v{c+1}'); I(f'v_cvt_pk_bf16_f32 v{c+1}, v{c+2}, v{c+3}')
    I(f'ds_write_b64 v{vOW if u<4 else vOW4}, {v(c,2)} offset:{(0,32,80,112,64)[u]}')
I('s_waitcnt lgkmcnt(0)')
for i in range(3): I(f'ds_read_b128 {v(64+4*i,4)}, v{vOR} offset:{1024*i}')
for i in range(3):
    I(f's_waitcnt lgkmcnt({2-i})'); I(f'buffer_store_dwordx4 {v(64+4*i,4)}, v{vOut+i}, {srd(sOUT)}, s{sB0} offen {OUTPOL}')
I(f's_or_b32 s{t0}, s2, s{sW}'); I(f's_cmp_eq_u32 s{t0}, 0'); I('s_cbranch_scc0 Lnoe')
vconst(15,WS_E); setflag(15,14)
lab('Lnoe')
if PADT:
    lab('Lpad'); I(f's_memrealtime s[{sTS}:{sTS+1}]'); I('s_waitcnt lgkmcnt(0)'); I(f's_sub_u32 s{t0}, s{sTS}, s{sTS+2}'); I(f's_cmp_lt_u32 s{t0}, {PADT}'); I('s_cbranch_scc1 Lpad')
if TS:
    stamp(28)
    I(f's_lshl_b32 s{t0}, s2, 2'); sacc(t0,sW); I(f's_lshl_b32 s{t0}, s{t0}, 8'); sadd(t0,t0,WS_TS)
    I(f'v_lshlrev_b32 v4, 2, v{vL}')
    I(f'buffer_store_dword v0, v4, {srd(sWS)}, s{t0} offen')
lab('Lend')
I('s_endpgm')
emit(RETRY)
lab('Lfin')
body_txt=A.finish()
hdr=open(os.path.join(os.path.dirname(os.path.abspath(__file__)),'..','cdna_kernels',NAME+'.s.ref')).read().split('; Override launch')[0]
o_=hdr+f'; @launch grid=(256,1,1) block=(256,1,1) lds={LDS_SZ}\n'
o_+=f'.amdgcn_target "amdgcn-amd-amdhsa--gfx950"\n.text\n.globl {K}\n.p2align 8\n.type {K},@function\n{K}:\n'+body_txt
o_+=f'''.section .rodata,"a"
.p2align 6
.amdhsa_kernel {K}
  .amdhsa_next_free_vgpr 512
  .amdhsa_next_free_sgpr 102
  .amdhsa_accum_offset 256
  .amdhsa_group_segment_fixed_size 0
  .amdhsa_kernarg_size 80
  .amdhsa_user_sgpr_count 2
  .amdhsa_user_sgpr_kernarg_segment_ptr 1
  .amdhsa_system_sgpr_workgroup_id_x 1
.end_amdhsa_kernel
'''
if DEV: o_+='.p2align 8\n.type tab_base,@object\ntab_base:\n@@INCBIN@@\n'
else: o_+=TB.emit()
o=[a for a in sys.argv[1:] if not a.startswith('--')]
open(o[0] if o else 'out.s','w').write(o_)
print('instructions:',sum(1 for l in body_txt.split('\n') if l.startswith('    ')),'nops inserted:',A.nnops,file=sys.stderr)
```
